```python
import torch

def _softmax(x, axis=-1):
    return torch.softmax(x, dim=axis)
def _gelu(x):
    return torch.nn.functional.gelu(x, approximate="tanh")
def _silu(x):
    return torch.nn.functional.silu(x)
def _sigmoid(x):
    return torch.sigmoid(x)
def _layernorm(x, axis=-1, eps=1e-5):
    m = x.mean(dim=axis, keepdim=True)
    v = x.var(dim=axis, keepdim=True, unbiased=False)
    return (x - m) / torch.sqrt(v + eps)
def _scatter_add(tgt, idx, src, axis=0):
    return tgt.clone().index_add_(axis, idx, src)
def _segment_sum(src, seg, n):
    out = torch.zeros((n,) + src.shape[1:], dtype=src.dtype)
    return out.index_add_(0, seg, src)
def _pad(x, pw):
    flat = tuple(v for pair in reversed(pw) for v in pair)
    return torch.nn.functional.pad(x, flat)

kernel_name = 'interleave_layers__softmax_full_mha__mixer_token_mlp__prompt'

def setup_inputs():

    _w = (lambda a: (lambda t: t.to(torch.bfloat16) if t.is_floating_point() else t)(torch.as_tensor(a)))
    def _A_setup():
        B, S, D = 1, 2048, 512
        return {
            "x": _w((lambda *s: torch.randn(*s, dtype=torch.bfloat16) * 0.05)(B, S, D)),
            "wqkv": _w((lambda *s: torch.randn(*s, dtype=torch.bfloat16) * 0.05)(D, 3 * D)),
            "wo": _w((lambda *s: torch.randn(*s, dtype=torch.bfloat16) * 0.05)(D, D)),
        }
    _A_in = _A_setup()

    def _B_setup():
        B, S, D, F = 1, 2048, 512, 1792
        return {
            "x": _w((lambda *s: torch.randn(*s, dtype=torch.bfloat16) * 0.05)(B, S, D)),
            "w1": _w((lambda *s: torch.randn(*s, dtype=torch.bfloat16) * 0.8)(S, F) * (S ** -0.5)),
            "b1": _w((lambda *s: torch.randn(*s, dtype=torch.bfloat16) * 12.8)(F) * 0.02),
            "w2": _w((lambda *s: torch.randn(*s, dtype=torch.bfloat16) * 0.2)(F, S) * (F ** -0.5)),
            "b2": _w((lambda *s: torch.randn(*s, dtype=torch.bfloat16) * 3.2)(S) * 0.02),
        }
    _B_in = _B_setup()

    return {
        "A_x": _A_in["x"],
        "A_wqkv": _A_in["wqkv"],
        "A_wo": _A_in["wo"],
        "B_x": _B_in["x"],
        "B_w1": _B_in["w1"],
        "B_b1": _B_in["b1"],
        "B_w2": _B_in["w2"],
        "B_b2": _B_in["b2"],
    }

def reference(A_x, A_wqkv, A_wo, B_x, B_w1, B_b1, B_w2, B_b2):
    def _A_ref(x, wqkv, wo):
        B, S, D = x.shape
        H = 32; Dh = D // H
        qkv = (lambda x, *d: x.permute(*d))((x @ wqkv).reshape(B, S, 3, H, Dh), 2, 0, 3, 1, 4)
        q, k, v = qkv[0], qkv[1], qkv[2]
        scale = Dh ** -0.5
        scores = torch.einsum("bhqd,bhkd->bhqk", q, k) * scale
        p = _softmax(scores, axis=-1)
        o = torch.einsum("bhqk,bhkd->bhqd", p, v)
        return (lambda x, *d: x.permute(*d))(o, 0, 2, 1, 3).reshape(B, S, D) @ wo

    def _B_ref(x, w1, b1, w2, b2):
        B, S, D = x.shape
        h = _layernorm(x, axis=-1)
        u = torch.einsum("bsd,sf->bdf", h, w1) + b1
        u = _gelu(u)
        y = torch.einsum("bdf,fs->bds", u, w2) + b2
        return (lambda x, *d: x.permute(*d))(y, 0, 2, 1)

    x = A_x
    x = x + _A_ref(_layernorm(x, axis=-1), A_wqkv, A_wo)
    x = x + _B_ref(_layernorm(x, axis=-1), B_w1, B_b1, B_w2, B_b2)
    x = x + _A_ref(_layernorm(x, axis=-1), A_wqkv, A_wo)
    x = x + _B_ref(_layernorm(x, axis=-1), B_w1, B_b1, B_w2, B_b2)
    return x
```

```python
import sys, struct
NAME = "interleave_layers__softmax_full_mha__mixer_token_mlp__prompt"
HDR = open("cdna_kernels/%s.s.ref" % NAME).read().split("; Override launch")[0]
MB = 1 << 20
WS_KV, WS_O, WS_H, WS_U, WS_X2, WS_ST = 0*MB, 4*MB, 6*MB, 8*MB, 10*MB, 12*MB
LSTRIDE = 16*MB
WS_FLAG = 32*MB
WS_STAMP = 40*MB
KA = dict(x=0, wqkv=8, wo=16, w1=32, b1=40, w2=48, b2=56, out=64, dbg=72, ws=80)
SZ = dict(x=2048*512*2, wqkv=512*1536*2, wo=512*512*2, w1=2048*1792*2, b1=1792*2, w2=1792*2048*2, b2=2048*2,
          out=2048*512*2, dbg=256, ws=1 << 28)
FL = dict(KV=0, H=64, U=128, O=192, X=224)
COLK = ('KV', 'H', 'U')
SPIN = 200000
NARCH = 144

class Cfg:
    stamp = False
    prio = True
    lowtiles = 1
    D = 3
    nB = 12
    sch1 = '033343'
    sch2 = '033033'
    sch3 = '444'
    stouch = 1
    p1touch = 1
    now1 = 0
    nQ = 12
C = Cfg()

class Asm:
    def __init__(self): self.L = []; self.n = 0
    def __call__(self, s):
        for line in s.split("\n"):
            line = line.strip()
            if line: self.L.append(("" if line.endswith(":") else "    ") + line)
    def label(self, p="L"):
        self.n += 1; return f"{p}{self.n}"
    def text(self): return "\n".join(self.L) + "\n"

def f2u(x): return hex(struct.unpack("<I", struct.pack("<f", x))[0])

S_XS, S_QKV, S_WS, S_WO, S_W1, S_W2, S_B1, S_B2, S_XD, S_DBG, S_KV = 8, 12, 16, 20, 24, 28, 32, 36, 40, 44, 80
sI, sJ, sW, sL, sLB, sFL = 48, 49, 50, 51, 52, 53
sW2S = 54
sVW = 55
sXO = 57
sOUT = 58
T = 60
sST = 76
sRET = 84
vL, vN, vC, vL16, vXO = 1, 2, 3, 4, 5
vRES = 8
vF2, vTRF, vWQ = 12, 13, 14
TV = 16
E, V = 0, 65536
STG = V + 65536

STAMPS = []
def stamp(a, name):
    if not C.stamp: return
    k = len(STAMPS); assert k < 32
    a(f"s_memtime s[{sST}:{sST+1}]\ns_memrealtime s[{sST+2}:{sST+3}]\ns_waitcnt lgkmcnt(0)")
    a(f"v_writelane_b32 v6, s{sST}, {k}\nv_writelane_b32 v6, s{sST+2}, {k+32}")
    STAMPS.append(name)

def dpp_red8(a, regs):
    for pat in ("quad_perm:[1,0,3,2]", "quad_perm:[2,3,0,1]", "row_half_mirror"):
        a("s_nop 1")
        for r in regs: a(f"v_add_f32_dpp v{r}, v{r}, v{r} {pat} row_mask:0xf bank_mask:0xf")

def tr_addr(a, vd, xh, perm, t0, t1):
    a(f"v_lshrrev_b32 v{t0}, 5, v{vL}\nv_lshlrev_b32 v{t0}, {2 if perm else 3}, v{t0}")
    a(f"v_bfe_u32 v{t1}, v{vL}, 2, 2\nv_add_u32 v{t0}, v{t0}, v{t1}\nv_lshlrev_b32 v{vd}, 7, v{t0}")
    a(f"v_lshrrev_b32 v{t1}, 1, v{t1}\nv_xor_b32 v{t1}, {xh}, v{t1}\nv_lshl_add_u32 v{vd}, v{t1}, 6, v{vd}")
    a(f"v_bfe_u32 v{t1}, v{vL}, 4, 1\nv_lshl_add_u32 v{vd}, v{t1}, 5, v{vd}")
    a(f"v_and_b32 v{t1}, 3, v{vL}\nv_lshl_add_u32 v{vd}, v{t1}, 3, v{vd}")

def interleave(a, m, r):
    per = -(-len(r)//len(m))
    for x in range(len(m)):
        a(m[x])
        for y in r[x*per:(x+1)*per]: a(y)

def publish(a, kind, group_s):
    col = kind in COLK
    a(f"s_lshl_b32 s{T}, s{group_s}, {10 if col else 7}\ns_add_u32 s{T}, s{T}, {FL[kind]*128}\ns_add_u32 s{T}, s{T}, s{sFL}")
    a(f"v_mov_b32 v{TV}, 1\nv_lshlrev_b32 v{TV+1}, 7, v{vL}\ns_mov_b64 exec, {0xff if col else 1}")
    a(f"buffer_atomic_add v{TV}, v{TV+1}, s[{S_WS}:{S_WS+3}], s{T} offen sc1")
    a("s_mov_b64 exec, -1")

def poll(a, kind, group_s, n):
    col = kind in COLK
    a(f"s_lshl_b32 s{T}, s{group_s}, {10 if col else 7}\ns_add_u32 s{T}, s{T}, {FL[kind]*128}\ns_add_u32 s{T}, s{T}, s{sFL}")
    if col: a(f"s_and_b32 s{T+1}, s{sI}, 7\ns_lshl_b32 s{T+1}, s{T+1}, 7\ns_add_u32 s{T}, s{T}, s{T+1}")
    a(f"s_mov_b64 exec, 1\ns_mov_b32 s{T+1}, {SPIN}")
    LP = a.label(); LD = a.label()
    a(f"{LP}:")
    a(f"buffer_load_dword v{TV}, v{vL16}, s[{S_WS}:{S_WS+3}], s{T} offen sc1")
    a(f"s_waitcnt vmcnt(0)\nv_cmp_ne_u32 vcc, {n}, v{TV}")
    a(f"s_cbranch_vccz {LD}")
    a(f"s_sub_u32 s{T+1}, s{T+1}, 1\ns_cmp_lg_u32 s{T+1}, 0\ns_cbranch_scc1 {LP}")
    a(f"{LD}:\ns_mov_b64 exec, -1")

def if_wave_eq(a, w, body):
    L = a.label()
    a(f"s_cmp_lg_u32 s{sW}, {w}\ns_cbranch_scc1 {L}")
    body()
    a(f"{L}:")

def qkv_src(u): return (u >> 1)*64*3072 + (1 + (u & 1))*1024 if u < 16 else (u-16)*64*3072

def qkv_base8(a, s):
    a(f"s_mul_i32 s{s}, s{sW}, {8*3072}\ns_lshl_b32 s{T}, s{sJ}, 7\ns_add_u32 s{s}, s{s}, s{T}")

def qkv_piece8(a, s, u):
    a(f"s_add_u32 m0, s{sVW}, {(u % 12)*8192}\ns_add_u32 s{T}, s{s}, {qkv_src(u)}")
    a(f"buffer_load_dwordx4 v{vWQ}, s[{S_QKV}:{S_QKV+3}], s{T} offen lds")

def w2_dma(a, f):
    a(f"s_add_u32 m0, s{sVW}, {(f % 12)*8192}\ns_add_u32 s{T}, s{sW2S}, {f*16*4096}")
    a(f"buffer_load_dwordx4 v{vF2}, s[{S_W2}:{S_W2+3}], s{T} offen lds")

def frag_reads(dst, vaddr, off):
    p, n = dst[0], int(dst[1:])
    return [f"ds_read_b64_tr_b16 {p}[{n}:{n+1}], v{vaddr} offset:{off}", f"ds_read_b64_tr_b16 {p}[{n+2}:{n+3}], v{vaddr} offset:{off+256}"]

def w2_reads(f, vlo, vhi):
    s = f % 12
    return frag_reads(f"a{4*f}", vlo if s < 8 else vhi, (s % 8)*8192)

def prologue(a):
    a(f"s_cmp_ge_u32 s2, 256\ns_cbranch_scc1 L_end")
    for s, n in ((S_XS, "x"), (S_QKV, "wqkv"), (S_WS, "ws"), (S_WO, "wo"), (S_W1, "w1"), (S_W2, "w2"), (S_B1, "b1"), (S_B2, "b2"), (S_DBG, "dbg"), (S_KV, "ws")):
        a(f"s_load_dwordx2 s[{s}:{s+1}], s[0:1], {KA[n]}")
        a(f"s_mov_b32 s{s+2}, {hex(SZ[n])}\ns_mov_b32 s{s+3}, 0x00020000")
    a(f"s_load_dwordx2 s[{sOUT}:{sOUT+1}], s[0:1], {KA['out']}")
    a(f"s_mov_b32 s{S_XD+2}, {hex(SZ['x'])}\ns_mov_b32 s{S_XD+3}, 0x00020000")
    a(f"s_and_b32 s{sI}, s2, 31\ns_lshr_b32 s{sJ}, s2, 5")
    a(f"v_lshrrev_b32 v{vL}, 6, v0\ns_nop 0\nv_readfirstlane_b32 s{sW}, v{vL}\nv_and_b32 v{vL}, 63, v0")
    a(f"v_lshrrev_b32 v{vN}, 3, v0\nv_and_b32 v{vC}, 7, v0\nv_lshlrev_b32 v{vL16}, 4, v{vL}")
    a(f"v_lshlrev_b32 v{vXO}, 10, v{vN}\nv_lshl_add_u32 v{vXO}, v{vC}, 4, v{vXO}")
    a(f"s_lshl_b32 s{sXO}, s{sI}, 16\ns_lshl_b32 s{T}, s{sJ}, 7\ns_add_u32 s{sXO}, s{sXO}, s{T}")
    a(f"s_mov_b32 s{sL}, 0\ns_mov_b32 s{sLB}, 0\ns_mov_b32 s{sFL}, {WS_FLAG}")
    if C.stamp: a("v_mov_b32 v6, 0\nv_mov_b32 v7, 0")
    a(f"v_lshrrev_b32 v40, 3, v{vL}\nv_bfe_u32 v41, v{vL}, 4, 1\nv_lshlrev_b32 v41, 2, v41\nv_and_b32 v42, 7, v{vL}\nv_xor_b32 v41, v41, v42\nv_lshlrev_b32 v41, 4, v41")
    a(f"v_mul_u32_u24 v{vWQ}, 3072, v40\nv_add_u32 v{vWQ}, v{vWQ}, v41")
    a(f"s_lshl_b32 s{sVW}, s{sW}, 10\ns_add_u32 s{sVW}, s{sVW}, {V}")
    a("s_waitcnt lgkmcnt(0)")
    stamp(a, "start")
    a(f"s_add_u32 s{S_XD}, s{S_WS}, {WS_X2}\ns_addc_u32 s{S_XD+1}, s{S_WS+1}, 0")

def prologue2(a):
    a(f"v_lshrrev_b32 v40, 2, v{vL}\nv_and_b32 v41, 3, v{vL}\nv_lshlrev_b32 v41, 4, v41")
    a(f"v_lshl_add_u32 v{vF2}, v40, 12, v41")
    a(f"v_lshrrev_b32 v40, 5, v{vL}\nv_lshlrev_b32 v40, 3, v40\nv_bfe_u32 v41, v{vL}, 2, 2\nv_add_u32 v40, v40, v41\nv_lshlrev_b32 v{vTRF}, 6, v40")
    a(f"v_bfe_u32 v41, v{vL}, 4, 1\nv_lshl_add_u32 v{vTRF}, v41, 5, v{vTRF}\nv_and_b32 v41, 3, v{vL}\nv_lshl_add_u32 v{vTRF}, v41, 3, v{vTRF}")
    a(f"v_add_u32 v{vTRF}, s{sVW}, v{vTRF}")
    a(f"s_lshr_b32 s{sW2S}, s{sW}, 1\ns_mul_i32 s{sW2S}, s{sW2S}, {448*4096}\ns_lshl_b32 s{T}, s{sI}, 7\ns_add_u32 s{sW2S}, s{sW2S}, s{T}")
    a(f"s_and_b32 s{T}, s{sW}, 1\ns_lshl_b32 s{T}, s{T}, 6\ns_add_u32 s{sW2S}, s{sW2S}, s{T}")

def init_sync(a):
    def body():
        a("v_mov_b32 v40, 0\nv_mov_b32 v41, 0\nv_mov_b32 v42, 0\nv_mov_b32 v43, 0")
        a(f"s_lshl_b32 s{T}, s2, 10\ns_add_u32 s{T}, s{T}, {WS_ST}\ns_add_u32 s{T+1}, s{T}, {LSTRIDE}")
        a(f"buffer_store_dwordx4 v[40:43], v{vL16}, s[{S_WS}:{S_WS+3}], s{T} offen sc1")
        a(f"buffer_store_dwordx4 v[40:43], v{vL16}, s[{S_WS}:{S_WS+3}], s{T+1} offen sc1")
        a(f"s_lshl_b32 s{T}, s2, 8\ns_add_u32 s{T}, s{T}, {WS_FLAG}\ns_mov_b64 exec, 0xffff")
        a(f"buffer_store_dwordx4 v[40:43], v{vL16}, s[{S_WS}:{S_WS+3}], s{T} offen sc1")
        a("s_mov_b64 exec, -1")
    if_wave_eq(a, 5, body)

def init_arrive(a):
    L = a.label()
    a(f"s_cmp_lg_u32 s{sW}, 5\ns_cbranch_scc1 {L}")
    a(f"v_mov_b32 v{TV}, 1\nv_mov_b32 v{TV+1}, 0\ns_and_b32 s{T}, s2, 63\ns_lshl_b32 s{T}, s{T}, 2\ns_mov_b64 exec, 1")
    a(f"buffer_atomic_add v{TV}, v{TV+1}, s[{S_DBG}:{S_DBG+3}], s{T} offen sc1")
    a(f"s_mov_b64 exec, -1\n{L}:")

def wait_init(a, vaddr):
    a(f"s_mov_b32 s{T+1}, {SPIN}")
    LP = a.label(); LD = a.label()
    a(f"{LP}:\nv_cmp_ne_u32 vcc, 4, v{TV+2}\ns_cbranch_vccz {LD}")
    a(f"buffer_load_dword v{TV+2}, v{vaddr}, s[{S_DBG}:{S_DBG+3}], 0 offen sc1\ns_waitcnt vmcnt(0)")
    a(f"s_sub_u32 s{T+1}, s{T+1}, 1\ns_cmp_lg_u32 s{T+1}, 0\ns_cbranch_scc1 {LP}")
    a(f"{LD}:\ns_mov_b64 exec, -1")

def x_loads(a):
    a(f"s_lshl_b32 s{T}, s{sI}, 16")
    for q in range(8):
        a(f"buffer_load_dwordx4 v[{48+4*q}:{51+4*q}], v{vXO}, s[{S_XS}:{S_XS+3}], s{T} offen offset:{128*q} sc1")

def phase1(a):
    X = 48
    stamp(a, "p1.xarr")
    a("v_mov_b32 v40, 0\nv_mov_b32 v41, 0\nv_mov_b32 v42, 0\nv_mov_b32 v43, 0\nv_mov_b32 v44, 0x3f803f80")
    for r in range(0, 32, 2):
        a(f"v_dot2c_f32_bf16 v40, v{X+r}, v44\nv_dot2c_f32_bf16 v41, v{X+r}, v{X+r}")
        a(f"v_dot2c_f32_bf16 v42, v{X+r+1}, v44\nv_dot2c_f32_bf16 v43, v{X+r+1}, v{X+r+1}")
    a(f"v_lshrrev_b32 v46, 5, v{vN}\nv_lshlrev_b32 v46, 15, v46")
    a(f"v_lshrrev_b32 v47, 1, v{vC}\nv_lshl_add_u32 v46, v47, 10, v46")
    a(f"v_and_b32 v47, 1, v{vC}\nv_lshl_add_u32 v46, v47, 9, v46")
    a(f"v_and_b32 v47, 31, v{vN}\nv_xor_b32 v47, v47, v{vC}\nv_lshl_add_u32 v46, v47, 4, v46")
    a("v_add_f32 v40, v40, v42\nv_add_f32 v41, v41, v43")
    dpp_red8(a, [40, 41])
    a(f"v_mul_f32 v40, {f2u(1/512)}, v40\nv_mul_f32 v41, {f2u(1/512)}, v41")
    a("v_fma_f32 v41, -v40, v40, v41\nv_max_f32 v41, 0, v41")
    a(f"v_add_f32 v41, {f2u(1e-5)}, v41\nv_rsq_f32 v42, v41\ns_nop 0")
    a("v_mul_f32 v44, v40, v42\nv_sub_f32 v44, 0, v44\nv_mov_b32 v43, v42\nv_mov_b32 v45, v44")
    for q in range(8):
        t = 80 + 8*(q & 1)
        for e in range(4): a(f"v_lshlrev_b32 v{t+2*e}, 16, v{X+4*q+e}\nv_and_b32 v{t+2*e+1}, 0xffff0000, v{X+4*q+e}")
        for e in range(4): a(f"v_pk_fma_f32 v[{t+2*e}:{t+2*e+1}], v[{t+2*e}:{t+2*e+1}], v[42:43], v[44:45]")
        for e in range(4): a(f"v_cvt_pk_bf16_f32 v{X+4*q+e}, v{t+2*e}, v{t+2*e+1}")
        a(f"ds_write_b128 v46, v[{X+4*q}:{X+4*q+3}] offset:{E + 4096*q}")
    Lw = a.label()
    a(f"s_waitcnt vmcnt(1) lgkmcnt(0)\ns_cmp_eq_u32 s{sW}, 5\ns_cbranch_scc1 {Lw}\ns_waitcnt vmcnt(0)\n{Lw}:")
    stamp(a, "p1.ln")
    LC = a.label(); LJ = a.label()
    a(f"s_cmp_lt_u32 s{sW}, 4\ns_cbranch_scc1 {LC}")
    src, dst = T+2, T+3
    a(f"s_sub_u32 s{dst}, s{sW}, 4\ns_mul_i32 s{src}, s{dst}, {16*3072}\ns_lshl_b32 s{T}, s{sJ}, 7\ns_add_u32 s{src}, s{src}, s{T}")
    a(f"s_lshl_b32 s{dst}, s{dst}, 11\ns_add_u32 s{dst}, s{dst}, {V}")
    a(f"v_lshlrev_b32 v40, 2, v{vL}")
    p1t, p1o = T+4, T+5
    a(f"s_sub_u32 s{T}, s{sW}, 4\ns_lshl_b32 s{p1t}, s{T}, 9\ns_lshl_b32 s{T+1}, s{sJ}, 4\ns_add_u32 s{p1t}, s{p1t}, s{T+1}\ns_mul_i32 s{p1t}, s{p1t}, 3584")
    a(f"s_lshl_b32 s{T+1}, s{sI}, 7\ns_add_u32 s{p1t}, s{p1t}, s{T+1}\ns_add_u32 s{p1t}, s{p1t}, 60")
    a(f"s_lshr_b32 s{p1o}, s{sI}, 3\ns_lshl_b32 s{p1o}, s{p1o}, 2\ns_add_u32 s{p1o}, s{p1o}, s{T}\ns_lshl_b32 s{p1o}, s{p1o}, 13\ns_lshl_b32 s{T+1}, s{sJ}, 7\ns_add_u32 s{p1o}, s{p1o}, s{T+1}\ns_add_u32 s{p1o}, s{p1o}, 60")
    tl = [f"s_buffer_load_dwordx2 s[86:87], s[{S_W1}:{S_W1+3}], s{p1t} offset:{c*3584}" for c in range(16)] + [f"s_buffer_load_dwordx2 s[86:87], s[{S_WO}:{S_WO+3}], s{p1o} offset:{c*1024}" for c in range(8)]
    issued = 12
    for s in range(12):
        need = 2*s + 1
        if need >= 12: a(f"s_waitcnt vmcnt({2*(issued-1-need) + (1 if s > 8 else 0)})")
        a("s_barrier")
        if s >= 1 and issued < 24:
            for u in (issued, issued+1):
                for p in range(2):
                    a(f"s_add_u32 m0, s{dst}, {(u % 12)*8192 + p*1024}\ns_add_u32 s{T}, s{src}, {qkv_src(u) + p*8*3072}")
                    a(f"buffer_load_dwordx4 v{vWQ}, s[{S_QKV}:{S_QKV+3}], s{T} offen lds")
            issued += 2
        if s >= 6 and C.p1touch:
            for x in tl[4*(s-6):4*(s-5)]: a(x)
        if s == 8: a(f"buffer_load_dword v{TV+2}, v40, s[{S_DBG}:{S_DBG+3}], 0 offen sc1")
    def w4():
        L = a.label()
        a(f"s_cmp_lg_u32 s{sL}, 0\ns_cbranch_scc1 {L}")
        wait_init(a, 40)
        a(f"{L}:")
        publish(a, "KV", sJ)
    a("s_waitcnt vmcnt(0)")
    if_wave_eq(a, 4, w4)
    a("s_barrier")
    if_wave_eq(a, 4, lambda: poll(a, "KV", sJ, 32))
    a(f"s_branch {LJ}")
    a(f"{LC}:")
    tt, ch = T+2, T+3
    a(f"s_and_b32 s{tt}, s{sW}, 1\ns_lshr_b32 s{ch}, s{sW}, 1")
    XA = 40
    a(f"v_lshrrev_b32 v44, 5, v{vL}")
    for m in range(4):
        a(f"v_add_u32 v45, {2*m}, v44\nv_xor_b32 v45, v45, v{vL}\nv_lshlrev_b32 v{XA+m}, 4, v45")
        a(f"s_lshl_b32 s{T}, s{tt}, 15\ns_add_u32 s{T}, s{T}, {E + 1024*m}\nv_add_u32 v{XA+m}, s{T}, v{XA+m}")
    WL, WH = 44, 45
    tr_addr(a, WL, f"s{ch}", False, 46, 47)
    a(f"v_add_u32 v{WL}, {V}, v{WL}\nv_add_u32 v{WH}, {6*8192}, v{WL}")
    AK, AV, AQ = 48, 64, 80
    for r in range(48): a(f"v_mov_b32 v{AK+r}, 0")
    def fr(buf, n):
        if buf == 0: return ("a", n)
        return ("a", 64+n) if n < 48 else ("v", 96 + n - 48)
    def R(buf, n, w):
        p, b = fr(buf, n); return f"{p}[{b}:{b+w-1}]"
    def wslot(u):
        s = u % 12
        return (WL, s*8192) if s < 6 else (WH, (s-6)*8192)
    def rd(s):
        buf = s & 1; out = []
        if s < 8:
            for t in range(4):
                out.append(f"ds_read_b128 {R(buf, 12*t, 4)}, v{XA+t} offset:{4096*s}")
                for seg in range(2):
                    va, off = wslot(2*s+seg)
                    for e in range(2):
                        out.append(f"ds_read_b64_tr_b16 {R(buf, 12*t+4+4*seg+2*e, 2)}, v{va} offset:{off + t*2048 + e*512}")
        else:
            for t in range(8):
                out.append(f"ds_read_b128 {R(buf, 8*t, 4)}, v{XA+(t&3)} offset:{8192*(s-8) + (t>>2)*4096}")
                va, off = wslot(2*s + (t >> 2))
                for e in range(2):
                    out.append(f"ds_read_b64_tr_b16 {R(buf, 8*t+4+2*e, 2)}, v{va} offset:{off + (t&3)*2048 + e*512}")
        return out
    def mf(s):
        buf = s & 1; out = []
        if s < 8:
            for t in range(4):
                out.append(f"v_mfma_f32_32x32x16_bf16 v[{AK}:{AK+15}], {R(buf, 12*t+4, 4)}, {R(buf, 12*t, 4)}, v[{AK}:{AK+15}]")
                out.append(f"v_mfma_f32_32x32x16_bf16 v[{AV}:{AV+15}], {R(buf, 12*t, 4)}, {R(buf, 12*t+8, 4)}, v[{AV}:{AV+15}]")
        else:
            for t in range(8):
                out.append(f"v_mfma_f32_32x32x16_bf16 v[{AQ}:{AQ+15}], {R(buf, 8*t+4, 4)}, {R(buf, 8*t, 4)}, v[{AQ}:{AQ+15}]")
        return out
    a(f"s_lshl_b32 s{T+4}, s{sI}, 1\ns_add_u32 s{T+4}, s{T+4}, s{tt}")
    a(f"s_lshl_b32 s{T+5}, s{sJ}, 2\ns_lshl_b32 s{T+6}, s{ch}, 1\ns_add_u32 s{T+5}, s{T+5}, s{T+6}")
    a(f"s_lshl_b32 s{T+5}, s{T+5}, 6\ns_add_u32 s{T+5}, s{T+5}, s{T+4}")
    a(f"s_lshl_b32 s{T+4}, s{T+5}, 11\ns_add_u32 s{T+4}, s{T+4}, s{sLB}\ns_add_u32 s{T+5}, s{T+4}, 131072")
    assert WS_KV == 0
    a(f"v_and_b32 v46, 0x33, v{vL}\nv_bfe_u32 v47, v{vL}, 2, 1\nv_lshl_add_u32 v46, v47, 3, v46\nv_bfe_u32 v47, v{vL}, 3, 1\nv_lshl_add_u32 v46, v47, 2, v46\nv_lshlrev_b32 v46, 4, v46")
    a(f"v_bfe_u32 v39, v{vL}, 4, 1\nv_lshlrev_b32 v47, 17, v39\nv_lshrrev_b32 v39, 5, v{vL}\nv_lshl_add_u32 v47, v39, 8, v47\nv_and_b32 v39, 15, v{vL}\nv_lshl_add_u32 v47, v39, 4, v47")
    a("s_barrier")
    stamp(a, "p1.b0")
    for x in rd(0): a(x)
    P = 112
    def kv_epilogue():
        a("s_nop 8")
        for r in range(16): a(f"v_cvt_pk_bf16_f32 v{P+r}, v{AK+2*r}, v{AK+2*r+1}")
        a(f"buffer_store_dwordx4 v[{P}:{P+3}], v46, s[{S_WS}:{S_WS+3}], s{T+4} offen sc1")
        a(f"buffer_store_dwordx4 v[{P+4}:{P+7}], v46, s[{S_WS}:{S_WS+3}], s{T+5} offen sc1")
        a(f"buffer_store_dwordx4 v[{P+8}:{P+11}], v47, s[{S_WS}:{S_WS+3}], s{T+4} offen offset:1024 sc1")
        a(f"buffer_store_dwordx4 v[{P+12}:{P+15}], v47, s[{S_WS}:{S_WS+3}], s{T+4} offen offset:1536 sc1")
        stamp(a, "p1.kvst")
    for s in range(11):
        a("s_waitcnt lgkmcnt(0)")
        if s == 10: a("s_waitcnt vmcnt(0)")
        a("s_barrier")
        interleave(a, mf(s), rd(s+1))
        if s == 7: kv_epilogue()
    a("s_waitcnt lgkmcnt(0)\ns_barrier")
    for x in mf(11): a(x)
    stamp(a, "p1.mfma")
    a(f"s_lshl_b32 s{T+4}, s{ch}, 12\ns_lshl_b32 s{T+5}, s{tt}, 10\ns_add_u32 s{T+4}, s{T+4}, s{T+5}\nv_add_u32 v46, s{T+4}, v{vL16}")
    a(f"s_mov_b32 s{T+5}, {f2u(0.25*1.4426950408889634)}\ns_nop 7")
    for r in range(16): a(f"v_mul_f32 v{AQ+r}, s{T+5}, v{AQ+r}")
    for r in range(8): a(f"v_cvt_pk_bf16_f32 v{P+r}, v{AQ+2*r}, v{AQ+2*r+1}")
    a(f"ds_write_b128 v46, v[{P}:{P+3}]\nds_write_b128 v46, v[{P+4}:{P+7}] offset:2048\ns_waitcnt lgkmcnt(0)")
    a(f"{LJ}:")

hh, kh, head, kvb, rot, cur, cnt, w1s, wos, tch, t1s, tos = T+2, T+3, T+4, T+5, T+6, T+7, T+8, T+9, T+12, T+13, T+14, T+15
sDUM = 86
EX = T+10
TD, VV, IDX, TA, vF1, vWO, SGA, Q, S, O, KV = 16, 17, 18, 19, 20, 21, 22, 24, [32, 48], [64, 80], 96
NB = 4
def loadKV(a, b):
    a(f"s_add_u32 s{cur}, s{kvb}, s{rot}")
    a(f"buffer_load_dwordx4 v[{KV+12*b}:{KV+12*b+3}], v{vL16}, s[{S_KV}:{S_KV+3}], s{cur} offen sc1")
    a(f"s_mov_b64 exec, s[{EX}:{EX+1}]")
    a(f"buffer_load_dwordx4 v[{KV+12*b+4}:{KV+12*b+7}], v{VV}, s[{S_KV}:{S_KV+3}], s{cur} offen offset:1024 sc1")
    a(f"buffer_load_dwordx4 v[{KV+12*b+8}:{KV+12*b+11}], v{VV}, s[{S_KV}:{S_KV+3}], s{cur} offen offset:1536 sc1")
    a(f"s_mov_b64 exec, -1\ns_add_u32 s{rot}, s{rot}, 2048\ns_and_b32 s{rot}, s{rot}, 0xffff")

def attn_body(a):
    NX = 5
    a(".p2align 3\nL_attn_body:")
    def ex(s, r0, r1):
        for r in range(r0, r1): a(f"v_exp_f32 v{s+r}, v{s+r}")
    def setprio(p):
        if not C.prio: return
        L = a.label()
        a(f"s_cmp_lg_u32 s{kh}, 0\ns_cbranch_scc1 {L}\ns_setprio {p}\n{L}:")
    for b in range(NB):
        pb = (b-1) % NB; nb = (b+1) % NB
        k = KV+12*b
        if b == 0: setprio(2)
        if b == NB-C.lowtiles: setprio(0)
        ex(S[0], 0, 2)
        a(f"v_smfmac_f32_32x32x32_bf16 v[{O[1]}:{O[1]+15}], v[{KV+12*pb+8}:{KV+12*pb+11}], v[{S[1]+8}:{S[1]+15}], v{IDX}")
        ex(S[0], 2, 5)
        a(f"v_mfma_f32_32x32x16_bf16 v[{S[1]}:{S[1]+15}], v[{k}:{k+3}], v[{Q+4}:{Q+7}], 0")
        loadKV(a, pb)
        if b == 0:
            a(f"s_cmp_eq_u32 s{cnt}, 7\ns_cselect_b32 s{S_KV+2}, 0, s{S_KV+2}")
        ex(S[0], 5, 11)
        a(f"v_smfmac_f32_32x32x32_bf16 v[{O[0]}:{O[0]+15}], v[{k+4}:{k+7}], v[{S[0]}:{S[0]+7}], v{IDX}")
        ex(S[0], 11, 16)
        ex(S[1], 0, 2)
        a(f"v_smfmac_f32_32x32x32_bf16 v[{O[0]}:{O[0]+15}], v[{k+8}:{k+11}], v[{S[0]+8}:{S[0]+15}], v{IDX}")
        ex(S[1], 2, 5)
        a(f"s_waitcnt vmcnt({6 + (NX if b in (1, 2) else 0)})")
        a(f"v_mfma_f32_32x32x16_bf16 v[{S[0]}:{S[0]+15}], v[{KV+12*nb}:{KV+12*nb+3}], v[{Q}:{Q+3}], 0")
        ex(S[1], 5, 11)
        a(f"v_smfmac_f32_32x32x32_bf16 v[{O[1]}:{O[1]+15}], v[{k+4}:{k+7}], v[{S[1]}:{S[1]+7}], v{IDX}")
        if b == 0:
            a("s_waitcnt lgkmcnt(0)")
            for c in range(4):
                a(f"s_add_u32 m0, s{sVW}, {STG - V + c*8192}\ns_add_u32 s{T}, s{w1s}, {c*16*3584}")
                a(f"buffer_load_dwordx4 v{vF1}, s[{S_W1}:{S_W1+3}], s{T} offen lds")
            a(f"s_add_u32 s{w1s}, s{w1s}, {64*3584}")
            a(f"s_lshl_b32 s{T}, s{cnt}, 13\ns_add_u32 m0, s{sVW}, s{T}\ns_lshl_b32 s{T}, s{cnt}, 16\ns_add_u32 s{T}, s{T}, s{wos}")
            a(f"buffer_load_dwordx4 v{vWO}, s[{S_WO}:{S_WO+3}], s{T} offen lds")
            if C.stouch:
                for c in range(4): a(f"s_buffer_load_dwordx2 s[{sDUM}:{sDUM+1}], s[{S_W1}:{S_W1+3}], s{t1s} offset:{c*3584}")
                a(f"s_add_u32 s{t1s}, s{t1s}, {64*3584}")
        if b == 1 and C.stouch:
            for c in range(2): a(f"s_buffer_load_dwordx2 s[{sDUM}:{sDUM+1}], s[{S_WO}:{S_WO+3}], s{tos} offset:{c*1024}")
            for c in range(4): a(f"s_buffer_load_dwordx2 s[{sDUM}:{sDUM+1}], s[{S_W2}:{S_W2+3}], s{tch} offset:{c*4096}")
            a(f"s_add_u32 s{tos}, s{tos}, 65536\ns_add_u32 s{tch}, s{tch}, {4*4096}")
        ex(S[1], 11, 16)
    a(f"s_add_u32 s{cnt}, s{cnt}, 1\ns_setpc_b64 s[{sRET}:{sRET+1}]")

def phase2(a):
    a(f"s_and_b32 s{hh}, s{sW}, 3\ns_lshr_b32 s{kh}, s{sW}, 2\ns_lshl_b32 s{head}, s{sJ}, 2\ns_add_u32 s{head}, s{head}, s{hh}")
    a(f"s_lshl_b32 s{kvb}, s{head}, 17\ns_lshl_b32 s{T}, s{kh}, 16\ns_add_u32 s{kvb}, s{kvb}, s{T}\ns_add_u32 s{kvb}, s{kvb}, s{sLB}")
    a(f"v_lshrrev_b32 v{S[0]}, 5, v{vL}\nv_lshlrev_b32 v{VV}, 8, v{S[0]}\nv_and_b32 v{S[0]}, 15, v{vL}\nv_lshl_add_u32 v{VV}, v{S[0]}, 4, v{VV}")
    a(f"v_mov_b32 v{IDX}, 0xdddddddd")
    a(f"v_and_b32 v{S[0]}, 27, v{vL}\nv_cmp_eq_u32 vcc, 16, v{S[0]}\nv_mov_b32 v{S[0]+1}, 0x3f803f80\ns_nop 0\nv_cndmask_b32 v{S[0]}, 0, v{S[0]+1}, vcc")
    for b in range(NB):
        for r in range(8): a(f"v_mov_b32 v{KV+12*b+4+r}, v{S[0]}")
    for r in range(32): a(f"v_mov_b32 v{O[0]+r}, 0")
    for r in range(8): a(f"v_mov_b32 v{S[1]+8+r}, 0")
    a(f"s_mov_b32 s{EX}, 0x0000ffff\ns_mov_b32 s{EX+1}, 0x0000ffff\ns_and_b32 s{rot}, s{sI}, 7\ns_lshl_b32 s{rot}, s{rot}, 13")
    a(f"s_mov_b32 s{S_KV+2}, {hex(SZ['ws'])}\ns_mov_b32 s{cnt}, 0")
    if C.now1: a(f"s_mov_b32 s{S_W1+2}, 0")
    a(f"s_cmp_lg_u32 s{sL}, 0\ns_cselect_b32 s{S_QKV+2}, 0, s{S_QKV+2}")
    a(f"s_lshr_b32 s{w1s}, s{sW}, 1\ns_mul_i32 s{w1s}, s{w1s}, {512*3584}\ns_lshl_b32 s{T}, s{sI}, 7\ns_add_u32 s{w1s}, s{w1s}, s{T}")
    a(f"s_and_b32 s{T+1}, s{sW}, 1\ns_lshl_b32 s{T+1}, s{T+1}, 6\ns_add_u32 s{w1s}, s{w1s}, s{T+1}")
    a(f"s_add_u32 s{T}, s{T}, 60\ns_lshl_b32 s{tch}, s{sJ}, 3\ns_add_u32 s{tch}, s{tch}, s{sW}\ns_mul_i32 s{tch}, s{tch}, {28*4096}\ns_add_u32 s{tch}, s{tch}, s{T}")
    a(f"s_lshr_b32 s{t1s}, s{sW}, 1\ns_lshl_b32 s{t1s}, s{t1s}, 9\ns_lshl_b32 s{T+1}, s{sJ}, 3\ns_add_u32 s{t1s}, s{t1s}, s{T+1}")
    a(f"s_and_b32 s{T+1}, s{sW}, 1\ns_lshl_b32 s{T+1}, s{T+1}, 2\ns_add_u32 s{t1s}, s{t1s}, s{T+1}\ns_add_u32 s{t1s}, s{t1s}, 128\ns_mul_i32 s{t1s}, s{t1s}, 3584\ns_add_u32 s{t1s}, s{t1s}, s{T}")
    a(f"s_lshr_b32 s{tos}, s{sI}, 3\ns_lshl_b32 s{tos}, s{tos}, 3\ns_add_u32 s{tos}, s{tos}, s{sW}\ns_lshl_b32 s{tos}, s{tos}, 11\ns_lshl_b32 s{T+1}, s{sJ}, 7\ns_add_u32 s{tos}, s{tos}, s{T+1}\ns_add_u32 s{tos}, s{tos}, {2*65536 + 60}")
    a(f"s_lshl_b32 s{wos}, s{sW}, 13\ns_lshl_b32 s{T}, s{sJ}, 7\ns_add_u32 s{wos}, s{wos}, s{T}")
    a(f"s_lshl_b32 s{T}, s{hh}, 11\nv_add_u32 v{S[0]+1}, s{T}, v{vL16}\nv_add_u32 v{SGA}, {STG-V}, v{vTRF}")
    a(f"v_lshrrev_b32 v{S[0]+2}, 2, v{vL}\nv_and_b32 v{S[0]+3}, 3, v{vL}\nv_lshlrev_b32 v{S[0]+3}, 4, v{S[0]+3}\nv_mul_u32_u24 v{vF1}, 3584, v{S[0]+2}\nv_add_u32 v{vF1}, v{vF1}, v{S[0]+3}")
    a(f"v_lshrrev_b32 v{S[0]+2}, 3, v{vL}\nv_lshlrev_b32 v{S[0]+2}, 11, v{S[0]+2}\nv_sub_u32 v{vWO}, v{vWQ}, v{S[0]+2}")
    a("s_barrier")
    stamp(a, "p2.start")
    for b in range(NB-1): loadKV(a, b)
    a(f"ds_read_b128 v[{Q}:{Q+3}], v{S[0]+1}\nds_read_b128 v[{Q+4}:{Q+7}], v{S[0]+1} offset:1024")
    if C.prio:
        L = a.label()
        a(f"s_cmp_eq_u32 s{kh}, 0\ns_cbranch_scc1 {L}\ns_setprio 1\n{L}:")
    a(f"s_waitcnt vmcnt(6) lgkmcnt(0)")
    a(f"v_mfma_f32_32x32x16_bf16 v[{S[0]}:{S[0]+15}], v[{KV}:{KV+3}], v[{Q}:{Q+3}], 0")
    stamp(a, "p2.kv0")
    a("s_nop 11")
    for n in range(8):
        if n > 0:
            for c in range(4):
                for x in frag_reads(f"a{16*(n-1)+4*c}", SGA, c*8192): a(x)
        a(f"s_call_b64 s[{sRET}:{sRET+1}], L_attn_body")
    pb = NB-1
    a(f"v_smfmac_f32_32x32x32_bf16 v[{O[1]}:{O[1]+15}], v[{KV+12*pb+8}:{KV+12*pb+11}], v[{S[1]+8}:{S[1]+15}], v{IDX}")
    if C.prio: a("s_setprio 0")
    stamp(a, "p2.loop")
    A1, M, N = 17, 24, 36
    a(f"s_mul_i32 s{T}, s{sW}, 3072\ns_add_u32 s{T}, s{T}, 8192\nv_add_u32 v{A1}, s{T}, v{vL16}")
    a(f"s_xor_b32 s{T}, s{sW}, 4\ns_mul_i32 s{T}, s{T}, 3072\ns_add_u32 s{T}, s{T}, 8192\nv_add_u32 v19, s{T}, v{vL16}")
    a("s_nop 7")
    LA = a.label(); LB = a.label()
    a(f"s_cmp_eq_u32 s{kh}, 0\ns_cbranch_scc1 {LA}")
    a(f"ds_write_b128 v{A1}, v[{O[0]}:{O[0]+3}]\nds_write_b128 v{A1}, v[{O[0]+4}:{O[0]+7}] offset:1024\nds_write_b32 v{A1}, v{O[0]+8} offset:2048")
    for r in range(9): a(f"v_mov_b32 v{M+r}, v{O[1]+r}")
    a(f"s_branch {LB}\n{LA}:")
    a(f"ds_write_b128 v{A1}, v[{O[1]}:{O[1]+3}]\nds_write_b128 v{A1}, v[{O[1]+4}:{O[1]+7}] offset:1024\nds_write_b32 v{A1}, v{O[1]+8} offset:2048")
    for r in range(9): a(f"v_mov_b32 v{M+r}, v{O[0]+r}")
    a(f"{LB}:")
    a(f"s_lshl_b32 s{T}, s{sI}, 1\ns_add_u32 s{T}, s{T}, s{kh}\ns_lshl_b32 s{T}, s{T}, 5\ns_add_u32 s{T}, s{T}, s{head}\ns_lshl_b32 s{T}, s{T}, 10")
    a(f"s_add_u32 s{T}, s{T}, {WS_O}\ns_add_u32 s{T}, s{T}, s{sLB}")
    a("s_waitcnt vmcnt(0) lgkmcnt(0)\ns_barrier")
    a(f"ds_read_b128 v[{N}:{N+3}], v19\nds_read_b128 v[{N+4}:{N+7}], v19 offset:1024\nds_read_b32 v{N+8}, v19 offset:2048")
    a("s_waitcnt lgkmcnt(0)")
    for r in range(9): a(f"v_add_f32 v{M+r}, v{M+r}, v{N+r}")
    a(f"v_rcp_f32 v{M+8}, v{M+8}\ns_nop 0")
    for r in range(8): a(f"v_mul_f32 v{M+r}, v{M+r}, v{M+8}")
    for r in range(4): a(f"v_cvt_pk_bf16_f32 v{N+r}, v{M+2*r}, v{M+1+2*r}")
    a(f"buffer_store_dwordx4 v[{N}:{N+3}], v{vL16}, s[{S_WS}:{S_WS+3}], s{T} offen sc1")

def ep_write_addr(a, base, nsplit):
    t0, t1, t2 = TV, TV+1, TV+2
    a(f"v_and_b32 v{t0}, 31, v{vL}\nv_lshrrev_b32 v{t1}, 5, v{vL}\nv_and_b32 v{t2}, 15, v{vL}\nv_xor_b32 v{t1}, v{t1}, v{t2}")
    a(f"s_and_b32 s{T}, s{sW}, 1\ns_lshr_b32 s{T+1}, s{sW}, 1\ns_lshl_b32 s{T+1}, s{T+1}, 14")
    if nsplit: a(f"s_lshl_b32 s{T}, s{T}, 13\ns_add_u32 s{T+1}, s{T+1}, s{T}")
    else: a(f"s_lshl_b32 s{T}, s{T}, 3\nv_xor_b32 v{t1}, s{T}, v{t1}")
    a(f"v_lshlrev_b32 v{t0}, 8, v{t0}\nv_add_u32 v{t0}, s{T+1}, v{t0}")
    for q in range(8 if nsplit else 4): a(f"v_xor_b32 v{t2}, {2*q}, v{t1}\nv_lshl_add_u32 v{base+q}, v{t2}, 4, v{t0}")

def ep_read_addr(a, r0, en, ec):
    a(f"v_and_b32 v{TV}, 15, v{en}\nv_lshlrev_b32 v{TV+1}, 1, v{ec}\nv_xor_b32 v{TV}, v{TV}, v{TV+1}")
    a(f"v_lshlrev_b32 v{TV+1}, 8, v{en}\nv_lshl_add_u32 v{r0}, v{TV}, 4, v{TV+1}\nv_xor_b32 v{r0+1}, 16, v{r0}")

def ep_reduce(a, ACC, wa, ra, nsplit, add0, out, mid=None):
    for y in range(2):
        for q in range(4):
            if nsplit: a(f"ds_write_b128 v{wa+4*y+q}, v[{ACC+16*y+4*q}:{ACC+16*y+4*q+3}]")
            else: a(f"ds_write_b128 v{wa+q}, v[{ACC+16*y+4*q}:{ACC+16*y+4*q+3}] offset:{y*8192}")
    if mid: mid()
    a("s_waitcnt lgkmcnt(0)\ns_barrier")
    for k in range(4):
        a(f"ds_read_b128 v[{out+8*k}:{out+8*k+3}], v{ra} offset:{16384*k}\nds_read_b128 v[{out+8*k+4}:{out+8*k+7}], v{ra+1} offset:{16384*k}")
    a("s_waitcnt lgkmcnt(6)")
    for e in range(8): a(f"v_add_f32 v{out+e}, v{out+e}, v{add0+e}")
    a("s_waitcnt lgkmcnt(2)")
    for e in range(8): a(f"v_add_f32 v{out+8+e}, v{out+8+e}, v{out+16+e}")
    for e in range(8): a(f"v_add_f32 v{out+e}, v{out+e}, v{out+8+e}")
    a("s_waitcnt lgkmcnt(0)")
    for e in range(8): a(f"v_add_f32 v{out+e}, v{out+e}, v{out+24+e}")

def unpack8(a, dst, src):
    for e in range(4): a(f"v_lshlrev_b32 v{dst+2*e}, 16, v{src+e}\nv_and_b32 v{dst+1+2*e}, 0xffff0000, v{src+e}")

class VM:
    def __init__(self): self.ops = []
    def add(self, tag, n=1): self.ops += [tag]*n
    def need(self, tag):
        last = max(k for k, t in enumerate(self.ops) if t == tag)
        return min(63, len(self.ops) - 1 - last)

def phase3(a):
    OF, ACC, WF = 16, 48, 80
    W0, W1 = 20, 21
    tr_addr(a, W0, "0", True, 22, 23)
    a(f"s_lshr_b32 s{T+2}, s{sW}, 1\ns_lshl_b32 s{T+2}, s{T+2}, 14\ns_add_u32 s{T+2}, s{T+2}, {V}\nv_add_u32 v{W0}, s{T+2}, v{W0}\nv_xor_b32 v{W1}, 64, v{W0}")
    for t in range(8):
        for y in range(2):
            b = WF + 8*t + 4*y
            a(f"ds_read_b64_tr_b16 v[{b}:{b+1}], v{W0+y} offset:{t*2048}\nds_read_b64_tr_b16 v[{b+2}:{b+3}], v{W0+y} offset:{t*2048+1024}")
    src = T+2
    a(f"s_and_b32 s{src}, s{sW}, 1\ns_lshl_b32 s{src}, s{src}, 15\ns_lshr_b32 s{T+3}, s{sW}, 1\ns_lshl_b32 s{T+3}, s{T+3}, 13\ns_add_u32 s{src}, s{src}, s{T+3}")
    a(f"s_lshl_b32 s{T+3}, s{sI}, 16\ns_add_u32 s{src}, s{src}, s{T+3}\ns_add_u32 s{src}, s{src}, {WS_O}\ns_add_u32 s{src}, s{src}, s{sLB}\ns_add_u32 s{T+3}, s{src}, 4096")
    a("s_waitcnt vmcnt(0) lgkmcnt(0)\ns_barrier")
    stamp(a, "p2.end")
    n3 = [int(c) for c in C.sch3]; assert sum(n3) == 12 and n3[0] <= 8
    if_wave_eq(a, 0, lambda: publish(a, "O", sI))
    for f in range(n3[0]): w2_dma(a, f)
    if_wave_eq(a, 0, lambda: poll(a, "O", sI, 8))
    a("s_barrier")
    stamp(a, "proj.polled")
    for t in range(8):
        a(f"buffer_load_dwordx4 v[{OF+4*t}:{OF+4*t+3}], v{vL16}, s[{S_WS}:{S_WS+3}], s{src + (t >> 2)} offen offset:{(t & 3)*1024} sc1")
    for t in range(8):
        a(f"s_waitcnt vmcnt({7-t})")
        for y in range(2):
            c = "0" if t == 0 else f"v[{ACC+16*y}:{ACC+16*y+15}]"
            a(f"v_mfma_f32_32x32x16_bf16 v[{ACC+16*y}:{ACC+16*y+15}], v[{WF+8*t+4*y}:{WF+8*t+4*y+3}], v[{OF+4*t}:{OF+4*t+3}], {c}")
        if t == 3:
            ep_write_addr(a, 80, True); ep_read_addr(a, 88, vN, vC); unpack8(a, 96, vRES)
    stamp(a, "proj.loop")
    a("s_nop 10")
    OUT = 104
    ep_reduce(a, ACC, 80, 88, True, 96, OUT)
    for e in range(4): a(f"v_cvt_pk_bf16_f32 v{vRES+e}, v{OUT+2*e}, v{OUT+1+2*e}")
    a("v_mov_b32 v64, 0\nv_mov_b32 v65, 0\nv_mov_b32 v66, 1\nv_mov_b32 v67, 1\nv_mov_b32 v68, 0x3f803f80")
    for e in range(4): a(f"v_dot2c_f32_bf16 v64, v{vRES+e}, v68\nv_dot2c_f32_bf16 v65, v{vRES+e}, v{vRES+e}")
    a(f"s_lshl_b32 s{T}, s{sI}, 13\ns_add_u32 s{T}, s{T}, {WS_ST}\ns_add_u32 s{T}, s{T}, s{sLB}\ns_lshl_b32 s{T+1}, s{sJ}, 10\ns_add_u32 s{T+1}, s{T+1}, s{T}")
    a(f"v_lshlrev_b32 v56, 4, v{vN}\nv_lshl_add_u32 v57, v{vC}, 10, v56")
    dpp_red8(a, [64, 65])
    a(f"v_cmp_eq_u32 vcc, 0, v{vC}\ns_and_saveexec_b64 s[{T+2}:{T+3}], vcc")
    a(f"buffer_store_dwordx4 v[64:67], v56, s[{S_WS}:{S_WS+3}], s{T+1} offen sc1")
    a(f"s_mov_b64 exec, s[{T+2}:{T+3}]")
    stamp(a, "proj.st")
    a(f"v_add_u32 v59, {STG-V}, v{vTRF}")
    for c in range(4):
        for x in frag_reads(f"v{W1T+4*c}", 59, c*8192): a(x)
    unpack8(a, 80, vRES)
    a(f"v_bfe_u32 v58, v{vN}, 1, 1\nv_lshlrev_b32 v58, 2, v58\nv_xor_b32 v58, v58, v{vC}\nv_lshlrev_b32 v58, 4, v58\nv_lshl_add_u32 v58, v{vN}, 7, v58")
    LP = a.label(); LD = a.label()
    a(f"s_mov_b32 s{T+2}, {SPIN}")
    a(f"{LP}:")
    a(f"buffer_load_dwordx4 v[68:71], v57, s[{S_WS}:{S_WS+3}], s{T} offen sc1")
    a("s_waitcnt vmcnt(0)\nv_and_b32 v72, v70, v71\nv_cmp_ne_u32 vcc, 1, v72")
    a(f"s_cbranch_vccz {LD}")
    a(f"s_sub_u32 s{T+2}, s{T+2}, 1\ns_cmp_lg_u32 s{T+2}, 0\ns_cbranch_scc1 {LP}")
    a(f"{LD}:")
    stamp(a, "proj.stat")
    dpp_red8(a, [68, 69])
    a(f"v_mul_f32 v68, {f2u(1/512)}, v68\nv_mul_f32 v69, {f2u(1/512)}, v69")
    a("v_fma_f32 v69, -v68, v68, v69\nv_max_f32 v69, 0, v69")
    a(f"v_add_f32 v70, {f2u(1e-5)}, v69\nv_rsq_f32 v70, v70\ns_nop 0")
    a(f"v_mul_f32 v71, v70, v70\nv_mul_f32 v71, v71, v69\nv_add_f32 v71, {f2u(1e-5)}, v71\nv_rsq_f32 v71, v71\ns_nop 0")
    a("v_mul_f32 v70, v70, v71\nv_mul_f32 v71, v68, v70\nv_sub_f32 v71, 0, v71")
    for e in range(8): a(f"v_fma_f32 v{80+e}, v{80+e}, v70, v71")
    for e in range(4): a(f"v_cvt_pk_bf16_f32 v{72+e}, v{80+2*e}, v{81+2*e}")
    a(f"s_lshl_b32 s{T}, s{sJ}, 18\ns_lshl_b32 s{T+1}, s{sI}, 13\ns_add_u32 s{T}, s{T}, s{T+1}\ns_add_u32 s{T}, s{T}, {WS_H}\ns_add_u32 s{T}, s{T}, s{sLB}")
    a(f"buffer_store_dwordx4 v[72:75], v58, s[{S_WS}:{S_WS+3}], s{T} offen sc1")
    a("s_waitcnt lgkmcnt(0)")
    for f in range(n3[0], n3[0]+n3[1]): w2_dma(a, f)
    a(f"s_waitcnt vmcnt({n3[1]})\ns_barrier")
    stamp(a, "proj.end")
    if_wave_eq(a, 0, lambda: publish(a, "H", sJ))
    for f in range(n3[0]+n3[1], 12): w2_dma(a, f)

W1T = 128
VHI = 20

def mlp(a, kind):
    one = kind == "mlp1"
    S_ = 16 if one else 14
    D = C.D; R = D + 1
    assert R*16384 <= 65536
    EN, EC = (22, 23) if one else (vN, vC)
    EB, YA, YA2, RA_, WA_ = 24, 28, 29, 30, 32
    ADD, ACC, F = 40, 48, [80, 96]
    vm = VM()
    a(f"v_add_u32 v{VHI}, 65536, v{vTRF}")
    if one:
        a(f"v_lshrrev_b32 v{EC}, 5, v{vL}\ns_and_b32 s{T}, s{sW}, 6\nv_add_u32 v{EC}, s{T}, v{EC}")
        a(f"v_and_b32 v{EN}, 31, v{vL}\ns_and_b32 s{T}, s{sW}, 1\ns_lshl_b32 s{T}, s{T}, 5\nv_add_u32 v{EN}, s{T}, v{EN}")
        a(f"v_lshlrev_b32 v21, 4, v{EC}\ns_lshl_b32 s{T}, s{sI}, 7")
        a(f"buffer_load_dwordx4 v[{EB}:{EB+3}], v21, s[{S_B1}:{S_B1+3}], s{T} offen")
    else:
        a(f"v_lshlrev_b32 v21, 1, v{vN}\ns_lshl_b32 s{T}, s{sI}, 7")
        a(f"buffer_load_ushort v{EB}, v21, s[{S_B2}:{S_B2+3}], s{T} offen")
    src, dst, qb = T+2, T+3, T+4
    kq_bytes = (32 if one else 28)*2048
    base, per_j = (WS_H, 2048*128) if one else (WS_U, 112*2048)
    a(f"s_mul_i32 s{src}, s{sJ}, {per_j}\ns_lshr_b32 s{T}, s{sW}, 1\ns_mul_i32 s{T+1}, s{T}, {kq_bytes}\ns_add_u32 s{src}, s{src}, s{T+1}")
    a(f"s_and_b32 s{T+1}, s{sW}, 1\ns_lshl_b32 s{T+1}, s{T+1}, 11\ns_add_u32 s{src}, s{src}, s{T+1}\ns_add_u32 s{src}, s{src}, {base}\ns_add_u32 s{src}, s{src}, s{sLB}")
    a(f"s_lshl_b32 s{dst}, s{sW}, 11\ns_lshl_b32 s{T}, s{T}, 12")
    if one:
        tr_addr(a, YA, "0", False, TV, TV+1)
        a(f"v_add_u32 v{YA}, s{T}, v{YA}\nv_xor_b32 v{YA2}, 64, v{YA}")
    else:
        a(f"v_add_u32 v{YA}, s{T}, v{vL16}")
        qkv_base8(a, qb)
    ep_write_addr(a, WA_, not one)
    ep_read_addr(a, RA_, EN, EC)
    if one: pend = list(range(12))
    else: pend = list(range(16, 28))
    if_wave_eq(a, 0, lambda: poll(a, "H" if one else "U", sJ, 32 if one else 28))
    a("s_barrier")
    stamp(a, kind + ".polled")
    def act(s):
        a(f"s_add_u32 m0, s{dst}, {(s % R)*16384}\ns_add_u32 s{T}, s{src}, {s*4096}")
        a(f"buffer_load_dwordx4 v{vL16}, s[{S_WS}:{S_WS+3}], s{T} offen sc1 lds\nbuffer_load_dwordx4 v{vL16}, s[{S_WS}:{S_WS+3}], s{T} offen offset:1024 sc1 lds")
        vm.add(("act", s), 2)
    def reads(s):
        out = []; o = (s % R)*16384
        for t in range(2):
            for y in range(2):
                b = F[s & 1] + 8*t + 4*y
                if one:
                    out.append(f"ds_read_b64_tr_b16 v[{b}:{b+1}], v{YA+y} offset:{o + t*2048}")
                    out.append(f"ds_read_b64_tr_b16 v[{b+2}:{b+3}], v{YA+y} offset:{o + t*2048 + 512}")
                else:
                    out.append(f"ds_read_b128 v[{b}:{b+3}], v{YA} offset:{o + t*2048 + y*1024}")
        return out
    def mfmas(s):
        out = []
        for t in range(2):
            f = 2*s + t
            X = f"a[{4*f}:{4*f+3}]" if f < 28 else f"v[{W1T+4*(f-28)}:{W1T+4*(f-28)+3}]"
            for y in range(2):
                b = F[s & 1] + 8*t + 4*y
                Y = f"v[{b}:{b+3}]"
                A_, B_ = (X, Y) if one else (Y, X)
                c = "0" if f == 0 else f"v[{ACC+16*y}:{ACC+16*y+15}]"
                out.append(f"v_mfma_f32_32x32x16_bf16 v[{ACC+16*y}:{ACC+16*y+15}], {A_}, {B_}, {c}")
        return out
    for s in range(R): act(s)
    sch = [int(c) for c in (C.sch1 if one else C.sch2)]
    assert sum(sch) == (16 if one else 12)
    extra = list(range(sum(sch)))
    def point(p):
        for _ in range(sch[p]):
            k = extra.pop(0)
            if one:
                assert k < 12 or p >= 4
                w2_dma(a, 12 + k)
            else: qkv_piece8(a, qb, k)
            vm.add(("x", k))
    for s in range(S_):
        a(f"s_waitcnt vmcnt({vm.need(('act', s))}) lgkmcnt(0)\ns_barrier")
        if s == 0:
            stamp(a, kind + ".b0")
            for x in reads(0): a(x)
            unpack8(a, ADD, EB if one else vRES)
            if not one:
                a(f"v_lshlrev_b32 v{EB}, 16, v{EB}")
                for e in range(8): a(f"v_add_f32 v{ADD+e}, v{ADD+e}, v{EB}")
        else:
            interleave(a, mfmas(s-1), reads(s))
        if (one and s >= 2) or (not one and s >= 1):
            for _ in range(2 if one else 3):
                if pend:
                    for x in w2_reads(pend.pop(0), vTRF, VHI): a(x)
        if s >= 1 and s - 1 + R < S_: act(s - 1 + R)
    assert not pend
    point(0)
    a("s_waitcnt lgkmcnt(0)\ns_barrier")
    for x in mfmas(S_-1): a(x)
    stamp(a, kind + ".loop")
    point(1)
    a(f"s_nop {max(0, 10 - 3*sch[1])}")
    OUT = 80
    ep_reduce(a, ACC, WA_, RA_, not one, ADD, OUT, mid=lambda: point(2))
    if one:
        a(f"s_waitcnt vmcnt({vm.need(('x', 3))})")
        for f in range(12, 16):
            for x in w2_reads(f, vTRF, VHI): a(x)
    point(3)
    if one:
        c1 = -2*0.7978845608028654*1.4426950408889634; c2 = c1*0.044715
        G = OUT + 8
        a(f"s_mov_b32 s{T}, {f2u(c2)}\nv_mov_b32 v21, {f2u(c1)}")
        for e in range(8): a(f"v_mul_f32 v{G+e}, v{OUT+e}, v{OUT+e}")
        for e in range(8): a(f"v_fma_f32 v{G+e}, v{G+e}, s{T}, v21")
        for e in range(8): a(f"v_mul_f32 v{G+e}, v{G+e}, v{OUT+e}")
        for e in range(8): a(f"v_exp_f32 v{G+e}, v{G+e}")
        for e in range(8): a(f"v_add_f32 v{G+e}, 1.0, v{G+e}")
        for e in range(8): a(f"v_rcp_f32 v{G+e}, v{G+e}")
        for e in range(8): a(f"v_mul_f32 v{OUT+e}, v{OUT+e}, v{G+e}")
        for e in range(4): a(f"v_cvt_pk_bf16_f32 v{G+e}, v{OUT+2*e}, v{OUT+1+2*e}")
        a(f"s_mul_i32 s{T}, s{sJ}, {112*2048}\ns_lshl_b32 s{T+1}, s{sI}, 13\ns_add_u32 s{T}, s{T}, s{T+1}\ns_lshl_b32 s{T+1}, s{sW}, 10\ns_add_u32 s{T}, s{T}, s{T+1}")
        a(f"s_add_u32 s{T}, s{T}, {WS_U}\ns_add_u32 s{T}, s{T}, s{sLB}")
        a(f"buffer_store_dwordx4 v[{G}:{G+3}], v{vL16}, s[{S_WS}:{S_WS+3}], s{T} offen sc1")
        stamp(a, kind + ".st")
        a("s_waitcnt lgkmcnt(0)")
        point(4)
        a(f"s_waitcnt vmcnt({sch[4]})\ns_barrier")
        stamp(a, kind + ".end")
        if_wave_eq(a, 0, lambda: publish(a, "U", sJ))
        point(5)
    else:
        for e in range(4): a(f"v_cvt_pk_bf16_f32 v{vRES+e}, v{OUT+2*e}, v{OUT+1+2*e}")
        a(f"buffer_store_dwordx4 v[{vRES}:{vRES+3}], v{vXO}, s[{S_XD}:{S_XD+3}], s{sXO} offen sc1")
        stamp(a, kind + ".st")
        a(f"s_cmp_lg_u32 s{sL}, 0\ns_cbranch_scc1 L_fin")
        point(4)
        a(f"s_waitcnt vmcnt({sch[4]})\ns_barrier")
        stamp(a, kind + ".end")
        if_wave_eq(a, 0, lambda: publish(a, "X", sI))
        point(5)

def skip_mlp1(a):
    a(f"v_add_u32 v{VHI}, 65536, v{vTRF}\ns_waitcnt vmcnt(0)")
    for f in range(12):
        for x in w2_reads(f, vTRF, VHI): a(x)
    a("s_waitcnt lgkmcnt(0)")
    for f in range(12, 24): w2_dma(a, f)
    a("s_waitcnt vmcnt(8)")
    for f in range(12, 16):
        for x in w2_reads(f, vTRF, VHI): a(x)
    a("s_waitcnt lgkmcnt(0)")
    for f in range(24, 28): w2_dma(a, f)

def main(out):
    a = Asm()
    K = NAME + "_kernel"
    a.L.append(f".globl {K}\n.p2align 8\n.type {K},@function\n{K}:")
    prologue(a)
    init_sync(a)
    x_loads(a)
    a(f"buffer_load_dwordx4 v[{vRES}:{vRES+3}], v{vXO}, s[{S_XS}:{S_XS+3}], s{sXO} offen")
    qkv_base8(a, T+2)
    for u in range(12): qkv_piece8(a, T+2, u)
    prologue2(a)
    a("s_waitcnt vmcnt(12)")
    init_arrive(a)
    a("L_layer:")
    phase1(a)
    phase2(a)
    phase3(a)
    LS = a.label(); LM = a.label()
    a(f"s_cmp_ge_u32 s{sI}, 28\ns_cbranch_scc1 {LS}")
    mlp(a, "mlp1")
    a(f"s_branch {LM}\n{LS}:")
    skip_mlp1(a)
    a(f"{LM}:")
    mlp(a, "mlp2")
    if_wave_eq(a, 0, lambda: poll(a, "X", sI, 8))
    a(f"s_mov_b32 s{S_XS}, s{S_XD}\ns_mov_b32 s{S_XS+1}, s{S_XD+1}\ns_mov_b32 s{S_XD}, s{sOUT}\ns_mov_b32 s{S_XD+1}, s{sOUT+1}")
    a(f"s_mov_b32 s{sL}, 1\ns_mov_b32 s{sLB}, {LSTRIDE}\ns_mov_b32 s{sFL}, {WS_FLAG + 256*128}")
    if C.stamp: a("v_mov_b32 v7, v6")
    a("s_barrier")
    x_loads(a)
    a("s_waitcnt vmcnt(0)\ns_branch L_layer")
    a("L_fin:")
    if C.stamp:
        a("s_waitcnt vmcnt(0)")
        stamp(a, "fin")
        a(f"s_lshl_b32 s{T}, s2, 3\ns_add_u32 s{T}, s{T}, s{sW}\ns_lshl_b32 s{T}, s{T}, 9\ns_add_u32 s{T}, s{T}, {WS_STAMP}\nv_lshlrev_b32 v16, 2, v{vL}")
        a(f"buffer_store_dword v7, v16, s[{S_WS}:{S_WS+3}], s{T} offen\nbuffer_store_dword v6, v16, s[{S_WS}:{S_WS+3}], s{T} offen offset:256")
    a("L_end:\ns_endpgm")
    attn_body(a)
    s = HDR + "; @launch grid=(256,1,1) block=(512,1,1) lds=163840\n"
    s += '.amdgcn_target "amdgcn-amd-amdhsa--gfx950"\n.text\n' + a.text()
    s += f""".section .rodata,"a"
.p2align 6
.amdhsa_kernel {K}
  .amdhsa_next_free_vgpr 256
  .amdhsa_next_free_sgpr 102
  .amdhsa_accum_offset {NARCH}
  .amdhsa_group_segment_fixed_size 0
  .amdhsa_kernarg_size 88
  .amdhsa_user_sgpr_count 2
  .amdhsa_user_sgpr_kernarg_segment_ptr 1
  .amdhsa_system_sgpr_workgroup_id_x 1
.end_amdhsa_kernel
"""
    open(out, "w").write(s)
    if C.stamp: open(out + ".stamps", "w").write("\n".join(STAMPS))

if __name__ == "__main__":
    for arg in sys.argv[2:]:
        k, v = arg.split("="); setattr(C, k, v if isinstance(getattr(C, k), str) else type(getattr(C, k))(int(v)))
    main(sys.argv[1])
```

```python
import sys, struct
NAME = "interleave_layers__softmax_full_mha__mixer_token_mlp__prompt"
HDR = open("cdna_kernels/%s.s.ref" % NAME).read().split("; Override launch")[0]
MB = 1 << 20
WS_KV, WS_O, WS_H, WS_U, WS_X2, WS_ST = 0*MB, 4*MB, 6*MB, 8*MB, 10*MB, 12*MB
LSTRIDE = 16*MB
WS_FLAG = 32*MB
WS_XT = WS_FLAG + 65536
WS_STAMP = 40*MB
KA = dict(x=0, wqkv=8, wo=16, w1=32, b1=40, w2=48, b2=56, out=64, dbg=72, ws=80)
SZ = dict(x=2048*512*2, wqkv=512*1536*2, wo=512*512*2, w1=2048*1792*2, b1=1792*2, w2=1792*2048*2, b2=2048*2,
          out=2048*512*2, dbg=256, ws=1 << 28)
FL = dict(KV=0, H=64, U=128, O=192, X=224)
COLK = ('KV', 'H', 'U')
SPIN = 200000
NARCH = 144

class Cfg:
    stamp = False
    prio = True
    lowtiles = 1
    D = 3
    nB = 12
    sch1 = '033343'
    sch2 = '033033'
    sch3 = '444'
    stouch = 1
    p1touch = 0
    now1 = 0
    local = 1
    ldata = 0
    pret = 0
    hs1 = '022111122000'
    hs0 = '222222222000'
    h0first = 3
    h0second = 3
    w1t = 9
    p1per = 4
    qtouch = 1
    pper = 16
    plow = 3
    split = 1
    kvfix = 0
    xsel = 'wot'
    nofirst = 0
    tlb = 0
    lowhalf = 3
    jrot = 6
    nox = 0
    notr = 0
    loop = 0
    pad = 0
    align = 3
    nQ = 12
C = Cfg()

class Asm:
    def __init__(self): self.L = []; self.n = 0
    def __call__(self, s):
        for line in s.split("\n"):
            line = line.strip()
            if line: self.L.append(("" if line.endswith(":") else "    ") + line)
    def label(self, p="L"):
        self.n += 1; return f"{p}{self.n}"
    def text(self): return "\n".join(self.L) + "\n"

def f2u(x): return hex(struct.unpack("<I", struct.pack("<f", x))[0])

S_XS, S_QKV, S_WS, S_WO, S_W1, S_W2, S_B1, S_B2, S_XD, S_DBG, S_KV = 8, 12, 16, 20, 24, 28, 32, 36, 40, 44, 80
sI, sJ, sW, sL, sLB, sFL = 48, 49, 50, 51, 52, 53
sW2S = 54
sVW = 55
sLOC = 56
sXO = 57
sOUT = 58
T = 60
sST = 76
sRET = 84
vL, vN, vC, vL16, vXO = 1, 2, 3, 4, 5
vRES = 8
vF2, vTRF, vWQ = 12, 13, 14
TV = 16
E, V = 0, 65536
QX = V + 7*8192
STG = V + 65536

STAMPS = []
def stamp(a, name):
    if not C.stamp: return
    k = len(STAMPS); assert k < 32
    a(f"s_memtime s[{sST}:{sST+1}]\ns_memrealtime s[{sST+2}:{sST+3}]\ns_waitcnt lgkmcnt(0)")
    a(f"v_writelane_b32 v6, s{sST}, {k}\nv_writelane_b32 v6, s{sST+2}, {k+32}")
    STAMPS.append(name)

def dpp_red8(a, regs):
    for pat in ("quad_perm:[1,0,3,2]", "quad_perm:[2,3,0,1]", "row_half_mirror"):
        a("s_nop 1")
        for r in regs: a(f"v_add_f32_dpp v{r}, v{r}, v{r} {pat} row_mask:0xf bank_mask:0xf")

def tr_addr(a, vd, xh, perm, t0, t1):
    a(f"v_lshrrev_b32 v{t0}, 5, v{vL}\nv_lshlrev_b32 v{t0}, {2 if perm else 3}, v{t0}")
    a(f"v_bfe_u32 v{t1}, v{vL}, 2, 2\nv_add_u32 v{t0}, v{t0}, v{t1}\nv_lshlrev_b32 v{vd}, 7, v{t0}")
    a(f"v_lshrrev_b32 v{t1}, 1, v{t1}\nv_xor_b32 v{t1}, {xh}, v{t1}\nv_lshl_add_u32 v{vd}, v{t1}, 6, v{vd}")
    a(f"v_bfe_u32 v{t1}, v{vL}, 4, 1\nv_lshl_add_u32 v{vd}, v{t1}, 5, v{vd}")
    a(f"v_and_b32 v{t1}, 3, v{vL}\nv_lshl_add_u32 v{vd}, v{t1}, 3, v{vd}")

def interleave(a, m, r):
    per = -(-len(r)//len(m))
    for x in range(len(m)):
        a(m[x])
        for y in r[x*per:(x+1)*per]: a(y)

def rstore(a, instr, bulk=False):
    if not C.local or (bulk and not C.ldata):
        a(instr + " sc1"); return
    L = a.label(); L2 = a.label()
    a(f"s_cmp_eq_u32 s{sLOC}, 1\ns_cbranch_scc1 {L}\n{instr} sc1\ns_branch {L2}\n{L}:\n{instr}\n{L2}:")

def publish(a, kind, group_s):
    if kind not in COLK:
        a(f"s_lshl_b32 s{T}, s{group_s}, 7\ns_add_u32 s{T}, s{T}, {FL[kind]*128}\ns_add_u32 s{T}, s{T}, s{sFL}\ns_lshl_b32 s{T+1}, s{sJ}, 4\ns_add_u32 s{T}, s{T}, s{T+1}")
        a(f"v_mov_b32 v{TV}, 1\ns_mov_b64 exec, 1")
        rstore(a, f"buffer_store_dword v{TV}, v{vL16}, s[{S_WS}:{S_WS+3}], s{T} offen")
        a("s_mov_b64 exec, -1")
        return
    col = kind in COLK
    a(f"s_lshl_b32 s{T}, s{group_s}, {10 if col else 7}\ns_add_u32 s{T}, s{T}, {FL[kind]*128}\ns_add_u32 s{T}, s{T}, s{sFL}")
    a(f"v_mov_b32 v{TV}, 1\nv_lshlrev_b32 v{TV+1}, 7, v{vL}\ns_mov_b64 exec, {0xff if col else 1}")
    a(f"buffer_atomic_add v{TV}, v{TV+1}, s[{S_WS}:{S_WS+3}], s{T} offen sc1")
    a("s_mov_b64 exec, -1")

def poll(a, kind, group_s, n):
    col = kind in COLK
    a(f"s_lshl_b32 s{T}, s{group_s}, {10 if col else 7}\ns_add_u32 s{T}, s{T}, {FL[kind]*128}\ns_add_u32 s{T}, s{T}, s{sFL}")
    if col: a(f"s_lshr_b32 s{T+1}, s{sI}, 2\ns_lshl_b32 s{T+1}, s{T+1}, 7\ns_add_u32 s{T}, s{T}, s{T+1}")
    a(f"s_mov_b64 exec, {1 if col else 0xff}\ns_mov_b32 s{T+1}, {SPIN}")
    LP = a.label(); LD = a.label()
    a(f"{LP}:")
    a(f"buffer_load_dword v{TV}, v{vL16}, s[{S_WS}:{S_WS+3}], s{T} offen sc1")
    a(f"s_waitcnt vmcnt(0)\nv_cmp_ne_u32 vcc, {n if col else 1}, v{TV}")
    a(f"s_cbranch_vccz {LD}")
    a(f"s_sub_u32 s{T+1}, s{T+1}, 1\ns_cmp_lg_u32 s{T+1}, 0\ns_cbranch_scc1 {LP}")
    a(f"{LD}:\ns_mov_b64 exec, -1")

def if_wave_eq(a, w, body):
    L = a.label()
    a(f"s_cmp_lg_u32 s{sW}, {w}\ns_cbranch_scc1 {L}")
    body()
    a(f"{L}:")

def qkv_src(u): return (u >> 1)*64*3072 + (1 + (u & 1))*1024 if u < 16 else (u-16)*64*3072

def qkv_base8(a, s):
    a(f"s_mul_i32 s{s}, s{sW}, {8*3072}\ns_lshl_b32 s{T}, s{sJ}, 7\ns_add_u32 s{s}, s{s}, s{T}")

def qkv_piece8(a, s, u):
    a(f"s_add_u32 m0, s{sVW}, {(u % 12)*8192}\ns_add_u32 s{T}, s{s}, {qkv_src(u)}")
    a(f"buffer_load_dwordx4 v{vWQ}, s[{S_QKV}:{S_QKV+3}], s{T} offen lds")

def w2_dma(a, f):
    a(f"s_add_u32 m0, s{sVW}, {(f % 12)*8192}\ns_add_u32 s{T}, s{sW2S}, {f*16*4096}")
    a(f"buffer_load_dwordx4 v{vF2}, s[{S_W2}:{S_W2+3}], s{T} offen lds")

def frag_reads(dst, vaddr, off):
    p, n = dst[0], int(dst[1:])
    return [f"ds_read_b64_tr_b16 {p}[{n}:{n+1}], v{vaddr} offset:{off}", f"ds_read_b64_tr_b16 {p}[{n+2}:{n+3}], v{vaddr} offset:{off+256}"]

def w2_reads(f, vlo, vhi):
    s = f % 12
    return frag_reads(f"a{4*f}", vlo if s < 8 else vhi, (s % 8)*8192)

def prologue(a):
    a(f"s_cmp_ge_u32 s2, 256\ns_cbranch_scc1 L_end")
    for s, n in ((S_XS, "x"), (S_QKV, "wqkv"), (S_WS, "ws"), (S_WO, "wo"), (S_W1, "w1"), (S_W2, "w2"), (S_B1, "b1"), (S_B2, "b2"), (S_DBG, "dbg")):
        a(f"s_load_dwordx2 s[{s}:{s+1}], s[0:1], {KA[n]}")
        a(f"s_mov_b32 s{s+2}, {hex(SZ[n])}\ns_mov_b32 s{s+3}, 0x00020000")
    a(f"s_load_dwordx2 s[{sOUT}:{sOUT+1}], s[0:1], {KA['out']}")
    a(f"s_mov_b32 s{S_XD+2}, {hex(SZ['x'])}\ns_mov_b32 s{S_XD+3}, 0x00020000")
    a(f"s_and_b32 s{sI}, s2, 7\ns_lshl_b32 s{sI}, s{sI}, 2\ns_bfe_u32 s{T}, s2, 0x20003\ns_or_b32 s{sI}, s{sI}, s{T}\ns_lshr_b32 s{sJ}, s2, 5")
    a(f"v_lshrrev_b32 v{vL}, 6, v0\ns_nop 0\nv_readfirstlane_b32 s{sW}, v{vL}\nv_and_b32 v{vL}, 63, v0")
    a(f"v_lshrrev_b32 v{vN}, 3, v0\nv_and_b32 v{vC}, 7, v0\nv_lshlrev_b32 v{vL16}, 4, v{vL}")
    a(f"v_lshlrev_b32 v{vXO}, 10, v{vN}\nv_lshl_add_u32 v{vXO}, v{vC}, 4, v{vXO}")
    a(f"s_lshl_b32 s{sXO}, s{sI}, 16\ns_lshl_b32 s{T}, s{sJ}, 7\ns_add_u32 s{sXO}, s{sXO}, s{T}")
    a(f"s_mov_b32 s{sL}, 0\ns_mov_b32 s{sLB}, 0\ns_mov_b32 s{sFL}, {WS_FLAG}")
    if C.stamp: a("v_mov_b32 v6, 0\nv_mov_b32 v7, 0")
    a(f"v_lshrrev_b32 v40, 3, v{vL}\nv_bfe_u32 v41, v{vL}, 4, 1\nv_lshlrev_b32 v41, 2, v41\nv_and_b32 v42, 7, v{vL}\nv_xor_b32 v41, v41, v42\nv_lshlrev_b32 v41, 4, v41")
    a(f"v_mul_u32_u24 v{vWQ}, 3072, v40\nv_add_u32 v{vWQ}, v{vWQ}, v41")
    a(f"s_lshl_b32 s{sVW}, s{sW}, 10\ns_add_u32 s{sVW}, s{sVW}, {V}")
    a(f"v_bfe_u32 v41, v{vN}, 1, 3\nv_xor_b32 v41, v41, v{vC}\nv_lshlrev_b32 v41, 4, v41\nv_lshl_add_u32 v{vXD}, v{vN}, 10, v41")
    a("s_waitcnt lgkmcnt(0)")
    stamp(a, "start")
    a(f"s_add_u32 s{S_XD}, s{S_WS}, {WS_X2}\ns_addc_u32 s{S_XD+1}, s{S_WS+1}, 0")

def prologue2(a):
    a(f"v_lshrrev_b32 v42, 2, v{vL}\nv_and_b32 v43, 3, v{vL}\nv_lshlrev_b32 v43, 4, v43")
    a(f"v_lshl_add_u32 v{vF2}, v42, 12, v43")
    a(f"v_lshrrev_b32 v42, 5, v{vL}\nv_lshlrev_b32 v42, 3, v42\nv_bfe_u32 v43, v{vL}, 2, 2\nv_add_u32 v42, v42, v43\nv_lshlrev_b32 v{vTRF}, 6, v42")
    a(f"v_bfe_u32 v43, v{vL}, 4, 1\nv_lshl_add_u32 v{vTRF}, v43, 5, v{vTRF}\nv_and_b32 v43, 3, v{vL}\nv_lshl_add_u32 v{vTRF}, v43, 3, v{vTRF}")
    a(f"v_add_u32 v{vTRF}, s{sVW}, v{vTRF}")
    a(f"s_lshr_b32 s{sW2S}, s{sW}, 1\ns_mul_i32 s{sW2S}, s{sW2S}, {448*4096}\ns_lshl_b32 s{T}, s{sI}, 7\ns_add_u32 s{sW2S}, s{sW2S}, s{T}")
    a(f"s_and_b32 s{T}, s{sW}, 1\ns_lshl_b32 s{T}, s{T}, 6\ns_add_u32 s{sW2S}, s{sW2S}, s{T}")

def tlb_touch(a):
    if not C.tlb: return
    a(f"s_lshl_b32 s{T}, s{sW}, 21")
    for k in range(2): a(f"s_add_u32 s{T+1}, s{T}, {k*LSTRIDE}\ns_buffer_load_dword s86, s[{S_WS}:{S_WS+3}], s{T+1}")
    a(f"s_lshl_b32 s{T}, s{sW}, 20")
    for srd in (S_W1, S_W2): a(f"s_buffer_load_dword s86, s[{srd}:{srd+3}], s{T}")
    a(f"s_lshl_b32 s{T}, s{sW}, 18")
    a(f"s_load_dword s86, s[{sOUT}:{sOUT+1}], s{T}")
    a(f"s_lshl_b32 s{T}, s{sW}, 16\ns_buffer_load_dword s86, s[{S_WO}:{S_WO+3}], s{T}")
    a(f"s_buffer_load_dword s86, s[{S_B1}:{S_B1+3}], 0\ns_buffer_load_dword s86, s[{S_B2}:{S_B2+3}], 0")

def init_sync(a):
    def body():
        a("v_mov_b32 v44, 0\nv_mov_b32 v45, 0\nv_mov_b32 v46, 0\nv_mov_b32 v47, 0")
        a(f"s_lshl_b32 s{T}, s2, 10\ns_add_u32 s{T}, s{T}, {WS_ST}\ns_add_u32 s{T+1}, s{T}, {LSTRIDE}")
        a(f"buffer_store_dwordx4 v[44:47], v{vL16}, s[{S_WS}:{S_WS+3}], s{T} offen sc1")
        a(f"buffer_store_dwordx4 v[44:47], v{vL16}, s[{S_WS}:{S_WS+3}], s{T+1} offen sc1")
        a(f"s_lshl_b32 s{T}, s2, 8\ns_add_u32 s{T}, s{T}, {WS_FLAG}\ns_mov_b64 exec, 0xffff")
        a(f"buffer_store_dwordx4 v[44:47], v{vL16}, s[{S_WS}:{S_WS+3}], s{T} offen sc1")
        a(f"s_getreg_b32 s{T+1}, hwreg(HW_REG_XCC_ID, 0, 4)\ns_mov_b64 exec, 1\nv_mov_b32 v48, s{T+1}")
        a(f"s_lshl_b32 s{T}, s{sI}, 3\ns_add_u32 s{T}, s{T}, s{sJ}\ns_lshl_b32 s{T}, s{T}, 4\ns_add_u32 s{T}, s{T}, {WS_XT}")
        a(f"buffer_store_dword v48, v{vL16}, s[{S_WS}:{S_WS+3}], s{T} offen sc1")
        a("s_mov_b64 exec, -1")
    if_wave_eq(a, 3, body)

def init_arrive(a):
    L = a.label()
    a(f"s_cmp_lg_u32 s{sW}, 3\ns_cbranch_scc1 {L}")
    a(f"v_mov_b32 v{TV}, 1\nv_mov_b32 v{TV+1}, 0\ns_and_b32 s{T}, s2, 63\ns_lshl_b32 s{T}, s{T}, 2\ns_mov_b64 exec, 1")
    a(f"buffer_atomic_add v{TV}, v{TV+1}, s[{S_DBG}:{S_DBG+3}], s{T} offen sc1")
    a(f"s_mov_b64 exec, -1\n{L}:")

def wait_init(a, vaddr):
    a(f"s_mov_b32 s{T+1}, {SPIN}")
    LP = a.label(); LD = a.label()
    a(f"{LP}:\nv_cmp_gt_u32 vcc, 4, v{TV+2}\ns_cbranch_vccz {LD}")
    a(f"buffer_load_dword v{TV+2}, v{vaddr}, s[{S_DBG}:{S_DBG+3}], 0 offen sc1\ns_waitcnt vmcnt(0)")
    a(f"s_sub_u32 s{T+1}, s{T+1}, 1\ns_cmp_lg_u32 s{T+1}, 0\ns_cbranch_scc1 {LP}")
    a(f"{LD}:\ns_mov_b64 exec, -1")

class VM:
    def __init__(self): self.ops = []
    def add(self, tag, n=1): self.ops += [tag]*n
    def need(self, *tags):
        last = max(k for k, t in enumerate(self.ops) if t in tags)
        return min(63, len(self.ops) - 1 - last)

vXD = 15
TAB = V
WS_ST2 = 12*MB + 512*1024
WS_CS = 13*MB

def x_dma(a):
    a(f"s_lshl_b32 s{T}, s{sI}, 16\ns_lshl_b32 s{T+1}, s{sW}, 10")
    for q in range(8):
        a(f"s_add_u32 m0, s{T+1}, {E + q*8192 - q*128}\ns_nop 0" if q else f"s_mov_b32 m0, s{T+1}\ns_nop 0")
        a(f"buffer_load_dwordx4 v{vXD}, s[{S_XS}:{S_XS+3}], s{T} offen offset:{128*q} sc1 lds")

def split_hi_lo(a, src, hi2, lo2, t, neg=False):
    if neg: a(f"v_sub_f32 v{src}, 0, v{src}")
    a(f"v_cvt_pk_bf16_f32 v{t}, v{src}, v{src}\nv_and_b32 v{t}, 0xffff0000, v{t}\nv_sub_f32 v{t+1}, v{src}, v{t}")

def helper_setup(a):
    src, dst = T+2, T+3
    a(f"s_sub_u32 s{dst}, s{sW}, 4\ns_mul_i32 s{src}, s{dst}, {16*3072}\ns_lshl_b32 s{T}, s{sJ}, 7\ns_add_u32 s{src}, s{src}, s{T}")
    a(f"s_lshl_b32 s{T}, s{dst}, 4\nv_lshrrev_b32 v40, 2, v{vL}\nv_add_u32 v40, s{T}, v40")
    a(f"s_lshl_b32 s{dst}, s{dst}, 11\ns_add_u32 s{dst}, s{dst}, {V}")

def helper_unit(a, u, vm):
    for p in range(2):
        a(f"s_add_u32 m0, s{T+3}, {(u % 12)*8192 + p*1024}\ns_add_u32 s{T}, s{T+2}, {qkv_src(u) + p*8*3072}")
        a(f"buffer_load_dwordx4 v{vWQ}, s[{S_QKV}:{S_QKV+3}], s{T} offen lds")
    vm.add(("w", u), 2)

def helper_loop(a, layer, vm, issued, sched, LJ):
    ROW, S1, S2, G = 40, 42, 44, 48
    first = issued
    for s in range(12):
        tags = [t for t in [("x", s), ("w", 2*s+1)] if t in vm.ops]
        if s == 6 and layer == 1: tags.append("g")
        if tags: a(f"s_waitcnt vmcnt({vm.need(*tags)})")
        if s == 8: a("s_waitcnt lgkmcnt(0)")
        a("s_barrier")
        if s == 7: a(f"ds_write_b32 v{ROW}, v{S1}\nds_write_b32 v{ROW}, v{S2} offset:256")
        for _ in range(sched[s]):
            assert issued < 2*s + 12 and issued < 24
            helper_unit(a, issued, vm); issued += 1
        assert s == 11 or issued >= 2*s + 4
        if s == 6:
            if layer == 1: a(f"v_add_f32 v{S1}, v{G}, v{G+2}\nv_add_f32 v{S2}, v{G+1}, v{G+3}")
            for pat in ("quad_perm:[1,0,3,2]", "quad_perm:[2,3,0,1]"):
                a("s_nop 1")
                for r in (S1, S2): a(f"v_add_f32_dpp v{r}, v{r}, v{r} {pat} row_mask:0xf bank_mask:0xf")
            a(f"v_mul_f32 v{S1}, {f2u(1/512)}, v{S1}\nv_mul_f32 v{S2}, {f2u(1/512)}, v{S2}")
            a(f"v_fma_f32 v{S2}, -v{S1}, v{S1}, v{S2}\nv_max_f32 v{S2}, 0, v{S2}\nv_add_f32 v{S2}, {f2u(1e-5)}, v{S2}\nv_rsq_f32 v{S2}, v{S2}")
            a(f"v_lshlrev_b32 v{ROW}, 2, v{ROW}\nv_add_u32 v{ROW}, {TAB}, v{ROW}")
        if s == 8 and layer == 0:
            a(f"v_lshlrev_b32 v46, 2, v{vL}\nbuffer_load_dword v{TV+2}, v46, s[{S_DBG}:{S_DBG+3}], 0 offen sc1"); vm.add("dbg")
        if s == C.w1t and layer == 0:
            a(f"s_lshl_b32 s{T}, s2, 2\ns_add_u32 s{T}, s{T}, s{sW}\ns_sub_u32 s{T}, s{T}, 4\ns_mul_i32 s{T+1}, s{T}, {56*128}\nv_min_u32 v47, 55, v{vL}\nv_lshlrev_b32 v47, 7, v47")
            a(f"buffer_load_dword v52, v47, s[{S_W1}:{S_W1+3}], s{T+1} offen")
            a(f"s_lshl_b32 s{T+1}, s{T}, 9\nv_and_b32 v47, 0x180, v47\nbuffer_load_dword v53, v47, s[{S_WO}:{S_WO+3}], s{T+1} offen")
            vm.add("t", 2)
    assert issued == 24
    def w4():
        if layer == 0:
            a(f"s_waitcnt vmcnt({vm.need('dbg')})")
            wait_init(a, 46)
        publish(a, "KV", sJ)
    if_wave_eq(a, 4, w4)
    a("s_barrier")
    if_wave_eq(a, 4, lambda: poll(a, "KV", sJ, 32))
    a(f"s_waitcnt vmcnt(0)\ns_branch {LJ}")

def phase1(a):
    LC = "L_p1_cons"; LJ = "L_p1_join"
    a(f"s_cmp_lt_u32 s{sW}, 4\ns_cbranch_scc1 {LC}")
    helper_setup(a)
    a(f"v_and_b32 v41, 3, v{vL}\nv_lshlrev_b32 v41, 9, v41\nv_lshl_add_u32 v41, v40, 3, v41\ns_lshl_b32 s{T}, s{sI}, 12\ns_add_u32 s{T}, s{T}, {WS_ST2}")
    a(f"buffer_load_dwordx2 v[48:49], v41, s[{S_WS}:{S_WS+3}], s{T} offen sc1\nbuffer_load_dwordx2 v[50:51], v41, s[{S_WS}:{S_WS+3}], s{T} offen offset:2048 sc1")
    vm = VM()
    for q in range(8): vm.add(("x", q))
    vm.add("g", 2)
    helper_loop(a, 1, vm, 12, [int(c) for c in C.hs1], LJ)
    a(f"{LC}:")
    tt, ch = T+2, T+3
    a(f"s_and_b32 s{tt}, s{sW}, 1\ns_lshr_b32 s{ch}, s{sW}, 1")
    XA = 40
    a(f"v_and_b32 v44, 31, v{vL}\ns_lshl_b32 s{T}, s{tt}, 5\nv_add_u32 v44, s{T}, v44\nv_lshlrev_b32 v38, 2, v44\nv_add_u32 v38, {TAB}, v38")
    a(f"v_bfe_u32 v45, v{vL}, 1, 3\nv_lshrrev_b32 v46, 5, v{vL}\nv_xor_b32 v45, v45, v46\nv_lshlrev_b32 v45, 4, v45\nv_lshl_add_u32 v{XA}, v44, 7, v45")
    for m in range(1, 4): a(f"v_xor_b32 v{XA+m}, {32*m}, v{XA}")
    a(f"s_lshl_b32 s{T}, s{tt}, 7\ns_add_u32 s{T}, s{T}, {TAB+256}\nv_lshlrev_b32 v37, 4, v46\nv_add_u32 v37, s{T}, v37")
    WL, WH = 44, 45
    tr_addr(a, WL, f"s{ch}", False, 46, 47)
    a(f"v_add_u32 v{WL}, {V}, v{WL}\nv_add_u32 v{WH}, {6*8192}, v{WL}")
    AK, AV, AQ = 48, 64, 80
    CS, SEL = 20, 32
    a(f"v_and_b32 v46, 31, v{vL}\nv_cmp_eq_u32 vcc, 0, v46\nv_cmp_eq_u32 s[{T+4}:{T+5}], 20, v46\ns_or_b64 vcc, vcc, s[{T+4}:{T+5}]\nv_mov_b32 v47, 0x3f803f80\ns_nop 1\nv_cndmask_b32 v{SEL}, 0, v47, vcc")
    for r in range(1, 4): a(f"v_mov_b32 v{SEL+r}, v{SEL}")
    csoff = T+8
    a(f"s_lshl_b32 s{csoff}, s2, 2\ns_add_u32 s{csoff}, s{csoff}, s{sW}\ns_lshl_b32 s{csoff}, s{csoff}, 10\ns_add_u32 s{csoff}, s{csoff}, {WS_CS}")
    for r in range(12): a(f"v_mov_b32 v{CS+r}, 0")
    def fr(buf, n):
        if buf == 0: return ("a", n)
        return ("a", 64+n) if n < 48 else ("v", 96 + n - 48)
    def R(buf, n, w):
        p, b = fr(buf, n); return f"{p}[{b}:{b+w-1}]"
    def wslot(u):
        s = u % 12
        return (WL, s*8192) if s < 6 else (WH, (s-6)*8192)
    def rd(s):
        buf = s & 1; out = []
        if s < 8:
            for t in range(4):
                out.append(f"ds_read_b128 {R(buf, 12*t, 4)}, v{XA+t} offset:{8192*s}")
                for seg in range(2):
                    va, off = wslot(2*s+seg)
                    for e in range(2):
                        out.append(f"ds_read_b64_tr_b16 {R(buf, 12*t+4+4*seg+2*e, 2)}, v{va} offset:{off + t*2048 + e*512}")
        else:
            for t in range(8):
                out.append(f"ds_read_b128 {R(buf, 8*t, 4)}, v{XA+(t&3)} offset:{16384*(s-8) + (t>>2)*8192}")
                va, off = wslot(2*s + (t >> 2))
                for e in range(2):
                    out.append(f"ds_read_b64_tr_b16 {R(buf, 8*t+4+2*e, 2)}, v{va} offset:{off + (t&3)*2048 + e*512}")
        return out
    def mf(s):
        buf = s & 1; out = []
        if s < 8:
            for t in range(4):
                z = s == 0 and t == 0
                out.append(f"v_mfma_f32_32x32x16_bf16 v[{AK}:{AK+15}], {R(buf, 12*t+4, 4)}, {R(buf, 12*t, 4)}, " + ("0" if z else f"v[{AK}:{AK+15}]"))
                out.append(f"v_mfma_f32_32x32x16_bf16 v[{AV}:{AV+15}], {R(buf, 12*t, 4)}, {R(buf, 12*t+8, 4)}, " + ("0" if z else f"v[{AV}:{AV+15}]"))
        else:
            for t in range(8):
                out.append(f"v_mfma_f32_32x32x16_bf16 v[{AQ}:{AQ+15}], {R(buf, 8*t+4, 4)}, {R(buf, 8*t, 4)}, " + ("0" if s == 8 and t == 0 else f"v[{AQ}:{AQ+15}]"))
        return out
    def csum(s):
        buf = s & 1
        L = a.label()
        a(f"s_cmp_lg_u32 s{sL}, 0\ns_cbranch_scc1 {L}")
        if s < 8:
            for t in range(4):
                for seg in range(2):
                    a(f"v_mfma_f32_16x16x32_bf16 v[{CS+4*seg}:{CS+4*seg+3}], v[{SEL}:{SEL+3}], {R(buf, 12*t+4+4*seg, 4)}, v[{CS+4*seg}:{CS+4*seg+3}]")
        else:
            for t in range(8):
                a(f"v_mfma_f32_16x16x32_bf16 v[{CS+8}:{CS+11}], v[{SEL}:{SEL+3}], {R(buf, 8*t+4, 4)}, v[{CS+8}:{CS+11}]")
        a(f"{L}:")
    def inter(m, r, per):
        per = max(per, -(-len(r)//len(m)))
        for x in range(len(m)):
            a(m[x])
            for y in r[x*per:(x+1)*per]: a(y)
    a(f"s_lshl_b32 s{T+4}, s{sI}, 1\ns_add_u32 s{T+4}, s{T+4}, s{tt}")
    a(f"s_lshl_b32 s{T+5}, s{sJ}, 2\ns_lshl_b32 s{T+6}, s{ch}, 1\ns_add_u32 s{T+5}, s{T+5}, s{T+6}")
    a(f"s_lshl_b32 s{T+5}, s{T+5}, 6\ns_add_u32 s{T+5}, s{T+5}, s{T+4}")
    a(f"s_lshl_b32 s{T+4}, s{T+5}, 11\ns_add_u32 s{T+4}, s{T+4}, s{sLB}\ns_add_u32 s{T+5}, s{T+4}, 131072")
    assert WS_KV == 0
    a(f"v_and_b32 v46, 0x33, v{vL}\nv_bfe_u32 v47, v{vL}, 2, 1\nv_lshl_add_u32 v46, v47, 3, v46\nv_bfe_u32 v47, v{vL}, 3, 1\nv_lshl_add_u32 v46, v47, 2, v46\nv_lshlrev_b32 v46, 4, v46")
    a(f"v_bfe_u32 v39, v{vL}, 4, 1\nv_lshlrev_b32 v47, 17, v39\nv_lshrrev_b32 v39, 5, v{vL}\nv_lshl_add_u32 v47, v39, 8, v47\nv_and_b32 v39, 15, v{vL}\nv_lshl_add_u32 v47, v39, 4, v47")
    ST4 = 16
    a(f"buffer_load_dwordx4 v[{ST4}:{ST4+3}], v{vL16}, s[{S_WS}:{S_WS+3}], s{csoff} offen sc1")
    a("s_waitcnt vmcnt(8)\ns_barrier")
    stamp(a, "p1.b0")
    for x in rd(0): a(x)
    P, RB, MU, RR, AUG = 112, 128, 36, 39, 32
    def pick(dst, seg):
        L = a.label(); L2 = a.label()
        a(f"s_cmp_lg_u32 s{sL}, 0\ns_cbranch_scc1 {L}\nv_mov_b32 v{ST4+seg}, v{CS+4*seg}\n{L}:")
    def aug_w(seg, d):
        a(f"v_cvt_pk_bf16_f32 v{d}, v{ST4+seg}, v{ST4+seg}\nv_and_b32 v{d+1}, 0xffff0000, v{d}\nv_sub_f32 v{d+1}, v{ST4+seg}, v{d+1}\nv_cvt_pk_bf16_f32 v{d+1}, v{d+1}, v{d+1}")
    XM = 22
    def kv_epilogue():
        a("s_waitcnt lgkmcnt(0)\ns_nop 4")
        pick(None, 0); pick(None, 1)
        a(f"v_sub_f32 v{MU}, 0, v{MU}\nv_cvt_pk_bf16_f32 v{XM}, v{MU}, v{MU}\nv_and_b32 v{XM+1}, 0xffff0000, v{XM}\nv_sub_f32 v{XM+1}, v{MU}, v{XM+1}\nv_cvt_pk_bf16_f32 v{XM}, v{MU}, v{XM+1}\nv_mov_b32 v{XM+1}, v{XM}")
        aug_w(0, 24); aug_w(1, 26)
        a("s_nop 1")
        a(f"v_mfma_f32_32x32x8_bf16 v[{AK}:{AK+15}], v[24:25], v[{XM}:{XM+1}], v[{AK}:{AK+15}]")
        a(f"v_mfma_f32_32x32x8_bf16 v[{AV}:{AV+15}], v[{XM}:{XM+1}], v[26:27], v[{AV}:{AV+15}]")
        a("s_nop 10")
        for r in range(16): a(f"v_mul_f32 v{AK+r}, v{AK+r}, v{RR}")
        for r in range(8): a(f"v_cvt_pk_bf16_f32 v{P+r}, v{AK+2*r}, v{AK+2*r+1}")
        a(f"buffer_store_dwordx4 v[{P}:{P+3}], v46, s[{S_WS}:{S_WS+3}], s{T+4} offen sc1")
        a(f"buffer_store_dwordx4 v[{P+4}:{P+7}], v46, s[{S_WS}:{S_WS+3}], s{T+5} offen sc1")
        for r in range(16): a(f"v_mul_f32 v{AV+r}, v{AV+r}, v{RB+r}")
        for r in range(8): a(f"v_cvt_pk_bf16_f32 v{P+8+r}, v{AV+2*r}, v{AV+2*r+1}")
        a(f"buffer_store_dwordx4 v[{P+8}:{P+11}], v47, s[{S_WS}:{S_WS+3}], s{T+4} offen offset:1024 sc1")
        a(f"buffer_store_dwordx4 v[{P+12}:{P+15}], v47, s[{S_WS}:{S_WS+3}], s{T+4} offen offset:1536 sc1")
        stamp(a, "p1.kvst")
    for s in range(11):
        vmw = f"vmcnt({7-s}) " if s < 7 else ("vmcnt(0) " if s in (7, 10) else "")
        a(f"s_waitcnt {vmw}lgkmcnt(0)\ns_barrier")
        r = rd(s+1)
        if s == 7:
            r = [f"ds_read_b32 v{MU}, v38", f"ds_read_b32 v{RR}, v38 offset:256"] + [f"ds_read_b128 v[{RB+4*k}:{RB+4*k+3}], v37 offset:{32*k}" for k in range(4)] + r
        inter(mf(s), r, C.p1per)
        csum(s)
        if s == 7: kv_epilogue()
    a("s_waitcnt lgkmcnt(0)\ns_barrier")
    for x in mf(11): a(x)
    csum(11)
    stamp(a, "p1.mfma")
    a(f"s_lshl_b32 s{T+6}, s{ch}, 12\ns_lshl_b32 s{T+7}, s{tt}, 10\ns_add_u32 s{T+6}, s{T+6}, s{T+7}\ns_add_u32 s{T+6}, s{T+6}, {QX}\nv_add_u32 v46, s{T+6}, v{vL16}")
    a(f"v_mul_f32 v{RR}, {f2u(0.25*1.4426950408889634)}, v{RR}\ns_nop 2")
    pick(None, 2)
    aug_w(2, 24)
    a("s_nop 1")
    a(f"v_mfma_f32_32x32x8_bf16 v[{AQ}:{AQ+15}], v[24:25], v[{XM}:{XM+1}], v[{AQ}:{AQ+15}]")
    a(f"buffer_store_dwordx4 v[{ST4}:{ST4+3}], v{vL16}, s[{S_WS}:{S_WS+3}], s{csoff} offen sc1")
    a("s_nop 10")
    for r in range(16): a(f"v_mul_f32 v{AQ+r}, v{AQ+r}, v{RR}")
    for r in range(8): a(f"v_cvt_pk_bf16_f32 v{P+r}, v{AQ+2*r}, v{AQ+2*r+1}")
    a(f"ds_write_b128 v46, v[{P}:{P+3}]\nds_write_b128 v46, v[{P+4}:{P+7}] offset:2048\ns_waitcnt lgkmcnt(0)")
    a(f"{LJ}:")

hh, kh, head, kvs, w1s, w1c, wos, tch, ring = T+2, T+3, T+4, T+5, T+6, T+7, T+8, T+9, T+10
TD, VA_, IDX, TA, vF1, vWO, SGA, Q, S, O, KR, VR = 16, 18, 19, 20, 21, 22, 23, 24, [32, 48], [64, 80], 96, 112
CST = E + 33792
CMB = E + 37888

def phase2(a):
    t0, t1 = S[0], S[0]+1
    a(f"s_and_b32 s{hh}, s{sW}, 3\ns_lshr_b32 s{kh}, s{sW}, 2\ns_lshl_b32 s{head}, s{sJ}, 2\ns_add_u32 s{head}, s{head}, s{hh}")
    a(f"s_lshl_b32 s{kvs}, s{head}, 17\ns_lshl_b32 s{T}, s{kh}, 16\ns_add_u32 s{kvs}, s{kvs}, s{T}\ns_add_u32 s{kvs}, s{kvs}, s{sLB}")
    a(f"s_lshl_b32 s{ring}, s{sW}, 12\ns_add_u32 s{ring}, s{ring}, 1024")
    a(f"v_lshrrev_b32 v{t0}, 5, v{vL}\nv_lshlrev_b32 v{VA_}, 8, v{t0}\nv_and_b32 v{t0}, 15, v{vL}\nv_lshl_add_u32 v{VA_}, v{t0}, 4, v{VA_}\nv_add_u32 v{VA_}, s{ring}, v{VA_}")
    a(f"v_add_u32 v{t1}, 4, v{t0}\nv_and_b32 v{t1}, 8, v{t1}\nv_lshlrev_b32 v{t1}, 3, v{t1}\nv_add_u32 v{t1}, {CST}, v{t1}")
    a(f"v_and_b32 v{t0}, 11, v{vL}\nv_cmp_eq_u32 vcc, 0, v{t0}\nv_add_u32 v{t0}, 16, v{t1}\ns_nop 0\nv_cndmask_b32 v{t1}, v{t1}, v{t0}, vcc")
    a(f"v_and_b32 v{t0}, 16, v{vL}\nv_cmp_eq_u32 vcc, 0, v{t0}\ns_nop 1\nv_cndmask_b32 v{VA_}, v{t1}, v{VA_}, vcc")
    a(f"v_and_b32 v{t0}, 3, v{vL}\nv_cmp_eq_u32 vcc, 1, v{t0}\nv_mov_b32 v{t1}, 0x3f803f80\ns_nop 0\nv_cndmask_b32 v{t0+4}, 0, v{t1}, vcc")
    a(f"v_mov_b32 v{t0+5}, v{t0+4}\nv_mov_b32 v{t0+6}, v{t0+4}\nv_mov_b32 v{t0+7}, v{t0+4}")
    a(f"s_lshl_b32 s{T}, s{sW}, 9\ns_add_u32 s{T}, s{T}, {CST}\nv_and_b32 v{t0}, 0x1f0, v{vL16}\nv_add_u32 v{t0}, s{T}, v{t0}\nds_write_b128 v{t0}, v[{t0+4}:{t0+7}]")
    a(f"v_mov_b32 v{IDX}, 0xdddddddd")
    for r in range(32): a(f"v_mov_b32 v{O[0]+r}, 0")
    if C.now1: a(f"s_mov_b32 s{S_W1+2}, 0")
    a(f"s_cmp_lg_u32 s{sL}, 0\ns_cselect_b32 s{S_QKV+2}, 0, s{S_QKV+2}")
    a(f"s_lshr_b32 s{w1s}, s{sW}, 1\ns_mul_i32 s{w1s}, s{w1s}, {512*3584}\ns_lshl_b32 s{T}, s{sI}, 7\ns_add_u32 s{w1s}, s{w1s}, s{T}")
    a(f"s_and_b32 s{T+1}, s{sW}, 1\ns_lshl_b32 s{T+1}, s{T+1}, 6\ns_add_u32 s{w1s}, s{w1s}, s{T+1}\ns_sub_u32 s{w1s}, s{w1s}, {16*3584}")
    a(f"s_lshl_b32 s{tch}, s{sJ}, 3\ns_add_u32 s{tch}, s{tch}, s{sW}\ns_mul_i32 s{tch}, s{tch}, {28*4096}\ns_add_u32 s{tch}, s{tch}, s{T}")
    a(f"v_lshlrev_b32 v{TA}, 12, v{vL}\nv_cmp_gt_u32 vcc, 28, v{vL}\nv_mov_b32 v{t1}, 0x40000000\ns_nop 0\nv_cndmask_b32 v{TA}, v{t1}, v{TA}, vcc")
    a(f"s_lshl_b32 s{wos}, s{sW}, 13\ns_lshl_b32 s{T}, s{sJ}, 7\ns_add_u32 s{wos}, s{wos}, s{T}")
    a(f"s_lshl_b32 s{T}, s{hh}, 11\ns_add_u32 s{T}, s{T}, {QX}\nv_add_u32 v{t1}, s{T}, v{vL16}\nv_add_u32 v{SGA}, {STG-V}, v{vTRF}")
    a(f"v_lshrrev_b32 v{t0+2}, 2, v{vL}\nv_and_b32 v{t0+3}, 3, v{vL}\nv_lshlrev_b32 v{t0+3}, 4, v{t0+3}\nv_mul_u32_u24 v{vF1}, 3584, v{t0+2}\nv_add_u32 v{vF1}, v{vF1}, v{t0+3}")
    a(f"v_lshrrev_b32 v{t0+2}, 3, v{vL}\nv_lshlrev_b32 v{t0+2}, 11, v{t0+2}\nv_sub_u32 v{vWO}, v{vWQ}, v{t0+2}")
    a(f"s_sub_u32 s{ring}, s{ring}, 1024")
    a("s_waitcnt lgkmcnt(0)\ns_barrier")
    stamp(a, "p2.start")
    vm = VM()
    def kv_issue(t):
        k = KR + 4*(t & 3)
        a(f"s_add_u32 m0, s{ring}, {(t & 3)*1024}")
        a(f"buffer_load_dwordx4 v[{k}:{k+3}], v{vL16}, s[{S_WS}:{S_WS+3}], s{kvs} offen sc1")
        a(f"buffer_load_dwordx4 v{vL16}, s[{S_WS}:{S_WS+3}], s{kvs} offen offset:1024 sc1 lds")
        a(f"s_addk_i32 s{kvs}, 2048")
        vm.add(("kv", t), 2)
    def v_read(t):
        v = VR + 8*(t & 1)
        a(f"ds_read_b128 v[{v}:{v+3}], v{VA_} offset:{(t & 3)*1024}\nds_read_b128 v[{v+4}:{v+7}], v{VA_} offset:{(t & 3)*1024 + 512}")
    def w1_issue(f):
        if f % 4 == 0:
            a(f"s_and_b32 s{w1c}, s{sJ}, {C.jrot}\ns_add_u32 s{w1c}, s{w1c}, {f//4}\ns_and_b32 s{w1c}, s{w1c}, 7\ns_mul_i32 s{w1c}, s{w1c}, {64*3584}\ns_add_u32 s{w1c}, s{w1c}, s{w1s}")
        a(f"s_add_u32 m0, s{sVW}, {STG - V + (f & 3)*8192}\ns_add_u32 s{w1c}, s{w1c}, {16*3584}")
        a(f"buffer_load_dwordx4 v{vF1}, s[{S_W1}:{S_W1+3}], s{w1c} offen lds")
        vm.add(("w1", f))
    def wo_issue(u):
        a(f"s_add_u32 m0, s{sVW}, {u*8192}\ns_add_u32 s{T}, s{wos}, {u*65536}")
        a(f"buffer_load_dwordx4 v{vWO}, s[{S_WO}:{S_WO+3}], s{T} offen lds")
        vm.add(("wo", u))
    def touch(n):
        a(f"s_cmp_eq_u32 s{sJ}, {n}\ns_cselect_b32 s{T}, s{tch}, 0x40000000")
        a(f"buffer_load_dword v{TD}, v{TA}, s[{S_W2}:{S_W2+3}], s{T} offen")
        vm.add(("t", n))
    def ex(s, r0, r1):
        for r in range(r0, r1): a(f"v_exp_f32 v{s+r}, v{s+r}")
    def setprio(p):
        L = a.label()
        a(f"s_cmp_lg_u32 s{kh}, 0\ns_cbranch_scc1 {L}\ns_setprio {p}\n{L}:")
    def qk(q, t): a(f"v_mfma_f32_32x32x16_bf16 v[{S[q]}:{S[q]+15}], v[{KR+4*(t&3)}:{KR+4*(t&3)+3}], v[{Q+4*q}:{Q+4*q+3}], 0")
    def pv(q, t, h): a(f"v_smfmac_f32_32x32x32_bf16 v[{O[q]}:{O[q]+15}], v[{VR+8*(t&1)+4*h}:{VR+8*(t&1)+4*h+3}], v[{S[q]+8*h}:{S[q]+8*h+7}], v{IDX}")
    kv_issue(0); kv_issue(1)
    a(f"ds_read_b128 v[{Q}:{Q+3}], v{t1}\nds_read_b128 v[{Q+4}:{Q+7}], v{t1} offset:1024")
    if C.prio: a("s_setprio 1")
    a(f"s_waitcnt vmcnt(2) lgkmcnt(0)")
    qk(0, 0)
    v_read(0)
    kv_issue(2); kv_issue(3)
    a(f"s_lshl_b32 s{T}, s{sI}, 7\ns_add_u32 s{T}, s{T}, {WS_XT}\nv_and_b32 v17, 0x70, v{vL16}")
    a(f"buffer_load_dword v17, v17, s[{S_WS}:{S_WS+3}], s{T} offen sc1"); vm.add("xt")
    stamp(a, "p2.kv0")
    a("s_nop 1")
    per = C.pper; low = C.plow
    for t in range(32):
        for q in range(2):
            hidx = 2*t + q
            if C.prio and hidx % per == 0: setprio(2)
            if C.prio and hidx % per == per - low: setprio(0)
            ex(S[q], 0, 2)
            if q == 0:
                if t > 0: pv(1, t-1, 1)
            else: pv(0, t, 1)
            ex(S[q], 2, 5)
            if q == 0:
                qk(1, t)
                need = [("kv", t+1)] if t < 31 else []
                if not C.nox and 3 <= t < 31: need.append(("w1", t-3))
                a(f"s_waitcnt vmcnt({vm.need(*need) if need else 63}) lgkmcnt(0)")
                if t+4 < 32: kv_issue(t+4)
                if t+1 < 32: v_read(t+1)
                if not C.nox and not C.split:
                    w1_issue(t)
                    if 3 <= t < 31:
                        for x in frag_reads(f"a{4*(t-3)}", SGA, ((t-3) & 3)*8192): a(x)
            else:
                if t < 31: qk(0, t+1)
                if not C.nox:
                    if C.split:
                        w1_issue(t)
                        if 3 <= t < 31:
                            for x in frag_reads(f"a{4*(t-3)}", SGA, ((t-3) & 3)*8192): a(x)
                    if t == 28 and C.pret:
                        a(f"s_lshl_b32 s{T}, s{sI}, 1\ns_add_u32 s{T}, s{T}, s{kh}\ns_lshl_b32 s{T}, s{T}, 5\ns_add_u32 s{T}, s{T}, s{head}\ns_lshl_b32 s{T}, s{T}, 10")
                        a(f"s_add_u32 s{T}, s{T}, {WS_O}\ns_add_u32 s{T}, s{T}, s{sLB}")
                        a(f"buffer_load_dword v{TD}, v{vL16}, s[{S_WS}:{S_WS+3}], s{T} offen sc1")
                        a(f"s_lshl_b32 s{T}, s{sI}, 3\ns_add_u32 s{T}, s{T}, s{sJ}\ns_lshl_b32 s{T+1}, s{T}, 10\ns_add_u32 s{T+1}, s{T+1}, {WS_ST}\ns_add_u32 s{T+1}, s{T+1}, s{sLB}")
                        a(f"buffer_load_dword v{TD}, v{vL16}, s[{S_WS}:{S_WS+3}], s{T+1} offen sc1")
                        a(f"buffer_load_dword v{TD}, v{vXO}, s[{S_XD}:{S_XD+3}], s{sXO} offen sc1")
                        vm.add("pre", 3)
                    if t % 4 == 1: wo_issue(t//4)
                    if t % 4 == 3 and C.stouch: touch(t//4)
            ex(S[q], 5, 11)
            pv(q, t, 0)
            ex(S[q], 11, 16)
    a("s_nop 1")
    pv(1, 31, 1)
    if C.prio: a("s_setprio 0")
    stamp(a, "p2.loop")
    M, N = 24, 36
    a(f"v_readfirstlane_b32 s{T}, v17\ns_nop 1\nv_cmp_ne_u32 vcc, s{T}, v17\ns_nop 1\ns_cmp_eq_u64 vcc, 0\ns_cselect_b32 s{sLOC}, 1, 0")
    a(f"s_mul_i32 s{T}, s{sW}, 3072\ns_add_u32 s{T}, s{T}, {CMB}\nv_add_u32 v17, s{T}, v{vL16}")
    a(f"s_xor_b32 s{T}, s{sW}, 4\ns_mul_i32 s{T}, s{T}, 3072\ns_add_u32 s{T}, s{T}, {CMB}\nv_add_u32 v{VA_}, s{T}, v{vL16}")
    a(f"s_lshl_b32 s{T}, s{sI}, 1\ns_add_u32 s{T}, s{T}, s{kh}\ns_lshl_b32 s{T}, s{T}, 5\ns_add_u32 s{T}, s{T}, s{head}\ns_lshl_b32 s{T}, s{T}, 10")
    a(f"s_add_u32 s{T}, s{T}, {WS_O}\ns_add_u32 s{T}, s{T}, s{sLB}")
    LA = a.label(); LB = a.label()
    a(f"s_cmp_eq_u32 s{kh}, 0\ns_cbranch_scc1 {LA}")
    a(f"ds_write_b128 v17, v[{O[0]}:{O[0]+3}]\nds_write_b128 v17, v[{O[0]+4}:{O[0]+7}] offset:1024\nds_write_b32 v17, v{O[0]+8} offset:2048")
    for r in range(9): a(f"v_mov_b32 v{M+r}, v{O[1]+r}")
    a(f"s_branch {LB}\n{LA}:")
    a(f"ds_write_b128 v17, v[{O[1]}:{O[1]+3}]\nds_write_b128 v17, v[{O[1]+4}:{O[1]+7}] offset:1024\nds_write_b32 v17, v{O[1]+8} offset:2048")
    for r in range(9): a(f"v_mov_b32 v{M+r}, v{O[0]+r}")
    a(f"{LB}:")
    wo_wait = vm.need(("wo", 7)) if not C.nox else 0
    a(f"s_waitcnt vmcnt({wo_wait}) lgkmcnt(0)\ns_barrier")
    a(f"ds_read_b128 v[{N}:{N+3}], v{VA_}\nds_read_b128 v[{N+4}:{N+7}], v{VA_} offset:1024\nds_read_b32 v{N+8}, v{VA_} offset:2048")
    a("s_waitcnt lgkmcnt(0)")
    for r in range(9): a(f"v_add_f32 v{M+r}, v{M+r}, v{N+r}")
    a(f"v_rcp_f32 v{M+8}, v{M+8}\ns_nop 0")
    for r in range(8): a(f"v_mul_f32 v{M+r}, v{M+r}, v{M+8}")
    for r in range(4): a(f"v_cvt_pk_bf16_f32 v{N+r}, v{M+2*r}, v{M+1+2*r}")
    rstore(a, f"buffer_store_dwordx4 v[{N}:{N+3}], v{vL16}, s[{S_WS}:{S_WS+3}], s{T} offen", bulk=True)

def ep_write_addr(a, base, nsplit):
    t0, t1, t2 = TV, TV+1, TV+2
    a(f"v_and_b32 v{t0}, 31, v{vL}\nv_lshrrev_b32 v{t1}, 5, v{vL}\nv_and_b32 v{t2}, 15, v{vL}\nv_xor_b32 v{t1}, v{t1}, v{t2}")
    a(f"s_and_b32 s{T}, s{sW}, 1\ns_lshr_b32 s{T+1}, s{sW}, 1\ns_lshl_b32 s{T+1}, s{T+1}, 14")
    if nsplit: a(f"s_lshl_b32 s{T}, s{T}, 13\ns_add_u32 s{T+1}, s{T+1}, s{T}")
    else: a(f"s_lshl_b32 s{T}, s{T}, 3\nv_xor_b32 v{t1}, s{T}, v{t1}")
    a(f"v_lshlrev_b32 v{t0}, 8, v{t0}\nv_add_u32 v{t0}, s{T+1}, v{t0}")
    for q in range(8 if nsplit else 4): a(f"v_xor_b32 v{t2}, {2*q}, v{t1}\nv_lshl_add_u32 v{base+q}, v{t2}, 4, v{t0}")

def ep_read_addr(a, r0, en, ec):
    a(f"v_and_b32 v{TV}, 15, v{en}\nv_lshlrev_b32 v{TV+1}, 1, v{ec}\nv_xor_b32 v{TV}, v{TV}, v{TV+1}")
    a(f"v_lshlrev_b32 v{TV+1}, 8, v{en}\nv_lshl_add_u32 v{r0}, v{TV}, 4, v{TV+1}\nv_xor_b32 v{r0+1}, 16, v{r0}")

def ep_reduce(a, ACC, wa, ra, nsplit, add0, out, mid=None):
    for y in range(2):
        for q in range(4):
            if nsplit: a(f"ds_write_b128 v{wa+4*y+q}, v[{ACC+16*y+4*q}:{ACC+16*y+4*q+3}]")
            else: a(f"ds_write_b128 v{wa+q}, v[{ACC+16*y+4*q}:{ACC+16*y+4*q+3}] offset:{y*8192}")
    if mid: mid()
    a("s_waitcnt lgkmcnt(0)\ns_barrier")
    for k in range(4):
        a(f"ds_read_b128 v[{out+8*k}:{out+8*k+3}], v{ra} offset:{16384*k}\nds_read_b128 v[{out+8*k+4}:{out+8*k+7}], v{ra+1} offset:{16384*k}")
    a("s_waitcnt lgkmcnt(6)")
    for e in range(8): a(f"v_add_f32 v{out+e}, v{out+e}, v{add0+e}")
    a("s_waitcnt lgkmcnt(2)")
    for e in range(8): a(f"v_add_f32 v{out+8+e}, v{out+8+e}, v{out+16+e}")
    for e in range(8): a(f"v_add_f32 v{out+e}, v{out+e}, v{out+8+e}")
    a("s_waitcnt lgkmcnt(0)")
    for e in range(8): a(f"v_add_f32 v{out+e}, v{out+e}, v{out+24+e}")

def unpack8(a, dst, src):
    for e in range(4): a(f"v_lshlrev_b32 v{dst+2*e}, 16, v{src+e}\nv_and_b32 v{dst+1+2*e}, 0xffff0000, v{src+e}")

def phase3(a):
    OF, ACC, WF = 16, 48, 80
    W0, W1 = 20, 21
    tr_addr(a, W0, "0", True, 22, 23)
    a(f"s_lshr_b32 s{T+2}, s{sW}, 1\ns_lshl_b32 s{T+2}, s{T+2}, 14\ns_add_u32 s{T+2}, s{T+2}, {V}\nv_add_u32 v{W0}, s{T+2}, v{W0}\nv_xor_b32 v{W1}, 64, v{W0}")
    for t in range(8):
        for y in range(2):
            b = WF + 8*t + 4*y
            a(f"ds_read_b64_tr_b16 v[{b}:{b+1}], v{W0+y} offset:{t*2048}\nds_read_b64_tr_b16 v[{b+2}:{b+3}], v{W0+y} offset:{t*2048+1024}")
    src = T+2
    a(f"s_and_b32 s{src}, s{sW}, 1\ns_lshl_b32 s{src}, s{src}, 15\ns_lshr_b32 s{T+3}, s{sW}, 1\ns_lshl_b32 s{T+3}, s{T+3}, 13\ns_add_u32 s{src}, s{src}, s{T+3}")
    a(f"s_lshl_b32 s{T+3}, s{sI}, 16\ns_add_u32 s{src}, s{src}, s{T+3}\ns_add_u32 s{src}, s{src}, {WS_O}\ns_add_u32 s{src}, s{src}, s{sLB}\ns_add_u32 s{T+3}, s{src}, 4096")
    a("s_waitcnt vmcnt(0) lgkmcnt(0)\ns_barrier")
    stamp(a, "p2.end")
    n3 = [int(c) for c in C.sch3]; assert sum(n3) == 12 and n3[0] <= 8
    if_wave_eq(a, 0, lambda: publish(a, "O", sI))
    for f in range(n3[0]): w2_dma(a, f)
    if_wave_eq(a, 0, lambda: poll(a, "O", sI, 8))
    a("s_barrier")
    stamp(a, "proj.polled")
    for t in range(8):
        a(f"buffer_load_dwordx4 v[{OF+4*t}:{OF+4*t+3}], v{vL16}, s[{S_WS}:{S_WS+3}], s{src + (t >> 2)} offen offset:{(t & 3)*1024} sc1")
    for t in range(8):
        a(f"s_waitcnt vmcnt({7-t})")
        for y in range(2):
            c = "0" if t == 0 else f"v[{ACC+16*y}:{ACC+16*y+15}]"
            a(f"v_mfma_f32_32x32x16_bf16 v[{ACC+16*y}:{ACC+16*y+15}], v[{WF+8*t+4*y}:{WF+8*t+4*y+3}], v[{OF+4*t}:{OF+4*t+3}], {c}")
        if t == 3:
            ep_write_addr(a, 80, True); ep_read_addr(a, 88, vN, vC); unpack8(a, 96, vRES)
    stamp(a, "proj.loop")
    a("s_nop 10")
    OUT = 104
    ep_reduce(a, ACC, 80, 88, True, 96, OUT)
    for e in range(4): a(f"v_cvt_pk_bf16_f32 v{vRES+e}, v{OUT+2*e}, v{OUT+1+2*e}")
    a("v_mov_b32 v64, 0\nv_mov_b32 v65, 0\nv_mov_b32 v66, 1\nv_mov_b32 v67, 1\nv_mov_b32 v68, 0x3f803f80")
    for e in range(4): a(f"v_dot2c_f32_bf16 v64, v{vRES+e}, v68\nv_dot2c_f32_bf16 v65, v{vRES+e}, v{vRES+e}")
    a(f"s_lshl_b32 s{T}, s{sI}, 13\ns_add_u32 s{T}, s{T}, {WS_ST}\ns_add_u32 s{T}, s{T}, s{sLB}\ns_lshl_b32 s{T+1}, s{sJ}, 10\ns_add_u32 s{T+1}, s{T+1}, s{T}")
    a(f"v_lshlrev_b32 v56, 4, v{vN}\nv_lshl_add_u32 v57, v{vC}, 10, v56")
    dpp_red8(a, [64, 65])
    a(f"v_cmp_eq_u32 vcc, 0, v{vC}\ns_and_saveexec_b64 s[{T+2}:{T+3}], vcc")
    rstore(a, f"buffer_store_dwordx4 v[64:67], v56, s[{S_WS}:{S_WS+3}], s{T+1} offen")
    a(f"s_mov_b64 exec, s[{T+2}:{T+3}]")
    stamp(a, "proj.st")
    a(f"v_add_u32 v59, {STG-V}, v{vTRF}")
    for c in range(4):
        for x in frag_reads(f"v{W1T+4*c}", 59, c*8192): a(x)
    unpack8(a, 80, vRES)
    a(f"v_bfe_u32 v58, v{vN}, 1, 1\nv_lshlrev_b32 v58, 2, v58\nv_xor_b32 v58, v58, v{vC}\nv_lshlrev_b32 v58, 4, v58\nv_lshl_add_u32 v58, v{vN}, 7, v58")
    LP = a.label(); LD = a.label()
    a(f"s_mov_b32 s{T+2}, {SPIN}")
    a(f"{LP}:")
    a(f"buffer_load_dwordx4 v[68:71], v57, s[{S_WS}:{S_WS+3}], s{T} offen sc1")
    a("s_waitcnt vmcnt(0)\nv_and_b32 v72, v70, v71\nv_cmp_ne_u32 vcc, 1, v72")
    a(f"s_cbranch_vccz {LD}")
    a(f"s_sub_u32 s{T+2}, s{T+2}, 1\ns_cmp_lg_u32 s{T+2}, 0\ns_cbranch_scc1 {LP}")
    a(f"{LD}:")
    stamp(a, "proj.stat")
    dpp_red8(a, [68, 69])
    a(f"v_mul_f32 v68, {f2u(1/512)}, v68\nv_mul_f32 v69, {f2u(1/512)}, v69")
    a("v_fma_f32 v69, -v68, v68, v69\nv_max_f32 v69, 0, v69")
    a(f"v_add_f32 v70, {f2u(1e-5)}, v69\nv_rsq_f32 v70, v70\ns_nop 0")
    a(f"v_mul_f32 v71, v70, v70\nv_mul_f32 v71, v71, v69\nv_add_f32 v71, {f2u(1e-5)}, v71\nv_rsq_f32 v71, v71\ns_nop 0")
    a("v_mul_f32 v70, v70, v71\nv_mul_f32 v71, v68, v70\nv_sub_f32 v71, 0, v71")
    for e in range(8): a(f"v_fma_f32 v{80+e}, v{80+e}, v70, v71")
    for e in range(4): a(f"v_cvt_pk_bf16_f32 v{72+e}, v{80+2*e}, v{81+2*e}")
    a(f"s_lshl_b32 s{T}, s{sJ}, 18\ns_lshl_b32 s{T+1}, s{sI}, 13\ns_add_u32 s{T}, s{T}, s{T+1}\ns_add_u32 s{T}, s{T}, {WS_H}\ns_add_u32 s{T}, s{T}, s{sLB}")
    a(f"buffer_store_dwordx4 v[72:75], v58, s[{S_WS}:{S_WS+3}], s{T} offen sc1")
    a("s_waitcnt lgkmcnt(0)")
    for f in range(n3[0], n3[0]+n3[1]): w2_dma(a, f)
    a(f"s_waitcnt vmcnt({n3[1]})\ns_barrier")
    stamp(a, "proj.end")
    if_wave_eq(a, 0, lambda: publish(a, "H", sJ))
    for f in range(n3[0]+n3[1], 12): w2_dma(a, f)

W1T = 128
VHI = 20

def mlp(a, kind):
    one = kind == "mlp1"
    S_ = 16 if one else 14
    D = C.D; R = D + 1
    assert R*16384 <= 65536
    EN, EC = (22, 23) if one else (vN, vC)
    EB, YA, YA2, RA_, WA_ = 24, 28, 29, 30, 32
    ADD, ACC, F = 40, 48, [80, 96]
    vm = VM()
    a(f"v_add_u32 v{VHI}, 65536, v{vTRF}")
    if one:
        a(f"v_lshrrev_b32 v{EC}, 5, v{vL}\ns_and_b32 s{T}, s{sW}, 6\nv_add_u32 v{EC}, s{T}, v{EC}")
        a(f"v_and_b32 v{EN}, 31, v{vL}\ns_and_b32 s{T}, s{sW}, 1\ns_lshl_b32 s{T}, s{T}, 5\nv_add_u32 v{EN}, s{T}, v{EN}")
        a(f"v_lshlrev_b32 v21, 4, v{EC}\ns_lshl_b32 s{T}, s{sI}, 7")
        a(f"buffer_load_dwordx4 v[{EB}:{EB+3}], v21, s[{S_B1}:{S_B1+3}], s{T} offen")
    else:
        a(f"v_lshlrev_b32 v21, 1, v{vN}\ns_lshl_b32 s{T}, s{sI}, 7")
        a(f"buffer_load_ushort v{EB}, v21, s[{S_B2}:{S_B2+3}], s{T} offen")
    src, dst, qb = T+2, T+3, T+4
    kq_bytes = (32 if one else 28)*2048
    base, per_j = (WS_H, 2048*128) if one else (WS_U, 112*2048)
    a(f"s_mul_i32 s{src}, s{sJ}, {per_j}\ns_lshr_b32 s{T}, s{sW}, 1\ns_mul_i32 s{T+1}, s{T}, {kq_bytes}\ns_add_u32 s{src}, s{src}, s{T+1}")
    a(f"s_and_b32 s{T+1}, s{sW}, 1\ns_lshl_b32 s{T+1}, s{T+1}, 11\ns_add_u32 s{src}, s{src}, s{T+1}\ns_add_u32 s{src}, s{src}, {base}\ns_add_u32 s{src}, s{src}, s{sLB}")
    a(f"s_lshl_b32 s{dst}, s{sW}, 11\ns_lshl_b32 s{T}, s{T}, 12")
    if one:
        tr_addr(a, YA, "0", False, TV, TV+1)
        a(f"v_add_u32 v{YA}, s{T}, v{YA}\nv_xor_b32 v{YA2}, 64, v{YA}")
        a(f"s_and_b32 s{qb}, s{sJ}, {C.jrot}\ns_lshl_b32 s{qb}, s{qb}, 13")
    else:
        a(f"v_add_u32 v{YA}, s{T}, v{vL16}")
        qkv_base8(a, qb)
    ep_write_addr(a, WA_, not one)
    ep_read_addr(a, RA_, EN, EC)
    if one: pend = list(range(12))
    else: pend = list(range(16, 28))
    if_wave_eq(a, 0, lambda: poll(a, "H" if one else "U", sJ, 32 if one else 28))
    a("s_barrier")
    stamp(a, kind + ".polled")
    def act(s):
        if one: a(f"s_add_u32 s{T}, s{qb}, {s*4096}\ns_and_b32 s{T}, s{T}, 0xffff\ns_add_u32 m0, s{dst}, {(s % R)*16384}\ns_add_u32 s{T}, s{T}, s{src}")
        else: a(f"s_add_u32 m0, s{dst}, {(s % R)*16384}\ns_add_u32 s{T}, s{src}, {s*4096}")
        a(f"buffer_load_dwordx4 v{vL16}, s[{S_WS}:{S_WS+3}], s{T} offen sc1 lds\nbuffer_load_dwordx4 v{vL16}, s[{S_WS}:{S_WS+3}], s{T} offen offset:1024 sc1 lds")
        vm.add(("act", s), 2)
    def reads(s):
        out = []; o = (s % R)*16384
        for t in range(2):
            for y in range(2):
                b = F[s & 1] + 8*t + 4*y
                if one:
                    out.append(f"ds_read_b64_tr_b16 v[{b}:{b+1}], v{YA+y} offset:{o + t*2048}")
                    out.append(f"ds_read_b64_tr_b16 v[{b+2}:{b+3}], v{YA+y} offset:{o + t*2048 + 512}")
                else:
                    out.append(f"ds_read_b128 v[{b}:{b+3}], v{YA} offset:{o + t*2048 + y*1024}")
        return out
    def mfmas(s):
        out = []
        for t in range(2):
            f = 2*s + t
            X = f"a[{4*f}:{4*f+3}]" if f < 28 else f"v[{W1T+4*(f-28)}:{W1T+4*(f-28)+3}]"
            for y in range(2):
                b = F[s & 1] + 8*t + 4*y
                Y = f"v[{b}:{b+3}]"
                A_, B_ = (X, Y) if one else (Y, X)
                c = "0" if f == 0 else f"v[{ACC+16*y}:{ACC+16*y+15}]"
                out.append(f"v_mfma_f32_32x32x16_bf16 v[{ACC+16*y}:{ACC+16*y+15}], {A_}, {B_}, {c}")
        return out
    for s in range(R): act(s)
    sch = [int(c) for c in (C.sch1 if one else C.sch2)]
    assert sum(sch) == (16 if one else 12)
    extra = list(range(sum(sch)))
    def point(p):
        for _ in range(sch[p]):
            k = extra.pop(0)
            if one:
                assert k < 12 or p >= 4
                w2_dma(a, 12 + k)
            else: qkv_piece8(a, qb, k)
            vm.add(("x", k))
    for s in range(S_):
        a(f"s_waitcnt vmcnt({vm.need(('act', s))}) lgkmcnt(0)\ns_barrier")
        if s == 0:
            stamp(a, kind + ".b0")
            for x in reads(0): a(x)
            unpack8(a, ADD, EB if one else vRES)
            if not one:
                a(f"v_lshlrev_b32 v{EB}, 16, v{EB}")
                for e in range(8): a(f"v_add_f32 v{ADD+e}, v{ADD+e}, v{EB}")
        else:
            interleave(a, mfmas(s-1), reads(s))
        if (one and s >= 2) or (not one and s >= 1):
            for _ in range(2 if one else 3):
                if pend:
                    for x in w2_reads(pend.pop(0), vTRF, VHI): a(x)
        if s >= 1 and s - 1 + R < S_: act(s - 1 + R)
        if not one and s - 1 + R == S_ - 1 and C.pret:
            a(f"buffer_load_dword v21, v{vXO}, s[{S_XD}:{S_XD+3}], s{sXO} offen sc1")
            a(f"s_lshl_b32 s{T}, s{sI}, 3\ns_add_u32 s{T}, s{T}, s{sJ}\ns_lshl_b32 s{T}, s{T}, 9\ns_add_u32 s{T}, s{T}, {WS_ST2}\nv_lshlrev_b32 v22, 3, v{vL}")
            a(f"buffer_load_dword v21, v22, s[{S_WS}:{S_WS+3}], s{T} offen sc1")
            vm.add("pre", 2)
    assert not pend
    point(0)
    a("s_waitcnt lgkmcnt(0)\ns_barrier")
    for x in mfmas(S_-1): a(x)
    stamp(a, kind + ".loop")
    point(1)
    a(f"s_nop {max(0, 10 - 3*sch[1])}")
    OUT = 80
    ep_reduce(a, ACC, WA_, RA_, not one, ADD, OUT, mid=lambda: point(2))
    if one:
        a(f"s_waitcnt vmcnt({vm.need(('x', 3))})")
        for f in range(12, 16):
            for x in w2_reads(f, vTRF, VHI): a(x)
    point(3)
    if one:
        c1 = -2*0.7978845608028654*1.4426950408889634; c2 = c1*0.044715
        G = OUT + 8
        a(f"s_mov_b32 s{T}, {f2u(c2)}\nv_mov_b32 v21, {f2u(c1)}")
        for e in range(8): a(f"v_mul_f32 v{G+e}, v{OUT+e}, v{OUT+e}")
        for e in range(8): a(f"v_fma_f32 v{G+e}, v{G+e}, s{T}, v21")
        for e in range(8): a(f"v_mul_f32 v{G+e}, v{G+e}, v{OUT+e}")
        for e in range(8): a(f"v_exp_f32 v{G+e}, v{G+e}")
        for e in range(8): a(f"v_add_f32 v{G+e}, 1.0, v{G+e}")
        for e in range(8): a(f"v_rcp_f32 v{G+e}, v{G+e}")
        for e in range(8): a(f"v_mul_f32 v{OUT+e}, v{OUT+e}, v{G+e}")
        for e in range(4): a(f"v_cvt_pk_bf16_f32 v{G+e}, v{OUT+2*e}, v{OUT+1+2*e}")
        a(f"s_mul_i32 s{T}, s{sJ}, {112*2048}\ns_lshl_b32 s{T+1}, s{sI}, 13\ns_add_u32 s{T}, s{T}, s{T+1}\ns_lshl_b32 s{T+1}, s{sW}, 10\ns_add_u32 s{T}, s{T}, s{T+1}")
        a(f"s_add_u32 s{T}, s{T}, {WS_U}\ns_add_u32 s{T}, s{T}, s{sLB}")
        a(f"buffer_store_dwordx4 v[{G}:{G+3}], v{vL16}, s[{S_WS}:{S_WS+3}], s{T} offen sc1")
        stamp(a, kind + ".st")
        a("s_waitcnt lgkmcnt(0)")
        point(4)
        a(f"s_waitcnt vmcnt({sch[4]})\ns_barrier")
        stamp(a, kind + ".end")
        if_wave_eq(a, 0, lambda: publish(a, "U", sJ))
        point(5)
    else:
        for e in range(4): a(f"v_cvt_pk_bf16_f32 v{vRES+e}, v{OUT+2*e}, v{OUT+1+2*e}")
        rstore(a, f"buffer_store_dwordx4 v[{vRES}:{vRES+3}], v{vXO}, s[{S_XD}:{S_XD+3}], s{sXO} offen", bulk=True)
        stamp(a, kind + ".st")
        a(f"s_cmp_lg_u32 s{sL}, 0\ns_cbranch_scc1 L_fin")
        a("v_mov_b32 v64, 0\nv_mov_b32 v65, 0\nv_mov_b32 v68, 0x3f803f80")
        for e in range(4): a(f"v_dot2c_f32_bf16 v64, v{vRES+e}, v68\nv_dot2c_f32_bf16 v65, v{vRES+e}, v{vRES+e}")
        a(f"s_lshl_b32 s{T}, s{sI}, 3\ns_add_u32 s{T}, s{T}, s{sJ}\ns_lshl_b32 s{T}, s{T}, 9\ns_add_u32 s{T}, s{T}, {WS_ST2}\nv_lshlrev_b32 v66, 3, v{vN}")
        dpp_red8(a, [64, 65])
        a(f"v_cmp_eq_u32 vcc, 0, v{vC}\ns_and_saveexec_b64 s[{T+6}:{T+7}], vcc")
        rstore(a, f"buffer_store_dwordx2 v[64:65], v66, s[{S_WS}:{S_WS+3}], s{T} offen", bulk=True)
        a(f"s_mov_b64 exec, s[{T+6}:{T+7}]")
        point(4)
        a(f"s_waitcnt vmcnt({sch[4]})\ns_barrier")
        stamp(a, kind + ".end")
        if_wave_eq(a, 0, lambda: publish(a, "X", sI))
        point(5)

def skip_mlp1(a):
    a(f"v_add_u32 v{VHI}, 65536, v{vTRF}\ns_waitcnt vmcnt(0)")
    for f in range(12):
        for x in w2_reads(f, vTRF, VHI): a(x)
    a("s_waitcnt lgkmcnt(0)")
    for f in range(12, 24): w2_dma(a, f)
    a("s_waitcnt vmcnt(8)")
    for f in range(12, 16):
        for x in w2_reads(f, vTRF, VHI): a(x)
    a("s_waitcnt lgkmcnt(0)")
    for f in range(24, 28): w2_dma(a, f)

def main(out):
    a = Asm()
    K = NAME + "_kernel"
    a.L.append(f".globl {K}\n.p2align 8\n.type {K},@function\n{K}:")
    prologue(a)
    init_sync(a)
    if C.qtouch:
        L1 = a.label(); L2 = a.label(); L3 = a.label()
        a(f"v_lshlrev_b32 v40, 7, v{vL}\nv_min_u32 v41, 47, v{vL}\ns_cmp_eq_u32 s{sW}, 0\ns_cbranch_scc1 {L1}\ns_cmp_eq_u32 s{sW}, 1\ns_cbranch_scc1 {L2}\ns_cmp_lg_u32 s{sW}, 2\ns_cbranch_scc1 {L3}")
        a(f"s_lshr_b32 s{T}, s2, 3\ns_mul_i32 s{T}, s{T}, {48*1024}\ns_add_u32 s{T}, s{T}, 384\nv_lshlrev_b32 v41, 10, v41")
        a(f"buffer_load_dword v143, v41, s[{S_QKV}:{S_QKV+3}], s{T} offen\ns_branch {L3}")
        a(f"{L1}:\ns_lshl_b32 s{T}, s{sI}, 3\ns_add_u32 s{T}, s{T}, s{sJ}\ns_lshl_b32 s{T}, s{T}, 13")
        a(f"buffer_load_dword v143, v40, s[{S_XS}:{S_XS+3}], s{T} offen\ns_branch {L3}")
        a(f"{L2}:\ns_mul_i32 s{T}, s2, {48*128}\nv_lshlrev_b32 v41, 7, v41")
        a(f"buffer_load_dword v143, v41, s[{S_QKV}:{S_QKV+3}], s{T} offen")
        a(f"{L3}:")
    prologue2(a)
    if C.qtouch: a("s_barrier")
    x_dma(a)
    L = a.label()
    a(f"s_cmp_ge_u32 s{sW}, 4\ns_cbranch_scc1 {L}")
    a(f"buffer_load_dwordx4 v[{vRES}:{vRES+3}], v{vXO}, s[{S_XS}:{S_XS+3}], s{sXO} offen")
    a("s_waitcnt vmcnt(9)")
    init_arrive(a)
    a("s_waitcnt vmcnt(2)")
    L4 = a.label()
    a(f"s_cmp_eq_u32 s{sW}, 3\ns_cbranch_scc1 {L4}\ns_waitcnt vmcnt(1)\n{L4}:\ns_barrier")
    stamp(a, "p1.xarr")
    a("s_branch L_p1_cons")
    a(f"{L}:")
    helper_setup(a)
    vm = VM()
    for u in range(C.h0first): helper_unit(a, u, vm)
    a(f"buffer_load_dwordx4 v[{vRES}:{vRES+3}], v{vXO}, s[{S_XS}:{S_XS+3}], s{sXO} offen"); vm.add("res")
    a(f"v_and_b32 v41, 3, v{vL}\nv_bfe_u32 v46, v{vL}, 3, 1\nv_lshl_add_u32 v41, v46, 2, v41\nv_lshlrev_b32 v41, 4, v41\nv_lshl_add_u32 v41, v40, 7, v41\nv_xor_b32 v47, 64, v41")
    a(f"s_waitcnt vmcnt({2*C.h0first+1})\ns_barrier")
    for q in range(8): a(f"ds_read_b128 v[{48+8*q}:{51+8*q}], v41 offset:{q*8192}\nds_read_b128 v[{52+8*q}:{55+8*q}], v47 offset:{q*8192}")
    n2 = C.h0second
    for u in range(C.h0first, C.h0first+n2): helper_unit(a, u, vm)
    a("v_mov_b32 v42, 0\nv_mov_b32 v43, 0\nv_mov_b32 v44, 0\nv_mov_b32 v45, 0\nv_mov_b32 v46, 0x3f803f80")
    for q in range(8):
        a(f"s_waitcnt lgkmcnt({14-2*q})")
        for e in range(0, 8, 2):
            r = 48+8*q+e
            a(f"v_dot2c_f32_bf16 v42, v{r}, v46\nv_dot2c_f32_bf16 v44, v{r}, v{r}\nv_dot2c_f32_bf16 v43, v{r+1}, v46\nv_dot2c_f32_bf16 v45, v{r+1}, v{r+1}")
    a("s_nop 2\nv_add_f32 v42, v42, v43\nv_add_f32 v44, v44, v45")
    helper_loop(a, 0, vm, C.h0first+n2, [int(c) for c in C.hs0], "L_p1_join")
    a("L_layer:")
    phase1(a)
    phase2(a)
    phase3(a)
    LS = a.label(); LM = a.label()
    a(f"s_cmp_ge_u32 s{sI}, 28\ns_cbranch_scc1 {LS}")
    mlp(a, "mlp1")
    a(f"s_branch {LM}\n{LS}:")
    skip_mlp1(a)
    a(f"{LM}:")
    mlp(a, "mlp2")
    if_wave_eq(a, 0, lambda: poll(a, "X", sI, 8))
    a(f"s_mov_b32 s{S_XS}, s{S_XD}\ns_mov_b32 s{S_XS+1}, s{S_XD+1}\ns_mov_b32 s{S_XD}, s{sOUT}\ns_mov_b32 s{S_XD+1}, s{sOUT+1}")
    a(f"s_mov_b32 s{sL}, 1\ns_mov_b32 s{sLB}, {LSTRIDE}\ns_mov_b32 s{sFL}, {WS_FLAG + 256*128}")
    if C.stamp: a("v_mov_b32 v7, v6")
    a("s_barrier")
    stamp(a, "p1.polled")
    x_dma(a)
    a("s_branch L_layer")
    a("L_fin:")
    if C.stamp:
        a("s_waitcnt vmcnt(0)")
        stamp(a, "fin")
        a(f"s_lshl_b32 s{T}, s2, 3\ns_add_u32 s{T}, s{T}, s{sW}\ns_lshl_b32 s{T}, s{T}, 9\ns_add_u32 s{T}, s{T}, {WS_STAMP}\nv_lshlrev_b32 v16, 2, v{vL}")
        a(f"buffer_store_dword v7, v16, s[{S_WS}:{S_WS+3}], s{T} offen\nbuffer_store_dword v6, v16, s[{S_WS}:{S_WS+3}], s{T} offen offset:256")
    a("L_end:\ns_endpgm")
    s = HDR + "; @launch grid=(256,1,1) block=(512,1,1) lds=163840\n"
    s += '.amdgcn_target "amdgcn-amd-amdhsa--gfx950"\n.text\n' + a.text()
    s += f""".section .rodata,"a"
.p2align 6
.amdhsa_kernel {K}
  .amdhsa_next_free_vgpr 256
  .amdhsa_next_free_sgpr 102
  .amdhsa_accum_offset {NARCH}
  .amdhsa_group_segment_fixed_size 0
  .amdhsa_kernarg_size 88
  .amdhsa_user_sgpr_count 2
  .amdhsa_user_sgpr_kernarg_segment_ptr 1
  .amdhsa_system_sgpr_workgroup_id_x 1
.end_amdhsa_kernel
"""
    open(out, "w").write(s)
    if C.stamp: open(out + ".stamps", "w").write("\n".join(STAMPS))

if __name__ == "__main__":
    for arg in sys.argv[2:]:
        k, v = arg.split("="); setattr(C, k, v if isinstance(getattr(C, k), str) else type(getattr(C, k))(int(v)))
    main(sys.argv[1])
```

```python
import sys, struct
NAME = "interleave_layers__softmax_full_mha__mixer_token_mlp__prompt"
HDR = open("cdna_kernels/%s.s.ref" % NAME).read().split("; Override launch")[0]
MB = 1 << 20
WS_KV, WS_O, WS_H, WS_U, WS_X2, WS_ST = 0*MB, 4*MB, 6*MB, 8*MB, 10*MB, 12*MB
LSTRIDE = 16*MB
WS_FLAG = 32*MB
WS_XT = WS_FLAG + 65536
WS_STAMP = 40*MB
KA = dict(x=0, wqkv=8, wo=16, w1=32, b1=40, w2=48, b2=56, out=64, dbg=72, ws=80)
SZ = dict(x=2048*512*2, wqkv=512*1536*2, wo=512*512*2, w1=2048*1792*2, b1=1792*2, w2=1792*2048*2, b2=2048*2,
          out=2048*512*2, dbg=256, ws=1 << 28)
FL = dict(KV=0, H=64, U=128, O=192, X=224)
COLK = ('KV', 'H', 'U')
SPIN = 200000
NARCH = 144

class Cfg:
    stamp = False
    prio = True
    lowtiles = 1
    D = 3
    nB = 12
    sch1 = '033343'
    sch2 = '033033'
    sch3 = '444'
    stouch = 1
    p1touch = 0
    now1 = 0
    local = 1
    cpf = 0
    span = 28672
    ldata = 0
    pret = 0
    hs1 = '022111122000'
    hs0 = '222222222000'
    h0first = 3
    h0second = 3
    w1t = 9
    p1per = 4
    qtouch = 1
    pper = 16
    plow = 3
    split = 1
    kvfix = 0
    xsel = 'wot'
    nofirst = 0
    tlb = 0
    lowhalf = 3
    jrot = 6
    nox = 0
    notr = 0
    loop = 0
    pad = 0
    align = 3
    nQ = 12
C = Cfg()

class Asm:
    def __init__(self): self.L = []; self.n = 0
    def __call__(self, s):
        for line in s.split("\n"):
            line = line.strip()
            if line: self.L.append(("" if line.endswith(":") else "    ") + line)
    def label(self, p="L"):
        self.n += 1; return f"{p}{self.n}"
    def text(self): return "\n".join(self.L) + "\n"

def f2u(x): return hex(struct.unpack("<I", struct.pack("<f", x))[0])

S_XS, S_QKV, S_WS, S_WO, S_W1, S_W2, S_B1, S_B2, S_XD, S_DBG, S_KV = 8, 12, 16, 20, 24, 28, 32, 36, 40, 44, 80
sI, sJ, sW, sL, sLB, sFL = 48, 49, 50, 51, 52, 53
sW2S = 54
sVW = 55
sLOC = 56
sXO = 57
sOUT = 58
T = 60
sST = 76
sRET = 84
vL, vN, vC, vL16, vXO = 1, 2, 3, 4, 5
vRES = 8
vF2, vTRF, vWQ = 12, 13, 14
TV = 16
E, V = 0, 65536
QX = V + 7*8192
STG = V + 65536

STAMPS = []
def stamp(a, name):
    if not C.stamp: return
    k = len(STAMPS); assert k < 32
    a(f"s_memtime s[{sST}:{sST+1}]\ns_memrealtime s[{sST+2}:{sST+3}]\ns_waitcnt lgkmcnt(0)")
    a(f"v_writelane_b32 v6, s{sST}, {k}\nv_writelane_b32 v6, s{sST+2}, {k+32}")
    STAMPS.append(name)

def dpp_red8(a, regs):
    for pat in ("quad_perm:[1,0,3,2]", "quad_perm:[2,3,0,1]", "row_half_mirror"):
        a("s_nop 1")
        for r in regs: a(f"v_add_f32_dpp v{r}, v{r}, v{r} {pat} row_mask:0xf bank_mask:0xf")

def tr_addr(a, vd, xh, perm, t0, t1):
    a(f"v_lshrrev_b32 v{t0}, 5, v{vL}\nv_lshlrev_b32 v{t0}, {2 if perm else 3}, v{t0}")
    a(f"v_bfe_u32 v{t1}, v{vL}, 2, 2\nv_add_u32 v{t0}, v{t0}, v{t1}\nv_lshlrev_b32 v{vd}, 7, v{t0}")
    a(f"v_lshrrev_b32 v{t1}, 1, v{t1}\nv_xor_b32 v{t1}, {xh}, v{t1}\nv_lshl_add_u32 v{vd}, v{t1}, 6, v{vd}")
    a(f"v_bfe_u32 v{t1}, v{vL}, 4, 1\nv_lshl_add_u32 v{vd}, v{t1}, 5, v{vd}")
    a(f"v_and_b32 v{t1}, 3, v{vL}\nv_lshl_add_u32 v{vd}, v{t1}, 3, v{vd}")

def interleave(a, m, r):
    per = -(-len(r)//len(m))
    for x in range(len(m)):
        a(m[x])
        for y in r[x*per:(x+1)*per]: a(y)

def rstore(a, instr, bulk=False):
    if not C.local or (bulk and not C.ldata):
        a(instr + " sc1"); return
    L = a.label(); L2 = a.label()
    a(f"s_cmp_eq_u32 s{sLOC}, 1\ns_cbranch_scc1 {L}\n{instr} sc1\ns_branch {L2}\n{L}:\n{instr}\n{L2}:")

def publish(a, kind, group_s):
    if kind not in COLK:
        a(f"s_lshl_b32 s{T}, s{group_s}, 7\ns_add_u32 s{T}, s{T}, {FL[kind]*128}\ns_add_u32 s{T}, s{T}, s{sFL}\ns_lshl_b32 s{T+1}, s{sJ}, 4\ns_add_u32 s{T}, s{T}, s{T+1}")
        a(f"v_mov_b32 v{TV}, 1\ns_mov_b64 exec, 1")
        rstore(a, f"buffer_store_dword v{TV}, v{vL16}, s[{S_WS}:{S_WS+3}], s{T} offen")
        a("s_mov_b64 exec, -1")
        return
    col = kind in COLK
    a(f"s_lshl_b32 s{T}, s{group_s}, {10 if col else 7}\ns_add_u32 s{T}, s{T}, {FL[kind]*128}\ns_add_u32 s{T}, s{T}, s{sFL}")
    a(f"v_mov_b32 v{TV}, 1\nv_lshlrev_b32 v{TV+1}, 7, v{vL}\ns_mov_b64 exec, {0xff if col else 1}")
    a(f"buffer_atomic_add v{TV}, v{TV+1}, s[{S_WS}:{S_WS+3}], s{T} offen sc1")
    a("s_mov_b64 exec, -1")

def poll(a, kind, group_s, n):
    col = kind in COLK
    a(f"s_lshl_b32 s{T}, s{group_s}, {10 if col else 7}\ns_add_u32 s{T}, s{T}, {FL[kind]*128}\ns_add_u32 s{T}, s{T}, s{sFL}")
    if col: a(f"s_lshr_b32 s{T+1}, s{sI}, 2\ns_lshl_b32 s{T+1}, s{T+1}, 7\ns_add_u32 s{T}, s{T}, s{T+1}")
    a(f"s_mov_b64 exec, {1 if col else 0xff}\ns_mov_b32 s{T+1}, {SPIN}")
    LP = a.label(); LD = a.label()
    a(f"{LP}:")
    a(f"buffer_load_dword v{TV}, v{vL16}, s[{S_WS}:{S_WS+3}], s{T} offen sc1")
    a(f"s_waitcnt vmcnt(0)\nv_cmp_ne_u32 vcc, {n if col else 1}, v{TV}")
    a(f"s_cbranch_vccz {LD}")
    a(f"s_sub_u32 s{T+1}, s{T+1}, 1\ns_cmp_lg_u32 s{T+1}, 0\ns_cbranch_scc1 {LP}")
    a(f"{LD}:\ns_mov_b64 exec, -1")

def if_wave_eq(a, w, body):
    L = a.label()
    a(f"s_cmp_lg_u32 s{sW}, {w}\ns_cbranch_scc1 {L}")
    body()
    a(f"{L}:")

def qkv_src(u): return (u >> 1)*64*3072 + (1 + (u & 1))*1024 if u < 16 else (u-16)*64*3072

def qkv_base8(a, s):
    a(f"s_mul_i32 s{s}, s{sW}, {8*3072}\ns_lshl_b32 s{T}, s{sJ}, 7\ns_add_u32 s{s}, s{s}, s{T}")

def qkv_piece8(a, s, u):
    a(f"s_add_u32 m0, s{sVW}, {(u % 12)*8192}\ns_add_u32 s{T}, s{s}, {qkv_src(u)}")
    a(f"buffer_load_dwordx4 v{vWQ}, s[{S_QKV}:{S_QKV+3}], s{T} offen lds")

def w2_dma(a, f):
    a(f"s_add_u32 m0, s{sVW}, {(f % 12)*8192}\ns_add_u32 s{T}, s{sW2S}, {f*16*4096}")
    a(f"buffer_load_dwordx4 v{vF2}, s[{S_W2}:{S_W2+3}], s{T} offen lds")

def frag_reads(dst, vaddr, off):
    p, n = dst[0], int(dst[1:])
    return [f"ds_read_b64_tr_b16 {p}[{n}:{n+1}], v{vaddr} offset:{off}", f"ds_read_b64_tr_b16 {p}[{n+2}:{n+3}], v{vaddr} offset:{off+256}"]

def w2_reads(f, vlo, vhi):
    s = f % 12
    return frag_reads(f"a{4*f}", vlo if s < 8 else vhi, (s % 8)*8192)

def prologue(a):
    a(f"s_cmp_ge_u32 s2, 256\ns_cbranch_scc1 L_end")
    for s, n in ((S_XS, "x"), (S_QKV, "wqkv"), (S_WS, "ws"), (S_WO, "wo"), (S_W1, "w1"), (S_W2, "w2"), (S_B1, "b1"), (S_B2, "b2"), (S_DBG, "dbg")):
        a(f"s_load_dwordx2 s[{s}:{s+1}], s[0:1], {KA[n]}")
        a(f"s_mov_b32 s{s+2}, {hex(SZ[n])}\ns_mov_b32 s{s+3}, 0x00020000")
    a(f"s_load_dwordx2 s[{sOUT}:{sOUT+1}], s[0:1], {KA['out']}")
    a(f"s_mov_b32 s{S_XD+2}, {hex(SZ['x'])}\ns_mov_b32 s{S_XD+3}, 0x00020000")
    a(f"s_and_b32 s{sI}, s2, 7\ns_lshl_b32 s{sI}, s{sI}, 2\ns_bfe_u32 s{T}, s2, 0x20003\ns_or_b32 s{sI}, s{sI}, s{T}\ns_lshr_b32 s{sJ}, s2, 5")
    a(f"v_lshrrev_b32 v{vL}, 6, v0\ns_nop 0\nv_readfirstlane_b32 s{sW}, v{vL}\nv_and_b32 v{vL}, 63, v0")
    a(f"v_lshrrev_b32 v{vN}, 3, v0\nv_and_b32 v{vC}, 7, v0\nv_lshlrev_b32 v{vL16}, 4, v{vL}")
    a(f"v_lshlrev_b32 v{vXO}, 10, v{vN}\nv_lshl_add_u32 v{vXO}, v{vC}, 4, v{vXO}")
    a(f"s_lshl_b32 s{sXO}, s{sI}, 16\ns_lshl_b32 s{T}, s{sJ}, 7\ns_add_u32 s{sXO}, s{sXO}, s{T}")
    a(f"s_mov_b32 s{sL}, 0\ns_mov_b32 s{sLB}, 0\ns_mov_b32 s{sFL}, {WS_FLAG}")
    if C.stamp: a("v_mov_b32 v6, 0\nv_mov_b32 v7, 0")
    a(f"v_lshrrev_b32 v40, 3, v{vL}\nv_bfe_u32 v41, v{vL}, 4, 1\nv_lshlrev_b32 v41, 2, v41\nv_and_b32 v42, 7, v{vL}\nv_xor_b32 v41, v41, v42\nv_lshlrev_b32 v41, 4, v41")
    a(f"v_mul_u32_u24 v{vWQ}, 3072, v40\nv_add_u32 v{vWQ}, v{vWQ}, v41")
    a(f"s_lshl_b32 s{sVW}, s{sW}, 10\ns_add_u32 s{sVW}, s{sVW}, {V}")
    a(f"v_bfe_u32 v41, v{vN}, 1, 3\nv_xor_b32 v41, v41, v{vC}\nv_lshlrev_b32 v41, 4, v41\nv_lshl_add_u32 v{vXD}, v{vN}, 10, v41")
    a("s_waitcnt lgkmcnt(0)")
    stamp(a, "start")
    a(f"s_add_u32 s{S_XD}, s{S_WS}, {WS_X2}\ns_addc_u32 s{S_XD+1}, s{S_WS+1}, 0")

def prologue2(a):
    a(f"v_lshrrev_b32 v42, 2, v{vL}\nv_and_b32 v43, 3, v{vL}\nv_lshlrev_b32 v43, 4, v43")
    a(f"v_lshl_add_u32 v{vF2}, v42, 12, v43")
    a(f"v_lshrrev_b32 v42, 5, v{vL}\nv_lshlrev_b32 v42, 3, v42\nv_bfe_u32 v43, v{vL}, 2, 2\nv_add_u32 v42, v42, v43\nv_lshlrev_b32 v{vTRF}, 6, v42")
    a(f"v_bfe_u32 v43, v{vL}, 4, 1\nv_lshl_add_u32 v{vTRF}, v43, 5, v{vTRF}\nv_and_b32 v43, 3, v{vL}\nv_lshl_add_u32 v{vTRF}, v43, 3, v{vTRF}")
    a(f"v_add_u32 v{vTRF}, s{sVW}, v{vTRF}")
    a(f"s_lshr_b32 s{sW2S}, s{sW}, 1\ns_mul_i32 s{sW2S}, s{sW2S}, {448*4096}\ns_lshl_b32 s{T}, s{sI}, 7\ns_add_u32 s{sW2S}, s{sW2S}, s{T}")
    a(f"s_and_b32 s{T}, s{sW}, 1\ns_lshl_b32 s{T}, s{T}, 6\ns_add_u32 s{sW2S}, s{sW2S}, s{T}")

def tlb_touch(a):
    if not C.tlb: return
    a(f"s_sub_u32 s{T+4}, s{sW}, 4\ns_lshl_b32 s{T}, s{T+4}, 21")
    for k in range(4): a(f"s_add_u32 s{T+1}, s{T}, {(k & 1)*8*MB + (k >> 1)*LSTRIDE}\ns_buffer_load_dword s86, s[{S_WS}:{S_WS+3}], s{T+1}")
    for srd in (S_W1, S_W2): a(f"s_buffer_load_dword s86, s[{srd}:{srd+3}], s{T}")
    a(f"s_lshl_b32 s{T}, s{T+4}, 19\ns_load_dword s86, s[{sOUT}:{sOUT+1}], s{T}")
    a(f"s_buffer_load_dword s86, s[{S_WO}:{S_WO+3}], 0\ns_buffer_load_dword s86, s[{S_B1}:{S_B1+3}], 0\ns_buffer_load_dword s86, s[{S_B2}:{S_B2+3}], 0")

def init_sync(a):
    def body():
        a("v_mov_b32 v44, 0\nv_mov_b32 v45, 0\nv_mov_b32 v46, 0\nv_mov_b32 v47, 0")
        a(f"s_lshl_b32 s{T}, s2, 10\ns_add_u32 s{T}, s{T}, {WS_ST}\ns_add_u32 s{T+1}, s{T}, {LSTRIDE}")
        a(f"buffer_store_dwordx4 v[44:47], v{vL16}, s[{S_WS}:{S_WS+3}], s{T} offen sc1")
        a(f"buffer_store_dwordx4 v[44:47], v{vL16}, s[{S_WS}:{S_WS+3}], s{T+1} offen sc1")
        a(f"s_lshl_b32 s{T}, s2, 8\ns_add_u32 s{T}, s{T}, {WS_FLAG}\ns_mov_b64 exec, 0xffff")
        a(f"buffer_store_dwordx4 v[44:47], v{vL16}, s[{S_WS}:{S_WS+3}], s{T} offen sc1")
        a(f"s_getreg_b32 s{T+1}, hwreg(HW_REG_XCC_ID, 0, 4)\ns_mov_b64 exec, 1\nv_mov_b32 v48, s{T+1}")
        a(f"s_lshl_b32 s{T}, s{sI}, 3\ns_add_u32 s{T}, s{T}, s{sJ}\ns_lshl_b32 s{T}, s{T}, 4\ns_add_u32 s{T}, s{T}, {WS_XT}")
        a(f"buffer_store_dword v48, v{vL16}, s[{S_WS}:{S_WS+3}], s{T} offen sc1")
        a("s_mov_b64 exec, -1")
    if_wave_eq(a, 3, body)

def init_arrive(a):
    L = a.label()
    a(f"s_cmp_lg_u32 s{sW}, 3\ns_cbranch_scc1 {L}")
    a(f"v_mov_b32 v{TV}, 1\nv_mov_b32 v{TV+1}, 0\ns_and_b32 s{T}, s2, 63\ns_lshl_b32 s{T}, s{T}, 2\ns_mov_b64 exec, 1")
    a(f"buffer_atomic_add v{TV}, v{TV+1}, s[{S_DBG}:{S_DBG+3}], s{T} offen sc1")
    a(f"s_mov_b64 exec, -1\n{L}:")

def wait_init(a, vaddr):
    a(f"s_mov_b32 s{T+1}, {SPIN}")
    LP = a.label(); LD = a.label()
    a(f"{LP}:\nv_cmp_gt_u32 vcc, 4, v{TV+2}\ns_cbranch_vccz {LD}")
    a(f"buffer_load_dword v{TV+2}, v{vaddr}, s[{S_DBG}:{S_DBG+3}], 0 offen sc1\ns_waitcnt vmcnt(0)")
    a(f"s_sub_u32 s{T+1}, s{T+1}, 1\ns_cmp_lg_u32 s{T+1}, 0\ns_cbranch_scc1 {LP}")
    a(f"{LD}:\ns_mov_b64 exec, -1")

class VM:
    def __init__(self): self.ops = []
    def add(self, tag, n=1): self.ops += [tag]*n
    def need(self, *tags):
        last = max(k for k, t in enumerate(self.ops) if t in tags)
        return min(63, len(self.ops) - 1 - last)

vXD = 15
TAB = V
WS_ST2 = 12*MB + 512*1024
WS_CS = 13*MB

def x_dma(a):
    a(f"s_lshl_b32 s{T}, s{sI}, 16\ns_lshl_b32 s{T+1}, s{sW}, 10")
    for q in range(8):
        a(f"s_add_u32 m0, s{T+1}, {E + q*8192 - q*128}\ns_nop 0" if q else f"s_mov_b32 m0, s{T+1}\ns_nop 0")
        a(f"buffer_load_dwordx4 v{vXD}, s[{S_XS}:{S_XS+3}], s{T} offen offset:{128*q} sc1 lds")

def split_hi_lo(a, src, hi2, lo2, t, neg=False):
    if neg: a(f"v_sub_f32 v{src}, 0, v{src}")
    a(f"v_cvt_pk_bf16_f32 v{t}, v{src}, v{src}\nv_and_b32 v{t}, 0xffff0000, v{t}\nv_sub_f32 v{t+1}, v{src}, v{t}")

def helper_setup(a):
    src, dst = T+2, T+3
    a(f"s_sub_u32 s{dst}, s{sW}, 4\ns_mul_i32 s{src}, s{dst}, {16*3072}\ns_lshl_b32 s{T}, s{sJ}, 7\ns_add_u32 s{src}, s{src}, s{T}")
    a(f"s_lshl_b32 s{T}, s{dst}, 4\nv_lshrrev_b32 v40, 2, v{vL}\nv_add_u32 v40, s{T}, v40")
    a(f"s_lshl_b32 s{dst}, s{dst}, 11\ns_add_u32 s{dst}, s{dst}, {V}")

def helper_unit(a, u, vm):
    for p in range(2):
        a(f"s_add_u32 m0, s{T+3}, {(u % 12)*8192 + p*1024}\ns_add_u32 s{T}, s{T+2}, {qkv_src(u) + p*8*3072}")
        a(f"buffer_load_dwordx4 v{vWQ}, s[{S_QKV}:{S_QKV+3}], s{T} offen lds")
    vm.add(("w", u), 2)

def helper_loop(a, layer, vm, issued, sched, LJ):
    ROW, S1, S2, G = 40, 42, 44, 48
    first = issued
    for s in range(12):
        tags = [t for t in [("x", s), ("w", 2*s+1)] if t in vm.ops]
        if s == 6 and layer == 1: tags.append("g")
        if tags: a(f"s_waitcnt vmcnt({vm.need(*tags)})")
        if s == 8: a("s_waitcnt lgkmcnt(0)")
        a("s_barrier")
        if s == 7: a(f"ds_write_b32 v{ROW}, v{S1}\nds_write_b32 v{ROW}, v{S2} offset:256")
        for _ in range(sched[s]):
            assert issued < 2*s + 12 and issued < 24
            helper_unit(a, issued, vm); issued += 1
        assert s == 11 or issued >= 2*s + 4
        if s == 6:
            if layer == 1: a(f"v_add_f32 v{S1}, v{G}, v{G+2}\nv_add_f32 v{S2}, v{G+1}, v{G+3}")
            for pat in ("quad_perm:[1,0,3,2]", "quad_perm:[2,3,0,1]"):
                a("s_nop 1")
                for r in (S1, S2): a(f"v_add_f32_dpp v{r}, v{r}, v{r} {pat} row_mask:0xf bank_mask:0xf")
            a(f"v_mul_f32 v{S1}, {f2u(1/512)}, v{S1}\nv_mul_f32 v{S2}, {f2u(1/512)}, v{S2}")
            a(f"v_fma_f32 v{S2}, -v{S1}, v{S1}, v{S2}\nv_max_f32 v{S2}, 0, v{S2}\nv_add_f32 v{S2}, {f2u(1e-5)}, v{S2}\nv_rsq_f32 v{S2}, v{S2}")
            a(f"v_lshlrev_b32 v{ROW}, 2, v{ROW}\nv_add_u32 v{ROW}, {TAB}, v{ROW}")
        if s == 8 and layer == 0:
            a(f"v_lshlrev_b32 v46, 2, v{vL}\nbuffer_load_dword v{TV+2}, v46, s[{S_DBG}:{S_DBG+3}], 0 offen sc1"); vm.add("dbg")
        if s == C.w1t and layer == 0:
            a(f"s_lshl_b32 s{T}, s2, 2\ns_add_u32 s{T}, s{T}, s{sW}\ns_sub_u32 s{T}, s{T}, 4\ns_mul_i32 s{T+1}, s{T}, {56*128}\nv_min_u32 v47, 55, v{vL}\nv_lshlrev_b32 v47, 7, v47")
            a(f"buffer_load_dword v52, v47, s[{S_W1}:{S_W1+3}], s{T+1} offen")
            a(f"s_lshl_b32 s{T+1}, s{T}, 9\nv_and_b32 v47, 0x180, v47\nbuffer_load_dword v53, v47, s[{S_WO}:{S_WO+3}], s{T+1} offen")
            vm.add("t", 2)
    assert issued == 24
    def w4():
        if layer == 0:
            a(f"s_waitcnt vmcnt({vm.need('dbg')})")
            wait_init(a, 46)
        publish(a, "KV", sJ)
    if_wave_eq(a, 4, w4)
    a("s_barrier")
    if_wave_eq(a, 4, lambda: poll(a, "KV", sJ, 32))
    a(f"s_waitcnt vmcnt(0)\ns_branch {LJ}")

def phase1(a):
    LC = "L_p1_cons"; LJ = "L_p1_join"
    a(f"s_cmp_lt_u32 s{sW}, 4\ns_cbranch_scc1 {LC}")
    helper_setup(a)
    a(f"v_and_b32 v41, 3, v{vL}\nv_lshlrev_b32 v41, 9, v41\nv_lshl_add_u32 v41, v40, 3, v41\ns_lshl_b32 s{T}, s{sI}, 12\ns_add_u32 s{T}, s{T}, {WS_ST2}")
    a(f"buffer_load_dwordx2 v[48:49], v41, s[{S_WS}:{S_WS+3}], s{T} offen sc1\nbuffer_load_dwordx2 v[50:51], v41, s[{S_WS}:{S_WS+3}], s{T} offen offset:2048 sc1")
    vm = VM()
    for q in range(8): vm.add(("x", q))
    vm.add("g", 2)
    helper_loop(a, 1, vm, 12, [int(c) for c in C.hs1], LJ)
    a(f"{LC}:")
    tt, ch = T+2, T+3
    a(f"s_and_b32 s{tt}, s{sW}, 1\ns_lshr_b32 s{ch}, s{sW}, 1")
    XA = 40
    a(f"v_and_b32 v44, 31, v{vL}\ns_lshl_b32 s{T}, s{tt}, 5\nv_add_u32 v44, s{T}, v44\nv_lshlrev_b32 v38, 2, v44\nv_add_u32 v38, {TAB}, v38")
    a(f"v_bfe_u32 v45, v{vL}, 1, 3\nv_lshrrev_b32 v46, 5, v{vL}\nv_xor_b32 v45, v45, v46\nv_lshlrev_b32 v45, 4, v45\nv_lshl_add_u32 v{XA}, v44, 7, v45")
    for m in range(1, 4): a(f"v_xor_b32 v{XA+m}, {32*m}, v{XA}")
    a(f"s_lshl_b32 s{T}, s{tt}, 7\ns_add_u32 s{T}, s{T}, {TAB+256}\nv_lshlrev_b32 v37, 4, v46\nv_add_u32 v37, s{T}, v37")
    WL, WH = 44, 45
    tr_addr(a, WL, f"s{ch}", False, 46, 47)
    a(f"v_add_u32 v{WL}, {V}, v{WL}\nv_add_u32 v{WH}, {6*8192}, v{WL}")
    AK, AV, AQ = 48, 64, 80
    CS, SEL = 20, 32
    a(f"v_and_b32 v46, 31, v{vL}\nv_cmp_eq_u32 vcc, 0, v46\nv_cmp_eq_u32 s[{T+4}:{T+5}], 20, v46\ns_or_b64 vcc, vcc, s[{T+4}:{T+5}]\nv_mov_b32 v47, 0x3f803f80\ns_nop 1\nv_cndmask_b32 v{SEL}, 0, v47, vcc")
    for r in range(1, 4): a(f"v_mov_b32 v{SEL+r}, v{SEL}")
    csoff = T+8
    a(f"s_lshl_b32 s{csoff}, s2, 2\ns_add_u32 s{csoff}, s{csoff}, s{sW}\ns_lshl_b32 s{csoff}, s{csoff}, 10\ns_add_u32 s{csoff}, s{csoff}, {WS_CS}")
    for r in range(12): a(f"v_mov_b32 v{CS+r}, 0")
    def fr(buf, n):
        if buf == 0: return ("a", n)
        return ("a", 64+n) if n < 48 else ("v", 96 + n - 48)
    def R(buf, n, w):
        p, b = fr(buf, n); return f"{p}[{b}:{b+w-1}]"
    def wslot(u):
        s = u % 12
        return (WL, s*8192) if s < 6 else (WH, (s-6)*8192)
    def rd(s):
        buf = s & 1; out = []
        if s < 8:
            for t in range(4):
                out.append(f"ds_read_b128 {R(buf, 12*t, 4)}, v{XA+t} offset:{8192*s}")
                for seg in range(2):
                    va, off = wslot(2*s+seg)
                    for e in range(2):
                        out.append(f"ds_read_b64_tr_b16 {R(buf, 12*t+4+4*seg+2*e, 2)}, v{va} offset:{off + t*2048 + e*512}")
        else:
            for t in range(8):
                out.append(f"ds_read_b128 {R(buf, 8*t, 4)}, v{XA+(t&3)} offset:{16384*(s-8) + (t>>2)*8192}")
                va, off = wslot(2*s + (t >> 2))
                for e in range(2):
                    out.append(f"ds_read_b64_tr_b16 {R(buf, 8*t+4+2*e, 2)}, v{va} offset:{off + (t&3)*2048 + e*512}")
        return out
    def mf(s):
        buf = s & 1; out = []
        if s < 8:
            for t in range(4):
                z = s == 0 and t == 0
                out.append(f"v_mfma_f32_32x32x16_bf16 v[{AK}:{AK+15}], {R(buf, 12*t+4, 4)}, {R(buf, 12*t, 4)}, " + ("0" if z else f"v[{AK}:{AK+15}]"))
                out.append(f"v_mfma_f32_32x32x16_bf16 v[{AV}:{AV+15}], {R(buf, 12*t, 4)}, {R(buf, 12*t+8, 4)}, " + ("0" if z else f"v[{AV}:{AV+15}]"))
        else:
            for t in range(8):
                out.append(f"v_mfma_f32_32x32x16_bf16 v[{AQ}:{AQ+15}], {R(buf, 8*t+4, 4)}, {R(buf, 8*t, 4)}, " + ("0" if s == 8 and t == 0 else f"v[{AQ}:{AQ+15}]"))
        return out
    def csum(s):
        buf = s & 1
        L = a.label()
        a(f"s_cmp_lg_u32 s{sL}, 0\ns_cbranch_scc1 {L}")
        if s < 8:
            for t in range(4):
                for seg in range(2):
                    a(f"v_mfma_f32_16x16x32_bf16 v[{CS+4*seg}:{CS+4*seg+3}], v[{SEL}:{SEL+3}], {R(buf, 12*t+4+4*seg, 4)}, v[{CS+4*seg}:{CS+4*seg+3}]")
        else:
            for t in range(8):
                a(f"v_mfma_f32_16x16x32_bf16 v[{CS+8}:{CS+11}], v[{SEL}:{SEL+3}], {R(buf, 8*t+4, 4)}, v[{CS+8}:{CS+11}]")
        a(f"{L}:")
    def inter(m, r, per):
        per = max(per, -(-len(r)//len(m)))
        for x in range(len(m)):
            a(m[x])
            for y in r[x*per:(x+1)*per]: a(y)
    a(f"s_lshl_b32 s{T+4}, s{sI}, 1\ns_add_u32 s{T+4}, s{T+4}, s{tt}")
    a(f"s_lshl_b32 s{T+5}, s{sJ}, 2\ns_lshl_b32 s{T+6}, s{ch}, 1\ns_add_u32 s{T+5}, s{T+5}, s{T+6}")
    a(f"s_lshl_b32 s{T+5}, s{T+5}, 6\ns_add_u32 s{T+5}, s{T+5}, s{T+4}")
    a(f"s_lshl_b32 s{T+4}, s{T+5}, 11\ns_add_u32 s{T+4}, s{T+4}, s{sLB}\ns_add_u32 s{T+5}, s{T+4}, 131072")
    assert WS_KV == 0
    a(f"v_and_b32 v46, 0x33, v{vL}\nv_bfe_u32 v47, v{vL}, 2, 1\nv_lshl_add_u32 v46, v47, 3, v46\nv_bfe_u32 v47, v{vL}, 3, 1\nv_lshl_add_u32 v46, v47, 2, v46\nv_lshlrev_b32 v46, 4, v46")
    a(f"v_bfe_u32 v39, v{vL}, 4, 1\nv_lshlrev_b32 v47, 17, v39\nv_lshrrev_b32 v39, 5, v{vL}\nv_lshl_add_u32 v47, v39, 8, v47\nv_and_b32 v39, 15, v{vL}\nv_lshl_add_u32 v47, v39, 4, v47")
    ST4 = 16
    a(f"buffer_load_dwordx4 v[{ST4}:{ST4+3}], v{vL16}, s[{S_WS}:{S_WS+3}], s{csoff} offen sc1")
    a("s_waitcnt vmcnt(8)\ns_barrier")
    stamp(a, "p1.b0")
    for x in rd(0): a(x)
    P, RB, MU, RR, AUG = 112, 128, 36, 39, 32
    def pick(dst, seg):
        L = a.label(); L2 = a.label()
        a(f"s_cmp_lg_u32 s{sL}, 0\ns_cbranch_scc1 {L}\nv_mov_b32 v{ST4+seg}, v{CS+4*seg}\n{L}:")
    def aug_w(seg, d):
        a(f"v_cvt_pk_bf16_f32 v{d}, v{ST4+seg}, v{ST4+seg}\nv_and_b32 v{d+1}, 0xffff0000, v{d}\nv_sub_f32 v{d+1}, v{ST4+seg}, v{d+1}\nv_cvt_pk_bf16_f32 v{d+1}, v{d+1}, v{d+1}")
    XM = 22
    def kv_epilogue():
        a("s_waitcnt lgkmcnt(0)\ns_nop 4")
        pick(None, 0); pick(None, 1)
        a(f"v_sub_f32 v{MU}, 0, v{MU}\nv_cvt_pk_bf16_f32 v{XM}, v{MU}, v{MU}\nv_and_b32 v{XM+1}, 0xffff0000, v{XM}\nv_sub_f32 v{XM+1}, v{MU}, v{XM+1}\nv_cvt_pk_bf16_f32 v{XM}, v{MU}, v{XM+1}\nv_mov_b32 v{XM+1}, v{XM}")
        aug_w(0, 24); aug_w(1, 26)
        a("s_nop 1")
        a(f"v_mfma_f32_32x32x8_bf16 v[{AK}:{AK+15}], v[24:25], v[{XM}:{XM+1}], v[{AK}:{AK+15}]")
        a(f"v_mfma_f32_32x32x8_bf16 v[{AV}:{AV+15}], v[{XM}:{XM+1}], v[26:27], v[{AV}:{AV+15}]")
        a("s_nop 10")
        for r in range(16): a(f"v_mul_f32 v{AK+r}, v{AK+r}, v{RR}")
        for r in range(8): a(f"v_cvt_pk_bf16_f32 v{P+r}, v{AK+2*r}, v{AK+2*r+1}")
        a(f"buffer_store_dwordx4 v[{P}:{P+3}], v46, s[{S_WS}:{S_WS+3}], s{T+4} offen sc1")
        a(f"buffer_store_dwordx4 v[{P+4}:{P+7}], v46, s[{S_WS}:{S_WS+3}], s{T+5} offen sc1")
        for r in range(16): a(f"v_mul_f32 v{AV+r}, v{AV+r}, v{RB+r}")
        for r in range(8): a(f"v_cvt_pk_bf16_f32 v{P+8+r}, v{AV+2*r}, v{AV+2*r+1}")
        a(f"buffer_store_dwordx4 v[{P+8}:{P+11}], v47, s[{S_WS}:{S_WS+3}], s{T+4} offen offset:1024 sc1")
        a(f"buffer_store_dwordx4 v[{P+12}:{P+15}], v47, s[{S_WS}:{S_WS+3}], s{T+4} offen offset:1536 sc1")
        stamp(a, "p1.kvst")
    for s in range(11):
        vmw = f"vmcnt({7-s}) " if s < 7 else ("vmcnt(0) " if s in (7, 10) else "")
        a(f"s_waitcnt {vmw}lgkmcnt(0)\ns_barrier")
        r = rd(s+1)
        if s == 7:
            r = [f"ds_read_b32 v{MU}, v38", f"ds_read_b32 v{RR}, v38 offset:256"] + [f"ds_read_b128 v[{RB+4*k}:{RB+4*k+3}], v37 offset:{32*k}" for k in range(4)] + r
        inter(mf(s), r, C.p1per)
        csum(s)
        if s == 7: kv_epilogue()
    a("s_waitcnt lgkmcnt(0)\ns_barrier")
    for x in mf(11): a(x)
    csum(11)
    stamp(a, "p1.mfma")
    a(f"s_lshl_b32 s{T+6}, s{ch}, 12\ns_lshl_b32 s{T+7}, s{tt}, 10\ns_add_u32 s{T+6}, s{T+6}, s{T+7}\ns_add_u32 s{T+6}, s{T+6}, {QX}\nv_add_u32 v46, s{T+6}, v{vL16}")
    a(f"v_mul_f32 v{RR}, {f2u(0.25*1.4426950408889634)}, v{RR}\ns_nop 2")
    pick(None, 2)
    aug_w(2, 24)
    a("s_nop 1")
    a(f"v_mfma_f32_32x32x8_bf16 v[{AQ}:{AQ+15}], v[24:25], v[{XM}:{XM+1}], v[{AQ}:{AQ+15}]")
    a(f"buffer_store_dwordx4 v[{ST4}:{ST4+3}], v{vL16}, s[{S_WS}:{S_WS+3}], s{csoff} offen sc1")
    a("s_nop 10")
    for r in range(16): a(f"v_mul_f32 v{AQ+r}, v{AQ+r}, v{RR}")
    for r in range(8): a(f"v_cvt_pk_bf16_f32 v{P+r}, v{AQ+2*r}, v{AQ+2*r+1}")
    a(f"ds_write_b128 v46, v[{P}:{P+3}]\nds_write_b128 v46, v[{P+4}:{P+7}] offset:2048\ns_waitcnt lgkmcnt(0)")
    a(f"{LJ}:")

hh, kh, head, kvs, w1s, w1c, wos, tch, ring = T+2, T+3, T+4, T+5, T+6, T+7, T+8, T+9, T+10
TD, VA_, IDX, TA, vF1, vWO, SGA, Q, S, O, KR, VR = 16, 18, 19, 20, 21, 22, 23, 24, [32, 48], [64, 80], 96, 112
CST = E + 33792
CMB = E + 37888

def phase2(a):
    t0, t1 = S[0], S[0]+1
    a(f"s_and_b32 s{hh}, s{sW}, 3\ns_lshr_b32 s{kh}, s{sW}, 2\ns_lshl_b32 s{head}, s{sJ}, 2\ns_add_u32 s{head}, s{head}, s{hh}")
    a(f"s_lshl_b32 s{kvs}, s{head}, 17\ns_lshl_b32 s{T}, s{kh}, 16\ns_add_u32 s{kvs}, s{kvs}, s{T}\ns_add_u32 s{kvs}, s{kvs}, s{sLB}")
    a(f"s_lshl_b32 s{ring}, s{sW}, 12\ns_add_u32 s{ring}, s{ring}, 1024")
    a(f"v_lshrrev_b32 v{t0}, 5, v{vL}\nv_lshlrev_b32 v{VA_}, 8, v{t0}\nv_and_b32 v{t0}, 15, v{vL}\nv_lshl_add_u32 v{VA_}, v{t0}, 4, v{VA_}\nv_add_u32 v{VA_}, s{ring}, v{VA_}")
    a(f"v_add_u32 v{t1}, 4, v{t0}\nv_and_b32 v{t1}, 8, v{t1}\nv_lshlrev_b32 v{t1}, 3, v{t1}\nv_add_u32 v{t1}, {CST}, v{t1}")
    a(f"v_and_b32 v{t0}, 11, v{vL}\nv_cmp_eq_u32 vcc, 0, v{t0}\nv_add_u32 v{t0}, 16, v{t1}\ns_nop 0\nv_cndmask_b32 v{t1}, v{t1}, v{t0}, vcc")
    a(f"v_and_b32 v{t0}, 16, v{vL}\nv_cmp_eq_u32 vcc, 0, v{t0}\ns_nop 1\nv_cndmask_b32 v{VA_}, v{t1}, v{VA_}, vcc")
    a(f"v_and_b32 v{t0}, 3, v{vL}\nv_cmp_eq_u32 vcc, 1, v{t0}\nv_mov_b32 v{t1}, 0x3f803f80\ns_nop 0\nv_cndmask_b32 v{t0+4}, 0, v{t1}, vcc")
    a(f"v_mov_b32 v{t0+5}, v{t0+4}\nv_mov_b32 v{t0+6}, v{t0+4}\nv_mov_b32 v{t0+7}, v{t0+4}")
    a(f"s_lshl_b32 s{T}, s{sW}, 9\ns_add_u32 s{T}, s{T}, {CST}\nv_and_b32 v{t0}, 0x1f0, v{vL16}\nv_add_u32 v{t0}, s{T}, v{t0}\nds_write_b128 v{t0}, v[{t0+4}:{t0+7}]")
    a(f"v_mov_b32 v{IDX}, 0xdddddddd")
    for r in range(32): a(f"v_mov_b32 v{O[0]+r}, 0")
    if C.now1: a(f"s_mov_b32 s{S_W1+2}, 0")
    a(f"s_cmp_lg_u32 s{sL}, 0\ns_cselect_b32 s{S_QKV+2}, 0, s{S_QKV+2}")
    a(f"s_lshr_b32 s{w1s}, s{sW}, 1\ns_mul_i32 s{w1s}, s{w1s}, {512*3584}\ns_lshl_b32 s{T}, s{sI}, 7\ns_add_u32 s{w1s}, s{w1s}, s{T}")
    a(f"s_and_b32 s{T+1}, s{sW}, 1\ns_lshl_b32 s{T+1}, s{T+1}, 6\ns_add_u32 s{w1s}, s{w1s}, s{T+1}\ns_sub_u32 s{w1s}, s{w1s}, {16*3584}")
    a(f"s_lshl_b32 s{tch}, s{sJ}, 3\ns_add_u32 s{tch}, s{tch}, s{sW}\ns_mul_i32 s{tch}, s{tch}, {28*4096}\ns_add_u32 s{tch}, s{tch}, s{T}")
    a(f"v_lshlrev_b32 v{TA}, 12, v{vL}\nv_cmp_gt_u32 vcc, 28, v{vL}\nv_mov_b32 v{t1}, 0x40000000\ns_nop 0\nv_cndmask_b32 v{TA}, v{t1}, v{TA}, vcc")
    a(f"s_lshl_b32 s{wos}, s{sW}, 13\ns_lshl_b32 s{T}, s{sJ}, 7\ns_add_u32 s{wos}, s{wos}, s{T}")
    a(f"s_lshl_b32 s{T}, s{hh}, 11\ns_add_u32 s{T}, s{T}, {QX}\nv_add_u32 v{t1}, s{T}, v{vL16}\nv_add_u32 v{SGA}, {STG-V}, v{vTRF}")
    a(f"v_lshrrev_b32 v{t0+2}, 2, v{vL}\nv_and_b32 v{t0+3}, 3, v{vL}\nv_lshlrev_b32 v{t0+3}, 4, v{t0+3}\nv_mul_u32_u24 v{vF1}, 3584, v{t0+2}\nv_add_u32 v{vF1}, v{vF1}, v{t0+3}")
    a(f"v_lshrrev_b32 v{t0+2}, 3, v{vL}\nv_lshlrev_b32 v{t0+2}, 11, v{t0+2}\nv_sub_u32 v{vWO}, v{vWQ}, v{t0+2}")
    a(f"s_sub_u32 s{ring}, s{ring}, 1024")
    a("s_waitcnt lgkmcnt(0)\ns_barrier")
    stamp(a, "p2.start")
    vm = VM()
    def kv_issue(t):
        k = KR + 4*(t & 3)
        a(f"s_add_u32 m0, s{ring}, {(t & 3)*1024}")
        a(f"buffer_load_dwordx4 v[{k}:{k+3}], v{vL16}, s[{S_WS}:{S_WS+3}], s{kvs} offen sc1")
        a(f"buffer_load_dwordx4 v{vL16}, s[{S_WS}:{S_WS+3}], s{kvs} offen offset:1024 sc1 lds")
        a(f"s_addk_i32 s{kvs}, 2048")
        vm.add(("kv", t), 2)
    def v_read(t):
        v = VR + 8*(t & 1)
        a(f"ds_read_b128 v[{v}:{v+3}], v{VA_} offset:{(t & 3)*1024}\nds_read_b128 v[{v+4}:{v+7}], v{VA_} offset:{(t & 3)*1024 + 512}")
    def w1_issue(f):
        if f % 4 == 0:
            a(f"s_and_b32 s{w1c}, s{sJ}, {C.jrot}\ns_add_u32 s{w1c}, s{w1c}, {f//4}\ns_and_b32 s{w1c}, s{w1c}, 7\ns_mul_i32 s{w1c}, s{w1c}, {64*3584}\ns_add_u32 s{w1c}, s{w1c}, s{w1s}")
        a(f"s_add_u32 m0, s{sVW}, {STG - V + (f & 3)*8192}\ns_add_u32 s{w1c}, s{w1c}, {16*3584}")
        a(f"buffer_load_dwordx4 v{vF1}, s[{S_W1}:{S_W1+3}], s{w1c} offen lds")
        vm.add(("w1", f))
    def wo_issue(u):
        a(f"s_add_u32 m0, s{sVW}, {u*8192}\ns_add_u32 s{T}, s{wos}, {u*65536}")
        a(f"buffer_load_dwordx4 v{vWO}, s[{S_WO}:{S_WO+3}], s{T} offen lds")
        vm.add(("wo", u))
    def touch(n):
        a(f"s_cmp_eq_u32 s{sJ}, {n}\ns_cselect_b32 s{T}, s{tch}, 0x40000000")
        a(f"buffer_load_dword v{TD}, v{TA}, s[{S_W2}:{S_W2+3}], s{T} offen")
        vm.add(("t", n))
    def ex(s, r0, r1):
        for r in range(r0, r1): a(f"v_exp_f32 v{s+r}, v{s+r}")
    def setprio(p):
        L = a.label()
        a(f"s_cmp_lg_u32 s{kh}, 0\ns_cbranch_scc1 {L}\ns_setprio {p}\n{L}:")
    def qk(q, t): a(f"v_mfma_f32_32x32x16_bf16 v[{S[q]}:{S[q]+15}], v[{KR+4*(t&3)}:{KR+4*(t&3)+3}], v[{Q+4*q}:{Q+4*q+3}], 0")
    def pv(q, t, h): a(f"v_smfmac_f32_32x32x32_bf16 v[{O[q]}:{O[q]+15}], v[{VR+8*(t&1)+4*h}:{VR+8*(t&1)+4*h+3}], v[{S[q]+8*h}:{S[q]+8*h+7}], v{IDX}")
    kv_issue(0); kv_issue(1)
    a(f"ds_read_b128 v[{Q}:{Q+3}], v{t1}\nds_read_b128 v[{Q+4}:{Q+7}], v{t1} offset:1024")
    if C.prio: a("s_setprio 1")
    a(f"s_waitcnt vmcnt(2) lgkmcnt(0)")
    qk(0, 0)
    v_read(0)
    kv_issue(2); kv_issue(3)
    a(f"s_lshl_b32 s{T}, s{sI}, 7\ns_add_u32 s{T}, s{T}, {WS_XT}\nv_and_b32 v17, 0x70, v{vL16}")
    a(f"buffer_load_dword v17, v17, s[{S_WS}:{S_WS+3}], s{T} offen sc1"); vm.add("xt")
    stamp(a, "p2.kv0")
    a("s_nop 1")
    per = C.pper; low = C.plow
    for t in range(32):
        for q in range(2):
            hidx = 2*t + q
            if C.prio and hidx % per == 0: setprio(2)
            if C.prio and hidx % per == per - low: setprio(0)
            ex(S[q], 0, 2)
            if q == 0:
                if t > 0: pv(1, t-1, 1)
            else: pv(0, t, 1)
            ex(S[q], 2, 5)
            if q == 0:
                qk(1, t)
                need = [("kv", t+1)] if t < 31 else []
                if not C.nox and 3 <= t < 31: need.append(("w1", t-3))
                a(f"s_waitcnt vmcnt({vm.need(*need) if need else 63}) lgkmcnt(0)")
                if t+4 < 32: kv_issue(t+4)
                if t+1 < 32: v_read(t+1)
                if not C.nox and not C.split:
                    w1_issue(t)
                    if 3 <= t < 31:
                        for x in frag_reads(f"a{4*(t-3)}", SGA, ((t-3) & 3)*8192): a(x)
            else:
                if t < 31: qk(0, t+1)
                if not C.nox:
                    if C.split:
                        w1_issue(t)
                        if 3 <= t < 31:
                            for x in frag_reads(f"a{4*(t-3)}", SGA, ((t-3) & 3)*8192): a(x)
                    if t == 28 and C.pret:
                        a(f"s_lshl_b32 s{T}, s{sI}, 1\ns_add_u32 s{T}, s{T}, s{kh}\ns_lshl_b32 s{T}, s{T}, 5\ns_add_u32 s{T}, s{T}, s{head}\ns_lshl_b32 s{T}, s{T}, 10")
                        a(f"s_add_u32 s{T}, s{T}, {WS_O}\ns_add_u32 s{T}, s{T}, s{sLB}")
                        a(f"buffer_load_dword v{TD}, v{vL16}, s[{S_WS}:{S_WS+3}], s{T} offen sc1")
                        a(f"s_lshl_b32 s{T}, s{sI}, 3\ns_add_u32 s{T}, s{T}, s{sJ}\ns_lshl_b32 s{T+1}, s{T}, 10\ns_add_u32 s{T+1}, s{T+1}, {WS_ST}\ns_add_u32 s{T+1}, s{T+1}, s{sLB}")
                        a(f"buffer_load_dword v{TD}, v{vL16}, s[{S_WS}:{S_WS+3}], s{T+1} offen sc1")
                        a(f"buffer_load_dword v{TD}, v{vXO}, s[{S_XD}:{S_XD+3}], s{sXO} offen sc1")
                        vm.add("pre", 3)
                    if t % 4 == 1: wo_issue(t//4)
                    if t % 4 == 3 and C.stouch: touch(t//4)
            ex(S[q], 5, 11)
            pv(q, t, 0)
            ex(S[q], 11, 16)
    a("s_nop 1")
    pv(1, 31, 1)
    if C.prio: a("s_setprio 0")
    stamp(a, "p2.loop")
    M, N = 24, 36
    a(f"v_readfirstlane_b32 s{T}, v17\ns_nop 1\nv_cmp_ne_u32 vcc, s{T}, v17\ns_nop 1\ns_cmp_eq_u64 vcc, 0\ns_cselect_b32 s{sLOC}, 1, 0")
    a(f"s_mul_i32 s{T}, s{sW}, 3072\ns_add_u32 s{T}, s{T}, {CMB}\nv_add_u32 v17, s{T}, v{vL16}")
    a(f"s_xor_b32 s{T}, s{sW}, 4\ns_mul_i32 s{T}, s{T}, 3072\ns_add_u32 s{T}, s{T}, {CMB}\nv_add_u32 v{VA_}, s{T}, v{vL16}")
    a(f"s_lshl_b32 s{T}, s{sI}, 1\ns_add_u32 s{T}, s{T}, s{kh}\ns_lshl_b32 s{T}, s{T}, 5\ns_add_u32 s{T}, s{T}, s{head}\ns_lshl_b32 s{T}, s{T}, 10")
    a(f"s_add_u32 s{T}, s{T}, {WS_O}\ns_add_u32 s{T}, s{T}, s{sLB}")
    LA = a.label(); LB = a.label()
    a(f"s_cmp_eq_u32 s{kh}, 0\ns_cbranch_scc1 {LA}")
    a(f"ds_write_b128 v17, v[{O[0]}:{O[0]+3}]\nds_write_b128 v17, v[{O[0]+4}:{O[0]+7}] offset:1024\nds_write_b32 v17, v{O[0]+8} offset:2048")
    for r in range(9): a(f"v_mov_b32 v{M+r}, v{O[1]+r}")
    a(f"s_branch {LB}\n{LA}:")
    a(f"ds_write_b128 v17, v[{O[1]}:{O[1]+3}]\nds_write_b128 v17, v[{O[1]+4}:{O[1]+7}] offset:1024\nds_write_b32 v17, v{O[1]+8} offset:2048")
    for r in range(9): a(f"v_mov_b32 v{M+r}, v{O[0]+r}")
    a(f"{LB}:")
    wo_wait = vm.need(("wo", 7)) if not C.nox else 0
    a(f"s_waitcnt vmcnt({wo_wait}) lgkmcnt(0)\ns_barrier")
    a(f"ds_read_b128 v[{N}:{N+3}], v{VA_}\nds_read_b128 v[{N+4}:{N+7}], v{VA_} offset:1024\nds_read_b32 v{N+8}, v{VA_} offset:2048")
    a("s_waitcnt lgkmcnt(0)")
    for r in range(9): a(f"v_add_f32 v{M+r}, v{M+r}, v{N+r}")
    a(f"v_rcp_f32 v{M+8}, v{M+8}\ns_nop 0")
    for r in range(8): a(f"v_mul_f32 v{M+r}, v{M+r}, v{M+8}")
    for r in range(4): a(f"v_cvt_pk_bf16_f32 v{N+r}, v{M+2*r}, v{M+1+2*r}")
    rstore(a, f"buffer_store_dwordx4 v[{N}:{N+3}], v{vL16}, s[{S_WS}:{S_WS+3}], s{T} offen", bulk=True)

def ep_write_addr(a, base, nsplit):
    t0, t1, t2 = TV, TV+1, TV+2
    a(f"v_and_b32 v{t0}, 31, v{vL}\nv_lshrrev_b32 v{t1}, 5, v{vL}\nv_and_b32 v{t2}, 15, v{vL}\nv_xor_b32 v{t1}, v{t1}, v{t2}")
    a(f"s_and_b32 s{T}, s{sW}, 1\ns_lshr_b32 s{T+1}, s{sW}, 1\ns_lshl_b32 s{T+1}, s{T+1}, 14")
    if nsplit: a(f"s_lshl_b32 s{T}, s{T}, 13\ns_add_u32 s{T+1}, s{T+1}, s{T}")
    else: a(f"s_lshl_b32 s{T}, s{T}, 3\nv_xor_b32 v{t1}, s{T}, v{t1}")
    a(f"v_lshlrev_b32 v{t0}, 8, v{t0}\nv_add_u32 v{t0}, s{T+1}, v{t0}")
    for q in range(8 if nsplit else 4): a(f"v_xor_b32 v{t2}, {2*q}, v{t1}\nv_lshl_add_u32 v{base+q}, v{t2}, 4, v{t0}")

def ep_read_addr(a, r0, en, ec):
    a(f"v_and_b32 v{TV}, 15, v{en}\nv_lshlrev_b32 v{TV+1}, 1, v{ec}\nv_xor_b32 v{TV}, v{TV}, v{TV+1}")
    a(f"v_lshlrev_b32 v{TV+1}, 8, v{en}\nv_lshl_add_u32 v{r0}, v{TV}, 4, v{TV+1}\nv_xor_b32 v{r0+1}, 16, v{r0}")

def ep_reduce(a, ACC, wa, ra, nsplit, add0, out, mid=None):
    for y in range(2):
        for q in range(4):
            if nsplit: a(f"ds_write_b128 v{wa+4*y+q}, v[{ACC+16*y+4*q}:{ACC+16*y+4*q+3}]")
            else: a(f"ds_write_b128 v{wa+q}, v[{ACC+16*y+4*q}:{ACC+16*y+4*q+3}] offset:{y*8192}")
    if mid: mid()
    a("s_waitcnt lgkmcnt(0)\ns_barrier")
    for k in range(4):
        a(f"ds_read_b128 v[{out+8*k}:{out+8*k+3}], v{ra} offset:{16384*k}\nds_read_b128 v[{out+8*k+4}:{out+8*k+7}], v{ra+1} offset:{16384*k}")
    a("s_waitcnt lgkmcnt(6)")
    for e in range(8): a(f"v_add_f32 v{out+e}, v{out+e}, v{add0+e}")
    a("s_waitcnt lgkmcnt(2)")
    for e in range(8): a(f"v_add_f32 v{out+8+e}, v{out+8+e}, v{out+16+e}")
    for e in range(8): a(f"v_add_f32 v{out+e}, v{out+e}, v{out+8+e}")
    a("s_waitcnt lgkmcnt(0)")
    for e in range(8): a(f"v_add_f32 v{out+e}, v{out+e}, v{out+24+e}")

def unpack8(a, dst, src):
    for e in range(4): a(f"v_lshlrev_b32 v{dst+2*e}, 16, v{src+e}\nv_and_b32 v{dst+1+2*e}, 0xffff0000, v{src+e}")

def phase3(a):
    OF, ACC, WF = 16, 48, 80
    W0, W1 = 20, 21
    tr_addr(a, W0, "0", True, 22, 23)
    a(f"s_lshr_b32 s{T+2}, s{sW}, 1\ns_lshl_b32 s{T+2}, s{T+2}, 14\ns_add_u32 s{T+2}, s{T+2}, {V}\nv_add_u32 v{W0}, s{T+2}, v{W0}\nv_xor_b32 v{W1}, 64, v{W0}")
    for t in range(8):
        for y in range(2):
            b = WF + 8*t + 4*y
            a(f"ds_read_b64_tr_b16 v[{b}:{b+1}], v{W0+y} offset:{t*2048}\nds_read_b64_tr_b16 v[{b+2}:{b+3}], v{W0+y} offset:{t*2048+1024}")
    src = T+2
    a(f"s_and_b32 s{src}, s{sW}, 1\ns_lshl_b32 s{src}, s{src}, 15\ns_lshr_b32 s{T+3}, s{sW}, 1\ns_lshl_b32 s{T+3}, s{T+3}, 13\ns_add_u32 s{src}, s{src}, s{T+3}")
    a(f"s_lshl_b32 s{T+3}, s{sI}, 16\ns_add_u32 s{src}, s{src}, s{T+3}\ns_add_u32 s{src}, s{src}, {WS_O}\ns_add_u32 s{src}, s{src}, s{sLB}\ns_add_u32 s{T+3}, s{src}, 4096")
    a("s_waitcnt vmcnt(0) lgkmcnt(0)\ns_barrier")
    stamp(a, "p2.end")
    n3 = [int(c) for c in C.sch3]; assert sum(n3) == 12 and n3[0] <= 8
    if_wave_eq(a, 0, lambda: publish(a, "O", sI))
    for f in range(n3[0]): w2_dma(a, f)
    if_wave_eq(a, 0, lambda: poll(a, "O", sI, 8))
    a("s_barrier")
    stamp(a, "proj.polled")
    for t in range(8):
        a(f"buffer_load_dwordx4 v[{OF+4*t}:{OF+4*t+3}], v{vL16}, s[{S_WS}:{S_WS+3}], s{src + (t >> 2)} offen offset:{(t & 3)*1024} sc1")
    for t in range(8):
        a(f"s_waitcnt vmcnt({7-t})")
        for y in range(2):
            c = "0" if t == 0 else f"v[{ACC+16*y}:{ACC+16*y+15}]"
            a(f"v_mfma_f32_32x32x16_bf16 v[{ACC+16*y}:{ACC+16*y+15}], v[{WF+8*t+4*y}:{WF+8*t+4*y+3}], v[{OF+4*t}:{OF+4*t+3}], {c}")
        if t == 3:
            ep_write_addr(a, 80, True); ep_read_addr(a, 88, vN, vC); unpack8(a, 96, vRES)
    stamp(a, "proj.loop")
    a("s_nop 10")
    OUT = 104
    ep_reduce(a, ACC, 80, 88, True, 96, OUT)
    for e in range(4): a(f"v_cvt_pk_bf16_f32 v{vRES+e}, v{OUT+2*e}, v{OUT+1+2*e}")
    a("v_mov_b32 v64, 0\nv_mov_b32 v65, 0\nv_mov_b32 v66, 1\nv_mov_b32 v67, 1\nv_mov_b32 v68, 0x3f803f80")
    for e in range(4): a(f"v_dot2c_f32_bf16 v64, v{vRES+e}, v68\nv_dot2c_f32_bf16 v65, v{vRES+e}, v{vRES+e}")
    a(f"s_lshl_b32 s{T}, s{sI}, 13\ns_add_u32 s{T}, s{T}, {WS_ST}\ns_add_u32 s{T}, s{T}, s{sLB}\ns_lshl_b32 s{T+1}, s{sJ}, 10\ns_add_u32 s{T+1}, s{T+1}, s{T}")
    a(f"v_lshlrev_b32 v56, 4, v{vN}\nv_lshl_add_u32 v57, v{vC}, 10, v56")
    dpp_red8(a, [64, 65])
    a(f"v_cmp_eq_u32 vcc, 0, v{vC}\ns_and_saveexec_b64 s[{T+2}:{T+3}], vcc")
    rstore(a, f"buffer_store_dwordx4 v[64:67], v56, s[{S_WS}:{S_WS+3}], s{T+1} offen")
    a(f"s_mov_b64 exec, s[{T+2}:{T+3}]")
    stamp(a, "proj.st")
    a(f"v_add_u32 v59, {STG-V}, v{vTRF}")
    for c in range(4):
        for x in frag_reads(f"v{W1T+4*c}", 59, c*8192): a(x)
    unpack8(a, 80, vRES)
    a(f"v_bfe_u32 v58, v{vN}, 1, 1\nv_lshlrev_b32 v58, 2, v58\nv_xor_b32 v58, v58, v{vC}\nv_lshlrev_b32 v58, 4, v58\nv_lshl_add_u32 v58, v{vN}, 7, v58")
    LP = a.label(); LD = a.label()
    a(f"s_mov_b32 s{T+2}, {SPIN}")
    a(f"{LP}:")
    a(f"buffer_load_dwordx4 v[68:71], v57, s[{S_WS}:{S_WS+3}], s{T} offen sc1")
    a("s_waitcnt vmcnt(0)\nv_and_b32 v72, v70, v71\nv_cmp_ne_u32 vcc, 1, v72")
    a(f"s_cbranch_vccz {LD}")
    a(f"s_sub_u32 s{T+2}, s{T+2}, 1\ns_cmp_lg_u32 s{T+2}, 0\ns_cbranch_scc1 {LP}")
    a(f"{LD}:")
    stamp(a, "proj.stat")
    dpp_red8(a, [68, 69])
    a(f"v_mul_f32 v68, {f2u(1/512)}, v68\nv_mul_f32 v69, {f2u(1/512)}, v69")
    a("v_fma_f32 v69, -v68, v68, v69\nv_max_f32 v69, 0, v69")
    a(f"v_add_f32 v70, {f2u(1e-5)}, v69\nv_rsq_f32 v70, v70\ns_nop 0")
    a(f"v_mul_f32 v71, v70, v70\nv_mul_f32 v71, v71, v69\nv_add_f32 v71, {f2u(1e-5)}, v71\nv_rsq_f32 v71, v71\ns_nop 0")
    a("v_mul_f32 v70, v70, v71\nv_mul_f32 v71, v68, v70\nv_sub_f32 v71, 0, v71")
    for e in range(8): a(f"v_fma_f32 v{80+e}, v{80+e}, v70, v71")
    for e in range(4): a(f"v_cvt_pk_bf16_f32 v{72+e}, v{80+2*e}, v{81+2*e}")
    a(f"s_lshl_b32 s{T}, s{sJ}, 18\ns_lshl_b32 s{T+1}, s{sI}, 13\ns_add_u32 s{T}, s{T}, s{T+1}\ns_add_u32 s{T}, s{T}, {WS_H}\ns_add_u32 s{T}, s{T}, s{sLB}")
    a(f"buffer_store_dwordx4 v[72:75], v58, s[{S_WS}:{S_WS+3}], s{T} offen sc1")
    a("s_waitcnt lgkmcnt(0)")
    for f in range(n3[0], n3[0]+n3[1]): w2_dma(a, f)
    a(f"s_waitcnt vmcnt({n3[1]})\ns_barrier")
    stamp(a, "proj.end")
    if_wave_eq(a, 0, lambda: publish(a, "H", sJ))
    for f in range(n3[0]+n3[1], 12): w2_dma(a, f)

W1T = 128
VHI = 20

def mlp(a, kind):
    one = kind == "mlp1"
    S_ = 16 if one else 14
    D = C.D; R = D + 1
    assert R*16384 <= 65536
    EN, EC = (22, 23) if one else (vN, vC)
    EB, YA, YA2, RA_, WA_ = 24, 28, 29, 30, 32
    ADD, ACC, F = 40, 48, [80, 96]
    vm = VM()
    a(f"v_add_u32 v{VHI}, 65536, v{vTRF}")
    if one:
        a(f"v_lshrrev_b32 v{EC}, 5, v{vL}\ns_and_b32 s{T}, s{sW}, 6\nv_add_u32 v{EC}, s{T}, v{EC}")
        a(f"v_and_b32 v{EN}, 31, v{vL}\ns_and_b32 s{T}, s{sW}, 1\ns_lshl_b32 s{T}, s{T}, 5\nv_add_u32 v{EN}, s{T}, v{EN}")
        a(f"v_lshlrev_b32 v21, 4, v{EC}\ns_lshl_b32 s{T}, s{sI}, 7")
        a(f"buffer_load_dwordx4 v[{EB}:{EB+3}], v21, s[{S_B1}:{S_B1+3}], s{T} offen")
    else:
        a(f"v_lshlrev_b32 v21, 1, v{vN}\ns_lshl_b32 s{T}, s{sI}, 7")
        a(f"buffer_load_ushort v{EB}, v21, s[{S_B2}:{S_B2+3}], s{T} offen")
    src, dst, qb = T+2, T+3, T+4
    kq_bytes = (32 if one else 28)*2048
    base, per_j = (WS_H, 2048*128) if one else (WS_U, 112*2048)
    a(f"s_mul_i32 s{src}, s{sJ}, {per_j}\ns_lshr_b32 s{T}, s{sW}, 1\ns_mul_i32 s{T+1}, s{T}, {kq_bytes}\ns_add_u32 s{src}, s{src}, s{T+1}")
    a(f"s_and_b32 s{T+1}, s{sW}, 1\ns_lshl_b32 s{T+1}, s{T+1}, 11\ns_add_u32 s{src}, s{src}, s{T+1}\ns_add_u32 s{src}, s{src}, {base}\ns_add_u32 s{src}, s{src}, s{sLB}")
    a(f"s_lshl_b32 s{dst}, s{sW}, 11\ns_lshl_b32 s{T}, s{T}, 12")
    if one:
        tr_addr(a, YA, "0", False, TV, TV+1)
        a(f"v_add_u32 v{YA}, s{T}, v{YA}\nv_xor_b32 v{YA2}, 64, v{YA}")
        a(f"s_and_b32 s{qb}, s{sJ}, {C.jrot}\ns_lshl_b32 s{qb}, s{qb}, 13")
    else:
        a(f"v_add_u32 v{YA}, s{T}, v{vL16}")
        qkv_base8(a, qb)
    ep_write_addr(a, WA_, not one)
    ep_read_addr(a, RA_, EN, EC)
    if one: pend = list(range(12))
    else: pend = list(range(16, 28))
    if_wave_eq(a, 0, lambda: poll(a, "H" if one else "U", sJ, 32 if one else 28))
    a("s_barrier")
    stamp(a, kind + ".polled")
    def act(s):
        if one: a(f"s_add_u32 s{T}, s{qb}, {s*4096}\ns_and_b32 s{T}, s{T}, 0xffff\ns_add_u32 m0, s{dst}, {(s % R)*16384}\ns_add_u32 s{T}, s{T}, s{src}")
        else: a(f"s_add_u32 m0, s{dst}, {(s % R)*16384}\ns_add_u32 s{T}, s{src}, {s*4096}")
        a(f"buffer_load_dwordx4 v{vL16}, s[{S_WS}:{S_WS+3}], s{T} offen sc1 lds\nbuffer_load_dwordx4 v{vL16}, s[{S_WS}:{S_WS+3}], s{T} offen offset:1024 sc1 lds")
        vm.add(("act", s), 2)
    def reads(s):
        out = []; o = (s % R)*16384
        for t in range(2):
            for y in range(2):
                b = F[s & 1] + 8*t + 4*y
                if one:
                    out.append(f"ds_read_b64_tr_b16 v[{b}:{b+1}], v{YA+y} offset:{o + t*2048}")
                    out.append(f"ds_read_b64_tr_b16 v[{b+2}:{b+3}], v{YA+y} offset:{o + t*2048 + 512}")
                else:
                    out.append(f"ds_read_b128 v[{b}:{b+3}], v{YA} offset:{o + t*2048 + y*1024}")
        return out
    def mfmas(s):
        out = []
        for t in range(2):
            f = 2*s + t
            X = f"a[{4*f}:{4*f+3}]" if f < 28 else f"v[{W1T+4*(f-28)}:{W1T+4*(f-28)+3}]"
            for y in range(2):
                b = F[s & 1] + 8*t + 4*y
                Y = f"v[{b}:{b+3}]"
                A_, B_ = (X, Y) if one else (Y, X)
                c = "0" if f == 0 else f"v[{ACC+16*y}:{ACC+16*y+15}]"
                out.append(f"v_mfma_f32_32x32x16_bf16 v[{ACC+16*y}:{ACC+16*y+15}], {A_}, {B_}, {c}")
        return out
    for s in range(R): act(s)
    sch = [int(c) for c in (C.sch1 if one else C.sch2)]
    assert sum(sch) == (16 if one else 12)
    extra = list(range(sum(sch)))
    def point(p):
        for _ in range(sch[p]):
            k = extra.pop(0)
            if one:
                assert k < 12 or p >= 4
                w2_dma(a, 12 + k)
            else: qkv_piece8(a, qb, k)
            vm.add(("x", k))
    for s in range(S_):
        a(f"s_waitcnt vmcnt({vm.need(('act', s))}) lgkmcnt(0)\ns_barrier")
        if s == 0:
            stamp(a, kind + ".b0")
            for x in reads(0): a(x)
            unpack8(a, ADD, EB if one else vRES)
            if not one:
                a(f"v_lshlrev_b32 v{EB}, 16, v{EB}")
                for e in range(8): a(f"v_add_f32 v{ADD+e}, v{ADD+e}, v{EB}")
        else:
            interleave(a, mfmas(s-1), reads(s))
        if (one and s >= 2) or (not one and s >= 1):
            for _ in range(2 if one else 3):
                if pend:
                    for x in w2_reads(pend.pop(0), vTRF, VHI): a(x)
        if s >= 1 and s - 1 + R < S_: act(s - 1 + R)
        if not one and s - 1 + R == S_ - 1 and C.pret:
            a(f"buffer_load_dword v21, v{vXO}, s[{S_XD}:{S_XD+3}], s{sXO} offen sc1")
            a(f"s_lshl_b32 s{T}, s{sI}, 3\ns_add_u32 s{T}, s{T}, s{sJ}\ns_lshl_b32 s{T}, s{T}, 9\ns_add_u32 s{T}, s{T}, {WS_ST2}\nv_lshlrev_b32 v22, 3, v{vL}")
            a(f"buffer_load_dword v21, v22, s[{S_WS}:{S_WS+3}], s{T} offen sc1")
            vm.add("pre", 2)
    assert not pend
    point(0)
    a("s_waitcnt lgkmcnt(0)\ns_barrier")
    for x in mfmas(S_-1): a(x)
    stamp(a, kind + ".loop")
    point(1)
    a(f"s_nop {max(0, 10 - 3*sch[1])}")
    OUT = 80
    ep_reduce(a, ACC, WA_, RA_, not one, ADD, OUT, mid=lambda: point(2))
    if one:
        a(f"s_waitcnt vmcnt({vm.need(('x', 3))})")
        for f in range(12, 16):
            for x in w2_reads(f, vTRF, VHI): a(x)
    point(3)
    if one:
        c1 = -2*0.7978845608028654*1.4426950408889634; c2 = c1*0.044715
        G = OUT + 8
        a(f"s_mov_b32 s{T}, {f2u(c2)}\nv_mov_b32 v21, {f2u(c1)}")
        for e in range(8): a(f"v_mul_f32 v{G+e}, v{OUT+e}, v{OUT+e}")
        for e in range(8): a(f"v_fma_f32 v{G+e}, v{G+e}, s{T}, v21")
        for e in range(8): a(f"v_mul_f32 v{G+e}, v{G+e}, v{OUT+e}")
        for e in range(8): a(f"v_exp_f32 v{G+e}, v{G+e}")
        for e in range(8): a(f"v_add_f32 v{G+e}, 1.0, v{G+e}")
        for e in range(8): a(f"v_rcp_f32 v{G+e}, v{G+e}")
        for e in range(8): a(f"v_mul_f32 v{OUT+e}, v{OUT+e}, v{G+e}")
        for e in range(4): a(f"v_cvt_pk_bf16_f32 v{G+e}, v{OUT+2*e}, v{OUT+1+2*e}")
        a(f"s_mul_i32 s{T}, s{sJ}, {112*2048}\ns_lshl_b32 s{T+1}, s{sI}, 13\ns_add_u32 s{T}, s{T}, s{T+1}\ns_lshl_b32 s{T+1}, s{sW}, 10\ns_add_u32 s{T}, s{T}, s{T+1}")
        a(f"s_add_u32 s{T}, s{T}, {WS_U}\ns_add_u32 s{T}, s{T}, s{sLB}")
        a(f"buffer_store_dwordx4 v[{G}:{G+3}], v{vL16}, s[{S_WS}:{S_WS+3}], s{T} offen sc1")
        stamp(a, kind + ".st")
        a("s_waitcnt lgkmcnt(0)")
        point(4)
        a(f"s_waitcnt vmcnt({sch[4]})\ns_barrier")
        stamp(a, kind + ".end")
        if_wave_eq(a, 0, lambda: publish(a, "U", sJ))
        point(5)
    else:
        for e in range(4): a(f"v_cvt_pk_bf16_f32 v{vRES+e}, v{OUT+2*e}, v{OUT+1+2*e}")
        rstore(a, f"buffer_store_dwordx4 v[{vRES}:{vRES+3}], v{vXO}, s[{S_XD}:{S_XD+3}], s{sXO} offen", bulk=True)
        stamp(a, kind + ".st")
        a(f"s_cmp_lg_u32 s{sL}, 0\ns_cbranch_scc1 L_fin")
        a("v_mov_b32 v64, 0\nv_mov_b32 v65, 0\nv_mov_b32 v68, 0x3f803f80")
        for e in range(4): a(f"v_dot2c_f32_bf16 v64, v{vRES+e}, v68\nv_dot2c_f32_bf16 v65, v{vRES+e}, v{vRES+e}")
        a(f"s_lshl_b32 s{T}, s{sI}, 3\ns_add_u32 s{T}, s{T}, s{sJ}\ns_lshl_b32 s{T}, s{T}, 9\ns_add_u32 s{T}, s{T}, {WS_ST2}\nv_lshlrev_b32 v66, 3, v{vN}")
        dpp_red8(a, [64, 65])
        a(f"v_cmp_eq_u32 vcc, 0, v{vC}\ns_and_saveexec_b64 s[{T+6}:{T+7}], vcc")
        rstore(a, f"buffer_store_dwordx2 v[64:65], v66, s[{S_WS}:{S_WS+3}], s{T} offen", bulk=True)
        a(f"s_mov_b64 exec, s[{T+6}:{T+7}]")
        point(4)
        a(f"s_waitcnt vmcnt({sch[4]})\ns_barrier")
        stamp(a, kind + ".end")
        if_wave_eq(a, 0, lambda: publish(a, "X", sI))
        point(5)

def skip_mlp1(a):
    a(f"v_add_u32 v{VHI}, 65536, v{vTRF}\ns_waitcnt vmcnt(0)")
    for f in range(12):
        for x in w2_reads(f, vTRF, VHI): a(x)
    a("s_waitcnt lgkmcnt(0)")
    for f in range(12, 24): w2_dma(a, f)
    a("s_waitcnt vmcnt(8)")
    for f in range(12, 16):
        for x in w2_reads(f, vTRF, VHI): a(x)
    a("s_waitcnt lgkmcnt(0)")
    for f in range(24, 28): w2_dma(a, f)

def main(out):
    a = Asm()
    K = NAME + "_kernel"
    a.L.append(f".globl {K}\n.p2align 8\n.type {K},@function\n{K}:")
    prologue(a)
    init_sync(a)
    if C.qtouch:
        L1 = a.label(); L2 = a.label(); L3 = a.label()
        a(f"v_lshlrev_b32 v40, 7, v{vL}\nv_min_u32 v41, 47, v{vL}\ns_cmp_eq_u32 s{sW}, 0\ns_cbranch_scc1 {L1}\ns_cmp_eq_u32 s{sW}, 1\ns_cbranch_scc1 {L2}\ns_cmp_lg_u32 s{sW}, 2\ns_cbranch_scc1 {L3}")
        a(f"s_lshr_b32 s{T}, s2, 3\ns_mul_i32 s{T}, s{T}, {48*1024}\ns_add_u32 s{T}, s{T}, 384\nv_lshlrev_b32 v41, 10, v41")
        a(f"buffer_load_dword v143, v41, s[{S_QKV}:{S_QKV+3}], s{T} offen\ns_branch {L3}")
        a(f"{L1}:\ns_lshl_b32 s{T}, s{sI}, 3\ns_add_u32 s{T}, s{T}, s{sJ}\ns_lshl_b32 s{T}, s{T}, 13")
        a(f"buffer_load_dword v143, v40, s[{S_XS}:{S_XS+3}], s{T} offen\ns_branch {L3}")
        a(f"{L2}:\ns_mul_i32 s{T}, s2, {48*128}\nv_lshlrev_b32 v41, 7, v41")
        a(f"buffer_load_dword v143, v41, s[{S_QKV}:{S_QKV+3}], s{T} offen")
        a(f"{L3}:")
    if C.cpf:
        Lc = a.label()
        a(f"s_cmp_lg_u32 s{sW}, 4\ns_cbranch_scc1 {Lc}")
        a(f"s_getpc_b64 s[{T+2}:{T+3}]\ns_and_b32 s{T+2}, s{T+2}, 0xffffff00\ns_lshr_b32 s{T}, s2, 3\ns_lshl_b32 s{T}, s{T}, 10\nv_and_b32 v41, 7, v{vL}\nv_lshlrev_b32 v41, 7, v41\nv_add_u32 v41, s{T}, v41")
        a(f"v_min_u32 v41, CODE_SPAN, v41\nglobal_load_dword v143, v41, s[{T+2}:{T+3}]\n{Lc}:")
    prologue2(a)
    if C.qtouch: a("s_barrier")
    x_dma(a)
    L = a.label()
    a(f"s_cmp_ge_u32 s{sW}, 4\ns_cbranch_scc1 {L}")
    a(f"buffer_load_dwordx4 v[{vRES}:{vRES+3}], v{vXO}, s[{S_XS}:{S_XS+3}], s{sXO} offen")
    a("s_waitcnt vmcnt(9)")
    init_arrive(a)
    a("s_waitcnt vmcnt(2)")
    L4 = a.label()
    a(f"s_cmp_eq_u32 s{sW}, 3\ns_cbranch_scc1 {L4}\ns_waitcnt vmcnt(1)\n{L4}:\ns_barrier")
    stamp(a, "p1.xarr")
    a("s_branch L_p1_cons")
    a(f"{L}:")
    helper_setup(a)
    vm = VM()
    for u in range(C.h0first): helper_unit(a, u, vm)
    a(f"buffer_load_dwordx4 v[{vRES}:{vRES+3}], v{vXO}, s[{S_XS}:{S_XS+3}], s{sXO} offen"); vm.add("res")
    a(f"v_and_b32 v41, 3, v{vL}\nv_bfe_u32 v46, v{vL}, 3, 1\nv_lshl_add_u32 v41, v46, 2, v41\nv_lshlrev_b32 v41, 4, v41\nv_lshl_add_u32 v41, v40, 7, v41\nv_xor_b32 v47, 64, v41")
    a(f"s_waitcnt vmcnt({2*C.h0first+1})\ns_barrier")
    for q in range(8): a(f"ds_read_b128 v[{48+8*q}:{51+8*q}], v41 offset:{q*8192}\nds_read_b128 v[{52+8*q}:{55+8*q}], v47 offset:{q*8192}")
    n2 = C.h0second
    for u in range(C.h0first, C.h0first+n2): helper_unit(a, u, vm)
    a("v_mov_b32 v42, 0\nv_mov_b32 v43, 0\nv_mov_b32 v44, 0\nv_mov_b32 v45, 0\nv_mov_b32 v46, 0x3f803f80")
    for q in range(8):
        a(f"s_waitcnt lgkmcnt({14-2*q})")
        for e in range(0, 8, 2):
            r = 48+8*q+e
            a(f"v_dot2c_f32_bf16 v42, v{r}, v46\nv_dot2c_f32_bf16 v44, v{r}, v{r}\nv_dot2c_f32_bf16 v43, v{r+1}, v46\nv_dot2c_f32_bf16 v45, v{r+1}, v{r+1}")
    a("s_nop 2\nv_add_f32 v42, v42, v43\nv_add_f32 v44, v44, v45")
    tlb_touch(a)
    helper_loop(a, 0, vm, C.h0first+n2, [int(c) for c in C.hs0], "L_p1_join")
    a("L_layer:")
    phase1(a)
    phase2(a)
    phase3(a)
    LS = a.label(); LM = a.label()
    a(f"s_cmp_ge_u32 s{sI}, 28\ns_cbranch_scc1 {LS}")
    mlp(a, "mlp1")
    a(f"s_branch {LM}\n{LS}:")
    skip_mlp1(a)
    a(f"{LM}:")
    mlp(a, "mlp2")
    if_wave_eq(a, 0, lambda: poll(a, "X", sI, 8))
    a(f"s_mov_b32 s{S_XS}, s{S_XD}\ns_mov_b32 s{S_XS+1}, s{S_XD+1}\ns_mov_b32 s{S_XD}, s{sOUT}\ns_mov_b32 s{S_XD+1}, s{sOUT+1}")
    a(f"s_mov_b32 s{sL}, 1\ns_mov_b32 s{sLB}, {LSTRIDE}\ns_mov_b32 s{sFL}, {WS_FLAG + 256*128}")
    if C.stamp: a("v_mov_b32 v7, v6")
    a("s_barrier")
    stamp(a, "p1.polled")
    x_dma(a)
    a("s_branch L_layer")
    a("L_fin:")
    if C.stamp:
        a("s_waitcnt vmcnt(0)")
        stamp(a, "fin")
        a(f"s_lshl_b32 s{T}, s2, 3\ns_add_u32 s{T}, s{T}, s{sW}\ns_lshl_b32 s{T}, s{T}, 9\ns_add_u32 s{T}, s{T}, {WS_STAMP}\nv_lshlrev_b32 v16, 2, v{vL}")
        a(f"buffer_store_dword v7, v16, s[{S_WS}:{S_WS+3}], s{T} offen\nbuffer_store_dword v6, v16, s[{S_WS}:{S_WS+3}], s{T} offen offset:256")
    a("L_end:\ns_endpgm")
    s = HDR + "; @launch grid=(256,1,1) block=(512,1,1) lds=163840\n"
    s += '.amdgcn_target "amdgcn-amd-amdhsa--gfx950"\n.text\n' + a.text().replace("CODE_SPAN", str(C.span))
    s += f""".section .rodata,"a"
.p2align 6
.amdhsa_kernel {K}
  .amdhsa_next_free_vgpr 256
  .amdhsa_next_free_sgpr 102
  .amdhsa_accum_offset {NARCH}
  .amdhsa_group_segment_fixed_size 0
  .amdhsa_kernarg_size 88
  .amdhsa_user_sgpr_count 2
  .amdhsa_user_sgpr_kernarg_segment_ptr 1
  .amdhsa_system_sgpr_workgroup_id_x 1
.end_amdhsa_kernel
"""
    open(out, "w").write(s)
    if C.stamp: open(out + ".stamps", "w").write("\n".join(STAMPS))

if __name__ == "__main__":
    for arg in sys.argv[2:]:
        k, v = arg.split("="); setattr(C, k, v if isinstance(getattr(C, k), str) else type(getattr(C, k))(int(v)))
    main(sys.argv[1])
```

```python
import sys, struct
NAME = "interleave_layers__softmax_full_mha__mixer_token_mlp__prompt"
HDR = open("cdna_kernels/%s.s.ref" % NAME).read().split("; Override launch")[0]
MB = 1 << 20
WS_KV, WS_O, WS_H, WS_U, WS_X2, WS_ST = 0*MB, 4*MB, 6*MB, 8*MB, 10*MB, 12*MB
LSTRIDE = 16*MB
WS_FLAG = 32*MB
WS_XT = WS_FLAG + 131072
WS_STAMP = 40*MB
KA = dict(x=0, wqkv=8, wo=16, w1=32, b1=40, w2=48, b2=56, out=64, dbg=72, ws=80)
SZ = dict(x=2048*512*2, wqkv=512*1536*2, wo=512*512*2, w1=2048*1792*2, b1=1792*2, w2=1792*2048*2, b2=2048*2,
          out=2048*512*2, dbg=256, ws=1 << 28)
FL = dict(KV=0, H=64, U=128, O=192, X=224, UB=256)
COLK = ('KV', 'H', 'U', 'UB')
SPIN = 200000
NARCH = 144

class Cfg:
    stamp = False
    prio = True
    lowtiles = 1
    D = 3
    nB = 12
    sch1 = '033343'
    sch2 = '003045'
    sch3 = '444'
    stouch = 0
    p1touch = 0
    now1 = 0
    local = 1
    schw = '002222'
    eps = '99abbbc'
    wlast = 1
    defer = 0
    optx = 0
    n1 = 0
    n2 = 0
    deep = 1
    wa5 = 13
    schx = '01434'
    pbi = 2
    sb = 4
    init5 = 4
    schv = '22220'
    pubs = 14
    pbs = 3
    init = 4
    pae = 1
    order = 1
    ldsper = 3
    epa = 0
    t2 = 28
    sonly = ''
    tmix = 1
    cpf = 0
    span = 28672
    ldata = 0
    pret = 0
    hs1 = '022111122000'
    hs0 = '222222222000'
    h0first = 3
    h0second = 3
    w1t = 9
    p1per = 4
    qtouch = 1
    pper = 16
    plow = 3
    split = 1
    kvfix = 0
    xsel = 'wot'
    nofirst = 0
    tlb = 0
    lowhalf = 3
    jrot = 6
    nox = 0
    notr = 0
    loop = 0
    pad = 0
    align = 3
    nQ = 12
C = Cfg()

class Asm:
    def __init__(self): self.L = []; self.n = 0
    def __call__(self, s):
        for line in s.split("\n"):
            line = line.strip()
            if line: self.L.append(("" if line.endswith(":") else "    ") + line)
    def label(self, p="L"):
        self.n += 1; return f"{p}{self.n}"
    def text(self): return "\n".join(self.L) + "\n"

def f2u(x): return hex(struct.unpack("<I", struct.pack("<f", x))[0])

S_XS, S_QKV, S_WS, S_WO, S_W1, S_W2, S_B1, S_B2, S_XD, S_DBG, S_KV = 8, 12, 16, 20, 24, 28, 32, 36, 40, 44, 80
sI, sJ, sW, sL, sLB, sFL = 48, 49, 50, 51, 52, 53
sW2S = 54
sVW = 55
sLOC = 56
sXO = 57
sOUT = 58
T = 60
sST = 76
sRET = 84
vL, vN, vC, vL16, vXO = 1, 2, 3, 4, 5
vRES = 8
vF2, vTRF, vWQ = 12, 13, 14
TV = 16
E, V = 0, 65536
QX = V + 11*8192
SVO = 32768
STG = V

STAMPS = []
def stamp(a, name):
    if not C.stamp: return
    if C.sonly:
        if not (name == "start" or any(name.startswith(p) for p in C.sonly.split(","))): return
    elif name.startswith("z"): return
    k = len(STAMPS); assert k < 32
    a(f"s_memtime s[{sST}:{sST+1}]\ns_memrealtime s[{sST+2}:{sST+3}]\ns_waitcnt lgkmcnt(0)")
    a(f"v_writelane_b32 v6, s{sST}, {k}\nv_writelane_b32 v6, s{sST+2}, {k+32}")
    STAMPS.append(name)

def dpp_red8(a, regs):
    for pat in ("quad_perm:[1,0,3,2]", "quad_perm:[2,3,0,1]", "row_half_mirror"):
        a("s_nop 1")
        for r in regs: a(f"v_add_f32_dpp v{r}, v{r}, v{r} {pat} row_mask:0xf bank_mask:0xf")

def tr_addr(a, vd, xh, perm, t0, t1):
    a(f"v_lshrrev_b32 v{t0}, 5, v{vL}\nv_lshlrev_b32 v{t0}, {2 if perm else 3}, v{t0}")
    a(f"v_bfe_u32 v{t1}, v{vL}, 2, 2\nv_add_u32 v{t0}, v{t0}, v{t1}\nv_lshlrev_b32 v{vd}, 7, v{t0}")
    a(f"v_lshrrev_b32 v{t1}, 1, v{t1}\nv_xor_b32 v{t1}, {xh}, v{t1}\nv_lshl_add_u32 v{vd}, v{t1}, 6, v{vd}")
    a(f"v_bfe_u32 v{t1}, v{vL}, 4, 1\nv_lshl_add_u32 v{vd}, v{t1}, 5, v{vd}")
    a(f"v_and_b32 v{t1}, 3, v{vL}\nv_lshl_add_u32 v{vd}, v{t1}, 3, v{vd}")

def interleave(a, m, r):
    per = -(-len(r)//len(m))
    for x in range(len(m)):
        a(m[x])
        for y in r[x*per:(x+1)*per]: a(y)

def rstore(a, instr, bulk=False):
    if not C.local or (bulk and not C.ldata):
        a(instr + " sc1"); return
    L = a.label(); L2 = a.label()
    a(f"s_cmp_eq_u32 s{sLOC}, 1\ns_cbranch_scc1 {L}\n{instr} sc1\ns_branch {L2}\n{L}:\n{instr}\n{L2}:")

def publish(a, kind, group_s, tv=None):
    if kind not in COLK:
        a(f"s_lshl_b32 s{T}, s{group_s}, 7\ns_add_u32 s{T}, s{T}, {FL[kind]*128}\ns_add_u32 s{T}, s{T}, s{sFL}\ns_lshl_b32 s{T+1}, s{sJ}, 4\ns_add_u32 s{T}, s{T}, s{T+1}")
        a(f"v_mov_b32 v{TV}, 1\ns_mov_b64 exec, 1")
        rstore(a, f"buffer_store_dword v{TV}, v{vL16}, s[{S_WS}:{S_WS+3}], s{T} offen")
        a("s_mov_b64 exec, -1")
        return
    col = kind in COLK
    a(f"s_lshl_b32 s{T}, s{group_s}, {10 if col else 7}\ns_add_u32 s{T}, s{T}, {FL[kind]*128}\ns_add_u32 s{T}, s{T}, s{sFL}")
    a(f"v_mov_b32 v{TV}, 1\nv_lshlrev_b32 v{TV+1}, 7, v{vL}\ns_mov_b64 exec, {0xff if col else 1}")
    a(f"buffer_atomic_add v{TV}, v{TV+1}, s[{S_WS}:{S_WS+3}], s{T} offen sc1")
    a("s_mov_b64 exec, -1")

def poll(a, kind, group_s, n):
    col = kind in COLK
    a(f"s_lshl_b32 s{T}, s{group_s}, {10 if col else 7}\ns_add_u32 s{T}, s{T}, {FL[kind]*128}\ns_add_u32 s{T}, s{T}, s{sFL}")
    if col: a(f"s_lshr_b32 s{T+1}, s{sI}, 2\ns_lshl_b32 s{T+1}, s{T+1}, 7\ns_add_u32 s{T}, s{T}, s{T+1}")
    a(f"s_mov_b64 exec, {1 if col else 0xff}\ns_mov_b32 s{T+1}, {SPIN}")
    LP = a.label(); LD = a.label()
    a(f"{LP}:")
    a(f"buffer_load_dword v{TV}, v{vL16}, s[{S_WS}:{S_WS+3}], s{T} offen sc1")
    a(f"s_waitcnt vmcnt(0)\nv_cmp_ne_u32 vcc, {n if col else 1}, v{TV}")
    a(f"s_cbranch_vccz {LD}")
    a(f"s_sub_u32 s{T+1}, s{T+1}, 1\ns_cmp_lg_u32 s{T+1}, 0\ns_cbranch_scc1 {LP}")
    a(f"{LD}:\ns_mov_b64 exec, -1")

def if_wave_eq(a, w, body):
    L = a.label()
    a(f"s_cmp_lg_u32 s{sW}, {w}\ns_cbranch_scc1 {L}")
    body()
    a(f"{L}:")

def qkv_src(u): return (u >> 1)*64*3072 + (1 + (u & 1))*1024 if u < 16 else (u-16)*64*3072

def qkv_base8(a, s):
    a(f"s_mul_i32 s{s}, s{sW}, {8*3072}\ns_lshl_b32 s{T}, s{sJ}, 7\ns_add_u32 s{s}, s{s}, s{T}")

def qkv_piece8(a, s, u):
    a(f"s_add_u32 m0, s{sVW}, {(u % 12)*8192}\ns_add_u32 s{T}, s{s}, {qkv_src(u)}")
    a(f"buffer_load_dwordx4 v{vWQ}, s[{S_QKV}:{S_QKV+3}], s{T} offen lds")

def w2_dma(a, f):
    a(f"s_add_u32 m0, s{sVW}, {SVO + ((f+4) % 8)*8192}\ns_add_u32 s{T}, s{sW2S}, {f*16*4096}")
    a(f"buffer_load_dwordx4 v{vF2}, s[{S_W2}:{S_W2+3}], s{T} offen lds")

def frag_reads(dst, vaddr, off):
    p, n = dst[0], int(dst[1:])
    return [f"ds_read_b64_tr_b16 {p}[{n}:{n+1}], v{vaddr} offset:{off}", f"ds_read_b64_tr_b16 {p}[{n+2}:{n+3}], v{vaddr} offset:{off+256}"]

W2V = 32
def w2_reg(f): return f"v{W2V+4*f}" if f < 4 else f"a{4*(f-4)}"
def w2_reads(f): return frag_reads(w2_reg(f), vTRF, ((f+4) % 8)*8192)

def prologue(a):
    a(f"s_cmp_ge_u32 s2, 256\ns_cbranch_scc1 L_end")
    for s, n in ((S_XS, "x"), (S_QKV, "wqkv"), (S_WS, "ws"), (S_WO, "wo"), (S_W1, "w1"), (S_W2, "w2"), (S_B1, "b1"), (S_B2, "b2"), (S_DBG, "dbg")):
        a(f"s_load_dwordx2 s[{s}:{s+1}], s[0:1], {KA[n]}")
        a(f"s_mov_b32 s{s+2}, {hex(SZ[n])}\ns_mov_b32 s{s+3}, 0x00020000")
    a(f"s_load_dwordx2 s[{sOUT}:{sOUT+1}], s[0:1], {KA['out']}")
    a(f"s_mov_b32 s{S_XD+2}, {hex(SZ['x'])}\ns_mov_b32 s{S_XD+3}, 0x00020000")
    a(f"s_and_b32 s{sI}, s2, 7\ns_lshl_b32 s{sI}, s{sI}, 2\ns_bfe_u32 s{T}, s2, 0x20003\ns_or_b32 s{sI}, s{sI}, s{T}\ns_lshr_b32 s{sJ}, s2, 5")
    a(f"v_lshrrev_b32 v{vL}, 6, v0\ns_nop 0\nv_readfirstlane_b32 s{sW}, v{vL}\nv_and_b32 v{vL}, 63, v0")
    a(f"v_lshrrev_b32 v{vN}, 3, v0\nv_and_b32 v{vC}, 7, v0\nv_lshlrev_b32 v{vL16}, 4, v{vL}")
    a(f"s_lshl_b32 s{sXO}, s{sI}, 16\ns_lshl_b32 s{T}, s{sJ}, 7\ns_add_u32 s{sXO}, s{sXO}, s{T}")
    a(f"s_mov_b32 s{sL}, 0\ns_mov_b32 s{sLB}, 0\ns_mov_b32 s{sFL}, {WS_FLAG}")
    if C.stamp: a("v_mov_b32 v6, 0\nv_mov_b32 v7, 0")
    a(f"v_lshrrev_b32 v40, 3, v{vL}\nv_bfe_u32 v41, v{vL}, 4, 1\nv_lshlrev_b32 v41, 2, v41\nv_and_b32 v42, 7, v{vL}\nv_xor_b32 v41, v41, v42\nv_lshlrev_b32 v41, 4, v41")
    a(f"v_mul_u32_u24 v{vWQ}, 3072, v40\nv_add_u32 v{vWQ}, v{vWQ}, v41")
    a(f"s_lshl_b32 s{sVW}, s{sW}, 10\ns_add_u32 s{sVW}, s{sVW}, {V}")
    a(f"v_bfe_u32 v41, v{vN}, 1, 3\nv_xor_b32 v41, v41, v{vC}\nv_lshlrev_b32 v41, 4, v41\nv_lshl_add_u32 v{vXD}, v{vN}, 10, v41")
    a(f"v_bfe_u32 v41, v{vN}, 1, 1\nv_bfe_u32 v42, v{vN}, 2, 1\nv_and_b32 v{vN}, 0x39, v{vN}\nv_lshl_add_u32 v{vN}, v41, 2, v{vN}\nv_lshl_add_u32 v{vN}, v42, 1, v{vN}")
    a(f"v_lshlrev_b32 v{vXO}, 10, v{vN}\nv_lshl_add_u32 v{vXO}, v{vC}, 4, v{vXO}")
    a("s_waitcnt lgkmcnt(0)")
    stamp(a, "start")
    a(f"s_add_u32 s{S_XD}, s{S_WS}, {WS_X2}\ns_addc_u32 s{S_XD+1}, s{S_WS+1}, 0")

def prologue2(a):
    a(f"v_lshrrev_b32 v42, 2, v{vL}\nv_and_b32 v43, 3, v{vL}\nv_lshlrev_b32 v43, 4, v43")
    a(f"v_lshl_add_u32 v{vF2}, v42, 12, v43")
    a(f"v_lshrrev_b32 v42, 5, v{vL}\nv_lshlrev_b32 v42, 3, v42\nv_bfe_u32 v43, v{vL}, 2, 2\nv_add_u32 v42, v42, v43\nv_lshlrev_b32 v{vTRF}, 6, v42")
    a(f"v_bfe_u32 v43, v{vL}, 4, 1\nv_lshl_add_u32 v{vTRF}, v43, 5, v{vTRF}\nv_and_b32 v43, 3, v{vL}\nv_lshl_add_u32 v{vTRF}, v43, 3, v{vTRF}")
    a(f"v_add_u32 v{vTRF}, s{sVW}, v{vTRF}\nv_add_u32 v{vTRF}, {SVO}, v{vTRF}")
    a(f"s_lshr_b32 s{sW2S}, s{sW}, 1\ns_mul_i32 s{sW2S}, s{sW2S}, {448*4096}\ns_lshl_b32 s{T}, s{sI}, 7\ns_add_u32 s{sW2S}, s{sW2S}, s{T}")
    a(f"s_and_b32 s{T}, s{sW}, 1\ns_lshl_b32 s{T}, s{T}, 6\ns_add_u32 s{sW2S}, s{sW2S}, s{T}")

def tlb_touch(a):
    if not C.tlb: return
    a(f"s_sub_u32 s{T+4}, s{sW}, 4\ns_lshl_b32 s{T}, s{T+4}, 21")
    for k in range(4): a(f"s_add_u32 s{T+1}, s{T}, {(k & 1)*8*MB + (k >> 1)*LSTRIDE}\ns_buffer_load_dword s86, s[{S_WS}:{S_WS+3}], s{T+1}")
    for srd in (S_W1, S_W2): a(f"s_buffer_load_dword s86, s[{srd}:{srd+3}], s{T}")
    a(f"s_lshl_b32 s{T}, s{T+4}, 19\ns_load_dword s86, s[{sOUT}:{sOUT+1}], s{T}")
    a(f"s_buffer_load_dword s86, s[{S_WO}:{S_WO+3}], 0\ns_buffer_load_dword s86, s[{S_B1}:{S_B1+3}], 0\ns_buffer_load_dword s86, s[{S_B2}:{S_B2+3}], 0")

def init_sync(a):
    def body():
        a("v_mov_b32 v44, 0\nv_mov_b32 v45, 0\nv_mov_b32 v46, 0\nv_mov_b32 v47, 0")
        a(f"s_lshl_b32 s{T}, s2, 10\ns_add_u32 s{T}, s{T}, {WS_ST}\ns_add_u32 s{T+1}, s{T}, {LSTRIDE}")
        a(f"buffer_store_dwordx4 v[44:47], v{vL16}, s[{S_WS}:{S_WS+3}], s{T} offen sc1")
        a(f"buffer_store_dwordx4 v[44:47], v{vL16}, s[{S_WS}:{S_WS+3}], s{T+1} offen sc1")
        a(f"s_lshl_b32 s{T}, s2, 9\ns_add_u32 s{T}, s{T}, {WS_FLAG}\ns_mov_b32 exec_hi, 0")
        a(f"buffer_store_dwordx4 v[44:47], v{vL16}, s[{S_WS}:{S_WS+3}], s{T} offen sc1")
        a(f"s_getreg_b32 s{T+1}, hwreg(HW_REG_XCC_ID, 0, 4)\ns_mov_b64 exec, 1\nv_mov_b32 v48, s{T+1}")
        a(f"s_lshl_b32 s{T}, s{sI}, 3\ns_add_u32 s{T}, s{T}, s{sJ}\ns_lshl_b32 s{T}, s{T}, 4\ns_add_u32 s{T}, s{T}, {WS_XT}")
        a(f"buffer_store_dword v48, v{vL16}, s[{S_WS}:{S_WS+3}], s{T} offen sc1")
        a("s_mov_b64 exec, -1")
    if_wave_eq(a, 3, body)

def init_arrive(a):
    L = a.label()
    a(f"s_cmp_lg_u32 s{sW}, 3\ns_cbranch_scc1 {L}")
    a(f"v_mov_b32 v{TV}, 1\nv_mov_b32 v{TV+1}, 0\ns_and_b32 s{T}, s2, 63\ns_lshl_b32 s{T}, s{T}, 2\ns_mov_b64 exec, 1")
    a(f"buffer_atomic_add v{TV}, v{TV+1}, s[{S_DBG}:{S_DBG+3}], s{T} offen sc1")
    a(f"s_mov_b64 exec, -1\n{L}:")

def wait_init(a, vaddr):
    a(f"s_mov_b32 s{T+1}, {SPIN}")
    LP = a.label(); LD = a.label()
    a(f"{LP}:\nv_cmp_gt_u32 vcc, 4, v{TV+2}\ns_cbranch_vccz {LD}")
    a(f"buffer_load_dword v{TV+2}, v{vaddr}, s[{S_DBG}:{S_DBG+3}], 0 offen sc1\ns_waitcnt vmcnt(0)")
    a(f"s_sub_u32 s{T+1}, s{T+1}, 1\ns_cmp_lg_u32 s{T+1}, 0\ns_cbranch_scc1 {LP}")
    a(f"{LD}:\ns_mov_b64 exec, -1")

class VM:
    def __init__(self): self.ops = []
    def add(self, tag, n=1): self.ops += [tag]*n
    def need(self, *tags):
        last = max(k for k, t in enumerate(self.ops) if t in tags)
        return min(63, len(self.ops) - 1 - last)

vXD = 15
TAB = V
WS_ST2 = 12*MB + 512*1024
WS_CS = 13*MB

def x_dma(a):
    a(f"s_lshl_b32 s{T}, s{sI}, 16\ns_lshl_b32 s{T+1}, s{sW}, 10")
    for q in range(8):
        a(f"s_add_u32 m0, s{T+1}, {E + q*8192 - q*128}\ns_nop 0" if q else f"s_mov_b32 m0, s{T+1}\ns_nop 0")
        a(f"buffer_load_dwordx4 v{vXD}, s[{S_XS}:{S_XS+3}], s{T} offen offset:{128*q} sc1 lds")

def split_hi_lo(a, src, hi2, lo2, t, neg=False):
    if neg: a(f"v_sub_f32 v{src}, 0, v{src}")
    a(f"v_cvt_pk_bf16_f32 v{t}, v{src}, v{src}\nv_and_b32 v{t}, 0xffff0000, v{t}\nv_sub_f32 v{t+1}, v{src}, v{t}")

def helper_setup(a):
    src, dst = T+2, T+3
    a(f"s_sub_u32 s{dst}, s{sW}, 4\ns_mul_i32 s{src}, s{dst}, {16*3072}\ns_lshl_b32 s{T}, s{sJ}, 7\ns_add_u32 s{src}, s{src}, s{T}")
    a(f"s_lshl_b32 s{T}, s{dst}, 4\nv_lshrrev_b32 v40, 2, v{vL}\nv_add_u32 v40, s{T}, v40")
    a(f"s_lshl_b32 s{dst}, s{dst}, 11\ns_add_u32 s{dst}, s{dst}, {V}")

def helper_unit(a, u, vm):
    for p in range(2):
        a(f"s_add_u32 m0, s{T+3}, {(u % 12)*8192 + p*1024}\ns_add_u32 s{T}, s{T+2}, {qkv_src(u) + p*8*3072}")
        a(f"buffer_load_dwordx4 v{vWQ}, s[{S_QKV}:{S_QKV+3}], s{T} offen lds")
    vm.add(("w", u), 2)

def helper_loop(a, layer, vm, issued, sched, LJ):
    ROW, S1, S2, G = 40, 42, 44, 48
    first = issued
    for s in range(12):
        tags = [t for t in [("x", s), ("w", 2*s+1)] if t in vm.ops]
        if s == 6 and layer == 1: tags.append("g")
        if tags: a(f"s_waitcnt vmcnt({vm.need(*tags)})")
        if s == 8: a("s_waitcnt lgkmcnt(0)")
        a("s_barrier")
        if s == 7: a(f"ds_write_b32 v{ROW}, v{S1}\nds_write_b32 v{ROW}, v{S2} offset:256")
        for _ in range(sched[s]):
            assert issued < 2*s + 12 and issued < 24
            helper_unit(a, issued, vm); issued += 1
        assert s == 11 or issued >= 2*s + 4
        if s == 6:
            if layer == 1: a(f"v_add_f32 v{S1}, v{G}, v{G+2}\nv_add_f32 v{S2}, v{G+1}, v{G+3}")
            for pat in ("quad_perm:[1,0,3,2]", "quad_perm:[2,3,0,1]"):
                a("s_nop 1")
                for r in (S1, S2): a(f"v_add_f32_dpp v{r}, v{r}, v{r} {pat} row_mask:0xf bank_mask:0xf")
            a(f"v_mul_f32 v{S1}, {f2u(1/512)}, v{S1}\nv_mul_f32 v{S2}, {f2u(1/512)}, v{S2}")
            a(f"v_fma_f32 v{S2}, -v{S1}, v{S1}, v{S2}\nv_max_f32 v{S2}, 0, v{S2}\nv_add_f32 v{S2}, {f2u(1e-5)}, v{S2}\nv_rsq_f32 v{S2}, v{S2}")
            a(f"v_lshlrev_b32 v{ROW}, 2, v{ROW}\nv_add_u32 v{ROW}, {TAB}, v{ROW}")
        if s == 8 and layer == 0:
            a(f"v_lshlrev_b32 v46, 2, v{vL}\nbuffer_load_dword v{TV+2}, v46, s[{S_DBG}:{S_DBG+3}], 0 offen sc1"); vm.add("dbg")
        if s == C.w1t and layer == 0:
            a(f"s_lshl_b32 s{T}, s2, 2\ns_add_u32 s{T}, s{T}, s{sW}\ns_sub_u32 s{T}, s{T}, 4\ns_mul_i32 s{T+1}, s{T}, {56*128}\nv_min_u32 v47, 55, v{vL}\nv_lshlrev_b32 v47, 7, v47")
            a(f"buffer_load_dword v52, v47, s[{S_W1}:{S_W1+3}], s{T+1} offen")
            a(f"s_lshl_b32 s{T+1}, s{T}, 9\nv_and_b32 v47, 0x180, v47\nbuffer_load_dword v53, v47, s[{S_WO}:{S_WO+3}], s{T+1} offen")
            vm.add("t", 2)
    assert issued == 24
    def w4():
        if layer == 0:
            a(f"s_waitcnt vmcnt({vm.need('dbg')})")
            wait_init(a, 46)
        publish(a, "KV", sJ)
    if_wave_eq(a, 4, w4)
    a("s_barrier")
    if_wave_eq(a, 4, lambda: poll(a, "KV", sJ, 32))
    a(f"s_waitcnt vmcnt(0)\ns_branch {LJ}")

def phase1(a):
    LC = "L_p1_cons"; LJ = "L_p1_join"
    a(f"s_cmp_lt_u32 s{sW}, 4\ns_cbranch_scc1 {LC}")
    helper_setup(a)
    a(f"v_and_b32 v41, 3, v{vL}\nv_lshlrev_b32 v41, 9, v41\nv_lshl_add_u32 v41, v40, 3, v41\ns_lshl_b32 s{T}, s{sI}, 12\ns_add_u32 s{T}, s{T}, {WS_ST2}")
    a(f"buffer_load_dwordx2 v[48:49], v41, s[{S_WS}:{S_WS+3}], s{T} offen sc1\nbuffer_load_dwordx2 v[50:51], v41, s[{S_WS}:{S_WS+3}], s{T} offen offset:2048 sc1")
    vm = VM()
    for q in range(8): vm.add(("x", q))
    vm.add("g", 2)
    helper_loop(a, 1, vm, 12, [int(c) for c in C.hs1], LJ)
    a(f"{LC}:")
    tt, ch = T+2, T+3
    a(f"s_and_b32 s{tt}, s{sW}, 1\ns_lshr_b32 s{ch}, s{sW}, 1")
    XA = 40
    a(f"v_and_b32 v44, 31, v{vL}\ns_lshl_b32 s{T}, s{tt}, 5\nv_add_u32 v44, s{T}, v44\nv_lshlrev_b32 v38, 2, v44\nv_add_u32 v38, {TAB}, v38")
    a(f"v_bfe_u32 v45, v{vL}, 1, 3\nv_lshrrev_b32 v46, 5, v{vL}\nv_xor_b32 v45, v45, v46\nv_lshlrev_b32 v45, 4, v45\nv_lshl_add_u32 v{XA}, v44, 7, v45")
    for m in range(1, 4): a(f"v_xor_b32 v{XA+m}, {32*m}, v{XA}")
    a(f"s_lshl_b32 s{T}, s{tt}, 7\ns_add_u32 s{T}, s{T}, {TAB+256}\nv_lshlrev_b32 v37, 4, v46\nv_add_u32 v37, s{T}, v37")
    WL, WH = 44, 45
    tr_addr(a, WL, f"s{ch}", False, 46, 47)
    a(f"v_add_u32 v{WL}, {V}, v{WL}\nv_add_u32 v{WH}, {6*8192}, v{WL}")
    AK, AV, AQ = 48, 64, 80
    CS, SEL = 20, 32
    a(f"v_and_b32 v46, 31, v{vL}\nv_cmp_eq_u32 vcc, 0, v46\nv_cmp_eq_u32 s[{T+4}:{T+5}], 20, v46\ns_or_b64 vcc, vcc, s[{T+4}:{T+5}]\nv_mov_b32 v47, 0x3f803f80\ns_nop 1\nv_cndmask_b32 v{SEL}, 0, v47, vcc")
    for r in range(1, 4): a(f"v_mov_b32 v{SEL+r}, v{SEL}")
    csoff = T+8
    a(f"s_lshl_b32 s{csoff}, s2, 2\ns_add_u32 s{csoff}, s{csoff}, s{sW}\ns_lshl_b32 s{csoff}, s{csoff}, 10\ns_add_u32 s{csoff}, s{csoff}, {WS_CS}")
    for r in range(12): a(f"v_mov_b32 v{CS+r}, 0")
    def fr(buf, n):
        if buf == 0: return ("a", n)
        return ("a", 64+n) if n < 48 else ("v", 96 + n - 48)
    def R(buf, n, w):
        p, b = fr(buf, n); return f"{p}[{b}:{b+w-1}]"
    def wslot(u):
        s = u % 12
        return (WL, s*8192) if s < 6 else (WH, (s-6)*8192)
    def rd(s):
        buf = s & 1; out = []
        if s < 8:
            for t in range(4):
                out.append(f"ds_read_b128 {R(buf, 12*t, 4)}, v{XA+t} offset:{8192*s}")
                for seg in range(2):
                    va, off = wslot(2*s+seg)
                    for e in range(2):
                        out.append(f"ds_read_b64_tr_b16 {R(buf, 12*t+4+4*seg+2*e, 2)}, v{va} offset:{off + t*2048 + e*512}")
        else:
            for t in range(8):
                out.append(f"ds_read_b128 {R(buf, 8*t, 4)}, v{XA+(t&3)} offset:{16384*(s-8) + (t>>2)*8192}")
                va, off = wslot(2*s + (t >> 2))
                for e in range(2):
                    out.append(f"ds_read_b64_tr_b16 {R(buf, 8*t+4+2*e, 2)}, v{va} offset:{off + (t&3)*2048 + e*512}")
        return out
    def mf(s):
        buf = s & 1; out = []
        if s < 8:
            for t in range(4):
                z = s == 0 and t == 0
                out.append(f"v_mfma_f32_32x32x16_bf16 v[{AK}:{AK+15}], {R(buf, 12*t+4, 4)}, {R(buf, 12*t, 4)}, " + ("0" if z else f"v[{AK}:{AK+15}]"))
                out.append(f"v_mfma_f32_32x32x16_bf16 v[{AV}:{AV+15}], {R(buf, 12*t, 4)}, {R(buf, 12*t+8, 4)}, " + ("0" if z else f"v[{AV}:{AV+15}]"))
        else:
            for t in range(8):
                out.append(f"v_mfma_f32_32x32x16_bf16 v[{AQ}:{AQ+15}], {R(buf, 8*t+4, 4)}, {R(buf, 8*t, 4)}, " + ("0" if s == 8 and t == 0 else f"v[{AQ}:{AQ+15}]"))
        return out
    def csum(s):
        buf = s & 1
        L = a.label()
        a(f"s_cmp_lg_u32 s{sL}, 0\ns_cbranch_scc1 {L}")
        if s < 8:
            for t in range(4):
                for seg in range(2):
                    a(f"v_mfma_f32_16x16x32_bf16 v[{CS+4*seg}:{CS+4*seg+3}], v[{SEL}:{SEL+3}], {R(buf, 12*t+4+4*seg, 4)}, v[{CS+4*seg}:{CS+4*seg+3}]")
        else:
            for t in range(8):
                a(f"v_mfma_f32_16x16x32_bf16 v[{CS+8}:{CS+11}], v[{SEL}:{SEL+3}], {R(buf, 8*t+4, 4)}, v[{CS+8}:{CS+11}]")
        a(f"{L}:")
    def inter(m, r, per):
        per = max(per, -(-len(r)//len(m)))
        for x in range(len(m)):
            a(m[x])
            for y in r[x*per:(x+1)*per]: a(y)
    a(f"s_lshl_b32 s{T+4}, s{sI}, 1\ns_add_u32 s{T+4}, s{T+4}, s{tt}")
    a(f"s_lshl_b32 s{T+5}, s{sJ}, 2\ns_lshl_b32 s{T+6}, s{ch}, 1\ns_add_u32 s{T+5}, s{T+5}, s{T+6}")
    a(f"s_lshl_b32 s{T+5}, s{T+5}, 6\ns_add_u32 s{T+5}, s{T+5}, s{T+4}")
    a(f"s_lshl_b32 s{T+4}, s{T+5}, 11\ns_add_u32 s{T+4}, s{T+4}, s{sLB}\ns_add_u32 s{T+5}, s{T+4}, 131072")
    assert WS_KV == 0
    a(f"v_and_b32 v46, 0x33, v{vL}\nv_bfe_u32 v47, v{vL}, 2, 1\nv_lshl_add_u32 v46, v47, 3, v46\nv_bfe_u32 v47, v{vL}, 3, 1\nv_lshl_add_u32 v46, v47, 2, v46\nv_lshlrev_b32 v46, 4, v46")
    a(f"v_bfe_u32 v39, v{vL}, 4, 1\nv_lshlrev_b32 v47, 17, v39\nv_lshrrev_b32 v39, 5, v{vL}\nv_lshl_add_u32 v47, v39, 8, v47\nv_and_b32 v39, 15, v{vL}\nv_lshl_add_u32 v47, v39, 4, v47")
    ST4 = 16
    a(f"buffer_load_dwordx4 v[{ST4}:{ST4+3}], v{vL16}, s[{S_WS}:{S_WS+3}], s{csoff} offen sc1")
    a("s_waitcnt vmcnt(8)\ns_barrier")
    stamp(a, "p1.b0")
    for x in rd(0): a(x)
    P, RB, MU, RR, AUG = 112, 128, 36, 39, 32
    def pick(dst, seg):
        L = a.label(); L2 = a.label()
        a(f"s_cmp_lg_u32 s{sL}, 0\ns_cbranch_scc1 {L}\nv_mov_b32 v{ST4+seg}, v{CS+4*seg}\n{L}:")
    def aug_w(seg, d):
        a(f"v_cvt_pk_bf16_f32 v{d}, v{ST4+seg}, v{ST4+seg}\nv_and_b32 v{d+1}, 0xffff0000, v{d}\nv_sub_f32 v{d+1}, v{ST4+seg}, v{d+1}\nv_cvt_pk_bf16_f32 v{d+1}, v{d+1}, v{d+1}")
    XM = 22
    def kv_epilogue():
        a("s_waitcnt lgkmcnt(0)\ns_nop 4")
        pick(None, 0); pick(None, 1)
        a(f"v_sub_f32 v{MU}, 0, v{MU}\nv_cvt_pk_bf16_f32 v{XM}, v{MU}, v{MU}\nv_and_b32 v{XM+1}, 0xffff0000, v{XM}\nv_sub_f32 v{XM+1}, v{MU}, v{XM+1}\nv_cvt_pk_bf16_f32 v{XM}, v{MU}, v{XM+1}\nv_mov_b32 v{XM+1}, v{XM}")
        aug_w(0, 24); aug_w(1, 26)
        a("s_nop 1")
        a(f"v_mfma_f32_32x32x8_bf16 v[{AK}:{AK+15}], v[24:25], v[{XM}:{XM+1}], v[{AK}:{AK+15}]")
        a(f"v_mfma_f32_32x32x8_bf16 v[{AV}:{AV+15}], v[{XM}:{XM+1}], v[26:27], v[{AV}:{AV+15}]")
        a("s_nop 10")
        for r in range(16): a(f"v_mul_f32 v{AK+r}, v{AK+r}, v{RR}")
        for r in range(8): a(f"v_cvt_pk_bf16_f32 v{P+r}, v{AK+2*r}, v{AK+2*r+1}")
        a(f"buffer_store_dwordx4 v[{P}:{P+3}], v46, s[{S_WS}:{S_WS+3}], s{T+4} offen sc1")
        a(f"buffer_store_dwordx4 v[{P+4}:{P+7}], v46, s[{S_WS}:{S_WS+3}], s{T+5} offen sc1")
        for r in range(16): a(f"v_mul_f32 v{AV+r}, v{AV+r}, v{RB+r}")
        for r in range(8): a(f"v_cvt_pk_bf16_f32 v{P+8+r}, v{AV+2*r}, v{AV+2*r+1}")
        a(f"buffer_store_dwordx4 v[{P+8}:{P+11}], v47, s[{S_WS}:{S_WS+3}], s{T+4} offen offset:1024 sc1")
        a(f"buffer_store_dwordx4 v[{P+12}:{P+15}], v47, s[{S_WS}:{S_WS+3}], s{T+4} offen offset:1536 sc1")
        stamp(a, "p1.kvst")
    for s in range(11):
        vmw = f"vmcnt({7-s}) " if s < 7 else ("vmcnt(0) " if s in (7, 10) else "")
        a(f"s_waitcnt {vmw}lgkmcnt(0)\ns_barrier")
        r = rd(s+1)
        if s == 7:
            r = [f"ds_read_b32 v{MU}, v38", f"ds_read_b32 v{RR}, v38 offset:256"] + [f"ds_read_b128 v[{RB+4*k}:{RB+4*k+3}], v37 offset:{32*k}" for k in range(4)] + r
        inter(mf(s), r, C.p1per)
        csum(s)
        if s == 7: kv_epilogue()
    a("s_waitcnt lgkmcnt(0)\ns_barrier")
    for x in mf(11): a(x)
    csum(11)
    stamp(a, "p1.mfma")
    a(f"s_lshl_b32 s{T+6}, s{ch}, 12\ns_lshl_b32 s{T+7}, s{tt}, 10\ns_add_u32 s{T+6}, s{T+6}, s{T+7}\ns_add_u32 s{T+6}, s{T+6}, {QX}\nv_add_u32 v46, s{T+6}, v{vL16}")
    a(f"v_mul_f32 v{RR}, {f2u(0.25*1.4426950408889634)}, v{RR}\ns_nop 2")
    pick(None, 2)
    aug_w(2, 24)
    a("s_nop 1")
    a(f"v_mfma_f32_32x32x8_bf16 v[{AQ}:{AQ+15}], v[24:25], v[{XM}:{XM+1}], v[{AQ}:{AQ+15}]")
    a(f"buffer_store_dwordx4 v[{ST4}:{ST4+3}], v{vL16}, s[{S_WS}:{S_WS+3}], s{csoff} offen sc1")
    a("s_nop 10")
    for r in range(16): a(f"v_mul_f32 v{AQ+r}, v{AQ+r}, v{RR}")
    for r in range(8): a(f"v_cvt_pk_bf16_f32 v{P+r}, v{AQ+2*r}, v{AQ+2*r+1}")
    a(f"ds_write_b128 v46, v[{P}:{P+3}]\nds_write_b128 v46, v[{P+4}:{P+7}] offset:2048\ns_waitcnt lgkmcnt(0)")
    a(f"{LJ}:")

hh, kh, head, kvs, w1s, w1c, wos, tch, ring = T+2, T+3, T+4, T+5, T+6, T+7, T+8, T+9, T+10
TD, VA_, IDX, TA, vF1, vWO, SGA, Q, S, O, KR, VR = 16, 18, 19, 20, 21, 22, 23, 24, [32, 48], [64, 80], 96, 112
CST = E + 33792
CMB = E + 37888

def phase2(a):
    t0, t1 = S[0], S[0]+1
    a(f"s_and_b32 s{hh}, s{sW}, 3\ns_lshr_b32 s{kh}, s{sW}, 2\ns_lshl_b32 s{head}, s{sJ}, 2\ns_add_u32 s{head}, s{head}, s{hh}")
    a(f"s_lshl_b32 s{kvs}, s{head}, 17\ns_lshl_b32 s{T}, s{kh}, 16\ns_add_u32 s{kvs}, s{kvs}, s{T}\ns_add_u32 s{kvs}, s{kvs}, s{sLB}")
    a(f"s_lshl_b32 s{ring}, s{sW}, 12\ns_add_u32 s{ring}, s{ring}, 1024")
    a(f"v_lshrrev_b32 v{t0}, 5, v{vL}\nv_lshlrev_b32 v{VA_}, 8, v{t0}\nv_and_b32 v{t0}, 15, v{vL}\nv_lshl_add_u32 v{VA_}, v{t0}, 4, v{VA_}\nv_add_u32 v{VA_}, s{ring}, v{VA_}")
    a(f"v_add_u32 v{t1}, 4, v{t0}\nv_and_b32 v{t1}, 8, v{t1}\nv_lshlrev_b32 v{t1}, 3, v{t1}\nv_add_u32 v{t1}, {CST}, v{t1}")
    a(f"v_and_b32 v{t0}, 11, v{vL}\nv_cmp_eq_u32 vcc, 0, v{t0}\nv_add_u32 v{t0}, 16, v{t1}\ns_nop 0\nv_cndmask_b32 v{t1}, v{t1}, v{t0}, vcc")
    a(f"v_and_b32 v{t0}, 16, v{vL}\nv_cmp_eq_u32 vcc, 0, v{t0}\ns_nop 1\nv_cndmask_b32 v{VA_}, v{t1}, v{VA_}, vcc")
    a(f"v_and_b32 v{t0}, 3, v{vL}\nv_cmp_eq_u32 vcc, 1, v{t0}\nv_mov_b32 v{t1}, 0x3f803f80\ns_nop 0\nv_cndmask_b32 v{t0+4}, 0, v{t1}, vcc")
    a(f"v_mov_b32 v{t0+5}, v{t0+4}\nv_mov_b32 v{t0+6}, v{t0+4}\nv_mov_b32 v{t0+7}, v{t0+4}")
    a(f"s_lshl_b32 s{T}, s{sW}, 9\ns_add_u32 s{T}, s{T}, {CST}\nv_and_b32 v{t0}, 0x1f0, v{vL16}\nv_add_u32 v{t0}, s{T}, v{t0}\nds_write_b128 v{t0}, v[{t0+4}:{t0+7}]")
    a(f"v_mov_b32 v{IDX}, 0xdddddddd")
    for r in range(32): a(f"v_mov_b32 v{O[0]+r}, 0")
    if C.now1: a(f"s_mov_b32 s{S_W1+2}, 0")
    a(f"s_cmp_lg_u32 s{sL}, 0\ns_cselect_b32 s{S_QKV+2}, 0, s{S_QKV+2}")
    a(f"s_lshr_b32 s{w1s}, s{sW}, 1\ns_mul_i32 s{w1s}, s{w1s}, {512*3584}\ns_lshl_b32 s{T}, s{sI}, 7\ns_add_u32 s{w1s}, s{w1s}, s{T}")
    a(f"s_and_b32 s{T+1}, s{sW}, 1\ns_lshl_b32 s{T+1}, s{T+1}, 6\ns_add_u32 s{w1s}, s{w1s}, s{T+1}\ns_sub_u32 s{w1s}, s{w1s}, {16*3584}")
    if C.tmix:
        a(f"s_lshl_b32 s{tch}, s{sJ}, 2\ns_and_b32 s{T+1}, s{sI}, 3\ns_add_u32 s{tch}, s{tch}, s{T+1}\ns_lshl_b32 s{tch}, s{tch}, 3\ns_add_u32 s{tch}, s{tch}, s{sW}\ns_mul_i32 s{tch}, s{tch}, {7*4096}")
        a(f"s_lshr_b32 s{T+1}, s{sI}, 2\ns_lshl_b32 s{T+1}, s{T+1}, 9\ns_add_u32 s{tch}, s{tch}, s{T+1}")
        a(f"v_lshrrev_b32 v{TA}, 2, v{vL}\nv_lshlrev_b32 v{TA}, 12, v{TA}\nv_and_b32 v{t1}, 3, v{vL}\nv_lshl_add_u32 v{TA}, v{t1}, 7, v{TA}")
    else:
        a(f"s_lshl_b32 s{tch}, s{sJ}, 3\ns_add_u32 s{tch}, s{tch}, s{sW}\ns_mul_i32 s{tch}, s{tch}, {28*4096}\ns_add_u32 s{tch}, s{tch}, s{T}")
        a(f"v_lshlrev_b32 v{TA}, 12, v{vL}")
    a(f"v_cmp_gt_u32 vcc, 28, v{vL}\nv_mov_b32 v{t1}, 0x40000000\ns_nop 0\nv_cndmask_b32 v{TA}, v{t1}, v{TA}, vcc")
    a(f"s_lshl_b32 s{wos}, s{sW}, 13\ns_lshl_b32 s{T}, s{sJ}, 7\ns_add_u32 s{wos}, s{wos}, s{T}")
    a(f"s_lshl_b32 s{T}, s{hh}, 11\ns_add_u32 s{T}, s{T}, {QX}\nv_add_u32 v{t1}, s{T}, v{vL16}\nv_subrev_u32 v{SGA}, {SVO}, v{vTRF}")
    a(f"v_lshrrev_b32 v{t0+2}, 2, v{vL}\nv_and_b32 v{t0+3}, 3, v{vL}\nv_lshlrev_b32 v{t0+3}, 4, v{t0+3}\nv_mul_u32_u24 v{vF1}, 3584, v{t0+2}\nv_add_u32 v{vF1}, v{vF1}, v{t0+3}")
    a(f"v_lshrrev_b32 v{t0+2}, 3, v{vL}\nv_lshlrev_b32 v{t0+2}, 11, v{t0+2}\nv_sub_u32 v{vWO}, v{vWQ}, v{t0+2}")
    a(f"s_sub_u32 s{ring}, s{ring}, 1024")
    a("s_waitcnt lgkmcnt(0)\ns_barrier")
    stamp(a, "p2.start")
    vm = VM()
    def kv_issue(t):
        k = KR + 4*(t & 3)
        a(f"s_add_u32 m0, s{ring}, {(t & 3)*1024}")
        a(f"buffer_load_dwordx4 v[{k}:{k+3}], v{vL16}, s[{S_WS}:{S_WS+3}], s{kvs} offen sc1")
        a(f"buffer_load_dwordx4 v{vL16}, s[{S_WS}:{S_WS+3}], s{kvs} offen offset:1024 sc1 lds")
        a(f"s_addk_i32 s{kvs}, 2048")
        vm.add(("kv", t), 2)
    def v_read(t):
        v = VR + 8*(t & 1)
        a(f"ds_read_b128 v[{v}:{v+3}], v{VA_} offset:{(t & 3)*1024}\nds_read_b128 v[{v+4}:{v+7}], v{VA_} offset:{(t & 3)*1024 + 512}")
    def w1_issue(f):
        if f % 4 == 0:
            a(f"s_and_b32 s{w1c}, s{sJ}, {C.jrot}\ns_add_u32 s{w1c}, s{w1c}, {f//4}\ns_and_b32 s{w1c}, s{w1c}, 7\ns_mul_i32 s{w1c}, s{w1c}, {64*3584}\ns_add_u32 s{w1c}, s{w1c}, s{w1s}")
        a(f"s_add_u32 m0, s{sVW}, {STG - V + (f & 3)*8192}\ns_add_u32 s{w1c}, s{w1c}, {16*3584}")
        a(f"buffer_load_dwordx4 v{vF1}, s[{S_W1}:{S_W1+3}], s{w1c} offen lds")
        vm.add(("w1", f))
    def wo_issue(u):
        a(f"s_add_u32 m0, s{sVW}, {SVO + u*8192}\ns_add_u32 s{T}, s{wos}, {u*65536}")
        a(f"buffer_load_dwordx4 v{vWO}, s[{S_WO}:{S_WO+3}], s{T} offen lds")
        vm.add(("wo", u))
    def touch(n):
        a(f"s_cmp_eq_u32 s{sJ}, {n}\ns_cselect_b32 s{T}, s{tch}, 0x40000000")
        a(f"buffer_load_dword v{TD}, v{TA}, s[{S_W2}:{S_W2+3}], s{T} offen")
        vm.add(("t", n))
    def ex(s, r0, r1):
        for r in range(r0, r1): a(f"v_exp_f32 v{s+r}, v{s+r}")
    def setprio(p):
        L = a.label()
        a(f"s_cmp_lg_u32 s{kh}, 0\ns_cbranch_scc1 {L}\ns_setprio {p}\n{L}:")
    def qk(q, t): a(f"v_mfma_f32_32x32x16_bf16 v[{S[q]}:{S[q]+15}], v[{KR+4*(t&3)}:{KR+4*(t&3)+3}], v[{Q+4*q}:{Q+4*q+3}], 0")
    def pv(q, t, h): a(f"v_smfmac_f32_32x32x32_bf16 v[{O[q]}:{O[q]+15}], v[{VR+8*(t&1)+4*h}:{VR+8*(t&1)+4*h+3}], v[{S[q]+8*h}:{S[q]+8*h+7}], v{IDX}")
    kv_issue(0); kv_issue(1)
    a(f"ds_read_b128 v[{Q}:{Q+3}], v{t1}\nds_read_b128 v[{Q+4}:{Q+7}], v{t1} offset:1024")
    if C.prio: a("s_setprio 1")
    a(f"s_waitcnt vmcnt(2) lgkmcnt(0)")
    qk(0, 0)
    v_read(0)
    kv_issue(2); kv_issue(3)
    a(f"s_lshl_b32 s{T}, s{sI}, 7\ns_add_u32 s{T}, s{T}, {WS_XT}\nv_and_b32 v17, 0x70, v{vL16}")
    a(f"buffer_load_dword v17, v17, s[{S_WS}:{S_WS+3}], s{T} offen sc1"); vm.add("xt")
    stamp(a, "p2.kv0")
    a("s_nop 1")
    per = C.pper; low = C.plow
    for t in range(32):
        for q in range(2):
            hidx = 2*t + q
            if C.prio and hidx % per == 0: setprio(2)
            if C.prio and hidx % per == per - low: setprio(0)
            ex(S[q], 0, 2)
            if q == 0:
                if t > 0: pv(1, t-1, 1)
            else: pv(0, t, 1)
            ex(S[q], 2, 5)
            if q == 0:
                qk(1, t)
                need = [("kv", t+1)] if t < 31 else []
                if not C.nox and 3 <= t < 31: need.append(("w1", t-3))
                a(f"s_waitcnt vmcnt({vm.need(*need) if need else 63}) lgkmcnt(0)")
                if t+4 < 32: kv_issue(t+4)
                if t+1 < 32: v_read(t+1)
                if not C.nox and not C.split:
                    w1_issue(t)
                    if 3 <= t < 31:
                        for x in frag_reads(f"a{4*(t-3)}", SGA, ((t-3) & 3)*8192): a(x)
            else:
                if t < 31: qk(0, t+1)
                if not C.nox:
                    if C.split:
                        w1_issue(t)
                        if 3 <= t < 31:
                            for x in frag_reads(f"a{4*(t-3)}", SGA, ((t-3) & 3)*8192): a(x)
                    if t == 28 and C.pret:
                        a(f"s_lshl_b32 s{T}, s{sI}, 1\ns_add_u32 s{T}, s{T}, s{kh}\ns_lshl_b32 s{T}, s{T}, 5\ns_add_u32 s{T}, s{T}, s{head}\ns_lshl_b32 s{T}, s{T}, 10")
                        a(f"s_add_u32 s{T}, s{T}, {WS_O}\ns_add_u32 s{T}, s{T}, s{sLB}")
                        a(f"buffer_load_dword v{TD}, v{vL16}, s[{S_WS}:{S_WS+3}], s{T} offen sc1")
                        a(f"s_lshl_b32 s{T}, s{sI}, 3\ns_add_u32 s{T}, s{T}, s{sJ}\ns_lshl_b32 s{T+1}, s{T}, 10\ns_add_u32 s{T+1}, s{T+1}, {WS_ST}\ns_add_u32 s{T+1}, s{T+1}, s{sLB}")
                        a(f"buffer_load_dword v{TD}, v{vL16}, s[{S_WS}:{S_WS+3}], s{T+1} offen sc1")
                        a(f"buffer_load_dword v{TD}, v{vXO}, s[{S_XD}:{S_XD+3}], s{sXO} offen sc1")
                        vm.add("pre", 3)
                    if t % 4 == 1: wo_issue(t//4)
                    if t % 4 == 3 and C.stouch == 1: touch(t//4)
                    if t % 3 == 2 and t < 24 and C.stouch == 2: touch(t//3)
                    if t == C.t2:
                        a(f"buffer_load_dword v{TD}, v{TA}, s[{S_W2}:{S_W2+3}], s{tch} offen"); vm.add("t2")
            ex(S[q], 5, 11)
            pv(q, t, 0)
            ex(S[q], 11, 16)
    a("s_nop 1")
    pv(1, 31, 1)
    if C.prio: a("s_setprio 0")
    stamp(a, "p2.loop")
    M, N = 48, 36
    a(f"v_readfirstlane_b32 s{T}, v17\ns_nop 1\nv_cmp_ne_u32 vcc, s{T}, v17\ns_nop 1\ns_cmp_eq_u64 vcc, 0\ns_cselect_b32 s{sLOC}, 1, 0")
    a(f"s_mul_i32 s{T}, s{sW}, 3072\ns_add_u32 s{T}, s{T}, {CMB}\nv_add_u32 v17, s{T}, v{vL16}")
    a(f"s_xor_b32 s{T}, s{sW}, 4\ns_mul_i32 s{T}, s{T}, 3072\ns_add_u32 s{T}, s{T}, {CMB}\nv_add_u32 v{VA_}, s{T}, v{vL16}")
    a(f"s_lshl_b32 s{T}, s{sI}, 1\ns_add_u32 s{T}, s{T}, s{kh}\ns_lshl_b32 s{T}, s{T}, 5\ns_add_u32 s{T}, s{T}, s{head}\ns_lshl_b32 s{T}, s{T}, 10")
    a(f"s_add_u32 s{T}, s{T}, {WS_O}\ns_add_u32 s{T}, s{T}, s{sLB}")
    LA = a.label(); LB = a.label()
    a(f"s_cmp_eq_u32 s{kh}, 0\ns_cbranch_scc1 {LA}")
    a(f"ds_write_b128 v17, v[{O[0]}:{O[0]+3}]\nds_write_b128 v17, v[{O[0]+4}:{O[0]+7}] offset:1024\nds_write_b32 v17, v{O[0]+8} offset:2048")
    for r in range(9): a(f"v_mov_b32 v{M+r}, v{O[1]+r}")
    a(f"s_branch {LB}\n{LA}:")
    a(f"ds_write_b128 v17, v[{O[1]}:{O[1]+3}]\nds_write_b128 v17, v[{O[1]+4}:{O[1]+7}] offset:1024\nds_write_b32 v17, v{O[1]+8} offset:2048")
    for r in range(9): a(f"v_mov_b32 v{M+r}, v{O[0]+r}")
    a(f"{LB}:")
    wo_wait = vm.need(("wo", 7)) if not C.nox else 0
    a(f"s_waitcnt vmcnt({wo_wait}) lgkmcnt(0)\ns_barrier")
    a(f"ds_read_b128 v[{N}:{N+3}], v{VA_}\nds_read_b128 v[{N+4}:{N+7}], v{VA_} offset:1024\nds_read_b32 v{N+8}, v{VA_} offset:2048")
    a("s_waitcnt lgkmcnt(0)")
    for r in range(9): a(f"v_add_f32 v{M+r}, v{M+r}, v{N+r}")
    a(f"v_add_f32 v{N}, abs(v{M}), abs(v{M+1})\nv_add_f32 v{N+1}, abs(v{M+2}), abs(v{M+3})\nv_add_f32 v{N+2}, abs(v{M+4}), abs(v{M+5})\nv_add_f32 v{N+3}, abs(v{M+6}), abs(v{M+7})")
    a(f"v_add_f32 v{N}, v{N}, v{N+1}\nv_add_f32 v{N+2}, v{N+2}, v{N+3}\nv_cmp_nge_f32 vcc, {f2u(2.0**60)}, v{M+8}\nv_add_f32 v{N}, v{N}, v{N+2}")
    a(f"s_mov_b64 s[{T+12}:{T+13}], vcc\nv_cmp_nle_f32 vcc, {f2u(2.0**-60)}, v{M+8}\ns_nop 0\ns_or_b64 s[{T+12}:{T+13}], s[{T+12}:{T+13}], vcc")
    a(f"v_cmp_ngt_f32 vcc, 0x7f800000, v{N}\ns_nop 0\ns_or_b64 s[{T+12}:{T+13}], s[{T+12}:{T+13}], vcc\ns_cbranch_scc1 L_softmax_safe\nL_softmax_done:")
    a(f"v_rcp_f32 v{M+8}, v{M+8}\ns_nop 0")
    for r in range(8): a(f"v_mul_f32 v{M+r}, v{M+r}, v{M+8}")
    for r in range(4): a(f"v_cvt_pk_bf16_f32 v{N+r}, v{M+2*r}, v{M+1+2*r}")
    rstore(a, f"buffer_store_dwordx4 v[{N}:{N+3}], v{vL16}, s[{S_WS}:{S_WS+3}], s{T} offen", bulk=True)

def softmax_safe(a):
    M = 48
    QF, KF, VF, SS, CC, OO, MX, VO = 100, 104, 108, 64, 80, 120, 116, 117
    base, cur, n = T+12, T+13, T+14
    a("L_softmax_safe:")
    L = a.label()
    for r in range(4): a(f"v_mov_b32 v{QF+r}, v{Q+r}")
    a(f"s_cmp_eq_u32 s{kh}, 0\ns_cbranch_scc1 {L}")
    for r in range(4): a(f"v_mov_b32 v{QF+r}, v{Q+4+r}")
    a(f"{L}:")
    a(f"s_lshl_b32 s{base}, s{head}, 17\ns_add_u32 s{base}, s{base}, s{sLB}")
    a(f"v_mov_b32 v{MX}, 0xff800000\ns_mov_b32 s{cur}, s{base}\ns_mov_b32 s{n}, 64")
    L1 = a.label()
    a(f"{L1}:")
    a(f"buffer_load_dwordx4 v[{KF}:{KF+3}], v{vL16}, s[{S_WS}:{S_WS+3}], s{cur} offen sc1\ns_waitcnt vmcnt(0)")
    a(f"v_mfma_f32_32x32x16_bf16 v[{SS}:{SS+15}], v[{KF}:{KF+3}], v[{QF}:{QF+3}], 0\ns_nop 15")
    for r in range(0, 16, 2): a(f"v_max3_f32 v{MX}, v{MX}, v{SS+r}, v{SS+r+1}")
    a(f"s_add_u32 s{cur}, s{cur}, 2048\ns_sub_u32 s{n}, s{n}, 1\ns_cmp_lg_u32 s{n}, 0\ns_cbranch_scc1 {L1}")
    a(f"v_mov_b32 v{VO}, v{MX}\ns_nop 1\nv_permlane32_swap_b32 v{MX}, v{VO}\ns_nop 1\nv_max_f32 v{MX}, v{MX}, v{VO}")
    for r in range(16): a(f"v_sub_f32 v{CC+r}, 0, v{MX}\nv_mov_b32 v{OO+r}, 0")
    for r in range(8): a(f"v_mov_b32 v{VF+r}, 0x3f803f80")
    a(f"v_lshrrev_b32 v{MX}, 5, v{vL}\nv_lshlrev_b32 v{VO}, 8, v{MX}\nv_and_b32 v{MX}, 15, v{vL}\nv_lshl_add_u32 v{VO}, v{MX}, 4, v{VO}")
    a(f"s_mov_b32 s{cur}, s{base}\ns_mov_b32 s{n}, 64")
    L2 = a.label()
    a(f"{L2}:")
    a(f"buffer_load_dwordx4 v[{KF}:{KF+3}], v{vL16}, s[{S_WS}:{S_WS+3}], s{cur} offen sc1")
    a("s_mov_b32 exec_lo, 0xffff\ns_mov_b32 exec_hi, 0xffff")
    a(f"buffer_load_dwordx4 v[{VF}:{VF+3}], v{VO}, s[{S_WS}:{S_WS+3}], s{cur} offen offset:1024 sc1")
    a(f"buffer_load_dwordx4 v[{VF+4}:{VF+7}], v{VO}, s[{S_WS}:{S_WS+3}], s{cur} offen offset:1536 sc1")
    a("s_mov_b64 exec, -1\ns_waitcnt vmcnt(0)")
    a(f"v_mfma_f32_32x32x16_bf16 v[{SS}:{SS+15}], v[{KF}:{KF+3}], v[{QF}:{QF+3}], v[{CC}:{CC+15}]\ns_nop 15")
    for r in range(16): a(f"v_exp_f32 v{SS+r}, v{SS+r}")
    a("s_nop 1")
    a(f"v_smfmac_f32_32x32x32_bf16 v[{OO}:{OO+15}], v[{VF}:{VF+3}], v[{SS}:{SS+7}], v{IDX}")
    a(f"v_smfmac_f32_32x32x32_bf16 v[{OO}:{OO+15}], v[{VF+4}:{VF+7}], v[{SS+8}:{SS+15}], v{IDX}\ns_nop 15")
    a(f"s_add_u32 s{cur}, s{cur}, 2048\ns_sub_u32 s{n}, s{n}, 1\ns_cmp_lg_u32 s{n}, 0\ns_cbranch_scc1 {L2}")
    for r in range(9): a(f"v_mov_b32 v{M+r}, v{OO+r}")
    a("s_branch L_softmax_done")

EOFF = 61692
def ep2_writes(acc, base, sw4k):
    off = EOFF if base >= EOFF else 0
    o = [f"ds_write_addtid_b32 v{acc+r} offset:{off + r*256}" for r in range(16)]
    o[0] = f"s_add_u32 m0, s{sw4k}, {base - off}\ns_nop 0\n" + o[0]
    return o

def ep2_read_addr(a, ra, base0, base1, sw4k, tv):
    a(f"s_and_b32 s{T}, s{sW}, 1\ns_lshl_b32 s{T}, s{T}, 2\ns_lshr_b32 s{T+1}, s{sW}, 1\ns_add_u32 s{T}, s{T}, s{T+1}\ns_lshl_b32 s{sw4k}, s{T}, 12")
    a(f"s_lshr_b32 s{T}, s{sW}, 2\ns_lshl_b32 s{T}, s{T}, 14\ns_and_b32 s{T+1}, s{sW}, 3\ns_lshl_b32 s{T+1}, s{T+1}, 10\ns_add_u32 s{T}, s{T}, s{T+1}\ns_add_u32 s{T}, s{T}, {base0}")
    a(f"v_and_b32 v{tv}, 3, v{vN}\nv_lshlrev_b32 v{ra}, 8, v{tv}\nv_bfe_u32 v{tv}, v{vN}, 2, 1\nv_lshl_add_u32 v{ra}, v{tv}, 7, v{ra}\nv_and_b32 v{tv}, 3, v{vC}\nv_lshl_add_u32 v{ra}, v{tv}, 5, v{ra}")
    a(f"v_add_u32 v{ra}, s{T}, v{ra}\nv_lshrrev_b32 v{tv}, 2, v{vC}\nv_mul_i32_i24 v{tv}, {base1 - base0}, v{tv}\nv_add_u32 v{ra}, v{ra}, v{tv}")

def ep2_sum(a, ra, add0, out):
    for k in range(4):
        a(f"ds_read_b128 v[{out+8*k}:{out+8*k+3}], v{ra} offset:{4096*k}\nds_read_b128 v[{out+8*k+4}:{out+8*k+7}], v{ra} offset:{4096*k+16}")
    a("s_waitcnt lgkmcnt(6)")
    for e in range(8): a(f"v_add_f32 v{out+e}, v{out+e}, v{add0+e}")
    a("s_waitcnt lgkmcnt(2)")
    for e in range(8): a(f"v_add_f32 v{out+8+e}, v{out+8+e}, v{out+16+e}")
    for e in range(8): a(f"v_add_f32 v{out+e}, v{out+e}, v{out+8+e}")
    a("s_waitcnt lgkmcnt(0)")
    for e in range(8): a(f"v_add_f32 v{out+e}, v{out+e}, v{out+24+e}")

def unpack8(a, dst, src):
    for e in range(4): a(f"v_lshlrev_b32 v{dst+2*e}, 16, v{src+e}\nv_and_b32 v{dst+1+2*e}, 0xffff0000, v{src+e}")

def phase3(a):
    OF, ACC, WF = 16, 48, 80
    W0, W1 = 20, 21
    tr_addr(a, W0, "0", True, 22, 23)
    a(f"s_lshr_b32 s{T+2}, s{sW}, 1\ns_lshl_b32 s{T+2}, s{T+2}, 14\ns_add_u32 s{T+2}, s{T+2}, {V+SVO}\nv_add_u32 v{W0}, s{T+2}, v{W0}\nv_xor_b32 v{W1}, 64, v{W0}")
    for t in range(8):
        for y in range(2):
            b = WF + 8*t + 4*y
            a(f"ds_read_b64_tr_b16 v[{b}:{b+1}], v{W0+y} offset:{t*2048}\nds_read_b64_tr_b16 v[{b+2}:{b+3}], v{W0+y} offset:{t*2048+1024}")
    src = T+2
    a(f"s_and_b32 s{src}, s{sW}, 1\ns_lshl_b32 s{src}, s{src}, 15\ns_lshr_b32 s{T+3}, s{sW}, 1\ns_lshl_b32 s{T+3}, s{T+3}, 13\ns_add_u32 s{src}, s{src}, s{T+3}")
    a(f"s_lshl_b32 s{T+3}, s{sI}, 16\ns_add_u32 s{src}, s{src}, s{T+3}\ns_add_u32 s{src}, s{src}, {WS_O}\ns_add_u32 s{src}, s{src}, s{sLB}\ns_add_u32 s{T+3}, s{src}, 4096")
    a("s_waitcnt vmcnt(0) lgkmcnt(0)\ns_barrier")
    stamp(a, "p2.end")
    n3 = [int(c) for c in C.sch3]; assert n3[0] == 4 and sum(n3) == 12
    if_wave_eq(a, 0, lambda: publish(a, "O", sI))
    for f in range(n3[0]): w2_dma(a, f)
    if_wave_eq(a, 0, lambda: poll(a, "O", sI, 8))
    a("s_barrier")
    stamp(a, "proj.polled")
    for t in range(8):
        a(f"buffer_load_dwordx4 v[{OF+4*t}:{OF+4*t+3}], v{vL16}, s[{S_WS}:{S_WS+3}], s{src + (t >> 2)} offen offset:{(t & 3)*1024} sc1")
    for t in range(8):
        a(f"s_waitcnt vmcnt({7-t})")
        for y in range(2):
            c = "0" if t == 0 else f"v[{ACC+16*y}:{ACC+16*y+15}]"
            a(f"v_mfma_f32_32x32x16_bf16 v[{ACC+16*y}:{ACC+16*y+15}], v[{OF+4*t}:{OF+4*t+3}], v[{WF+8*t+4*y}:{WF+8*t+4*y+3}], {c}")
        if t == 3:
            ep2_read_addr(a, 88, V+SVO, E+16, T+4, 80); unpack8(a, 96, vRES)
    stamp(a, "proj.loop")
    a("s_nop 8")
    OUT = 104
    for x in ep2_writes(ACC, V+SVO, T+4) + ep2_writes(ACC+16, E+16, T+4): a(x)
    a("s_waitcnt lgkmcnt(0)\ns_barrier")
    ep2_sum(a, 88, 96, OUT)
    for e in range(4): a(f"v_cvt_pk_bf16_f32 v{vRES+e}, v{OUT+2*e}, v{OUT+1+2*e}")
    a("v_mov_b32 v64, 0\nv_mov_b32 v65, 0\nv_mov_b32 v66, 1\nv_mov_b32 v67, 1\nv_mov_b32 v68, 0x3f803f80")
    for e in range(4): a(f"v_dot2c_f32_bf16 v64, v{vRES+e}, v68\nv_dot2c_f32_bf16 v65, v{vRES+e}, v{vRES+e}")
    a(f"s_lshl_b32 s{T}, s{sI}, 13\ns_add_u32 s{T}, s{T}, {WS_ST}\ns_add_u32 s{T}, s{T}, s{sLB}\ns_lshl_b32 s{T+1}, s{sJ}, 10\ns_add_u32 s{T+1}, s{T+1}, s{T}")
    a(f"v_lshlrev_b32 v56, 4, v{vN}\nv_lshl_add_u32 v57, v{vC}, 10, v56")
    dpp_red8(a, [64, 65])
    a(f"v_cmp_eq_u32 vcc, 0, v{vC}\ns_and_saveexec_b64 s[{T+2}:{T+3}], vcc")
    rstore(a, f"buffer_store_dwordx4 v[64:67], v56, s[{S_WS}:{S_WS+3}], s{T+1} offen")
    a(f"s_mov_b64 exec, s[{T+2}:{T+3}]")
    stamp(a, "proj.st")
    a(f"v_subrev_u32 v59, {SVO}, v{vTRF}")
    for c in range(4):
        for x in frag_reads(f"v{W1T+4*c}", 59, c*8192): a(x)
    for f in range(4):
        for x in w2_reads(f): a(x)
    unpack8(a, 80, vRES)
    a(f"v_lshrrev_b32 v58, 2, v{vC}\nv_lshlrev_b32 v58, 17, v58\nv_lshl_add_u32 v58, v{vN}, 6, v58\nv_and_b32 v60, 3, v{vC}\nv_lshl_add_u32 v58, v60, 4, v58")
    LP = a.label(); LD = a.label()
    a(f"s_mov_b32 s{T+2}, {SPIN}")
    a(f"{LP}:")
    a(f"buffer_load_dwordx4 v[68:71], v57, s[{S_WS}:{S_WS+3}], s{T} offen sc1")
    a("s_waitcnt vmcnt(0)\nv_and_b32 v72, v70, v71\nv_cmp_ne_u32 vcc, 1, v72")
    a(f"s_cbranch_vccz {LD}")
    a(f"s_sub_u32 s{T+2}, s{T+2}, 1\ns_cmp_lg_u32 s{T+2}, 0\ns_cbranch_scc1 {LP}")
    a(f"{LD}:")
    stamp(a, "proj.stat")
    dpp_red8(a, [68, 69])
    a(f"v_mul_f32 v68, {f2u(1/512)}, v68\nv_mul_f32 v69, {f2u(1/512)}, v69")
    a("v_fma_f32 v69, -v68, v68, v69\nv_max_f32 v69, 0, v69")
    a(f"v_add_f32 v70, {f2u(1e-5)}, v69\nv_rsq_f32 v70, v70\ns_nop 0")
    a(f"v_mul_f32 v71, v70, v70\nv_mul_f32 v71, v71, v69\nv_add_f32 v71, {f2u(1e-5)}, v71\nv_rsq_f32 v71, v71\ns_nop 0")
    a("v_mul_f32 v70, v70, v71\nv_mul_f32 v71, v68, v70\nv_sub_f32 v71, 0, v71")
    for e in range(8): a(f"v_fma_f32 v{80+e}, v{80+e}, v70, v71")
    for e in range(4): a(f"v_cvt_pk_bf16_f32 v{72+e}, v{80+2*e}, v{81+2*e}")
    a(f"s_lshl_b32 s{T}, s{sJ}, 18\ns_lshl_b32 s{T+1}, s{sI}, 12\ns_add_u32 s{T}, s{T}, s{T+1}\ns_add_u32 s{T}, s{T}, {WS_H}\ns_add_u32 s{T}, s{T}, s{sLB}")
    a(f"buffer_store_dwordx4 v[72:75], v58, s[{S_WS}:{S_WS+3}], s{T} offen sc1")
    a("s_waitcnt lgkmcnt(0)")
    rest3 = [8, 9, 10, 11, 4, 5, 6, 7]
    assert n3[1] <= 4
    for f in rest3[:n3[1]]: w2_dma(a, f)
    a(f"s_waitcnt vmcnt({n3[1]})\ns_barrier")
    stamp(a, "proj.end")
    if_wave_eq(a, 0, lambda: publish(a, "H", sJ))
    for f in rest3[n3[1]:]: w2_dma(a, f)

EPO = 61440
W1T = 128

def flag_addr(a, kind, sd):
    a(f"s_lshl_b32 s{sd}, s{sJ}, 10\ns_add_u32 s{sd}, s{sd}, {FL[kind]*128}\ns_add_u32 s{sd}, s{sd}, s{sFL}")
    a(f"s_lshr_b32 s{T+1}, s{sI}, 2\ns_lshl_b32 s{T+1}, s{T+1}, 7\ns_add_u32 s{sd}, s{sd}, s{T+1}")

def apoll_issue(a, sd, v):
    a(f"s_mov_b64 exec, 1\nbuffer_load_dword v{v}, v{vL16}, s[{S_WS}:{S_WS+3}], s{sd} offen sc1\ns_mov_b64 exec, -1")

def apoll_check(a, sd, v, n):
    LP = a.label(); LD = a.label()
    a(f"s_mov_b64 exec, 1\ns_mov_b32 s{T+1}, {SPIN}\n{LP}:\nv_cmp_ne_u32 vcc, {n}, v{v}\ns_cbranch_vccz {LD}")
    a(f"buffer_load_dword v{v}, v{vL16}, s[{S_WS}:{S_WS+3}], s{sd} offen sc1\ns_waitcnt vmcnt(0)")
    a(f"s_sub_u32 s{T+1}, s{T+1}, 1\ns_cmp_lg_u32 s{T+1}, 0\ns_cbranch_scc1 {LP}\n{LD}:\ns_mov_b64 exec, -1")

def mlp(a):
    R = 4
    EP = STG
    ERA, UA, YA5, B1, YA4, C1, RA_, WA_, ADD = 21, 20, 22, 24, 28, 29, 30, 128, 136
    ACC, F, ET, PV_, B2 = 48, [80, 96], 112, 19, 18
    src4, dst, qb, src5, rot, ust, fa, fb, gc2, ewb = T+2, T+3, T+4, T+5, T+6, T+7, T+8, T+9, T+11, T+12
    a(f"v_lshlrev_b32 v{ERA}, 1, v{vN}\ns_lshl_b32 s{T}, s{sI}, 7")
    a(f"buffer_load_ushort v{B2}, v{ERA}, s[{S_B2}:{S_B2+3}], s{T} offen")
    a(f"s_lshr_b32 s{T}, s{sW}, 1\ns_and_b32 s{T+1}, s{sW}, 1\ns_lshl_b32 s{T+1}, s{T+1}, 11\ns_add_u32 s{T+1}, s{T+1}, s{sLB}")
    a(f"s_mul_i32 s{src5}, s{sJ}, {2*114688}\ns_mul_i32 s{dst}, s{T}, {28*1024}\ns_add_u32 s{src5}, s{src5}, s{dst}\ns_add_u32 s{src5}, s{src5}, s{T+1}\ns_add_u32 s{src5}, s{src5}, {WS_U}")
    a(f"s_lshl_b32 s{src4}, s{sJ}, 18\ns_lshl_b32 s{dst}, s{T}, 15\ns_add_u32 s{src4}, s{src4}, s{dst}\ns_add_u32 s{src4}, s{src4}, s{T+1}\ns_add_u32 s{src4}, s{src4}, {WS_H}")
    a(f"s_mul_i32 s{ust}, s{sJ}, {2*114688}\ns_lshl_b32 s{dst}, s{sI}, 12\ns_add_u32 s{ust}, s{ust}, s{dst}\ns_lshl_b32 s{dst}, s{T}, 9\ns_add_u32 s{ust}, s{ust}, s{dst}\ns_add_u32 s{ust}, s{ust}, s{T+1}\ns_add_u32 s{ust}, s{ust}, {WS_U}")
    a(f"s_lshl_b32 s{dst}, s{sW}, 11\ns_lshl_b32 s{T}, s{T}, 12")
    a(f"v_bfe_u32 v16, v{vL}, 3, 2\nv_lshlrev_b32 v{YA5}, 9, v16\nv_and_b32 v16, 3, v{vL}\nv_lshl_add_u32 v{YA5}, v16, 7, v{YA5}\nv_bfe_u32 v16, v{vL}, 2, 1\nv_lshl_add_u32 v{YA5}, v16, 6, v{YA5}")
    a(f"v_bfe_u32 v16, v{vL}, 1, 1\nv_bfe_u32 v17, v{vL}, 4, 1\nv_lshl_add_u32 v16, v17, 1, v16\nv_lshrrev_b32 v17, 5, v{vL}\nv_xor_b32 v16, v16, v17\nv_lshl_add_u32 v{YA5}, v16, 4, v{YA5}")
    a(f"v_add_u32 v{YA5}, s{T}, v{YA5}\nv_xor_b32 v{YA5+1}, 32, v{YA5}")
    a(f"s_sub_u32 s{T}, s{T}, s{sVW}\ns_sub_u32 s{T}, s{T}, {SVO}\nv_add_u32 v{YA4}, s{T}, v{vTRF}")
    a(f"s_and_b32 s{T}, s{sW}, 1\ns_lshl_b32 s{T}, s{T}, 11\nv_add_u32 v31, s{T}, v{YA4}")
    a(f"s_and_b32 s{rot}, s{sJ}, {C.jrot}\ns_lshl_b32 s{rot}, s{rot}, 12")
    qkv_base8(a, qb)
    flag_addr(a, "U", fa); flag_addr(a, "UB", fb)
    LS = a.label(); LM = a.label()
    a(f"s_cmp_ge_u32 s{sI}, 28\ns_cbranch_scc1 {LS}")
    vm = VM()
    a(f"s_and_b32 s{T}, s{sW}, 1\ns_lshr_b32 s{T+1}, s{sW}, 1")
    a(f"s_lshl_b32 s{ewb}, s{T}, 14\ns_add_u32 s{ewb}, s{ewb}, {EP}\ns_lshl_b32 s{T+10}, s{T+1}, 10\ns_add_u32 s{T+10}, s{T+10}, s{ewb}\nv_add_u32 v{ERA}, s{T+10}, v{vL16}")
    a(f"s_lshl_b32 s{T+10}, s{T+1}, 12\ns_add_u32 s{ewb}, s{ewb}, s{T+10}")
    a(f"s_lshl_b32 s{T}, s{T}, 6\ns_lshl_b32 s{T+10}, s{sI}, 7\ns_add_u32 s{T}, s{T}, s{T+10}\nv_lshlrev_b32 v16, 3, v{vC}")
    a(f"buffer_load_dwordx2 v[{B1+2}:{B1+3}], v16, s[{S_B1}:{S_B1+3}], s{T} offen")
    a(f"v_lshrrev_b32 v17, 5, v{vL}\ns_lshr_b32 s{T+1}, s{T+1}, 1\ns_lshl_b32 s{T+1}, s{T+1}, 1\nv_or_b32 v17, s{T+1}, v17\nv_lshlrev_b32 v17, 4, v17\nv_lshlrev_b32 v{UA}, 3, v{vL}\nv_xor_b32 v{UA}, v{UA}, v17")
    c1 = -2*0.7978845608028654*1.4426950408889634
    a(f"s_mov_b32 s{gc2}, {f2u(c1*0.044715)}\nv_mov_b32 v{C1}, {f2u(c1)}")
    if_wave_eq(a, 0, lambda: poll(a, "H", sJ, 32))
    a("s_barrier")
    stamp(a, "mlp1.polled"); stamp(a, "z3.poll")
    def act(p, s):
        if p == 4: a(f"s_add_u32 s{T}, s{rot}, {(s & 7)*4096}\ns_and_b32 s{T}, s{T}, 0x7fff\ns_add_u32 s{T}, s{T}, s{src4}\ns_add_u32 m0, s{dst}, {(s % R)*16384}" + (f"\ns_add_u32 s{T}, s{T}, 131072" if s >= 8 else "\ns_nop 0"))
        else: a(f"s_add_u32 m0, s{dst}, {(s % R)*16384}\ns_add_u32 s{T}, s{src5}, {(s//7)*114688 + (s % 7)*4096}")
        a(f"buffer_load_dwordx4 v{vL16}, s[{S_WS}:{S_WS+3}], s{T} offen sc1 lds\nbuffer_load_dwordx4 v{vL16}, s[{S_WS}:{S_WS+3}], s{T} offen offset:1024 sc1 lds")
        vm.add(("act", p, s), 2)
    def reads(p, s):
        out = []; o = (s % R)*16384
        for t in range(4):
            b = F[s & 1] + 4*t
            if p == 4: out += [f"ds_read_b64_tr_b16 v[{b}:{b+1}], v{YA4} offset:{o + t*1024}", f"ds_read_b64_tr_b16 v[{b+2}:{b+3}], v{YA4} offset:{o + t*1024 + 256}"]
            else: out.append(f"ds_read_b128 v[{b}:{b+3}], v{YA5 + (t & 1)} offset:{o + (t >> 1)*2048}")
        return out
    def mfmas(p, s):
        out = []
        n = 8 if p == 4 else 7
        y = s // n
        for t in range(4):
            f = 4*(s % n) + t
            if p == 4: X = f"a[{4*f}:{4*f+3}]" if f < 28 else f"v[{W1T+4*(f-28)}:{W1T+4*(f-28)+3}]"
            else: r = w2_reg(f); X = f"{r[0]}[{int(r[1:])}:{int(r[1:])+3}]"
            Y = f"v[{F[s & 1]+4*t}:{F[s & 1]+4*t+3}]"
            c = "0" if f == 0 else f"v[{ACC+16*y}:{ACC+16*y+15}]"
            A_, B_ = (Y, X) if p == 4 else (X, Y)
            out.append(f"v_mfma_f32_32x32x16_bf16 v[{ACC+16*y}:{ACC+16*y+15}], {A_}, {B_}, {c}")
        return out
    RW = 31
    def inring(f): return C.optx and 20 <= f < 24
    def wdma(fs):
        for f in fs:
            if inring(f):
                a(f"s_add_u32 m0, s{dst}, {((f-20) >> 1)*16384 + (f & 1)*1024}\ns_add_u32 s{T}, s{sW2S}, {f*16*4096}")
                a(f"buffer_load_dwordx4 v{vF2}, s[{S_W2}:{S_W2+3}], s{T} offen lds")
            else: w2_dma(a, f)
            vm.add(("w", f))
    def wr(fs): return [x for f in fs for x in (frag_reads(w2_reg(f), RW, ((f-20) >> 1)*16384 + (f & 1)*1024) if inring(f) else w2_reads(f))]
    def wread(fs):
        for x in wr(fs): a(x)
    def ep_w(y, rs=range(16)):
        o = [f"ds_write_addtid_b32 v{ACC+16*y+r} offset:{EPO + r*256}" for r in rs]
        o[0] = f"s_sub_u32 m0, s{ewb}, {EPO}\ns_nop 0\n" + o[0]
        return o
    def ep_r(): return [f"ds_read_b128 v[{ET+4*p}:{ET+4*p+3}], v{ERA} offset:{p*4096}" for p in range(4)]
    def ep_math():
        o = []
        for e in range(4): o += [f"v_add_f32 v{ET+e}, v{ET+e}, v{ET+4+e}", f"v_add_f32 v{ET+8+e}, v{ET+8+e}, v{ET+12+e}"]
        for e in range(4): o.append(f"v_add_f32 v{ET+e}, v{ET+e}, v{B1+e}")
        for e in range(4): o.append(f"v_add_f32 v{ET+e}, v{ET+e}, v{ET+8+e}")
        G = ET+4
        for e in range(4): o.append(f"v_mul_f32 v{G+e}, v{ET+e}, v{ET+e}")
        for e in range(4): o.append(f"v_fma_f32 v{G+e}, v{G+e}, s{gc2}, v{C1}")
        for e in range(4): o.append(f"v_mul_f32 v{G+e}, v{G+e}, v{ET+e}")
        for e in range(4): o.append(f"v_exp_f32 v{G+e}, v{G+e}")
        for e in range(4): o.append(f"v_add_f32 v{G+e}, 1.0, v{G+e}")
        for e in range(4): o.append(f"v_rcp_f32 v{G+e}, v{G+e}")
        for e in range(4): o.append(f"v_mul_f32 v{ET+e}, v{ET+e}, v{G+e}")
        o += [f"v_cvt_pk_bf16_f32 v{ET+8}, v{ET}, v{ET+1}", f"v_cvt_pk_bf16_f32 v{ET+9}, v{ET+2}, v{ET+3}"]
        return o
    def ep_store(y):
        if y: a(f"s_add_u32 s{ust}, s{ust}, 114688")
        a(f"buffer_store_dwordx2 v[{ET+8}:{ET+9}], v{UA}, s[{S_WS}:{S_WS+3}], s{ust} offen sc1")
        vm.add(("st", y))
    def body(m, lds, valu=()):
        lds = list(lds); valu = list(valu)
        nl = max(C.ldsper, -(-len(lds)//4)); nv = -(-len(valu)//4)
        for k in range(4):
            if k < len(m): a(m[k])
            for x in lds[k*nl:(k+1)*nl]: a(x)
            for x in valu[k*nv:(k+1)*nv]: a(x)
    for s in range(C.init): act(4, s)
    late = [int(c) for c in (C.schx if C.optx else C.schw)]
    assert sum(late) == 8 and len(late) == 6
    nxt = 12
    em = ep_math()
    deferred = []
    E_ = [int(c, 16) for c in C.eps]
    for s in range(16):
        tags = [("act", 4, s)] + ([("st", 0)] if s == C.pubs else [])
        a(f"s_waitcnt vmcnt({vm.need(*tags)}) lgkmcnt(0)\ns_barrier")
        if s not in (2, 3, 5, 6, 7): stamp(a, f"z4.{s:02d}")
        if s == 0: stamp(a, "mlp1.b0")
        if C.defer == 2 and s not in (E_[0], E_[1]):
            for k in deferred: act(4, k)
            deferred = []
        lds = reads(4, s); valu = []
        if s == 0: valu = [f"v_lshlrev_b32 v{B1}, 16, v{B1+2}", f"v_and_b32 v{B1+1}, 0xffff0000, v{B1+2}", f"v_lshlrev_b32 v{B1+2}, 16, v{B1+3}", f"v_and_b32 v{B1+3}, 0xffff0000, v{B1+3}"]
        if s == E_[0]: lds += ep_w(0, range(8))
        if s == E_[1]: lds += ep_w(0, range(8, 16))
        if s == E_[2]: lds += ep_r()
        if s == E_[3]: valu += em[:24]
        if s == E_[4]: valu += em[24:]
        if s == E_[5]: lds += wr(range(4, 8))
        if s == E_[6]: lds += wr(range(8, 12))
        body(mfmas(4, s-1) if s else [], lds, valu)
        if s == C.pubs:
            stamp(a, "mlp1.pubA")
            if_wave_eq(a, 0, lambda: publish(a, "U", sJ))
        if s == E_[4]: ep_store(0)
        if s == 0:
            for k in range(C.init, R): act(4, k)
        if s >= 1 and s - 1 + R < 16:
            deferred.append(s - 1 + R)
            if not (C.defer and s in (E_[0], E_[1])):
                for k in deferred: act(4, k)
                deferred = []
        if s >= 11:
            n = late[s-11]
            assert nxt + n <= 12 + 4*(s > E_[5]) + 4*(s > E_[6]) + 2*(s >= 13) + 2*(s >= 14)
            wdma(range(nxt, nxt + n)); nxt += n
    assert E_[0] >= 9 and E_[2] > E_[1] and E_[3] > E_[2] and E_[5] >= 10 and E_[6] >= 11
    a("s_waitcnt lgkmcnt(0)")
    for x in mfmas(4, 15): a(x)
    stamp(a, "mlp1.loop"); stamp(a, "z4.loop")
    a("s_nop 9")
    for x in ep_w(1): a(x)
    if C.pubs >= 16: a(f"s_waitcnt vmcnt({vm.need(('st', 0))})")
    a("s_waitcnt lgkmcnt(0)\ns_barrier")
    stamp(a, "z4.ep")
    for x in ep_r(): a(x)
    if C.pubs >= 16: if_wave_eq(a, 0, lambda: publish(a, "U", sJ))
    wdma(range(nxt, 20))
    if C.n1 == 0: apoll_issue(a, fa, PV_); vm.add("pa")
    a("s_waitcnt lgkmcnt(0)")
    for x in em: a(x)
    ep_store(1)
    stamp(a, "mlp1.st"); stamp(a, "z4.st")
    npre = 20 + C.n1 + C.n2
    if C.n1:
        a(f"s_waitcnt vmcnt({vm.need(('w', 15))})")
        wread(range(12, 16))
        a("s_waitcnt lgkmcnt(0)")
        apoll_issue(a, fa, PV_); vm.add("pa")
        wdma(range(20, 20 + C.n1))
        a(f"s_waitcnt vmcnt({vm.need('pa')})")
        wread(range(16, 20))
        a("s_barrier")
        stamp(a, "z4.xdrain")
        if_wave_eq(a, 0, lambda: publish(a, "UB", sJ))
        a("s_waitcnt lgkmcnt(0)")
        wdma(range(20 + C.n1, npre))
        first = 0
    else:
        a(f"s_waitcnt vmcnt({vm.need('pa')})")
        wread(range(12, 20))
        apoll_check(a, fa, PV_, 28)
        act(5, 0); act(5, 1)
        a(f"s_waitcnt vmcnt({vm.need(('st', 1))})\ns_barrier")
        stamp(a, "z4.xdrain")
        if_wave_eq(a, 0, lambda: publish(a, "UB", sJ))
        first = 2
    a(f"s_branch {LM}")
    a(f"{LS}:")
    a("s_waitcnt vmcnt(0)")
    wread(range(4, 12)); a("s_waitcnt lgkmcnt(0)")
    keep = vm.ops[:]
    wdma(range(12, 20))
    a("s_waitcnt vmcnt(0)")
    wread(range(12, 20)); a("s_waitcnt lgkmcnt(0)")
    wdma(range(20, npre))
    a(f"v_mov_b32 v{PV_}, 28\ns_waitcnt vmcnt(0)")
    if_wave_eq(a, 0, lambda: poll(a, "U", sJ, 28))
    a("s_barrier")
    for k in range(first): act(5, k)
    vm.ops = keep
    a(f"{LM}:")
    if first == 0: apoll_check(a, fa, PV_, 28)
    stamp(a, "mlp2.polled"); stamp(a, "z4.zpolled")
    for k in range(first, C.init5): act(5, k)
    ep2_read_addr(a, RA_, EP+16, E+32768, ewb, ET)
    sch = [int(c) for c in C.sch2]
    assert sum(sch) == 12
    extra = [5, 6, 7, 8, 9, 10, 11, 0, 1, 2, 3, 4]
    assert sum(sch[:5]) <= 7
    def point(p):
        for _ in range(sch[p]):
            k = extra.pop(0); qkv_piece8(a, qb, k); vm.add(("x", k))
    sb = C.sb
    na = max(first, C.init5); nw = npre
    for s in range(14):
        tags = [("act", 5, s)]
        if s == sb: tags.append("pb")
        if s == 5: tags.append(("w", 23))
        if s == 6: tags.append(("w", 27))
        a(f"s_waitcnt vmcnt({vm.need(*tags)}) lgkmcnt(0)\ns_barrier")
        if s not in (8, 9, 10): stamp(a, f"z5.{s:02d}")
        if s == 0: stamp(a, "mlp2.b0")
        lds = reads(5, s); valu = []
        if s == 0:
            for e in range(4): valu += [f"v_lshlrev_b32 v{ADD+2*e}, 16, v{vRES+e}", f"v_and_b32 v{ADD+1+2*e}, 0xffff0000, v{vRES+e}"]
            valu.append(f"v_lshlrev_b32 v{B2}, 16, v{B2}")
            for e in range(8): valu.append(f"v_add_f32 v{ADD+e}, v{ADD+e}, v{B2}")
        if s == 5: lds += wr(range(20, 24))
        if s == 6: lds += wr(range(24, 28))
        if s == C.wa5: lds += ep2_writes(ACC, EP+16, ewb)
        body(mfmas(5, s-1) if s else [], lds, valu)
        if s == sb:
            apoll_check(a, fb, PV_, 28)
            stamp(a, "mlp2.pollB")
        if s == C.pbi: apoll_issue(a, fb, PV_); vm.add("pb")
        lim = min(14, s + 4, 7 if s < sb else 14)
        want = min(lim, na + 1) if nw < 28 and not C.deep else lim
        want = max(want, min(lim, s + 3))
        while na < want: act(5, na); na += 1
        if nw < 28: wdma((nw, nw+1)); nw += 2
    assert na == 14 and nw == 28
    a(f"s_waitcnt lgkmcnt({15 if C.wa5 == 13 else 0})")
    for x in mfmas(5, 13): a(x)
    stamp(a, "mlp2.loop")
    a("s_nop 9")
    OUT = 80
    for x in ep2_writes(ACC+16, E+32768, ewb): a(x)
    point(0); point(1); point(2)
    a("s_waitcnt lgkmcnt(0)\ns_barrier")
    ep2_sum(a, RA_, ADD, OUT)
    point(3)
    for e in range(4): a(f"v_cvt_pk_bf16_f32 v{vRES+e}, v{OUT+2*e}, v{OUT+1+2*e}")
    rstore(a, f"buffer_store_dwordx4 v[{vRES}:{vRES+3}], v{vXO}, s[{S_XD}:{S_XD+3}], s{sXO} offen", bulk=True)
    stamp(a, "mlp2.st")
    a(f"s_cmp_lg_u32 s{sL}, 0\ns_cbranch_scc1 L_fin")
    a("v_mov_b32 v64, 0\nv_mov_b32 v65, 0\nv_mov_b32 v68, 0x3f803f80")
    for e in range(4): a(f"v_dot2c_f32_bf16 v64, v{vRES+e}, v68\nv_dot2c_f32_bf16 v65, v{vRES+e}, v{vRES+e}")
    a(f"s_lshl_b32 s{T}, s{sI}, 3\ns_add_u32 s{T}, s{T}, s{sJ}\ns_lshl_b32 s{T}, s{T}, 9\ns_add_u32 s{T}, s{T}, {WS_ST2}\nv_lshlrev_b32 v66, 3, v{vN}")
    dpp_red8(a, [64, 65])
    a(f"v_cmp_eq_u32 vcc, 0, v{vC}\ns_and_saveexec_b64 s[{T+10}:{T+11}], vcc")
    rstore(a, f"buffer_store_dwordx2 v[64:65], v66, s[{S_WS}:{S_WS+3}], s{T} offen", bulk=True)
    a(f"s_mov_b64 exec, s[{T+10}:{T+11}]")
    point(4)
    a(f"s_waitcnt vmcnt({sch[4]})\ns_barrier")
    stamp(a, "mlp2.end")
    if_wave_eq(a, 0, lambda: publish(a, "X", sI))
    point(5)

def main(out):
    a = Asm()
    K = NAME + "_kernel"
    a.L.append(f".globl {K}\n.p2align 8\n.type {K},@function\n{K}:")
    prologue(a)
    init_sync(a)
    if C.qtouch:
        L1 = a.label(); L2 = a.label(); L3 = a.label()
        a(f"v_lshlrev_b32 v40, 7, v{vL}\nv_min_u32 v41, 47, v{vL}\ns_cmp_eq_u32 s{sW}, 0\ns_cbranch_scc1 {L1}\ns_cmp_eq_u32 s{sW}, 1\ns_cbranch_scc1 {L2}\ns_cmp_lg_u32 s{sW}, 2\ns_cbranch_scc1 {L3}")
        a(f"s_lshr_b32 s{T}, s2, 3\ns_mul_i32 s{T}, s{T}, {48*1024}\ns_add_u32 s{T}, s{T}, 384\nv_lshlrev_b32 v41, 10, v41")
        a(f"buffer_load_dword v143, v41, s[{S_QKV}:{S_QKV+3}], s{T} offen\ns_branch {L3}")
        a(f"{L1}:\ns_lshl_b32 s{T}, s{sI}, 3\ns_add_u32 s{T}, s{T}, s{sJ}\ns_lshl_b32 s{T}, s{T}, 13")
        a(f"buffer_load_dword v143, v40, s[{S_XS}:{S_XS+3}], s{T} offen\ns_branch {L3}")
        a(f"{L2}:\ns_mul_i32 s{T}, s2, {48*128}\nv_lshlrev_b32 v41, 7, v41")
        a(f"buffer_load_dword v143, v41, s[{S_QKV}:{S_QKV+3}], s{T} offen")
        a(f"{L3}:")
    if C.cpf:
        Lc = a.label()
        a(f"s_cmp_lg_u32 s{sW}, 4\ns_cbranch_scc1 {Lc}")
        a(f"s_getpc_b64 s[{T+2}:{T+3}]\ns_and_b32 s{T+2}, s{T+2}, 0xffffff00\ns_lshr_b32 s{T}, s2, 3\ns_lshl_b32 s{T}, s{T}, 10\nv_and_b32 v41, 7, v{vL}\nv_lshlrev_b32 v41, 7, v41\nv_add_u32 v41, s{T}, v41")
        a(f"v_min_u32 v41, CODE_SPAN, v41\nglobal_load_dword v143, v41, s[{T+2}:{T+3}]\n{Lc}:")
    prologue2(a)
    if C.qtouch: a("s_barrier")
    x_dma(a)
    L = a.label()
    a(f"s_cmp_ge_u32 s{sW}, 4\ns_cbranch_scc1 {L}")
    a(f"buffer_load_dwordx4 v[{vRES}:{vRES+3}], v{vXO}, s[{S_XS}:{S_XS+3}], s{sXO} offen")
    a("s_waitcnt vmcnt(9)")
    init_arrive(a)
    a("s_waitcnt vmcnt(2)")
    L4 = a.label()
    a(f"s_cmp_eq_u32 s{sW}, 3\ns_cbranch_scc1 {L4}\ns_waitcnt vmcnt(1)\n{L4}:\ns_barrier")
    stamp(a, "p1.xarr")
    a("s_branch L_p1_cons")
    a(f"{L}:")
    helper_setup(a)
    vm = VM()
    for u in range(C.h0first): helper_unit(a, u, vm)
    a(f"buffer_load_dwordx4 v[{vRES}:{vRES+3}], v{vXO}, s[{S_XS}:{S_XS+3}], s{sXO} offen"); vm.add("res")
    a(f"v_and_b32 v41, 3, v{vL}\nv_bfe_u32 v46, v{vL}, 3, 1\nv_lshl_add_u32 v41, v46, 2, v41\nv_lshlrev_b32 v41, 4, v41\nv_lshl_add_u32 v41, v40, 7, v41\nv_xor_b32 v47, 64, v41")
    a(f"s_waitcnt vmcnt({2*C.h0first+1})\ns_barrier")
    for q in range(8): a(f"ds_read_b128 v[{48+8*q}:{51+8*q}], v41 offset:{q*8192}\nds_read_b128 v[{52+8*q}:{55+8*q}], v47 offset:{q*8192}")
    n2 = C.h0second
    for u in range(C.h0first, C.h0first+n2): helper_unit(a, u, vm)
    a("v_mov_b32 v42, 0\nv_mov_b32 v43, 0\nv_mov_b32 v44, 0\nv_mov_b32 v45, 0\nv_mov_b32 v46, 0x3f803f80")
    for q in range(8):
        a(f"s_waitcnt lgkmcnt({14-2*q})")
        for e in range(0, 8, 2):
            r = 48+8*q+e
            a(f"v_dot2c_f32_bf16 v42, v{r}, v46\nv_dot2c_f32_bf16 v44, v{r}, v{r}\nv_dot2c_f32_bf16 v43, v{r+1}, v46\nv_dot2c_f32_bf16 v45, v{r+1}, v{r+1}")
    a("s_nop 2\nv_add_f32 v42, v42, v43\nv_add_f32 v44, v44, v45")
    tlb_touch(a)
    helper_loop(a, 0, vm, C.h0first+n2, [int(c) for c in C.hs0], "L_p1_join")
    a("L_layer:")
    phase1(a)
    phase2(a)
    phase3(a)
    mlp(a)
    if_wave_eq(a, 0, lambda: poll(a, "X", sI, 8))
    a(f"s_mov_b32 s{S_XS}, s{S_XD}\ns_mov_b32 s{S_XS+1}, s{S_XD+1}\ns_mov_b32 s{S_XD}, s{sOUT}\ns_mov_b32 s{S_XD+1}, s{sOUT+1}")
    a(f"s_mov_b32 s{sL}, 1\ns_mov_b32 s{sLB}, {LSTRIDE}\ns_mov_b32 s{sFL}, {WS_FLAG + 512*128}")
    if C.stamp: a("v_mov_b32 v7, v6")
    a("s_barrier")
    stamp(a, "p1.polled")
    x_dma(a)
    a("s_branch L_layer")
    a("L_fin:")
    if C.stamp:
        a("s_waitcnt vmcnt(0)")
        stamp(a, "fin")
        a(f"s_lshl_b32 s{T}, s2, 3\ns_add_u32 s{T}, s{T}, s{sW}\ns_lshl_b32 s{T}, s{T}, 9\ns_add_u32 s{T}, s{T}, {WS_STAMP}\nv_lshlrev_b32 v16, 2, v{vL}")
        a(f"buffer_store_dword v7, v16, s[{S_WS}:{S_WS+3}], s{T} offen\nbuffer_store_dword v6, v16, s[{S_WS}:{S_WS+3}], s{T} offen offset:256")
    a("L_end:\ns_endpgm")
    softmax_safe(a)
    s = HDR + "; @launch grid=(256,1,1) block=(512,1,1) lds=163840\n"
    s += '.amdgcn_target "amdgcn-amd-amdhsa--gfx950"\n.text\n' + a.text().replace("CODE_SPAN", str(C.span))
    s += f""".section .rodata,"a"
.p2align 6
.amdhsa_kernel {K}
  .amdhsa_next_free_vgpr 256
  .amdhsa_next_free_sgpr 102
  .amdhsa_accum_offset {NARCH}
  .amdhsa_group_segment_fixed_size 0
  .amdhsa_kernarg_size 88
  .amdhsa_user_sgpr_count 2
  .amdhsa_user_sgpr_kernarg_segment_ptr 1
  .amdhsa_system_sgpr_workgroup_id_x 1
.end_amdhsa_kernel
"""
    open(out, "w").write(s)
    if C.stamp: open(out + ".stamps", "w").write("\n".join(STAMPS))

if __name__ == "__main__":
    for arg in sys.argv[2:]:
        k, v = arg.split("="); setattr(C, k, v if isinstance(getattr(C, k), str) else type(getattr(C, k))(int(v)))
    main(sys.argv[1])
```

```python
import sys, struct
NAME = "interleave_layers__softmax_full_mha__mixer_token_mlp__prompt"
HDR = open("cdna_kernels/%s.s.ref" % NAME).read().split("; Override launch")[0]
MB = 1 << 20
WS_KV, WS_O, WS_H, WS_U, WS_X2, WS_ST = 0*MB, 4*MB, 6*MB, 8*MB, 10*MB, 12*MB
LSTRIDE = 16*MB
WS_FLAG = 32*MB
WS_XT = WS_FLAG + 131072
WS_STAMP = 40*MB
KA = dict(x=0, wqkv=8, wo=16, w1=32, b1=40, w2=48, b2=56, out=64, dbg=72, ws=80)
SZ = dict(x=2048*512*2, wqkv=512*1536*2, wo=512*512*2, w1=2048*1792*2, b1=1792*2, w2=1792*2048*2, b2=2048*2,
          out=2048*512*2, dbg=256, ws=1 << 28)
FL = dict(KV=0, H=64, U=128, O=192, X=224, UB=256, KL=320)
COLK = ('KV', 'H', 'U', 'UB')
SPIN = 200000
NARCH = 144

class Cfg:
    stamp = False
    prio = True
    lowtiles = 1
    D = 3
    nB = 12
    sch1 = '033343'
    sch2 = '003045'
    sch3 = '444'
    stouch = 0
    p1touch = 0
    now1 = 0
    local = 1
    schw = '002222'
    eps = '99abbbc'
    wlast = 1
    defer = 0
    optx = 0
    n1 = 0
    n2 = 0
    deep = 1
    wa5 = 13
    xp = 2
    early = 6
    q5 = 1
    q5s = 10
    lf = 1
    lfi = 1
    lfc = 2
    c3 = 0
    pub12 = 1
    w1nt = 0
    w2nt = 0
    xrot = 1
    xnt = 1
    lateinit = 1
    arrs = 1
    schx = '01434'
    pbi = 2
    sb = 4
    init5 = 4
    schv = '22220'
    pubs = 14
    pbs = 3
    init = 4
    pae = 1
    order = 1
    ldsper = 3
    epa = 0
    t2 = 28
    sonly = ''
    tmix = 1
    cpf = 1
    span = 30720
    ldata = 0
    pret = 0
    hs1 = '022111122000'
    hs0 = '222222222000'
    h0first = 3
    h0second = 3
    w1t = 9
    p1per = 4
    qtouch = 2
    pper = 16
    plow = 3
    split = 1
    kvfix = 0
    xsel = 'wot'
    nofirst = 0
    tlb = 0
    lowhalf = 3
    jrot = 6
    nox = 0
    notr = 0
    loop = 0
    pad = 0
    align = 3
    nQ = 12
C = Cfg()

class Asm:
    def __init__(self): self.L = []; self.n = 0
    def __call__(self, s):
        for line in s.split("\n"):
            line = line.strip()
            if line: self.L.append(("" if line.endswith(":") else "    ") + line)
    def label(self, p="L"):
        self.n += 1; return f"{p}{self.n}"
    def text(self): return "\n".join(self.L) + "\n"

def f2u(x): return hex(struct.unpack("<I", struct.pack("<f", x))[0])

S_XS, S_QKV, S_WS, S_WO, S_W1, S_W2, S_B1, S_B2, S_XD, S_DBG, S_KV = 8, 12, 16, 20, 24, 28, 32, 36, 40, 44, 80
sI, sJ, sW, sL, sLB, sFL = 48, 49, 50, 51, 52, 53
sW2S = 54
sVW = 55
sLOC = 56
sXO = 57
sOUT = 58
T = 60
sST = 76
sRET = 84
vL, vN, vC, vL16, vXO = 1, 2, 3, 4, 5
vRES = 8
vF2, vTRF, vWQ = 12, 13, 14
TV = 16
E, V = 0, 65536
QX = V + 11*8192
SVO = 32768
STG = V

STAMPS = []
def stamp(a, name):
    if not C.stamp: return
    if C.sonly:
        if not (name == "start" or any(name.startswith(p) for p in C.sonly.split(","))): return
    elif name.startswith("z"): return
    k = len(STAMPS); assert k < 32
    a(f"s_memtime s[{sST}:{sST+1}]\ns_memrealtime s[{sST+2}:{sST+3}]\ns_waitcnt lgkmcnt(0)")
    a(f"v_writelane_b32 v6, s{sST}, {k}\nv_writelane_b32 v6, s{sST+2}, {k+32}")
    STAMPS.append(name)

def dpp_red8(a, regs):
    for pat in ("quad_perm:[1,0,3,2]", "quad_perm:[2,3,0,1]", "row_half_mirror"):
        a("s_nop 1")
        for r in regs: a(f"v_add_f32_dpp v{r}, v{r}, v{r} {pat} row_mask:0xf bank_mask:0xf")

def tr_addr(a, vd, xh, perm, t0, t1):
    a(f"v_lshrrev_b32 v{t0}, 5, v{vL}\nv_lshlrev_b32 v{t0}, {2 if perm else 3}, v{t0}")
    a(f"v_bfe_u32 v{t1}, v{vL}, 2, 2\nv_add_u32 v{t0}, v{t0}, v{t1}\nv_lshlrev_b32 v{vd}, 7, v{t0}")
    a(f"v_lshrrev_b32 v{t1}, 1, v{t1}\nv_xor_b32 v{t1}, {xh}, v{t1}\nv_lshl_add_u32 v{vd}, v{t1}, 6, v{vd}")
    a(f"v_bfe_u32 v{t1}, v{vL}, 4, 1\nv_lshl_add_u32 v{vd}, v{t1}, 5, v{vd}")
    a(f"v_and_b32 v{t1}, 3, v{vL}\nv_lshl_add_u32 v{vd}, v{t1}, 3, v{vd}")

def interleave(a, m, r):
    per = -(-len(r)//len(m))
    for x in range(len(m)):
        a(m[x])
        for y in r[x*per:(x+1)*per]: a(y)

def rstore(a, instr, bulk=False):
    if not C.local or (bulk and not C.ldata):
        a(instr + " sc1"); return
    L = a.label(); L2 = a.label()
    a(f"s_cmp_eq_u32 s{sLOC}, 1\ns_cbranch_scc1 {L}\n{instr} sc1\ns_branch {L2}\n{L}:\n{instr}\n{L2}:")

def publish(a, kind, group_s, tv=None):
    if kind not in COLK:
        a(f"s_lshl_b32 s{T}, s{group_s}, 7\ns_add_u32 s{T}, s{T}, {FL[kind]*128}\ns_add_u32 s{T}, s{T}, s{sFL}\ns_lshl_b32 s{T+1}, s{sJ}, 4\ns_add_u32 s{T}, s{T}, s{T+1}")
        a(f"v_mov_b32 v{TV}, 1\ns_mov_b64 exec, 1")
        rstore(a, f"buffer_store_dword v{TV}, v{vL16}, s[{S_WS}:{S_WS+3}], s{T} offen")
        a("s_mov_b64 exec, -1")
        return
    col = kind in COLK
    a(f"s_lshl_b32 s{T}, s{group_s}, {10 if col else 7}\ns_add_u32 s{T}, s{T}, {FL[kind]*128}\ns_add_u32 s{T}, s{T}, s{sFL}")
    a(f"v_mov_b32 v{TV}, 1\nv_lshlrev_b32 v{TV+1}, 7, v{vL}\ns_mov_b64 exec, {0xff if col else 1}")
    a(f"buffer_atomic_add v{TV}, v{TV+1}, s[{S_WS}:{S_WS+3}], s{T} offen sc1")
    a("s_mov_b64 exec, -1")

def poll(a, kind, group_s, n):
    col = kind in COLK
    a(f"s_lshl_b32 s{T}, s{group_s}, {10 if col else 7}\ns_add_u32 s{T}, s{T}, {FL[kind]*128}\ns_add_u32 s{T}, s{T}, s{sFL}")
    if col: a(f"s_lshr_b32 s{T+1}, s{sI}, 2\ns_lshl_b32 s{T+1}, s{T+1}, 7\ns_add_u32 s{T}, s{T}, s{T+1}")
    a(f"s_mov_b64 exec, {1 if col else 0xff}\ns_mov_b32 s{T+1}, {SPIN}")
    LP = a.label(); LD = a.label()
    a(f"{LP}:")
    a(f"buffer_load_dword v{TV}, v{vL16}, s[{S_WS}:{S_WS+3}], s{T} offen sc1")
    a(f"s_waitcnt vmcnt(0)\nv_cmp_ne_u32 vcc, {n if col else 1}, v{TV}")
    a(f"s_cbranch_vccz {LD}")
    a(f"s_sub_u32 s{T+1}, s{T+1}, 1\ns_cmp_lg_u32 s{T+1}, 0\ns_cbranch_scc1 {LP}")
    a(f"{LD}:\ns_mov_b64 exec, -1")

def kl_addr(a):
    a(f"s_lshr_b32 s{T}, s{sI}, 2\ns_lshl_b32 s{T}, s{T}, 3\ns_add_u32 s{T}, s{T}, s{sJ}\ns_lshl_b32 s{T}, s{T}, 7\ns_add_u32 s{T}, s{T}, {FL['KL']*128}\ns_add_u32 s{T}, s{T}, s{sFL}")

def kl_publish(a):
    kl_addr(a)
    a(f"s_and_b32 s{T+1}, s{sI}, 3\ns_lshl_b32 s{T+1}, s{T+1}, 4\ns_add_u32 s{T}, s{T}, s{T+1}\nv_mov_b32 v{TV+3}, 1\ns_mov_b64 exec, 1")
    rstore(a, f"buffer_store_dword v{TV+3}, v{vL16}, s[{S_WS}:{S_WS+3}], s{T} offen")
    a("s_mov_b64 exec, -1")

def kl_poll(a):
    kl_addr(a)
    a(f"s_mov_b64 exec, 15\ns_mov_b32 s{T+1}, {SPIN}")
    LP = a.label(); LD = a.label()
    a(f"{LP}:\nbuffer_load_dword v{TV}, v{vL16}, s[{S_WS}:{S_WS+3}], s{T} offen sc1\ns_waitcnt vmcnt(0)\nv_cmp_ne_u32 vcc, 1, v{TV}\ns_cbranch_vccz {LD}")
    a(f"s_sub_u32 s{T+1}, s{T+1}, 1\ns_cmp_lg_u32 s{T+1}, 0\ns_cbranch_scc1 {LP}\n{LD}:\ns_mov_b64 exec, -1")

def if_wave_eq(a, w, body):
    L = a.label()
    a(f"s_cmp_lg_u32 s{sW}, {w}\ns_cbranch_scc1 {L}")
    body()
    a(f"{L}:")

def qkv_src(u): return (u >> 1)*64*3072 + (1 + (u & 1))*1024 if u < 16 else (u-16)*64*3072

def qkv_base8(a, s):
    a(f"s_mul_i32 s{s}, s{sW}, {8*3072}\ns_lshl_b32 s{T}, s{sJ}, 7\ns_add_u32 s{s}, s{s}, s{T}")

def qkv_piece8(a, s, u):
    a(f"s_add_u32 m0, s{sVW}, {(u % 12)*8192}\ns_add_u32 s{T}, s{s}, {qkv_src(u)}")
    a(f"buffer_load_dwordx4 v{vWQ}, s[{S_QKV}:{S_QKV+3}], s{T} offen lds")

def w2_dma(a, f):
    a(f"s_add_u32 m0, s{sVW}, {SVO + ((f+4) % 8)*8192}\ns_add_u32 s{T}, s{sW2S}, {f*16*4096}")
    a(f"buffer_load_dwordx4 v{vF2}, s[{S_W2}:{S_W2+3}], s{T} offen lds")

def frag_reads(dst, vaddr, off):
    p, n = dst[0], int(dst[1:])
    return [f"ds_read_b64_tr_b16 {p}[{n}:{n+1}], v{vaddr} offset:{off}", f"ds_read_b64_tr_b16 {p}[{n+2}:{n+3}], v{vaddr} offset:{off+256}"]

W2V = 32
def w2_reg(f): return f"v{W2V+4*f}" if f < 4 else f"a{4*(f-4)}"
def w2_reads(f): return frag_reads(w2_reg(f), vTRF, ((f+4) % 8)*8192)

def prologue(a):
    a(f"s_cmp_ge_u32 s2, 256\ns_cbranch_scc1 L_end")
    for s, n in ((S_XS, "x"), (S_QKV, "wqkv"), (S_WS, "ws"), (S_WO, "wo"), (S_W1, "w1"), (S_W2, "w2"), (S_B1, "b1"), (S_B2, "b2"), (S_DBG, "dbg")):
        a(f"s_load_dwordx2 s[{s}:{s+1}], s[0:1], {KA[n]}")
        a(f"s_mov_b32 s{s+2}, {hex(SZ[n])}\ns_mov_b32 s{s+3}, 0x00020000")
    a(f"s_load_dwordx2 s[{sOUT}:{sOUT+1}], s[0:1], {KA['out']}")
    a(f"s_mov_b32 s{S_XD+2}, {hex(SZ['x'])}\ns_mov_b32 s{S_XD+3}, 0x00020000")
    a(f"s_and_b32 s{sI}, s2, 7\ns_lshl_b32 s{sI}, s{sI}, 2\ns_bfe_u32 s{T}, s2, 0x20003\ns_or_b32 s{sI}, s{sI}, s{T}\ns_lshr_b32 s{sJ}, s2, 5")
    a(f"v_lshrrev_b32 v{vL}, 6, v0\ns_nop 0\nv_readfirstlane_b32 s{sW}, v{vL}\nv_and_b32 v{vL}, 63, v0")
    a(f"v_lshrrev_b32 v{vN}, 3, v0\nv_and_b32 v{vC}, 7, v0\nv_lshlrev_b32 v{vL16}, 4, v{vL}")
    a(f"s_lshl_b32 s{sXO}, s{sI}, 16\ns_lshl_b32 s{T}, s{sJ}, 7\ns_add_u32 s{sXO}, s{sXO}, s{T}")
    a(f"s_mov_b32 s{sLOC}, 0\ns_mov_b32 s{sL}, 0\ns_mov_b32 s{sLB}, 0\ns_mov_b32 s{sFL}, {WS_FLAG}")
    if C.stamp: a("v_mov_b32 v6, 0\nv_mov_b32 v7, 0")
    a(f"v_lshrrev_b32 v40, 3, v{vL}\nv_bfe_u32 v41, v{vL}, 4, 1\nv_lshlrev_b32 v41, 2, v41\nv_and_b32 v42, 7, v{vL}\nv_xor_b32 v41, v41, v42\nv_lshlrev_b32 v41, 4, v41")
    a(f"v_mul_u32_u24 v{vWQ}, 3072, v40\nv_add_u32 v{vWQ}, v{vWQ}, v41")
    a(f"s_lshl_b32 s{sVW}, s{sW}, 10\ns_add_u32 s{sVW}, s{sVW}, {V}")
    a(f"s_lshl_b32 s{T}, s{sJ}, {3 if C.xrot else 6}\nv_add_u32 v42, s{T}, v{vN}\nv_and_b32 v42, 63, v42")
    a(f"v_bfe_u32 v41, v42, 1, 3\nv_xor_b32 v41, v41, v{vC}\nv_lshlrev_b32 v41, 4, v41\nv_lshl_add_u32 v{vXD}, v42, 10, v41")
    a(f"v_bfe_u32 v41, v{vN}, 1, 1\nv_bfe_u32 v42, v{vN}, 2, 1\nv_and_b32 v{vN}, 0x39, v{vN}\nv_lshl_add_u32 v{vN}, v41, 2, v{vN}\nv_lshl_add_u32 v{vN}, v42, 1, v{vN}")
    a(f"v_lshlrev_b32 v{vXO}, 10, v{vN}\nv_lshl_add_u32 v{vXO}, v{vC}, 4, v{vXO}")
    a("s_waitcnt lgkmcnt(0)")
    stamp(a, "start")
    a(f"s_add_u32 s{S_XD}, s{S_WS}, {WS_X2}\ns_addc_u32 s{S_XD+1}, s{S_WS+1}, 0")

def prologue2(a):
    a(f"v_lshrrev_b32 v42, 2, v{vL}\nv_and_b32 v43, 3, v{vL}\nv_lshlrev_b32 v43, 4, v43")
    a(f"v_lshl_add_u32 v{vF2}, v42, 12, v43")
    a(f"v_lshrrev_b32 v42, 5, v{vL}\nv_lshlrev_b32 v42, 3, v42\nv_bfe_u32 v43, v{vL}, 2, 2\nv_add_u32 v42, v42, v43\nv_lshlrev_b32 v{vTRF}, 6, v42")
    a(f"v_bfe_u32 v43, v{vL}, 4, 1\nv_lshl_add_u32 v{vTRF}, v43, 5, v{vTRF}\nv_and_b32 v43, 3, v{vL}\nv_lshl_add_u32 v{vTRF}, v43, 3, v{vTRF}")
    a(f"v_add_u32 v{vTRF}, s{sVW}, v{vTRF}\nv_add_u32 v{vTRF}, {SVO}, v{vTRF}")
    a(f"s_lshr_b32 s{sW2S}, s{sW}, 1\ns_mul_i32 s{sW2S}, s{sW2S}, {448*4096}\ns_lshl_b32 s{T}, s{sI}, 7\ns_add_u32 s{sW2S}, s{sW2S}, s{T}")
    a(f"s_and_b32 s{T}, s{sW}, 1\ns_lshl_b32 s{T}, s{T}, 6\ns_add_u32 s{sW2S}, s{sW2S}, s{T}")

def tlb_touch(a):
    if not C.tlb: return
    a(f"s_sub_u32 s{T+4}, s{sW}, 4\ns_lshl_b32 s{T}, s{T+4}, 21")
    for k in range(4): a(f"s_add_u32 s{T+1}, s{T}, {(k & 1)*8*MB + (k >> 1)*LSTRIDE}\ns_buffer_load_dword s86, s[{S_WS}:{S_WS+3}], s{T+1}")
    for srd in (S_W1, S_W2): a(f"s_buffer_load_dword s86, s[{srd}:{srd+3}], s{T}")
    a(f"s_lshl_b32 s{T}, s{T+4}, 19\ns_load_dword s86, s[{sOUT}:{sOUT+1}], s{T}")
    a(f"s_buffer_load_dword s86, s[{S_WO}:{S_WO+3}], 0\ns_buffer_load_dword s86, s[{S_B1}:{S_B1+3}], 0\ns_buffer_load_dword s86, s[{S_B2}:{S_B2+3}], 0")

def init_sync(a):
    def body():
        a("v_mov_b32 v44, 0\nv_mov_b32 v45, 0\nv_mov_b32 v46, 0\nv_mov_b32 v47, 0")
        a(f"s_lshl_b32 s{T}, s2, 10\ns_add_u32 s{T}, s{T}, {WS_ST}\ns_add_u32 s{T+1}, s{T}, {LSTRIDE}")
        a(f"buffer_store_dwordx4 v[44:47], v{vL16}, s[{S_WS}:{S_WS+3}], s{T} offen sc1")
        a(f"buffer_store_dwordx4 v[44:47], v{vL16}, s[{S_WS}:{S_WS+3}], s{T+1} offen sc1")
        a(f"s_lshl_b32 s{T}, s2, 9\ns_add_u32 s{T}, s{T}, {WS_FLAG}\ns_mov_b32 exec_hi, 0")
        a(f"buffer_store_dwordx4 v[44:47], v{vL16}, s[{S_WS}:{S_WS+3}], s{T} offen sc1")
        a(f"s_getreg_b32 s{T+1}, hwreg(HW_REG_XCC_ID, 0, 4)\ns_mov_b64 exec, 1\nv_mov_b32 v48, s{T+1}")
        a(f"s_lshl_b32 s{T}, s{sI}, 3\ns_add_u32 s{T}, s{T}, s{sJ}\ns_lshl_b32 s{T}, s{T}, 4\ns_add_u32 s{T}, s{T}, {WS_XT}")
        a(f"buffer_store_dword v48, v{vL16}, s[{S_WS}:{S_WS+3}], s{T} offen sc1")
        a("s_mov_b64 exec, -1")
    if_wave_eq(a, 3, body)

def init_arrive(a, pre="s_nop 0", tv=TV):
    L = a.label()
    a(f"s_cmp_lg_u32 s{sW}, 3\ns_cbranch_scc1 {L}\n{pre}")
    a(f"v_mov_b32 v{tv}, 1\nv_mov_b32 v{tv+1}, 0\ns_and_b32 s{T}, s2, 63\ns_lshl_b32 s{T}, s{T}, 2\ns_mov_b64 exec, 1")
    a(f"buffer_atomic_add v{tv}, v{tv+1}, s[{S_DBG}:{S_DBG+3}], s{T} offen sc1")
    a(f"s_mov_b64 exec, -1\n{L}:")

def wait_init(a, vaddr):
    a(f"s_mov_b32 s{T+1}, {SPIN}")
    LP = a.label(); LD = a.label()
    a(f"{LP}:\nv_cmp_gt_u32 vcc, 4, v{TV+2}\ns_cbranch_vccz {LD}")
    a(f"buffer_load_dword v{TV+2}, v{vaddr}, s[{S_DBG}:{S_DBG+3}], 0 offen sc1\ns_waitcnt vmcnt(0)")
    a(f"s_sub_u32 s{T+1}, s{T+1}, 1\ns_cmp_lg_u32 s{T+1}, 0\ns_cbranch_scc1 {LP}")
    a(f"{LD}:\ns_mov_b64 exec, -1")

class VM:
    def __init__(self): self.ops = []
    def add(self, tag, n=1): self.ops += [tag]*n
    def need(self, *tags):
        last = max(k for k, t in enumerate(self.ops) if t in tags)
        return min(63, len(self.ops) - 1 - last)

vXD = 15
TAB = V
WS_ST2 = 12*MB + 512*1024
WS_CS = 13*MB

def x_dma(a, qs=range(8), fl="sc1"):
    a(f"s_lshl_b32 s{T}, s{sI}, 16\n" + (f"s_add_u32 s{T+1}, s{sW}, s{sJ}\ns_and_b32 s{T+1}, s{T+1}, 7\ns_lshl_b32 s{T+1}, s{T+1}, 10" if C.xrot else f"s_lshl_b32 s{T+1}, s{sW}, 10"))
    for q in qs:
        a(f"s_add_u32 m0, s{T+1}, {E + q*8192 - q*128}\ns_nop 0" if q else f"s_mov_b32 m0, s{T+1}\ns_nop 0")
        a(f"buffer_load_dwordx4 v{vXD}, s[{S_XS}:{S_XS+3}], s{T} offen offset:{128*q} {fl} lds")

def split_hi_lo(a, src, hi2, lo2, t, neg=False):
    if neg: a(f"v_sub_f32 v{src}, 0, v{src}")
    a(f"v_cvt_pk_bf16_f32 v{t}, v{src}, v{src}\nv_and_b32 v{t}, 0xffff0000, v{t}\nv_sub_f32 v{t+1}, v{src}, v{t}")

def helper_setup(a):
    src, dst = T+2, T+3
    a(f"s_sub_u32 s{dst}, s{sW}, 4\ns_mul_i32 s{src}, s{dst}, {16*3072}\ns_lshl_b32 s{T}, s{sJ}, 7\ns_add_u32 s{src}, s{src}, s{T}")
    a(f"s_lshl_b32 s{T}, s{dst}, 4\nv_lshrrev_b32 v40, 2, v{vL}\nv_add_u32 v40, s{T}, v40")
    a(f"s_lshl_b32 s{dst}, s{dst}, 11\ns_add_u32 s{dst}, s{dst}, {V}")

def helper_unit(a, u, vm):
    for p in range(2):
        a(f"s_add_u32 m0, s{T+3}, {(u % 12)*8192 + p*1024}\ns_add_u32 s{T}, s{T+2}, {qkv_src(u) + p*8*3072}")
        a(f"buffer_load_dwordx4 v{vWQ}, s[{S_QKV}:{S_QKV+3}], s{T} offen lds")
    vm.add(("w", u), 2)

def helper_loop(a, layer, vm, issued, sched, LJ):
    ROW, S1, S2, G = 40, 42, 44, 48
    first = issued
    for s in range(12):
        tags = [t for t in [("x", s), ("w", 2*s+1)] if t in vm.ops]
        if s == 6 and layer == 1: tags.append("g")
        if tags: a(f"s_waitcnt vmcnt({vm.need(*tags)})")
        if s == 8: a("s_waitcnt lgkmcnt(0)")
        a("s_barrier")
        if s == 7: a(f"ds_write_b32 v{ROW}, v{S1}\nds_write_b32 v{ROW}, v{S2} offset:256")
        for _ in range(sched[s]):
            assert issued < 2*s + 12 and issued < 24
            helper_unit(a, issued, vm); issued += 1
        assert s == 11 or issued >= 2*s + 4
        if s == 6:
            if layer == 1: a(f"v_add_f32 v{S1}, v{G}, v{G+2}\nv_add_f32 v{S2}, v{G+1}, v{G+3}")
            for pat in ("quad_perm:[1,0,3,2]", "quad_perm:[2,3,0,1]"):
                a("s_nop 1")
                for r in (S1, S2): a(f"v_add_f32_dpp v{r}, v{r}, v{r} {pat} row_mask:0xf bank_mask:0xf")
            a(f"v_mul_f32 v{S1}, {f2u(1/512)}, v{S1}\nv_mul_f32 v{S2}, {f2u(1/512)}, v{S2}")
            a(f"v_fma_f32 v{S2}, -v{S1}, v{S1}, v{S2}\nv_max_f32 v{S2}, 0, v{S2}\nv_add_f32 v{S2}, {f2u(1e-5)}, v{S2}\nv_rsq_f32 v{S2}, v{S2}")
            a(f"v_lshlrev_b32 v{ROW}, 2, v{ROW}\nv_add_u32 v{ROW}, {TAB}, v{ROW}")
        if s == 8 and layer == 0:
            a(f"v_lshlrev_b32 v46, 2, v{vL}\nbuffer_load_dword v{TV+2}, v46, s[{S_DBG}:{S_DBG+3}], 0 offen sc1"); vm.add("dbg")
        if s == C.w1t and layer == 0:
            a(f"s_lshl_b32 s{T}, s2, 2\ns_add_u32 s{T}, s{T}, s{sW}\ns_sub_u32 s{T}, s{T}, 4\ns_mul_i32 s{T+1}, s{T}, {56*128}\nv_min_u32 v47, 55, v{vL}\nv_lshlrev_b32 v47, 7, v47")
            a(f"buffer_load_dword v142, v47, s[{S_W1}:{S_W1+3}], s{T+1} offen")
            a(f"s_lshl_b32 s{T+1}, s{T}, 9\nv_and_b32 v47, 0x180, v47\nbuffer_load_dword v143, v47, s[{S_WO}:{S_WO+3}], s{T+1} offen")
            vm.add("t", 2)
    assert issued == 24
    if layer == 0: a(f"s_waitcnt vmcnt({vm.need('dbg')})")
    def w4():
        if layer == 0: wait_init(a, 46)
        if C.lf: kl_publish(a)
        publish(a, "KV", sJ)
    if C.pub12:
        if layer == 0: if_wave_eq(a, 4, lambda: wait_init(a, 46))
        a("s_barrier")
        def w4b():
            if C.lf: kl_publish(a)
            publish(a, "KV", sJ)
        if_wave_eq(a, 4, w4b)
    else:
        if_wave_eq(a, 4, w4)
        a("s_barrier")
    a(f"s_branch {LJ}")

def x_start(a):
    a(f"s_mov_b32 s{sFL}, {WS_FLAG + 512*128}\ns_barrier")
    stamp(a, "p1.polled")
    if C.xp < 8:
        x_dma(a, range(C.xp)); a("s_barrier"); x_dma(a, range(C.xp, 8))
    else: x_dma(a)

def phase1(a):
    LC = "L_p1_cons"; LJ = "L_p1_join"
    a(f"s_cmp_lt_u32 s{sW}, 4\ns_cbranch_scc1 {LC}")
    helper_setup(a)
    a(f"v_and_b32 v41, 3, v{vL}\nv_lshlrev_b32 v41, 9, v41\nv_lshl_add_u32 v41, v40, 3, v41")
    keep = C.stamp; C.stamp = False; x_start(a); C.stamp = keep
    a(f"s_lshl_b32 s{T}, s{sI}, 12\ns_add_u32 s{T}, s{T}, {WS_ST2}")
    a(f"buffer_load_dwordx2 v[48:49], v41, s[{S_WS}:{S_WS+3}], s{T} offen sc1\nbuffer_load_dwordx2 v[50:51], v41, s[{S_WS}:{S_WS+3}], s{T} offen offset:2048 sc1")
    vm = VM()
    for q in range(8): vm.add(("x", q))
    vm.add("g", 2)
    helper_loop(a, 1, vm, 12, [int(c) for c in C.hs1], LJ)
    a(f"{LC}:")
    tt, ch = T+2, T+3
    a(f"s_and_b32 s{tt}, s{sW}, 1\ns_lshr_b32 s{ch}, s{sW}, 1")
    XA = 40
    a(f"v_and_b32 v44, 31, v{vL}\ns_lshl_b32 s{T}, s{tt}, 5\nv_add_u32 v44, s{T}, v44\nv_lshlrev_b32 v38, 2, v44\nv_add_u32 v38, {TAB}, v38")
    a(f"v_bfe_u32 v45, v{vL}, 1, 3\nv_lshrrev_b32 v46, 5, v{vL}\nv_xor_b32 v45, v45, v46\nv_lshlrev_b32 v45, 4, v45\nv_lshl_add_u32 v{XA}, v44, 7, v45")
    for m in range(1, 4): a(f"v_xor_b32 v{XA+m}, {32*m}, v{XA}")
    a(f"s_lshl_b32 s{T}, s{tt}, 7\ns_add_u32 s{T}, s{T}, {TAB+256}\nv_lshlrev_b32 v37, 4, v46\nv_add_u32 v37, s{T}, v37")
    WL, WH = 44, 45
    tr_addr(a, WL, f"s{ch}", False, 46, 47)
    a(f"v_add_u32 v{WL}, {V}, v{WL}\nv_add_u32 v{WH}, {6*8192}, v{WL}")
    AK, AV, AQ = 48, 64, 80
    CS, SEL = 20, 32
    a(f"v_and_b32 v46, 31, v{vL}\nv_cmp_eq_u32 vcc, 0, v46\nv_cmp_eq_u32 s[{T+4}:{T+5}], 20, v46\ns_or_b64 vcc, vcc, s[{T+4}:{T+5}]\nv_mov_b32 v47, 0x3f803f80\ns_nop 1\nv_cndmask_b32 v{SEL}, 0, v47, vcc")
    for r in range(1, 4): a(f"v_mov_b32 v{SEL+r}, v{SEL}")
    csoff = T+8
    a(f"s_lshl_b32 s{csoff}, s2, 2\ns_add_u32 s{csoff}, s{csoff}, s{sW}\ns_lshl_b32 s{csoff}, s{csoff}, 10\ns_add_u32 s{csoff}, s{csoff}, {WS_CS}")
    for r in range(12): a(f"v_mov_b32 v{CS+r}, 0")
    def fr(buf, n):
        if buf == 0: return ("a", n)
        return ("a", 64+n) if n < 48 else ("v", 96 + n - 48)
    def R(buf, n, w):
        p, b = fr(buf, n); return f"{p}[{b}:{b+w-1}]"
    def wslot(u):
        s = u % 12
        return (WL, s*8192) if s < 6 else (WH, (s-6)*8192)
    def rd(s):
        buf = s & 1; out = []
        if s < 8:
            for t in range(4):
                out.append(f"ds_read_b128 {R(buf, 12*t, 4)}, v{XA+t} offset:{8192*s}")
                for seg in range(2):
                    va, off = wslot(2*s+seg)
                    for e in range(2):
                        out.append(f"ds_read_b64_tr_b16 {R(buf, 12*t+4+4*seg+2*e, 2)}, v{va} offset:{off + t*2048 + e*512}")
        else:
            for t in range(8):
                out.append(f"ds_read_b128 {R(buf, 8*t, 4)}, v{XA+(t&3)} offset:{16384*(s-8) + (t>>2)*8192}")
                va, off = wslot(2*s + (t >> 2))
                for e in range(2):
                    out.append(f"ds_read_b64_tr_b16 {R(buf, 8*t+4+2*e, 2)}, v{va} offset:{off + (t&3)*2048 + e*512}")
        return out
    def mf(s):
        buf = s & 1; out = []
        if s < 8:
            for t in range(4):
                z = s == 0 and t == 0
                out.append(f"v_mfma_f32_32x32x16_bf16 v[{AK}:{AK+15}], {R(buf, 12*t+4, 4)}, {R(buf, 12*t, 4)}, " + ("0" if z else f"v[{AK}:{AK+15}]"))
                out.append(f"v_mfma_f32_32x32x16_bf16 v[{AV}:{AV+15}], {R(buf, 12*t, 4)}, {R(buf, 12*t+8, 4)}, " + ("0" if z else f"v[{AV}:{AV+15}]"))
        else:
            for t in range(8):
                out.append(f"v_mfma_f32_32x32x16_bf16 v[{AQ}:{AQ+15}], {R(buf, 8*t+4, 4)}, {R(buf, 8*t, 4)}, " + ("0" if s == 8 and t == 0 else f"v[{AQ}:{AQ+15}]"))
        return out
    OOL = []
    def csum(s):
        buf = s & 1
        L = a.label("Lcs"); LR = a.label("Lcr")
        a(f"s_cbranch_vccnz {L}\n{LR}:")
        o = [f"{L}:"]
        if s < 8:
            for t in range(4):
                for seg in range(2):
                    o.append(f"v_mfma_f32_16x16x32_bf16 v[{CS+4*seg}:{CS+4*seg+3}], v[{SEL}:{SEL+3}], {R(buf, 12*t+4+4*seg, 4)}, v[{CS+4*seg}:{CS+4*seg+3}]")
            if s == C.arrs and C.lateinit:
                b = Asm(); b.n = 90000
                init_arrive(b, pre="s_waitcnt vmcnt(2)", tv=126); o += b.L
            if s == 7: o += ["s_nop 7", f"v_mov_b32 v{ST4}, v{CS}", f"v_mov_b32 v{ST4+1}, v{CS+4}"]
        else:
            for t in range(8):
                o.append(f"v_mfma_f32_16x16x32_bf16 v[{CS+8}:{CS+11}], v[{SEL}:{SEL+3}], {R(buf, 8*t+4, 4)}, v[{CS+8}:{CS+11}]")
            if s == 11: o += ["s_nop 7", f"v_mov_b32 v{ST4+2}, v{CS+8}"]
        o.append(f"s_branch {LR}")
        OOL.append("\n".join(o))
    ST4 = 16
    def inter(m, r, per):
        per = max(per, -(-len(r)//len(m)))
        for x in range(len(m)):
            a(m[x])
            for y in r[x*per:(x+1)*per]: a(y)
    a(f"s_lshl_b32 s{T+4}, s{sI}, 1\ns_add_u32 s{T+4}, s{T+4}, s{tt}")
    a(f"s_lshl_b32 s{T+5}, s{sJ}, 2\ns_lshl_b32 s{T+6}, s{ch}, 1\ns_add_u32 s{T+5}, s{T+5}, s{T+6}")
    a(f"s_lshl_b32 s{T+5}, s{T+5}, 6\ns_add_u32 s{T+5}, s{T+5}, s{T+4}")
    a(f"s_lshl_b32 s{T+4}, s{T+5}, 11\ns_add_u32 s{T+4}, s{T+4}, s{sLB}\ns_add_u32 s{T+5}, s{T+4}, 131072")
    assert WS_KV == 0
    a(f"v_and_b32 v46, 0x33, v{vL}\nv_bfe_u32 v47, v{vL}, 2, 1\nv_lshl_add_u32 v46, v47, 3, v46\nv_bfe_u32 v47, v{vL}, 3, 1\nv_lshl_add_u32 v46, v47, 2, v46\nv_lshlrev_b32 v46, 4, v46")
    a(f"v_bfe_u32 v39, v{vL}, 4, 1\nv_lshlrev_b32 v47, 17, v39\nv_lshrrev_b32 v39, 5, v{vL}\nv_lshl_add_u32 v47, v39, 8, v47\nv_and_b32 v39, 15, v{vL}\nv_lshl_add_u32 v47, v39, 4, v47")
    Lx = a.label()
    a(f"s_cmp_eq_u32 s{sL}, 0\ns_cbranch_scc1 {Lx}")
    if_wave_eq(a, 0, lambda: poll(a, "X", sI, 8))
    x_start(a)
    a(f"{Lx}:")
    a(f"buffer_load_dwordx4 v[{ST4}:{ST4+3}], v{vL16}, s[{S_WS}:{S_WS+3}], s{csoff} offen sc1")
    a("s_waitcnt vmcnt(8)\ns_barrier")
    stamp(a, "p1.b0")
    for x in rd(0): a(x)
    P, RB, MU, RR = 112, 128, 36, 39
    def aug_w(seg, d):
        return [f"v_cvt_pk_bf16_f32 v{d}, v{ST4+seg}, v{ST4+seg}", f"v_and_b32 v{d+1}, 0xffff0000, v{d}", f"v_sub_f32 v{d+1}, v{ST4+seg}, v{d+1}", f"v_cvt_pk_bf16_f32 v{d+1}, v{d+1}, v{d+1}"]
    XM = 22
    a(f"s_cmp_eq_u32 s{sL}, 0\ns_cselect_b64 vcc, -1, 0")
    def waitbar(s):
        vmw = f"vmcnt({7-s}) " if s < 7 else ("vmcnt(0) " if s == 7 or (s == 10 and not C.pub12) else "")
        a(f"s_waitcnt {vmw}lgkmcnt(0)\ns_barrier")
        stamp(a, f"zq.{s+1:02d}")
    waitbar(0)
    for s in range(12):
        m = mf(s)
        r = rd(s+1) if s < 11 else []
        csum(s)
        if s == 7:
            tab = [f"ds_read_b32 v{MU}, v38", f"ds_read_b32 v{RR}, v38 offset:256"] + [f"ds_read_b128 v[{RB+4*k}:{RB+4*k+3}], v37 offset:{32*k}" for k in range(4)]
            mk = m[0::2]; mv = m[1::2]
            aw = aug_w(0, 24) + aug_w(1, 26)
            xm = [f"v_sub_f32 v{MU}, 0, v{MU}", f"v_cvt_pk_bf16_f32 v{XM}, v{MU}, v{MU}", f"v_and_b32 v{XM+1}, 0xffff0000, v{XM}", f"v_sub_f32 v{XM+1}, v{MU}, v{XM+1}", f"v_cvt_pk_bf16_f32 v{XM}, v{MU}, v{XM+1}", f"v_mov_b32 v{XM+1}, v{XM}"]
            a(mk[0]); [a(x) for x in tab]
            a(mk[1]); [a(x) for x in aw[:4] + r[:3]]
            a(mk[2]); [a(x) for x in aw[4:] + r[3:6]]
            a(mk[3]); a("s_waitcnt lgkmcnt(10)"); [a(x) for x in xm]
            a(mv[0]); [a(x) for x in r[6:9]]
            a(f"v_mfma_f32_32x32x8_bf16 v[{AK}:{AK+15}], v[24:25], v[{XM}:{XM+1}], v[{AK}:{AK+15}]"); [a(x) for x in r[9:14]]
            a(mv[1]); [a(x) for x in r[14:19]]
            a(mv[2]); [a(x) for x in r[19:24]]
            a(mv[3])
            for k in range(10): a(f"v_mul_f32 v{AK+k}, v{AK+k}, v{RR}")
            a(f"v_mfma_f32_32x32x8_bf16 v[{AV}:{AV+15}], v[{XM}:{XM+1}], v[26:27], v[{AV}:{AV+15}]")
            for k in range(10, 16): a(f"v_mul_f32 v{AK+k}, v{AK+k}, v{RR}")
            for k in range(8): a(f"v_cvt_pk_bf16_f32 v{P+k}, v{AK+2*k}, v{AK+2*k+1}")
            a(f"buffer_store_dwordx4 v[{P}:{P+3}], v46, s[{S_WS}:{S_WS+3}], s{T+4} offen sc1")
            a(f"buffer_store_dwordx4 v[{P+4}:{P+7}], v46, s[{S_WS}:{S_WS+3}], s{T+5} offen sc1")
            a("s_waitcnt lgkmcnt(15)")
            for k in range(16): a(f"v_mul_f32 v{AV+k}, v{AV+k}, v{RB+k}")
            for k in range(8): a(f"v_cvt_pk_bf16_f32 v{P+8+k}, v{AV+2*k}, v{AV+2*k+1}")
            a(f"buffer_store_dwordx4 v[{P+8}:{P+11}], v47, s[{S_WS}:{S_WS+3}], s{T+4} offen offset:1024 sc1")
            a(f"buffer_store_dwordx4 v[{P+12}:{P+15}], v47, s[{S_WS}:{S_WS+3}], s{T+4} offen offset:1536 sc1")
            stamp(a, "p1.kvst")
            waitbar(8)
        elif s < 11:
            e = C.early
            per = -(-len(r)//min(e, 5))
            for x in range(8):
                a(m[x])
                for y in r[x*per:(x+1)*per]: a(y)
                if x == e: waitbar(s+1) if s < 10 else a("s_waitcnt vmcnt(0) lgkmcnt(0)\ns_barrier")
        else:
            aw = aug_w(2, 24)
            a(m[0])
            a(f"s_lshl_b32 s{T+6}, s{ch}, 12\ns_lshl_b32 s{T+7}, s{tt}, 10\ns_add_u32 s{T+6}, s{T+6}, s{T+7}\ns_add_u32 s{T+6}, s{T+6}, {QX}\nv_add_u32 v46, s{T+6}, v{vL16}")
            a(m[1]); [a(x) for x in aw]
            a(f"v_mul_f32 v{RR}, {f2u(0.25*1.4426950408889634)}, v{RR}")
            for x in m[2:]: a(x)
    stamp(a, "p1.mfma")
    a("s_nop 9")
    a(f"v_mfma_f32_32x32x8_bf16 v[{AQ}:{AQ+15}], v[24:25], v[{XM}:{XM+1}], v[{AQ}:{AQ+15}]")
    a(f"buffer_store_dwordx4 v[{ST4}:{ST4+3}], v{vL16}, s[{S_WS}:{S_WS+3}], s{csoff} offen sc1")
    a("s_nop 10")
    for r in range(16): a(f"v_mul_f32 v{AQ+r}, v{AQ+r}, v{RR}")
    for r in range(8): a(f"v_cvt_pk_bf16_f32 v{P+r}, v{AQ+2*r}, v{AQ+2*r+1}")
    a(f"ds_write_b128 v46, v[{P}:{P+3}]\nds_write_b128 v46, v[{P+4}:{P+7}] offset:2048")
    a(f"{LJ}:")
    return OOL

hh, kh, head, kvs, w1s, w1c, wos, tch, ring, kro, kfa = T+2, T+3, T+4, T+5, T+6, T+7, T+8, T+9, T+10, T+11, T+12
TD, VA_, IDX, TA, vF1, vWO, SGA, Q, S, O, KR, VR = 16, 18, 19, 20, 21, 22, 23, 24, [32, 48], [64, 80], 96, 112
CST = E + 33792
CMB = E + 37888

def phase2(a):
    t0, t1 = S[0], S[0]+1
    a(f"s_and_b32 s{hh}, s{sW}, 3\ns_lshr_b32 s{kh}, s{sW}, 2\ns_lshl_b32 s{head}, s{sJ}, 2\ns_add_u32 s{head}, s{head}, s{hh}")
    a(f"s_lshl_b32 s{kvs}, s{head}, 17\ns_lshl_b32 s{T}, s{kh}, 11\ns_add_u32 s{kvs}, s{kvs}, s{T}\ns_add_u32 s{kvs}, s{kvs}, s{sLB}")
    a(f"s_lshr_b32 s{kro}, s{sI}, 2\ns_lshl_b32 s{kro}, s{kro}, 14")
    a(f"s_lshl_b32 s{ring}, s{sW}, 12")
    Lk = a.label()
    a(f"s_cmp_lt_u32 s{sW}, 4\ns_cbranch_scc1 {Lk}")
    a(f"v_and_b32 v{t0}, 3, v{vL}\nv_cmp_eq_u32 vcc, 1, v{t0}\nv_mov_b32 v{t1}, 0x3f803f80\ns_nop 0\nv_cndmask_b32 v{t0+4}, 0, v{t1}, vcc")
    a(f"v_mov_b32 v{t0+5}, v{t0+4}\nv_mov_b32 v{t0+6}, v{t0+4}\nv_mov_b32 v{t0+7}, v{t0+4}")
    a(f"s_lshl_b32 s{T}, s{sW}, 10\ns_add_u32 s{T}, s{T}, {CST - 4096}\nv_add_u32 v{t0}, s{T}, v{vL16}\nds_write_b128 v{t0}, v[{t0+4}:{t0+7}]")
    if C.lf: if_wave_eq(a, 5, lambda: kl_poll(a))
    else: if_wave_eq(a, 5, lambda: poll(a, "KV", sJ, 32))
    a(f"{Lk}:")
    def post_setup():
        a(f"v_lshrrev_b32 v{t0}, 5, v{vL}\nv_lshlrev_b32 v{VA_}, 8, v{t0}\nv_and_b32 v{t0}, 15, v{vL}\nv_lshl_add_u32 v{VA_}, v{t0}, 4, v{VA_}\nv_add_u32 v{VA_}, s{ring}, v{VA_}\nv_add_u32 v{VA_}, 1024, v{VA_}")
        a(f"v_add_u32 v{t1}, 4, v{t0}\nv_and_b32 v{t1}, 8, v{t1}\nv_lshlrev_b32 v{t1}, 3, v{t1}\nv_add_u32 v{t1}, {CST}, v{t1}")
        a(f"v_and_b32 v{t0}, 11, v{vL}\nv_cmp_eq_u32 vcc, 0, v{t0}\nv_add_u32 v{t0}, 16, v{t1}\ns_nop 0\nv_cndmask_b32 v{t1}, v{t1}, v{t0}, vcc")
        a(f"v_and_b32 v{t0}, 16, v{vL}\nv_cmp_eq_u32 vcc, 0, v{t0}\ns_nop 1\nv_cndmask_b32 v{VA_}, v{t1}, v{VA_}, vcc")
        a(f"v_mov_b32 v{IDX}, 0xdddddddd")
        for r in range(32): a(f"v_mov_b32 v{O[0]+r}, 0")
        if C.now1: a(f"s_mov_b32 s{S_W1+2}, 0")
        a(f"s_cmp_lg_u32 s{sL}, 0\ns_cselect_b32 s{S_QKV+2}, 0, s{S_QKV+2}")
        a(f"s_lshr_b32 s{w1s}, s{sW}, 1\ns_mul_i32 s{w1s}, s{w1s}, {512*3584}\ns_lshl_b32 s{T}, s{sI}, 7\ns_add_u32 s{w1s}, s{w1s}, s{T}")
        a(f"s_and_b32 s{T+1}, s{sW}, 1\ns_lshl_b32 s{T+1}, s{T+1}, 6\ns_add_u32 s{w1s}, s{w1s}, s{T+1}\ns_sub_u32 s{w1s}, s{w1s}, {16*3584}")
        if C.tmix:
            a(f"s_lshl_b32 s{tch}, s{sJ}, 2\ns_and_b32 s{T+1}, s{sI}, 3\ns_add_u32 s{tch}, s{tch}, s{T+1}\ns_lshl_b32 s{tch}, s{tch}, 3\ns_add_u32 s{tch}, s{tch}, s{sW}\ns_mul_i32 s{tch}, s{tch}, {7*4096}")
            a(f"s_lshr_b32 s{T+1}, s{sI}, 2\ns_lshl_b32 s{T+1}, s{T+1}, 9\ns_add_u32 s{tch}, s{tch}, s{T+1}")
            a(f"v_lshrrev_b32 v{TA}, 2, v{vL}\nv_lshlrev_b32 v{TA}, 12, v{TA}\nv_and_b32 v{t1}, 3, v{vL}\nv_lshl_add_u32 v{TA}, v{t1}, 7, v{TA}")
        else:
            a(f"s_lshl_b32 s{tch}, s{sJ}, 3\ns_add_u32 s{tch}, s{tch}, s{sW}\ns_mul_i32 s{tch}, s{tch}, {28*4096}\ns_add_u32 s{tch}, s{tch}, s{T}")
            a(f"v_lshlrev_b32 v{TA}, 12, v{vL}")
        a(f"v_cmp_gt_u32 vcc, 28, v{vL}\nv_mov_b32 v{t1}, 0x40000000\ns_nop 0\nv_cndmask_b32 v{TA}, v{t1}, v{TA}, vcc")
        a(f"s_lshl_b32 s{wos}, s{sW}, 13\ns_lshl_b32 s{T}, s{sJ}, 7\ns_add_u32 s{wos}, s{wos}, s{T}")
        a(f"s_lshl_b32 s{T}, s{hh}, 11\ns_add_u32 s{T}, s{T}, {QX}\nv_add_u32 v{t1}, s{T}, v{vL16}\nv_subrev_u32 v{SGA}, {SVO}, v{vTRF}")
        a(f"v_lshrrev_b32 v{t0+2}, 2, v{vL}\nv_and_b32 v{t0+3}, 3, v{vL}\nv_lshlrev_b32 v{t0+3}, 4, v{t0+3}\nv_mul_u32_u24 v{vF1}, 3584, v{t0+2}\nv_add_u32 v{vF1}, v{vF1}, v{t0+3}")
        a(f"v_lshrrev_b32 v{t0+2}, 3, v{vL}\nv_lshlrev_b32 v{t0+2}, 11, v{t0+2}\nv_sub_u32 v{vWO}, v{vWQ}, v{t0+2}")
        if C.lf: flag_addr(a, "KV", kfa)
    a("s_waitcnt lgkmcnt(0)\ns_barrier")
    stamp(a, "p2.start")
    vm = VM()
    kcur = T+13
    assert C.lfi < C.lfc
    GP = 128
    def kv_issue(t):
        k = KR + 4*(t & 3)
        if t % 4 == 0: a(f"s_add_u32 s{kcur}, s{kvs}, s{kro}\ns_add_u32 s{kro}, s{kro}, 16384\ns_and_b32 s{kro}, s{kro}, 0x1ffff")
        else: a(f"s_addk_i32 s{kcur}, 4096")
        a(f"s_add_u32 m0, s{ring}, {(t & 3)*1024}")
        a(f"buffer_load_dwordx4 v[{k}:{k+3}], v{vL16}, s[{S_WS}:{S_WS+3}], s{kcur} offen sc1")
        a(f"buffer_load_dwordx4 v{vL16}, s[{S_WS}:{S_WS+3}], s{kcur} offen offset:1024 sc1 lds")
        vm.add(("kv", t), 2)
    def v_read(t):
        v = VR + 8*(t & 1)
        a(f"ds_read_b128 v[{v}:{v+3}], v{VA_} offset:{(t & 3)*1024}\nds_read_b128 v[{v+4}:{v+7}], v{VA_} offset:{(t & 3)*1024 + 512}")
    def w1_issue(f):
        if f % 4 == 0:
            a(f"s_and_b32 s{w1c}, s{sJ}, {C.jrot}\ns_add_u32 s{w1c}, s{w1c}, {f//4}\ns_and_b32 s{w1c}, s{w1c}, 7\ns_mul_i32 s{w1c}, s{w1c}, {64*3584}\ns_add_u32 s{w1c}, s{w1c}, s{w1s}")
        a(f"s_add_u32 m0, s{sVW}, {STG - V + (f & 3)*8192}\ns_add_u32 s{w1c}, s{w1c}, {16*3584}")
        a(f"buffer_load_dwordx4 v{vF1}, s[{S_W1}:{S_W1+3}], s{w1c} offen{' nt' if C.w1nt else ''} lds")
        vm.add(("w1", f))
    def wo_issue(u):
        a(f"s_add_u32 m0, s{sVW}, {SVO + u*8192}\ns_add_u32 s{T}, s{wos}, {u*65536}")
        a(f"buffer_load_dwordx4 v{vWO}, s[{S_WO}:{S_WO+3}], s{T} offen lds")
        vm.add(("wo", u))
    def touch(n):
        a(f"s_cmp_eq_u32 s{sJ}, {n}\ns_cselect_b32 s{T}, s{tch}, 0x40000000")
        a(f"buffer_load_dword v{TD}, v{TA}, s[{S_W2}:{S_W2+3}], s{T} offen")
        vm.add(("t", n))
    def ex(s, r0, r1):
        for r in range(r0, r1): a(f"v_exp_f32 v{s+r}, v{s+r}")
    def setprio(p):
        L = a.label()
        a(f"s_cmp_lg_u32 s{kh}, 0\ns_cbranch_scc1 {L}\ns_setprio {p}\n{L}:")
    def qk(q, t): a(f"v_mfma_f32_32x32x16_bf16 v[{S[q]}:{S[q]+15}], v[{KR+4*(t&3)}:{KR+4*(t&3)+3}], v[{Q+4*q}:{Q+4*q+3}], 0")
    def pv(q, t, h): a(f"v_smfmac_f32_32x32x32_bf16 v[{O[q]}:{O[q]+15}], v[{VR+8*(t&1)+4*h}:{VR+8*(t&1)+4*h+3}], v[{S[q]+8*h}:{S[q]+8*h+7}], v{IDX}")
    kv_issue(0); kv_issue(1)
    post_setup()
    a(f"ds_read_b128 v[{Q}:{Q+3}], v{t1}\nds_read_b128 v[{Q+4}:{Q+7}], v{t1} offset:1024")
    if C.prio: a("s_setprio 1")
    a(f"s_waitcnt vmcnt(2) lgkmcnt(0)")
    qk(0, 0)
    v_read(0)
    kv_issue(2); kv_issue(3)
    a(f"s_lshr_b32 s{T}, s{sI}, 2\ns_lshl_b32 s{T}, s{T}, 9\ns_add_u32 s{T}, s{T}, {WS_XT}\nv_and_b32 v17, 0x1f0, v{vL16}")
    a(f"buffer_load_dword v17, v17, s[{S_WS}:{S_WS+3}], s{T} offen sc1"); vm.add("xt")
    if C.c3:
        a(f"s_lshr_b32 s{T}, s2, 3\ns_lshl_b32 s{T}, s{T}, 3\ns_add_u32 s{T}, s{T}, s{sW}\ns_lshl_b32 s{T+1}, s{T}, 11\ns_add_u32 s{T+1}, s{T+1}, 384")
        a(f"v_min_u32 v{GP+1}, 1, v{vL}\nv_lshlrev_b32 v{GP+1}, 10, v{GP+1}\nbuffer_load_dword v{GP+1}, v{GP+1}, s[{S_WO}:{S_WO+3}], s{T+1} offen")
        a(f"s_mul_i32 s{T}, s{T}, {8*3584}\ns_or_b32 s{T+1}, s{sI}, 3\ns_lshl_b32 s{T+1}, s{T+1}, 7\ns_add_u32 s{T}, s{T}, s{T+1}")
        a(f"v_min_u32 v{GP+2}, 7, v{vL}\nv_mul_u32_u24 v{GP+2}, 3584, v{GP+2}\nbuffer_load_dword v{GP+2}, v{GP+2}, s[{S_W1}:{S_W1+3}], s{T} offen")
        vm.add("c3", 2)
    stamp(a, "p2.kv0")
    a("s_nop 1")
    per = C.pper; low = C.plow
    for t in range(32):
        for q in range(2):
            hidx = 2*t + q
            if C.prio and hidx % per == 0: setprio(2)
            if C.prio and hidx % per == per - low: setprio(0)
            ex(S[q], 0, 2)
            if q == 0:
                if t > 0: pv(1, t-1, 1)
            else: pv(0, t, 1)
            ex(S[q], 2, 5)
            if q == 0:
                qk(1, t)
                need = [("kv", t+1)] if t < 31 else []
                if not C.nox and 3 <= t < 31: need.append(("w1", t-3))
                if C.lf and t == C.lfc: need.append("gp")
                a(f"s_waitcnt vmcnt({vm.need(*need) if need else 63}) lgkmcnt(0)")
                if C.lf and t == C.lfi: apoll_issue(a, kfa, GP); vm.add("gp")
                if C.lf and t == C.lfc:
                    apoll_check(a, kfa, GP, 32)
                    for k in range(4, t+4): kv_issue(k)
                if t+4 < 32 and not (C.lf and t < C.lfc): kv_issue(t+4)
                if t+1 < 32: v_read(t+1)
                if not C.nox and not C.split:
                    w1_issue(t)
                    if 3 <= t < 31:
                        for x in frag_reads(f"a{4*(t-3)}", SGA, ((t-3) & 3)*8192): a(x)
            else:
                if t < 31: qk(0, t+1)
                if not C.nox:
                    if C.split:
                        w1_issue(t)
                        if 3 <= t < 31:
                            for x in frag_reads(f"a{4*(t-3)}", SGA, ((t-3) & 3)*8192): a(x)
                    if t == 28 and C.pret:
                        a(f"s_lshl_b32 s{T}, s{sI}, 1\ns_add_u32 s{T}, s{T}, s{kh}\ns_lshl_b32 s{T}, s{T}, 5\ns_add_u32 s{T}, s{T}, s{head}\ns_lshl_b32 s{T}, s{T}, 10")
                        a(f"s_add_u32 s{T}, s{T}, {WS_O}\ns_add_u32 s{T}, s{T}, s{sLB}")
                        a(f"buffer_load_dword v{TD}, v{vL16}, s[{S_WS}:{S_WS+3}], s{T} offen sc1")
                        a(f"s_lshl_b32 s{T}, s{sI}, 3\ns_add_u32 s{T}, s{T}, s{sJ}\ns_lshl_b32 s{T+1}, s{T}, 10\ns_add_u32 s{T+1}, s{T+1}, {WS_ST}\ns_add_u32 s{T+1}, s{T+1}, s{sLB}")
                        a(f"buffer_load_dword v{TD}, v{vL16}, s[{S_WS}:{S_WS+3}], s{T+1} offen sc1")
                        a(f"buffer_load_dword v{TD}, v{vXO}, s[{S_XD}:{S_XD+3}], s{sXO} offen sc1")
                        vm.add("pre", 3)
                    if t % 4 == 1: wo_issue(t//4)
                    if t % 4 == 3 and C.stouch == 1: touch(t//4)
                    if t % 3 == 2 and t < 24 and C.stouch == 2: touch(t//3)
                    if t == C.t2:
                        a(f"buffer_load_dword v{TD}, v{TA}, s[{S_W2}:{S_W2+3}], s{tch} offen{' nt' if C.w2nt else ''}"); vm.add("t2")
            ex(S[q], 5, 11)
            pv(q, t, 0)
            ex(S[q], 11, 16)
    a("s_nop 1")
    pv(1, 31, 1)
    if C.prio: a("s_setprio 0")
    stamp(a, "p2.loop")
    M, N = 48, 36
    a(f"v_readfirstlane_b32 s{T}, v17\ns_nop 1\nv_cmp_ne_u32 vcc, s{T}, v17\ns_nop 1\ns_cmp_eq_u64 vcc, 0\ns_cselect_b32 s{sLOC}, 1, 0")
    a(f"s_mul_i32 s{T}, s{sW}, 3072\ns_add_u32 s{T}, s{T}, {CMB}\nv_add_u32 v17, s{T}, v{vL16}")
    a(f"s_xor_b32 s{T}, s{sW}, 4\ns_mul_i32 s{T}, s{T}, 3072\ns_add_u32 s{T}, s{T}, {CMB}\nv_add_u32 v{VA_}, s{T}, v{vL16}")
    a(f"s_lshl_b32 s{T}, s{sI}, 1\ns_add_u32 s{T}, s{T}, s{kh}\ns_lshl_b32 s{T}, s{T}, 5\ns_add_u32 s{T}, s{T}, s{head}\ns_lshl_b32 s{T}, s{T}, 10")
    a(f"s_add_u32 s{T}, s{T}, {WS_O}\ns_add_u32 s{T}, s{T}, s{sLB}")
    LA = a.label(); LB = a.label()
    a(f"s_cmp_eq_u32 s{kh}, 0\ns_cbranch_scc1 {LA}")
    a(f"ds_write_b128 v17, v[{O[0]}:{O[0]+3}]\nds_write_b128 v17, v[{O[0]+4}:{O[0]+7}] offset:1024\nds_write_b32 v17, v{O[0]+8} offset:2048")
    for r in range(9): a(f"v_mov_b32 v{M+r}, v{O[1]+r}")
    a(f"s_branch {LB}\n{LA}:")
    a(f"ds_write_b128 v17, v[{O[1]}:{O[1]+3}]\nds_write_b128 v17, v[{O[1]+4}:{O[1]+7}] offset:1024\nds_write_b32 v17, v{O[1]+8} offset:2048")
    for r in range(9): a(f"v_mov_b32 v{M+r}, v{O[0]+r}")
    a(f"{LB}:")
    wo_wait = vm.need(("wo", 7)) if not C.nox else 0
    a(f"s_waitcnt vmcnt({wo_wait}) lgkmcnt(0)\ns_barrier")
    a(f"ds_read_b128 v[{N}:{N+3}], v{VA_}\nds_read_b128 v[{N+4}:{N+7}], v{VA_} offset:1024\nds_read_b32 v{N+8}, v{VA_} offset:2048")
    a("s_waitcnt lgkmcnt(0)")
    for r in range(9): a(f"v_add_f32 v{M+r}, v{M+r}, v{N+r}")
    a(f"v_add_f32 v{N}, abs(v{M}), abs(v{M+1})\nv_add_f32 v{N+1}, abs(v{M+2}), abs(v{M+3})\nv_add_f32 v{N+2}, abs(v{M+4}), abs(v{M+5})\nv_add_f32 v{N+3}, abs(v{M+6}), abs(v{M+7})")
    a(f"v_add_f32 v{N}, v{N}, v{N+1}\nv_add_f32 v{N+2}, v{N+2}, v{N+3}\nv_cmp_nge_f32 vcc, {f2u(2.0**60)}, v{M+8}\nv_add_f32 v{N}, v{N}, v{N+2}")
    a(f"s_mov_b64 s[{T+12}:{T+13}], vcc\nv_cmp_nle_f32 vcc, {f2u(2.0**-60)}, v{M+8}\ns_nop 0\ns_or_b64 s[{T+12}:{T+13}], s[{T+12}:{T+13}], vcc")
    a(f"v_cmp_ngt_f32 vcc, 0x7f800000, v{N}\ns_nop 0\ns_or_b64 s[{T+12}:{T+13}], s[{T+12}:{T+13}], vcc\ns_cbranch_scc1 L_softmax_safe\nL_softmax_done:")
    a(f"v_rcp_f32 v{M+8}, v{M+8}\ns_nop 0")
    for r in range(8): a(f"v_mul_f32 v{M+r}, v{M+r}, v{M+8}")
    for r in range(4): a(f"v_cvt_pk_bf16_f32 v{N+r}, v{M+2*r}, v{M+1+2*r}")
    rstore(a, f"buffer_store_dwordx4 v[{N}:{N+3}], v{vL16}, s[{S_WS}:{S_WS+3}], s{T} offen", bulk=True)

def softmax_safe(a):
    M = 48
    QF, KF, VF, SS, CC, OO, MX, VO = 100, 104, 108, 64, 80, 120, 116, 117
    base, cur, n = T+12, T+13, T+14
    a("L_softmax_safe:")
    L = a.label()
    for r in range(4): a(f"v_mov_b32 v{QF+r}, v{Q+r}")
    a(f"s_cmp_eq_u32 s{kh}, 0\ns_cbranch_scc1 {L}")
    for r in range(4): a(f"v_mov_b32 v{QF+r}, v{Q+4+r}")
    a(f"{L}:")
    a(f"s_lshl_b32 s{base}, s{head}, 17\ns_add_u32 s{base}, s{base}, s{sLB}")
    a(f"v_mov_b32 v{MX}, 0xff800000\ns_mov_b32 s{cur}, s{base}\ns_mov_b32 s{n}, 64")
    L1 = a.label()
    a(f"{L1}:")
    a(f"buffer_load_dwordx4 v[{KF}:{KF+3}], v{vL16}, s[{S_WS}:{S_WS+3}], s{cur} offen sc1\ns_waitcnt vmcnt(0)")
    a(f"v_mfma_f32_32x32x16_bf16 v[{SS}:{SS+15}], v[{KF}:{KF+3}], v[{QF}:{QF+3}], 0\ns_nop 15")
    for r in range(0, 16, 2): a(f"v_max3_f32 v{MX}, v{MX}, v{SS+r}, v{SS+r+1}")
    a(f"s_add_u32 s{cur}, s{cur}, 2048\ns_sub_u32 s{n}, s{n}, 1\ns_cmp_lg_u32 s{n}, 0\ns_cbranch_scc1 {L1}")
    a(f"v_mov_b32 v{VO}, v{MX}\ns_nop 1\nv_permlane32_swap_b32 v{MX}, v{VO}\ns_nop 1\nv_max_f32 v{MX}, v{MX}, v{VO}")
    for r in range(16): a(f"v_sub_f32 v{CC+r}, 0, v{MX}\nv_mov_b32 v{OO+r}, 0")
    for r in range(8): a(f"v_mov_b32 v{VF+r}, 0x3f803f80")
    a(f"v_lshrrev_b32 v{MX}, 5, v{vL}\nv_lshlrev_b32 v{VO}, 8, v{MX}\nv_and_b32 v{MX}, 15, v{vL}\nv_lshl_add_u32 v{VO}, v{MX}, 4, v{VO}")
    a(f"s_mov_b32 s{cur}, s{base}\ns_mov_b32 s{n}, 64")
    L2 = a.label()
    a(f"{L2}:")
    a(f"buffer_load_dwordx4 v[{KF}:{KF+3}], v{vL16}, s[{S_WS}:{S_WS+3}], s{cur} offen sc1")
    a("s_mov_b32 exec_lo, 0xffff\ns_mov_b32 exec_hi, 0xffff")
    a(f"buffer_load_dwordx4 v[{VF}:{VF+3}], v{VO}, s[{S_WS}:{S_WS+3}], s{cur} offen offset:1024 sc1")
    a(f"buffer_load_dwordx4 v[{VF+4}:{VF+7}], v{VO}, s[{S_WS}:{S_WS+3}], s{cur} offen offset:1536 sc1")
    a("s_mov_b64 exec, -1\ns_waitcnt vmcnt(0)")
    a(f"v_mfma_f32_32x32x16_bf16 v[{SS}:{SS+15}], v[{KF}:{KF+3}], v[{QF}:{QF+3}], v[{CC}:{CC+15}]\ns_nop 15")
    for r in range(16): a(f"v_exp_f32 v{SS+r}, v{SS+r}")
    a("s_nop 1")
    a(f"v_smfmac_f32_32x32x32_bf16 v[{OO}:{OO+15}], v[{VF}:{VF+3}], v[{SS}:{SS+7}], v{IDX}")
    a(f"v_smfmac_f32_32x32x32_bf16 v[{OO}:{OO+15}], v[{VF+4}:{VF+7}], v[{SS+8}:{SS+15}], v{IDX}\ns_nop 15")
    a(f"s_add_u32 s{cur}, s{cur}, 2048\ns_sub_u32 s{n}, s{n}, 1\ns_cmp_lg_u32 s{n}, 0\ns_cbranch_scc1 {L2}")
    for r in range(9): a(f"v_mov_b32 v{M+r}, v{OO+r}")
    a("s_branch L_softmax_done")

EOFF = 61692
def ep2_writes(acc, base, sw4k):
    off = EOFF if base >= EOFF else 0
    o = [f"ds_write_addtid_b32 v{acc+r} offset:{off + r*256}" for r in range(16)]
    o[0] = f"s_add_u32 m0, s{sw4k}, {base - off}\ns_nop 0\n" + o[0]
    return o

def ep2_read_addr(a, ra, base0, base1, sw4k, tv):
    a(f"s_and_b32 s{T}, s{sW}, 1\ns_lshl_b32 s{T}, s{T}, 2\ns_lshr_b32 s{T+1}, s{sW}, 1\ns_add_u32 s{T}, s{T}, s{T+1}\ns_lshl_b32 s{sw4k}, s{T}, 12")
    a(f"s_lshr_b32 s{T}, s{sW}, 2\ns_lshl_b32 s{T}, s{T}, 14\ns_and_b32 s{T+1}, s{sW}, 3\ns_lshl_b32 s{T+1}, s{T+1}, 10\ns_add_u32 s{T}, s{T}, s{T+1}\ns_add_u32 s{T}, s{T}, {base0}")
    a(f"v_and_b32 v{tv}, 3, v{vN}\nv_lshlrev_b32 v{ra}, 8, v{tv}\nv_bfe_u32 v{tv}, v{vN}, 2, 1\nv_lshl_add_u32 v{ra}, v{tv}, 7, v{ra}\nv_and_b32 v{tv}, 3, v{vC}\nv_lshl_add_u32 v{ra}, v{tv}, 5, v{ra}")
    a(f"v_add_u32 v{ra}, s{T}, v{ra}\nv_lshrrev_b32 v{tv}, 2, v{vC}\nv_mul_i32_i24 v{tv}, {base1 - base0}, v{tv}\nv_add_u32 v{ra}, v{ra}, v{tv}")

def ep2_sum(a, ra, add0, out):
    for k in range(4):
        a(f"ds_read_b128 v[{out+8*k}:{out+8*k+3}], v{ra} offset:{4096*k}\nds_read_b128 v[{out+8*k+4}:{out+8*k+7}], v{ra} offset:{4096*k+16}")
    a("s_waitcnt lgkmcnt(6)")
    for e in range(8): a(f"v_add_f32 v{out+e}, v{out+e}, v{add0+e}")
    a("s_waitcnt lgkmcnt(2)")
    for e in range(8): a(f"v_add_f32 v{out+8+e}, v{out+8+e}, v{out+16+e}")
    for e in range(8): a(f"v_add_f32 v{out+e}, v{out+e}, v{out+8+e}")
    a("s_waitcnt lgkmcnt(0)")
    for e in range(8): a(f"v_add_f32 v{out+e}, v{out+e}, v{out+24+e}")

def unpack8(a, dst, src):
    for e in range(4): a(f"v_lshlrev_b32 v{dst+2*e}, 16, v{src+e}\nv_and_b32 v{dst+1+2*e}, 0xffff0000, v{src+e}")

def phase3(a):
    OF, ACC, WF = 16, 48, 80
    W0, W1 = 20, 21
    tr_addr(a, W0, "0", True, 22, 23)
    a(f"s_lshr_b32 s{T+2}, s{sW}, 1\ns_lshl_b32 s{T+2}, s{T+2}, 14\ns_add_u32 s{T+2}, s{T+2}, {V+SVO}\nv_add_u32 v{W0}, s{T+2}, v{W0}\nv_xor_b32 v{W1}, 64, v{W0}")
    for t in range(8):
        for y in range(2):
            b = WF + 8*t + 4*y
            a(f"ds_read_b64_tr_b16 v[{b}:{b+1}], v{W0+y} offset:{t*2048}\nds_read_b64_tr_b16 v[{b+2}:{b+3}], v{W0+y} offset:{t*2048+1024}")
    src = T+2
    a(f"s_and_b32 s{src}, s{sW}, 1\ns_lshl_b32 s{src}, s{src}, 15\ns_lshr_b32 s{T+3}, s{sW}, 1\ns_lshl_b32 s{T+3}, s{T+3}, 13\ns_add_u32 s{src}, s{src}, s{T+3}")
    a(f"s_lshl_b32 s{T+3}, s{sI}, 16\ns_add_u32 s{src}, s{src}, s{T+3}\ns_add_u32 s{src}, s{src}, {WS_O}\ns_add_u32 s{src}, s{src}, s{sLB}\ns_add_u32 s{T+3}, s{src}, 4096")
    a("s_waitcnt vmcnt(0) lgkmcnt(0)\ns_barrier")
    stamp(a, "p2.end")
    n3 = [int(c) for c in C.sch3]; assert n3[0] == 4 and sum(n3) == 12
    if_wave_eq(a, 0, lambda: publish(a, "O", sI))
    for f in range(n3[0]): w2_dma(a, f)
    if_wave_eq(a, 0, lambda: poll(a, "O", sI, 8))
    a("s_barrier")
    stamp(a, "proj.polled")
    for t in range(8):
        a(f"buffer_load_dwordx4 v[{OF+4*t}:{OF+4*t+3}], v{vL16}, s[{S_WS}:{S_WS+3}], s{src + (t >> 2)} offen offset:{(t & 3)*1024} sc1")
    for t in range(8):
        a(f"s_waitcnt vmcnt({7-t})")
        for y in range(2):
            c = "0" if t == 0 else f"v[{ACC+16*y}:{ACC+16*y+15}]"
            a(f"v_mfma_f32_32x32x16_bf16 v[{ACC+16*y}:{ACC+16*y+15}], v[{OF+4*t}:{OF+4*t+3}], v[{WF+8*t+4*y}:{WF+8*t+4*y+3}], {c}")
        if t == 3:
            ep2_read_addr(a, 88, V+SVO, E+16, T+4, 80); unpack8(a, 96, vRES)
    stamp(a, "proj.loop")
    a("s_nop 8")
    OUT = 104
    for x in ep2_writes(ACC, V+SVO, T+4) + ep2_writes(ACC+16, E+16, T+4): a(x)
    a("s_waitcnt lgkmcnt(0)\ns_barrier")
    ep2_sum(a, 88, 96, OUT)
    for e in range(4): a(f"v_cvt_pk_bf16_f32 v{vRES+e}, v{OUT+2*e}, v{OUT+1+2*e}")
    a("v_mov_b32 v64, 0\nv_mov_b32 v65, 0\nv_mov_b32 v66, 1\nv_mov_b32 v67, 1\nv_mov_b32 v68, 0x3f803f80")
    for e in range(4): a(f"v_dot2c_f32_bf16 v64, v{vRES+e}, v68\nv_dot2c_f32_bf16 v65, v{vRES+e}, v{vRES+e}")
    a(f"s_lshl_b32 s{T}, s{sI}, 13\ns_add_u32 s{T}, s{T}, {WS_ST}\ns_add_u32 s{T}, s{T}, s{sLB}\ns_lshl_b32 s{T+1}, s{sJ}, 10\ns_add_u32 s{T+1}, s{T+1}, s{T}")
    a(f"v_lshlrev_b32 v56, 4, v{vN}\nv_lshl_add_u32 v57, v{vC}, 10, v56")
    dpp_red8(a, [64, 65])
    a(f"v_cmp_eq_u32 vcc, 0, v{vC}\ns_and_saveexec_b64 s[{T+2}:{T+3}], vcc")
    rstore(a, f"buffer_store_dwordx4 v[64:67], v56, s[{S_WS}:{S_WS+3}], s{T+1} offen")
    a(f"s_mov_b64 exec, s[{T+2}:{T+3}]")
    stamp(a, "proj.st")
    a(f"v_subrev_u32 v59, {SVO}, v{vTRF}")
    for c in range(4):
        for x in frag_reads(f"v{W1T+4*c}", 59, c*8192): a(x)
    for f in range(4):
        for x in w2_reads(f): a(x)
    unpack8(a, 80, vRES)
    a(f"v_lshrrev_b32 v58, 2, v{vC}\nv_lshlrev_b32 v58, 17, v58\nv_lshl_add_u32 v58, v{vN}, 6, v58\nv_and_b32 v60, 3, v{vC}\nv_lshl_add_u32 v58, v60, 4, v58")
    LP = a.label(); LD = a.label()
    a(f"s_mov_b32 s{T+2}, {SPIN}")
    a(f"{LP}:")
    a(f"buffer_load_dwordx4 v[68:71], v57, s[{S_WS}:{S_WS+3}], s{T} offen sc1")
    a("s_waitcnt vmcnt(0)\nv_and_b32 v72, v70, v71\nv_cmp_ne_u32 vcc, 1, v72")
    a(f"s_cbranch_vccz {LD}")
    a(f"s_sub_u32 s{T+2}, s{T+2}, 1\ns_cmp_lg_u32 s{T+2}, 0\ns_cbranch_scc1 {LP}")
    a(f"{LD}:")
    stamp(a, "proj.stat")
    dpp_red8(a, [68, 69])
    a(f"v_mul_f32 v68, {f2u(1/512)}, v68\nv_mul_f32 v69, {f2u(1/512)}, v69")
    a("v_fma_f32 v69, -v68, v68, v69\nv_max_f32 v69, 0, v69")
    a(f"v_add_f32 v70, {f2u(1e-5)}, v69\nv_rsq_f32 v70, v70\ns_nop 0")
    a(f"v_mul_f32 v71, v70, v70\nv_mul_f32 v71, v71, v69\nv_add_f32 v71, {f2u(1e-5)}, v71\nv_rsq_f32 v71, v71\ns_nop 0")
    a("v_mul_f32 v70, v70, v71\nv_mul_f32 v71, v68, v70\nv_sub_f32 v71, 0, v71")
    for e in range(8): a(f"v_fma_f32 v{80+e}, v{80+e}, v70, v71")
    for e in range(4): a(f"v_cvt_pk_bf16_f32 v{72+e}, v{80+2*e}, v{81+2*e}")
    a(f"s_lshl_b32 s{T}, s{sJ}, 18\ns_lshl_b32 s{T+1}, s{sI}, 12\ns_add_u32 s{T}, s{T}, s{T+1}\ns_add_u32 s{T}, s{T}, {WS_H}\ns_add_u32 s{T}, s{T}, s{sLB}")
    a(f"buffer_store_dwordx4 v[72:75], v58, s[{S_WS}:{S_WS+3}], s{T} offen sc1")
    a("s_waitcnt lgkmcnt(0)")
    rest3 = [8, 9, 10, 11, 4, 5, 6, 7]
    assert n3[1] <= 4
    for f in rest3[:n3[1]]: w2_dma(a, f)
    a(f"s_waitcnt vmcnt({n3[1]})\ns_barrier")
    stamp(a, "proj.end")
    if_wave_eq(a, 0, lambda: publish(a, "H", sJ))
    for f in rest3[n3[1]:]: w2_dma(a, f)

EPO = 61440
W1T = 128

def flag_addr(a, kind, sd):
    a(f"s_lshl_b32 s{sd}, s{sJ}, 10\ns_add_u32 s{sd}, s{sd}, {FL[kind]*128}\ns_add_u32 s{sd}, s{sd}, s{sFL}")
    a(f"s_lshr_b32 s{T+1}, s{sI}, 2\ns_lshl_b32 s{T+1}, s{T+1}, 7\ns_add_u32 s{sd}, s{sd}, s{T+1}")

def apoll_issue(a, sd, v):
    a(f"s_mov_b64 exec, 1\nbuffer_load_dword v{v}, v{vL16}, s[{S_WS}:{S_WS+3}], s{sd} offen sc1\ns_mov_b64 exec, -1")

def apoll_check(a, sd, v, n):
    LP = a.label(); LD = a.label()
    a(f"s_mov_b64 exec, 1\ns_mov_b32 s{T+1}, {SPIN}\n{LP}:\nv_cmp_ne_u32 vcc, {n}, v{v}\ns_cbranch_vccz {LD}")
    a(f"buffer_load_dword v{v}, v{vL16}, s[{S_WS}:{S_WS+3}], s{sd} offen sc1\ns_waitcnt vmcnt(0)")
    a(f"s_sub_u32 s{T+1}, s{T+1}, 1\ns_cmp_lg_u32 s{T+1}, 0\ns_cbranch_scc1 {LP}\n{LD}:\ns_mov_b64 exec, -1")

def mlp(a):
    R = 4
    EP = STG
    ERA, UA, YA5, B1, YA4, C1, RA_, WA_, ADD = 21, 20, 22, 24, 28, 29, 30, 128, 136
    ACC, F, ET, PV_, B2 = 48, [80, 96], 112, 19, 18
    src4, dst, qb, src5, rot, ust, fa, fb, gc2, ewb = T+2, T+3, T+4, T+5, T+6, T+7, T+8, T+9, T+11, T+12
    a(f"v_lshlrev_b32 v{ERA}, 1, v{vN}\ns_lshl_b32 s{T}, s{sI}, 7")
    a(f"buffer_load_ushort v{B2}, v{ERA}, s[{S_B2}:{S_B2+3}], s{T} offen")
    a(f"s_lshr_b32 s{T}, s{sW}, 1\ns_and_b32 s{T+1}, s{sW}, 1\ns_lshl_b32 s{T+1}, s{T+1}, 11\ns_add_u32 s{T+1}, s{T+1}, s{sLB}")
    a(f"s_mul_i32 s{src5}, s{sJ}, {2*114688}\ns_mul_i32 s{dst}, s{T}, {28*1024}\ns_add_u32 s{src5}, s{src5}, s{dst}\ns_add_u32 s{src5}, s{src5}, s{T+1}\ns_add_u32 s{src5}, s{src5}, {WS_U}")
    a(f"s_lshl_b32 s{src4}, s{sJ}, 18\ns_lshl_b32 s{dst}, s{T}, 15\ns_add_u32 s{src4}, s{src4}, s{dst}\ns_add_u32 s{src4}, s{src4}, s{T+1}\ns_add_u32 s{src4}, s{src4}, {WS_H}")
    a(f"s_mul_i32 s{ust}, s{sJ}, {2*114688}\ns_lshl_b32 s{dst}, s{sI}, 12\ns_add_u32 s{ust}, s{ust}, s{dst}\ns_lshl_b32 s{dst}, s{T}, 9\ns_add_u32 s{ust}, s{ust}, s{dst}\ns_add_u32 s{ust}, s{ust}, s{T+1}\ns_add_u32 s{ust}, s{ust}, {WS_U}")
    a(f"s_lshl_b32 s{dst}, s{sW}, 11\ns_lshl_b32 s{T}, s{T}, 12")
    a(f"v_bfe_u32 v16, v{vL}, 3, 2\nv_lshlrev_b32 v{YA5}, 9, v16\nv_and_b32 v16, 3, v{vL}\nv_lshl_add_u32 v{YA5}, v16, 7, v{YA5}\nv_bfe_u32 v16, v{vL}, 2, 1\nv_lshl_add_u32 v{YA5}, v16, 6, v{YA5}")
    a(f"v_bfe_u32 v16, v{vL}, 1, 1\nv_bfe_u32 v17, v{vL}, 4, 1\nv_lshl_add_u32 v16, v17, 1, v16\nv_lshrrev_b32 v17, 5, v{vL}\nv_xor_b32 v16, v16, v17\nv_lshl_add_u32 v{YA5}, v16, 4, v{YA5}")
    a(f"v_add_u32 v{YA5}, s{T}, v{YA5}\nv_xor_b32 v{YA5+1}, 32, v{YA5}")
    a(f"s_sub_u32 s{T}, s{T}, s{sVW}\ns_sub_u32 s{T}, s{T}, {SVO}\nv_add_u32 v{YA4}, s{T}, v{vTRF}")
    a(f"s_and_b32 s{T}, s{sW}, 1\ns_lshl_b32 s{T}, s{T}, 11\nv_add_u32 v31, s{T}, v{YA4}")
    a(f"s_and_b32 s{rot}, s{sJ}, {C.jrot}\ns_lshl_b32 s{rot}, s{rot}, 12")
    qkv_base8(a, qb)
    flag_addr(a, "U", fa); flag_addr(a, "UB", fb)
    LS = a.label(); LM = a.label()
    a(f"s_cmp_ge_u32 s{sI}, 28\ns_cbranch_scc1 {LS}")
    vm = VM()
    a(f"s_and_b32 s{T}, s{sW}, 1\ns_lshr_b32 s{T+1}, s{sW}, 1")
    a(f"s_lshl_b32 s{ewb}, s{T}, 14\ns_add_u32 s{ewb}, s{ewb}, {EP}\ns_lshl_b32 s{T+10}, s{T+1}, 10\ns_add_u32 s{T+10}, s{T+10}, s{ewb}\nv_add_u32 v{ERA}, s{T+10}, v{vL16}")
    a(f"s_lshl_b32 s{T+10}, s{T+1}, 12\ns_add_u32 s{ewb}, s{ewb}, s{T+10}")
    a(f"s_lshl_b32 s{T}, s{T}, 6\ns_lshl_b32 s{T+10}, s{sI}, 7\ns_add_u32 s{T}, s{T}, s{T+10}\nv_lshlrev_b32 v16, 3, v{vC}")
    a(f"buffer_load_dwordx2 v[{B1+2}:{B1+3}], v16, s[{S_B1}:{S_B1+3}], s{T} offen")
    a(f"v_lshrrev_b32 v17, 5, v{vL}\ns_lshr_b32 s{T+1}, s{T+1}, 1\ns_lshl_b32 s{T+1}, s{T+1}, 1\nv_or_b32 v17, s{T+1}, v17\nv_lshlrev_b32 v17, 4, v17\nv_lshlrev_b32 v{UA}, 3, v{vL}\nv_xor_b32 v{UA}, v{UA}, v17")
    c1 = -2*0.7978845608028654*1.4426950408889634
    a(f"s_mov_b32 s{gc2}, {f2u(c1*0.044715)}\nv_mov_b32 v{C1}, {f2u(c1)}")
    if_wave_eq(a, 0, lambda: poll(a, "H", sJ, 32))
    a("s_barrier")
    stamp(a, "mlp1.polled"); stamp(a, "z3.poll")
    def act(p, s):
        if p == 4: a(f"s_add_u32 s{T}, s{rot}, {(s & 7)*4096}\ns_and_b32 s{T}, s{T}, 0x7fff\ns_add_u32 s{T}, s{T}, s{src4}\ns_add_u32 m0, s{dst}, {(s % R)*16384}" + (f"\ns_add_u32 s{T}, s{T}, 131072" if s >= 8 else "\ns_nop 0"))
        else: a(f"s_add_u32 m0, s{dst}, {(s % R)*16384}\ns_add_u32 s{T}, s{src5}, {(s//7)*114688 + (s % 7)*4096}")
        a(f"buffer_load_dwordx4 v{vL16}, s[{S_WS}:{S_WS+3}], s{T} offen sc1 lds\nbuffer_load_dwordx4 v{vL16}, s[{S_WS}:{S_WS+3}], s{T} offen offset:1024 sc1 lds")
        vm.add(("act", p, s), 2)
    def reads(p, s):
        out = []; o = (s % R)*16384
        for t in range(4):
            b = F[s & 1] + 4*t
            if p == 4: out += [f"ds_read_b64_tr_b16 v[{b}:{b+1}], v{YA4} offset:{o + t*1024}", f"ds_read_b64_tr_b16 v[{b+2}:{b+3}], v{YA4} offset:{o + t*1024 + 256}"]
            else: out.append(f"ds_read_b128 v[{b}:{b+3}], v{YA5 + (t & 1)} offset:{o + (t >> 1)*2048}")
        return out
    def mfmas(p, s):
        out = []
        n = 8 if p == 4 else 7
        y = s // n
        for t in range(4):
            f = 4*(s % n) + t
            if p == 4: X = f"a[{4*f}:{4*f+3}]" if f < 28 else f"v[{W1T+4*(f-28)}:{W1T+4*(f-28)+3}]"
            else: r = w2_reg(f); X = f"{r[0]}[{int(r[1:])}:{int(r[1:])+3}]"
            Y = f"v[{F[s & 1]+4*t}:{F[s & 1]+4*t+3}]"
            c = "0" if f == 0 else f"v[{ACC+16*y}:{ACC+16*y+15}]"
            A_, B_ = (Y, X) if p == 4 else (X, Y)
            out.append(f"v_mfma_f32_32x32x16_bf16 v[{ACC+16*y}:{ACC+16*y+15}], {A_}, {B_}, {c}")
        return out
    RW = 31
    def inring(f): return C.optx and 20 <= f < 24
    def wdma(fs):
        for f in fs:
            if inring(f):
                a(f"s_add_u32 m0, s{dst}, {((f-20) >> 1)*16384 + (f & 1)*1024}\ns_add_u32 s{T}, s{sW2S}, {f*16*4096}")
                a(f"buffer_load_dwordx4 v{vF2}, s[{S_W2}:{S_W2+3}], s{T} offen lds")
            else: w2_dma(a, f)
            vm.add(("w", f))
    def wr(fs): return [x for f in fs for x in (frag_reads(w2_reg(f), RW, ((f-20) >> 1)*16384 + (f & 1)*1024) if inring(f) else w2_reads(f))]
    def wread(fs):
        for x in wr(fs): a(x)
    def ep_w(y, rs=range(16)):
        o = [f"ds_write_addtid_b32 v{ACC+16*y+r} offset:{EPO + r*256}" for r in rs]
        o[0] = f"s_sub_u32 m0, s{ewb}, {EPO}\ns_nop 0\n" + o[0]
        return o
    def ep_r(): return [f"ds_read_b128 v[{ET+4*p}:{ET+4*p+3}], v{ERA} offset:{p*4096}" for p in range(4)]
    def ep_math():
        o = []
        for e in range(4): o += [f"v_add_f32 v{ET+e}, v{ET+e}, v{ET+4+e}", f"v_add_f32 v{ET+8+e}, v{ET+8+e}, v{ET+12+e}"]
        for e in range(4): o.append(f"v_add_f32 v{ET+e}, v{ET+e}, v{B1+e}")
        for e in range(4): o.append(f"v_add_f32 v{ET+e}, v{ET+e}, v{ET+8+e}")
        G = ET+4
        for e in range(4): o.append(f"v_mul_f32 v{G+e}, v{ET+e}, v{ET+e}")
        for e in range(4): o.append(f"v_fma_f32 v{G+e}, v{G+e}, s{gc2}, v{C1}")
        for e in range(4): o.append(f"v_mul_f32 v{G+e}, v{G+e}, v{ET+e}")
        for e in range(4): o.append(f"v_exp_f32 v{G+e}, v{G+e}")
        for e in range(4): o.append(f"v_add_f32 v{G+e}, 1.0, v{G+e}")
        for e in range(4): o.append(f"v_rcp_f32 v{G+e}, v{G+e}")
        for e in range(4): o.append(f"v_mul_f32 v{ET+e}, v{ET+e}, v{G+e}")
        o += [f"v_cvt_pk_bf16_f32 v{ET+8}, v{ET}, v{ET+1}", f"v_cvt_pk_bf16_f32 v{ET+9}, v{ET+2}, v{ET+3}"]
        return o
    def ep_store(y):
        if y: a(f"s_add_u32 s{ust}, s{ust}, 114688")
        a(f"buffer_store_dwordx2 v[{ET+8}:{ET+9}], v{UA}, s[{S_WS}:{S_WS+3}], s{ust} offen sc1")
        vm.add(("st", y))
    def body(m, lds, valu=()):
        lds = list(lds); valu = list(valu)
        nl = max(C.ldsper, -(-len(lds)//4)); nv = -(-len(valu)//4)
        for k in range(4):
            if k < len(m): a(m[k])
            for x in lds[k*nl:(k+1)*nl]: a(x)
            for x in valu[k*nv:(k+1)*nv]: a(x)
    for s in range(C.init): act(4, s)
    late = [int(c) for c in (C.schx if C.optx else C.schw)]
    assert sum(late) == 8 and len(late) == 6
    nxt = 12
    em = ep_math()
    deferred = []
    E_ = [int(c, 16) for c in C.eps]
    for s in range(16):
        tags = [("act", 4, s)] + ([("st", 0)] if s == C.pubs else [])
        a(f"s_waitcnt vmcnt({vm.need(*tags)}) lgkmcnt(0)\ns_barrier")
        if s not in (2, 3, 5, 6, 7): stamp(a, f"z4.{s:02d}")
        if s == 0: stamp(a, "mlp1.b0")
        if C.defer == 2 and s not in (E_[0], E_[1]):
            for k in deferred: act(4, k)
            deferred = []
        lds = reads(4, s); valu = []
        if s == 0: valu = [f"v_lshlrev_b32 v{B1}, 16, v{B1+2}", f"v_and_b32 v{B1+1}, 0xffff0000, v{B1+2}", f"v_lshlrev_b32 v{B1+2}, 16, v{B1+3}", f"v_and_b32 v{B1+3}, 0xffff0000, v{B1+3}"]
        if s == E_[0]: lds += ep_w(0, range(8))
        if s == E_[1]: lds += ep_w(0, range(8, 16))
        if s == E_[2]: lds += ep_r()
        if s == E_[3]: valu += em[:24]
        if s == E_[4]: valu += em[24:]
        if s == E_[5]: lds += wr(range(4, 8))
        if s == E_[6]: lds += wr(range(8, 12))
        body(mfmas(4, s-1) if s else [], lds, valu)
        if s == C.pubs:
            stamp(a, "mlp1.pubA")
            if_wave_eq(a, 0, lambda: publish(a, "U", sJ))
        if s == E_[4]: ep_store(0)
        if s == 0:
            for k in range(C.init, R): act(4, k)
        if s >= 1 and s - 1 + R < 16:
            deferred.append(s - 1 + R)
            if not (C.defer and s in (E_[0], E_[1])):
                for k in deferred: act(4, k)
                deferred = []
        if s >= 11:
            n = late[s-11]
            assert nxt + n <= 12 + 4*(s > E_[5]) + 4*(s > E_[6]) + 2*(s >= 13) + 2*(s >= 14)
            wdma(range(nxt, nxt + n)); nxt += n
    assert E_[0] >= 9 and E_[2] > E_[1] and E_[3] > E_[2] and E_[5] >= 10 and E_[6] >= 11
    a("s_waitcnt lgkmcnt(0)")
    for x in mfmas(4, 15): a(x)
    stamp(a, "mlp1.loop"); stamp(a, "z4.loop")
    a("s_nop 9")
    for x in ep_w(1): a(x)
    if C.pubs >= 16: a(f"s_waitcnt vmcnt({vm.need(('st', 0))})")
    a("s_waitcnt lgkmcnt(0)\ns_barrier")
    stamp(a, "z4.ep")
    for x in ep_r(): a(x)
    if C.pubs >= 16: if_wave_eq(a, 0, lambda: publish(a, "U", sJ))
    wdma(range(nxt, 20))
    if C.n1 == 0: apoll_issue(a, fa, PV_); vm.add("pa")
    a("s_waitcnt lgkmcnt(0)")
    for x in em: a(x)
    ep_store(1)
    stamp(a, "mlp1.st"); stamp(a, "z4.st")
    npre = 20 + C.n1 + C.n2
    if C.n1:
        a(f"s_waitcnt vmcnt({vm.need(('w', 15))})")
        wread(range(12, 16))
        a("s_waitcnt lgkmcnt(0)")
        apoll_issue(a, fa, PV_); vm.add("pa")
        wdma(range(20, 20 + C.n1))
        a(f"s_waitcnt vmcnt({vm.need('pa')})")
        wread(range(16, 20))
        a("s_barrier")
        stamp(a, "z4.xdrain")
        if_wave_eq(a, 0, lambda: publish(a, "UB", sJ))
        a("s_waitcnt lgkmcnt(0)")
        wdma(range(20 + C.n1, npre))
        first = 0
    else:
        a(f"s_waitcnt vmcnt({vm.need('pa')})")
        wread(range(12, 20))
        apoll_check(a, fa, PV_, 28)
        act(5, 0); act(5, 1)
        a(f"s_waitcnt vmcnt({vm.need(('st', 1))})\ns_barrier")
        stamp(a, "z4.xdrain")
        if_wave_eq(a, 0, lambda: publish(a, "UB", sJ))
        first = 2
    a(f"s_branch {LM}")
    a(f"{LS}:")
    a("s_waitcnt vmcnt(0)")
    wread(range(4, 12)); a("s_waitcnt lgkmcnt(0)")
    keep = vm.ops[:]
    wdma(range(12, 20))
    a("s_waitcnt vmcnt(0)")
    wread(range(12, 20)); a("s_waitcnt lgkmcnt(0)")
    wdma(range(20, npre))
    a(f"v_mov_b32 v{PV_}, 28\ns_waitcnt vmcnt(0)")
    if_wave_eq(a, 0, lambda: poll(a, "U", sJ, 28))
    a("s_barrier")
    for k in range(first): act(5, k)
    vm.ops = keep
    a(f"{LM}:")
    if first == 0: apoll_check(a, fa, PV_, 28)
    stamp(a, "mlp2.polled"); stamp(a, "z4.zpolled")
    for k in range(first, C.init5): act(5, k)
    ep2_read_addr(a, RA_, EP+16, E+32768, ewb, ET)
    sch = [int(c) for c in C.sch2]
    assert sum(sch) == 12
    extra = [5, 6, 7, 8, 9, 10, 11, 0, 1, 2, 3, 4]
    assert sum(sch[:5]) <= 7
    def point(p):
        for _ in range(sch[p]):
            k = extra.pop(0); qkv_piece8(a, qb, k); vm.add(("x", k))
    sb = C.sb
    na = max(first, C.init5); nw = npre
    for s in range(14):
        tags = [("act", 5, s)]
        if s == sb: tags.append("pb")
        if s == 5: tags.append(("w", 23))
        if s == 6: tags.append(("w", 27))
        a(f"s_waitcnt vmcnt({vm.need(*tags)}) lgkmcnt(0)\ns_barrier")
        if s not in (8, 9, 10): stamp(a, f"z5.{s:02d}")
        if s == 0: stamp(a, "mlp2.b0")
        lds = reads(5, s); valu = []
        if s == 0:
            for e in range(4): valu += [f"v_lshlrev_b32 v{ADD+2*e}, 16, v{vRES+e}", f"v_and_b32 v{ADD+1+2*e}, 0xffff0000, v{vRES+e}"]
            valu.append(f"v_lshlrev_b32 v{B2}, 16, v{B2}")
            for e in range(8): valu.append(f"v_add_f32 v{ADD+e}, v{ADD+e}, v{B2}")
        if s == 5: lds += wr(range(20, 24))
        if s == 6: lds += wr(range(24, 28))
        if s == C.wa5: lds += ep2_writes(ACC, EP+16, ewb)
        body(mfmas(5, s-1) if s else [], lds, valu)
        if s == sb:
            apoll_check(a, fb, PV_, 28)
            stamp(a, "mlp2.pollB")
        if s == C.pbi: apoll_issue(a, fb, PV_); vm.add("pb")
        lim = min(14, s + 4, 7 if s < sb else 14)
        want = min(lim, na + 1) if nw < 28 and not C.deep else lim
        want = max(want, min(lim, s + 3))
        while na < want: act(5, na); na += 1
        if nw < 28: wdma((nw, nw+1)); nw += 2
        if s == C.q5s and C.q5:
            a(f"s_lshr_b32 s{T}, s2, 3\ns_lshl_b32 s{T}, s{T}, 3\ns_add_u32 s{T}, s{T}, s{sW}\ns_mul_i32 s{T}, s{T}, {6*1024}")
            if C.q5 == 1: a(f"s_add_u32 s{T}, s{T}, 384\nv_min_u32 v{ET}, 5, v{vL}\nv_lshlrev_b32 v{ET}, 10, v{ET}")
            else: a(f"v_min_u32 v{ET}, 47, v{vL}\nv_lshlrev_b32 v{ET}, 7, v{ET}")
            a(f"buffer_load_dword v{ET}, v{ET}, s[{S_QKV}:{S_QKV+3}], s{T} offen"); vm.add("q5")
    assert na == 14 and nw == 28
    a(f"s_waitcnt lgkmcnt({15 if C.wa5 == 13 else 0})")
    for x in mfmas(5, 13): a(x)
    stamp(a, "mlp2.loop")
    a("s_nop 9")
    OUT = 80
    for x in ep2_writes(ACC+16, E+32768, ewb): a(x)
    point(0); point(1); point(2)
    a("s_waitcnt lgkmcnt(0)\ns_barrier")
    ep2_sum(a, RA_, ADD, OUT)
    point(3)
    for e in range(4): a(f"v_cvt_pk_bf16_f32 v{vRES+e}, v{OUT+2*e}, v{OUT+1+2*e}")
    rstore(a, f"buffer_store_dwordx4 v[{vRES}:{vRES+3}], v{vXO}, s[{S_XD}:{S_XD+3}], s{sXO} offen", bulk=True)
    stamp(a, "mlp2.st")
    a(f"s_cmp_lg_u32 s{sL}, 0\ns_cbranch_scc1 L_fin")
    a("v_mov_b32 v64, 0\nv_mov_b32 v65, 0\nv_mov_b32 v68, 0x3f803f80")
    for e in range(4): a(f"v_dot2c_f32_bf16 v64, v{vRES+e}, v68\nv_dot2c_f32_bf16 v65, v{vRES+e}, v{vRES+e}")
    a(f"s_lshl_b32 s{T}, s{sI}, 3\ns_add_u32 s{T}, s{T}, s{sJ}\ns_lshl_b32 s{T}, s{T}, 9\ns_add_u32 s{T}, s{T}, {WS_ST2}\nv_lshlrev_b32 v66, 3, v{vN}")
    dpp_red8(a, [64, 65])
    a(f"v_cmp_eq_u32 vcc, 0, v{vC}\ns_and_saveexec_b64 s[{T+10}:{T+11}], vcc")
    rstore(a, f"buffer_store_dwordx2 v[64:65], v66, s[{S_WS}:{S_WS+3}], s{T} offen", bulk=True)
    a(f"s_mov_b64 exec, s[{T+10}:{T+11}]")
    point(4)
    a(f"s_waitcnt vmcnt({sch[4]})\ns_barrier")
    stamp(a, "mlp2.end")
    if_wave_eq(a, 0, lambda: publish(a, "X", sI))
    point(5)

def main(out):
    a = Asm()
    K = NAME + "_kernel"
    a.L.append(f".globl {K}\n.p2align 8\n.type {K},@function\n{K}:")
    prologue(a)
    if not C.lateinit: init_sync(a)
    if C.qtouch:
        L1 = a.label(); L2 = a.label(); L3 = a.label()
        a(f"v_lshlrev_b32 v40, 7, v{vL}\nv_min_u32 v41, 47, v{vL}\ns_cmp_eq_u32 s{sW}, {0 if C.qtouch == 1 else 9}\ns_cbranch_scc1 {L1}\ns_cmp_eq_u32 s{sW}, {1 if C.qtouch == 1 else 0}\ns_cbranch_scc1 {L2}\ns_cmp_lg_u32 s{sW}, {2 if C.qtouch == 1 else 1}\ns_cbranch_scc1 {L3}")
        a(f"s_lshr_b32 s{T}, s2, 3\ns_mul_i32 s{T}, s{T}, {48*1024}\ns_add_u32 s{T}, s{T}, 384\nv_lshlrev_b32 v41, 10, v41")
        a(f"buffer_load_dword v143, v41, s[{S_QKV}:{S_QKV+3}], s{T} offen\ns_branch {L3}")
        a(f"{L1}:\ns_lshl_b32 s{T}, s{sI}, 3\ns_add_u32 s{T}, s{T}, s{sJ}\ns_lshl_b32 s{T}, s{T}, 13")
        a(f"buffer_load_dword v143, v40, s[{S_XS}:{S_XS+3}], s{T} offen\ns_branch {L3}")
        a(f"{L2}:\ns_mul_i32 s{T}, s2, {48*128}\nv_lshlrev_b32 v41, 7, v41")
        a(f"buffer_load_dword v143, v41, s[{S_QKV}:{S_QKV+3}], s{T} offen")
        a(f"{L3}:")
    if C.cpf:
        Lc = a.label()
        a(f"s_cmp_lg_u32 s{sW}, 2\ns_cbranch_scc1 {Lc}")
        a(f"s_getpc_b64 s[{T+2}:{T+3}]\ns_and_b32 s{T+2}, s{T+2}, 0xffffff00\ns_lshr_b32 s{T}, s2, 3\ns_lshl_b32 s{T}, s{T}, 10\nv_and_b32 v41, 7, v{vL}\nv_lshlrev_b32 v41, 7, v41\nv_add_u32 v41, s{T}, v41")
        a(f"v_min_u32 v41, CODE_SPAN, v41\nglobal_load_dword v143, v41, s[{T+2}:{T+3}]\n{Lc}:")
    if C.qtouch == 1:
        prologue2(a)
        a("s_barrier")
        x_dma(a, fl="nt" if C.xnt else "")
    else:
        x_dma(a, fl="nt" if C.xnt else "")
        prologue2(a)
    L = a.label()
    a(f"s_cmp_ge_u32 s{sW}, 4\ns_cbranch_scc1 {L}")
    if C.lateinit: init_sync(a)
    a(f"buffer_load_dwordx4 v[{vRES}:{vRES+3}], v{vXO}, s[{S_XS}:{S_XS+3}], s{sXO} offen")
    if C.lateinit: a("s_waitcnt vmcnt(5)")
    else:
        a("s_waitcnt vmcnt(9)")
        init_arrive(a)
        a("s_waitcnt vmcnt(2)")
    L4 = a.label()
    a(f"s_cmp_eq_u32 s{sW}, 3\ns_cbranch_scc1 {L4}\ns_waitcnt vmcnt(1)\n{L4}:\ns_barrier")
    stamp(a, "p1.xarr")
    a("s_branch L_p1_cons")
    a(f"{L}:")
    helper_setup(a)
    vm = VM()
    for u in range(C.h0first): helper_unit(a, u, vm)
    a(f"buffer_load_dwordx4 v[{vRES}:{vRES+3}], v{vXO}, s[{S_XS}:{S_XS+3}], s{sXO} offen"); vm.add("res")
    a(f"v_and_b32 v41, 3, v{vL}\nv_bfe_u32 v46, v{vL}, 3, 1\nv_lshl_add_u32 v41, v46, 2, v41\nv_lshlrev_b32 v41, 4, v41\nv_lshl_add_u32 v41, v40, 7, v41\nv_xor_b32 v47, 64, v41")
    a(f"s_waitcnt vmcnt({2*C.h0first+1})\ns_barrier")
    for q in range(8): a(f"ds_read_b128 v[{48+8*q}:{51+8*q}], v41 offset:{q*8192}\nds_read_b128 v[{52+8*q}:{55+8*q}], v47 offset:{q*8192}")
    n2 = C.h0second
    for u in range(C.h0first, C.h0first+n2): helper_unit(a, u, vm)
    a("v_mov_b32 v42, 0\nv_mov_b32 v43, 0\nv_mov_b32 v44, 0\nv_mov_b32 v45, 0\nv_mov_b32 v46, 0x3f803f80")
    for q in range(8):
        a(f"s_waitcnt lgkmcnt({14-2*q})")
        for e in range(0, 8, 2):
            r = 48+8*q+e
            a(f"v_dot2c_f32_bf16 v42, v{r}, v46\nv_dot2c_f32_bf16 v44, v{r}, v{r}\nv_dot2c_f32_bf16 v43, v{r+1}, v46\nv_dot2c_f32_bf16 v45, v{r+1}, v{r+1}")
    a("s_nop 2\nv_add_f32 v42, v42, v43\nv_add_f32 v44, v44, v45")
    tlb_touch(a)
    helper_loop(a, 0, vm, C.h0first+n2, [int(c) for c in C.hs0], "L_p1_join")
    a("L_layer:")
    ool = phase1(a)
    phase2(a)
    phase3(a)
    mlp(a)
    a(f"s_mov_b32 s{S_XS}, s{S_XD}\ns_mov_b32 s{S_XS+1}, s{S_XD+1}\ns_mov_b32 s{S_XD}, s{sOUT}\ns_mov_b32 s{S_XD+1}, s{sOUT+1}")
    a(f"s_mov_b32 s{sL}, 1\ns_mov_b32 s{sLB}, {LSTRIDE}")
    if C.stamp: a("v_mov_b32 v7, v6")
    a("s_branch L_layer")
    a("L_fin:")
    if C.stamp:
        a("s_waitcnt vmcnt(0)")
        stamp(a, "fin")
        a(f"s_lshl_b32 s{T}, s2, 3\ns_add_u32 s{T}, s{T}, s{sW}\ns_lshl_b32 s{T}, s{T}, 9\ns_add_u32 s{T}, s{T}, {WS_STAMP}\nv_lshlrev_b32 v16, 2, v{vL}")
        a(f"buffer_store_dword v7, v16, s[{S_WS}:{S_WS+3}], s{T} offen\nbuffer_store_dword v6, v16, s[{S_WS}:{S_WS+3}], s{T} offen offset:256")
    a("L_end:\ns_endpgm")
    softmax_safe(a)
    for x in ool: a(x)
    s = HDR + "; @launch grid=(256,1,1) block=(512,1,1) lds=163840\n"
    s += '.amdgcn_target "amdgcn-amd-amdhsa--gfx950"\n.text\n' + a.text().replace("CODE_SPAN", str(C.span))
    s += f""".section .rodata,"a"
.p2align 6
.amdhsa_kernel {K}
  .amdhsa_next_free_vgpr 256
  .amdhsa_next_free_sgpr 102
  .amdhsa_accum_offset {NARCH}
  .amdhsa_group_segment_fixed_size 0
  .amdhsa_kernarg_size 88
  .amdhsa_user_sgpr_count 2
  .amdhsa_user_sgpr_kernarg_segment_ptr 1
  .amdhsa_system_sgpr_workgroup_id_x 1
.end_amdhsa_kernel
"""
    open(out, "w").write(s)
    if C.stamp: open(out + ".stamps", "w").write("\n".join(STAMPS))

if __name__ == "__main__":
    for arg in sys.argv[2:]:
        k, v = arg.split("="); setattr(C, k, v if isinstance(getattr(C, k), str) else type(getattr(C, k))(int(v)))
    main(sys.argv[1])
```

```python
import sys, struct
NAME = "interleave_layers__softmax_full_mha__mixer_token_mlp__prompt"
HDR = open("cdna_kernels/%s.s.ref" % NAME).read().split("; Override launch")[0]
MB = 1 << 20
WS_KV, WS_O, WS_H, WS_U, WS_X2, WS_ST = 0*MB, 4*MB, 6*MB, 8*MB, 10*MB, 12*MB
LSTRIDE = 16*MB
WS_FLAG = 32*MB
WS_XT = WS_FLAG + 131072
WS_STAMP = 40*MB
KA = dict(x=0, wqkv=8, wo=16, w1=32, b1=40, w2=48, b2=56, out=64, dbg=72, ws=80)
SZ = dict(x=2048*512*2, wqkv=512*1536*2, wo=512*512*2, w1=2048*1792*2, b1=1792*2, w2=1792*2048*2, b2=2048*2,
          out=2048*512*2, dbg=256, ws=1 << 28)
FL = dict(KV=0, H=64, U=128, O=192, X=224, UB=256, KL=320)
COLK = ('KV', 'H', 'U', 'UB')
SPIN = 200000
NARCH = 144

class Cfg:
    stamp = False
    prio = True
    lowtiles = 1
    D = 3
    nB = 12
    sch1 = '033343'
    sch2 = '003045'
    sch3 = '444'
    stouch = 0
    p1touch = 0
    now1 = 0
    local = 1
    schw = '002222'
    eps = '99abbbc'
    wlast = 1
    defer = 0
    optx = 0
    n1 = 0
    n2 = 0
    deep = 1
    wa5 = 13
    xp = 2
    early = 6
    q5 = 1
    q5s = 10
    lf = 1
    lfi = 1
    lfc = 2
    c3 = 1
    pub12 = 1
    w1nt = 0
    w2nt = 0
    xrot = 1
    xnt = 0
    lateinit = 1
    arrs = 4
    dbgs = 9
    sent = 1
    ldo = 1
    preto = 1
    sentwait = 1
    fixed = 1
    lprio = 0
    wo1 = 12
    schx = '01434'
    pbi = 2
    sb = 4
    init5 = 4
    schv = '22220'
    pubs = 14
    pbs = 3
    init = 4
    pae = 1
    order = 1
    ldsper = 3
    epa = 0
    t2 = 28
    sonly = ''
    tmix = 1
    cpf = 0
    span = 30720
    ldata = 0
    pret = 0
    prett = 24
    hs1 = '022111122000'
    hs0 = '222222220000'
    h0first = 4
    h0second = 4
    w1t = 9
    p1per = 4
    qtouch = 2
    pper = 16
    plow = 3
    split = 1
    kvfix = 0
    xsel = 'wot'
    nofirst = 0
    tlb = 0
    lowhalf = 3
    jrot = 6
    nox = 0
    notr = 0
    loop = 0
    pad = 0
    align = 3
    nQ = 12
C = Cfg()

class Asm:
    def __init__(self): self.L = []; self.n = 0
    def __call__(self, s):
        for line in s.split("\n"):
            line = line.strip()
            if line: self.L.append(("" if line.endswith(":") else "    ") + line)
    def label(self, p="L"):
        self.n += 1; return f"{p}{self.n}"
    def text(self): return "\n".join(self.L) + "\n"

def f2u(x): return hex(struct.unpack("<I", struct.pack("<f", x))[0])

S_XS, S_QKV, S_WS, S_WO, S_W1, S_W2, S_B1, S_B2, S_XD, S_DBG, S_KV = 8, 12, 16, 20, 24, 28, 32, 36, 40, 44, 80
sI, sJ, sW, sL, sLB, sFL = 48, 49, 50, 51, 52, 53
sW2S = 54
sVW = 55
sLOC = 56
sXO = 57
sOUT = 58
T = 60
sST = 76
sRET = 84
vL, vN, vC, vL16, vXO = 1, 2, 3, 4, 5
vRES = 8
vF2, vTRF, vWQ = 12, 13, 14
TV = 16
E, V = 0, 65536
QX = V + 11*8192
SVO = 32768
STG = V

STAMPS = []
def stamp(a, name):
    if not C.stamp: return
    if C.sonly:
        if not (name == "start" or any(name.startswith(p) for p in C.sonly.split(","))): return
    elif name.startswith("z"): return
    k = len(STAMPS); assert k < 32
    a(f"s_memtime s[{sST}:{sST+1}]\ns_memrealtime s[{sST+2}:{sST+3}]\ns_waitcnt lgkmcnt(0)")
    a(f"v_writelane_b32 v6, s{sST}, {k}\nv_writelane_b32 v6, s{sST+2}, {k+32}")
    STAMPS.append(name)

def dpp_red8(a, regs):
    for pat in ("quad_perm:[1,0,3,2]", "quad_perm:[2,3,0,1]", "row_half_mirror"):
        a("s_nop 1")
        for r in regs: a(f"v_add_f32_dpp v{r}, v{r}, v{r} {pat} row_mask:0xf bank_mask:0xf")

def tr_addr(a, vd, xh, perm, t0, t1):
    a(f"v_lshrrev_b32 v{t0}, 5, v{vL}\nv_lshlrev_b32 v{t0}, {2 if perm else 3}, v{t0}")
    a(f"v_bfe_u32 v{t1}, v{vL}, 2, 2\nv_add_u32 v{t0}, v{t0}, v{t1}\nv_lshlrev_b32 v{vd}, 7, v{t0}")
    a(f"v_lshrrev_b32 v{t1}, 1, v{t1}\nv_xor_b32 v{t1}, {xh}, v{t1}\nv_lshl_add_u32 v{vd}, v{t1}, 6, v{vd}")
    a(f"v_bfe_u32 v{t1}, v{vL}, 4, 1\nv_lshl_add_u32 v{vd}, v{t1}, 5, v{vd}")
    a(f"v_and_b32 v{t1}, 3, v{vL}\nv_lshl_add_u32 v{vd}, v{t1}, 3, v{vd}")

def interleave(a, m, r):
    per = -(-len(r)//len(m))
    for x in range(len(m)):
        a(m[x])
        for y in r[x*per:(x+1)*per]: a(y)

def rstore(a, instr, bulk=False):
    if not C.local or (bulk and not C.ldata):
        a(instr + " sc1"); return
    L = a.label(); L2 = a.label()
    a(f"s_cmp_eq_u32 s{sLOC}, 1\ns_cbranch_scc1 {L}\n{instr} sc1\ns_branch {L2}\n{L}:\n{instr}\n{L2}:")

def publish(a, kind, group_s, tv=None):
    if kind not in COLK:
        a(f"s_lshl_b32 s{T}, s{group_s}, 7\ns_add_u32 s{T}, s{T}, {FL[kind]*128}\ns_add_u32 s{T}, s{T}, s{sFL}\ns_lshl_b32 s{T+1}, s{sJ}, 4\ns_add_u32 s{T}, s{T}, s{T+1}")
        a(f"v_mov_b32 v{TV}, 1\ns_mov_b64 exec, 1")
        rstore(a, f"buffer_store_dword v{TV}, v{vL16}, s[{S_WS}:{S_WS+3}], s{T} offen")
        a("s_mov_b64 exec, -1")
        return
    col = kind in COLK
    a(f"s_lshl_b32 s{T}, s{group_s}, {10 if col else 7}\ns_add_u32 s{T}, s{T}, {FL[kind]*128}\ns_add_u32 s{T}, s{T}, s{sFL}")
    a(f"v_mov_b32 v{TV}, 1\nv_lshlrev_b32 v{TV+1}, 7, v{vL}\ns_mov_b64 exec, {0xff if col else 1}")
    a(f"buffer_atomic_add v{TV}, v{TV+1}, s[{S_WS}:{S_WS+3}], s{T} offen sc1")
    a("s_mov_b64 exec, -1")

def poll(a, kind, group_s, n):
    col = kind in COLK
    a(f"s_lshl_b32 s{T}, s{group_s}, {10 if col else 7}\ns_add_u32 s{T}, s{T}, {FL[kind]*128}\ns_add_u32 s{T}, s{T}, s{sFL}")
    if col: a(f"s_lshr_b32 s{T+1}, s{sI}, 2\ns_lshl_b32 s{T+1}, s{T+1}, 7\ns_add_u32 s{T}, s{T}, s{T+1}")
    a(f"s_mov_b64 exec, {1 if col else 0xff}\ns_mov_b32 s{T+1}, {SPIN}")
    LP = a.label(); LD = a.label()
    a(f"{LP}:")
    a(f"buffer_load_dword v{TV}, v{vL16}, s[{S_WS}:{S_WS+3}], s{T} offen sc1")
    a(f"s_waitcnt vmcnt(0)\nv_cmp_ne_u32 vcc, {n if col else 1}, v{TV}")
    a(f"s_cbranch_vccz {LD}")
    a(f"s_sub_u32 s{T+1}, s{T+1}, 1\ns_cmp_lg_u32 s{T+1}, 0\ns_cbranch_scc1 {LP}")
    a(f"{LD}:\ns_mov_b64 exec, -1")

def kl_addr(a):
    a(f"s_lshr_b32 s{T}, s{sI}, 2\ns_lshl_b32 s{T}, s{T}, 3\ns_add_u32 s{T}, s{T}, s{sJ}\ns_lshl_b32 s{T}, s{T}, 7\ns_add_u32 s{T}, s{T}, {FL['KL']*128}\ns_add_u32 s{T}, s{T}, s{sFL}")

def kl_publish(a):
    kl_addr(a)
    a(f"s_and_b32 s{T+1}, s{sI}, 3\ns_lshl_b32 s{T+1}, s{T+1}, 4\ns_add_u32 s{T}, s{T}, s{T+1}\nv_mov_b32 v{TV+3}, 1\ns_mov_b64 exec, 1")
    rstore(a, f"buffer_store_dword v{TV+3}, v{vL16}, s[{S_WS}:{S_WS+3}], s{T} offen")
    a("s_mov_b64 exec, -1")

def kl_poll(a):
    kl_addr(a)
    a(f"s_mov_b64 exec, 15\ns_mov_b32 s{T+1}, {SPIN}")
    LP = a.label(); LD = a.label()
    a(f"{LP}:\nbuffer_load_dword v{TV}, v{vL16}, s[{S_WS}:{S_WS+3}], s{T} offen sc1\ns_waitcnt vmcnt(0)\nv_cmp_ne_u32 vcc, 1, v{TV}\ns_cbranch_vccz {LD}")
    a(f"s_sub_u32 s{T+1}, s{T+1}, 1\ns_cmp_lg_u32 s{T+1}, 0\ns_cbranch_scc1 {LP}\n{LD}:\ns_mov_b64 exec, -1")

def if_wave_eq(a, w, body):
    L = a.label()
    a(f"s_cmp_lg_u32 s{sW}, {w}\ns_cbranch_scc1 {L}")
    body()
    a(f"{L}:")

def qkv_src(u): return (u >> 1)*64*3072 + (1 + (u & 1))*1024 if u < 16 else (u-16)*64*3072

def qkv_base8(a, s):
    a(f"s_mul_i32 s{s}, s{sW}, {8*3072}\ns_lshl_b32 s{T}, s{sJ}, 7\ns_add_u32 s{s}, s{s}, s{T}")

def qkv_piece8(a, s, u):
    a(f"s_add_u32 m0, s{sVW}, {(u % 12)*8192}\ns_add_u32 s{T}, s{s}, {qkv_src(u)}")
    a(f"buffer_load_dwordx4 v{vWQ}, s[{S_QKV}:{S_QKV+3}], s{T} offen lds")

def w2_dma(a, f):
    a(f"s_add_u32 m0, s{sVW}, {SVO + ((f+4) % 8)*8192}\ns_add_u32 s{T}, s{sW2S}, {f*16*4096}")
    a(f"buffer_load_dwordx4 v{vF2}, s[{S_W2}:{S_W2+3}], s{T} offen lds")

def frag_reads(dst, vaddr, off):
    p, n = dst[0], int(dst[1:])
    return [f"ds_read_b64_tr_b16 {p}[{n}:{n+1}], v{vaddr} offset:{off}", f"ds_read_b64_tr_b16 {p}[{n+2}:{n+3}], v{vaddr} offset:{off+256}"]

W2V = 32
def w2_reg(f): return f"v{W2V+4*f}" if f < 4 else f"a{4*(f-4)}"
def w2_reads(f): return frag_reads(w2_reg(f), vTRF, ((f+4) % 8)*8192)

def prologue(a):
    a(f"s_cmp_ge_u32 s2, 256\ns_cbranch_scc1 L_end")
    for s, n in ((S_XS, "x"), (S_QKV, "wqkv"), (S_WS, "ws"), (S_WO, "wo"), (S_W1, "w1"), (S_W2, "w2"), (S_B1, "b1"), (S_B2, "b2"), (S_DBG, "dbg")):
        a(f"s_load_dwordx2 s[{s}:{s+1}], s[0:1], {KA[n]}")
        a(f"s_mov_b32 s{s+2}, {hex(SZ[n])}\ns_mov_b32 s{s+3}, 0x00020000")
    a(f"s_load_dwordx2 s[{sOUT}:{sOUT+1}], s[0:1], {KA['out']}")
    a(f"s_mov_b32 s{S_XD+2}, {hex(SZ['x'])}\ns_mov_b32 s{S_XD+3}, 0x00020000")
    a(f"s_and_b32 s{sI}, s2, 7\ns_lshl_b32 s{sI}, s{sI}, 2\ns_bfe_u32 s{T}, s2, 0x20003\ns_or_b32 s{sI}, s{sI}, s{T}\ns_lshr_b32 s{sJ}, s2, 5")
    a(f"v_lshrrev_b32 v{vL}, 6, v0\ns_nop 0\nv_readfirstlane_b32 s{sW}, v{vL}\nv_and_b32 v{vL}, 63, v0")
    a(f"v_lshrrev_b32 v{vN}, 3, v0\nv_and_b32 v{vC}, 7, v0\nv_lshlrev_b32 v{vL16}, 4, v{vL}")
    a(f"s_lshl_b32 s{sXO}, s{sI}, 16\ns_lshl_b32 s{T}, s{sJ}, 7\ns_add_u32 s{sXO}, s{sXO}, s{T}")
    a(f"s_mov_b32 s{sLOC}, 0\ns_mov_b32 s{sL}, 0\ns_mov_b32 s{sLB}, 0\ns_mov_b32 s{sFL}, {WS_FLAG}")
    if C.stamp: a("v_mov_b32 v6, 0\nv_mov_b32 v7, 0")
    a(f"v_lshrrev_b32 v40, 3, v{vL}\nv_bfe_u32 v41, v{vL}, 4, 1\nv_lshlrev_b32 v41, 2, v41\nv_and_b32 v42, 7, v{vL}\nv_xor_b32 v41, v41, v42\nv_lshlrev_b32 v41, 4, v41")
    a(f"v_mul_u32_u24 v{vWQ}, 3072, v40\nv_add_u32 v{vWQ}, v{vWQ}, v41")
    a(f"s_lshl_b32 s{sVW}, s{sW}, 10\ns_add_u32 s{sVW}, s{sVW}, {V}")
    a(f"s_lshl_b32 s{T}, s{sJ}, {3 if C.xrot else 6}\nv_add_u32 v42, s{T}, v{vN}\nv_and_b32 v42, 63, v42")
    a(f"v_bfe_u32 v41, v42, 1, 3\nv_xor_b32 v41, v41, v{vC}\nv_lshlrev_b32 v41, 4, v41\nv_lshl_add_u32 v{vXD}, v42, 10, v41")
    a(f"v_bfe_u32 v41, v{vN}, 1, 1\nv_bfe_u32 v42, v{vN}, 2, 1\nv_and_b32 v{vN}, 0x39, v{vN}\nv_lshl_add_u32 v{vN}, v41, 2, v{vN}\nv_lshl_add_u32 v{vN}, v42, 1, v{vN}")
    a(f"v_lshlrev_b32 v{vXO}, 10, v{vN}\nv_lshl_add_u32 v{vXO}, v{vC}, 4, v{vXO}")
    a("s_waitcnt lgkmcnt(0)")
    stamp(a, "start")
    a(f"s_add_u32 s{S_XD}, s{S_WS}, {WS_X2}\ns_addc_u32 s{S_XD+1}, s{S_WS+1}, 0")

def prologue2(a):
    a(f"v_lshrrev_b32 v42, 2, v{vL}\nv_and_b32 v43, 3, v{vL}\nv_lshlrev_b32 v43, 4, v43")
    a(f"v_lshl_add_u32 v{vF2}, v42, 12, v43")
    a(f"v_lshrrev_b32 v42, 5, v{vL}\nv_lshlrev_b32 v42, 3, v42\nv_bfe_u32 v43, v{vL}, 2, 2\nv_add_u32 v42, v42, v43\nv_lshlrev_b32 v{vTRF}, 6, v42")
    a(f"v_bfe_u32 v43, v{vL}, 4, 1\nv_lshl_add_u32 v{vTRF}, v43, 5, v{vTRF}\nv_and_b32 v43, 3, v{vL}\nv_lshl_add_u32 v{vTRF}, v43, 3, v{vTRF}")
    a(f"v_add_u32 v{vTRF}, s{sVW}, v{vTRF}\nv_add_u32 v{vTRF}, {SVO}, v{vTRF}")
    a(f"s_lshr_b32 s{sW2S}, s{sW}, 1\ns_mul_i32 s{sW2S}, s{sW2S}, {448*4096}\ns_lshl_b32 s{T}, s{sI}, 7\ns_add_u32 s{sW2S}, s{sW2S}, s{T}")
    a(f"s_and_b32 s{T}, s{sW}, 1\ns_lshl_b32 s{T}, s{T}, 6\ns_add_u32 s{sW2S}, s{sW2S}, s{T}")

def tlb_touch(a):
    if not C.tlb: return
    a(f"s_sub_u32 s{T+4}, s{sW}, 4\ns_lshl_b32 s{T}, s{T+4}, 21")
    for k in range(4): a(f"s_add_u32 s{T+1}, s{T}, {(k & 1)*8*MB + (k >> 1)*LSTRIDE}\ns_buffer_load_dword s86, s[{S_WS}:{S_WS+3}], s{T+1}")
    for srd in (S_W1, S_W2): a(f"s_buffer_load_dword s86, s[{srd}:{srd+3}], s{T}")
    a(f"s_lshl_b32 s{T}, s{T+4}, 19\ns_load_dword s86, s[{sOUT}:{sOUT+1}], s{T}")
    a(f"s_buffer_load_dword s86, s[{S_WO}:{S_WO+3}], 0\ns_buffer_load_dword s86, s[{S_B1}:{S_B1+3}], 0\ns_buffer_load_dword s86, s[{S_B2}:{S_B2+3}], 0")

def init_sync(a, w=3):
    def body():
        a("v_mov_b32 v44, 0\nv_mov_b32 v45, 0\nv_mov_b32 v46, 0\nv_mov_b32 v47, 0")
        a(f"s_lshl_b32 s{T}, s2, 10\ns_add_u32 s{T}, s{T}, {WS_ST}\ns_add_u32 s{T+1}, s{T}, {LSTRIDE}")
        a(f"buffer_store_dwordx4 v[44:47], v{vL16}, s[{S_WS}:{S_WS+3}], s{T} offen sc1")
        a(f"buffer_store_dwordx4 v[44:47], v{vL16}, s[{S_WS}:{S_WS+3}], s{T+1} offen sc1")
        a(f"s_lshl_b32 s{T}, s2, 9\ns_add_u32 s{T}, s{T}, {WS_FLAG}\ns_mov_b32 exec_hi, 0")
        a(f"buffer_store_dwordx4 v[44:47], v{vL16}, s[{S_WS}:{S_WS+3}], s{T} offen sc1")
        if C.sent:
            a(f"s_mov_b64 exec, -1\nv_mov_b32 v100, -1\nv_mov_b32 v101, -1\nv_mov_b32 v102, -1\nv_mov_b32 v103, -1\ns_lshl_b32 s{T}, s2, 13\ns_add_u32 s{T}, s{T}, {WS_O}\ns_add_u32 s{T+1}, s{T}, 4096")
            for k in range(8): a(f"buffer_store_dwordx4 v[100:103], v{vL16}, s[{S_WS}:{S_WS+3}], s{T + (k >> 2)} offen offset:{(k & 3)*1024} sc1")
        a(f"s_getreg_b32 s{T+1}, hwreg(HW_REG_XCC_ID, 0, 4)\ns_mov_b64 exec, 1\nv_mov_b32 v48, s{T+1}")
        a(f"s_lshl_b32 s{T}, s{sI}, 3\ns_add_u32 s{T}, s{T}, s{sJ}\ns_lshl_b32 s{T}, s{T}, 4\ns_add_u32 s{T}, s{T}, {WS_XT}")
        a(f"buffer_store_dword v48, v{vL16}, s[{S_WS}:{S_WS+3}], s{T} offen sc1")
        a("s_mov_b64 exec, -1")
    if_wave_eq(a, w, body)

def init_arrive(a, w=3, pre="s_nop 0", tv=TV):
    L = a.label()
    a(f"s_cmp_lg_u32 s{sW}, {w}\ns_cbranch_scc1 {L}\n{pre}")
    a(f"v_mov_b32 v{tv}, 1\nv_mov_b32 v{tv+1}, 0\ns_and_b32 s{T}, s2, 63\ns_lshl_b32 s{T}, s{T}, 2\ns_mov_b64 exec, 1")
    a(f"buffer_atomic_add v{tv}, v{tv+1}, s[{S_DBG}:{S_DBG+3}], s{T} offen sc1")
    a(f"s_mov_b64 exec, -1\n{L}:")

def wait_init(a, vaddr):
    a(f"s_mov_b32 s{T+1}, {SPIN}")
    LP = a.label(); LD = a.label()
    a(f"{LP}:\nv_cmp_gt_u32 vcc, 4, v{TV+2}\ns_cbranch_vccz {LD}")
    a(f"buffer_load_dword v{TV+2}, v{vaddr}, s[{S_DBG}:{S_DBG+3}], 0 offen sc1\ns_waitcnt vmcnt(0)")
    a(f"s_sub_u32 s{T+1}, s{T+1}, 1\ns_cmp_lg_u32 s{T+1}, 0\ns_cbranch_scc1 {LP}")
    a(f"{LD}:\ns_mov_b64 exec, -1")

class VM:
    def __init__(self): self.ops = []
    def add(self, tag, n=1): self.ops += [tag]*n
    def need(self, *tags):
        last = max(k for k, t in enumerate(self.ops) if t in tags)
        return min(63, len(self.ops) - 1 - last)

vXD = 15
TAB = V
WS_ST2 = 12*MB + 512*1024
WS_CS = 13*MB

def x_dma(a, qs=range(8), fl="sc1"):
    a(f"s_lshl_b32 s{T}, s{sI}, 16\n" + (f"s_add_u32 s{T+1}, s{sW}, s{sJ}\ns_and_b32 s{T+1}, s{T+1}, 7\ns_lshl_b32 s{T+1}, s{T+1}, 10" if C.xrot else f"s_lshl_b32 s{T+1}, s{sW}, 10"))
    for q in qs:
        a(f"s_add_u32 m0, s{T+1}, {E + q*8192 - q*128}\ns_nop 0" if q else f"s_mov_b32 m0, s{T+1}\ns_nop 0")
        a(f"buffer_load_dwordx4 v{vXD}, s[{S_XS}:{S_XS+3}], s{T} offen offset:{128*q} {fl} lds")

def split_hi_lo(a, src, hi2, lo2, t, neg=False):
    if neg: a(f"v_sub_f32 v{src}, 0, v{src}")
    a(f"v_cvt_pk_bf16_f32 v{t}, v{src}, v{src}\nv_and_b32 v{t}, 0xffff0000, v{t}\nv_sub_f32 v{t+1}, v{src}, v{t}")

def own_stats(a, D, A, MUo, Ro, ADo):
    a(f"s_add_u32 s{T}, s{sW}, s{sJ}\ns_and_b32 s{T}, s{T}, 7" if C.xrot else f"s_mov_b32 s{T}, s{sW}")
    a(f"s_lshl_b32 s{T+1}, s{T}, 10\nv_add_u32 v{ADo}, s{T+1}, v{vL16}")
    for q in range(8): a(f"ds_read_b128 v[{D+4*q}:{D+4*q+3}], v{ADo} offset:{q*8192}")
    for r in range(4): a(f"v_mov_b32 v{A+r}, 0")
    a(f"v_mov_b32 v{A+4}, 0x3f803f80\ns_lshl_b32 s{T}, s{T}, 5\ns_add_u32 s{T}, s{T}, {TAB}\nv_lshrrev_b32 v{ADo}, 3, v{vL}\nv_lshlrev_b32 v{ADo}, 2, v{ADo}\nv_add_u32 v{ADo}, s{T}, v{ADo}")
    for q in range(8):
        a(f"s_waitcnt lgkmcnt({7-q})")
        for e in (0, 2):
            r = D+4*q+e
            a(f"v_dot2c_f32_bf16 v{A}, v{r}, v{A+4}\nv_dot2c_f32_bf16 v{A+2}, v{r}, v{r}\nv_dot2c_f32_bf16 v{A+1}, v{r+1}, v{A+4}\nv_dot2c_f32_bf16 v{A+3}, v{r+1}, v{r+1}")
    a(f"s_nop 2\nv_add_f32 v{MUo}, v{A}, v{A+1}\nv_add_f32 v{Ro}, v{A+2}, v{A+3}")
    dpp_red8(a, [MUo, Ro])
    a(f"v_mul_f32 v{MUo}, {f2u(1/512)}, v{MUo}\nv_mul_f32 v{Ro}, {f2u(1/512)}, v{Ro}")
    a(f"v_fma_f32 v{Ro}, -v{MUo}, v{MUo}, v{Ro}\nv_max_f32 v{Ro}, 0, v{Ro}\nv_add_f32 v{Ro}, {f2u(1e-5)}, v{Ro}\nv_rsq_f32 v{Ro}, v{Ro}")

def layer0_helpers(a):
    LJ = "L_p1_join"; LB = a.label()
    a(f"s_cmp_ge_u32 s{sW}, 6\ns_cbranch_scc1 {LB}")
    src, dst = T+2, T+3
    a(f"s_sub_u32 s{dst}, s{sW}, 4\ns_mul_i32 s{src}, s{dst}, {32*3072}\ns_lshl_b32 s{T}, s{sJ}, 7\ns_add_u32 s{src}, s{src}, s{T}")
    a(f"s_lshl_b32 s{dst}, s{dst}, 12\ns_add_u32 s{dst}, s{dst}, {V}")
    vm = VM()
    def unit(u):
        for p in range(4):
            a(f"s_add_u32 m0, s{dst}, {(u % 12)*8192 + p*1024}\ns_add_u32 s{T}, s{src}, {qkv_src(u) + p*8*3072}")
            a(f"buffer_load_dwordx4 v{vWQ}, s[{S_QKV}:{S_QKV+3}], s{T} offen lds")
        vm.add(("w", u), 4)
    for u in range(C.h0first): unit(u)
    a(f"s_waitcnt vmcnt({4*C.h0first})")
    own_stats(a, 48, 80, 42, 44, 40)
    issued = C.h0first
    for u in range(C.h0second): unit(issued); issued += 1
    sched = [int(c) for c in C.hs0]
    for s in range(12):
        a(f"s_waitcnt vmcnt({vm.need(('w', 2*s+1))})" + (" lgkmcnt(0)" if s == 8 else "") + "\ns_barrier")
        if s == 7: a("ds_write_b32 v40, v42\nds_write_b32 v40, v44 offset:256")
        for _ in range(sched[s]):
            assert issued < 2*s + 12 and issued < 24
            unit(issued); issued += 1
        assert s == 11 or issued >= 2*s + 4
    assert issued == 24
    a(f"s_barrier\ns_branch {LJ}")
    a(f"{LB}:")
    init_sync(a, 7)
    L4 = a.label()
    a(f"s_waitcnt vmcnt({12 if C.sent else 4})\ns_cmp_eq_u32 s{sW}, 7\ns_cbranch_scc1 {L4}\ns_waitcnt vmcnt(0)\n{L4}:")
    own_stats(a, 52, 84, 42, 43, 40)
    for s in range(12):
        if s == 8: a("s_waitcnt lgkmcnt(0)")
        a("s_barrier")
        if s == 7: a("ds_write_b32 v40, v42\nds_write_b32 v40, v43 offset:256")
        if s == C.arrs: init_arrive(a, 7, pre="s_waitcnt vmcnt(0)")
        if s == C.dbgs: a(f"v_lshlrev_b32 v41, 2, v{vL}\nbuffer_load_dword v{TV+2}, v41, s[{S_DBG}:{S_DBG+3}], 0 offen sc1")
        if s == C.w1t:
            assert C.w1t >= C.dbgs
            a(f"s_lshl_b32 s{T}, s2, 1\ns_add_u32 s{T}, s{T}, s{sW}\ns_sub_u32 s{T}, s{T}, 6\ns_mul_i32 s{T+1}, s{T}, {112*128}\nv_min_u32 v47, 55, v{vL}\nv_lshlrev_b32 v47, 7, v47")
            a(f"buffer_load_dword v141, v47, s[{S_W1}:{S_W1+3}], s{T+1} offen\ns_add_u32 s{T+1}, s{T+1}, {56*128}\nbuffer_load_dword v142, v47, s[{S_W1}:{S_W1+3}], s{T+1} offen")
            a(f"s_lshl_b32 s{T+1}, s{T}, 10\nv_and_b32 v47, 0x380, v47\nbuffer_load_dword v143, v47, s[{S_WO}:{S_WO+3}], s{T+1} offen")
    a(f"s_waitcnt vmcnt({3 if C.w1t < 12 else 0})")
    if_wave_eq(a, 6, lambda: wait_init(a, 41))
    a("s_barrier")
    def pub():
        if C.lf: kl_publish(a)
        publish(a, "KV", sJ)
    if_wave_eq(a, 6, pub)
    a(f"s_branch {LJ}")

def helper_setup(a):
    src, dst = T+2, T+3
    a(f"s_sub_u32 s{dst}, s{sW}, 4\ns_mul_i32 s{src}, s{dst}, {16*3072}\ns_lshl_b32 s{T}, s{sJ}, 7\ns_add_u32 s{src}, s{src}, s{T}")
    a(f"s_lshl_b32 s{T}, s{dst}, 4\nv_lshrrev_b32 v40, 2, v{vL}\nv_add_u32 v40, s{T}, v40")
    a(f"s_lshl_b32 s{dst}, s{dst}, 11\ns_add_u32 s{dst}, s{dst}, {V}")

def helper_unit(a, u, vm):
    for p in range(2):
        a(f"s_add_u32 m0, s{T+3}, {(u % 12)*8192 + p*1024}\ns_add_u32 s{T}, s{T+2}, {qkv_src(u) + p*8*3072}")
        a(f"buffer_load_dwordx4 v{vWQ}, s[{S_QKV}:{S_QKV+3}], s{T} offen lds")
    vm.add(("w", u), 2)

def helper_loop(a, layer, vm, issued, sched, LJ):
    ROW, S1, S2, G = 40, 42, 44, 48
    first = issued
    for s in range(12):
        tags = [t for t in [("x", s), ("w", 2*s+1)] if t in vm.ops]
        if s == 6 and layer == 1: tags.append("g")
        if tags: a(f"s_waitcnt vmcnt({vm.need(*tags)})")
        if s == 8: a("s_waitcnt lgkmcnt(0)")
        a("s_barrier")
        if s == 7: a(f"ds_write_b32 v{ROW}, v{S1}\nds_write_b32 v{ROW}, v{S2} offset:256")
        for _ in range(sched[s]):
            assert issued < 2*s + 12 and issued < 24
            helper_unit(a, issued, vm); issued += 1
        assert s == 11 or issued >= 2*s + 4
        if s == 6:
            if layer == 1: a(f"v_add_f32 v{S1}, v{G}, v{G+2}\nv_add_f32 v{S2}, v{G+1}, v{G+3}")
            for pat in ("quad_perm:[1,0,3,2]", "quad_perm:[2,3,0,1]"):
                a("s_nop 1")
                for r in (S1, S2): a(f"v_add_f32_dpp v{r}, v{r}, v{r} {pat} row_mask:0xf bank_mask:0xf")
            a(f"v_mul_f32 v{S1}, {f2u(1/512)}, v{S1}\nv_mul_f32 v{S2}, {f2u(1/512)}, v{S2}")
            a(f"v_fma_f32 v{S2}, -v{S1}, v{S1}, v{S2}\nv_max_f32 v{S2}, 0, v{S2}\nv_add_f32 v{S2}, {f2u(1e-5)}, v{S2}\nv_rsq_f32 v{S2}, v{S2}")
            a(f"v_lshlrev_b32 v{ROW}, 2, v{ROW}\nv_add_u32 v{ROW}, {TAB}, v{ROW}")
        if s == 8 and layer == 0:
            a(f"v_lshlrev_b32 v46, 2, v{vL}\nbuffer_load_dword v{TV+2}, v46, s[{S_DBG}:{S_DBG+3}], 0 offen sc1"); vm.add("dbg")
        if s == C.w1t and layer == 0:
            a(f"s_lshl_b32 s{T}, s2, 2\ns_add_u32 s{T}, s{T}, s{sW}\ns_sub_u32 s{T}, s{T}, 4\ns_mul_i32 s{T+1}, s{T}, {56*128}\nv_min_u32 v47, 55, v{vL}\nv_lshlrev_b32 v47, 7, v47")
            a(f"buffer_load_dword v142, v47, s[{S_W1}:{S_W1+3}], s{T+1} offen")
            a(f"s_lshl_b32 s{T+1}, s{T}, 9\nv_and_b32 v47, 0x180, v47\nbuffer_load_dword v143, v47, s[{S_WO}:{S_WO+3}], s{T+1} offen")
            vm.add("t", 2)
    assert issued == 24
    if layer == 0: a(f"s_waitcnt vmcnt({vm.need('dbg')})")
    def w4():
        if layer == 0: wait_init(a, 46)
        if C.lf: kl_publish(a)
        publish(a, "KV", sJ)
    if C.pub12:
        if layer == 0: if_wave_eq(a, 4, lambda: wait_init(a, 46))
        a("s_barrier")
        def w4b():
            if C.lf: kl_publish(a)
            publish(a, "KV", sJ)
        if_wave_eq(a, 4, w4b)
    else:
        if_wave_eq(a, 4, w4)
        a("s_barrier")
    a(f"s_branch {LJ}")

def x_start(a):
    a(f"s_mov_b32 s{sFL}, {WS_FLAG + 512*128}\ns_barrier")
    stamp(a, "p1.polled")
    if C.xp < 8:
        x_dma(a, range(C.xp)); a("s_barrier"); x_dma(a, range(C.xp, 8))
    else: x_dma(a)

def phase1(a):
    LC = "L_p1_cons"; LJ = "L_p1_join"
    a(f"s_cmp_lt_u32 s{sW}, 4\ns_cbranch_scc1 {LC}")
    helper_setup(a)
    a(f"v_and_b32 v41, 3, v{vL}\nv_lshlrev_b32 v41, 9, v41\nv_lshl_add_u32 v41, v40, 3, v41")
    keep = C.stamp; C.stamp = False; x_start(a); C.stamp = keep
    a(f"s_lshl_b32 s{T}, s{sI}, 12\ns_add_u32 s{T}, s{T}, {WS_ST2}")
    a(f"buffer_load_dwordx2 v[48:49], v41, s[{S_WS}:{S_WS+3}], s{T} offen sc1\nbuffer_load_dwordx2 v[50:51], v41, s[{S_WS}:{S_WS+3}], s{T} offen offset:2048 sc1")
    vm = VM()
    for q in range(8): vm.add(("x", q))
    vm.add("g", 2)
    helper_loop(a, 1, vm, 12, [int(c) for c in C.hs1], LJ)
    a(f"{LC}:")
    tt, ch = T+2, T+3
    a(f"s_and_b32 s{tt}, s{sW}, 1\ns_lshr_b32 s{ch}, s{sW}, 1")
    XA = 40
    a(f"v_and_b32 v44, 31, v{vL}\ns_lshl_b32 s{T}, s{tt}, 5\nv_add_u32 v44, s{T}, v44\nv_lshlrev_b32 v38, 2, v44\nv_add_u32 v38, {TAB}, v38")
    a(f"v_bfe_u32 v45, v{vL}, 1, 3\nv_lshrrev_b32 v46, 5, v{vL}\nv_xor_b32 v45, v45, v46\nv_lshlrev_b32 v45, 4, v45\nv_lshl_add_u32 v{XA}, v44, 7, v45")
    for m in range(1, 4): a(f"v_xor_b32 v{XA+m}, {32*m}, v{XA}")
    a(f"s_lshl_b32 s{T}, s{tt}, 7\ns_add_u32 s{T}, s{T}, {TAB+256}\nv_lshlrev_b32 v37, 4, v46\nv_add_u32 v37, s{T}, v37")
    WL, WH = 44, 45
    tr_addr(a, WL, f"s{ch}", False, 46, 47)
    a(f"v_add_u32 v{WL}, {V}, v{WL}\nv_add_u32 v{WH}, {6*8192}, v{WL}")
    AK, AV, AQ = 48, 64, 80
    CS, SEL = 24, 32
    SIX = 21
    a(f"v_lshrrev_b32 v46, 4, v{vL}\nv_xor_b32 v46, v46, v{vL}\nv_and_b32 v46, 2, v46\nv_and_b32 v47, 12, v{vL}\nv_or_b32 v46, v46, v47\nv_mov_b32 v47, 0x3f803f80")
    a(f"v_cmp_eq_u32 vcc, 0, v46\ns_nop 1\nv_cndmask_b32 v{SEL}, 0, v47, vcc\nv_cmp_eq_u32 vcc, 4, v46\nv_mov_b32 v{SEL+1}, v{SEL}\ns_nop 0\nv_cndmask_b32 v{SEL+2}, 0, v47, vcc\nv_mov_b32 v{SEL+3}, v{SEL+2}")
    a(f"v_and_b32 v46, 1, v{vL}\nv_mul_u32_u24 v46, 0xaaaa, v46\nv_or_b32 v{SIX}, 0x4444, v46\nv_lshl_add_u32 v{SIX}, v{SIX}, 16, v{SIX}")
    csoff = T+8
    a(f"s_lshl_b32 s{csoff}, s2, 2\ns_add_u32 s{csoff}, s{csoff}, s{sW}\ns_lshl_b32 s{csoff}, s{csoff}, 10\ns_add_u32 s{csoff}, s{csoff}, {WS_CS}")
    for r in range(8): a(f"v_mov_b32 v{CS+r}, 0")
    def fr(buf, n):
        if buf == 0: return ("a", n)
        return ("a", 64+n) if n < 48 else ("v", 96 + n - 48)
    def R(buf, n, w):
        p, b = fr(buf, n); return f"{p}[{b}:{b+w-1}]"
    def wslot(u):
        s = u % 12
        return (WL, s*8192) if s < 6 else (WH, (s-6)*8192)
    def rd(s):
        buf = s & 1; out = []
        if s < 8:
            for t in range(4):
                out.append(f"ds_read_b128 {R(buf, 12*t, 4)}, v{XA+t} offset:{8192*s}")
                for seg in range(2):
                    va, off = wslot(2*s+seg)
                    for e in range(2):
                        out.append(f"ds_read_b64_tr_b16 {R(buf, 12*t+4+4*seg+2*e, 2)}, v{va} offset:{off + t*2048 + e*512}")
        else:
            for t in range(8):
                out.append(f"ds_read_b128 {R(buf, 16*(t>>1)+4*(t&1), 4)}, v{XA+(t&3)} offset:{16384*(s-8) + (t>>2)*8192}")
                va, off = wslot(2*s + (t >> 2))
                for e in range(2):
                    out.append(f"ds_read_b64_tr_b16 {R(buf, 16*(t>>1)+8+4*(t&1)+2*e, 2)}, v{va} offset:{off + (t&3)*2048 + e*512}")
        return out
    def mf(s):
        buf = s & 1; out = []
        if s < 8:
            for t in range(4):
                z = s == 0 and t == 0
                out.append(f"v_mfma_f32_32x32x16_bf16 v[{AK}:{AK+15}], {R(buf, 12*t+4, 4)}, {R(buf, 12*t, 4)}, " + ("0" if z else f"v[{AK}:{AK+15}]"))
                out.append(f"v_mfma_f32_32x32x16_bf16 v[{AV}:{AV+15}], {R(buf, 12*t, 4)}, {R(buf, 12*t+8, 4)}, " + ("0" if z else f"v[{AV}:{AV+15}]"))
        else:
            for t in range(8):
                out.append(f"v_mfma_f32_32x32x16_bf16 v[{AQ}:{AQ+15}], {R(buf, 16*(t>>1)+8+4*(t&1), 4)}, {R(buf, 16*(t>>1)+4*(t&1), 4)}, " + ("0" if s == 8 and t == 0 else f"v[{AQ}:{AQ+15}]"))
        return out
    OOL = []
    def csum(s):
        buf = s & 1
        L = a.label("Lcs"); LR = a.label("Lcr")
        a(f"s_cbranch_vccnz {L}\n{LR}:")
        o = [f"{L}:"]
        if s < 8:
            for t in range(4): o.append(f"v_smfmac_f32_16x16x64_bf16 v[{CS}:{CS+3}], v[{SEL}:{SEL+3}], {R(buf, 12*t+4, 8)}, v{SIX}")
            if s == 6: o += ["ds_write_b32 v126, v124", "ds_write_b32 v126, v125 offset:256"]
            if s == 7: o += ["s_nop 7", f"v_add_f32 v{ST4}, v{CS}, v{CS+1}", f"v_add_f32 v{ST4+1}, v{CS+2}, v{CS+3}"]
        else:
            for p in range(4): o.append(f"v_smfmac_f32_16x16x64_bf16 v[{CS+4}:{CS+7}], v[{SEL}:{SEL+3}], {R(buf, 16*p+8, 8)}, v{SIX}")
            if s == 11: o += ["s_nop 7", f"v_add_f32 v{CS+4}, v{CS+4}, v{CS+5}", f"v_add_f32 v{CS+6}, v{CS+6}, v{CS+7}", f"v_add_f32 v{ST4+2}, v{CS+4}, v{CS+6}"]
        o.append(f"s_branch {LR}")
        OOL.append("\n".join(o))
    ST4 = 16
    def inter(m, r, per):
        per = max(per, -(-len(r)//len(m)))
        for x in range(len(m)):
            a(m[x])
            for y in r[x*per:(x+1)*per]: a(y)
    a(f"s_lshl_b32 s{T+4}, s{sI}, 1\ns_add_u32 s{T+4}, s{T+4}, s{tt}")
    a(f"s_lshl_b32 s{T+5}, s{sJ}, 2\ns_lshl_b32 s{T+6}, s{ch}, 1\ns_add_u32 s{T+5}, s{T+5}, s{T+6}")
    a(f"s_lshl_b32 s{T+5}, s{T+5}, 6\ns_add_u32 s{T+5}, s{T+5}, s{T+4}")
    a(f"s_lshl_b32 s{T+4}, s{T+5}, 11\ns_add_u32 s{T+4}, s{T+4}, s{sLB}\ns_add_u32 s{T+5}, s{T+4}, 131072")
    assert WS_KV == 0
    a(f"v_and_b32 v46, 0x33, v{vL}\nv_bfe_u32 v47, v{vL}, 2, 1\nv_lshl_add_u32 v46, v47, 3, v46\nv_bfe_u32 v47, v{vL}, 3, 1\nv_lshl_add_u32 v46, v47, 2, v46\nv_lshlrev_b32 v46, 4, v46")
    a(f"v_bfe_u32 v39, v{vL}, 4, 1\nv_lshlrev_b32 v47, 17, v39\nv_lshrrev_b32 v39, 5, v{vL}\nv_lshl_add_u32 v47, v39, 8, v47\nv_and_b32 v39, 15, v{vL}\nv_lshl_add_u32 v47, v39, 4, v47")
    Lx = a.label()
    a(f"s_cmp_eq_u32 s{sL}, 0\ns_cbranch_scc1 L_p1_stats0")
    if_wave_eq(a, 0, lambda: poll(a, "X", sI, 8))
    x_start(a)
    a(f"{Lx}:")
    b = Asm(); b.n = 91000
    b("L_p1_stats0:\ns_waitcnt vmcnt(0)")
    stamp(b, "p1.xarr")
    own_stats(b, 48, 116, 124, 125, 126)
    b(f"s_branch {Lx}")
    OOL.append("\n".join(b.L))
    a(f"buffer_load_dwordx4 v[{ST4}:{ST4+3}], v{vL16}, s[{S_WS}:{S_WS+3}], s{csoff} offen sc1")
    a("s_waitcnt vmcnt(8)\ns_barrier")
    stamp(a, "p1.b0")
    for x in rd(0): a(x)
    P, RB, MU, RR = 112, 128, 36, 39
    def aug_w(seg, d):
        return [f"v_cvt_pk_bf16_f32 v{d}, v{ST4+seg}, v{ST4+seg}", f"v_and_b32 v{d+1}, 0xffff0000, v{d}", f"v_sub_f32 v{d+1}, v{ST4+seg}, v{d+1}", f"v_cvt_pk_bf16_f32 v{d+1}, v{d+1}, v{d+1}"]
    XM = 22
    a(f"s_cmp_eq_u32 s{sL}, 0\ns_cselect_b64 vcc, -1, 0")
    def waitbar(s):
        vmw = f"vmcnt({7-s}) " if s < 7 else ("vmcnt(0) " if s == 7 or (s == 10 and not C.pub12) else "")
        a(f"s_waitcnt {vmw}lgkmcnt(0)\ns_barrier")
        stamp(a, f"zq.{s+1:02d}")
    waitbar(0)
    for s in range(12):
        m = mf(s)
        r = rd(s+1) if s < 11 else []
        csum(s)
        if s == 7:
            tab = [f"ds_read_b32 v{MU}, v38", f"ds_read_b32 v{RR}, v38 offset:256"] + [f"ds_read_b128 v[{RB+4*k}:{RB+4*k+3}], v37 offset:{32*k}" for k in range(4)]
            mk = m[0::2]; mv = m[1::2]
            aw = aug_w(0, 24) + aug_w(1, 26)
            xm = [f"v_sub_f32 v{MU}, 0, v{MU}", f"v_cvt_pk_bf16_f32 v{XM}, v{MU}, v{MU}", f"v_and_b32 v{XM+1}, 0xffff0000, v{XM}", f"v_sub_f32 v{XM+1}, v{MU}, v{XM+1}", f"v_cvt_pk_bf16_f32 v{XM}, v{MU}, v{XM+1}", f"v_mov_b32 v{XM+1}, v{XM}"]
            a(mk[0]); [a(x) for x in tab]
            a(mk[1]); [a(x) for x in aw[:4] + r[:3]]
            a(mk[2]); [a(x) for x in aw[4:] + r[3:6]]
            a(mk[3]); a("s_waitcnt lgkmcnt(10)"); [a(x) for x in xm]
            a(mv[0]); [a(x) for x in r[6:9]]
            a(f"v_mfma_f32_32x32x8_bf16 v[{AK}:{AK+15}], v[24:25], v[{XM}:{XM+1}], v[{AK}:{AK+15}]"); [a(x) for x in r[9:14]]
            a(mv[1]); [a(x) for x in r[14:19]]
            a(mv[2]); [a(x) for x in r[19:24]]
            a(mv[3])
            for k in range(10): a(f"v_mul_f32 v{AK+k}, v{AK+k}, v{RR}")
            a(f"v_mfma_f32_32x32x8_bf16 v[{AV}:{AV+15}], v[{XM}:{XM+1}], v[26:27], v[{AV}:{AV+15}]")
            for k in range(10, 16): a(f"v_mul_f32 v{AK+k}, v{AK+k}, v{RR}")
            for k in range(8): a(f"v_cvt_pk_bf16_f32 v{P+k}, v{AK+2*k}, v{AK+2*k+1}")
            a(f"buffer_store_dwordx4 v[{P}:{P+3}], v46, s[{S_WS}:{S_WS+3}], s{T+4} offen sc1")
            a(f"buffer_store_dwordx4 v[{P+4}:{P+7}], v46, s[{S_WS}:{S_WS+3}], s{T+5} offen sc1")
            a("s_waitcnt lgkmcnt(15)")
            for k in range(16): a(f"v_mul_f32 v{AV+k}, v{AV+k}, v{RB+k}")
            for k in range(8): a(f"v_cvt_pk_bf16_f32 v{P+8+k}, v{AV+2*k}, v{AV+2*k+1}")
            a(f"buffer_store_dwordx4 v[{P+8}:{P+11}], v47, s[{S_WS}:{S_WS+3}], s{T+4} offen offset:1024 sc1")
            a(f"buffer_store_dwordx4 v[{P+12}:{P+15}], v47, s[{S_WS}:{S_WS+3}], s{T+4} offen offset:1536 sc1")
            stamp(a, "p1.kvst")
            waitbar(8)
        elif s < 11:
            e = C.early
            per = -(-len(r)//min(e, 5))
            for x in range(8):
                a(m[x])
                for y in r[x*per:(x+1)*per]: a(y)
                if x == e: waitbar(s+1) if s < 10 else a("s_waitcnt vmcnt(0) lgkmcnt(0)\ns_barrier")
        else:
            aw = aug_w(2, 24)
            a(m[0])
            a(f"s_lshl_b32 s{T+6}, s{ch}, 12\ns_lshl_b32 s{T+7}, s{tt}, 10\ns_add_u32 s{T+6}, s{T+6}, s{T+7}\ns_add_u32 s{T+6}, s{T+6}, {QX}\nv_add_u32 v46, s{T+6}, v{vL16}")
            a(m[1]); [a(x) for x in aw]
            a(f"v_mul_f32 v{RR}, {f2u(0.25*1.4426950408889634)}, v{RR}")
            for x in m[2:]: a(x)
    stamp(a, "p1.mfma")
    a("s_nop 9")
    a(f"v_mfma_f32_32x32x8_bf16 v[{AQ}:{AQ+15}], v[24:25], v[{XM}:{XM+1}], v[{AQ}:{AQ+15}]")
    a(f"buffer_store_dwordx4 v[{ST4}:{ST4+3}], v{vL16}, s[{S_WS}:{S_WS+3}], s{csoff} offen sc1")
    a("s_nop 10")
    for r in range(16): a(f"v_mul_f32 v{AQ+r}, v{AQ+r}, v{RR}")
    for r in range(8): a(f"v_cvt_pk_bf16_f32 v{P+r}, v{AQ+2*r}, v{AQ+2*r+1}")
    a(f"ds_write_b128 v46, v[{P}:{P+3}]\nds_write_b128 v46, v[{P+4}:{P+7}] offset:2048")
    a(f"{LJ}:")
    return OOL

hh, kh, head, kvs, w1s, w1c, wos, tch, ring, kro, kfa = T+2, T+3, T+4, T+5, T+6, T+7, T+8, T+9, T+10, T+11, T+12
TD, VA_, IDX, TA, vF1, vWO, SGA, Q, S, O, KR, VR = 16, 18, 19, 20, 21, 22, 23, 24, [32, 48], [80, 64], 96, 112
ost, osrc, cgive, ctake = 88, 90, 92, 93
CST = E + 33792
CMB = E + 37888

def wo_reads():
    o = []
    for t in range(8):
        for y in range(2):
            b = 80 + 8*t + 4*y
            o += [f"ds_read_b64_tr_b16 v[{b}:{b+1}], v{20+2*y} offset:{t*2048}", f"ds_read_b64_tr_b16 v[{b+2}:{b+3}], v{20+2*y} offset:{t*2048+1024}"]
    return o

def phase2(a):
    t0, t1 = S[0], S[0]+1
    a(f"s_and_b32 s{hh}, s{sW}, 3\ns_lshr_b32 s{kh}, s{sW}, 2\ns_lshl_b32 s{head}, s{sJ}, 2\ns_add_u32 s{head}, s{head}, s{hh}")
    a(f"s_lshl_b32 s{kvs}, s{head}, 17\ns_lshl_b32 s{T}, s{kh}, 11\ns_add_u32 s{kvs}, s{kvs}, s{T}\ns_add_u32 s{kvs}, s{kvs}, s{sLB}")
    a(f"s_lshr_b32 s{kro}, s{sI}, 2\ns_lshl_b32 s{kro}, s{kro}, 14")
    a(f"s_lshl_b32 s{ring}, s{sW}, 12")
    Lk = a.label()
    a(f"s_cmp_lt_u32 s{sW}, 4\ns_cbranch_scc1 {Lk}")
    a(f"v_and_b32 v{t0}, 3, v{vL}\nv_cmp_eq_u32 vcc, 1, v{t0}\nv_mov_b32 v{t1}, 0x3f803f80\ns_nop 0\nv_cndmask_b32 v{t0+4}, 0, v{t1}, vcc")
    a(f"v_mov_b32 v{t0+5}, v{t0+4}\nv_mov_b32 v{t0+6}, v{t0+4}\nv_mov_b32 v{t0+7}, v{t0+4}")
    a(f"s_lshl_b32 s{T}, s{sW}, 10\ns_add_u32 s{T}, s{T}, {CST - 4096}\nv_add_u32 v{t0}, s{T}, v{vL16}\nds_write_b128 v{t0}, v[{t0+4}:{t0+7}]")
    if C.lf: if_wave_eq(a, 5, lambda: kl_poll(a))
    else: if_wave_eq(a, 5, lambda: poll(a, "KV", sJ, 32))
    a(f"{Lk}:")
    def post_setup():
        a(f"v_lshrrev_b32 v{t0}, 5, v{vL}\nv_lshlrev_b32 v{VA_}, 8, v{t0}\nv_and_b32 v{t0}, 15, v{vL}\nv_lshl_add_u32 v{VA_}, v{t0}, 4, v{VA_}\nv_add_u32 v{VA_}, s{ring}, v{VA_}\nv_add_u32 v{VA_}, 1024, v{VA_}")
        a(f"v_add_u32 v{t1}, 4, v{t0}\nv_and_b32 v{t1}, 8, v{t1}\nv_lshlrev_b32 v{t1}, 3, v{t1}\nv_add_u32 v{t1}, {CST}, v{t1}")
        a(f"v_and_b32 v{t0}, 11, v{vL}\nv_cmp_eq_u32 vcc, 0, v{t0}\nv_add_u32 v{t0}, 16, v{t1}\ns_nop 0\nv_cndmask_b32 v{t1}, v{t1}, v{t0}, vcc")
        a(f"v_and_b32 v{t0}, 16, v{vL}\nv_cmp_eq_u32 vcc, 0, v{t0}\ns_nop 1\nv_cndmask_b32 v{VA_}, v{t1}, v{VA_}, vcc")
        a(f"v_mov_b32 v{IDX}, 0xdddddddd")
        for r in range(32): a(f"v_mov_b32 v{64+r}, 0")
        if C.now1: a(f"s_mov_b32 s{S_W1+2}, 0")
        a(f"s_cmp_lg_u32 s{sL}, 0\ns_cselect_b32 s{S_QKV+2}, 0, s{S_QKV+2}")
        a(f"s_lshr_b32 s{w1s}, s{sW}, 1\ns_mul_i32 s{w1s}, s{w1s}, {512*3584}\ns_lshl_b32 s{T}, s{sI}, 7\ns_add_u32 s{w1s}, s{w1s}, s{T}")
        a(f"s_and_b32 s{T+1}, s{sW}, 1\ns_lshl_b32 s{T+1}, s{T+1}, 6\ns_add_u32 s{w1s}, s{w1s}, s{T+1}\ns_sub_u32 s{w1s}, s{w1s}, {16*3584}")
        if C.tmix:
            a(f"s_lshl_b32 s{tch}, s{sJ}, 2\ns_and_b32 s{T+1}, s{sI}, 3\ns_add_u32 s{tch}, s{tch}, s{T+1}\ns_lshl_b32 s{tch}, s{tch}, 3\ns_add_u32 s{tch}, s{tch}, s{sW}\ns_mul_i32 s{tch}, s{tch}, {7*4096}")
            a(f"s_lshr_b32 s{T+1}, s{sI}, 2\ns_lshl_b32 s{T+1}, s{T+1}, 9\ns_add_u32 s{tch}, s{tch}, s{T+1}")
            a(f"v_lshrrev_b32 v{TA}, 2, v{vL}\nv_lshlrev_b32 v{TA}, 12, v{TA}\nv_and_b32 v{t1}, 3, v{vL}\nv_lshl_add_u32 v{TA}, v{t1}, 7, v{TA}")
        else:
            a(f"s_lshl_b32 s{tch}, s{sJ}, 3\ns_add_u32 s{tch}, s{tch}, s{sW}\ns_mul_i32 s{tch}, s{tch}, {28*4096}\ns_add_u32 s{tch}, s{tch}, s{T}")
            a(f"v_lshlrev_b32 v{TA}, 12, v{vL}")
        a(f"v_cmp_gt_u32 vcc, 28, v{vL}\nv_mov_b32 v{t1}, 0x40000000\ns_nop 0\nv_cndmask_b32 v{TA}, v{t1}, v{TA}, vcc")
        a(f"s_lshl_b32 s{wos}, s{sW}, 13\ns_lshl_b32 s{T}, s{sJ}, 7\ns_add_u32 s{wos}, s{wos}, s{T}")
        a(f"s_lshl_b32 s{T}, s{hh}, 11\ns_add_u32 s{T}, s{T}, {QX}\nv_add_u32 v{t1}, s{T}, v{vL16}\nv_subrev_u32 v{SGA}, {SVO}, v{vTRF}")
        a(f"v_lshrrev_b32 v{t0+2}, 2, v{vL}\nv_and_b32 v{t0+3}, 3, v{vL}\nv_lshlrev_b32 v{t0+3}, 4, v{t0+3}\nv_mul_u32_u24 v{vF1}, 3584, v{t0+2}\nv_add_u32 v{vF1}, v{vF1}, v{t0+3}")
        a(f"v_lshrrev_b32 v{t0+2}, 3, v{vL}\nv_lshlrev_b32 v{t0+2}, 11, v{t0+2}\nv_sub_u32 v{vWO}, v{vWQ}, v{t0+2}")
        if C.lf: flag_addr(a, "KV", kfa)
    a("s_waitcnt lgkmcnt(0)\ns_barrier")
    stamp(a, "p2.start")
    vm = VM()
    kcur = T+13
    assert C.lfi < C.lfc
    GP = 128
    def kv_issue(t):
        k = KR + 4*(t & 3)
        if t % 4 == 0: a(f"s_add_u32 s{kcur}, s{kvs}, s{kro}\ns_add_u32 s{kro}, s{kro}, 16384\ns_and_b32 s{kro}, s{kro}, 0x1ffff")
        else: a(f"s_addk_i32 s{kcur}, 4096")
        a(f"s_add_u32 m0, s{ring}, {(t & 3)*1024}")
        a(f"buffer_load_dwordx4 v[{k}:{k+3}], v{vL16}, s[{S_WS}:{S_WS+3}], s{kcur} offen sc1")
        a(f"buffer_load_dwordx4 v{vL16}, s[{S_WS}:{S_WS+3}], s{kcur} offen offset:1024 sc1 lds")
        vm.add(("kv", t), 2)
    def v_read(t):
        v = VR + 8*(t & 1)
        a(f"ds_read_b128 v[{v}:{v+3}], v{VA_} offset:{(t & 3)*1024}\nds_read_b128 v[{v+4}:{v+7}], v{VA_} offset:{(t & 3)*1024 + 512}")
    def w1_issue(f):
        if f % 4 == 0:
            a(f"s_and_b32 s{w1c}, s{sJ}, {C.jrot}\ns_add_u32 s{w1c}, s{w1c}, {f//4}\ns_and_b32 s{w1c}, s{w1c}, 7\ns_mul_i32 s{w1c}, s{w1c}, {64*3584}\ns_add_u32 s{w1c}, s{w1c}, s{w1s}")
        a(f"s_add_u32 m0, s{sVW}, {STG - V + (f & 3)*8192}\ns_add_u32 s{w1c}, s{w1c}, {16*3584}")
        a(f"buffer_load_dwordx4 v{vF1}, s[{S_W1}:{S_W1+3}], s{w1c} offen{' nt' if C.w1nt else ''} lds")
        vm.add(("w1", f))
    def wo_issue(u):
        a(f"s_add_u32 m0, s{sVW}, {SVO + u*8192}\ns_add_u32 s{T}, s{wos}, {u*65536}")
        a(f"buffer_load_dwordx4 v{vWO}, s[{S_WO}:{S_WO+3}], s{T} offen lds")
        vm.add(("wo", u))
    def touch(n):
        a(f"s_cmp_eq_u32 s{sJ}, {n}\ns_cselect_b32 s{T}, s{tch}, 0x40000000")
        a(f"buffer_load_dword v{TD}, v{TA}, s[{S_W2}:{S_W2+3}], s{T} offen")
        vm.add(("t", n))
    def ex(s, r0, r1):
        for r in range(r0, r1): a(f"v_exp_f32 v{s+r}, v{s+r}")
    def setprio(p):
        L = a.label()
        a(f"s_cmp_lg_u32 s{kh}, 0\ns_cbranch_scc1 {L}\ns_setprio {p}\n{L}:")
    def qk(q, t): a(f"v_mfma_f32_32x32x16_bf16 v[{S[q]}:{S[q]+15}], v[{KR+4*(t&3)}:{KR+4*(t&3)+3}], v[{Q+4*q}:{Q+4*q+3}], 0")
    def pv(q, t, h): a(f"v_smfmac_f32_32x32x32_bf16 v[{O[q]}:{O[q]+15}], v[{VR+8*(t&1)+4*h}:{VR+8*(t&1)+4*h+3}], v[{S[q]+8*h}:{S[q]+8*h+7}], v{IDX}")
    kv_issue(0); kv_issue(1)
    post_setup()
    a(f"s_lshl_b32 s{T}, s{kh}, 10\nv_add_u32 v{t1}, s{T}, v{t1}\nv_xor_b32 v{t0}, 1024, v{t1}")
    a(f"ds_read_b128 v[{Q}:{Q+3}], v{t0}\nds_read_b128 v[{Q+4}:{Q+7}], v{t1}")
    a(f"s_lshl_b32 s{ost}, s{sI}, 1\ns_add_u32 s{ost}, s{ost}, s{kh}\ns_lshl_b32 s{ost}, s{ost}, 5\ns_add_u32 s{ost}, s{ost}, s{head}\ns_lshl_b32 s{ost}, s{ost}, 10")
    a(f"s_add_u32 s{ost}, s{ost}, {WS_O}\ns_add_u32 s{ost}, s{ost}, s{sLB}")
    a(f"s_and_b32 s{osrc}, s{sW}, 1\ns_lshl_b32 s{osrc}, s{osrc}, 15\ns_lshr_b32 s{T}, s{sW}, 1\ns_lshl_b32 s{T}, s{T}, 13\ns_add_u32 s{osrc}, s{osrc}, s{T}")
    a(f"s_lshl_b32 s{T}, s{sI}, 16\ns_add_u32 s{osrc}, s{osrc}, s{T}\ns_add_u32 s{osrc}, s{osrc}, {WS_O}\ns_add_u32 s{osrc}, s{osrc}, s{sLB}\ns_add_u32 s{osrc+1}, s{osrc}, 4096")
    a(f"s_mul_i32 s{cgive}, s{sW}, 3072\ns_add_u32 s{cgive}, s{cgive}, {CMB}\ns_xor_b32 s{ctake}, s{sW}, 4\ns_mul_i32 s{ctake}, s{ctake}, 3072\ns_add_u32 s{ctake}, s{ctake}, {CMB}")
    tr_addr(a, 131, "0", True, 132, 133)
    a(f"s_lshr_b32 s{T}, s{sW}, 1\ns_lshl_b32 s{T}, s{T}, 14\ns_add_u32 s{T}, s{T}, {V+SVO}\nv_add_u32 v131, s{T}, v131")
    if C.prio: a("s_setprio 1")
    a(f"s_waitcnt vmcnt(2) lgkmcnt(0)")
    qk(0, 0)
    v_read(0)
    kv_issue(2); kv_issue(3)
    a(f"s_lshr_b32 s{T}, s{sI}, 2\ns_lshl_b32 s{T}, s{T}, 9\ns_add_u32 s{T}, s{T}, {WS_XT}\nv_and_b32 v17, 0x1f0, v{vL16}")
    a(f"buffer_load_dword v17, v17, s[{S_WS}:{S_WS+3}], s{T} offen sc1"); vm.add("xt")
    if C.c3:
        a(f"s_lshr_b32 s{T}, s2, 3\ns_lshl_b32 s{T}, s{T}, 3\ns_add_u32 s{T}, s{T}, s{sW}\ns_lshl_b32 s{T+1}, s{T}, 11\ns_add_u32 s{T+1}, s{T+1}, 384")
        a(f"v_min_u32 v{GP+1}, 1, v{vL}\nv_lshlrev_b32 v{GP+1}, 10, v{GP+1}\nbuffer_load_dword v{GP+1}, v{GP+1}, s[{S_WO}:{S_WO+3}], s{T+1} offen")
        a(f"s_mul_i32 s{T}, s{T}, {8*3584}\ns_or_b32 s{T+1}, s{sI}, 3\ns_lshl_b32 s{T+1}, s{T+1}, 7\ns_add_u32 s{T}, s{T}, s{T+1}")
        a(f"v_min_u32 v{GP+2}, 7, v{vL}\nv_mul_u32_u24 v{GP+2}, 3584, v{GP+2}\nbuffer_load_dword v{GP+2}, v{GP+2}, s[{S_W1}:{S_W1+3}], s{T} offen")
        vm.add("c3", 2)
    stamp(a, "p2.kv0")
    a("s_nop 1")
    per = C.pper; low = C.plow
    for t in range(32):
        for q in range(2):
            hidx = 2*t + q
            if C.prio and hidx % per == 0: setprio(2)
            if C.prio and hidx % per == per - low: setprio(0)
            ex(S[q], 0, 2)
            if q == 0:
                if t > 0: pv(1, t-1, 1)
            else: pv(0, t, 1)
            ex(S[q], 2, 5)
            if q == 0:
                qk(1, t)
                need = [("kv", t+1)] if t < 31 else []
                if not C.nox and 3 <= t < 31: need.append(("w1", t-3))
                if C.lf and t == C.lfc: need.append("gp")
                a(f"s_waitcnt vmcnt({vm.need(*need) if need else 63}) lgkmcnt(0)")
                if C.lf and t == C.lfi: apoll_issue(a, kfa, GP); vm.add("gp")
                if C.lf and t == C.lfc:
                    apoll_check(a, kfa, GP, 32)
                    for k in range(4, t+4): kv_issue(k)
                if t+4 < 32 and not (C.lf and t < C.lfc): kv_issue(t+4)
                if t+1 < 32: v_read(t+1)
                if not C.nox and not C.split:
                    w1_issue(t)
                    if 3 <= t < 31:
                        for x in frag_reads(f"a{4*(t-3)}", SGA, ((t-3) & 3)*8192): a(x)
            else:
                if t < 31: qk(0, t+1)
                if not C.nox:
                    if C.split:
                        w1_issue(t)
                        if 3 <= t < 31:
                            for x in frag_reads(f"a{4*(t-3)}", SGA, ((t-3) & 3)*8192): a(x)
                    if t == C.prett and C.preto:
                        a(f"buffer_load_dword v{TD}, v{vL16}, s[{S_WS}:{S_WS+3}], s{ost} offen sc1")
                        vm.add("pre")
                    if t % 3 == 1 and t < 24: wo_issue(t//3)
                    if t == 8: a(f"v_readfirstlane_b32 s{T}, v17\ns_nop 1\nv_cmp_ne_u32 vcc, s{T}, v17\ns_nop 1\ns_cmp_eq_u64 vcc, 0\ns_cselect_b32 s{sLOC}, 1, 0")
                    if t % 4 == 3 and C.stouch == 1: touch(t//4)
                    if t % 3 == 2 and t < 24 and C.stouch == 2: touch(t//3)
                    if t == C.t2:
                        a(f"buffer_load_dword v{TD}, v{TA}, s[{S_W2}:{S_W2+3}], s{tch} offen{' nt' if C.w2nt else ''}"); vm.add("t2")
            ex(S[q], 5, 11)
            pv(q, t, 0)
            if t == 31 and q == 1:
                a(f"s_mov_b32 m0, s{cgive}\nv_mov_b32 v20, v131\nv_xor_b32 v22, 64, v131")
                for r in range(9): a(f"ds_write_addtid_b32 v{O[0]+r} offset:{256*r}")
            ex(S[q], 11, 16)
    a("s_nop 1")
    pv(1, 31, 1)
    if C.prio: a("s_setprio 0")
    stamp(a, "p2.loop")
    M, N = O[1], 36
    assert vm.need(("wo", 7)) >= vm.need(("kv", 31))
    a(f"s_mov_b32 m0, s{ctake}\ns_waitcnt lgkmcnt(0)\ns_barrier")
    stamp(a, "zc.cmb")
    for r in range(9): a(f"ds_read_addtid_b32 v{N+r} offset:{256*r}")
    wr_ = wo_reads()
    for x in wr_[:6]: a(x)
    a("s_waitcnt lgkmcnt(6)")
    for r in range(9): a(f"v_add_f32 v{M+r}, v{M+r}, v{N+r}")
    for x in wr_[6:C.wo1]: a(x)
    a(f"v_add_f32 v{N}, abs(v{M}), abs(v{M+1})\nv_add_f32 v{N+1}, abs(v{M+2}), abs(v{M+3})\nv_add_f32 v{N+2}, abs(v{M+4}), abs(v{M+5})\nv_add_f32 v{N+3}, abs(v{M+6}), abs(v{M+7})")
    a(f"v_add_f32 v{N}, v{N}, v{N+1}\nv_add_f32 v{N+2}, v{N+2}, v{N+3}\nv_cmp_nge_f32 vcc, {f2u(2.0**60)}, v{M+8}\nv_add_f32 v{N}, v{N}, v{N+2}")
    a(f"s_mov_b64 s[{T+12}:{T+13}], vcc\nv_cmp_nle_f32 vcc, {f2u(2.0**-60)}, v{M+8}\ns_nop 0\ns_or_b64 s[{T+12}:{T+13}], s[{T+12}:{T+13}], vcc")
    a(f"v_cmp_ngt_f32 vcc, 0x7f800000, v{N}\ns_nop 0\ns_or_b64 s[{T+12}:{T+13}], s[{T+12}:{T+13}], vcc\ns_cbranch_scc1 L_softmax_safe\nL_softmax_done:")
    a(f"v_rcp_f32 v{M+8}, v{M+8}\ns_nop 0")
    for r in range(8): a(f"v_mul_f32 v{M+r}, v{M+r}, v{M+8}")
    for r in range(4): a(f"v_cvt_pk_bf16_f32 v{N+r}, v{M+2*r}, v{M+1+2*r}")
    if C.sent:
        for r in range(4): a(f"v_min_u32 v{N+r}, -2, v{N+r}")
    rstore(a, f"buffer_store_dwordx4 v[{N}:{N+3}], v{vL16}, s[{S_WS}:{S_WS+3}], s{ost} offen", bulk=not C.ldo)
    for x in wr_[C.wo1:]: a(x)

def softmax_safe(a):
    M = O[1]
    QF, KF, VF, SS, CC, OO, MX, VO = Q+4, 104, 108, 48, 80, 120, 116, 117
    base, cur, n = T+12, T+13, T+14
    a("L_softmax_safe:")
    a("s_waitcnt lgkmcnt(0)")
    a(f"s_lshl_b32 s{base}, s{head}, 17\ns_add_u32 s{base}, s{base}, s{sLB}")
    a(f"v_mov_b32 v{MX}, 0xff800000\ns_mov_b32 s{cur}, s{base}\ns_mov_b32 s{n}, 64")
    L1 = a.label()
    a(f"{L1}:")
    a(f"buffer_load_dwordx4 v[{KF}:{KF+3}], v{vL16}, s[{S_WS}:{S_WS+3}], s{cur} offen sc1\ns_waitcnt vmcnt(0)")
    a(f"v_mfma_f32_32x32x16_bf16 v[{SS}:{SS+15}], v[{KF}:{KF+3}], v[{QF}:{QF+3}], 0\ns_nop 15")
    for r in range(0, 16, 2): a(f"v_max3_f32 v{MX}, v{MX}, v{SS+r}, v{SS+r+1}")
    a(f"s_add_u32 s{cur}, s{cur}, 2048\ns_sub_u32 s{n}, s{n}, 1\ns_cmp_lg_u32 s{n}, 0\ns_cbranch_scc1 {L1}")
    a(f"v_mov_b32 v{VO}, v{MX}\ns_nop 1\nv_permlane32_swap_b32 v{MX}, v{VO}\ns_nop 1\nv_max_f32 v{MX}, v{MX}, v{VO}")
    for r in range(16): a(f"v_sub_f32 v{CC+r}, 0, v{MX}\nv_mov_b32 v{OO+r}, 0")
    for r in range(8): a(f"v_mov_b32 v{VF+r}, 0x3f803f80")
    a(f"v_lshrrev_b32 v{MX}, 5, v{vL}\nv_lshlrev_b32 v{VO}, 8, v{MX}\nv_and_b32 v{MX}, 15, v{vL}\nv_lshl_add_u32 v{VO}, v{MX}, 4, v{VO}")
    a(f"s_mov_b32 s{cur}, s{base}\ns_mov_b32 s{n}, 64")
    L2 = a.label()
    a(f"{L2}:")
    a(f"buffer_load_dwordx4 v[{KF}:{KF+3}], v{vL16}, s[{S_WS}:{S_WS+3}], s{cur} offen sc1")
    a("s_mov_b32 exec_lo, 0xffff\ns_mov_b32 exec_hi, 0xffff")
    a(f"buffer_load_dwordx4 v[{VF}:{VF+3}], v{VO}, s[{S_WS}:{S_WS+3}], s{cur} offen offset:1024 sc1")
    a(f"buffer_load_dwordx4 v[{VF+4}:{VF+7}], v{VO}, s[{S_WS}:{S_WS+3}], s{cur} offen offset:1536 sc1")
    a("s_mov_b64 exec, -1\ns_waitcnt vmcnt(0)")
    a(f"v_mfma_f32_32x32x16_bf16 v[{SS}:{SS+15}], v[{KF}:{KF+3}], v[{QF}:{QF+3}], v[{CC}:{CC+15}]\ns_nop 15")
    for r in range(16): a(f"v_exp_f32 v{SS+r}, v{SS+r}")
    a("s_nop 1")
    a(f"v_smfmac_f32_32x32x32_bf16 v[{OO}:{OO+15}], v[{VF}:{VF+3}], v[{SS}:{SS+7}], v{IDX}")
    a(f"v_smfmac_f32_32x32x32_bf16 v[{OO}:{OO+15}], v[{VF+4}:{VF+7}], v[{SS+8}:{SS+15}], v{IDX}\ns_nop 15")
    a(f"s_add_u32 s{cur}, s{cur}, 2048\ns_sub_u32 s{n}, s{n}, 1\ns_cmp_lg_u32 s{n}, 0\ns_cbranch_scc1 {L2}")
    for r in range(9): a(f"v_mov_b32 v{M+r}, v{OO+r}")
    for x in wo_reads()[:C.wo1]: a(x)
    a("s_branch L_softmax_done")

EOFF = 61692
def ep2_writes(acc, base, sw4k):
    off = EOFF if base >= EOFF else 0
    o = [f"ds_write_addtid_b32 v{acc+r} offset:{off + r*256}" for r in range(16)]
    o[0] = f"s_add_u32 m0, s{sw4k}, {base - off}\ns_nop 0\n" + o[0]
    return o

def ep2_read_addr(a, ra, base0, base1, sw4k, tv):
    a(f"s_and_b32 s{T}, s{sW}, 1\ns_lshl_b32 s{T}, s{T}, 2\ns_lshr_b32 s{T+1}, s{sW}, 1\ns_add_u32 s{T}, s{T}, s{T+1}\ns_lshl_b32 s{sw4k}, s{T}, 12")
    a(f"s_lshr_b32 s{T}, s{sW}, 2\ns_lshl_b32 s{T}, s{T}, 14\ns_and_b32 s{T+1}, s{sW}, 3\ns_lshl_b32 s{T+1}, s{T+1}, 10\ns_add_u32 s{T}, s{T}, s{T+1}\ns_add_u32 s{T}, s{T}, {base0}")
    a(f"v_and_b32 v{tv}, 3, v{vN}\nv_lshlrev_b32 v{ra}, 8, v{tv}\nv_bfe_u32 v{tv}, v{vN}, 2, 1\nv_lshl_add_u32 v{ra}, v{tv}, 7, v{ra}\nv_and_b32 v{tv}, 3, v{vC}\nv_lshl_add_u32 v{ra}, v{tv}, 5, v{ra}")
    a(f"v_add_u32 v{ra}, s{T}, v{ra}\nv_lshrrev_b32 v{tv}, 2, v{vC}\nv_mul_i32_i24 v{tv}, {base1 - base0}, v{tv}\nv_add_u32 v{ra}, v{ra}, v{tv}")

def ep2_sum(a, ra, add0, out):
    for k in range(4):
        a(f"ds_read_b128 v[{out+8*k}:{out+8*k+3}], v{ra} offset:{4096*k}\nds_read_b128 v[{out+8*k+4}:{out+8*k+7}], v{ra} offset:{4096*k+16}")
    a("s_waitcnt lgkmcnt(6)")
    for e in range(8): a(f"v_add_f32 v{out+e}, v{out+e}, v{add0+e}")
    a("s_waitcnt lgkmcnt(2)")
    for e in range(8): a(f"v_add_f32 v{out+8+e}, v{out+8+e}, v{out+16+e}")
    for e in range(8): a(f"v_add_f32 v{out+e}, v{out+e}, v{out+8+e}")
    a("s_waitcnt lgkmcnt(0)")
    for e in range(8): a(f"v_add_f32 v{out+e}, v{out+e}, v{out+24+e}")

def unpack8(a, dst, src):
    for e in range(4): a(f"v_lshlrev_b32 v{dst+2*e}, 16, v{src+e}\nv_and_b32 v{dst+1+2*e}, 0xffff0000, v{src+e}")

def phase3(a):
    stamp(a, "zc.ost")
    OF, ACC, WF = 16, 48, 80
    src = osrc
    n3 = [int(c) for c in C.sch3]; assert n3[0] == 4 and sum(n3) == 12
    spin = T+6
    if not C.sent:
        a("s_waitcnt vmcnt(0) lgkmcnt(0)\ns_barrier")
        stamp(a, "p2.end")
        if_wave_eq(a, 0, lambda: publish(a, "O", sI))
        for f in range(n3[0]): w2_dma(a, f)
        if_wave_eq(a, 0, lambda: poll(a, "O", sI, 8))
        a("s_barrier")
        stamp(a, "proj.polled")
    else:
        a(f"s_mov_b32 s{spin}, {SPIN}\ns_waitcnt {'vmcnt(0) ' if C.sentwait == 1 else ''}lgkmcnt(0)\ns_barrier")
        stamp(a, "p2.end")
    LT = a.label()
    a(f"{LT}:")
    for t in range(8):
        if C.lprio and t % 2 == 0: a(f"s_setprio {3 - t//2}")
        a(f"buffer_load_dwordx4 v[{OF+4*t}:{OF+4*t+3}], v{vL16}, s[{S_WS}:{S_WS+3}], s{src + (t >> 2)} offen offset:{(t & 3)*1024} sc1")
    for t in range(8):
        a(f"s_waitcnt vmcnt({7-t})")
        for y in range(2):
            c = "0" if t == 0 else f"v[{ACC+16*y}:{ACC+16*y+15}]"
            a(f"v_mfma_f32_32x32x16_bf16 v[{ACC+16*y}:{ACC+16*y+15}], v[{OF+4*t}:{OF+4*t+3}], v[{WF+8*t+4*y}:{WF+8*t+4*y+3}], {c}")
            if C.sent:
                o = OF + 4*t + 2*y
                a(f"v_max_u32 v0, v{o}, v{o+1}" if t == 0 and y == 0 else f"v_max3_u32 v0, v0, v{o}, v{o+1}")
    if C.sent:
        a(f"v_cmp_eq_u32 vcc, -1, v0\ns_sub_u32 s{spin}, s{spin}, 1\ns_cselect_b64 vcc, 0, vcc\ns_cbranch_vccnz {LT}")
    ep2_read_addr(a, 88, V+SVO, E+16, T+4, 80)
    stamp(a, "proj.loop")
    OUT = 104
    for x in ep2_writes(ACC, V+SVO, T+4) + ep2_writes(ACC+16, E+16, T+4): a(x)
    unpack8(a, 96, vRES)
    if C.sent:
        for f in range(n3[0]): w2_dma(a, f)
    a("s_waitcnt lgkmcnt(0)\ns_barrier")
    stamp(a, "zc.epb")
    ep2_sum(a, 88, 96, OUT)
    for e in range(4): a(f"v_cvt_pk_bf16_f32 v{vRES+e}, v{OUT+2*e}, v{OUT+1+2*e}")
    a("v_mov_b32 v64, 0\nv_mov_b32 v65, 0\nv_mov_b32 v66, 1\nv_mov_b32 v67, 1\nv_mov_b32 v68, 0x3f803f80")
    for e in range(4): a(f"v_dot2c_f32_bf16 v64, v{vRES+e}, v68\nv_dot2c_f32_bf16 v65, v{vRES+e}, v{vRES+e}")
    a(f"s_lshl_b32 s{T}, s{sI}, 13\ns_add_u32 s{T}, s{T}, {WS_ST}\ns_add_u32 s{T}, s{T}, s{sLB}\ns_lshl_b32 s{T+1}, s{sJ}, 10\ns_add_u32 s{T+1}, s{T+1}, s{T}")
    a(f"v_lshlrev_b32 v56, 4, v{vN}\nv_lshl_add_u32 v57, v{vC}, 10, v56")
    dpp_red8(a, [64, 65])
    a(f"v_cmp_eq_u32 vcc, 0, v{vC}\ns_and_saveexec_b64 s[{T+2}:{T+3}], vcc")
    rstore(a, f"buffer_store_dwordx4 v[64:67], v56, s[{S_WS}:{S_WS+3}], s{T+1} offen")
    a(f"s_mov_b64 exec, s[{T+2}:{T+3}]")
    stamp(a, "proj.st")
    a(f"v_subrev_u32 v59, {SVO}, v{vTRF}")
    for c in range(4):
        for x in frag_reads(f"v{W1T+4*c}", 59, c*8192): a(x)
    if not C.sent:
        for f in range(4):
            for x in w2_reads(f): a(x)
    unpack8(a, 80, vRES)
    a(f"v_lshrrev_b32 v58, 2, v{vC}\nv_lshlrev_b32 v58, 17, v58\nv_lshl_add_u32 v58, v{vN}, 6, v58\nv_and_b32 v60, 3, v{vC}\nv_lshl_add_u32 v58, v60, 4, v58")
    LP = a.label(); LD = a.label()
    a(f"s_mov_b32 s{T+2}, {SPIN}")
    a(f"{LP}:")
    a(f"buffer_load_dwordx4 v[68:71], v57, s[{S_WS}:{S_WS+3}], s{T} offen sc1")
    a("s_waitcnt vmcnt(0)\nv_and_b32 v72, v70, v71\nv_cmp_ne_u32 vcc, 1, v72")
    a(f"s_cbranch_vccz {LD}")
    a(f"s_sub_u32 s{T+2}, s{T+2}, 1\ns_cmp_lg_u32 s{T+2}, 0\ns_cbranch_scc1 {LP}")
    a(f"{LD}:")
    stamp(a, "proj.stat")
    if C.sent:
        for f in range(4):
            for x in w2_reads(f): a(x)
    dpp_red8(a, [68, 69])
    a(f"v_mul_f32 v68, {f2u(1/512)}, v68\nv_mul_f32 v69, {f2u(1/512)}, v69")
    a("v_fma_f32 v69, -v68, v68, v69\nv_max_f32 v69, 0, v69")
    a(f"v_add_f32 v70, {f2u(1e-5)}, v69\nv_rsq_f32 v70, v70\ns_nop 0")
    a(f"v_mul_f32 v71, v70, v70\nv_mul_f32 v71, v71, v69\nv_add_f32 v71, {f2u(1e-5)}, v71\nv_rsq_f32 v71, v71\ns_nop 0")
    a("v_mul_f32 v70, v70, v71\nv_mul_f32 v71, v68, v70\nv_sub_f32 v71, 0, v71")
    for e in range(8): a(f"v_fma_f32 v{80+e}, v{80+e}, v70, v71")
    for e in range(4): a(f"v_cvt_pk_bf16_f32 v{72+e}, v{80+2*e}, v{81+2*e}")
    a(f"s_lshl_b32 s{T}, s{sJ}, 18\ns_lshl_b32 s{T+1}, s{sI}, 12\ns_add_u32 s{T}, s{T}, s{T+1}\ns_add_u32 s{T}, s{T}, {WS_H}\ns_add_u32 s{T}, s{T}, s{sLB}")
    a(f"buffer_store_dwordx4 v[72:75], v58, s[{S_WS}:{S_WS+3}], s{T} offen sc1")
    stamp(a, "zc.hst")
    a("s_waitcnt lgkmcnt(0)")
    rest3 = [8, 9, 10, 11, 4, 5, 6, 7]
    assert n3[1] <= 4
    for f in rest3[:n3[1]]: w2_dma(a, f)
    a(f"s_waitcnt vmcnt({n3[1]})\ns_barrier")
    stamp(a, "proj.end")
    if_wave_eq(a, 0, lambda: publish(a, "H", sJ))
    if C.sent:
        L = a.label()
        a(f"s_cmp_lg_u32 s{sL}, 0\ns_cbranch_scc1 {L}\nv_mov_b32 v76, -1\nv_mov_b32 v77, -1\nv_mov_b32 v78, -1\nv_mov_b32 v79, -1")
        a(f"s_add_u32 s{T}, s{ost}, {LSTRIDE}\nbuffer_store_dwordx4 v[76:79], v{vL16}, s[{S_WS}:{S_WS+3}], s{T} offen sc1\n{L}:")
    for f in rest3[n3[1]:]: w2_dma(a, f)

EPO = 61440
W1T = 128

def flag_addr(a, kind, sd):
    a(f"s_lshl_b32 s{sd}, s{sJ}, 10\ns_add_u32 s{sd}, s{sd}, {FL[kind]*128}\ns_add_u32 s{sd}, s{sd}, s{sFL}")
    a(f"s_lshr_b32 s{T+1}, s{sI}, 2\ns_lshl_b32 s{T+1}, s{T+1}, 7\ns_add_u32 s{sd}, s{sd}, s{T+1}")

def apoll_issue(a, sd, v):
    a(f"s_mov_b64 exec, 1\nbuffer_load_dword v{v}, v{vL16}, s[{S_WS}:{S_WS+3}], s{sd} offen sc1\ns_mov_b64 exec, -1")

def apoll_check(a, sd, v, n):
    LP = a.label(); LD = a.label()
    a(f"s_mov_b64 exec, 1\ns_mov_b32 s{T+1}, {SPIN}\n{LP}:\nv_cmp_ne_u32 vcc, {n}, v{v}\ns_cbranch_vccz {LD}")
    a(f"buffer_load_dword v{v}, v{vL16}, s[{S_WS}:{S_WS+3}], s{sd} offen sc1\ns_waitcnt vmcnt(0)")
    a(f"s_sub_u32 s{T+1}, s{T+1}, 1\ns_cmp_lg_u32 s{T+1}, 0\ns_cbranch_scc1 {LP}\n{LD}:\ns_mov_b64 exec, -1")

def mlp(a):
    R = 4
    EP = STG
    ERA, UA, YA5, B1, YA4, C1, RA_, WA_, ADD = 21, 20, 22, 24, 28, 29, 30, 128, 136
    ACC, F, ET, PV_, B2 = 48, [80, 96], 112, 19, 18
    src4, dst, qb, src5, rot, ust, fa, fb, gc2, ewb = T+2, T+3, T+4, T+5, T+6, T+7, T+8, T+9, T+11, T+12
    a(f"v_lshlrev_b32 v{ERA}, 1, v{vN}\ns_lshl_b32 s{T}, s{sI}, 7")
    a(f"buffer_load_ushort v{B2}, v{ERA}, s[{S_B2}:{S_B2+3}], s{T} offen")
    a(f"s_lshr_b32 s{T}, s{sW}, 1\ns_and_b32 s{T+1}, s{sW}, 1\ns_lshl_b32 s{T+1}, s{T+1}, 11\ns_add_u32 s{T+1}, s{T+1}, s{sLB}")
    a(f"s_mul_i32 s{src5}, s{sJ}, {2*114688}\ns_mul_i32 s{dst}, s{T}, {28*1024}\ns_add_u32 s{src5}, s{src5}, s{dst}\ns_add_u32 s{src5}, s{src5}, s{T+1}\ns_add_u32 s{src5}, s{src5}, {WS_U}")
    a(f"s_lshl_b32 s{src4}, s{sJ}, 18\ns_lshl_b32 s{dst}, s{T}, 15\ns_add_u32 s{src4}, s{src4}, s{dst}\ns_add_u32 s{src4}, s{src4}, s{T+1}\ns_add_u32 s{src4}, s{src4}, {WS_H}")
    a(f"s_mul_i32 s{ust}, s{sJ}, {2*114688}\ns_lshl_b32 s{dst}, s{sI}, 12\ns_add_u32 s{ust}, s{ust}, s{dst}\ns_lshl_b32 s{dst}, s{T}, 9\ns_add_u32 s{ust}, s{ust}, s{dst}\ns_add_u32 s{ust}, s{ust}, s{T+1}\ns_add_u32 s{ust}, s{ust}, {WS_U}")
    a(f"s_lshl_b32 s{dst}, s{sW}, 11\ns_lshl_b32 s{T}, s{T}, 12")
    a(f"v_bfe_u32 v16, v{vL}, 3, 2\nv_lshlrev_b32 v{YA5}, 9, v16\nv_and_b32 v16, 3, v{vL}\nv_lshl_add_u32 v{YA5}, v16, 7, v{YA5}\nv_bfe_u32 v16, v{vL}, 2, 1\nv_lshl_add_u32 v{YA5}, v16, 6, v{YA5}")
    a(f"v_bfe_u32 v16, v{vL}, 1, 1\nv_bfe_u32 v17, v{vL}, 4, 1\nv_lshl_add_u32 v16, v17, 1, v16\nv_lshrrev_b32 v17, 5, v{vL}\nv_xor_b32 v16, v16, v17\nv_lshl_add_u32 v{YA5}, v16, 4, v{YA5}")
    a(f"v_add_u32 v{YA5}, s{T}, v{YA5}\nv_xor_b32 v{YA5+1}, 32, v{YA5}")
    a(f"s_sub_u32 s{T}, s{T}, s{sVW}\ns_sub_u32 s{T}, s{T}, {SVO}\nv_add_u32 v{YA4}, s{T}, v{vTRF}")
    a(f"s_and_b32 s{T}, s{sW}, 1\ns_lshl_b32 s{T}, s{T}, 11\nv_add_u32 v31, s{T}, v{YA4}")
    a(f"s_and_b32 s{rot}, s{sJ}, {C.jrot}\ns_lshl_b32 s{rot}, s{rot}, 12")
    qkv_base8(a, qb)
    flag_addr(a, "U", fa); flag_addr(a, "UB", fb)
    LS = a.label(); LM = a.label()
    a(f"s_cmp_ge_u32 s{sI}, 28\ns_cbranch_scc1 {LS}")
    vm = VM()
    a(f"s_and_b32 s{T}, s{sW}, 1\ns_lshr_b32 s{T+1}, s{sW}, 1")
    a(f"s_lshl_b32 s{ewb}, s{T}, 14\ns_add_u32 s{ewb}, s{ewb}, {EP}\ns_lshl_b32 s{T+10}, s{T+1}, 10\ns_add_u32 s{T+10}, s{T+10}, s{ewb}\nv_add_u32 v{ERA}, s{T+10}, v{vL16}")
    a(f"s_lshl_b32 s{T+10}, s{T+1}, 12\ns_add_u32 s{ewb}, s{ewb}, s{T+10}")
    a(f"s_lshl_b32 s{T}, s{T}, 6\ns_lshl_b32 s{T+10}, s{sI}, 7\ns_add_u32 s{T}, s{T}, s{T+10}\nv_lshlrev_b32 v16, 3, v{vC}")
    a(f"buffer_load_dwordx2 v[{B1+2}:{B1+3}], v16, s[{S_B1}:{S_B1+3}], s{T} offen")
    a(f"v_lshrrev_b32 v17, 5, v{vL}\ns_lshr_b32 s{T+1}, s{T+1}, 1\ns_lshl_b32 s{T+1}, s{T+1}, 1\nv_or_b32 v17, s{T+1}, v17\nv_lshlrev_b32 v17, 4, v17\nv_lshlrev_b32 v{UA}, 3, v{vL}\nv_xor_b32 v{UA}, v{UA}, v17")
    c1 = -2*0.7978845608028654*1.4426950408889634
    a(f"s_mov_b32 s{gc2}, {f2u(c1*0.044715)}\nv_mov_b32 v{C1}, {f2u(c1)}")
    if_wave_eq(a, 0, lambda: poll(a, "H", sJ, 32))
    a("s_barrier")
    stamp(a, "mlp1.polled"); stamp(a, "z3.poll")
    def act(p, s):
        if p == 4: a(f"s_add_u32 s{T}, s{rot}, {(s & 7)*4096}\ns_and_b32 s{T}, s{T}, 0x7fff\ns_add_u32 s{T}, s{T}, s{src4}\ns_add_u32 m0, s{dst}, {(s % R)*16384}" + (f"\ns_add_u32 s{T}, s{T}, 131072" if s >= 8 else "\ns_nop 0"))
        else: a(f"s_add_u32 m0, s{dst}, {(s % R)*16384}\ns_add_u32 s{T}, s{src5}, {(s//7)*114688 + (s % 7)*4096}")
        a(f"buffer_load_dwordx4 v{vL16}, s[{S_WS}:{S_WS+3}], s{T} offen sc1 lds\nbuffer_load_dwordx4 v{vL16}, s[{S_WS}:{S_WS+3}], s{T} offen offset:1024 sc1 lds")
        vm.add(("act", p, s), 2)
    def reads(p, s):
        out = []; o = (s % R)*16384
        for t in range(4):
            b = F[s & 1] + 4*t
            if p == 4: out += [f"ds_read_b64_tr_b16 v[{b}:{b+1}], v{YA4} offset:{o + t*1024}", f"ds_read_b64_tr_b16 v[{b+2}:{b+3}], v{YA4} offset:{o + t*1024 + 256}"]
            else: out.append(f"ds_read_b128 v[{b}:{b+3}], v{YA5 + (t & 1)} offset:{o + (t >> 1)*2048}")
        return out
    def mfmas(p, s):
        out = []
        n = 8 if p == 4 else 7
        y = s // n
        for t in range(4):
            f = 4*(s % n) + t
            if p == 4: X = f"a[{4*f}:{4*f+3}]" if f < 28 else f"v[{W1T+4*(f-28)}:{W1T+4*(f-28)+3}]"
            else: r = w2_reg(f); X = f"{r[0]}[{int(r[1:])}:{int(r[1:])+3}]"
            Y = f"v[{F[s & 1]+4*t}:{F[s & 1]+4*t+3}]"
            c = "0" if f == 0 else f"v[{ACC+16*y}:{ACC+16*y+15}]"
            A_, B_ = (Y, X) if p == 4 else (X, Y)
            out.append(f"v_mfma_f32_32x32x16_bf16 v[{ACC+16*y}:{ACC+16*y+15}], {A_}, {B_}, {c}")
        return out
    RW = 31
    def inring(f): return C.optx and 20 <= f < 24
    def wdma(fs):
        for f in fs:
            if inring(f):
                a(f"s_add_u32 m0, s{dst}, {((f-20) >> 1)*16384 + (f & 1)*1024}\ns_add_u32 s{T}, s{sW2S}, {f*16*4096}")
                a(f"buffer_load_dwordx4 v{vF2}, s[{S_W2}:{S_W2+3}], s{T} offen lds")
            else: w2_dma(a, f)
            vm.add(("w", f))
    def wr(fs): return [x for f in fs for x in (frag_reads(w2_reg(f), RW, ((f-20) >> 1)*16384 + (f & 1)*1024) if inring(f) else w2_reads(f))]
    def wread(fs):
        for x in wr(fs): a(x)
    def ep_w(y, rs=range(16)):
        o = [f"ds_write_addtid_b32 v{ACC+16*y+r} offset:{EPO + r*256}" for r in rs]
        o[0] = f"s_sub_u32 m0, s{ewb}, {EPO}\ns_nop 0\n" + o[0]
        return o
    def ep_r(): return [f"ds_read_b128 v[{ET+4*p}:{ET+4*p+3}], v{ERA} offset:{p*4096}" for p in range(4)]
    def ep_math():
        o = []
        for e in range(4): o += [f"v_add_f32 v{ET+e}, v{ET+e}, v{ET+4+e}", f"v_add_f32 v{ET+8+e}, v{ET+8+e}, v{ET+12+e}"]
        for e in range(4): o.append(f"v_add_f32 v{ET+e}, v{ET+e}, v{B1+e}")
        for e in range(4): o.append(f"v_add_f32 v{ET+e}, v{ET+e}, v{ET+8+e}")
        G = ET+4
        for e in range(4): o.append(f"v_mul_f32 v{G+e}, v{ET+e}, v{ET+e}")
        for e in range(4): o.append(f"v_fma_f32 v{G+e}, v{G+e}, s{gc2}, v{C1}")
        for e in range(4): o.append(f"v_mul_f32 v{G+e}, v{G+e}, v{ET+e}")
        for e in range(4): o.append(f"v_exp_f32 v{G+e}, v{G+e}")
        for e in range(4): o.append(f"v_add_f32 v{G+e}, 1.0, v{G+e}")
        for e in range(4): o.append(f"v_rcp_f32 v{G+e}, v{G+e}")
        for e in range(4): o.append(f"v_mul_f32 v{ET+e}, v{ET+e}, v{G+e}")
        o += [f"v_cvt_pk_bf16_f32 v{ET+8}, v{ET}, v{ET+1}", f"v_cvt_pk_bf16_f32 v{ET+9}, v{ET+2}, v{ET+3}"]
        return o
    def ep_store(y):
        if y: a(f"s_add_u32 s{ust}, s{ust}, 114688")
        a(f"buffer_store_dwordx2 v[{ET+8}:{ET+9}], v{UA}, s[{S_WS}:{S_WS+3}], s{ust} offen sc1")
        vm.add(("st", y))
    def body(m, lds, valu=()):
        lds = list(lds); valu = list(valu)
        nl = max(C.ldsper, -(-len(lds)//4)); nv = -(-len(valu)//4)
        for k in range(4):
            if k < len(m): a(m[k])
            for x in lds[k*nl:(k+1)*nl]: a(x)
            for x in valu[k*nv:(k+1)*nv]: a(x)
    for s in range(C.init): act(4, s)
    late = [int(c) for c in (C.schx if C.optx else C.schw)]
    assert sum(late) == 8 and len(late) == 6
    nxt = 12
    em = ep_math()
    deferred = []
    E_ = [int(c, 16) for c in C.eps]
    for s in range(16):
        tags = [("act", 4, s)] + ([("st", 0)] if s == C.pubs else [])
        a(f"s_waitcnt vmcnt({vm.need(*tags)}) lgkmcnt(0)\ns_barrier")
        if s not in (2, 3, 5, 6, 7): stamp(a, f"z4.{s:02d}")
        if s == 0: stamp(a, "mlp1.b0")
        if C.defer == 2 and s not in (E_[0], E_[1]):
            for k in deferred: act(4, k)
            deferred = []
        lds = reads(4, s); valu = []
        if s == 0: valu = [f"v_lshlrev_b32 v{B1}, 16, v{B1+2}", f"v_and_b32 v{B1+1}, 0xffff0000, v{B1+2}", f"v_lshlrev_b32 v{B1+2}, 16, v{B1+3}", f"v_and_b32 v{B1+3}, 0xffff0000, v{B1+3}"]
        if s == E_[0]: lds += ep_w(0, range(8))
        if s == E_[1]: lds += ep_w(0, range(8, 16))
        if s == E_[2]: lds += ep_r()
        if s == E_[3]: valu += em[:24]
        if s == E_[4]: valu += em[24:]
        if s == E_[5]: lds += wr(range(4, 8))
        if s == E_[6]: lds += wr(range(8, 12))
        body(mfmas(4, s-1) if s else [], lds, valu)
        if s == C.pubs:
            stamp(a, "mlp1.pubA")
            if_wave_eq(a, 0, lambda: publish(a, "U", sJ))
        if s == E_[4]: ep_store(0)
        if s == 0:
            for k in range(C.init, R): act(4, k)
        if s >= 1 and s - 1 + R < 16:
            deferred.append(s - 1 + R)
            if not (C.defer and s in (E_[0], E_[1])):
                for k in deferred: act(4, k)
                deferred = []
        if s >= 11:
            n = late[s-11]
            assert nxt + n <= 12 + 4*(s > E_[5]) + 4*(s > E_[6]) + 2*(s >= 13) + 2*(s >= 14)
            wdma(range(nxt, nxt + n)); nxt += n
    assert E_[0] >= 9 and E_[2] > E_[1] and E_[3] > E_[2] and E_[5] >= 10 and E_[6] >= 11
    a("s_waitcnt lgkmcnt(0)")
    for x in mfmas(4, 15): a(x)
    stamp(a, "mlp1.loop"); stamp(a, "z4.loop")
    a("s_nop 9")
    for x in ep_w(1): a(x)
    if C.pubs >= 16: a(f"s_waitcnt vmcnt({vm.need(('st', 0))})")
    a("s_waitcnt lgkmcnt(0)\ns_barrier")
    stamp(a, "z4.ep")
    for x in ep_r(): a(x)
    if C.pubs >= 16: if_wave_eq(a, 0, lambda: publish(a, "U", sJ))
    wdma(range(nxt, 20))
    if C.n1 == 0: apoll_issue(a, fa, PV_); vm.add("pa")
    a("s_waitcnt lgkmcnt(0)")
    for x in em: a(x)
    ep_store(1)
    stamp(a, "mlp1.st"); stamp(a, "z4.st")
    npre = 20 + C.n1 + C.n2
    if C.n1:
        a(f"s_waitcnt vmcnt({vm.need(('w', 15))})")
        wread(range(12, 16))
        a("s_waitcnt lgkmcnt(0)")
        apoll_issue(a, fa, PV_); vm.add("pa")
        wdma(range(20, 20 + C.n1))
        a(f"s_waitcnt vmcnt({vm.need('pa')})")
        wread(range(16, 20))
        a("s_barrier")
        stamp(a, "z4.xdrain")
        if_wave_eq(a, 0, lambda: publish(a, "UB", sJ))
        a("s_waitcnt lgkmcnt(0)")
        wdma(range(20 + C.n1, npre))
        first = 0
    else:
        a(f"s_waitcnt vmcnt({vm.need('pa')})")
        wread(range(12, 20))
        apoll_check(a, fa, PV_, 28)
        act(5, 0); act(5, 1)
        a(f"s_waitcnt vmcnt({vm.need(('st', 1))})\ns_barrier")
        stamp(a, "z4.xdrain")
        if_wave_eq(a, 0, lambda: publish(a, "UB", sJ))
        first = 2
    a(f"s_branch {LM}")
    a(f"{LS}:")
    a("s_waitcnt vmcnt(0)")
    wread(range(4, 12)); a("s_waitcnt lgkmcnt(0)")
    keep = vm.ops[:]
    wdma(range(12, 20))
    a("s_waitcnt vmcnt(0)")
    wread(range(12, 20)); a("s_waitcnt lgkmcnt(0)")
    wdma(range(20, npre))
    a(f"v_mov_b32 v{PV_}, 28\ns_waitcnt vmcnt(0)")
    if_wave_eq(a, 0, lambda: poll(a, "U", sJ, 28))
    a("s_barrier")
    for k in range(first): act(5, k)
    vm.ops = keep
    a(f"{LM}:")
    if first == 0: apoll_check(a, fa, PV_, 28)
    stamp(a, "mlp2.polled"); stamp(a, "z4.zpolled")
    for k in range(first, C.init5): act(5, k)
    ep2_read_addr(a, RA_, EP+16, E+32768, ewb, ET)
    sch = [int(c) for c in C.sch2]
    assert sum(sch) == 12
    extra = [5, 6, 7, 8, 9, 10, 11, 0, 1, 2, 3, 4]
    assert sum(sch[:5]) <= 7
    def point(p):
        for _ in range(sch[p]):
            k = extra.pop(0); qkv_piece8(a, qb, k); vm.add(("x", k))
    sb = C.sb
    na = max(first, C.init5); nw = npre
    for s in range(14):
        tags = [("act", 5, s)]
        if s == sb: tags.append("pb")
        if s == 5: tags.append(("w", 23))
        if s == 6: tags.append(("w", 27))
        a(f"s_waitcnt vmcnt({vm.need(*tags)}) lgkmcnt(0)\ns_barrier")
        if s not in (8, 9, 10): stamp(a, f"z5.{s:02d}")
        if s == 0: stamp(a, "mlp2.b0")
        lds = reads(5, s); valu = []
        if s == 0:
            for e in range(4): valu += [f"v_lshlrev_b32 v{ADD+2*e}, 16, v{vRES+e}", f"v_and_b32 v{ADD+1+2*e}, 0xffff0000, v{vRES+e}"]
            valu.append(f"v_lshlrev_b32 v{B2}, 16, v{B2}")
            for e in range(8): valu.append(f"v_add_f32 v{ADD+e}, v{ADD+e}, v{B2}")
        if s == 5: lds += wr(range(20, 24))
        if s == 6: lds += wr(range(24, 28))
        if s == C.wa5: lds += ep2_writes(ACC, EP+16, ewb)
        body(mfmas(5, s-1) if s else [], lds, valu)
        if s == sb:
            apoll_check(a, fb, PV_, 28)
            stamp(a, "mlp2.pollB")
        if s == C.pbi: apoll_issue(a, fb, PV_); vm.add("pb")
        lim = min(14, s + 4, 7 if s < sb else 14)
        want = min(lim, na + 1) if nw < 28 and not C.deep else lim
        want = max(want, min(lim, s + 3))
        while na < want: act(5, na); na += 1
        if nw < 28: wdma((nw, nw+1)); nw += 2
        if s == C.q5s and C.pret:
            a(f"buffer_load_dword v{ET+1}, v{vXO}, s[{S_XD}:{S_XD+3}], s{sXO} offen sc1")
            a(f"s_lshl_b32 s{T}, s{sI}, 3\ns_add_u32 s{T}, s{T}, s{sJ}\ns_lshl_b32 s{T}, s{T}, 9\ns_add_u32 s{T}, s{T}, {WS_ST2}\nv_lshlrev_b32 v{ET+2}, 3, v{vL}")
            a(f"buffer_load_dword v{ET+2}, v{ET+2}, s[{S_WS}:{S_WS+3}], s{T} offen sc1")
            vm.add("pre", 2)
        if s == C.q5s and C.q5:
            a(f"s_lshr_b32 s{T}, s2, 3\ns_lshl_b32 s{T}, s{T}, 3\ns_add_u32 s{T}, s{T}, s{sW}\ns_mul_i32 s{T}, s{T}, {6*1024}")
            if C.q5 == 1: a(f"s_add_u32 s{T}, s{T}, 384\nv_min_u32 v{ET}, 5, v{vL}\nv_lshlrev_b32 v{ET}, 10, v{ET}")
            else: a(f"v_min_u32 v{ET}, 47, v{vL}\nv_lshlrev_b32 v{ET}, 7, v{ET}")
            a(f"buffer_load_dword v{ET}, v{ET}, s[{S_QKV}:{S_QKV+3}], s{T} offen"); vm.add("q5")
    assert na == 14 and nw == 28
    a(f"s_waitcnt lgkmcnt({15 if C.wa5 == 13 else 0})")
    for x in mfmas(5, 13): a(x)
    stamp(a, "mlp2.loop")
    a("s_nop 9")
    OUT = 80
    for x in ep2_writes(ACC+16, E+32768, ewb): a(x)
    point(0); point(1); point(2)
    a("s_waitcnt lgkmcnt(0)\ns_barrier")
    ep2_sum(a, RA_, ADD, OUT)
    point(3)
    for e in range(4): a(f"v_cvt_pk_bf16_f32 v{vRES+e}, v{OUT+2*e}, v{OUT+1+2*e}")
    rstore(a, f"buffer_store_dwordx4 v[{vRES}:{vRES+3}], v{vXO}, s[{S_XD}:{S_XD+3}], s{sXO} offen", bulk=True)
    stamp(a, "mlp2.st")
    a(f"s_cmp_lg_u32 s{sL}, 0\ns_cbranch_scc1 L_fin")
    a("v_mov_b32 v64, 0\nv_mov_b32 v65, 0\nv_mov_b32 v68, 0x3f803f80")
    for e in range(4): a(f"v_dot2c_f32_bf16 v64, v{vRES+e}, v68\nv_dot2c_f32_bf16 v65, v{vRES+e}, v{vRES+e}")
    a(f"s_lshl_b32 s{T}, s{sI}, 3\ns_add_u32 s{T}, s{T}, s{sJ}\ns_lshl_b32 s{T}, s{T}, 9\ns_add_u32 s{T}, s{T}, {WS_ST2}\nv_lshlrev_b32 v66, 3, v{vN}")
    dpp_red8(a, [64, 65])
    a(f"v_cmp_eq_u32 vcc, 0, v{vC}\ns_and_saveexec_b64 s[{T+10}:{T+11}], vcc")
    rstore(a, f"buffer_store_dwordx2 v[64:65], v66, s[{S_WS}:{S_WS+3}], s{T} offen", bulk=True)
    a(f"s_mov_b64 exec, s[{T+10}:{T+11}]")
    point(4)
    a(f"s_waitcnt vmcnt({sch[4]})\ns_barrier")
    stamp(a, "mlp2.end")
    if_wave_eq(a, 0, lambda: publish(a, "X", sI))
    point(5)

def main(out):
    a = Asm()
    K = NAME + "_kernel"
    a.L.append(f".globl {K}\n.p2align 8\n.type {K},@function\n{K}:")
    prologue(a)
    if C.qtouch:
        L1 = a.label(); L2 = a.label(); L3 = a.label()
        a(f"v_lshlrev_b32 v40, 7, v{vL}\nv_min_u32 v41, 47, v{vL}\ns_cmp_eq_u32 s{sW}, {0 if C.qtouch == 1 else 9}\ns_cbranch_scc1 {L1}\ns_cmp_eq_u32 s{sW}, {1 if C.qtouch == 1 else 0}\ns_cbranch_scc1 {L2}\ns_cmp_lg_u32 s{sW}, {2 if C.qtouch == 1 else 1}\ns_cbranch_scc1 {L3}")
        a(f"s_lshr_b32 s{T}, s2, 3\ns_mul_i32 s{T}, s{T}, {48*1024}\ns_add_u32 s{T}, s{T}, 384\nv_lshlrev_b32 v41, 10, v41")
        a(f"buffer_load_dword v143, v41, s[{S_QKV}:{S_QKV+3}], s{T} offen\ns_branch {L3}")
        a(f"{L1}:\ns_lshl_b32 s{T}, s{sI}, 3\ns_add_u32 s{T}, s{T}, s{sJ}\ns_lshl_b32 s{T}, s{T}, 13")
        a(f"buffer_load_dword v143, v40, s[{S_XS}:{S_XS+3}], s{T} offen\ns_branch {L3}")
        a(f"{L2}:\ns_mul_i32 s{T}, s2, {48*128}\nv_lshlrev_b32 v41, 7, v41")
        a(f"buffer_load_dword v143, v41, s[{S_QKV}:{S_QKV+3}], s{T} offen")
        a(f"{L3}:")
    if C.cpf:
        Lc = a.label()
        a(f"s_cmp_lg_u32 s{sW}, 2\ns_cbranch_scc1 {Lc}")
        a(f"s_getpc_b64 s[{T+2}:{T+3}]\ns_and_b32 s{T+2}, s{T+2}, 0xffffff00\ns_lshr_b32 s{T}, s2, 3\ns_lshl_b32 s{T}, s{T}, 10\nv_and_b32 v41, 7, v{vL}\nv_lshlrev_b32 v41, 7, v41\nv_add_u32 v41, s{T}, v41")
        a(f"v_min_u32 v41, CODE_SPAN, v41\nglobal_load_dword v143, v41, s[{T+2}:{T+3}]\n{Lc}:")
    if C.qtouch == 1:
        prologue2(a)
        a("s_barrier")
        x_dma(a, fl="nt" if C.xnt else "")
    else:
        x_dma(a, fl="nt" if C.xnt else "")
        prologue2(a)
    a(f"buffer_load_dwordx4 v[{vRES}:{vRES+3}], v{vXO}, s[{S_XS}:{S_XS+3}], s{sXO} offen")
    a(f"s_cmp_lt_u32 s{sW}, 4\ns_cbranch_scc1 L_p1_cons")
    layer0_helpers(a)
    a("L_layer:")
    ool = phase1(a)
    phase2(a)
    phase3(a)
    mlp(a)
    a(f"s_mov_b32 s{S_XS}, s{S_XD}\ns_mov_b32 s{S_XS+1}, s{S_XD+1}\ns_mov_b32 s{S_XD}, s{sOUT}\ns_mov_b32 s{S_XD+1}, s{sOUT+1}")
    a(f"s_mov_b32 s{sL}, 1\ns_mov_b32 s{sLB}, {LSTRIDE}")
    if C.stamp: a("v_mov_b32 v7, v6")
    a("s_branch L_layer")
    a("L_fin:")
    if C.stamp:
        a("s_waitcnt vmcnt(0)")
        stamp(a, "fin")
        a(f"s_lshl_b32 s{T}, s2, 3\ns_add_u32 s{T}, s{T}, s{sW}\ns_lshl_b32 s{T}, s{T}, 9\ns_add_u32 s{T}, s{T}, {WS_STAMP}\nv_lshlrev_b32 v16, 2, v{vL}")
        a(f"buffer_store_dword v7, v16, s[{S_WS}:{S_WS+3}], s{T} offen\nbuffer_store_dword v6, v16, s[{S_WS}:{S_WS+3}], s{T} offen offset:256")
    a("L_end:\ns_endpgm")
    softmax_safe(a)
    for x in ool: a(x)
    s = HDR + "; @launch grid=(256,1,1) block=(512,1,1) lds=163840\n"
    s += '.amdgcn_target "amdgcn-amd-amdhsa--gfx950"\n.text\n' + a.text().replace("CODE_SPAN", str(C.span))
    s += f""".section .rodata,"a"
.p2align 6
.amdhsa_kernel {K}
  .amdhsa_next_free_vgpr 256
  .amdhsa_next_free_sgpr 102
  .amdhsa_accum_offset {NARCH}
  .amdhsa_group_segment_fixed_size 0
  .amdhsa_kernarg_size 88
  .amdhsa_user_sgpr_count 2
  .amdhsa_user_sgpr_kernarg_segment_ptr 1
  .amdhsa_system_sgpr_workgroup_id_x 1
.end_amdhsa_kernel
"""
    open(out, "w").write(s)
    if C.stamp: open(out + ".stamps", "w").write("\n".join(STAMPS))

if __name__ == "__main__":
    for arg in sys.argv[2:]:
        k, v = arg.split("="); setattr(C, k, v if isinstance(getattr(C, k), str) else type(getattr(C, k))(int(v)))
    main(sys.argv[1])
```

```python
import sys, struct
NAME = "interleave_layers__softmax_full_mha__mixer_token_mlp__prompt"
HDR = open("cdna_kernels/%s.s.ref" % NAME).read().split("; Override launch")[0]
MB = 1 << 20
WS_KV, WS_O, WS_H, WS_U, WS_X2, WS_ST = 0*MB, 4*MB, 6*MB, 8*MB, 10*MB, 12*MB
LSTRIDE = 16*MB
WS_FLAG = 32*MB
WS_XT = WS_FLAG + 131072
WS_STAMP = 40*MB
KA = dict(x=0, wqkv=8, wo=16, w1=32, b1=40, w2=48, b2=56, out=64, dbg=72, ws=80)
SZ = dict(x=2048*512*2, wqkv=512*1536*2, wo=512*512*2, w1=2048*1792*2, b1=1792*2, w2=1792*2048*2, b2=2048*2,
          out=2048*512*2, dbg=256, ws=1 << 28)
FL = dict(KV=0, H=64, U=128, O=192, X=224, UB=256, KL=320)
COLK = ('KV', 'H', 'U', 'UB')
SPIN = 200000
NARCH = 144

class Cfg:
    stamp = False
    prio = True
    lowtiles = 1
    D = 3
    nB = 12
    sch1 = '033343'
    sch2 = '003045'
    sch3 = '426'
    stouch = 0
    p1touch = 0
    now1 = 0
    local = 1
    schw = '002222'
    eps = '99abbbc'
    wlast = 1
    defer = 0
    optx = 0
    n1 = 0
    n2 = 0
    deep = 1
    wa5 = 13
    xp = 2
    early = 6
    q5 = 1
    q5s = 10
    lf = 1
    lfi = 1
    lfc = 2
    c3 = 1
    pub12 = 1
    w1nt = 0
    w2nt = 0
    xrot = 1
    xnt = 0
    lateinit = 1
    arrs = 4
    dbgs = 9
    sent = 1
    ldo = 1
    preto = 1
    sentwait = 1
    fixed = 1
    lprio = 0
    wo1 = 12
    w1mask = 7
    w1e = -2
    schx = '01434'
    pbi = 2
    sb = 4
    init5 = 4
    schv = '22220'
    pubs = 14
    pbs = 3
    init = 4
    pae = 1
    order = 1
    ldsper = 3
    epa = 0
    t2 = 28
    sonly = ''
    tmix = 1
    cpf = 0
    span = 30720
    ldata = 0
    pret = 0
    prett = 24
    hs1 = '022111122000'
    hs0 = '222222220000'
    h0first = 4
    h0second = 4
    w1t = 9
    p1per = 4
    qtouch = 2
    pper = 16
    plow = 3
    split = 1
    kvfix = 0
    xsel = 'wot'
    nofirst = 0
    tlb = 0
    lowhalf = 3
    jrot = 6
    nox = 0
    notr = 0
    loop = 0
    pad = 0
    align = 3
    nQ = 12
C = Cfg()

class Asm:
    def __init__(self): self.L = []; self.n = 0
    def __call__(self, s):
        for line in s.split("\n"):
            line = line.strip()
            if line: self.L.append(("" if line.endswith(":") else "    ") + line)
    def label(self, p="L"):
        self.n += 1; return f"{p}{self.n}"
    def text(self): return "\n".join(self.L) + "\n"

def f2u(x): return hex(struct.unpack("<I", struct.pack("<f", x))[0])

S_XS, S_QKV, S_WS, S_WO, S_W1, S_W2, S_B1, S_B2, S_XD, S_DBG, S_KV = 8, 12, 16, 20, 24, 28, 32, 36, 40, 44, 80
sI, sJ, sW, sL, sLB, sFL = 48, 49, 50, 51, 52, 53
sW2S = 54
sVW = 55
sLOC = 56
sXO = 57
sOUT = 58
T = 60
sST = 76
sRET = 84
vL, vN, vC, vL16, vXO = 1, 2, 3, 4, 5
vRES = 8
vF2, vTRF, vWQ = 12, 13, 14
TV = 16
E, V = 0, 65536
QX = V + 11*8192
SVO = 32768
STG = V

STAMPS = []
def stamp(a, name):
    if not C.stamp: return
    if C.sonly:
        if not (name == "start" or any(name.startswith(p) for p in C.sonly.split(","))): return
    elif name.startswith("z"): return
    k = len(STAMPS); assert k < 32
    a(f"s_memtime s[{sST}:{sST+1}]\ns_memrealtime s[{sST+2}:{sST+3}]\ns_waitcnt lgkmcnt(0)")
    a(f"v_writelane_b32 v6, s{sST}, {k}\nv_writelane_b32 v6, s{sST+2}, {k+32}")
    STAMPS.append(name)

def dpp_red8(a, regs):
    for pat in ("quad_perm:[1,0,3,2]", "quad_perm:[2,3,0,1]", "row_half_mirror"):
        a("s_nop 1")
        for r in regs: a(f"v_add_f32_dpp v{r}, v{r}, v{r} {pat} row_mask:0xf bank_mask:0xf")

def tr_addr(a, vd, xh, perm, t0, t1):
    a(f"v_lshrrev_b32 v{t0}, 5, v{vL}\nv_lshlrev_b32 v{t0}, {2 if perm else 3}, v{t0}")
    a(f"v_bfe_u32 v{t1}, v{vL}, 2, 2\nv_add_u32 v{t0}, v{t0}, v{t1}\nv_lshlrev_b32 v{vd}, 7, v{t0}")
    a(f"v_lshrrev_b32 v{t1}, 1, v{t1}\nv_xor_b32 v{t1}, {xh}, v{t1}\nv_lshl_add_u32 v{vd}, v{t1}, 6, v{vd}")
    a(f"v_bfe_u32 v{t1}, v{vL}, 4, 1\nv_lshl_add_u32 v{vd}, v{t1}, 5, v{vd}")
    a(f"v_and_b32 v{t1}, 3, v{vL}\nv_lshl_add_u32 v{vd}, v{t1}, 3, v{vd}")

def interleave(a, m, r):
    per = -(-len(r)//len(m))
    for x in range(len(m)):
        a(m[x])
        for y in r[x*per:(x+1)*per]: a(y)

def rstore(a, instr, bulk=False):
    if not C.local or (bulk and not C.ldata):
        a(instr + " sc1"); return
    L = a.label(); L2 = a.label()
    a(f"s_cmp_eq_u32 s{sLOC}, 1\ns_cbranch_scc1 {L}\n{instr} sc1\ns_branch {L2}\n{L}:\n{instr}\n{L2}:")

def publish(a, kind, group_s, tv=None):
    if kind not in COLK:
        a(f"s_lshl_b32 s{T}, s{group_s}, 7\ns_add_u32 s{T}, s{T}, {FL[kind]*128}\ns_add_u32 s{T}, s{T}, s{sFL}\ns_lshl_b32 s{T+1}, s{sJ}, 4\ns_add_u32 s{T}, s{T}, s{T+1}")
        a(f"v_mov_b32 v{TV}, 1\ns_mov_b64 exec, 1")
        rstore(a, f"buffer_store_dword v{TV}, v{vL16}, s[{S_WS}:{S_WS+3}], s{T} offen")
        a("s_mov_b64 exec, -1")
        return
    col = kind in COLK
    a(f"s_lshl_b32 s{T}, s{group_s}, {10 if col else 7}\ns_add_u32 s{T}, s{T}, {FL[kind]*128}\ns_add_u32 s{T}, s{T}, s{sFL}")
    a(f"v_mov_b32 v{TV}, 1\nv_lshlrev_b32 v{TV+1}, 7, v{vL}\ns_mov_b64 exec, {0xff if col else 1}")
    a(f"buffer_atomic_add v{TV}, v{TV+1}, s[{S_WS}:{S_WS+3}], s{T} offen sc1")
    a("s_mov_b64 exec, -1")

def poll(a, kind, group_s, n):
    col = kind in COLK
    a(f"s_lshl_b32 s{T}, s{group_s}, {10 if col else 7}\ns_add_u32 s{T}, s{T}, {FL[kind]*128}\ns_add_u32 s{T}, s{T}, s{sFL}")
    if col: a(f"s_lshr_b32 s{T+1}, s{sI}, 2\ns_lshl_b32 s{T+1}, s{T+1}, 7\ns_add_u32 s{T}, s{T}, s{T+1}")
    a(f"s_mov_b64 exec, {1 if col else 0xff}\ns_mov_b32 s{T+1}, {SPIN}")
    LP = a.label(); LD = a.label()
    a(f"{LP}:")
    a(f"buffer_load_dword v{TV}, v{vL16}, s[{S_WS}:{S_WS+3}], s{T} offen sc1")
    a(f"s_waitcnt vmcnt(0)\nv_cmp_ne_u32 vcc, {n if col else 1}, v{TV}")
    a(f"s_cbranch_vccz {LD}")
    a(f"s_sub_u32 s{T+1}, s{T+1}, 1\ns_cmp_lg_u32 s{T+1}, 0\ns_cbranch_scc1 {LP}")
    a(f"{LD}:\ns_mov_b64 exec, -1")

def kl_addr(a):
    a(f"s_lshr_b32 s{T}, s{sI}, 2\ns_lshl_b32 s{T}, s{T}, 3\ns_add_u32 s{T}, s{T}, s{sJ}\ns_lshl_b32 s{T}, s{T}, 7\ns_add_u32 s{T}, s{T}, {FL['KL']*128}\ns_add_u32 s{T}, s{T}, s{sFL}")

def kl_publish(a):
    kl_addr(a)
    a(f"s_and_b32 s{T+1}, s{sI}, 3\ns_lshl_b32 s{T+1}, s{T+1}, 4\ns_add_u32 s{T}, s{T}, s{T+1}\nv_mov_b32 v{TV+3}, 1\ns_mov_b64 exec, 1")
    rstore(a, f"buffer_store_dword v{TV+3}, v{vL16}, s[{S_WS}:{S_WS+3}], s{T} offen")
    a("s_mov_b64 exec, -1")

def kl_poll(a):
    kl_addr(a)
    a(f"s_mov_b64 exec, 15\ns_mov_b32 s{T+1}, {SPIN}")
    LP = a.label(); LD = a.label()
    a(f"{LP}:\nbuffer_load_dword v{TV}, v{vL16}, s[{S_WS}:{S_WS+3}], s{T} offen sc1\ns_waitcnt vmcnt(0)\nv_cmp_ne_u32 vcc, 1, v{TV}\ns_cbranch_vccz {LD}")
    a(f"s_sub_u32 s{T+1}, s{T+1}, 1\ns_cmp_lg_u32 s{T+1}, 0\ns_cbranch_scc1 {LP}\n{LD}:\ns_mov_b64 exec, -1")

def if_wave_eq(a, w, body):
    L = a.label()
    a(f"s_cmp_lg_u32 s{sW}, {w}\ns_cbranch_scc1 {L}")
    body()
    a(f"{L}:")

def qkv_src(u): return (u >> 1)*64*3072 + (1 + (u & 1))*1024 if u < 16 else (u-16)*64*3072

def qkv_base8(a, s):
    a(f"s_mul_i32 s{s}, s{sW}, {8*3072}\ns_lshl_b32 s{T}, s{sJ}, 7\ns_add_u32 s{s}, s{s}, s{T}")

def qkv_piece8(a, s, u):
    a(f"s_add_u32 m0, s{sVW}, {(u % 12)*8192}\ns_add_u32 s{T}, s{s}, {qkv_src(u)}")
    a(f"buffer_load_dwordx4 v{vWQ}, s[{S_QKV}:{S_QKV+3}], s{T} offen lds")

def w2_dma(a, f):
    a(f"s_add_u32 m0, s{sVW}, {SVO + ((f+4) % 8)*8192}\ns_add_u32 s{T}, s{sW2S}, {f*16*4096}")
    a(f"buffer_load_dwordx4 v{vF2}, s[{S_W2}:{S_W2+3}], s{T} offen lds")

def frag_reads(dst, vaddr, off):
    p, n = dst[0], int(dst[1:])
    return [f"ds_read_b64_tr_b16 {p}[{n}:{n+1}], v{vaddr} offset:{off}", f"ds_read_b64_tr_b16 {p}[{n+2}:{n+3}], v{vaddr} offset:{off+256}"]

W2V = 32
def w2_reg(f): return f"v{W2V+4*f}" if f < 4 else f"a{4*(f-4)}"
def w2_reads(f): return frag_reads(w2_reg(f), vTRF, ((f+4) % 8)*8192)

def prologue(a):
    a(f"s_cmp_ge_u32 s2, 256\ns_cbranch_scc1 L_end")
    for s, n in ((S_XS, "x"), (S_QKV, "wqkv"), (S_WS, "ws"), (S_WO, "wo"), (S_W1, "w1"), (S_W2, "w2"), (S_B1, "b1"), (S_B2, "b2"), (S_DBG, "dbg")):
        a(f"s_load_dwordx2 s[{s}:{s+1}], s[0:1], {KA[n]}")
        a(f"s_mov_b32 s{s+2}, {hex(SZ[n])}\ns_mov_b32 s{s+3}, 0x00020000")
    a(f"s_load_dwordx2 s[{sOUT}:{sOUT+1}], s[0:1], {KA['out']}")
    a(f"s_mov_b32 s{S_XD+2}, {hex(SZ['x'])}\ns_mov_b32 s{S_XD+3}, 0x00020000")
    a(f"s_and_b32 s{sI}, s2, 7\ns_lshl_b32 s{sI}, s{sI}, 2\ns_bfe_u32 s{T}, s2, 0x20003\ns_or_b32 s{sI}, s{sI}, s{T}\ns_lshr_b32 s{sJ}, s2, 5")
    a(f"v_lshrrev_b32 v{vL}, 6, v0\ns_nop 0\nv_readfirstlane_b32 s{sW}, v{vL}\nv_and_b32 v{vL}, 63, v0")
    a(f"v_lshrrev_b32 v{vN}, 3, v0\nv_and_b32 v{vC}, 7, v0\nv_lshlrev_b32 v{vL16}, 4, v{vL}")
    a(f"s_lshl_b32 s{sXO}, s{sI}, 16\ns_lshl_b32 s{T}, s{sJ}, 7\ns_add_u32 s{sXO}, s{sXO}, s{T}")
    a(f"s_mov_b32 s{sLOC}, 0\ns_mov_b32 s{sL}, 0\ns_mov_b32 s{sLB}, 0\ns_mov_b32 s{sFL}, {WS_FLAG}")
    if C.stamp: a("v_mov_b32 v6, 0\nv_mov_b32 v7, 0")
    a(f"v_lshrrev_b32 v40, 3, v{vL}\nv_bfe_u32 v41, v{vL}, 4, 1\nv_lshlrev_b32 v41, 2, v41\nv_and_b32 v42, 7, v{vL}\nv_xor_b32 v41, v41, v42\nv_lshlrev_b32 v41, 4, v41")
    a(f"v_mul_u32_u24 v{vWQ}, 3072, v40\nv_add_u32 v{vWQ}, v{vWQ}, v41")
    a(f"s_lshl_b32 s{sVW}, s{sW}, 10\ns_add_u32 s{sVW}, s{sVW}, {V}")
    a(f"s_lshl_b32 s{T}, s{sJ}, {3 if C.xrot else 6}\nv_add_u32 v42, s{T}, v{vN}\nv_and_b32 v42, 63, v42")
    a(f"v_bfe_u32 v41, v42, 1, 3\nv_xor_b32 v41, v41, v{vC}\nv_lshlrev_b32 v41, 4, v41\nv_lshl_add_u32 v{vXD}, v42, 10, v41")
    a(f"v_bfe_u32 v41, v{vN}, 1, 1\nv_bfe_u32 v42, v{vN}, 2, 1\nv_and_b32 v{vN}, 0x39, v{vN}\nv_lshl_add_u32 v{vN}, v41, 2, v{vN}\nv_lshl_add_u32 v{vN}, v42, 1, v{vN}")
    a(f"v_lshlrev_b32 v{vXO}, 10, v{vN}\nv_lshl_add_u32 v{vXO}, v{vC}, 4, v{vXO}")
    a("s_waitcnt lgkmcnt(0)")
    stamp(a, "start")
    a(f"s_add_u32 s{S_XD}, s{S_WS}, {WS_X2}\ns_addc_u32 s{S_XD+1}, s{S_WS+1}, 0")

def prologue2(a):
    a(f"v_lshrrev_b32 v42, 2, v{vL}\nv_and_b32 v43, 3, v{vL}\nv_lshlrev_b32 v43, 4, v43")
    a(f"v_lshl_add_u32 v{vF2}, v42, 12, v43")
    a(f"v_lshrrev_b32 v42, 5, v{vL}\nv_lshlrev_b32 v42, 3, v42\nv_bfe_u32 v43, v{vL}, 2, 2\nv_add_u32 v42, v42, v43\nv_lshlrev_b32 v{vTRF}, 6, v42")
    a(f"v_bfe_u32 v43, v{vL}, 4, 1\nv_lshl_add_u32 v{vTRF}, v43, 5, v{vTRF}\nv_and_b32 v43, 3, v{vL}\nv_lshl_add_u32 v{vTRF}, v43, 3, v{vTRF}")
    a(f"v_add_u32 v{vTRF}, s{sVW}, v{vTRF}\nv_add_u32 v{vTRF}, {SVO}, v{vTRF}")
    a(f"s_lshr_b32 s{sW2S}, s{sW}, 1\ns_mul_i32 s{sW2S}, s{sW2S}, {448*4096}\ns_lshl_b32 s{T}, s{sI}, 7\ns_add_u32 s{sW2S}, s{sW2S}, s{T}")
    a(f"s_and_b32 s{T}, s{sW}, 1\ns_lshl_b32 s{T}, s{T}, 6\ns_add_u32 s{sW2S}, s{sW2S}, s{T}")

def tlb_touch(a):
    if not C.tlb: return
    a(f"s_sub_u32 s{T+4}, s{sW}, 4\ns_lshl_b32 s{T}, s{T+4}, 21")
    for k in range(4): a(f"s_add_u32 s{T+1}, s{T}, {(k & 1)*8*MB + (k >> 1)*LSTRIDE}\ns_buffer_load_dword s86, s[{S_WS}:{S_WS+3}], s{T+1}")
    for srd in (S_W1, S_W2): a(f"s_buffer_load_dword s86, s[{srd}:{srd+3}], s{T}")
    a(f"s_lshl_b32 s{T}, s{T+4}, 19\ns_load_dword s86, s[{sOUT}:{sOUT+1}], s{T}")
    a(f"s_buffer_load_dword s86, s[{S_WO}:{S_WO+3}], 0\ns_buffer_load_dword s86, s[{S_B1}:{S_B1+3}], 0\ns_buffer_load_dword s86, s[{S_B2}:{S_B2+3}], 0")

def init_sync(a, w=3):
    def body():
        a("v_mov_b32 v44, 0\nv_mov_b32 v45, 0\nv_mov_b32 v46, 0\nv_mov_b32 v47, 0")
        a(f"s_lshl_b32 s{T}, s2, 10\ns_add_u32 s{T}, s{T}, {WS_ST}\ns_add_u32 s{T+1}, s{T}, {LSTRIDE}")
        a(f"buffer_store_dwordx4 v[44:47], v{vL16}, s[{S_WS}:{S_WS+3}], s{T} offen sc1")
        a(f"buffer_store_dwordx4 v[44:47], v{vL16}, s[{S_WS}:{S_WS+3}], s{T+1} offen sc1")
        a(f"s_lshl_b32 s{T}, s2, 9\ns_add_u32 s{T}, s{T}, {WS_FLAG}\ns_mov_b32 exec_hi, 0")
        a(f"buffer_store_dwordx4 v[44:47], v{vL16}, s[{S_WS}:{S_WS+3}], s{T} offen sc1")
        if C.sent:
            a(f"s_mov_b64 exec, -1\nv_mov_b32 v100, -1\nv_mov_b32 v101, -1\nv_mov_b32 v102, -1\nv_mov_b32 v103, -1\ns_lshl_b32 s{T}, s2, 13\ns_add_u32 s{T}, s{T}, {WS_O}\ns_add_u32 s{T+1}, s{T}, 4096")
            for k in range(8): a(f"buffer_store_dwordx4 v[100:103], v{vL16}, s[{S_WS}:{S_WS+3}], s{T + (k >> 2)} offen offset:{(k & 3)*1024} sc1")
        a(f"s_getreg_b32 s{T+1}, hwreg(HW_REG_XCC_ID, 0, 4)\ns_mov_b64 exec, 1\nv_mov_b32 v48, s{T+1}")
        a(f"s_lshl_b32 s{T}, s{sI}, 3\ns_add_u32 s{T}, s{T}, s{sJ}\ns_lshl_b32 s{T}, s{T}, 4\ns_add_u32 s{T}, s{T}, {WS_XT}")
        a(f"buffer_store_dword v48, v{vL16}, s[{S_WS}:{S_WS+3}], s{T} offen sc1")
        a("s_mov_b64 exec, -1")
    if_wave_eq(a, w, body)

def init_arrive(a, w=3, pre="s_nop 0", tv=TV):
    L = a.label()
    a(f"s_cmp_lg_u32 s{sW}, {w}\ns_cbranch_scc1 {L}\n{pre}")
    a(f"v_mov_b32 v{tv}, 1\nv_mov_b32 v{tv+1}, 0\ns_and_b32 s{T}, s2, 63\ns_lshl_b32 s{T}, s{T}, 2\ns_mov_b64 exec, 1")
    a(f"buffer_atomic_add v{tv}, v{tv+1}, s[{S_DBG}:{S_DBG+3}], s{T} offen sc1")
    a(f"s_mov_b64 exec, -1\n{L}:")

def wait_init(a, vaddr):
    a(f"s_mov_b32 s{T+1}, {SPIN}")
    LP = a.label(); LD = a.label()
    a(f"{LP}:\nv_cmp_gt_u32 vcc, 4, v{TV+2}\ns_cbranch_vccz {LD}")
    a(f"buffer_load_dword v{TV+2}, v{vaddr}, s[{S_DBG}:{S_DBG+3}], 0 offen sc1\ns_waitcnt vmcnt(0)")
    a(f"s_sub_u32 s{T+1}, s{T+1}, 1\ns_cmp_lg_u32 s{T+1}, 0\ns_cbranch_scc1 {LP}")
    a(f"{LD}:\ns_mov_b64 exec, -1")

class VM:
    def __init__(self): self.ops = []
    def add(self, tag, n=1): self.ops += [tag]*n
    def need(self, *tags):
        last = max(k for k, t in enumerate(self.ops) if t in tags)
        return min(63, len(self.ops) - 1 - last)

vXD = 15
TAB = V
WS_ST2 = 12*MB + 512*1024
WS_CS = 13*MB

def x_dma(a, qs=range(8), fl="sc1"):
    a(f"s_lshl_b32 s{T}, s{sI}, 16\n" + (f"s_add_u32 s{T+1}, s{sW}, s{sJ}\ns_and_b32 s{T+1}, s{T+1}, 7\ns_lshl_b32 s{T+1}, s{T+1}, 10" if C.xrot else f"s_lshl_b32 s{T+1}, s{sW}, 10"))
    for q in qs:
        a(f"s_add_u32 m0, s{T+1}, {E + q*8192 - q*128}\ns_nop 0" if q else f"s_mov_b32 m0, s{T+1}\ns_nop 0")
        a(f"buffer_load_dwordx4 v{vXD}, s[{S_XS}:{S_XS+3}], s{T} offen offset:{128*q} {fl} lds")

def split_hi_lo(a, src, hi2, lo2, t, neg=False):
    if neg: a(f"v_sub_f32 v{src}, 0, v{src}")
    a(f"v_cvt_pk_bf16_f32 v{t}, v{src}, v{src}\nv_and_b32 v{t}, 0xffff0000, v{t}\nv_sub_f32 v{t+1}, v{src}, v{t}")

def own_stats(a, D, A, MUo, Ro, ADo):
    a(f"s_add_u32 s{T}, s{sW}, s{sJ}\ns_and_b32 s{T}, s{T}, 7" if C.xrot else f"s_mov_b32 s{T}, s{sW}")
    a(f"s_lshl_b32 s{T+1}, s{T}, 10\nv_add_u32 v{ADo}, s{T+1}, v{vL16}")
    for q in range(8): a(f"ds_read_b128 v[{D+4*q}:{D+4*q+3}], v{ADo} offset:{q*8192}")
    for r in range(4): a(f"v_mov_b32 v{A+r}, 0")
    a(f"v_mov_b32 v{A+4}, 0x3f803f80\ns_lshl_b32 s{T}, s{T}, 5\ns_add_u32 s{T}, s{T}, {TAB}\nv_lshrrev_b32 v{ADo}, 3, v{vL}\nv_lshlrev_b32 v{ADo}, 2, v{ADo}\nv_add_u32 v{ADo}, s{T}, v{ADo}")
    for q in range(8):
        a(f"s_waitcnt lgkmcnt({7-q})")
        for e in (0, 2):
            r = D+4*q+e
            a(f"v_dot2c_f32_bf16 v{A}, v{r}, v{A+4}\nv_dot2c_f32_bf16 v{A+2}, v{r}, v{r}\nv_dot2c_f32_bf16 v{A+1}, v{r+1}, v{A+4}\nv_dot2c_f32_bf16 v{A+3}, v{r+1}, v{r+1}")
    a(f"s_nop 2\nv_add_f32 v{MUo}, v{A}, v{A+1}\nv_add_f32 v{Ro}, v{A+2}, v{A+3}")
    dpp_red8(a, [MUo, Ro])
    a(f"v_mul_f32 v{MUo}, {f2u(1/512)}, v{MUo}\nv_mul_f32 v{Ro}, {f2u(1/512)}, v{Ro}")
    a(f"v_fma_f32 v{Ro}, -v{MUo}, v{MUo}, v{Ro}\nv_max_f32 v{Ro}, 0, v{Ro}\nv_add_f32 v{Ro}, {f2u(1e-5)}, v{Ro}\nv_rsq_f32 v{Ro}, v{Ro}")

def layer0_helpers(a):
    LJ = "L_p1_join"; LB = a.label()
    a(f"s_cmp_ge_u32 s{sW}, 6\ns_cbranch_scc1 {LB}")
    src, dst = T+2, T+3
    a(f"s_sub_u32 s{dst}, s{sW}, 4\ns_mul_i32 s{src}, s{dst}, {32*3072}\ns_lshl_b32 s{T}, s{sJ}, 7\ns_add_u32 s{src}, s{src}, s{T}")
    a(f"s_lshl_b32 s{dst}, s{dst}, 12\ns_add_u32 s{dst}, s{dst}, {V}")
    vm = VM()
    def unit(u):
        for p in range(4):
            a(f"s_add_u32 m0, s{dst}, {(u % 12)*8192 + p*1024}\ns_add_u32 s{T}, s{src}, {qkv_src(u) + p*8*3072}")
            a(f"buffer_load_dwordx4 v{vWQ}, s[{S_QKV}:{S_QKV+3}], s{T} offen lds")
        vm.add(("w", u), 4)
    for u in range(C.h0first): unit(u)
    a(f"s_waitcnt vmcnt({4*C.h0first})")
    own_stats(a, 48, 80, 42, 44, 40)
    issued = C.h0first
    for u in range(C.h0second): unit(issued); issued += 1
    sched = [int(c) for c in C.hs0]
    for s in range(12):
        a(f"s_waitcnt vmcnt({vm.need(('w', 2*s+1))})" + (" lgkmcnt(0)" if s == 8 else "") + "\ns_barrier")
        if s == 7: a("ds_write_b32 v40, v42\nds_write_b32 v40, v44 offset:256")
        for _ in range(sched[s]):
            assert issued < 2*s + 12 and issued < 24
            unit(issued); issued += 1
        assert s == 11 or issued >= 2*s + 4
    assert issued == 24
    a(f"s_barrier\ns_branch {LJ}")
    a(f"{LB}:")
    init_sync(a, 7)
    L4 = a.label()
    a(f"s_waitcnt vmcnt({12 if C.sent else 4})\ns_cmp_eq_u32 s{sW}, 7\ns_cbranch_scc1 {L4}\ns_waitcnt vmcnt(0)\n{L4}:")
    def w1touch(mask):
        a(f"s_lshl_b32 s{T}, s2, 1\ns_add_u32 s{T}, s{T}, s{sW}\ns_sub_u32 s{T}, s{T}, 6\ns_mul_i32 s{T+1}, s{T}, {112*128}\nv_min_u32 v49, 55, v{vL}\nv_lshlrev_b32 v49, 7, v49")
        if mask & 1: a(f"buffer_load_dword v141, v49, s[{S_W1}:{S_W1+3}], s{T+1} offen")
        if mask & 2: a(f"s_add_u32 s{T+1}, s{T+1}, {56*128}\nbuffer_load_dword v142, v49, s[{S_W1}:{S_W1+3}], s{T+1} offen")
        if mask & 4: a(f"s_lshl_b32 s{T+1}, s{T}, 10\nv_and_b32 v49, 0x380, v49\nbuffer_load_dword v143, v49, s[{S_WO}:{S_WO+3}], s{T+1} offen")
    if C.w1e == -1: w1touch(7 & ~C.w1mask)
    own_stats(a, 52, 84, 42, 43, 40)
    for s in range(12):
        if s == 8: a("s_waitcnt lgkmcnt(0)")
        a("s_barrier")
        if s == 7: a("ds_write_b32 v40, v42\nds_write_b32 v40, v43 offset:256")
        if s == C.arrs: init_arrive(a, 7, pre="s_waitcnt vmcnt(0)")
        if s == C.dbgs: a(f"v_lshlrev_b32 v41, 2, v{vL}\nbuffer_load_dword v{TV+2}, v41, s[{S_DBG}:{S_DBG+3}], 0 offen sc1")
        if s == C.w1t: w1touch(C.w1mask)
        if s == C.w1e: w1touch(7 & ~C.w1mask)
    assert C.w1t >= C.dbgs and C.w1e < C.dbgs
    a(f"s_waitcnt vmcnt({bin(C.w1mask).count('1') if C.w1t < 12 else 0})")
    if_wave_eq(a, 6, lambda: wait_init(a, 41))
    a("s_barrier")
    def pub():
        if C.lf: kl_publish(a)
        publish(a, "KV", sJ)
    if_wave_eq(a, 6, pub)
    a(f"s_branch {LJ}")

def helper_setup(a):
    src, dst = T+2, T+3
    a(f"s_sub_u32 s{dst}, s{sW}, 4\ns_mul_i32 s{src}, s{dst}, {16*3072}\ns_lshl_b32 s{T}, s{sJ}, 7\ns_add_u32 s{src}, s{src}, s{T}")
    a(f"s_lshl_b32 s{T}, s{dst}, 4\nv_lshrrev_b32 v40, 2, v{vL}\nv_add_u32 v40, s{T}, v40")
    a(f"s_lshl_b32 s{dst}, s{dst}, 11\ns_add_u32 s{dst}, s{dst}, {V}")

def helper_unit(a, u, vm):
    for p in range(2):
        a(f"s_add_u32 m0, s{T+3}, {(u % 12)*8192 + p*1024}\ns_add_u32 s{T}, s{T+2}, {qkv_src(u) + p*8*3072}")
        a(f"buffer_load_dwordx4 v{vWQ}, s[{S_QKV}:{S_QKV+3}], s{T} offen lds")
    vm.add(("w", u), 2)

def helper_loop(a, layer, vm, issued, sched, LJ):
    ROW, S1, S2, G = 40, 42, 44, 48
    first = issued
    for s in range(12):
        tags = [t for t in [("x", s), ("w", 2*s+1)] if t in vm.ops]
        if s == 6 and layer == 1: tags.append("g")
        if tags: a(f"s_waitcnt vmcnt({vm.need(*tags)})")
        if s == 8: a("s_waitcnt lgkmcnt(0)")
        a("s_barrier")
        if s == 7: a(f"ds_write_b32 v{ROW}, v{S1}\nds_write_b32 v{ROW}, v{S2} offset:256")
        for _ in range(sched[s]):
            assert issued < 2*s + 12 and issued < 24
            helper_unit(a, issued, vm); issued += 1
        assert s == 11 or issued >= 2*s + 4
        if s == 6:
            if layer == 1: a(f"v_add_f32 v{S1}, v{G}, v{G+2}\nv_add_f32 v{S2}, v{G+1}, v{G+3}")
            for pat in ("quad_perm:[1,0,3,2]", "quad_perm:[2,3,0,1]"):
                a("s_nop 1")
                for r in (S1, S2): a(f"v_add_f32_dpp v{r}, v{r}, v{r} {pat} row_mask:0xf bank_mask:0xf")
            a(f"v_mul_f32 v{S1}, {f2u(1/512)}, v{S1}\nv_mul_f32 v{S2}, {f2u(1/512)}, v{S2}")
            a(f"v_fma_f32 v{S2}, -v{S1}, v{S1}, v{S2}\nv_max_f32 v{S2}, 0, v{S2}\nv_add_f32 v{S2}, {f2u(1e-5)}, v{S2}\nv_rsq_f32 v{S2}, v{S2}")
            a(f"v_lshlrev_b32 v{ROW}, 2, v{ROW}\nv_add_u32 v{ROW}, {TAB}, v{ROW}")
        if s == 8 and layer == 0:
            a(f"v_lshlrev_b32 v46, 2, v{vL}\nbuffer_load_dword v{TV+2}, v46, s[{S_DBG}:{S_DBG+3}], 0 offen sc1"); vm.add("dbg")
        if s == C.w1t and layer == 0:
            a(f"s_lshl_b32 s{T}, s2, 2\ns_add_u32 s{T}, s{T}, s{sW}\ns_sub_u32 s{T}, s{T}, 4\ns_mul_i32 s{T+1}, s{T}, {56*128}\nv_min_u32 v47, 55, v{vL}\nv_lshlrev_b32 v47, 7, v47")
            a(f"buffer_load_dword v142, v47, s[{S_W1}:{S_W1+3}], s{T+1} offen")
            a(f"s_lshl_b32 s{T+1}, s{T}, 9\nv_and_b32 v47, 0x180, v47\nbuffer_load_dword v143, v47, s[{S_WO}:{S_WO+3}], s{T+1} offen")
            vm.add("t", 2)
    assert issued == 24
    if layer == 0: a(f"s_waitcnt vmcnt({vm.need('dbg')})")
    def w4():
        if layer == 0: wait_init(a, 46)
        if C.lf: kl_publish(a)
        publish(a, "KV", sJ)
    if C.pub12:
        if layer == 0: if_wave_eq(a, 4, lambda: wait_init(a, 46))
        a("s_barrier")
        def w4b():
            if C.lf: kl_publish(a)
            publish(a, "KV", sJ)
        if_wave_eq(a, 4, w4b)
    else:
        if_wave_eq(a, 4, w4)
        a("s_barrier")
    a(f"s_branch {LJ}")

def x_start(a):
    a(f"s_mov_b32 s{sFL}, {WS_FLAG + 512*128}\ns_barrier")
    stamp(a, "p1.polled")
    if C.xp < 8:
        x_dma(a, range(C.xp)); a("s_barrier"); x_dma(a, range(C.xp, 8))
    else: x_dma(a)

def phase1(a):
    LC = "L_p1_cons"; LJ = "L_p1_join"
    a(f"s_cmp_lt_u32 s{sW}, 4\ns_cbranch_scc1 {LC}")
    helper_setup(a)
    a(f"v_and_b32 v41, 3, v{vL}\nv_lshlrev_b32 v41, 9, v41\nv_lshl_add_u32 v41, v40, 3, v41")
    keep = C.stamp; C.stamp = False; x_start(a); C.stamp = keep
    a(f"s_lshl_b32 s{T}, s{sI}, 12\ns_add_u32 s{T}, s{T}, {WS_ST2}")
    a(f"buffer_load_dwordx2 v[48:49], v41, s[{S_WS}:{S_WS+3}], s{T} offen sc1\nbuffer_load_dwordx2 v[50:51], v41, s[{S_WS}:{S_WS+3}], s{T} offen offset:2048 sc1")
    vm = VM()
    for q in range(8): vm.add(("x", q))
    vm.add("g", 2)
    helper_loop(a, 1, vm, 12, [int(c) for c in C.hs1], LJ)
    a(f"{LC}:")
    tt, ch = T+2, T+3
    a(f"s_and_b32 s{tt}, s{sW}, 1\ns_lshr_b32 s{ch}, s{sW}, 1")
    XA = 40
    a(f"v_and_b32 v44, 31, v{vL}\ns_lshl_b32 s{T}, s{tt}, 5\nv_add_u32 v44, s{T}, v44\nv_lshlrev_b32 v38, 2, v44\nv_add_u32 v38, {TAB}, v38")
    a(f"v_bfe_u32 v45, v{vL}, 1, 3\nv_lshrrev_b32 v46, 5, v{vL}\nv_xor_b32 v45, v45, v46\nv_lshlrev_b32 v45, 4, v45\nv_lshl_add_u32 v{XA}, v44, 7, v45")
    for m in range(1, 4): a(f"v_xor_b32 v{XA+m}, {32*m}, v{XA}")
    a(f"s_lshl_b32 s{T}, s{tt}, 7\ns_add_u32 s{T}, s{T}, {TAB+256}\nv_lshlrev_b32 v37, 4, v46\nv_add_u32 v37, s{T}, v37")
    WL, WH = 44, 45
    tr_addr(a, WL, f"s{ch}", False, 46, 47)
    a(f"v_add_u32 v{WL}, {V}, v{WL}\nv_add_u32 v{WH}, {6*8192}, v{WL}")
    AK, AV, AQ = 48, 64, 80
    CS, SEL = 24, 32
    SIX = 21
    a(f"v_lshrrev_b32 v46, 4, v{vL}\nv_xor_b32 v46, v46, v{vL}\nv_and_b32 v46, 2, v46\nv_and_b32 v47, 12, v{vL}\nv_or_b32 v46, v46, v47\nv_mov_b32 v47, 0x3f803f80")
    a(f"v_cmp_eq_u32 vcc, 0, v46\ns_nop 1\nv_cndmask_b32 v{SEL}, 0, v47, vcc\nv_cmp_eq_u32 vcc, 4, v46\nv_mov_b32 v{SEL+1}, v{SEL}\ns_nop 0\nv_cndmask_b32 v{SEL+2}, 0, v47, vcc\nv_mov_b32 v{SEL+3}, v{SEL+2}")
    a(f"v_and_b32 v46, 1, v{vL}\nv_mul_u32_u24 v46, 0xaaaa, v46\nv_or_b32 v{SIX}, 0x4444, v46\nv_lshl_add_u32 v{SIX}, v{SIX}, 16, v{SIX}")
    csoff = T+8
    a(f"s_lshl_b32 s{csoff}, s2, 2\ns_add_u32 s{csoff}, s{csoff}, s{sW}\ns_lshl_b32 s{csoff}, s{csoff}, 10\ns_add_u32 s{csoff}, s{csoff}, {WS_CS}")
    for r in range(8): a(f"v_mov_b32 v{CS+r}, 0")
    def fr(buf, n):
        if buf == 0: return ("a", n)
        return ("a", 64+n) if n < 48 else ("v", 96 + n - 48)
    def R(buf, n, w):
        p, b = fr(buf, n); return f"{p}[{b}:{b+w-1}]"
    def wslot(u):
        s = u % 12
        return (WL, s*8192) if s < 6 else (WH, (s-6)*8192)
    def rd(s):
        buf = s & 1; out = []
        if s < 8:
            for t in range(4):
                out.append(f"ds_read_b128 {R(buf, 12*t, 4)}, v{XA+t} offset:{8192*s}")
                for seg in range(2):
                    va, off = wslot(2*s+seg)
                    for e in range(2):
                        out.append(f"ds_read_b64_tr_b16 {R(buf, 12*t+4+4*seg+2*e, 2)}, v{va} offset:{off + t*2048 + e*512}")
        else:
            for t in range(8):
                out.append(f"ds_read_b128 {R(buf, 16*(t>>1)+4*(t&1), 4)}, v{XA+(t&3)} offset:{16384*(s-8) + (t>>2)*8192}")
                va, off = wslot(2*s + (t >> 2))
                for e in range(2):
                    out.append(f"ds_read_b64_tr_b16 {R(buf, 16*(t>>1)+8+4*(t&1)+2*e, 2)}, v{va} offset:{off + (t&3)*2048 + e*512}")
        return out
    def mf(s):
        buf = s & 1; out = []
        if s < 8:
            for t in range(4):
                z = s == 0 and t == 0
                out.append(f"v_mfma_f32_32x32x16_bf16 v[{AK}:{AK+15}], {R(buf, 12*t+4, 4)}, {R(buf, 12*t, 4)}, " + ("0" if z else f"v[{AK}:{AK+15}]"))
                out.append(f"v_mfma_f32_32x32x16_bf16 v[{AV}:{AV+15}], {R(buf, 12*t, 4)}, {R(buf, 12*t+8, 4)}, " + ("0" if z else f"v[{AV}:{AV+15}]"))
        else:
            for t in range(8):
                out.append(f"v_mfma_f32_32x32x16_bf16 v[{AQ}:{AQ+15}], {R(buf, 16*(t>>1)+8+4*(t&1), 4)}, {R(buf, 16*(t>>1)+4*(t&1), 4)}, " + ("0" if s == 8 and t == 0 else f"v[{AQ}:{AQ+15}]"))
        return out
    OOL = []
    def csum(s):
        buf = s & 1
        L = a.label("Lcs"); LR = a.label("Lcr")
        a(f"s_cbranch_vccnz {L}\n{LR}:")
        o = [f"{L}:"]
        if s < 8:
            for t in range(4): o.append(f"v_smfmac_f32_16x16x64_bf16 v[{CS}:{CS+3}], v[{SEL}:{SEL+3}], {R(buf, 12*t+4, 8)}, v{SIX}")
            if s == 6: o += ["ds_write_b32 v126, v124", "ds_write_b32 v126, v125 offset:256"]
            if s == 7: o += ["s_nop 7", f"v_add_f32 v{ST4}, v{CS}, v{CS+1}", f"v_add_f32 v{ST4+1}, v{CS+2}, v{CS+3}"]
        else:
            for p in range(4): o.append(f"v_smfmac_f32_16x16x64_bf16 v[{CS+4}:{CS+7}], v[{SEL}:{SEL+3}], {R(buf, 16*p+8, 8)}, v{SIX}")
            if s == 11: o += ["s_nop 7", f"v_add_f32 v{CS+4}, v{CS+4}, v{CS+5}", f"v_add_f32 v{CS+6}, v{CS+6}, v{CS+7}", f"v_add_f32 v{ST4+2}, v{CS+4}, v{CS+6}"]
        o.append(f"s_branch {LR}")
        OOL.append("\n".join(o))
    ST4 = 16
    def inter(m, r, per):
        per = max(per, -(-len(r)//len(m)))
        for x in range(len(m)):
            a(m[x])
            for y in r[x*per:(x+1)*per]: a(y)
    a(f"s_lshl_b32 s{T+4}, s{sI}, 1\ns_add_u32 s{T+4}, s{T+4}, s{tt}")
    a(f"s_lshl_b32 s{T+5}, s{sJ}, 2\ns_lshl_b32 s{T+6}, s{ch}, 1\ns_add_u32 s{T+5}, s{T+5}, s{T+6}")
    a(f"s_lshl_b32 s{T+5}, s{T+5}, 6\ns_add_u32 s{T+5}, s{T+5}, s{T+4}")
    a(f"s_lshl_b32 s{T+4}, s{T+5}, 11\ns_add_u32 s{T+4}, s{T+4}, s{sLB}\ns_add_u32 s{T+5}, s{T+4}, 131072")
    assert WS_KV == 0
    a(f"v_and_b32 v46, 0x33, v{vL}\nv_bfe_u32 v47, v{vL}, 2, 1\nv_lshl_add_u32 v46, v47, 3, v46\nv_bfe_u32 v47, v{vL}, 3, 1\nv_lshl_add_u32 v46, v47, 2, v46\nv_lshlrev_b32 v46, 4, v46")
    a(f"v_bfe_u32 v39, v{vL}, 4, 1\nv_lshlrev_b32 v47, 17, v39\nv_lshrrev_b32 v39, 5, v{vL}\nv_lshl_add_u32 v47, v39, 8, v47\nv_and_b32 v39, 15, v{vL}\nv_lshl_add_u32 v47, v39, 4, v47")
    Lx = a.label()
    a(f"s_cmp_eq_u32 s{sL}, 0\ns_cbranch_scc1 L_p1_stats0")
    if_wave_eq(a, 0, lambda: poll(a, "X", sI, 8))
    x_start(a)
    a(f"{Lx}:")
    b = Asm(); b.n = 91000
    b("L_p1_stats0:\ns_waitcnt vmcnt(0)")
    stamp(b, "p1.xarr")
    own_stats(b, 48, 116, 124, 125, 126)
    b(f"s_branch {Lx}")
    OOL.append("\n".join(b.L))
    a(f"buffer_load_dwordx4 v[{ST4}:{ST4+3}], v{vL16}, s[{S_WS}:{S_WS+3}], s{csoff} offen sc1")
    a("s_waitcnt vmcnt(8)\ns_barrier")
    stamp(a, "p1.b0")
    for x in rd(0): a(x)
    P, RB, MU, RR = 112, 128, 36, 39
    def aug_w(seg, d):
        return [f"v_cvt_pk_bf16_f32 v{d}, v{ST4+seg}, v{ST4+seg}", f"v_and_b32 v{d+1}, 0xffff0000, v{d}", f"v_sub_f32 v{d+1}, v{ST4+seg}, v{d+1}", f"v_cvt_pk_bf16_f32 v{d+1}, v{d+1}, v{d+1}"]
    XM = 22
    a(f"s_cmp_eq_u32 s{sL}, 0\ns_cselect_b64 vcc, -1, 0")
    def waitbar(s):
        vmw = f"vmcnt({7-s}) " if s < 7 else ("vmcnt(0) " if s == 7 or (s == 10 and not C.pub12) else "")
        a(f"s_waitcnt {vmw}lgkmcnt(0)\ns_barrier")
        stamp(a, f"zq.{s+1:02d}")
    waitbar(0)
    for s in range(12):
        m = mf(s)
        r = rd(s+1) if s < 11 else []
        csum(s)
        if s == 7:
            tab = [f"ds_read_b32 v{MU}, v38", f"ds_read_b32 v{RR}, v38 offset:256"] + [f"ds_read_b128 v[{RB+4*k}:{RB+4*k+3}], v37 offset:{32*k}" for k in range(4)]
            mk = m[0::2]; mv = m[1::2]
            aw = aug_w(0, 24) + aug_w(1, 26)
            xm = [f"v_sub_f32 v{MU}, 0, v{MU}", f"v_cvt_pk_bf16_f32 v{XM}, v{MU}, v{MU}", f"v_and_b32 v{XM+1}, 0xffff0000, v{XM}", f"v_sub_f32 v{XM+1}, v{MU}, v{XM+1}", f"v_cvt_pk_bf16_f32 v{XM}, v{MU}, v{XM+1}", f"v_mov_b32 v{XM+1}, v{XM}"]
            a(mk[0]); [a(x) for x in tab]
            a(mk[1]); [a(x) for x in aw[:4] + r[:3]]
            a(mk[2]); [a(x) for x in aw[4:] + r[3:6]]
            a(mk[3]); a("s_waitcnt lgkmcnt(10)"); [a(x) for x in xm]
            a(mv[0]); [a(x) for x in r[6:9]]
            a(f"v_mfma_f32_32x32x8_bf16 v[{AK}:{AK+15}], v[24:25], v[{XM}:{XM+1}], v[{AK}:{AK+15}]"); [a(x) for x in r[9:14]]
            a(mv[1]); [a(x) for x in r[14:19]]
            a(mv[2]); [a(x) for x in r[19:24]]
            a(mv[3])
            for k in range(10): a(f"v_mul_f32 v{AK+k}, v{AK+k}, v{RR}")
            a(f"v_mfma_f32_32x32x8_bf16 v[{AV}:{AV+15}], v[{XM}:{XM+1}], v[26:27], v[{AV}:{AV+15}]")
            for k in range(10, 16): a(f"v_mul_f32 v{AK+k}, v{AK+k}, v{RR}")
            for k in range(8): a(f"v_cvt_pk_bf16_f32 v{P+k}, v{AK+2*k}, v{AK+2*k+1}")
            a(f"buffer_store_dwordx4 v[{P}:{P+3}], v46, s[{S_WS}:{S_WS+3}], s{T+4} offen sc1")
            a(f"buffer_store_dwordx4 v[{P+4}:{P+7}], v46, s[{S_WS}:{S_WS+3}], s{T+5} offen sc1")
            a("s_waitcnt lgkmcnt(15)")
            for k in range(16): a(f"v_mul_f32 v{AV+k}, v{AV+k}, v{RB+k}")
            for k in range(8): a(f"v_cvt_pk_bf16_f32 v{P+8+k}, v{AV+2*k}, v{AV+2*k+1}")
            a(f"buffer_store_dwordx4 v[{P+8}:{P+11}], v47, s[{S_WS}:{S_WS+3}], s{T+4} offen offset:1024 sc1")
            a(f"buffer_store_dwordx4 v[{P+12}:{P+15}], v47, s[{S_WS}:{S_WS+3}], s{T+4} offen offset:1536 sc1")
            stamp(a, "p1.kvst")
            waitbar(8)
        elif s < 11:
            e = C.early
            per = -(-len(r)//min(e, 5))
            for x in range(8):
                a(m[x])
                for y in r[x*per:(x+1)*per]: a(y)
                if x == e: waitbar(s+1) if s < 10 else a("s_waitcnt vmcnt(0) lgkmcnt(0)\ns_barrier")
        else:
            aw = aug_w(2, 24)
            a(m[0])
            a(f"s_lshl_b32 s{T+6}, s{ch}, 12\ns_lshl_b32 s{T+7}, s{tt}, 10\ns_add_u32 s{T+6}, s{T+6}, s{T+7}\ns_add_u32 s{T+6}, s{T+6}, {QX}\nv_add_u32 v46, s{T+6}, v{vL16}")
            a(m[1]); [a(x) for x in aw]
            a(f"v_mul_f32 v{RR}, {f2u(0.25*1.4426950408889634)}, v{RR}")
            for x in m[2:]: a(x)
    stamp(a, "p1.mfma")
    a("s_nop 9")
    a(f"v_mfma_f32_32x32x8_bf16 v[{AQ}:{AQ+15}], v[24:25], v[{XM}:{XM+1}], v[{AQ}:{AQ+15}]")
    a(f"buffer_store_dwordx4 v[{ST4}:{ST4+3}], v{vL16}, s[{S_WS}:{S_WS+3}], s{csoff} offen sc1")
    a("s_nop 10")
    for r in range(16): a(f"v_mul_f32 v{AQ+r}, v{AQ+r}, v{RR}")
    for r in range(8): a(f"v_cvt_pk_bf16_f32 v{P+r}, v{AQ+2*r}, v{AQ+2*r+1}")
    a(f"ds_write_b128 v46, v[{P}:{P+3}]\nds_write_b128 v46, v[{P+4}:{P+7}] offset:2048")
    a(f"{LJ}:")
    return OOL

hh, kh, head, kvs, w1s, w1c, wos, tch, ring, kro, kfa = T+2, T+3, T+4, T+5, T+6, T+7, T+8, T+9, T+10, T+11, T+12
TD, VA_, IDX, TA, vF1, vWO, SGA, Q, S, O, KR, VR = 16, 18, 19, 20, 21, 22, 23, 24, [32, 48], [80, 64], 96, 112
ost, osrc, cgive, ctake = 88, 90, 92, 93
CST = E + 33792
CMB = E + 37888

def wo_reads():
    o = []
    for t in range(8):
        for y in range(2):
            b = 80 + 8*t + 4*y
            o += [f"ds_read_b64_tr_b16 v[{b}:{b+1}], v{20+2*y} offset:{t*2048}", f"ds_read_b64_tr_b16 v[{b+2}:{b+3}], v{20+2*y} offset:{t*2048+1024}"]
    return o

def phase2(a):
    t0, t1 = S[0], S[0]+1
    a(f"s_and_b32 s{hh}, s{sW}, 3\ns_lshr_b32 s{kh}, s{sW}, 2\ns_lshl_b32 s{head}, s{sJ}, 2\ns_add_u32 s{head}, s{head}, s{hh}")
    a(f"s_lshl_b32 s{kvs}, s{head}, 17\ns_lshl_b32 s{T}, s{kh}, 11\ns_add_u32 s{kvs}, s{kvs}, s{T}\ns_add_u32 s{kvs}, s{kvs}, s{sLB}")
    a(f"s_lshr_b32 s{kro}, s{sI}, 2\ns_lshl_b32 s{kro}, s{kro}, 14")
    a(f"s_lshl_b32 s{ring}, s{sW}, 12")
    Lk = a.label()
    a(f"s_cmp_lt_u32 s{sW}, 4\ns_cbranch_scc1 {Lk}")
    a(f"v_and_b32 v{t0}, 3, v{vL}\nv_cmp_eq_u32 vcc, 1, v{t0}\nv_mov_b32 v{t1}, 0x3f803f80\ns_nop 0\nv_cndmask_b32 v{t0+4}, 0, v{t1}, vcc")
    a(f"v_mov_b32 v{t0+5}, v{t0+4}\nv_mov_b32 v{t0+6}, v{t0+4}\nv_mov_b32 v{t0+7}, v{t0+4}")
    a(f"s_lshl_b32 s{T}, s{sW}, 10\ns_add_u32 s{T}, s{T}, {CST - 4096}\nv_add_u32 v{t0}, s{T}, v{vL16}\nds_write_b128 v{t0}, v[{t0+4}:{t0+7}]")
    if C.lf: if_wave_eq(a, 5, lambda: kl_poll(a))
    else: if_wave_eq(a, 5, lambda: poll(a, "KV", sJ, 32))
    a(f"{Lk}:")
    def post_setup():
        a(f"v_lshrrev_b32 v{t0}, 5, v{vL}\nv_lshlrev_b32 v{VA_}, 8, v{t0}\nv_and_b32 v{t0}, 15, v{vL}\nv_lshl_add_u32 v{VA_}, v{t0}, 4, v{VA_}\nv_add_u32 v{VA_}, s{ring}, v{VA_}\nv_add_u32 v{VA_}, 1024, v{VA_}")
        a(f"v_add_u32 v{t1}, 4, v{t0}\nv_and_b32 v{t1}, 8, v{t1}\nv_lshlrev_b32 v{t1}, 3, v{t1}\nv_add_u32 v{t1}, {CST}, v{t1}")
        a(f"v_and_b32 v{t0}, 11, v{vL}\nv_cmp_eq_u32 vcc, 0, v{t0}\nv_add_u32 v{t0}, 16, v{t1}\ns_nop 0\nv_cndmask_b32 v{t1}, v{t1}, v{t0}, vcc")
        a(f"v_and_b32 v{t0}, 16, v{vL}\nv_cmp_eq_u32 vcc, 0, v{t0}\ns_nop 1\nv_cndmask_b32 v{VA_}, v{t1}, v{VA_}, vcc")
        a(f"v_mov_b32 v{IDX}, 0xdddddddd")
        for r in range(32): a(f"v_mov_b32 v{64+r}, 0")
        if C.now1: a(f"s_mov_b32 s{S_W1+2}, 0")
        a(f"s_cmp_lg_u32 s{sL}, 0\ns_cselect_b32 s{S_QKV+2}, 0, s{S_QKV+2}")
        a(f"s_lshr_b32 s{w1s}, s{sW}, 1\ns_mul_i32 s{w1s}, s{w1s}, {512*3584}\ns_lshl_b32 s{T}, s{sI}, 7\ns_add_u32 s{w1s}, s{w1s}, s{T}")
        a(f"s_and_b32 s{T+1}, s{sW}, 1\ns_lshl_b32 s{T+1}, s{T+1}, 6\ns_add_u32 s{w1s}, s{w1s}, s{T+1}\ns_sub_u32 s{w1s}, s{w1s}, {16*3584}")
        if C.tmix:
            a(f"s_lshl_b32 s{tch}, s{sJ}, 2\ns_and_b32 s{T+1}, s{sI}, 3\ns_add_u32 s{tch}, s{tch}, s{T+1}\ns_lshl_b32 s{tch}, s{tch}, 3\ns_add_u32 s{tch}, s{tch}, s{sW}\ns_mul_i32 s{tch}, s{tch}, {7*4096}")
            a(f"s_lshr_b32 s{T+1}, s{sI}, 2\ns_lshl_b32 s{T+1}, s{T+1}, 9\ns_add_u32 s{tch}, s{tch}, s{T+1}")
            a(f"v_lshrrev_b32 v{TA}, 2, v{vL}\nv_lshlrev_b32 v{TA}, 12, v{TA}\nv_and_b32 v{t1}, 3, v{vL}\nv_lshl_add_u32 v{TA}, v{t1}, 7, v{TA}")
        else:
            a(f"s_lshl_b32 s{tch}, s{sJ}, 3\ns_add_u32 s{tch}, s{tch}, s{sW}\ns_mul_i32 s{tch}, s{tch}, {28*4096}\ns_add_u32 s{tch}, s{tch}, s{T}")
            a(f"v_lshlrev_b32 v{TA}, 12, v{vL}")
        a(f"v_cmp_gt_u32 vcc, 28, v{vL}\nv_mov_b32 v{t1}, 0x40000000\ns_nop 0\nv_cndmask_b32 v{TA}, v{t1}, v{TA}, vcc")
        a(f"s_lshl_b32 s{wos}, s{sW}, 13\ns_lshl_b32 s{T}, s{sJ}, 7\ns_add_u32 s{wos}, s{wos}, s{T}")
        a(f"s_lshl_b32 s{T}, s{hh}, 11\ns_add_u32 s{T}, s{T}, {QX}\nv_add_u32 v{t1}, s{T}, v{vL16}\nv_subrev_u32 v{SGA}, {SVO}, v{vTRF}")
        a(f"v_lshrrev_b32 v{t0+2}, 2, v{vL}\nv_and_b32 v{t0+3}, 3, v{vL}\nv_lshlrev_b32 v{t0+3}, 4, v{t0+3}\nv_mul_u32_u24 v{vF1}, 3584, v{t0+2}\nv_add_u32 v{vF1}, v{vF1}, v{t0+3}")
        a(f"v_lshrrev_b32 v{t0+2}, 3, v{vL}\nv_lshlrev_b32 v{t0+2}, 11, v{t0+2}\nv_sub_u32 v{vWO}, v{vWQ}, v{t0+2}")
        if C.lf: flag_addr(a, "KV", kfa)
    a("s_waitcnt lgkmcnt(0)\ns_barrier")
    stamp(a, "p2.start")
    vm = VM()
    kcur = T+13
    assert C.lfi < C.lfc
    GP = 128
    def kv_issue(t):
        k = KR + 4*(t & 3)
        if t % 4 == 0: a(f"s_add_u32 s{kcur}, s{kvs}, s{kro}\ns_add_u32 s{kro}, s{kro}, 16384\ns_and_b32 s{kro}, s{kro}, 0x1ffff")
        else: a(f"s_addk_i32 s{kcur}, 4096")
        a(f"s_add_u32 m0, s{ring}, {(t & 3)*1024}")
        a(f"buffer_load_dwordx4 v[{k}:{k+3}], v{vL16}, s[{S_WS}:{S_WS+3}], s{kcur} offen sc1")
        a(f"buffer_load_dwordx4 v{vL16}, s[{S_WS}:{S_WS+3}], s{kcur} offen offset:1024 sc1 lds")
        vm.add(("kv", t), 2)
    def v_read(t):
        v = VR + 8*(t & 1)
        a(f"ds_read_b128 v[{v}:{v+3}], v{VA_} offset:{(t & 3)*1024}\nds_read_b128 v[{v+4}:{v+7}], v{VA_} offset:{(t & 3)*1024 + 512}")
    def w1_issue(f):
        if f % 4 == 0:
            a(f"s_and_b32 s{w1c}, s{sJ}, {C.jrot}\ns_add_u32 s{w1c}, s{w1c}, {f//4}\ns_and_b32 s{w1c}, s{w1c}, 7\ns_mul_i32 s{w1c}, s{w1c}, {64*3584}\ns_add_u32 s{w1c}, s{w1c}, s{w1s}")
        a(f"s_add_u32 m0, s{sVW}, {STG - V + (f & 3)*8192}\ns_add_u32 s{w1c}, s{w1c}, {16*3584}")
        a(f"buffer_load_dwordx4 v{vF1}, s[{S_W1}:{S_W1+3}], s{w1c} offen{' nt' if C.w1nt else ''} lds")
        vm.add(("w1", f))
    def wo_issue(u):
        a(f"s_add_u32 m0, s{sVW}, {SVO + u*8192}\ns_add_u32 s{T}, s{wos}, {u*65536}")
        a(f"buffer_load_dwordx4 v{vWO}, s[{S_WO}:{S_WO+3}], s{T} offen lds")
        vm.add(("wo", u))
    def touch(n):
        a(f"s_cmp_eq_u32 s{sJ}, {n}\ns_cselect_b32 s{T}, s{tch}, 0x40000000")
        a(f"buffer_load_dword v{TD}, v{TA}, s[{S_W2}:{S_W2+3}], s{T} offen")
        vm.add(("t", n))
    def ex(s, r0, r1):
        for r in range(r0, r1): a(f"v_exp_f32 v{s+r}, v{s+r}")
    def setprio(p):
        L = a.label()
        a(f"s_cmp_lg_u32 s{kh}, 0\ns_cbranch_scc1 {L}\ns_setprio {p}\n{L}:")
    def qk(q, t): a(f"v_mfma_f32_32x32x16_bf16 v[{S[q]}:{S[q]+15}], v[{KR+4*(t&3)}:{KR+4*(t&3)+3}], v[{Q+4*q}:{Q+4*q+3}], 0")
    def pv(q, t, h): a(f"v_smfmac_f32_32x32x32_bf16 v[{O[q]}:{O[q]+15}], v[{VR+8*(t&1)+4*h}:{VR+8*(t&1)+4*h+3}], v[{S[q]+8*h}:{S[q]+8*h+7}], v{IDX}")
    kv_issue(0); kv_issue(1)
    post_setup()
    a(f"s_lshl_b32 s{T}, s{kh}, 10\nv_add_u32 v{t1}, s{T}, v{t1}\nv_xor_b32 v{t0}, 1024, v{t1}")
    a(f"ds_read_b128 v[{Q}:{Q+3}], v{t0}\nds_read_b128 v[{Q+4}:{Q+7}], v{t1}")
    a(f"s_lshl_b32 s{ost}, s{sI}, 1\ns_add_u32 s{ost}, s{ost}, s{kh}\ns_lshl_b32 s{ost}, s{ost}, 5\ns_add_u32 s{ost}, s{ost}, s{head}\ns_lshl_b32 s{ost}, s{ost}, 10")
    a(f"s_add_u32 s{ost}, s{ost}, {WS_O}\ns_add_u32 s{ost}, s{ost}, s{sLB}")
    a(f"s_and_b32 s{osrc}, s{sW}, 1\ns_lshl_b32 s{osrc}, s{osrc}, 15\ns_lshr_b32 s{T}, s{sW}, 1\ns_lshl_b32 s{T}, s{T}, 13\ns_add_u32 s{osrc}, s{osrc}, s{T}")
    a(f"s_lshl_b32 s{T}, s{sI}, 16\ns_add_u32 s{osrc}, s{osrc}, s{T}\ns_add_u32 s{osrc}, s{osrc}, {WS_O}\ns_add_u32 s{osrc}, s{osrc}, s{sLB}\ns_add_u32 s{osrc+1}, s{osrc}, 4096")
    a(f"s_mul_i32 s{cgive}, s{sW}, 3072\ns_add_u32 s{cgive}, s{cgive}, {CMB}\ns_xor_b32 s{ctake}, s{sW}, 4\ns_mul_i32 s{ctake}, s{ctake}, 3072\ns_add_u32 s{ctake}, s{ctake}, {CMB}")
    tr_addr(a, 131, "0", True, 132, 133)
    a(f"s_lshr_b32 s{T}, s{sW}, 1\ns_lshl_b32 s{T}, s{T}, 14\ns_add_u32 s{T}, s{T}, {V+SVO}\nv_add_u32 v131, s{T}, v131")
    if C.prio: a("s_setprio 1")
    a(f"s_waitcnt vmcnt(2) lgkmcnt(0)")
    qk(0, 0)
    v_read(0)
    kv_issue(2); kv_issue(3)
    a(f"s_lshr_b32 s{T}, s{sI}, 2\ns_lshl_b32 s{T}, s{T}, 9\ns_add_u32 s{T}, s{T}, {WS_XT}\nv_and_b32 v17, 0x1f0, v{vL16}")
    a(f"buffer_load_dword v17, v17, s[{S_WS}:{S_WS+3}], s{T} offen sc1"); vm.add("xt")
    if C.c3:
        a(f"s_lshr_b32 s{T}, s2, 3\ns_lshl_b32 s{T}, s{T}, 3\ns_add_u32 s{T}, s{T}, s{sW}\ns_lshl_b32 s{T+1}, s{T}, 11\ns_add_u32 s{T+1}, s{T+1}, 384")
        a(f"v_min_u32 v{GP+1}, 1, v{vL}\nv_lshlrev_b32 v{GP+1}, 10, v{GP+1}\nbuffer_load_dword v{GP+1}, v{GP+1}, s[{S_WO}:{S_WO+3}], s{T+1} offen")
        a(f"s_mul_i32 s{T}, s{T}, {8*3584}\ns_or_b32 s{T+1}, s{sI}, 3\ns_lshl_b32 s{T+1}, s{T+1}, 7\ns_add_u32 s{T}, s{T}, s{T+1}")
        a(f"v_min_u32 v{GP+2}, 7, v{vL}\nv_mul_u32_u24 v{GP+2}, 3584, v{GP+2}\nbuffer_load_dword v{GP+2}, v{GP+2}, s[{S_W1}:{S_W1+3}], s{T} offen")
        vm.add("c3", 2)
    stamp(a, "p2.kv0")
    a("s_nop 1")
    per = C.pper; low = C.plow
    for t in range(32):
        for q in range(2):
            hidx = 2*t + q
            if C.prio and hidx % per == 0: setprio(2)
            if C.prio and hidx % per == per - low: setprio(0)
            ex(S[q], 0, 2)
            if q == 0:
                if t > 0: pv(1, t-1, 1)
            else: pv(0, t, 1)
            ex(S[q], 2, 5)
            if q == 0:
                qk(1, t)
                need = [("kv", t+1)] if t < 31 else []
                if not C.nox and 3 <= t < 31: need.append(("w1", t-3))
                if C.lf and t == C.lfc: need.append("gp")
                a(f"s_waitcnt vmcnt({vm.need(*need) if need else 63}) lgkmcnt(0)")
                if C.lf and t == C.lfi: apoll_issue(a, kfa, GP); vm.add("gp")
                if C.lf and t == C.lfc:
                    apoll_check(a, kfa, GP, 32)
                    for k in range(4, t+4): kv_issue(k)
                if t+4 < 32 and not (C.lf and t < C.lfc): kv_issue(t+4)
                if t+1 < 32: v_read(t+1)
                if not C.nox and not C.split:
                    w1_issue(t)
                    if 3 <= t < 31:
                        for x in frag_reads(f"a{4*(t-3)}", SGA, ((t-3) & 3)*8192): a(x)
            else:
                if t < 31: qk(0, t+1)
                if not C.nox:
                    if C.split:
                        w1_issue(t)
                        if 3 <= t < 31:
                            for x in frag_reads(f"a{4*(t-3)}", SGA, ((t-3) & 3)*8192): a(x)
                    if t == C.prett and C.preto:
                        a(f"buffer_load_dword v{TD}, v{vL16}, s[{S_WS}:{S_WS+3}], s{ost} offen sc1")
                        vm.add("pre")
                    if t % 3 == 1 and t < 24: wo_issue(t//3)
                    if t == 8: a(f"v_readfirstlane_b32 s{T}, v17\ns_nop 1\nv_cmp_ne_u32 vcc, s{T}, v17\ns_nop 1\ns_cmp_eq_u64 vcc, 0\ns_cselect_b32 s{sLOC}, 1, 0")
                    if t % 4 == 3 and C.stouch == 1: touch(t//4)
                    if t % 3 == 2 and t < 24 and C.stouch == 2: touch(t//3)
                    if t == C.t2:
                        a(f"buffer_load_dword v{TD}, v{TA}, s[{S_W2}:{S_W2+3}], s{tch} offen{' nt' if C.w2nt else ''}"); vm.add("t2")
            ex(S[q], 5, 11)
            pv(q, t, 0)
            if t == 31 and q == 1:
                a(f"s_mov_b32 m0, s{cgive}\nv_mov_b32 v20, v131\nv_xor_b32 v22, 64, v131")
                for r in range(9): a(f"ds_write_addtid_b32 v{O[0]+r} offset:{256*r}")
            ex(S[q], 11, 16)
    a("s_nop 1")
    pv(1, 31, 1)
    if C.prio: a("s_setprio 0")
    stamp(a, "p2.loop")
    M, N = O[1], 36
    assert vm.need(("wo", 7)) >= vm.need(("kv", 31))
    a(f"s_mov_b32 m0, s{ctake}\ns_waitcnt lgkmcnt(0)\ns_barrier")
    stamp(a, "zc.cmb")
    for r in range(9): a(f"ds_read_addtid_b32 v{N+r} offset:{256*r}")
    wr_ = wo_reads()
    for x in wr_[:6]: a(x)
    a("s_waitcnt lgkmcnt(6)")
    for r in range(9): a(f"v_add_f32 v{M+r}, v{M+r}, v{N+r}")
    for x in wr_[6:C.wo1]: a(x)
    a(f"v_add_f32 v{N}, abs(v{M}), abs(v{M+1})\nv_add_f32 v{N+1}, abs(v{M+2}), abs(v{M+3})\nv_add_f32 v{N+2}, abs(v{M+4}), abs(v{M+5})\nv_add_f32 v{N+3}, abs(v{M+6}), abs(v{M+7})")
    a(f"v_add_f32 v{N}, v{N}, v{N+1}\nv_add_f32 v{N+2}, v{N+2}, v{N+3}\nv_cmp_nge_f32 vcc, {f2u(2.0**60)}, v{M+8}\nv_add_f32 v{N}, v{N}, v{N+2}")
    a(f"s_mov_b64 s[{T+12}:{T+13}], vcc\nv_cmp_nle_f32 vcc, {f2u(2.0**-60)}, v{M+8}\ns_nop 0\ns_or_b64 s[{T+12}:{T+13}], s[{T+12}:{T+13}], vcc")
    a(f"v_cmp_ngt_f32 vcc, 0x7f800000, v{N}\ns_nop 0\ns_or_b64 s[{T+12}:{T+13}], s[{T+12}:{T+13}], vcc\ns_cbranch_scc1 L_softmax_safe\nL_softmax_done:")
    a(f"v_rcp_f32 v{M+8}, v{M+8}\ns_nop 0")
    for r in range(8): a(f"v_mul_f32 v{M+r}, v{M+r}, v{M+8}")
    for r in range(4): a(f"v_cvt_pk_bf16_f32 v{N+r}, v{M+2*r}, v{M+1+2*r}")
    if C.sent:
        for r in range(4): a(f"v_min_u32 v{N+r}, -2, v{N+r}")
    rstore(a, f"buffer_store_dwordx4 v[{N}:{N+3}], v{vL16}, s[{S_WS}:{S_WS+3}], s{ost} offen", bulk=not C.ldo)
    for x in wr_[C.wo1:]: a(x)

def softmax_safe(a):
    M = O[1]
    QF, KF, VF, SS, CC, OO, MX, VO = Q+4, 104, 108, 48, 80, 120, 116, 117
    base, cur, n = T+12, T+13, T+14
    a("L_softmax_safe:")
    a("s_waitcnt lgkmcnt(0)")
    a(f"s_lshl_b32 s{base}, s{head}, 17\ns_add_u32 s{base}, s{base}, s{sLB}")
    a(f"v_mov_b32 v{MX}, 0xff800000\ns_mov_b32 s{cur}, s{base}\ns_mov_b32 s{n}, 64")
    L1 = a.label()
    a(f"{L1}:")
    a(f"buffer_load_dwordx4 v[{KF}:{KF+3}], v{vL16}, s[{S_WS}:{S_WS+3}], s{cur} offen sc1\ns_waitcnt vmcnt(0)")
    a(f"v_mfma_f32_32x32x16_bf16 v[{SS}:{SS+15}], v[{KF}:{KF+3}], v[{QF}:{QF+3}], 0\ns_nop 15")
    for r in range(0, 16, 2): a(f"v_max3_f32 v{MX}, v{MX}, v{SS+r}, v{SS+r+1}")
    a(f"s_add_u32 s{cur}, s{cur}, 2048\ns_sub_u32 s{n}, s{n}, 1\ns_cmp_lg_u32 s{n}, 0\ns_cbranch_scc1 {L1}")
    a(f"v_mov_b32 v{VO}, v{MX}\ns_nop 1\nv_permlane32_swap_b32 v{MX}, v{VO}\ns_nop 1\nv_max_f32 v{MX}, v{MX}, v{VO}")
    for r in range(16): a(f"v_sub_f32 v{CC+r}, 0, v{MX}\nv_mov_b32 v{OO+r}, 0")
    for r in range(8): a(f"v_mov_b32 v{VF+r}, 0x3f803f80")
    a(f"v_lshrrev_b32 v{MX}, 5, v{vL}\nv_lshlrev_b32 v{VO}, 8, v{MX}\nv_and_b32 v{MX}, 15, v{vL}\nv_lshl_add_u32 v{VO}, v{MX}, 4, v{VO}")
    a(f"s_mov_b32 s{cur}, s{base}\ns_mov_b32 s{n}, 64")
    L2 = a.label()
    a(f"{L2}:")
    a(f"buffer_load_dwordx4 v[{KF}:{KF+3}], v{vL16}, s[{S_WS}:{S_WS+3}], s{cur} offen sc1")
    a("s_mov_b32 exec_lo, 0xffff\ns_mov_b32 exec_hi, 0xffff")
    a(f"buffer_load_dwordx4 v[{VF}:{VF+3}], v{VO}, s[{S_WS}:{S_WS+3}], s{cur} offen offset:1024 sc1")
    a(f"buffer_load_dwordx4 v[{VF+4}:{VF+7}], v{VO}, s[{S_WS}:{S_WS+3}], s{cur} offen offset:1536 sc1")
    a("s_mov_b64 exec, -1\ns_waitcnt vmcnt(0)")
    a(f"v_mfma_f32_32x32x16_bf16 v[{SS}:{SS+15}], v[{KF}:{KF+3}], v[{QF}:{QF+3}], v[{CC}:{CC+15}]\ns_nop 15")
    for r in range(16): a(f"v_exp_f32 v{SS+r}, v{SS+r}")
    a("s_nop 1")
    a(f"v_smfmac_f32_32x32x32_bf16 v[{OO}:{OO+15}], v[{VF}:{VF+3}], v[{SS}:{SS+7}], v{IDX}")
    a(f"v_smfmac_f32_32x32x32_bf16 v[{OO}:{OO+15}], v[{VF+4}:{VF+7}], v[{SS+8}:{SS+15}], v{IDX}\ns_nop 15")
    a(f"s_add_u32 s{cur}, s{cur}, 2048\ns_sub_u32 s{n}, s{n}, 1\ns_cmp_lg_u32 s{n}, 0\ns_cbranch_scc1 {L2}")
    for r in range(9): a(f"v_mov_b32 v{M+r}, v{OO+r}")
    for x in wo_reads()[:C.wo1]: a(x)
    a("s_branch L_softmax_done")

EOFF = 61692
def ep2_writes(acc, base, sw4k):
    off = EOFF if base >= EOFF else 0
    o = [f"ds_write_addtid_b32 v{acc+r} offset:{off + r*256}" for r in range(16)]
    o[0] = f"s_add_u32 m0, s{sw4k}, {base - off}\ns_nop 0\n" + o[0]
    return o

def ep2_read_addr(a, ra, base0, base1, sw4k, tv):
    a(f"s_and_b32 s{T}, s{sW}, 1\ns_lshl_b32 s{T}, s{T}, 2\ns_lshr_b32 s{T+1}, s{sW}, 1\ns_add_u32 s{T}, s{T}, s{T+1}\ns_lshl_b32 s{sw4k}, s{T}, 12")
    a(f"s_lshr_b32 s{T}, s{sW}, 2\ns_lshl_b32 s{T}, s{T}, 14\ns_and_b32 s{T+1}, s{sW}, 3\ns_lshl_b32 s{T+1}, s{T+1}, 10\ns_add_u32 s{T}, s{T}, s{T+1}\ns_add_u32 s{T}, s{T}, {base0}")
    a(f"v_and_b32 v{tv}, 3, v{vN}\nv_lshlrev_b32 v{ra}, 8, v{tv}\nv_bfe_u32 v{tv}, v{vN}, 2, 1\nv_lshl_add_u32 v{ra}, v{tv}, 7, v{ra}\nv_and_b32 v{tv}, 3, v{vC}\nv_lshl_add_u32 v{ra}, v{tv}, 5, v{ra}")
    a(f"v_add_u32 v{ra}, s{T}, v{ra}\nv_lshrrev_b32 v{tv}, 2, v{vC}\nv_mul_i32_i24 v{tv}, {base1 - base0}, v{tv}\nv_add_u32 v{ra}, v{ra}, v{tv}")

def ep2_sum(a, ra, add0, out):
    for k in range(4):
        a(f"ds_read_b128 v[{out+8*k}:{out+8*k+3}], v{ra} offset:{4096*k}\nds_read_b128 v[{out+8*k+4}:{out+8*k+7}], v{ra} offset:{4096*k+16}")
    a("s_waitcnt lgkmcnt(6)")
    for e in range(8): a(f"v_add_f32 v{out+e}, v{out+e}, v{add0+e}")
    a("s_waitcnt lgkmcnt(2)")
    for e in range(8): a(f"v_add_f32 v{out+8+e}, v{out+8+e}, v{out+16+e}")
    for e in range(8): a(f"v_add_f32 v{out+e}, v{out+e}, v{out+8+e}")
    a("s_waitcnt lgkmcnt(0)")
    for e in range(8): a(f"v_add_f32 v{out+e}, v{out+e}, v{out+24+e}")

def unpack8(a, dst, src):
    for e in range(4): a(f"v_lshlrev_b32 v{dst+2*e}, 16, v{src+e}\nv_and_b32 v{dst+1+2*e}, 0xffff0000, v{src+e}")

def phase3(a):
    stamp(a, "zc.ost")
    OF, ACC, WF = 16, 48, 80
    src = osrc
    n3 = [int(c) for c in C.sch3]; assert n3[0] == 4 and sum(n3) == 12
    spin = T+6
    if not C.sent:
        a("s_waitcnt vmcnt(0) lgkmcnt(0)\ns_barrier")
        stamp(a, "p2.end")
        if_wave_eq(a, 0, lambda: publish(a, "O", sI))
        for f in range(n3[0]): w2_dma(a, f)
        if_wave_eq(a, 0, lambda: poll(a, "O", sI, 8))
        a("s_barrier")
        stamp(a, "proj.polled")
    else:
        a(f"s_mov_b32 s{spin}, {SPIN}\ns_waitcnt {'vmcnt(0) ' if C.sentwait == 1 else ''}lgkmcnt(0)\ns_barrier")
        stamp(a, "p2.end")
    LT = a.label()
    a(f"{LT}:")
    for t in range(8):
        if C.lprio and t % 2 == 0: a(f"s_setprio {3 - t//2}")
        a(f"buffer_load_dwordx4 v[{OF+4*t}:{OF+4*t+3}], v{vL16}, s[{S_WS}:{S_WS+3}], s{src + (t >> 2)} offen offset:{(t & 3)*1024} sc1")
    for t in range(8):
        a(f"s_waitcnt vmcnt({7-t})")
        for y in range(2):
            c = "0" if t == 0 else f"v[{ACC+16*y}:{ACC+16*y+15}]"
            a(f"v_mfma_f32_32x32x16_bf16 v[{ACC+16*y}:{ACC+16*y+15}], v[{OF+4*t}:{OF+4*t+3}], v[{WF+8*t+4*y}:{WF+8*t+4*y+3}], {c}")
            if C.sent:
                o = OF + 4*t + 2*y
                a(f"v_max_u32 v0, v{o}, v{o+1}" if t == 0 and y == 0 else f"v_max3_u32 v0, v0, v{o}, v{o+1}")
    if C.sent:
        a(f"v_cmp_eq_u32 vcc, -1, v0\ns_sub_u32 s{spin}, s{spin}, 1\ns_cselect_b64 vcc, 0, vcc\ns_cbranch_vccnz {LT}")
    ep2_read_addr(a, 88, V+SVO, E+16, T+4, 80)
    stamp(a, "proj.loop")
    OUT = 104
    for x in ep2_writes(ACC, V+SVO, T+4) + ep2_writes(ACC+16, E+16, T+4): a(x)
    unpack8(a, 96, vRES)
    if C.sent:
        for f in range(n3[0]): w2_dma(a, f)
    a("s_waitcnt lgkmcnt(0)\ns_barrier")
    stamp(a, "zc.epb")
    ep2_sum(a, 88, 96, OUT)
    for e in range(4): a(f"v_cvt_pk_bf16_f32 v{vRES+e}, v{OUT+2*e}, v{OUT+1+2*e}")
    a("v_mov_b32 v64, 0\nv_mov_b32 v65, 0\nv_mov_b32 v66, 1\nv_mov_b32 v67, 1\nv_mov_b32 v68, 0x3f803f80")
    for e in range(4): a(f"v_dot2c_f32_bf16 v64, v{vRES+e}, v68\nv_dot2c_f32_bf16 v65, v{vRES+e}, v{vRES+e}")
    a(f"s_lshl_b32 s{T}, s{sI}, 13\ns_add_u32 s{T}, s{T}, {WS_ST}\ns_add_u32 s{T}, s{T}, s{sLB}\ns_lshl_b32 s{T+1}, s{sJ}, 10\ns_add_u32 s{T+1}, s{T+1}, s{T}")
    a(f"v_lshlrev_b32 v56, 4, v{vN}\nv_lshl_add_u32 v57, v{vC}, 10, v56")
    dpp_red8(a, [64, 65])
    a(f"v_cmp_eq_u32 vcc, 0, v{vC}\ns_and_saveexec_b64 s[{T+2}:{T+3}], vcc")
    rstore(a, f"buffer_store_dwordx4 v[64:67], v56, s[{S_WS}:{S_WS+3}], s{T+1} offen")
    a(f"s_mov_b64 exec, s[{T+2}:{T+3}]")
    stamp(a, "proj.st")
    a(f"v_subrev_u32 v59, {SVO}, v{vTRF}")
    for c in range(4):
        for x in frag_reads(f"v{W1T+4*c}", 59, c*8192): a(x)
    if not C.sent:
        for f in range(4):
            for x in w2_reads(f): a(x)
    unpack8(a, 80, vRES)
    a(f"v_lshrrev_b32 v58, 2, v{vC}\nv_lshlrev_b32 v58, 17, v58\nv_lshl_add_u32 v58, v{vN}, 6, v58\nv_and_b32 v60, 3, v{vC}\nv_lshl_add_u32 v58, v60, 4, v58")
    LP = a.label(); LD = a.label()
    a(f"s_mov_b32 s{T+2}, {SPIN}")
    a(f"{LP}:")
    a(f"buffer_load_dwordx4 v[68:71], v57, s[{S_WS}:{S_WS+3}], s{T} offen sc1")
    a("s_waitcnt vmcnt(0)\nv_and_b32 v72, v70, v71\nv_cmp_ne_u32 vcc, 1, v72")
    a(f"s_cbranch_vccz {LD}")
    a(f"s_sub_u32 s{T+2}, s{T+2}, 1\ns_cmp_lg_u32 s{T+2}, 0\ns_cbranch_scc1 {LP}")
    a(f"{LD}:")
    stamp(a, "proj.stat")
    if C.sent:
        for f in range(4):
            for x in w2_reads(f): a(x)
    dpp_red8(a, [68, 69])
    a(f"v_mul_f32 v68, {f2u(1/512)}, v68\nv_mul_f32 v69, {f2u(1/512)}, v69")
    a("v_fma_f32 v69, -v68, v68, v69\nv_max_f32 v69, 0, v69")
    a(f"v_add_f32 v70, {f2u(1e-5)}, v69\nv_rsq_f32 v70, v70\ns_nop 0")
    a(f"v_mul_f32 v71, v70, v70\nv_mul_f32 v71, v71, v69\nv_add_f32 v71, {f2u(1e-5)}, v71\nv_rsq_f32 v71, v71\ns_nop 0")
    a("v_mul_f32 v70, v70, v71\nv_mul_f32 v71, v68, v70\nv_sub_f32 v71, 0, v71")
    for e in range(8): a(f"v_fma_f32 v{80+e}, v{80+e}, v70, v71")
    for e in range(4): a(f"v_cvt_pk_bf16_f32 v{72+e}, v{80+2*e}, v{81+2*e}")
    a(f"s_lshl_b32 s{T}, s{sJ}, 18\ns_lshl_b32 s{T+1}, s{sI}, 12\ns_add_u32 s{T}, s{T}, s{T+1}\ns_add_u32 s{T}, s{T}, {WS_H}\ns_add_u32 s{T}, s{T}, s{sLB}")
    a(f"buffer_store_dwordx4 v[72:75], v58, s[{S_WS}:{S_WS+3}], s{T} offen sc1")
    stamp(a, "zc.hst")
    a("s_waitcnt lgkmcnt(0)")
    rest3 = [8, 9, 10, 11, 4, 5, 6, 7]
    assert n3[1] <= 4
    for f in rest3[:n3[1]]: w2_dma(a, f)
    a(f"s_waitcnt vmcnt({n3[1]})\ns_barrier")
    stamp(a, "proj.end")
    if_wave_eq(a, 0, lambda: publish(a, "H", sJ))
    if C.sent:
        L = a.label()
        a(f"s_cmp_lg_u32 s{sL}, 0\ns_cbranch_scc1 {L}\nv_mov_b32 v76, -1\nv_mov_b32 v77, -1\nv_mov_b32 v78, -1\nv_mov_b32 v79, -1")
        a(f"s_add_u32 s{T}, s{ost}, {LSTRIDE}\nbuffer_store_dwordx4 v[76:79], v{vL16}, s[{S_WS}:{S_WS+3}], s{T} offen sc1\n{L}:")
    for f in rest3[n3[1]:]: w2_dma(a, f)

EPO = 61440
W1T = 128

def flag_addr(a, kind, sd):
    a(f"s_lshl_b32 s{sd}, s{sJ}, 10\ns_add_u32 s{sd}, s{sd}, {FL[kind]*128}\ns_add_u32 s{sd}, s{sd}, s{sFL}")
    a(f"s_lshr_b32 s{T+1}, s{sI}, 2\ns_lshl_b32 s{T+1}, s{T+1}, 7\ns_add_u32 s{sd}, s{sd}, s{T+1}")

def apoll_issue(a, sd, v):
    a(f"s_mov_b64 exec, 1\nbuffer_load_dword v{v}, v{vL16}, s[{S_WS}:{S_WS+3}], s{sd} offen sc1\ns_mov_b64 exec, -1")

def apoll_check(a, sd, v, n):
    LP = a.label(); LD = a.label()
    a(f"s_mov_b64 exec, 1\ns_mov_b32 s{T+1}, {SPIN}\n{LP}:\nv_cmp_ne_u32 vcc, {n}, v{v}\ns_cbranch_vccz {LD}")
    a(f"buffer_load_dword v{v}, v{vL16}, s[{S_WS}:{S_WS+3}], s{sd} offen sc1\ns_waitcnt vmcnt(0)")
    a(f"s_sub_u32 s{T+1}, s{T+1}, 1\ns_cmp_lg_u32 s{T+1}, 0\ns_cbranch_scc1 {LP}\n{LD}:\ns_mov_b64 exec, -1")

def mlp(a):
    R = 4
    EP = STG
    ERA, UA, YA5, B1, YA4, C1, RA_, WA_, ADD = 21, 20, 22, 24, 28, 29, 30, 128, 136
    ACC, F, ET, PV_, B2 = 48, [80, 96], 112, 19, 18
    src4, dst, qb, src5, rot, ust, fa, fb, gc2, ewb = T+2, T+3, T+4, T+5, T+6, T+7, T+8, T+9, T+11, T+12
    a(f"v_lshlrev_b32 v{ERA}, 1, v{vN}\ns_lshl_b32 s{T}, s{sI}, 7")
    a(f"buffer_load_ushort v{B2}, v{ERA}, s[{S_B2}:{S_B2+3}], s{T} offen")
    a(f"s_lshr_b32 s{T}, s{sW}, 1\ns_and_b32 s{T+1}, s{sW}, 1\ns_lshl_b32 s{T+1}, s{T+1}, 11\ns_add_u32 s{T+1}, s{T+1}, s{sLB}")
    a(f"s_mul_i32 s{src5}, s{sJ}, {2*114688}\ns_mul_i32 s{dst}, s{T}, {28*1024}\ns_add_u32 s{src5}, s{src5}, s{dst}\ns_add_u32 s{src5}, s{src5}, s{T+1}\ns_add_u32 s{src5}, s{src5}, {WS_U}")
    a(f"s_lshl_b32 s{src4}, s{sJ}, 18\ns_lshl_b32 s{dst}, s{T}, 15\ns_add_u32 s{src4}, s{src4}, s{dst}\ns_add_u32 s{src4}, s{src4}, s{T+1}\ns_add_u32 s{src4}, s{src4}, {WS_H}")
    a(f"s_mul_i32 s{ust}, s{sJ}, {2*114688}\ns_lshl_b32 s{dst}, s{sI}, 12\ns_add_u32 s{ust}, s{ust}, s{dst}\ns_lshl_b32 s{dst}, s{T}, 9\ns_add_u32 s{ust}, s{ust}, s{dst}\ns_add_u32 s{ust}, s{ust}, s{T+1}\ns_add_u32 s{ust}, s{ust}, {WS_U}")
    a(f"s_lshl_b32 s{dst}, s{sW}, 11\ns_lshl_b32 s{T}, s{T}, 12")
    a(f"v_bfe_u32 v16, v{vL}, 3, 2\nv_lshlrev_b32 v{YA5}, 9, v16\nv_and_b32 v16, 3, v{vL}\nv_lshl_add_u32 v{YA5}, v16, 7, v{YA5}\nv_bfe_u32 v16, v{vL}, 2, 1\nv_lshl_add_u32 v{YA5}, v16, 6, v{YA5}")
    a(f"v_bfe_u32 v16, v{vL}, 1, 1\nv_bfe_u32 v17, v{vL}, 4, 1\nv_lshl_add_u32 v16, v17, 1, v16\nv_lshrrev_b32 v17, 5, v{vL}\nv_xor_b32 v16, v16, v17\nv_lshl_add_u32 v{YA5}, v16, 4, v{YA5}")
    a(f"v_add_u32 v{YA5}, s{T}, v{YA5}\nv_xor_b32 v{YA5+1}, 32, v{YA5}")
    a(f"s_sub_u32 s{T}, s{T}, s{sVW}\ns_sub_u32 s{T}, s{T}, {SVO}\nv_add_u32 v{YA4}, s{T}, v{vTRF}")
    a(f"s_and_b32 s{T}, s{sW}, 1\ns_lshl_b32 s{T}, s{T}, 11\nv_add_u32 v31, s{T}, v{YA4}")
    a(f"s_and_b32 s{rot}, s{sJ}, {C.jrot}\ns_lshl_b32 s{rot}, s{rot}, 12")
    qkv_base8(a, qb)
    flag_addr(a, "U", fa); flag_addr(a, "UB", fb)
    LS = a.label(); LM = a.label()
    a(f"s_cmp_ge_u32 s{sI}, 28\ns_cbranch_scc1 {LS}")
    vm = VM()
    a(f"s_and_b32 s{T}, s{sW}, 1\ns_lshr_b32 s{T+1}, s{sW}, 1")
    a(f"s_lshl_b32 s{ewb}, s{T}, 14\ns_add_u32 s{ewb}, s{ewb}, {EP}\ns_lshl_b32 s{T+10}, s{T+1}, 10\ns_add_u32 s{T+10}, s{T+10}, s{ewb}\nv_add_u32 v{ERA}, s{T+10}, v{vL16}")
    a(f"s_lshl_b32 s{T+10}, s{T+1}, 12\ns_add_u32 s{ewb}, s{ewb}, s{T+10}")
    a(f"s_lshl_b32 s{T}, s{T}, 6\ns_lshl_b32 s{T+10}, s{sI}, 7\ns_add_u32 s{T}, s{T}, s{T+10}\nv_lshlrev_b32 v16, 3, v{vC}")
    a(f"buffer_load_dwordx2 v[{B1+2}:{B1+3}], v16, s[{S_B1}:{S_B1+3}], s{T} offen")
    a(f"v_lshrrev_b32 v17, 5, v{vL}\ns_lshr_b32 s{T+1}, s{T+1}, 1\ns_lshl_b32 s{T+1}, s{T+1}, 1\nv_or_b32 v17, s{T+1}, v17\nv_lshlrev_b32 v17, 4, v17\nv_lshlrev_b32 v{UA}, 3, v{vL}\nv_xor_b32 v{UA}, v{UA}, v17")
    c1 = -2*0.7978845608028654*1.4426950408889634
    a(f"s_mov_b32 s{gc2}, {f2u(c1*0.044715)}\nv_mov_b32 v{C1}, {f2u(c1)}")
    if_wave_eq(a, 0, lambda: poll(a, "H", sJ, 32))
    a("s_barrier")
    stamp(a, "mlp1.polled"); stamp(a, "z3.poll")
    def act(p, s):
        if p == 4: a(f"s_add_u32 s{T}, s{rot}, {(s & 7)*4096}\ns_and_b32 s{T}, s{T}, 0x7fff\ns_add_u32 s{T}, s{T}, s{src4}\ns_add_u32 m0, s{dst}, {(s % R)*16384}" + (f"\ns_add_u32 s{T}, s{T}, 131072" if s >= 8 else "\ns_nop 0"))
        else: a(f"s_add_u32 m0, s{dst}, {(s % R)*16384}\ns_add_u32 s{T}, s{src5}, {(s//7)*114688 + (s % 7)*4096}")
        a(f"buffer_load_dwordx4 v{vL16}, s[{S_WS}:{S_WS+3}], s{T} offen sc1 lds\nbuffer_load_dwordx4 v{vL16}, s[{S_WS}:{S_WS+3}], s{T} offen offset:1024 sc1 lds")
        vm.add(("act", p, s), 2)
    def reads(p, s):
        out = []; o = (s % R)*16384
        for t in range(4):
            b = F[s & 1] + 4*t
            if p == 4: out += [f"ds_read_b64_tr_b16 v[{b}:{b+1}], v{YA4} offset:{o + t*1024}", f"ds_read_b64_tr_b16 v[{b+2}:{b+3}], v{YA4} offset:{o + t*1024 + 256}"]
            else: out.append(f"ds_read_b128 v[{b}:{b+3}], v{YA5 + (t & 1)} offset:{o + (t >> 1)*2048}")
        return out
    def mfmas(p, s):
        out = []
        n = 8 if p == 4 else 7
        y = s // n
        for t in range(4):
            f = 4*(s % n) + t
            if p == 4: X = f"a[{4*f}:{4*f+3}]" if f < 28 else f"v[{W1T+4*(f-28)}:{W1T+4*(f-28)+3}]"
            else: r = w2_reg(f); X = f"{r[0]}[{int(r[1:])}:{int(r[1:])+3}]"
            Y = f"v[{F[s & 1]+4*t}:{F[s & 1]+4*t+3}]"
            c = "0" if f == 0 else f"v[{ACC+16*y}:{ACC+16*y+15}]"
            A_, B_ = (Y, X) if p == 4 else (X, Y)
            out.append(f"v_mfma_f32_32x32x16_bf16 v[{ACC+16*y}:{ACC+16*y+15}], {A_}, {B_}, {c}")
        return out
    RW = 31
    def inring(f): return C.optx and 20 <= f < 24
    def wdma(fs):
        for f in fs:
            if inring(f):
                a(f"s_add_u32 m0, s{dst}, {((f-20) >> 1)*16384 + (f & 1)*1024}\ns_add_u32 s{T}, s{sW2S}, {f*16*4096}")
                a(f"buffer_load_dwordx4 v{vF2}, s[{S_W2}:{S_W2+3}], s{T} offen lds")
            else: w2_dma(a, f)
            vm.add(("w", f))
    def wr(fs): return [x for f in fs for x in (frag_reads(w2_reg(f), RW, ((f-20) >> 1)*16384 + (f & 1)*1024) if inring(f) else w2_reads(f))]
    def wread(fs):
        for x in wr(fs): a(x)
    def ep_w(y, rs=range(16)):
        o = [f"ds_write_addtid_b32 v{ACC+16*y+r} offset:{EPO + r*256}" for r in rs]
        o[0] = f"s_sub_u32 m0, s{ewb}, {EPO}\ns_nop 0\n" + o[0]
        return o
    def ep_r(): return [f"ds_read_b128 v[{ET+4*p}:{ET+4*p+3}], v{ERA} offset:{p*4096}" for p in range(4)]
    def ep_math():
        o = []
        for e in range(4): o += [f"v_add_f32 v{ET+e}, v{ET+e}, v{ET+4+e}", f"v_add_f32 v{ET+8+e}, v{ET+8+e}, v{ET+12+e}"]
        for e in range(4): o.append(f"v_add_f32 v{ET+e}, v{ET+e}, v{B1+e}")
        for e in range(4): o.append(f"v_add_f32 v{ET+e}, v{ET+e}, v{ET+8+e}")
        G = ET+4
        for e in range(4): o.append(f"v_mul_f32 v{G+e}, v{ET+e}, v{ET+e}")
        for e in range(4): o.append(f"v_fma_f32 v{G+e}, v{G+e}, s{gc2}, v{C1}")
        for e in range(4): o.append(f"v_mul_f32 v{G+e}, v{G+e}, v{ET+e}")
        for e in range(4): o.append(f"v_exp_f32 v{G+e}, v{G+e}")
        for e in range(4): o.append(f"v_add_f32 v{G+e}, 1.0, v{G+e}")
        for e in range(4): o.append(f"v_rcp_f32 v{G+e}, v{G+e}")
        for e in range(4): o.append(f"v_mul_f32 v{ET+e}, v{ET+e}, v{G+e}")
        o += [f"v_cvt_pk_bf16_f32 v{ET+8}, v{ET}, v{ET+1}", f"v_cvt_pk_bf16_f32 v{ET+9}, v{ET+2}, v{ET+3}"]
        return o
    def ep_store(y):
        if y: a(f"s_add_u32 s{ust}, s{ust}, 114688")
        a(f"buffer_store_dwordx2 v[{ET+8}:{ET+9}], v{UA}, s[{S_WS}:{S_WS+3}], s{ust} offen sc1")
        vm.add(("st", y))
    def body(m, lds, valu=()):
        lds = list(lds); valu = list(valu)
        nl = max(C.ldsper, -(-len(lds)//4)); nv = -(-len(valu)//4)
        for k in range(4):
            if k < len(m): a(m[k])
            for x in lds[k*nl:(k+1)*nl]: a(x)
            for x in valu[k*nv:(k+1)*nv]: a(x)
    for s in range(C.init): act(4, s)
    late = [int(c) for c in (C.schx if C.optx else C.schw)]
    assert sum(late) == 8 and len(late) == 6
    nxt = 12
    em = ep_math()
    deferred = []
    E_ = [int(c, 16) for c in C.eps]
    for s in range(16):
        tags = [("act", 4, s)] + ([("st", 0)] if s == C.pubs else [])
        a(f"s_waitcnt vmcnt({vm.need(*tags)}) lgkmcnt(0)\ns_barrier")
        if s not in (2, 3, 5, 6, 7): stamp(a, f"z4.{s:02d}")
        if s == 0: stamp(a, "mlp1.b0")
        if C.defer == 2 and s not in (E_[0], E_[1]):
            for k in deferred: act(4, k)
            deferred = []
        lds = reads(4, s); valu = []
        if s == 0: valu = [f"v_lshlrev_b32 v{B1}, 16, v{B1+2}", f"v_and_b32 v{B1+1}, 0xffff0000, v{B1+2}", f"v_lshlrev_b32 v{B1+2}, 16, v{B1+3}", f"v_and_b32 v{B1+3}, 0xffff0000, v{B1+3}"]
        if s == E_[0]: lds += ep_w(0, range(8))
        if s == E_[1]: lds += ep_w(0, range(8, 16))
        if s == E_[2]: lds += ep_r()
        if s == E_[3]: valu += em[:24]
        if s == E_[4]: valu += em[24:]
        if s == E_[5]: lds += wr(range(4, 8))
        if s == E_[6]: lds += wr(range(8, 12))
        body(mfmas(4, s-1) if s else [], lds, valu)
        if s == C.pubs:
            stamp(a, "mlp1.pubA")
            if_wave_eq(a, 0, lambda: publish(a, "U", sJ))
        if s == E_[4]: ep_store(0)
        if s == 0:
            for k in range(C.init, R): act(4, k)
        if s >= 1 and s - 1 + R < 16:
            deferred.append(s - 1 + R)
            if not (C.defer and s in (E_[0], E_[1])):
                for k in deferred: act(4, k)
                deferred = []
        if s >= 11:
            n = late[s-11]
            assert nxt + n <= 12 + 4*(s > E_[5]) + 4*(s > E_[6]) + 2*(s >= 13) + 2*(s >= 14)
            wdma(range(nxt, nxt + n)); nxt += n
    assert E_[0] >= 9 and E_[2] > E_[1] and E_[3] > E_[2] and E_[5] >= 10 and E_[6] >= 11
    a("s_waitcnt lgkmcnt(0)")
    for x in mfmas(4, 15): a(x)
    stamp(a, "mlp1.loop"); stamp(a, "z4.loop")
    a("s_nop 9")
    for x in ep_w(1): a(x)
    if C.pubs >= 16: a(f"s_waitcnt vmcnt({vm.need(('st', 0))})")
    a("s_waitcnt lgkmcnt(0)\ns_barrier")
    stamp(a, "z4.ep")
    for x in ep_r(): a(x)
    if C.pubs >= 16: if_wave_eq(a, 0, lambda: publish(a, "U", sJ))
    wdma(range(nxt, 20))
    if C.n1 == 0: apoll_issue(a, fa, PV_); vm.add("pa")
    a("s_waitcnt lgkmcnt(0)")
    for x in em: a(x)
    ep_store(1)
    stamp(a, "mlp1.st"); stamp(a, "z4.st")
    npre = 20 + C.n1 + C.n2
    if C.n1:
        a(f"s_waitcnt vmcnt({vm.need(('w', 15))})")
        wread(range(12, 16))
        a("s_waitcnt lgkmcnt(0)")
        apoll_issue(a, fa, PV_); vm.add("pa")
        wdma(range(20, 20 + C.n1))
        a(f"s_waitcnt vmcnt({vm.need('pa')})")
        wread(range(16, 20))
        a("s_barrier")
        stamp(a, "z4.xdrain")
        if_wave_eq(a, 0, lambda: publish(a, "UB", sJ))
        a("s_waitcnt lgkmcnt(0)")
        wdma(range(20 + C.n1, npre))
        first = 0
    else:
        a(f"s_waitcnt vmcnt({vm.need('pa')})")
        wread(range(12, 20))
        apoll_check(a, fa, PV_, 28)
        act(5, 0); act(5, 1)
        a(f"s_waitcnt vmcnt({vm.need(('st', 1))})\ns_barrier")
        stamp(a, "z4.xdrain")
        if_wave_eq(a, 0, lambda: publish(a, "UB", sJ))
        first = 2
    a(f"s_branch {LM}")
    a(f"{LS}:")
    a("s_waitcnt vmcnt(0)")
    wread(range(4, 12)); a("s_waitcnt lgkmcnt(0)")
    keep = vm.ops[:]
    wdma(range(12, 20))
    a("s_waitcnt vmcnt(0)")
    wread(range(12, 20)); a("s_waitcnt lgkmcnt(0)")
    wdma(range(20, npre))
    a(f"v_mov_b32 v{PV_}, 28\ns_waitcnt vmcnt(0)")
    if_wave_eq(a, 0, lambda: poll(a, "U", sJ, 28))
    a("s_barrier")
    for k in range(first): act(5, k)
    vm.ops = keep
    a(f"{LM}:")
    if first == 0: apoll_check(a, fa, PV_, 28)
    stamp(a, "mlp2.polled"); stamp(a, "z4.zpolled")
    for k in range(first, C.init5): act(5, k)
    ep2_read_addr(a, RA_, EP+16, E+32768, ewb, ET)
    sch = [int(c) for c in C.sch2]
    assert sum(sch) == 12
    extra = [5, 6, 7, 8, 9, 10, 11, 0, 1, 2, 3, 4]
    assert sum(sch[:5]) <= 7
    def point(p):
        for _ in range(sch[p]):
            k = extra.pop(0); qkv_piece8(a, qb, k); vm.add(("x", k))
    sb = C.sb
    na = max(first, C.init5); nw = npre
    for s in range(14):
        tags = [("act", 5, s)]
        if s == sb: tags.append("pb")
        if s == 5: tags.append(("w", 23))
        if s == 6: tags.append(("w", 27))
        a(f"s_waitcnt vmcnt({vm.need(*tags)}) lgkmcnt(0)\ns_barrier")
        if s not in (8, 9, 10): stamp(a, f"z5.{s:02d}")
        if s == 0: stamp(a, "mlp2.b0")
        lds = reads(5, s); valu = []
        if s == 0:
            for e in range(4): valu += [f"v_lshlrev_b32 v{ADD+2*e}, 16, v{vRES+e}", f"v_and_b32 v{ADD+1+2*e}, 0xffff0000, v{vRES+e}"]
            valu.append(f"v_lshlrev_b32 v{B2}, 16, v{B2}")
            for e in range(8): valu.append(f"v_add_f32 v{ADD+e}, v{ADD+e}, v{B2}")
        if s == 5: lds += wr(range(20, 24))
        if s == 6: lds += wr(range(24, 28))
        if s == C.wa5: lds += ep2_writes(ACC, EP+16, ewb)
        body(mfmas(5, s-1) if s else [], lds, valu)
        if s == sb:
            apoll_check(a, fb, PV_, 28)
            stamp(a, "mlp2.pollB")
        if s == C.pbi: apoll_issue(a, fb, PV_); vm.add("pb")
        lim = min(14, s + 4, 7 if s < sb else 14)
        want = min(lim, na + 1) if nw < 28 and not C.deep else lim
        want = max(want, min(lim, s + 3))
        while na < want: act(5, na); na += 1
        if nw < 28: wdma((nw, nw+1)); nw += 2
        if s == C.q5s and C.pret:
            a(f"buffer_load_dword v{ET+1}, v{vXO}, s[{S_XD}:{S_XD+3}], s{sXO} offen sc1")
            a(f"s_lshl_b32 s{T}, s{sI}, 3\ns_add_u32 s{T}, s{T}, s{sJ}\ns_lshl_b32 s{T}, s{T}, 9\ns_add_u32 s{T}, s{T}, {WS_ST2}\nv_lshlrev_b32 v{ET+2}, 3, v{vL}")
            a(f"buffer_load_dword v{ET+2}, v{ET+2}, s[{S_WS}:{S_WS+3}], s{T} offen sc1")
            vm.add("pre", 2)
        if s == C.q5s and C.q5:
            a(f"s_lshr_b32 s{T}, s2, 3\ns_lshl_b32 s{T}, s{T}, 3\ns_add_u32 s{T}, s{T}, s{sW}\ns_mul_i32 s{T}, s{T}, {6*1024}")
            if C.q5 == 1: a(f"s_add_u32 s{T}, s{T}, 384\nv_min_u32 v{ET}, 5, v{vL}\nv_lshlrev_b32 v{ET}, 10, v{ET}")
            else: a(f"v_min_u32 v{ET}, 47, v{vL}\nv_lshlrev_b32 v{ET}, 7, v{ET}")
            a(f"buffer_load_dword v{ET}, v{ET}, s[{S_QKV}:{S_QKV+3}], s{T} offen"); vm.add("q5")
    assert na == 14 and nw == 28
    a(f"s_waitcnt lgkmcnt({15 if C.wa5 == 13 else 0})")
    for x in mfmas(5, 13): a(x)
    stamp(a, "mlp2.loop")
    a("s_nop 9")
    OUT = 80
    for x in ep2_writes(ACC+16, E+32768, ewb): a(x)
    point(0); point(1); point(2)
    a("s_waitcnt lgkmcnt(0)\ns_barrier")
    ep2_sum(a, RA_, ADD, OUT)
    point(3)
    for e in range(4): a(f"v_cvt_pk_bf16_f32 v{vRES+e}, v{OUT+2*e}, v{OUT+1+2*e}")
    rstore(a, f"buffer_store_dwordx4 v[{vRES}:{vRES+3}], v{vXO}, s[{S_XD}:{S_XD+3}], s{sXO} offen", bulk=True)
    stamp(a, "mlp2.st")
    a(f"s_cmp_lg_u32 s{sL}, 0\ns_cbranch_scc1 L_fin")
    a("v_mov_b32 v64, 0\nv_mov_b32 v65, 0\nv_mov_b32 v68, 0x3f803f80")
    for e in range(4): a(f"v_dot2c_f32_bf16 v64, v{vRES+e}, v68\nv_dot2c_f32_bf16 v65, v{vRES+e}, v{vRES+e}")
    a(f"s_lshl_b32 s{T}, s{sI}, 3\ns_add_u32 s{T}, s{T}, s{sJ}\ns_lshl_b32 s{T}, s{T}, 9\ns_add_u32 s{T}, s{T}, {WS_ST2}\nv_lshlrev_b32 v66, 3, v{vN}")
    dpp_red8(a, [64, 65])
    a(f"v_cmp_eq_u32 vcc, 0, v{vC}\ns_and_saveexec_b64 s[{T+10}:{T+11}], vcc")
    rstore(a, f"buffer_store_dwordx2 v[64:65], v66, s[{S_WS}:{S_WS+3}], s{T} offen", bulk=True)
    a(f"s_mov_b64 exec, s[{T+10}:{T+11}]")
    point(4)
    a(f"s_waitcnt vmcnt({sch[4]})\ns_barrier")
    stamp(a, "mlp2.end")
    if_wave_eq(a, 0, lambda: publish(a, "X", sI))
    point(5)

def main(out):
    a = Asm()
    K = NAME + "_kernel"
    a.L.append(f".globl {K}\n.p2align 8\n.type {K},@function\n{K}:")
    prologue(a)
    if C.qtouch:
        L1 = a.label(); L2 = a.label(); L3 = a.label()
        a(f"v_lshlrev_b32 v40, 7, v{vL}\nv_min_u32 v41, 47, v{vL}\ns_cmp_eq_u32 s{sW}, {0 if C.qtouch == 1 else 9}\ns_cbranch_scc1 {L1}\ns_cmp_eq_u32 s{sW}, {1 if C.qtouch == 1 else 0}\ns_cbranch_scc1 {L2}\ns_cmp_lg_u32 s{sW}, {2 if C.qtouch == 1 else 1}\ns_cbranch_scc1 {L3}")
        a(f"s_lshr_b32 s{T}, s2, 3\ns_mul_i32 s{T}, s{T}, {48*1024}\ns_add_u32 s{T}, s{T}, 384\nv_lshlrev_b32 v41, 10, v41")
        a(f"buffer_load_dword v143, v41, s[{S_QKV}:{S_QKV+3}], s{T} offen\ns_branch {L3}")
        a(f"{L1}:\ns_lshl_b32 s{T}, s{sI}, 3\ns_add_u32 s{T}, s{T}, s{sJ}\ns_lshl_b32 s{T}, s{T}, 13")
        a(f"buffer_load_dword v143, v40, s[{S_XS}:{S_XS+3}], s{T} offen\ns_branch {L3}")
        a(f"{L2}:\ns_mul_i32 s{T}, s2, {48*128}\nv_lshlrev_b32 v41, 7, v41")
        a(f"buffer_load_dword v143, v41, s[{S_QKV}:{S_QKV+3}], s{T} offen")
        a(f"{L3}:")
    if C.cpf:
        Lc = a.label()
        a(f"s_cmp_lg_u32 s{sW}, 2\ns_cbranch_scc1 {Lc}")
        a(f"s_getpc_b64 s[{T+2}:{T+3}]\ns_and_b32 s{T+2}, s{T+2}, 0xffffff00\ns_lshr_b32 s{T}, s2, 3\ns_lshl_b32 s{T}, s{T}, 10\nv_and_b32 v41, 7, v{vL}\nv_lshlrev_b32 v41, 7, v41\nv_add_u32 v41, s{T}, v41")
        a(f"v_min_u32 v41, CODE_SPAN, v41\nglobal_load_dword v143, v41, s[{T+2}:{T+3}]\n{Lc}:")
    if C.qtouch == 1:
        prologue2(a)
        a("s_barrier")
        x_dma(a, fl="nt" if C.xnt else "")
    else:
        x_dma(a, fl="nt" if C.xnt else "")
        prologue2(a)
    a(f"buffer_load_dwordx4 v[{vRES}:{vRES+3}], v{vXO}, s[{S_XS}:{S_XS+3}], s{sXO} offen")
    a(f"s_cmp_lt_u32 s{sW}, 4\ns_cbranch_scc1 L_p1_cons")
    layer0_helpers(a)
    a("L_layer:")
    ool = phase1(a)
    phase2(a)
    phase3(a)
    mlp(a)
    a(f"s_mov_b32 s{S_XS}, s{S_XD}\ns_mov_b32 s{S_XS+1}, s{S_XD+1}\ns_mov_b32 s{S_XD}, s{sOUT}\ns_mov_b32 s{S_XD+1}, s{sOUT+1}")
    a(f"s_mov_b32 s{sL}, 1\ns_mov_b32 s{sLB}, {LSTRIDE}")
    if C.stamp: a("v_mov_b32 v7, v6")
    a("s_branch L_layer")
    a("L_fin:")
    if C.stamp:
        a("s_waitcnt vmcnt(0)")
        stamp(a, "fin")
        a(f"s_lshl_b32 s{T}, s2, 3\ns_add_u32 s{T}, s{T}, s{sW}\ns_lshl_b32 s{T}, s{T}, 9\ns_add_u32 s{T}, s{T}, {WS_STAMP}\nv_lshlrev_b32 v16, 2, v{vL}")
        a(f"buffer_store_dword v7, v16, s[{S_WS}:{S_WS+3}], s{T} offen\nbuffer_store_dword v6, v16, s[{S_WS}:{S_WS+3}], s{T} offen offset:256")
    a("L_end:\ns_endpgm")
    softmax_safe(a)
    for x in ool: a(x)
    s = HDR + "; @launch grid=(256,1,1) block=(512,1,1) lds=163840\n"
    s += '.amdgcn_target "amdgcn-amd-amdhsa--gfx950"\n.text\n' + a.text().replace("CODE_SPAN", str(C.span))
    s += f""".section .rodata,"a"
.p2align 6
.amdhsa_kernel {K}
  .amdhsa_next_free_vgpr 256
  .amdhsa_next_free_sgpr 102
  .amdhsa_accum_offset {NARCH}
  .amdhsa_group_segment_fixed_size 0
  .amdhsa_kernarg_size 88
  .amdhsa_user_sgpr_count 2
  .amdhsa_user_sgpr_kernarg_segment_ptr 1
  .amdhsa_system_sgpr_workgroup_id_x 1
.end_amdhsa_kernel
"""
    open(out, "w").write(s)
    if C.stamp: open(out + ".stamps", "w").write("\n".join(STAMPS))

if __name__ == "__main__":
    for arg in sys.argv[2:]:
        k, v = arg.split("="); setattr(C, k, v if isinstance(getattr(C, k), str) else type(getattr(C, k))(int(v)))
    main(sys.argv[1])
```

```python
import sys, struct
NAME = "interleave_layers__softmax_full_mha__mixer_token_mlp__prompt"
HDR = open("cdna_kernels/%s.s.ref" % NAME).read().split("; Override launch")[0]
MB = 1 << 20
WS_KV, WS_O, WS_H, WS_U, WS_X2, WS_ST = 0*MB, 4*MB, 6*MB, 8*MB, 10*MB, 12*MB
LSTRIDE = 16*MB
WS_FLAG = 32*MB
WS_XT = WS_FLAG + 131072
WS_STAMP = 40*MB
KA = dict(x=0, wqkv=8, wo=16, w1=32, b1=40, w2=48, b2=56, out=64, dbg=72, ws=80)
SZ = dict(x=2048*512*2, wqkv=512*1536*2, wo=512*512*2, w1=2048*1792*2, b1=1792*2, w2=1792*2048*2, b2=2048*2,
          out=2048*512*2, dbg=256, ws=1 << 28)
FL = dict(KV=0, H=64, U=128, O=192, X=224, UB=256, KL=320)
COLK = ('KV', 'H', 'U', 'UB')
SPIN = 200000
NARCH = 144

class Cfg:
    stamp = False
    prio = True
    lowtiles = 1
    D = 3
    nB = 12
    sch1 = '033343'
    sch2 = '003040'
    sch3 = '426'
    stouch = 0
    p1touch = 0
    now1 = 0
    local = 1
    schw = '002222'
    eps = '99abbbc'
    wlast = 1
    defer = 0
    optx = 0
    n1 = 0
    n2 = 0
    deep = 1
    wa5 = 13
    xp = 2
    early = 6
    q5 = 1
    q5s = 10
    lf = 1
    lfi = 1
    lfc = 2
    c3 = 1
    pub12 = 1
    w1nt = 0
    w2nt = 0
    xrot = 1
    xnt = 0
    lateinit = 1
    arrs = 4
    dbgs = 9
    sent = 1
    ldo = 1
    preto = 1
    sentwait = 1
    fixed = 1
    lprio = 0
    wo1 = 12
    finplain = 0
    ntkv = 0
    ntact = 0
    qrot = 0
    w1mask = 7
    w1e = -2
    schx = '01434'
    pbi = 2
    sb = 4
    init5 = 4
    schv = '22220'
    pubs = 14
    pbs = 3
    init = 4
    pae = 1
    order = 1
    ldsper = 3
    epa = 0
    t2 = 28
    sonly = ''
    tmix = 1
    cpf = 0
    span = 30720
    ldata = 0
    pret = 0
    prett = 24
    hs1 = '322211222000'
    hs0 = '222222220000'
    h0first = 4
    h0second = 4
    w1t = 9
    p1per = 4
    qtouch = 2
    pper = 16
    plow = 3
    split = 1
    kvfix = 0
    xsel = 'wot'
    nofirst = 0
    tlb = 0
    lowhalf = 3
    jrot = 6
    nox = 0
    notr = 0
    loop = 0
    pad = 0
    align = 3
    nQ = 12
C = Cfg()

class Asm:
    def __init__(self): self.L = []; self.n = 0
    def __call__(self, s):
        for line in s.split("\n"):
            line = line.strip()
            if line: self.L.append(("" if line.endswith(":") else "    ") + line)
    def label(self, p="L"):
        self.n += 1; return f"{p}{self.n}"
    def text(self): return "\n".join(self.L) + "\n"

def f2u(x): return hex(struct.unpack("<I", struct.pack("<f", x))[0])

S_XS, S_QKV, S_WS, S_WO, S_W1, S_W2, S_B1, S_B2, S_XD, S_DBG, S_KV = 8, 12, 16, 20, 24, 28, 32, 36, 40, 44, 80
sI, sJ, sW, sL, sLB, sFL = 48, 49, 50, 51, 52, 53
sW2S = 54
sVW = 55
sLOC = 56
sXO = 57
sOUT = 58
sR2 = 80
T = 60
sST = 76
sRET = 84
vL, vN, vC, vL16, vXO = 1, 2, 3, 4, 5
vRES = 8
vF2, vTRF, vWQ = 12, 13, 14
TV = 16
E, V = 0, 65536
QX = V + 11*8192
SVO = 32768
STG = V

STAMPS = []
def stamp(a, name):
    if not C.stamp: return
    if C.sonly:
        if not (name == "start" or any(name.startswith(p) for p in C.sonly.split(","))): return
    elif name.startswith("z") or name.startswith("entry"): return
    k = len(STAMPS); assert k < 32
    a(f"s_memtime s[{sST}:{sST+1}]\ns_memrealtime s[{sST+2}:{sST+3}]\ns_waitcnt lgkmcnt(0)")
    a(f"v_writelane_b32 v6, s{sST}, {k}\nv_writelane_b32 v6, s{sST+2}, {k+32}")
    STAMPS.append(name)

def dpp_red8(a, regs):
    for pat in ("quad_perm:[1,0,3,2]", "quad_perm:[2,3,0,1]", "row_half_mirror"):
        a("s_nop 1")
        for r in regs: a(f"v_add_f32_dpp v{r}, v{r}, v{r} {pat} row_mask:0xf bank_mask:0xf")

def tr_addr(a, vd, xh, perm, t0, t1):
    a(f"v_lshrrev_b32 v{t0}, 5, v{vL}\nv_lshlrev_b32 v{t0}, {2 if perm else 3}, v{t0}")
    a(f"v_bfe_u32 v{t1}, v{vL}, 2, 2\nv_add_u32 v{t0}, v{t0}, v{t1}\nv_lshlrev_b32 v{vd}, 7, v{t0}")
    a(f"v_lshrrev_b32 v{t1}, 1, v{t1}\nv_xor_b32 v{t1}, {xh}, v{t1}\nv_lshl_add_u32 v{vd}, v{t1}, 6, v{vd}")
    a(f"v_bfe_u32 v{t1}, v{vL}, 4, 1\nv_lshl_add_u32 v{vd}, v{t1}, 5, v{vd}")
    a(f"v_and_b32 v{t1}, 3, v{vL}\nv_lshl_add_u32 v{vd}, v{t1}, 3, v{vd}")

def interleave(a, m, r):
    per = -(-len(r)//len(m))
    for x in range(len(m)):
        a(m[x])
        for y in r[x*per:(x+1)*per]: a(y)

def rstore(a, instr, bulk=False):
    if not C.local or (bulk and not C.ldata):
        a(instr + " sc1"); return
    L = a.label(); L2 = a.label()
    a(f"s_cmp_eq_u32 s{sLOC}, 1\ns_cbranch_scc1 {L}\n{instr} sc1\ns_branch {L2}\n{L}:\n{instr}\n{L2}:")

def publish(a, kind, group_s, tv=None):
    if kind not in COLK:
        a(f"s_lshl_b32 s{T}, s{group_s}, 7\ns_add_u32 s{T}, s{T}, {FL[kind]*128}\ns_add_u32 s{T}, s{T}, s{sFL}\ns_lshl_b32 s{T+1}, s{sJ}, 4\ns_add_u32 s{T}, s{T}, s{T+1}")
        a(f"v_mov_b32 v{TV}, 1\ns_mov_b64 exec, 1")
        rstore(a, f"buffer_store_dword v{TV}, v{vL16}, s[{S_WS}:{S_WS+3}], s{T} offen")
        a("s_mov_b64 exec, -1")
        return
    col = kind in COLK
    a(f"s_lshl_b32 s{T}, s{group_s}, {10 if col else 7}\ns_add_u32 s{T}, s{T}, {FL[kind]*128}\ns_add_u32 s{T}, s{T}, s{sFL}")
    a(f"v_mov_b32 v{TV}, 1\nv_lshlrev_b32 v{TV+1}, 7, v{vL}\ns_mov_b64 exec, {0xff if col else 1}")
    a(f"buffer_atomic_add v{TV}, v{TV+1}, s[{S_WS}:{S_WS+3}], s{T} offen sc1")
    a("s_mov_b64 exec, -1")

def poll(a, kind, group_s, n):
    col = kind in COLK
    a(f"s_lshl_b32 s{T}, s{group_s}, {10 if col else 7}\ns_add_u32 s{T}, s{T}, {FL[kind]*128}\ns_add_u32 s{T}, s{T}, s{sFL}")
    if col: a(f"s_lshr_b32 s{T+1}, s{sI}, 2\ns_lshl_b32 s{T+1}, s{T+1}, 7\ns_add_u32 s{T}, s{T}, s{T+1}")
    a(f"s_mov_b64 exec, {1 if col else 0xff}\ns_mov_b32 s{T+1}, {SPIN}")
    LP = a.label(); LD = a.label()
    a(f"{LP}:")
    a(f"buffer_load_dword v{TV}, v{vL16}, s[{S_WS}:{S_WS+3}], s{T} offen sc1")
    a(f"s_waitcnt vmcnt(0)\nv_cmp_ne_u32 vcc, {n if col else 1}, v{TV}")
    a(f"s_cbranch_vccz {LD}")
    a(f"s_sub_u32 s{T+1}, s{T+1}, 1\ns_cmp_lg_u32 s{T+1}, 0\ns_cbranch_scc1 {LP}")
    a(f"{LD}:\ns_mov_b64 exec, -1")

def kl_addr(a):
    a(f"s_lshr_b32 s{T}, s{sI}, 2\ns_lshl_b32 s{T}, s{T}, 3\ns_add_u32 s{T}, s{T}, s{sJ}\ns_lshl_b32 s{T}, s{T}, 7\ns_add_u32 s{T}, s{T}, {FL['KL']*128}\ns_add_u32 s{T}, s{T}, s{sFL}")

def kl_publish(a):
    kl_addr(a)
    a(f"s_and_b32 s{T+1}, s{sI}, 3\ns_lshl_b32 s{T+1}, s{T+1}, 4\ns_add_u32 s{T}, s{T}, s{T+1}\nv_mov_b32 v{TV+3}, 1\ns_mov_b64 exec, 1")
    rstore(a, f"buffer_store_dword v{TV+3}, v{vL16}, s[{S_WS}:{S_WS+3}], s{T} offen")
    a("s_mov_b64 exec, -1")

def kl_poll(a):
    kl_addr(a)
    a(f"s_mov_b64 exec, 15\ns_mov_b32 s{T+1}, {SPIN}")
    LP = a.label(); LD = a.label()
    a(f"{LP}:\nbuffer_load_dword v{TV}, v{vL16}, s[{S_WS}:{S_WS+3}], s{T} offen sc1\ns_waitcnt vmcnt(0)\nv_cmp_ne_u32 vcc, 1, v{TV}\ns_cbranch_vccz {LD}")
    a(f"s_sub_u32 s{T+1}, s{T+1}, 1\ns_cmp_lg_u32 s{T+1}, 0\ns_cbranch_scc1 {LP}\n{LD}:\ns_mov_b64 exec, -1")

def if_wave_eq(a, w, body):
    L = a.label()
    a(f"s_cmp_lg_u32 s{sW}, {w}\ns_cbranch_scc1 {L}")
    body()
    a(f"{L}:")

def qslot(u): return (u + 5) % 12
def qkv_src(u): return (u >> 1)*64*3072 + (1 + (u & 1))*1024 if u < 16 else (u-16)*64*3072

def qkv_row(a, d, base, u):
    if not C.qrot:
        a(f"s_mov_b32 s{d}, s{base}"); return qkv_src(u)
    a(f"s_add_u32 s{d}, s{sR2}, {u >> 1 if u < 16 else u - 16}\ns_and_b32 s{d}, s{d}, 7\ns_mul_i32 s{d}, s{d}, {64*3072}\ns_add_u32 s{d}, s{d}, s{base}")
    return (1 + (u & 1))*1024 if u < 16 else 0

def qkv_base8(a, s):
    a(f"s_mul_i32 s{s}, s{sW}, {8*3072}\ns_lshl_b32 s{T}, s{sJ}, 7\ns_add_u32 s{s}, s{s}, s{T}")

def qkv_piece8(a, s, u):
    seg = qkv_row(a, T, s, u)
    a(f"s_add_u32 m0, s{sVW}, {qslot(u)*8192}\ns_add_u32 s{T}, s{T}, {seg}")
    a(f"buffer_load_dwordx4 v{vWQ}, s[{S_QKV}:{S_QKV+3}], s{T} offen lds")

def w2_dma(a, f):
    a(f"s_add_u32 m0, s{sVW}, {SVO + ((f+4) % 8)*8192}\ns_add_u32 s{T}, s{sW2S}, {f*16*4096}")
    a(f"buffer_load_dwordx4 v{vF2}, s[{S_W2}:{S_W2+3}], s{T} offen lds")

def frag_reads(dst, vaddr, off):
    p, n = dst[0], int(dst[1:])
    return [f"ds_read_b64_tr_b16 {p}[{n}:{n+1}], v{vaddr} offset:{off}", f"ds_read_b64_tr_b16 {p}[{n+2}:{n+3}], v{vaddr} offset:{off+256}"]

W2V = 32
def w2_reg(f): return f"v{W2V+4*f}" if f < 4 else f"a{4*(f-4)}"
def w2_reads(f): return frag_reads(w2_reg(f), vTRF, ((f+4) % 8)*8192)

def prologue(a):
    if C.stamp: a("s_memtime s[96:97]\ns_memrealtime s[98:99]")
    a("s_load_dwordx16 s[64:79], s[0:1], 0\ns_load_dwordx4 s[84:87], s[0:1], 64\ns_load_dwordx2 s[88:89], s[0:1], 80")
    a(f"s_cmp_ge_u32 s2, 256\ns_cbranch_scc1 L_end")
    a(f"v_lshrrev_b32 v{vL}, 6, v0\ns_lshr_b32 s{sJ}, s2, 5\nv_readfirstlane_b32 s{sW}, v{vL}\nv_and_b32 v{vL}, 63, v0")
    a(f"s_and_b32 s{sI}, s2, 7\ns_lshl_b32 s{sI}, s{sI}, 2\ns_bfe_u32 s{T}, s2, 0x20003\ns_or_b32 s{sI}, s{sI}, s{T}")
    a(f"v_lshrrev_b32 v{vN}, 3, v0\nv_and_b32 v{vC}, 7, v0")
    a(f"s_lshl_b32 s{T}, s{sJ}, {3 if C.xrot else 6}\nv_add_u32 v42, s{T}, v{vN}\nv_and_b32 v42, 63, v42")
    a(f"v_bfe_u32 v41, v42, 1, 3\nv_xor_b32 v41, v41, v{vC}\nv_lshlrev_b32 v41, 4, v41\nv_lshl_add_u32 v{vXD}, v42, 10, v41")
    a(f"s_mov_b32 s{S_XS+2}, {hex(SZ['x'])}\ns_mov_b32 s{S_XS+3}, 0x00020000\ns_mov_b32 s{S_QKV+2}, {hex(SZ['wqkv'])}\ns_mov_b32 s{S_QKV+3}, s{S_XS+3}")
    a(f"s_and_b32 s{sR2}, s{sI}, {3 if C.qrot else 0}\ns_lshl_b32 s{sR2}, s{sR2}, 1")
    if C.qtouch:
        a(f"s_mul_i32 s{T+2}, s2, {48*128}\ns_lshr_b32 s{T+3}, s2, 3\ns_mul_i32 s{T+3}, s{T+3}, {48*1024}\ns_addk_i32 s{T+3}, 384")
        a(f"s_cmp_eq_u32 s{sW}, 0\ns_cselect_b32 s{T+2}, s{T+2}, s{T+3}\ns_cselect_b32 s{T+3}, 7, 10\nv_min_u32 v41, 47, v{vL}\nv_lshlrev_b32 v41, s{T+3}, v41")
    if C.stamp: a("v_mov_b32 v6, 0\nv_mov_b32 v7, 0")
    L = a.label()
    a(f"s_cmp_gt_u32 s{sW}, 1\ns_waitcnt lgkmcnt(0)\ns_mov_b64 s[{S_XS}:{S_XS+1}], s[64:65]\ns_mov_b64 s[{S_QKV}:{S_QKV+1}], s[66:67]")
    if C.qtouch: a(f"s_cbranch_scc1 {L}\nbuffer_load_dword v143, v41, s[{S_QKV}:{S_QKV+3}], s{T+2} offen\n{L}:")
    x_dma(a, fl="")
    for s, n in ((S_WO, "wo"), (S_W1, "w1"), (S_W2, "w2"), (S_B1, "b1"), (S_B2, "b2")):
        a(f"s_mov_b64 s[{s}:{s+1}], s[{64 + KA[n]//4}:{65 + KA[n]//4}]")
    a(f"s_mov_b64 s[{sOUT}:{sOUT+1}], s[84:85]\ns_mov_b64 s[{S_DBG}:{S_DBG+1}], s[86:87]\ns_mov_b64 s[{S_WS}:{S_WS+1}], s[88:89]")
    if C.stamp:
        a(f"v_writelane_b32 v6, s96, 0\nv_writelane_b32 v6, s98, 32"); STAMPS.append("start")
    for s, n in ((S_WS, "ws"), (S_WO, "wo"), (S_W1, "w1"), (S_W2, "w2"), (S_B1, "b1"), (S_B2, "b2"), (S_DBG, "dbg"), (S_XD, "x")):
        a(f"s_mov_b32 s{s+2}, {hex(SZ[n])}\ns_mov_b32 s{s+3}, 0x00020000")
    a(f"s_add_u32 s{S_XD}, s{S_WS}, {WS_X2}\ns_addc_u32 s{S_XD+1}, s{S_WS+1}, 0")
    a(f"v_lshlrev_b32 v{vL16}, 4, v{vL}")
    a(f"s_lshl_b32 s{sXO}, s{sI}, 16\ns_lshl_b32 s{T}, s{sJ}, 7\ns_add_u32 s{sXO}, s{sXO}, s{T}")
    a(f"s_mov_b32 s{sLOC}, 0\ns_mov_b32 s{sL}, 0\ns_mov_b32 s{sLB}, 0\ns_mov_b32 s{sFL}, {WS_FLAG}")
    a(f"v_lshrrev_b32 v40, 3, v{vL}\nv_bfe_u32 v41, v{vL}, 4, 1\nv_lshlrev_b32 v41, 2, v41\nv_and_b32 v42, 7, v{vL}\nv_xor_b32 v41, v41, v42\nv_lshlrev_b32 v41, 4, v41")
    a(f"v_mul_u32_u24 v{vWQ}, 3072, v40\nv_add_u32 v{vWQ}, v{vWQ}, v41")
    a(f"s_lshl_b32 s{sVW}, s{sW}, 10\ns_add_u32 s{sVW}, s{sVW}, {V}")
    a(f"v_bfe_u32 v41, v{vN}, 1, 1\nv_bfe_u32 v42, v{vN}, 2, 1\nv_and_b32 v{vN}, 0x39, v{vN}\nv_lshl_add_u32 v{vN}, v41, 2, v{vN}\nv_lshl_add_u32 v{vN}, v42, 1, v{vN}")
    a(f"v_lshlrev_b32 v{vXO}, 10, v{vN}\nv_lshl_add_u32 v{vXO}, v{vC}, 4, v{vXO}")

def prologue2(a):
    a(f"v_lshrrev_b32 v42, 2, v{vL}\nv_and_b32 v43, 3, v{vL}\nv_lshlrev_b32 v43, 4, v43")
    a(f"v_lshl_add_u32 v{vF2}, v42, 12, v43")
    a(f"v_lshrrev_b32 v42, 5, v{vL}\nv_lshlrev_b32 v42, 3, v42\nv_bfe_u32 v43, v{vL}, 2, 2\nv_add_u32 v42, v42, v43\nv_lshlrev_b32 v{vTRF}, 6, v42")
    a(f"v_bfe_u32 v43, v{vL}, 4, 1\nv_lshl_add_u32 v{vTRF}, v43, 5, v{vTRF}\nv_and_b32 v43, 3, v{vL}\nv_lshl_add_u32 v{vTRF}, v43, 3, v{vTRF}")
    a(f"v_add_u32 v{vTRF}, s{sVW}, v{vTRF}\nv_add_u32 v{vTRF}, {SVO}, v{vTRF}")
    a(f"s_lshr_b32 s{sW2S}, s{sW}, 1\ns_mul_i32 s{sW2S}, s{sW2S}, {448*4096}\ns_lshl_b32 s{T}, s{sI}, 7\ns_add_u32 s{sW2S}, s{sW2S}, s{T}")
    a(f"s_and_b32 s{T}, s{sW}, 1\ns_lshl_b32 s{T}, s{T}, 6\ns_add_u32 s{sW2S}, s{sW2S}, s{T}")

def tlb_touch(a):
    if not C.tlb: return
    a(f"s_sub_u32 s{T+4}, s{sW}, 4\ns_lshl_b32 s{T}, s{T+4}, 21")
    for k in range(4): a(f"s_add_u32 s{T+1}, s{T}, {(k & 1)*8*MB + (k >> 1)*LSTRIDE}\ns_buffer_load_dword s86, s[{S_WS}:{S_WS+3}], s{T+1}")
    for srd in (S_W1, S_W2): a(f"s_buffer_load_dword s86, s[{srd}:{srd+3}], s{T}")
    a(f"s_lshl_b32 s{T}, s{T+4}, 19\ns_load_dword s86, s[{sOUT}:{sOUT+1}], s{T}")
    a(f"s_buffer_load_dword s86, s[{S_WO}:{S_WO+3}], 0\ns_buffer_load_dword s86, s[{S_B1}:{S_B1+3}], 0\ns_buffer_load_dword s86, s[{S_B2}:{S_B2+3}], 0")

def init_sync(a, w=3):
    def body():
        a("v_mov_b32 v44, 0\nv_mov_b32 v45, 0\nv_mov_b32 v46, 0\nv_mov_b32 v47, 0")
        a(f"s_lshl_b32 s{T}, s2, 10\ns_add_u32 s{T}, s{T}, {WS_ST}\ns_add_u32 s{T+1}, s{T}, {LSTRIDE}")
        a(f"buffer_store_dwordx4 v[44:47], v{vL16}, s[{S_WS}:{S_WS+3}], s{T} offen sc1")
        a(f"buffer_store_dwordx4 v[44:47], v{vL16}, s[{S_WS}:{S_WS+3}], s{T+1} offen sc1")
        a(f"s_lshl_b32 s{T}, s2, 9\ns_add_u32 s{T}, s{T}, {WS_FLAG}\ns_mov_b32 exec_hi, 0")
        a(f"buffer_store_dwordx4 v[44:47], v{vL16}, s[{S_WS}:{S_WS+3}], s{T} offen sc1")
        if C.sent:
            a(f"s_mov_b64 exec, -1\nv_mov_b32 v100, -1\nv_mov_b32 v101, -1\nv_mov_b32 v102, -1\nv_mov_b32 v103, -1\ns_lshl_b32 s{T}, s2, 13\ns_add_u32 s{T}, s{T}, {WS_O}\ns_add_u32 s{T+1}, s{T}, 4096")
            for k in range(8): a(f"buffer_store_dwordx4 v[100:103], v{vL16}, s[{S_WS}:{S_WS+3}], s{T + (k >> 2)} offen offset:{(k & 3)*1024} sc1")
        a(f"s_getreg_b32 s{T+1}, hwreg(HW_REG_XCC_ID, 0, 4)\ns_mov_b64 exec, 1\nv_mov_b32 v48, s{T+1}")
        a(f"s_lshl_b32 s{T}, s{sI}, 3\ns_add_u32 s{T}, s{T}, s{sJ}\ns_lshl_b32 s{T}, s{T}, 4\ns_add_u32 s{T}, s{T}, {WS_XT}")
        a(f"buffer_store_dword v48, v{vL16}, s[{S_WS}:{S_WS+3}], s{T} offen sc1")
        a("s_mov_b64 exec, -1")
    if_wave_eq(a, w, body)

def init_arrive(a, w=3, pre="s_nop 0", tv=TV):
    L = a.label()
    a(f"s_cmp_lg_u32 s{sW}, {w}\ns_cbranch_scc1 {L}\n{pre}")
    a(f"v_mov_b32 v{tv}, 1\nv_mov_b32 v{tv+1}, 0\ns_and_b32 s{T}, s2, 63\ns_lshl_b32 s{T}, s{T}, 2\ns_mov_b64 exec, 1")
    a(f"buffer_atomic_add v{tv}, v{tv+1}, s[{S_DBG}:{S_DBG+3}], s{T} offen sc1")
    a(f"s_mov_b64 exec, -1\n{L}:")

def wait_init(a, vaddr):
    a(f"s_mov_b32 s{T+1}, {SPIN}")
    LP = a.label(); LD = a.label()
    a(f"{LP}:\nv_cmp_gt_u32 vcc, 4, v{TV+2}\ns_cbranch_vccz {LD}")
    a(f"buffer_load_dword v{TV+2}, v{vaddr}, s[{S_DBG}:{S_DBG+3}], 0 offen sc1\ns_waitcnt vmcnt(0)")
    a(f"s_sub_u32 s{T+1}, s{T+1}, 1\ns_cmp_lg_u32 s{T+1}, 0\ns_cbranch_scc1 {LP}")
    a(f"{LD}:\ns_mov_b64 exec, -1")

class VM:
    def __init__(self): self.ops = []
    def add(self, tag, n=1): self.ops += [tag]*n
    def need(self, *tags):
        last = max(k for k, t in enumerate(self.ops) if t in tags)
        return min(63, len(self.ops) - 1 - last)

vXD = 15
TAB = V + 5*8192
WS_ST2 = 12*MB + 512*1024
WS_CS = 13*MB

def x_dma(a, qs=range(8), fl="sc1"):
    X1 = 81
    a(f"s_lshl_b32 s{T}, s{sI}, 16\n" + (f"s_add_u32 s{T+1}, s{sW}, s{sJ}\ns_and_b32 s{T+1}, s{T+1}, 7\ns_lshl_b32 s{T+1}, s{T+1}, 10" if C.xrot else f"s_lshl_b32 s{T+1}, s{sW}, 10"))
    for q in qs:
        if not C.qrot:
            a(f"s_add_u32 m0, s{T+1}, {E + q*8192 - q*128}\ns_nop 0\nbuffer_load_dwordx4 v{vXD}, s[{S_XS}:{S_XS+3}], s{T} offen offset:{128*q} {fl} lds")
            continue
        if q % 2 == 0 or q == qs[0]: a(f"s_add_u32 s{X1}, s{sR2}, {q & 6}\ns_and_b32 s{X1}, s{X1}, 7\ns_lshl_b32 s{X1}, s{X1}, 7\ns_add_u32 s{X1}, s{X1}, s{T}")
        a(f"s_add_u32 m0, s{T+1}, {E + q*8192 - (q & 1)*128}\ns_nop 0")
        a(f"buffer_load_dwordx4 v{vXD}, s[{S_XS}:{S_XS+3}], s{X1} offen offset:{128*(q & 1)} {fl} lds")

def split_hi_lo(a, src, hi2, lo2, t, neg=False):
    if neg: a(f"v_sub_f32 v{src}, 0, v{src}")
    a(f"v_cvt_pk_bf16_f32 v{t}, v{src}, v{src}\nv_and_b32 v{t}, 0xffff0000, v{t}\nv_sub_f32 v{t+1}, v{src}, v{t}")

def own_stats(a, D, A, MUo, Ro, ADo):
    a(f"s_add_u32 s{T}, s{sW}, s{sJ}\ns_and_b32 s{T}, s{T}, 7" if C.xrot else f"s_mov_b32 s{T}, s{sW}")
    a(f"s_lshl_b32 s{T+1}, s{T}, 10\nv_add_u32 v{ADo}, s{T+1}, v{vL16}")
    for q in range(8): a(f"ds_read_b128 v[{D+4*q}:{D+4*q+3}], v{ADo} offset:{q*8192}")
    for r in range(4): a(f"v_mov_b32 v{A+r}, 0")
    a(f"v_mov_b32 v{A+4}, 0x3f803f80\ns_lshl_b32 s{T}, s{T}, 5\ns_add_u32 s{T}, s{T}, {TAB}\nv_lshrrev_b32 v{ADo}, 3, v{vL}\nv_lshlrev_b32 v{ADo}, 2, v{ADo}\nv_add_u32 v{ADo}, s{T}, v{ADo}")
    for q in range(8):
        a(f"s_waitcnt lgkmcnt({7-q})")
        for e in (0, 2):
            r = D+4*q+e
            a(f"v_dot2c_f32_bf16 v{A}, v{r}, v{A+4}\nv_dot2c_f32_bf16 v{A+2}, v{r}, v{r}\nv_dot2c_f32_bf16 v{A+1}, v{r+1}, v{A+4}\nv_dot2c_f32_bf16 v{A+3}, v{r+1}, v{r+1}")
    a(f"s_nop 2\nv_add_f32 v{MUo}, v{A}, v{A+1}\nv_add_f32 v{Ro}, v{A+2}, v{A+3}")
    dpp_red8(a, [MUo, Ro])
    a(f"v_mul_f32 v{MUo}, {f2u(1/512)}, v{MUo}\nv_mul_f32 v{Ro}, {f2u(1/512)}, v{Ro}")
    a(f"v_fma_f32 v{Ro}, -v{MUo}, v{MUo}, v{Ro}\nv_max_f32 v{Ro}, 0, v{Ro}\nv_add_f32 v{Ro}, {f2u(1e-5)}, v{Ro}\nv_rsq_f32 v{Ro}, v{Ro}")

def layer0_helpers(a):
    LJ = "L_p1_join"; LB = a.label()
    a(f"s_cmp_ge_u32 s{sW}, 6\ns_cbranch_scc1 {LB}")
    src, dst = T+2, T+3
    a(f"s_sub_u32 s{dst}, s{sW}, 4\ns_mul_i32 s{src}, s{dst}, {32*3072}\ns_lshl_b32 s{T}, s{sJ}, 7\ns_add_u32 s{src}, s{src}, s{T}")
    a(f"s_lshl_b32 s{dst}, s{dst}, 12\ns_add_u32 s{dst}, s{dst}, {V}")
    vm = VM()
    def unit(u):
        seg = qkv_row(a, T+1, src, u)
        for p in range(4):
            a(f"s_add_u32 m0, s{dst}, {qslot(u)*8192 + p*1024}\ns_add_u32 s{T}, s{T+1}, {seg + p*8*3072}")
            a(f"buffer_load_dwordx4 v{vWQ}, s[{S_QKV}:{S_QKV+3}], s{T} offen lds")
        vm.add(("w", u), 4)
    for u in range(C.h0first): unit(u)
    a(f"s_waitcnt vmcnt({4*C.h0first})")
    own_stats(a, 48, 80, 42, 44, 40)
    issued = C.h0first
    for u in range(C.h0second): unit(issued); issued += 1
    sched = [int(c) for c in C.hs0]
    for s in range(12):
        a(f"s_waitcnt vmcnt({vm.need(('w', 2*s+1))})" + (" lgkmcnt(0)" if s == 8 else "") + "\ns_barrier")
        if s == 7: a("ds_write_b32 v40, v42\nds_write_b32 v40, v44 offset:256")
        for _ in range(sched[s]):
            assert issued < 2*s + 12 and issued < 24
            unit(issued); issued += 1
        assert s == 11 or issued >= 2*s + 4
    assert issued == 24
    a(f"s_barrier\ns_branch {LJ}")
    a(f"{LB}:")
    init_sync(a, 7)
    L4 = a.label()
    a(f"s_waitcnt vmcnt({12 if C.sent else 4})\ns_cmp_eq_u32 s{sW}, 7\ns_cbranch_scc1 {L4}\ns_waitcnt vmcnt(0)\n{L4}:")
    def w1touch(mask):
        a(f"s_lshl_b32 s{T}, s2, 1\ns_add_u32 s{T}, s{T}, s{sW}\ns_sub_u32 s{T}, s{T}, 6\ns_mul_i32 s{T+1}, s{T}, {112*128}\nv_min_u32 v49, 55, v{vL}\nv_lshlrev_b32 v49, 7, v49")
        if mask & 1: a(f"buffer_load_dword v141, v49, s[{S_W1}:{S_W1+3}], s{T+1} offen")
        if mask & 2: a(f"s_add_u32 s{T+1}, s{T+1}, {56*128}\nbuffer_load_dword v142, v49, s[{S_W1}:{S_W1+3}], s{T+1} offen")
        if mask & 4: a(f"s_lshl_b32 s{T+1}, s{T}, 10\nv_and_b32 v49, 0x380, v49\nbuffer_load_dword v143, v49, s[{S_WO}:{S_WO+3}], s{T+1} offen")
    if C.w1e == -1: w1touch(7 & ~C.w1mask)
    own_stats(a, 52, 84, 42, 43, 40)
    for s in range(12):
        if s == 8: a("s_waitcnt lgkmcnt(0)")
        a("s_barrier")
        if s == 7: a("ds_write_b32 v40, v42\nds_write_b32 v40, v43 offset:256")
        if s == C.arrs: init_arrive(a, 7, pre="s_waitcnt vmcnt(0)")
        if s == C.dbgs: a(f"v_lshlrev_b32 v41, 2, v{vL}\nbuffer_load_dword v{TV+2}, v41, s[{S_DBG}:{S_DBG+3}], 0 offen sc1")
        if s == C.w1t: w1touch(C.w1mask)
        if s == C.w1e: w1touch(7 & ~C.w1mask)
    assert C.w1t >= C.dbgs and C.w1e < C.dbgs
    a(f"s_waitcnt vmcnt({bin(C.w1mask).count('1') if C.w1t < 12 else 0})")
    if_wave_eq(a, 6, lambda: wait_init(a, 41))
    a("s_barrier")
    def pub():
        if C.lf: kl_publish(a)
        publish(a, "KV", sJ)
    if_wave_eq(a, 6, pub)
    a(f"s_branch {LJ}")

def helper_setup(a):
    src, dst = T+2, T+3
    a(f"s_sub_u32 s{dst}, s{sW}, 4\ns_mul_i32 s{src}, s{dst}, {16*3072}\ns_lshl_b32 s{T}, s{sJ}, 7\ns_add_u32 s{src}, s{src}, s{T}")
    a(f"s_lshl_b32 s{T}, s{dst}, 4\nv_lshrrev_b32 v40, 2, v{vL}\nv_add_u32 v40, s{T}, v40")
    a(f"s_lshl_b32 s{dst}, s{dst}, 11\ns_add_u32 s{dst}, s{dst}, {V}")

def helper_unit(a, u, vm):
    seg = qkv_row(a, T+1, T+2, u)
    for p in range(2):
        a(f"s_add_u32 m0, s{T+3}, {qslot(u)*8192 + p*1024}\ns_add_u32 s{T}, s{T+1}, {seg + p*8*3072}")
        a(f"buffer_load_dwordx4 v{vWQ}, s[{S_QKV}:{S_QKV+3}], s{T} offen lds")
    vm.add(("w", u), 2)

def helper_loop(a, layer, vm, issued, sched, LJ):
    ROW, S1, S2, G = 40, 42, 44, 48
    first = issued
    for s in range(12):
        tags = [t for t in [("x", s), ("w", 2*s+1)] if t in vm.ops]
        if s == 6 and layer == 1: tags.append("g")
        if tags: a(f"s_waitcnt vmcnt({vm.need(*tags)})")
        if s == 8: a("s_waitcnt lgkmcnt(0)")
        a("s_barrier")
        if s == 7: a(f"ds_write_b32 v{ROW}, v{S1}\nds_write_b32 v{ROW}, v{S2} offset:256")
        for _ in range(sched[s]):
            assert issued < 2*s + 12 and issued < 24
            helper_unit(a, issued, vm); issued += 1
        assert s == 11 or issued >= 2*s + 4
        if s == 6:
            if layer == 1: a(f"v_add_f32 v{S1}, v{G}, v{G+2}\nv_add_f32 v{S2}, v{G+1}, v{G+3}")
            for pat in ("quad_perm:[1,0,3,2]", "quad_perm:[2,3,0,1]"):
                a("s_nop 1")
                for r in (S1, S2): a(f"v_add_f32_dpp v{r}, v{r}, v{r} {pat} row_mask:0xf bank_mask:0xf")
            a(f"v_mul_f32 v{S1}, {f2u(1/512)}, v{S1}\nv_mul_f32 v{S2}, {f2u(1/512)}, v{S2}")
            a(f"v_fma_f32 v{S2}, -v{S1}, v{S1}, v{S2}\nv_max_f32 v{S2}, 0, v{S2}\nv_add_f32 v{S2}, {f2u(1e-5)}, v{S2}\nv_rsq_f32 v{S2}, v{S2}")
            a(f"v_lshlrev_b32 v{ROW}, 2, v{ROW}\nv_add_u32 v{ROW}, {TAB}, v{ROW}")
        if s == 8 and layer == 0:
            a(f"v_lshlrev_b32 v46, 2, v{vL}\nbuffer_load_dword v{TV+2}, v46, s[{S_DBG}:{S_DBG+3}], 0 offen sc1"); vm.add("dbg")
        if s == C.w1t and layer == 0:
            a(f"s_lshl_b32 s{T}, s2, 2\ns_add_u32 s{T}, s{T}, s{sW}\ns_sub_u32 s{T}, s{T}, 4\ns_mul_i32 s{T+1}, s{T}, {56*128}\nv_min_u32 v47, 55, v{vL}\nv_lshlrev_b32 v47, 7, v47")
            a(f"buffer_load_dword v142, v47, s[{S_W1}:{S_W1+3}], s{T+1} offen")
            a(f"s_lshl_b32 s{T+1}, s{T}, 9\nv_and_b32 v47, 0x180, v47\nbuffer_load_dword v143, v47, s[{S_WO}:{S_WO+3}], s{T+1} offen")
            vm.add("t", 2)
    assert issued == 24
    if layer == 0: a(f"s_waitcnt vmcnt({vm.need('dbg')})")
    def w4():
        if layer == 0: wait_init(a, 46)
        if C.lf: kl_publish(a)
        publish(a, "KV", sJ)
    if C.pub12:
        if layer == 0: if_wave_eq(a, 4, lambda: wait_init(a, 46))
        a("s_barrier")
        def w4b():
            if C.lf: kl_publish(a)
            publish(a, "KV", sJ)
        if_wave_eq(a, 4, w4b)
    else:
        if_wave_eq(a, 4, w4)
        a("s_barrier")
    a(f"s_branch {LJ}")

def x_start(a):
    a(f"s_mov_b32 s{sFL}, {WS_FLAG + 512*128}\ns_barrier")
    stamp(a, "p1.polled")
    if C.xp < 8:
        x_dma(a, range(C.xp)); a("s_barrier"); x_dma(a, range(C.xp, 8))
    else: x_dma(a)

def phase1(a):
    LC = "L_p1_cons"; LJ = "L_p1_join"
    a(f"s_cmp_lt_u32 s{sW}, 4\ns_cbranch_scc1 {LC}")
    helper_setup(a)
    a(f"v_and_b32 v41, 3, v{vL}\nv_lshlrev_b32 v41, 9, v41\nv_lshl_add_u32 v41, v40, 3, v41")
    if_wave_eq(a, 4, lambda: poll(a, "X", sI, 8))
    keep = C.stamp; C.stamp = False; x_start(a); C.stamp = keep
    a(f"s_lshl_b32 s{T}, s{sI}, 12\ns_add_u32 s{T}, s{T}, {WS_ST2}")
    a(f"buffer_load_dwordx2 v[48:49], v41, s[{S_WS}:{S_WS+3}], s{T} offen sc1\nbuffer_load_dwordx2 v[50:51], v41, s[{S_WS}:{S_WS+3}], s{T} offen offset:2048 sc1")
    vm = VM()
    for q in range(8): vm.add(("x", q))
    vm.add("g", 2)
    helper_loop(a, 1, vm, sum(int(c) for c in C.sch2), [int(c) for c in C.hs1], LJ)
    a(f"{LC}:")
    tt, ch = T+2, T+3
    a(f"s_and_b32 s{tt}, s{sW}, 1\ns_lshr_b32 s{ch}, s{sW}, 1")
    XA = 40
    a(f"v_and_b32 v44, 31, v{vL}\ns_lshl_b32 s{T}, s{tt}, 5\nv_add_u32 v44, s{T}, v44\nv_lshlrev_b32 v38, 2, v44\nv_add_u32 v38, {TAB}, v38")
    a(f"v_bfe_u32 v45, v{vL}, 1, 3\nv_lshrrev_b32 v46, 5, v{vL}\nv_xor_b32 v45, v45, v46\nv_lshlrev_b32 v45, 4, v45\nv_lshl_add_u32 v{XA}, v44, 7, v45")
    for m in range(1, 4): a(f"v_xor_b32 v{XA+m}, {32*m}, v{XA}")
    a(f"s_lshl_b32 s{T}, s{tt}, 7\ns_add_u32 s{T}, s{T}, {TAB+256}\nv_lshlrev_b32 v37, 4, v46\nv_add_u32 v37, s{T}, v37")
    WL, WH = 44, 45
    tr_addr(a, WL, f"s{ch}", False, 46, 47)
    a(f"v_add_u32 v{WL}, {V}, v{WL}\nv_add_u32 v{WH}, {6*8192}, v{WL}")
    AK, AV, AQ = 48, 64, 80
    CS, SEL = 24, 32
    SIX = 21
    a(f"v_lshrrev_b32 v46, 4, v{vL}\nv_xor_b32 v46, v46, v{vL}\nv_and_b32 v46, 2, v46\nv_and_b32 v47, 12, v{vL}\nv_or_b32 v46, v46, v47\nv_mov_b32 v47, 0x3f803f80")
    a(f"v_cmp_eq_u32 vcc, 0, v46\ns_nop 1\nv_cndmask_b32 v{SEL}, 0, v47, vcc\nv_cmp_eq_u32 vcc, 4, v46\nv_mov_b32 v{SEL+1}, v{SEL}\ns_nop 0\nv_cndmask_b32 v{SEL+2}, 0, v47, vcc\nv_mov_b32 v{SEL+3}, v{SEL+2}")
    a(f"v_and_b32 v46, 1, v{vL}\nv_mul_u32_u24 v46, 0xaaaa, v46\nv_or_b32 v{SIX}, 0x4444, v46\nv_lshl_add_u32 v{SIX}, v{SIX}, 16, v{SIX}")
    csoff = T+8
    a(f"s_lshl_b32 s{csoff}, s2, 2\ns_add_u32 s{csoff}, s{csoff}, s{sW}\ns_lshl_b32 s{csoff}, s{csoff}, 10\ns_add_u32 s{csoff}, s{csoff}, {WS_CS}")
    for r in range(8): a(f"v_mov_b32 v{CS+r}, 0")
    def fr(buf, n):
        if buf == 0: return ("a", n)
        return ("a", 64+n) if n < 48 else ("v", 96 + n - 48)
    def R(buf, n, w):
        p, b = fr(buf, n); return f"{p}[{b}:{b+w-1}]"
    def wslot(u):
        s = qslot(u)
        return (WL, s*8192) if s < 6 else (WH, (s-6)*8192)
    def rd(s):
        buf = s & 1; out = []
        if s < 8:
            for t in range(4):
                out.append(f"ds_read_b128 {R(buf, 12*t, 4)}, v{XA+t} offset:{8192*s}")
                for seg in range(2):
                    va, off = wslot(2*s+seg)
                    for e in range(2):
                        out.append(f"ds_read_b64_tr_b16 {R(buf, 12*t+4+4*seg+2*e, 2)}, v{va} offset:{off + t*2048 + e*512}")
        else:
            for t in range(8):
                out.append(f"ds_read_b128 {R(buf, 16*(t>>1)+4*(t&1), 4)}, v{XA+(t&3)} offset:{16384*(s-8) + (t>>2)*8192}")
                va, off = wslot(2*s + (t >> 2))
                for e in range(2):
                    out.append(f"ds_read_b64_tr_b16 {R(buf, 16*(t>>1)+8+4*(t&1)+2*e, 2)}, v{va} offset:{off + (t&3)*2048 + e*512}")
        return out
    def mf(s):
        buf = s & 1; out = []
        if s < 8:
            for t in range(4):
                z = s == 0 and t == 0
                out.append(f"v_mfma_f32_32x32x16_bf16 v[{AK}:{AK+15}], {R(buf, 12*t+4, 4)}, {R(buf, 12*t, 4)}, " + ("0" if z else f"v[{AK}:{AK+15}]"))
                out.append(f"v_mfma_f32_32x32x16_bf16 v[{AV}:{AV+15}], {R(buf, 12*t, 4)}, {R(buf, 12*t+8, 4)}, " + ("0" if z else f"v[{AV}:{AV+15}]"))
        else:
            for t in range(8):
                out.append(f"v_mfma_f32_32x32x16_bf16 v[{AQ}:{AQ+15}], {R(buf, 16*(t>>1)+8+4*(t&1), 4)}, {R(buf, 16*(t>>1)+4*(t&1), 4)}, " + ("0" if s == 8 and t == 0 else f"v[{AQ}:{AQ+15}]"))
        return out
    OOL = []
    def csum(s):
        buf = s & 1
        L = a.label("Lcs"); LR = a.label("Lcr")
        a(f"s_cbranch_vccnz {L}\n{LR}:")
        o = [f"{L}:"]
        if s < 8:
            for t in range(4): o.append(f"v_smfmac_f32_16x16x64_bf16 v[{CS}:{CS+3}], v[{SEL}:{SEL+3}], {R(buf, 12*t+4, 8)}, v{SIX}")
            if s == 6: o += ["ds_write_b32 v126, v124", "ds_write_b32 v126, v125 offset:256"]
            if s == 7: o += ["s_nop 7", f"v_add_f32 v{ST4}, v{CS}, v{CS+1}", f"v_add_f32 v{ST4+1}, v{CS+2}, v{CS+3}"]
        else:
            for p in range(4): o.append(f"v_smfmac_f32_16x16x64_bf16 v[{CS+4}:{CS+7}], v[{SEL}:{SEL+3}], {R(buf, 16*p+8, 8)}, v{SIX}")
            if s == 11: o += ["s_nop 7", f"v_add_f32 v{CS+4}, v{CS+4}, v{CS+5}", f"v_add_f32 v{CS+6}, v{CS+6}, v{CS+7}", f"v_add_f32 v{ST4+2}, v{CS+4}, v{CS+6}"]
        o.append(f"s_branch {LR}")
        OOL.append("\n".join(o))
    ST4 = 16
    def inter(m, r, per):
        per = max(per, -(-len(r)//len(m)))
        for x in range(len(m)):
            a(m[x])
            for y in r[x*per:(x+1)*per]: a(y)
    a(f"s_lshl_b32 s{T+4}, s{sI}, 1\ns_add_u32 s{T+4}, s{T+4}, s{tt}")
    a(f"s_lshl_b32 s{T+5}, s{sJ}, 2\ns_lshl_b32 s{T+6}, s{ch}, 1\ns_add_u32 s{T+5}, s{T+5}, s{T+6}")
    a(f"s_lshl_b32 s{T+5}, s{T+5}, 6\ns_add_u32 s{T+5}, s{T+5}, s{T+4}")
    a(f"s_lshl_b32 s{T+4}, s{T+5}, 11\ns_add_u32 s{T+4}, s{T+4}, s{sLB}\ns_add_u32 s{T+5}, s{T+4}, 131072")
    assert WS_KV == 0
    a(f"v_and_b32 v46, 0x33, v{vL}\nv_bfe_u32 v47, v{vL}, 2, 1\nv_lshl_add_u32 v46, v47, 3, v46\nv_bfe_u32 v47, v{vL}, 3, 1\nv_lshl_add_u32 v46, v47, 2, v46\nv_lshlrev_b32 v46, 4, v46")
    a(f"v_bfe_u32 v39, v{vL}, 4, 1\nv_lshlrev_b32 v47, 17, v39\nv_lshrrev_b32 v39, 5, v{vL}\nv_lshl_add_u32 v47, v39, 8, v47\nv_and_b32 v39, 15, v{vL}\nv_lshl_add_u32 v47, v39, 4, v47")
    Lx = a.label()
    a(f"s_cmp_eq_u32 s{sL}, 0\ns_cbranch_scc1 L_p1_stats0")
    x_start(a)
    a(f"{Lx}:")
    b = Asm(); b.n = 91000
    b("L_p1_stats0:\ns_waitcnt vmcnt(0)")
    stamp(b, "p1.xarr")
    own_stats(b, 48, 116, 124, 125, 126)
    b(f"s_branch {Lx}")
    OOL.append("\n".join(b.L))
    a(f"buffer_load_dwordx4 v[{ST4}:{ST4+3}], v{vL16}, s[{S_WS}:{S_WS+3}], s{csoff} offen sc1")
    a("s_waitcnt vmcnt(8)\ns_barrier")
    stamp(a, "p1.b0")
    for x in rd(0): a(x)
    P, RB, MU, RR = 112, 128, 36, 39
    def aug_w(seg, d):
        return [f"v_cvt_pk_bf16_f32 v{d}, v{ST4+seg}, v{ST4+seg}", f"v_and_b32 v{d+1}, 0xffff0000, v{d}", f"v_sub_f32 v{d+1}, v{ST4+seg}, v{d+1}", f"v_cvt_pk_bf16_f32 v{d+1}, v{d+1}, v{d+1}"]
    XM = 22
    a(f"s_cmp_eq_u32 s{sL}, 0\ns_cselect_b64 vcc, -1, 0")
    def waitbar(s):
        vmw = f"vmcnt({7-s}) " if s < 7 else ("vmcnt(0) " if s == 7 or (s == 10 and not C.pub12) else "")
        a(f"s_waitcnt {vmw}lgkmcnt(0)\ns_barrier")
        stamp(a, f"zq.{s+1:02d}")
    waitbar(0)
    for s in range(12):
        m = mf(s)
        r = rd(s+1) if s < 11 else []
        csum(s)
        if s == 7:
            tab = [f"ds_read_b32 v{MU}, v38", f"ds_read_b32 v{RR}, v38 offset:256"] + [f"ds_read_b128 v[{RB+4*k}:{RB+4*k+3}], v37 offset:{32*k}" for k in range(4)]
            mk = m[0::2]; mv = m[1::2]
            aw = aug_w(0, 24) + aug_w(1, 26)
            xm = [f"v_sub_f32 v{MU}, 0, v{MU}", f"v_cvt_pk_bf16_f32 v{XM}, v{MU}, v{MU}", f"v_and_b32 v{XM+1}, 0xffff0000, v{XM}", f"v_sub_f32 v{XM+1}, v{MU}, v{XM+1}", f"v_cvt_pk_bf16_f32 v{XM}, v{MU}, v{XM+1}", f"v_mov_b32 v{XM+1}, v{XM}"]
            a(mk[0]); [a(x) for x in tab]
            a(mk[1]); [a(x) for x in aw[:4] + r[:3]]
            a(mk[2]); [a(x) for x in aw[4:] + r[3:6]]
            a(mk[3]); a("s_waitcnt lgkmcnt(10)"); [a(x) for x in xm]
            a(mv[0]); [a(x) for x in r[6:9]]
            a(f"v_mfma_f32_32x32x8_bf16 v[{AK}:{AK+15}], v[24:25], v[{XM}:{XM+1}], v[{AK}:{AK+15}]"); [a(x) for x in r[9:14]]
            a(mv[1]); [a(x) for x in r[14:19]]
            a(mv[2]); [a(x) for x in r[19:24]]
            a(mv[3])
            for k in range(10): a(f"v_mul_f32 v{AK+k}, v{AK+k}, v{RR}")
            a(f"v_mfma_f32_32x32x8_bf16 v[{AV}:{AV+15}], v[{XM}:{XM+1}], v[26:27], v[{AV}:{AV+15}]")
            for k in range(10, 16): a(f"v_mul_f32 v{AK+k}, v{AK+k}, v{RR}")
            for k in range(8): a(f"v_cvt_pk_bf16_f32 v{P+k}, v{AK+2*k}, v{AK+2*k+1}")
            a(f"buffer_store_dwordx4 v[{P}:{P+3}], v46, s[{S_WS}:{S_WS+3}], s{T+4} offen sc1")
            a(f"buffer_store_dwordx4 v[{P+4}:{P+7}], v46, s[{S_WS}:{S_WS+3}], s{T+5} offen sc1")
            a("s_waitcnt lgkmcnt(15)")
            for k in range(16): a(f"v_mul_f32 v{AV+k}, v{AV+k}, v{RB+k}")
            for k in range(8): a(f"v_cvt_pk_bf16_f32 v{P+8+k}, v{AV+2*k}, v{AV+2*k+1}")
            a(f"buffer_store_dwordx4 v[{P+8}:{P+11}], v47, s[{S_WS}:{S_WS+3}], s{T+4} offen offset:1024 sc1")
            a(f"buffer_store_dwordx4 v[{P+12}:{P+15}], v47, s[{S_WS}:{S_WS+3}], s{T+4} offen offset:1536 sc1")
            stamp(a, "p1.kvst")
            waitbar(8)
        elif s < 11:
            e = C.early
            per = -(-len(r)//min(e, 5))
            for x in range(8):
                a(m[x])
                for y in r[x*per:(x+1)*per]: a(y)
                if x == e: waitbar(s+1) if s < 10 else a("s_waitcnt vmcnt(0) lgkmcnt(0)\ns_barrier")
        else:
            aw = aug_w(2, 24)
            a(m[0])
            a(f"s_lshl_b32 s{T+6}, s{ch}, 12\ns_lshl_b32 s{T+7}, s{tt}, 10\ns_add_u32 s{T+6}, s{T+6}, s{T+7}\ns_add_u32 s{T+6}, s{T+6}, {QX}\nv_add_u32 v46, s{T+6}, v{vL16}")
            a(m[1]); [a(x) for x in aw]
            a(f"v_mul_f32 v{RR}, {f2u(0.25*1.4426950408889634)}, v{RR}")
            for x in m[2:]: a(x)
    stamp(a, "p1.mfma")
    a("s_nop 9")
    a(f"v_mfma_f32_32x32x8_bf16 v[{AQ}:{AQ+15}], v[24:25], v[{XM}:{XM+1}], v[{AQ}:{AQ+15}]")
    a(f"buffer_store_dwordx4 v[{ST4}:{ST4+3}], v{vL16}, s[{S_WS}:{S_WS+3}], s{csoff} offen sc1")
    a("s_nop 10")
    for r in range(16): a(f"v_mul_f32 v{AQ+r}, v{AQ+r}, v{RR}")
    for r in range(8): a(f"v_cvt_pk_bf16_f32 v{P+r}, v{AQ+2*r}, v{AQ+2*r+1}")
    a(f"ds_write_b128 v46, v[{P}:{P+3}]\nds_write_b128 v46, v[{P+4}:{P+7}] offset:2048")
    a(f"{LJ}:")
    return OOL

hh, kh, head, kvs, w1s, w1c, wos, tch, ring, kro, kfa = T+2, T+3, T+4, T+5, T+6, T+7, T+8, T+9, T+10, T+11, T+12
TD, VA_, IDX, TA, vF1, vWO, SGA, Q, S, O, KR, VR = 16, 18, 19, 20, 21, 22, 23, 24, [32, 48], [80, 64], 96, 112
ost, osrc, cgive, ctake = 88, 90, 92, 93
CST = E + 33792
CMB = E + 37888

def wo_reads():
    o = []
    for t in range(8):
        for y in range(2):
            b = 80 + 8*t + 4*y
            o += [f"ds_read_b64_tr_b16 v[{b}:{b+1}], v{20+2*y} offset:{t*2048}", f"ds_read_b64_tr_b16 v[{b+2}:{b+3}], v{20+2*y} offset:{t*2048+1024}"]
    return o

def phase2(a):
    t0, t1 = S[0], S[0]+1
    a(f"s_and_b32 s{hh}, s{sW}, 3\ns_lshr_b32 s{kh}, s{sW}, 2\ns_lshl_b32 s{head}, s{sJ}, 2\ns_add_u32 s{head}, s{head}, s{hh}")
    a(f"s_lshl_b32 s{kvs}, s{head}, 17\ns_lshl_b32 s{T}, s{kh}, 11\ns_add_u32 s{kvs}, s{kvs}, s{T}\ns_add_u32 s{kvs}, s{kvs}, s{sLB}")
    a(f"s_lshr_b32 s{kro}, s{sI}, 2\ns_lshl_b32 s{kro}, s{kro}, 14")
    a(f"s_lshl_b32 s{ring}, s{sW}, 12")
    Lk = a.label()
    a(f"s_cmp_lt_u32 s{sW}, 4\ns_cbranch_scc1 {Lk}")
    a(f"v_and_b32 v{t0}, 3, v{vL}\nv_cmp_eq_u32 vcc, 1, v{t0}\nv_mov_b32 v{t1}, 0x3f803f80\ns_nop 0\nv_cndmask_b32 v{t0+4}, 0, v{t1}, vcc")
    a(f"v_mov_b32 v{t0+5}, v{t0+4}\nv_mov_b32 v{t0+6}, v{t0+4}\nv_mov_b32 v{t0+7}, v{t0+4}")
    a(f"s_lshl_b32 s{T}, s{sW}, 10\ns_add_u32 s{T}, s{T}, {CST - 4096}\nv_add_u32 v{t0}, s{T}, v{vL16}\nds_write_b128 v{t0}, v[{t0+4}:{t0+7}]")
    if C.lf: if_wave_eq(a, 5, lambda: kl_poll(a))
    else: if_wave_eq(a, 5, lambda: poll(a, "KV", sJ, 32))
    a(f"{Lk}:")
    def post_setup():
        a(f"v_lshrrev_b32 v{t0}, 5, v{vL}\nv_lshlrev_b32 v{VA_}, 8, v{t0}\nv_and_b32 v{t0}, 15, v{vL}\nv_lshl_add_u32 v{VA_}, v{t0}, 4, v{VA_}\nv_add_u32 v{VA_}, s{ring}, v{VA_}\nv_add_u32 v{VA_}, 1024, v{VA_}")
        a(f"v_add_u32 v{t1}, 4, v{t0}\nv_and_b32 v{t1}, 8, v{t1}\nv_lshlrev_b32 v{t1}, 3, v{t1}\nv_add_u32 v{t1}, {CST}, v{t1}")
        a(f"v_and_b32 v{t0}, 11, v{vL}\nv_cmp_eq_u32 vcc, 0, v{t0}\nv_add_u32 v{t0}, 16, v{t1}\ns_nop 0\nv_cndmask_b32 v{t1}, v{t1}, v{t0}, vcc")
        a(f"v_and_b32 v{t0}, 16, v{vL}\nv_cmp_eq_u32 vcc, 0, v{t0}\ns_nop 1\nv_cndmask_b32 v{VA_}, v{t1}, v{VA_}, vcc")
        a(f"v_mov_b32 v{IDX}, 0xdddddddd")
        for r in range(32): a(f"v_mov_b32 v{64+r}, 0")
        if C.now1: a(f"s_mov_b32 s{S_W1+2}, 0")
        a(f"s_cmp_lg_u32 s{sL}, 0\ns_cselect_b32 s{S_QKV+2}, 0, s{S_QKV+2}")
        a(f"s_lshr_b32 s{w1s}, s{sW}, 1\ns_mul_i32 s{w1s}, s{w1s}, {512*3584}\ns_lshl_b32 s{T}, s{sI}, 7\ns_add_u32 s{w1s}, s{w1s}, s{T}")
        a(f"s_and_b32 s{T+1}, s{sW}, 1\ns_lshl_b32 s{T+1}, s{T+1}, 6\ns_add_u32 s{w1s}, s{w1s}, s{T+1}\ns_sub_u32 s{w1s}, s{w1s}, {16*3584}")
        if C.tmix:
            a(f"s_lshl_b32 s{tch}, s{sJ}, 2\ns_and_b32 s{T+1}, s{sI}, 3\ns_add_u32 s{tch}, s{tch}, s{T+1}\ns_lshl_b32 s{tch}, s{tch}, 3\ns_add_u32 s{tch}, s{tch}, s{sW}\ns_mul_i32 s{tch}, s{tch}, {7*4096}")
            a(f"s_lshr_b32 s{T+1}, s{sI}, 2\ns_lshl_b32 s{T+1}, s{T+1}, 9\ns_add_u32 s{tch}, s{tch}, s{T+1}")
            a(f"v_lshrrev_b32 v{TA}, 2, v{vL}\nv_lshlrev_b32 v{TA}, 12, v{TA}\nv_and_b32 v{t1}, 3, v{vL}\nv_lshl_add_u32 v{TA}, v{t1}, 7, v{TA}")
        else:
            a(f"s_lshl_b32 s{tch}, s{sJ}, 3\ns_add_u32 s{tch}, s{tch}, s{sW}\ns_mul_i32 s{tch}, s{tch}, {28*4096}\ns_add_u32 s{tch}, s{tch}, s{T}")
            a(f"v_lshlrev_b32 v{TA}, 12, v{vL}")
        a(f"v_cmp_gt_u32 vcc, 28, v{vL}\nv_mov_b32 v{t1}, 0x40000000\ns_nop 0\nv_cndmask_b32 v{TA}, v{t1}, v{TA}, vcc")
        a(f"s_lshl_b32 s{wos}, s{sW}, 13\ns_lshl_b32 s{T}, s{sJ}, 7\ns_add_u32 s{wos}, s{wos}, s{T}")
        a(f"s_lshl_b32 s{T}, s{hh}, 11\ns_add_u32 s{T}, s{T}, {QX}\nv_add_u32 v{t1}, s{T}, v{vL16}\nv_subrev_u32 v{SGA}, {SVO}, v{vTRF}")
        a(f"v_lshrrev_b32 v{t0+2}, 2, v{vL}\nv_and_b32 v{t0+3}, 3, v{vL}\nv_lshlrev_b32 v{t0+3}, 4, v{t0+3}\nv_mul_u32_u24 v{vF1}, 3584, v{t0+2}\nv_add_u32 v{vF1}, v{vF1}, v{t0+3}")
        a(f"v_lshrrev_b32 v{t0+2}, 3, v{vL}\nv_lshlrev_b32 v{t0+2}, 11, v{t0+2}\nv_sub_u32 v{vWO}, v{vWQ}, v{t0+2}")
        if C.lf: flag_addr(a, "KV", kfa)
    a("s_waitcnt lgkmcnt(0)\ns_barrier")
    stamp(a, "p2.start")
    vm = VM()
    kcur = T+13
    assert C.lfi < C.lfc
    GP = 128
    def kv_issue(t):
        k = KR + 4*(t & 3)
        if t % 4 == 0: a(f"s_add_u32 s{kcur}, s{kvs}, s{kro}\ns_add_u32 s{kro}, s{kro}, 16384\ns_and_b32 s{kro}, s{kro}, 0x1ffff")
        else: a(f"s_addk_i32 s{kcur}, 4096")
        a(f"s_add_u32 m0, s{ring}, {(t & 3)*1024}")
        a(f"buffer_load_dwordx4 v[{k}:{k+3}], v{vL16}, s[{S_WS}:{S_WS+3}], s{kcur} offen sc1{' nt' if C.ntkv else ''}")
        a(f"buffer_load_dwordx4 v{vL16}, s[{S_WS}:{S_WS+3}], s{kcur} offen offset:1024 sc1{' nt' if C.ntkv else ''} lds")
        vm.add(("kv", t), 2)
    def v_read(t):
        v = VR + 8*(t & 1)
        a(f"ds_read_b128 v[{v}:{v+3}], v{VA_} offset:{(t & 3)*1024}\nds_read_b128 v[{v+4}:{v+7}], v{VA_} offset:{(t & 3)*1024 + 512}")
    def w1_issue(f):
        if f % 4 == 0:
            a(f"s_and_b32 s{w1c}, s{sJ}, {C.jrot}\ns_add_u32 s{w1c}, s{w1c}, {f//4}\ns_and_b32 s{w1c}, s{w1c}, 7\ns_mul_i32 s{w1c}, s{w1c}, {64*3584}\ns_add_u32 s{w1c}, s{w1c}, s{w1s}")
        a(f"s_add_u32 m0, s{sVW}, {STG - V + (f & 3)*8192}\ns_add_u32 s{w1c}, s{w1c}, {16*3584}")
        a(f"buffer_load_dwordx4 v{vF1}, s[{S_W1}:{S_W1+3}], s{w1c} offen{' nt' if C.w1nt else ''} lds")
        vm.add(("w1", f))
    def wo_issue(u):
        a(f"s_add_u32 m0, s{sVW}, {SVO + u*8192}\ns_add_u32 s{T}, s{wos}, {u*65536}")
        a(f"buffer_load_dwordx4 v{vWO}, s[{S_WO}:{S_WO+3}], s{T} offen lds")
        vm.add(("wo", u))
    def touch(n):
        a(f"s_cmp_eq_u32 s{sJ}, {n}\ns_cselect_b32 s{T}, s{tch}, 0x40000000")
        a(f"buffer_load_dword v{TD}, v{TA}, s[{S_W2}:{S_W2+3}], s{T} offen")
        vm.add(("t", n))
    def ex(s, r0, r1):
        for r in range(r0, r1): a(f"v_exp_f32 v{s+r}, v{s+r}")
    def setprio(p):
        L = a.label()
        a(f"s_cmp_lg_u32 s{kh}, 0\ns_cbranch_scc1 {L}\ns_setprio {p}\n{L}:")
    def qk(q, t): a(f"v_mfma_f32_32x32x16_bf16 v[{S[q]}:{S[q]+15}], v[{KR+4*(t&3)}:{KR+4*(t&3)+3}], v[{Q+4*q}:{Q+4*q+3}], 0")
    def pv(q, t, h): a(f"v_smfmac_f32_32x32x32_bf16 v[{O[q]}:{O[q]+15}], v[{VR+8*(t&1)+4*h}:{VR+8*(t&1)+4*h+3}], v[{S[q]+8*h}:{S[q]+8*h+7}], v{IDX}")
    kv_issue(0); kv_issue(1)
    post_setup()
    a(f"s_lshl_b32 s{T}, s{kh}, 10\nv_add_u32 v{t1}, s{T}, v{t1}\nv_xor_b32 v{t0}, 1024, v{t1}")
    a(f"ds_read_b128 v[{Q}:{Q+3}], v{t0}\nds_read_b128 v[{Q+4}:{Q+7}], v{t1}")
    a(f"s_lshl_b32 s{ost}, s{sI}, 1\ns_add_u32 s{ost}, s{ost}, s{kh}\ns_lshl_b32 s{ost}, s{ost}, 5\ns_add_u32 s{ost}, s{ost}, s{head}\ns_lshl_b32 s{ost}, s{ost}, 10")
    a(f"s_add_u32 s{ost}, s{ost}, {WS_O}\ns_add_u32 s{ost}, s{ost}, s{sLB}")
    a(f"s_and_b32 s{osrc}, s{sW}, 1\ns_lshl_b32 s{osrc}, s{osrc}, 15\ns_lshr_b32 s{T}, s{sW}, 1\ns_lshl_b32 s{T}, s{T}, 13\ns_add_u32 s{osrc}, s{osrc}, s{T}")
    a(f"s_lshl_b32 s{T}, s{sI}, 16\ns_add_u32 s{osrc}, s{osrc}, s{T}\ns_add_u32 s{osrc}, s{osrc}, {WS_O}\ns_add_u32 s{osrc}, s{osrc}, s{sLB}\ns_add_u32 s{osrc+1}, s{osrc}, 4096")
    a(f"s_mul_i32 s{cgive}, s{sW}, 3072\ns_add_u32 s{cgive}, s{cgive}, {CMB}\ns_xor_b32 s{ctake}, s{sW}, 4\ns_mul_i32 s{ctake}, s{ctake}, 3072\ns_add_u32 s{ctake}, s{ctake}, {CMB}")
    tr_addr(a, 131, "0", True, 132, 133)
    a(f"s_lshr_b32 s{T}, s{sW}, 1\ns_lshl_b32 s{T}, s{T}, 14\ns_add_u32 s{T}, s{T}, {V+SVO}\nv_add_u32 v131, s{T}, v131")
    if C.prio: a("s_setprio 1")
    a(f"s_waitcnt vmcnt(2) lgkmcnt(0)")
    qk(0, 0)
    v_read(0)
    kv_issue(2); kv_issue(3)
    a(f"s_lshr_b32 s{T}, s{sI}, 2\ns_lshl_b32 s{T}, s{T}, 9\ns_add_u32 s{T}, s{T}, {WS_XT}\nv_and_b32 v17, 0x1f0, v{vL16}")
    a(f"buffer_load_dword v17, v17, s[{S_WS}:{S_WS+3}], s{T} offen sc1"); vm.add("xt")
    if C.c3:
        a(f"s_lshr_b32 s{T}, s2, 3\ns_lshl_b32 s{T}, s{T}, 3\ns_add_u32 s{T}, s{T}, s{sW}\ns_lshl_b32 s{T+1}, s{T}, 11\ns_add_u32 s{T+1}, s{T+1}, 384")
        a(f"v_min_u32 v{GP+1}, 1, v{vL}\nv_lshlrev_b32 v{GP+1}, 10, v{GP+1}\nbuffer_load_dword v{GP+1}, v{GP+1}, s[{S_WO}:{S_WO+3}], s{T+1} offen")
        a(f"s_mul_i32 s{T}, s{T}, {8*3584}\ns_or_b32 s{T+1}, s{sI}, 3\ns_lshl_b32 s{T+1}, s{T+1}, 7\ns_add_u32 s{T}, s{T}, s{T+1}")
        a(f"v_min_u32 v{GP+2}, 7, v{vL}\nv_mul_u32_u24 v{GP+2}, 3584, v{GP+2}\nbuffer_load_dword v{GP+2}, v{GP+2}, s[{S_W1}:{S_W1+3}], s{T} offen")
        vm.add("c3", 2)
    stamp(a, "p2.kv0")
    a("s_nop 1")
    per = C.pper; low = C.plow
    for t in range(32):
        for q in range(2):
            hidx = 2*t + q
            if C.prio and hidx % per == 0: setprio(2)
            if C.prio and hidx % per == per - low: setprio(0)
            ex(S[q], 0, 2)
            if q == 0:
                if t > 0: pv(1, t-1, 1)
            else: pv(0, t, 1)
            ex(S[q], 2, 5)
            if q == 0:
                qk(1, t)
                need = [("kv", t+1)] if t < 31 else []
                if not C.nox and 3 <= t < 31: need.append(("w1", t-3))
                if C.lf and t == C.lfc: need.append("gp")
                a(f"s_waitcnt vmcnt({vm.need(*need) if need else 63}) lgkmcnt(0)")
                if C.lf and t == C.lfi: apoll_issue(a, kfa, GP); vm.add("gp")
                if C.lf and t == C.lfc:
                    apoll_check(a, kfa, GP, 32)
                    for k in range(4, t+4): kv_issue(k)
                if t+4 < 32 and not (C.lf and t < C.lfc): kv_issue(t+4)
                if t+1 < 32: v_read(t+1)
                if not C.nox and not C.split:
                    w1_issue(t)
                    if 3 <= t < 31:
                        for x in frag_reads(f"a{4*(t-3)}", SGA, ((t-3) & 3)*8192): a(x)
            else:
                if t < 31: qk(0, t+1)
                if not C.nox:
                    if C.split:
                        w1_issue(t)
                        if 3 <= t < 31:
                            for x in frag_reads(f"a{4*(t-3)}", SGA, ((t-3) & 3)*8192): a(x)
                    if t == C.prett and C.preto:
                        a(f"buffer_load_dword v{TD}, v{vL16}, s[{S_WS}:{S_WS+3}], s{ost} offen sc1")
                        vm.add("pre")
                    if t % 3 == 1 and t < 24: wo_issue(t//3)
                    if t == 8: a(f"v_readfirstlane_b32 s{T}, v17\ns_nop 1\nv_cmp_ne_u32 vcc, s{T}, v17\ns_nop 1\ns_cmp_eq_u64 vcc, 0\ns_cselect_b32 s{sLOC}, 1, 0")
                    if t % 4 == 3 and C.stouch == 1: touch(t//4)
                    if t % 3 == 2 and t < 24 and C.stouch == 2: touch(t//3)
                    if t == C.t2:
                        a(f"buffer_load_dword v{TD}, v{TA}, s[{S_W2}:{S_W2+3}], s{tch} offen{' nt' if C.w2nt else ''}"); vm.add("t2")
            ex(S[q], 5, 11)
            pv(q, t, 0)
            if t == 31 and q == 1:
                a(f"s_mov_b32 m0, s{cgive}\nv_mov_b32 v20, v131\nv_xor_b32 v22, 64, v131")
                for r in range(9): a(f"ds_write_addtid_b32 v{O[0]+r} offset:{256*r}")
            ex(S[q], 11, 16)
    a("s_nop 1")
    pv(1, 31, 1)
    if C.prio: a("s_setprio 0")
    stamp(a, "p2.loop")
    M, N = O[1], 36
    assert vm.need(("wo", 7)) >= vm.need(("kv", 31))
    a(f"s_mov_b32 m0, s{ctake}\ns_waitcnt lgkmcnt(0)\ns_barrier")
    stamp(a, "zc.cmb")
    for r in range(9): a(f"ds_read_addtid_b32 v{N+r} offset:{256*r}")
    wr_ = wo_reads()
    for x in wr_[:6]: a(x)
    a("s_waitcnt lgkmcnt(6)")
    for r in range(9): a(f"v_add_f32 v{M+r}, v{M+r}, v{N+r}")
    for x in wr_[6:C.wo1]: a(x)
    a(f"v_add_f32 v{N}, abs(v{M}), abs(v{M+1})\nv_add_f32 v{N+1}, abs(v{M+2}), abs(v{M+3})\nv_add_f32 v{N+2}, abs(v{M+4}), abs(v{M+5})\nv_add_f32 v{N+3}, abs(v{M+6}), abs(v{M+7})")
    a(f"v_add_f32 v{N}, v{N}, v{N+1}\nv_add_f32 v{N+2}, v{N+2}, v{N+3}\nv_cmp_nge_f32 vcc, {f2u(2.0**60)}, v{M+8}\nv_add_f32 v{N}, v{N}, v{N+2}")
    a(f"s_mov_b64 s[{T+12}:{T+13}], vcc\nv_cmp_nle_f32 vcc, {f2u(2.0**-60)}, v{M+8}\ns_nop 0\ns_or_b64 s[{T+12}:{T+13}], s[{T+12}:{T+13}], vcc")
    a(f"v_cmp_ngt_f32 vcc, 0x7f800000, v{N}\ns_nop 0\ns_or_b64 s[{T+12}:{T+13}], s[{T+12}:{T+13}], vcc\ns_cbranch_scc1 L_softmax_safe\nL_softmax_done:")
    a(f"v_rcp_f32 v{M+8}, v{M+8}\ns_nop 0")
    for r in range(8): a(f"v_mul_f32 v{M+r}, v{M+r}, v{M+8}")
    for r in range(4): a(f"v_cvt_pk_bf16_f32 v{N+r}, v{M+2*r}, v{M+1+2*r}")
    if C.sent:
        for r in range(4): a(f"v_min_u32 v{N+r}, -2, v{N+r}")
    rstore(a, f"buffer_store_dwordx4 v[{N}:{N+3}], v{vL16}, s[{S_WS}:{S_WS+3}], s{ost} offen", bulk=not C.ldo)
    for x in wr_[C.wo1:]: a(x)

def softmax_safe(a):
    M = O[1]
    QF, KF, VF, SS, CC, OO, MX, VO = Q+4, 104, 108, 48, 80, 120, 116, 117
    base, cur, n = T+12, T+13, T+14
    a("L_softmax_safe:")
    a("s_waitcnt lgkmcnt(0)")
    a(f"s_lshl_b32 s{base}, s{head}, 17\ns_add_u32 s{base}, s{base}, s{sLB}")
    a(f"v_mov_b32 v{MX}, 0xff800000\ns_mov_b32 s{cur}, s{base}\ns_mov_b32 s{n}, 64")
    L1 = a.label()
    a(f"{L1}:")
    a(f"buffer_load_dwordx4 v[{KF}:{KF+3}], v{vL16}, s[{S_WS}:{S_WS+3}], s{cur} offen sc1\ns_waitcnt vmcnt(0)")
    a(f"v_mfma_f32_32x32x16_bf16 v[{SS}:{SS+15}], v[{KF}:{KF+3}], v[{QF}:{QF+3}], 0\ns_nop 15")
    for r in range(0, 16, 2): a(f"v_max3_f32 v{MX}, v{MX}, v{SS+r}, v{SS+r+1}")
    a(f"s_add_u32 s{cur}, s{cur}, 2048\ns_sub_u32 s{n}, s{n}, 1\ns_cmp_lg_u32 s{n}, 0\ns_cbranch_scc1 {L1}")
    a(f"v_mov_b32 v{VO}, v{MX}\ns_nop 1\nv_permlane32_swap_b32 v{MX}, v{VO}\ns_nop 1\nv_max_f32 v{MX}, v{MX}, v{VO}")
    for r in range(16): a(f"v_sub_f32 v{CC+r}, 0, v{MX}\nv_mov_b32 v{OO+r}, 0")
    for r in range(8): a(f"v_mov_b32 v{VF+r}, 0x3f803f80")
    a(f"v_lshrrev_b32 v{MX}, 5, v{vL}\nv_lshlrev_b32 v{VO}, 8, v{MX}\nv_and_b32 v{MX}, 15, v{vL}\nv_lshl_add_u32 v{VO}, v{MX}, 4, v{VO}")
    a(f"s_mov_b32 s{cur}, s{base}\ns_mov_b32 s{n}, 64")
    L2 = a.label()
    a(f"{L2}:")
    a(f"buffer_load_dwordx4 v[{KF}:{KF+3}], v{vL16}, s[{S_WS}:{S_WS+3}], s{cur} offen sc1")
    a("s_mov_b32 exec_lo, 0xffff\ns_mov_b32 exec_hi, 0xffff")
    a(f"buffer_load_dwordx4 v[{VF}:{VF+3}], v{VO}, s[{S_WS}:{S_WS+3}], s{cur} offen offset:1024 sc1")
    a(f"buffer_load_dwordx4 v[{VF+4}:{VF+7}], v{VO}, s[{S_WS}:{S_WS+3}], s{cur} offen offset:1536 sc1")
    a("s_mov_b64 exec, -1\ns_waitcnt vmcnt(0)")
    a(f"v_mfma_f32_32x32x16_bf16 v[{SS}:{SS+15}], v[{KF}:{KF+3}], v[{QF}:{QF+3}], v[{CC}:{CC+15}]\ns_nop 15")
    for r in range(16): a(f"v_exp_f32 v{SS+r}, v{SS+r}")
    a("s_nop 1")
    a(f"v_smfmac_f32_32x32x32_bf16 v[{OO}:{OO+15}], v[{VF}:{VF+3}], v[{SS}:{SS+7}], v{IDX}")
    a(f"v_smfmac_f32_32x32x32_bf16 v[{OO}:{OO+15}], v[{VF+4}:{VF+7}], v[{SS+8}:{SS+15}], v{IDX}\ns_nop 15")
    a(f"s_add_u32 s{cur}, s{cur}, 2048\ns_sub_u32 s{n}, s{n}, 1\ns_cmp_lg_u32 s{n}, 0\ns_cbranch_scc1 {L2}")
    for r in range(9): a(f"v_mov_b32 v{M+r}, v{OO+r}")
    for x in wo_reads()[:C.wo1]: a(x)
    a("s_branch L_softmax_done")

EOFF = 61692
def ep2_writes(acc, base, sw4k):
    off = EOFF if base >= EOFF else 0
    o = [f"ds_write_addtid_b32 v{acc+r} offset:{off + r*256}" for r in range(16)]
    o[0] = f"s_add_u32 m0, s{sw4k}, {base - off}\ns_nop 0\n" + o[0]
    return o

def ep2_read_addr(a, ra, base0, base1, sw4k, tv):
    a(f"s_and_b32 s{T}, s{sW}, 1\ns_lshl_b32 s{T}, s{T}, 2\ns_lshr_b32 s{T+1}, s{sW}, 1\ns_add_u32 s{T}, s{T}, s{T+1}\ns_lshl_b32 s{sw4k}, s{T}, 12")
    a(f"s_lshr_b32 s{T}, s{sW}, 2\ns_lshl_b32 s{T}, s{T}, 14\ns_and_b32 s{T+1}, s{sW}, 3\ns_lshl_b32 s{T+1}, s{T+1}, 10\ns_add_u32 s{T}, s{T}, s{T+1}\ns_add_u32 s{T}, s{T}, {base0}")
    a(f"v_and_b32 v{tv}, 3, v{vN}\nv_lshlrev_b32 v{ra}, 8, v{tv}\nv_bfe_u32 v{tv}, v{vN}, 2, 1\nv_lshl_add_u32 v{ra}, v{tv}, 7, v{ra}\nv_and_b32 v{tv}, 3, v{vC}\nv_lshl_add_u32 v{ra}, v{tv}, 5, v{ra}")
    a(f"v_add_u32 v{ra}, s{T}, v{ra}\nv_lshrrev_b32 v{tv}, 2, v{vC}\nv_mul_i32_i24 v{tv}, {base1 - base0}, v{tv}\nv_add_u32 v{ra}, v{ra}, v{tv}")

def ep2_sum(a, ra, add0, out):
    for k in range(4):
        a(f"ds_read_b128 v[{out+8*k}:{out+8*k+3}], v{ra} offset:{4096*k}\nds_read_b128 v[{out+8*k+4}:{out+8*k+7}], v{ra} offset:{4096*k+16}")
    a("s_waitcnt lgkmcnt(6)")
    for e in range(8): a(f"v_add_f32 v{out+e}, v{out+e}, v{add0+e}")
    a("s_waitcnt lgkmcnt(2)")
    for e in range(8): a(f"v_add_f32 v{out+8+e}, v{out+8+e}, v{out+16+e}")
    for e in range(8): a(f"v_add_f32 v{out+e}, v{out+e}, v{out+8+e}")
    a("s_waitcnt lgkmcnt(0)")
    for e in range(8): a(f"v_add_f32 v{out+e}, v{out+e}, v{out+24+e}")

def unpack8(a, dst, src):
    for e in range(4): a(f"v_lshlrev_b32 v{dst+2*e}, 16, v{src+e}\nv_and_b32 v{dst+1+2*e}, 0xffff0000, v{src+e}")

def phase3(a):
    stamp(a, "zc.ost")
    OF, ACC, WF = 16, 48, 80
    src = osrc
    n3 = [int(c) for c in C.sch3]; assert n3[0] == 4 and sum(n3) == 12
    spin = T+6
    if not C.sent:
        a("s_waitcnt vmcnt(0) lgkmcnt(0)\ns_barrier")
        stamp(a, "p2.end")
        if_wave_eq(a, 0, lambda: publish(a, "O", sI))
        for f in range(n3[0]): w2_dma(a, f)
        if_wave_eq(a, 0, lambda: poll(a, "O", sI, 8))
        a("s_barrier")
        stamp(a, "proj.polled")
    else:
        a(f"s_mov_b32 s{spin}, {SPIN}\ns_waitcnt {'vmcnt(0) ' if C.sentwait == 1 else ''}lgkmcnt(0)\ns_barrier")
        stamp(a, "p2.end")
    LT = a.label()
    a(f"{LT}:")
    for t in range(8):
        if C.lprio and t % 2 == 0: a(f"s_setprio {3 - t//2}")
        a(f"buffer_load_dwordx4 v[{OF+4*t}:{OF+4*t+3}], v{vL16}, s[{S_WS}:{S_WS+3}], s{src + (t >> 2)} offen offset:{(t & 3)*1024} sc1")
    for t in range(8):
        a(f"s_waitcnt vmcnt({7-t})")
        for y in range(2):
            c = "0" if t == 0 else f"v[{ACC+16*y}:{ACC+16*y+15}]"
            a(f"v_mfma_f32_32x32x16_bf16 v[{ACC+16*y}:{ACC+16*y+15}], v[{OF+4*t}:{OF+4*t+3}], v[{WF+8*t+4*y}:{WF+8*t+4*y+3}], {c}")
            if C.sent:
                o = OF + 4*t + 2*y
                a(f"v_max_u32 v0, v{o}, v{o+1}" if t == 0 and y == 0 else f"v_max3_u32 v0, v0, v{o}, v{o+1}")
    if C.sent:
        a(f"v_cmp_eq_u32 vcc, -1, v0\ns_sub_u32 s{spin}, s{spin}, 1\ns_cselect_b64 vcc, 0, vcc\ns_cbranch_vccnz {LT}")
    ep2_read_addr(a, 88, V+SVO, E+16, T+4, 80)
    stamp(a, "proj.loop")
    OUT = 104
    for x in ep2_writes(ACC, V+SVO, T+4) + ep2_writes(ACC+16, E+16, T+4): a(x)
    unpack8(a, 96, vRES)
    if C.sent:
        for f in range(n3[0]): w2_dma(a, f)
    a("s_waitcnt lgkmcnt(0)\ns_barrier")
    stamp(a, "zc.epb")
    ep2_sum(a, 88, 96, OUT)
    for e in range(4): a(f"v_cvt_pk_bf16_f32 v{vRES+e}, v{OUT+2*e}, v{OUT+1+2*e}")
    a("v_mov_b32 v64, 0\nv_mov_b32 v65, 0\nv_mov_b32 v66, 1\nv_mov_b32 v67, 1\nv_mov_b32 v68, 0x3f803f80")
    for e in range(4): a(f"v_dot2c_f32_bf16 v64, v{vRES+e}, v68\nv_dot2c_f32_bf16 v65, v{vRES+e}, v{vRES+e}")
    a(f"s_lshl_b32 s{T}, s{sI}, 13\ns_add_u32 s{T}, s{T}, {WS_ST}\ns_add_u32 s{T}, s{T}, s{sLB}\ns_lshl_b32 s{T+1}, s{sJ}, 10\ns_add_u32 s{T+1}, s{T+1}, s{T}")
    a(f"v_lshlrev_b32 v56, 4, v{vN}\nv_lshl_add_u32 v57, v{vC}, 10, v56")
    dpp_red8(a, [64, 65])
    a(f"v_cmp_eq_u32 vcc, 0, v{vC}\ns_and_saveexec_b64 s[{T+2}:{T+3}], vcc")
    rstore(a, f"buffer_store_dwordx4 v[64:67], v56, s[{S_WS}:{S_WS+3}], s{T+1} offen")
    a(f"s_mov_b64 exec, s[{T+2}:{T+3}]")
    stamp(a, "proj.st")
    a(f"v_subrev_u32 v59, {SVO}, v{vTRF}")
    for c in range(4):
        for x in frag_reads(f"v{W1T+4*c}", 59, c*8192): a(x)
    if not C.sent:
        for f in range(4):
            for x in w2_reads(f): a(x)
    unpack8(a, 80, vRES)
    a(f"v_lshrrev_b32 v58, 2, v{vC}\nv_lshlrev_b32 v58, 17, v58\nv_lshl_add_u32 v58, v{vN}, 6, v58\nv_and_b32 v60, 3, v{vC}\nv_lshl_add_u32 v58, v60, 4, v58")
    LP = a.label(); LD = a.label()
    a(f"s_mov_b32 s{T+2}, {SPIN}")
    a(f"{LP}:")
    a(f"buffer_load_dwordx4 v[68:71], v57, s[{S_WS}:{S_WS+3}], s{T} offen sc1")
    a("s_waitcnt vmcnt(0)\nv_and_b32 v72, v70, v71\nv_cmp_ne_u32 vcc, 1, v72")
    a(f"s_cbranch_vccz {LD}")
    a(f"s_sub_u32 s{T+2}, s{T+2}, 1\ns_cmp_lg_u32 s{T+2}, 0\ns_cbranch_scc1 {LP}")
    a(f"{LD}:")
    stamp(a, "proj.stat")
    if C.sent:
        for f in range(4):
            for x in w2_reads(f): a(x)
    dpp_red8(a, [68, 69])
    a(f"v_mul_f32 v68, {f2u(1/512)}, v68\nv_mul_f32 v69, {f2u(1/512)}, v69")
    a("v_fma_f32 v69, -v68, v68, v69\nv_max_f32 v69, 0, v69")
    a(f"v_add_f32 v70, {f2u(1e-5)}, v69\nv_rsq_f32 v70, v70\ns_nop 0")
    a(f"v_mul_f32 v71, v70, v70\nv_mul_f32 v71, v71, v69\nv_add_f32 v71, {f2u(1e-5)}, v71\nv_rsq_f32 v71, v71\ns_nop 0")
    a("v_mul_f32 v70, v70, v71\nv_mul_f32 v71, v68, v70\nv_sub_f32 v71, 0, v71")
    for e in range(8): a(f"v_fma_f32 v{80+e}, v{80+e}, v70, v71")
    for e in range(4): a(f"v_cvt_pk_bf16_f32 v{72+e}, v{80+2*e}, v{81+2*e}")
    a(f"s_lshl_b32 s{T}, s{sJ}, 18\ns_lshl_b32 s{T+1}, s{sI}, 12\ns_add_u32 s{T}, s{T}, s{T+1}\ns_add_u32 s{T}, s{T}, {WS_H}\ns_add_u32 s{T}, s{T}, s{sLB}")
    a(f"buffer_store_dwordx4 v[72:75], v58, s[{S_WS}:{S_WS+3}], s{T} offen sc1")
    stamp(a, "zc.hst")
    a("s_waitcnt lgkmcnt(0)")
    rest3 = [8, 9, 10, 11, 4, 5, 6, 7]
    assert n3[1] <= 4
    for f in rest3[:n3[1]]: w2_dma(a, f)
    a(f"s_waitcnt vmcnt({n3[1]})\ns_barrier")
    stamp(a, "proj.end")
    if_wave_eq(a, 0, lambda: publish(a, "H", sJ))
    if C.sent:
        L = a.label()
        a(f"s_cmp_lg_u32 s{sL}, 0\ns_cbranch_scc1 {L}\nv_mov_b32 v76, -1\nv_mov_b32 v77, -1\nv_mov_b32 v78, -1\nv_mov_b32 v79, -1")
        a(f"s_add_u32 s{T}, s{ost}, {LSTRIDE}\nbuffer_store_dwordx4 v[76:79], v{vL16}, s[{S_WS}:{S_WS+3}], s{T} offen sc1\n{L}:")
    for f in rest3[n3[1]:]: w2_dma(a, f)

EPO = 61440
W1T = 128

def flag_addr(a, kind, sd):
    a(f"s_lshl_b32 s{sd}, s{sJ}, 10\ns_add_u32 s{sd}, s{sd}, {FL[kind]*128}\ns_add_u32 s{sd}, s{sd}, s{sFL}")
    a(f"s_lshr_b32 s{T+1}, s{sI}, 2\ns_lshl_b32 s{T+1}, s{T+1}, 7\ns_add_u32 s{sd}, s{sd}, s{T+1}")

def apoll_issue(a, sd, v):
    a(f"s_mov_b64 exec, 1\nbuffer_load_dword v{v}, v{vL16}, s[{S_WS}:{S_WS+3}], s{sd} offen sc1\ns_mov_b64 exec, -1")

def apoll_check(a, sd, v, n):
    LP = a.label(); LD = a.label()
    a(f"s_mov_b64 exec, 1\ns_mov_b32 s{T+1}, {SPIN}\n{LP}:\nv_cmp_ne_u32 vcc, {n}, v{v}\ns_cbranch_vccz {LD}")
    a(f"buffer_load_dword v{v}, v{vL16}, s[{S_WS}:{S_WS+3}], s{sd} offen sc1\ns_waitcnt vmcnt(0)")
    a(f"s_sub_u32 s{T+1}, s{T+1}, 1\ns_cmp_lg_u32 s{T+1}, 0\ns_cbranch_scc1 {LP}\n{LD}:\ns_mov_b64 exec, -1")

def mlp(a):
    R = 4
    EP = STG
    ERA, UA, YA5, B1, YA4, C1, RA_, WA_, ADD = 21, 20, 22, 24, 28, 29, 30, 128, 136
    ACC, F, ET, PV_, B2 = 48, [80, 96], 112, 19, 18
    src4, dst, qb, src5, rot, ust, fa, fb, gc2, ewb = T+2, T+3, T+4, T+5, T+6, T+7, T+8, T+9, T+11, T+12
    a(f"v_lshlrev_b32 v{ERA}, 1, v{vN}\ns_lshl_b32 s{T}, s{sI}, 7")
    a(f"buffer_load_ushort v{B2}, v{ERA}, s[{S_B2}:{S_B2+3}], s{T} offen")
    a(f"s_lshr_b32 s{T}, s{sW}, 1\ns_and_b32 s{T+1}, s{sW}, 1\ns_lshl_b32 s{T+1}, s{T+1}, 11\ns_add_u32 s{T+1}, s{T+1}, s{sLB}")
    a(f"s_mul_i32 s{src5}, s{sJ}, {2*114688}\ns_mul_i32 s{dst}, s{T}, {28*1024}\ns_add_u32 s{src5}, s{src5}, s{dst}\ns_add_u32 s{src5}, s{src5}, s{T+1}\ns_add_u32 s{src5}, s{src5}, {WS_U}")
    a(f"s_lshl_b32 s{src4}, s{sJ}, 18\ns_lshl_b32 s{dst}, s{T}, 15\ns_add_u32 s{src4}, s{src4}, s{dst}\ns_add_u32 s{src4}, s{src4}, s{T+1}\ns_add_u32 s{src4}, s{src4}, {WS_H}")
    a(f"s_mul_i32 s{ust}, s{sJ}, {2*114688}\ns_lshl_b32 s{dst}, s{sI}, 12\ns_add_u32 s{ust}, s{ust}, s{dst}\ns_lshl_b32 s{dst}, s{T}, 9\ns_add_u32 s{ust}, s{ust}, s{dst}\ns_add_u32 s{ust}, s{ust}, s{T+1}\ns_add_u32 s{ust}, s{ust}, {WS_U}")
    a(f"s_lshl_b32 s{dst}, s{sW}, 11\ns_lshl_b32 s{T}, s{T}, 12")
    a(f"v_bfe_u32 v16, v{vL}, 3, 2\nv_lshlrev_b32 v{YA5}, 9, v16\nv_and_b32 v16, 3, v{vL}\nv_lshl_add_u32 v{YA5}, v16, 7, v{YA5}\nv_bfe_u32 v16, v{vL}, 2, 1\nv_lshl_add_u32 v{YA5}, v16, 6, v{YA5}")
    a(f"v_bfe_u32 v16, v{vL}, 1, 1\nv_bfe_u32 v17, v{vL}, 4, 1\nv_lshl_add_u32 v16, v17, 1, v16\nv_lshrrev_b32 v17, 5, v{vL}\nv_xor_b32 v16, v16, v17\nv_lshl_add_u32 v{YA5}, v16, 4, v{YA5}")
    a(f"v_add_u32 v{YA5}, s{T}, v{YA5}\nv_xor_b32 v{YA5+1}, 32, v{YA5}")
    a(f"s_sub_u32 s{T}, s{T}, s{sVW}\ns_sub_u32 s{T}, s{T}, {SVO}\nv_add_u32 v{YA4}, s{T}, v{vTRF}")
    a(f"s_and_b32 s{T}, s{sW}, 1\ns_lshl_b32 s{T}, s{T}, 11\nv_add_u32 v31, s{T}, v{YA4}")
    a(f"s_and_b32 s{rot}, s{sJ}, {C.jrot}\ns_lshl_b32 s{rot}, s{rot}, 12")
    qkv_base8(a, qb)
    flag_addr(a, "U", fa); flag_addr(a, "UB", fb)
    LS = a.label(); LM = a.label()
    a(f"s_cmp_ge_u32 s{sI}, 28\ns_cbranch_scc1 {LS}")
    vm = VM()
    a(f"s_and_b32 s{T}, s{sW}, 1\ns_lshr_b32 s{T+1}, s{sW}, 1")
    a(f"s_lshl_b32 s{ewb}, s{T}, 14\ns_add_u32 s{ewb}, s{ewb}, {EP}\ns_lshl_b32 s{T+10}, s{T+1}, 10\ns_add_u32 s{T+10}, s{T+10}, s{ewb}\nv_add_u32 v{ERA}, s{T+10}, v{vL16}")
    a(f"s_lshl_b32 s{T+10}, s{T+1}, 12\ns_add_u32 s{ewb}, s{ewb}, s{T+10}")
    a(f"s_lshl_b32 s{T}, s{T}, 6\ns_lshl_b32 s{T+10}, s{sI}, 7\ns_add_u32 s{T}, s{T}, s{T+10}\nv_lshlrev_b32 v16, 3, v{vC}")
    a(f"buffer_load_dwordx2 v[{B1+2}:{B1+3}], v16, s[{S_B1}:{S_B1+3}], s{T} offen")
    a(f"v_lshrrev_b32 v17, 5, v{vL}\ns_lshr_b32 s{T+1}, s{T+1}, 1\ns_lshl_b32 s{T+1}, s{T+1}, 1\nv_or_b32 v17, s{T+1}, v17\nv_lshlrev_b32 v17, 4, v17\nv_lshlrev_b32 v{UA}, 3, v{vL}\nv_xor_b32 v{UA}, v{UA}, v17")
    c1 = -2*0.7978845608028654*1.4426950408889634
    a(f"s_mov_b32 s{gc2}, {f2u(c1*0.044715)}\nv_mov_b32 v{C1}, {f2u(c1)}")
    if_wave_eq(a, 0, lambda: poll(a, "H", sJ, 32))
    a("s_barrier")
    stamp(a, "mlp1.polled"); stamp(a, "z3.poll")
    def act(p, s):
        if p == 4: a(f"s_add_u32 s{T}, s{rot}, {(s & 7)*4096}\ns_and_b32 s{T}, s{T}, 0x7fff\ns_add_u32 s{T}, s{T}, s{src4}\ns_add_u32 m0, s{dst}, {(s % R)*16384}" + (f"\ns_add_u32 s{T}, s{T}, 131072" if s >= 8 else "\ns_nop 0"))
        else: a(f"s_add_u32 m0, s{dst}, {(s % R)*16384}\ns_add_u32 s{T}, s{src5}, {(s//7)*114688 + (s % 7)*4096}")
        nt = " nt" if C.ntact else ""
        a(f"buffer_load_dwordx4 v{vL16}, s[{S_WS}:{S_WS+3}], s{T} offen sc1{nt} lds\nbuffer_load_dwordx4 v{vL16}, s[{S_WS}:{S_WS+3}], s{T} offen offset:1024 sc1{nt} lds")
        vm.add(("act", p, s), 2)
    def reads(p, s):
        out = []; o = (s % R)*16384
        for t in range(4):
            b = F[s & 1] + 4*t
            if p == 4: out += [f"ds_read_b64_tr_b16 v[{b}:{b+1}], v{YA4} offset:{o + t*1024}", f"ds_read_b64_tr_b16 v[{b+2}:{b+3}], v{YA4} offset:{o + t*1024 + 256}"]
            else: out.append(f"ds_read_b128 v[{b}:{b+3}], v{YA5 + (t & 1)} offset:{o + (t >> 1)*2048}")
        return out
    def mfmas(p, s):
        out = []
        n = 8 if p == 4 else 7
        y = s // n
        for t in range(4):
            f = 4*(s % n) + t
            if p == 4: X = f"a[{4*f}:{4*f+3}]" if f < 28 else f"v[{W1T+4*(f-28)}:{W1T+4*(f-28)+3}]"
            else: r = w2_reg(f); X = f"{r[0]}[{int(r[1:])}:{int(r[1:])+3}]"
            Y = f"v[{F[s & 1]+4*t}:{F[s & 1]+4*t+3}]"
            c = "0" if f == 0 else f"v[{ACC+16*y}:{ACC+16*y+15}]"
            A_, B_ = (Y, X) if p == 4 else (X, Y)
            out.append(f"v_mfma_f32_32x32x16_bf16 v[{ACC+16*y}:{ACC+16*y+15}], {A_}, {B_}, {c}")
        return out
    RW = 31
    def inring(f): return C.optx and 20 <= f < 24
    def wdma(fs):
        for f in fs:
            if inring(f):
                a(f"s_add_u32 m0, s{dst}, {((f-20) >> 1)*16384 + (f & 1)*1024}\ns_add_u32 s{T}, s{sW2S}, {f*16*4096}")
                a(f"buffer_load_dwordx4 v{vF2}, s[{S_W2}:{S_W2+3}], s{T} offen lds")
            else: w2_dma(a, f)
            vm.add(("w", f))
    def wr(fs): return [x for f in fs for x in (frag_reads(w2_reg(f), RW, ((f-20) >> 1)*16384 + (f & 1)*1024) if inring(f) else w2_reads(f))]
    def wread(fs):
        for x in wr(fs): a(x)
    def ep_w(y, rs=range(16)):
        o = [f"ds_write_addtid_b32 v{ACC+16*y+r} offset:{EPO + r*256}" for r in rs]
        o[0] = f"s_sub_u32 m0, s{ewb}, {EPO}\ns_nop 0\n" + o[0]
        return o
    def ep_r(): return [f"ds_read_b128 v[{ET+4*p}:{ET+4*p+3}], v{ERA} offset:{p*4096}" for p in range(4)]
    def ep_math():
        o = []
        for e in range(4): o += [f"v_add_f32 v{ET+e}, v{ET+e}, v{ET+4+e}", f"v_add_f32 v{ET+8+e}, v{ET+8+e}, v{ET+12+e}"]
        for e in range(4): o.append(f"v_add_f32 v{ET+e}, v{ET+e}, v{B1+e}")
        for e in range(4): o.append(f"v_add_f32 v{ET+e}, v{ET+e}, v{ET+8+e}")
        G = ET+4
        for e in range(4): o.append(f"v_mul_f32 v{G+e}, v{ET+e}, v{ET+e}")
        for e in range(4): o.append(f"v_fma_f32 v{G+e}, v{G+e}, s{gc2}, v{C1}")
        for e in range(4): o.append(f"v_mul_f32 v{G+e}, v{G+e}, v{ET+e}")
        for e in range(4): o.append(f"v_exp_f32 v{G+e}, v{G+e}")
        for e in range(4): o.append(f"v_add_f32 v{G+e}, 1.0, v{G+e}")
        for e in range(4): o.append(f"v_rcp_f32 v{G+e}, v{G+e}")
        for e in range(4): o.append(f"v_mul_f32 v{ET+e}, v{ET+e}, v{G+e}")
        o += [f"v_cvt_pk_bf16_f32 v{ET+8}, v{ET}, v{ET+1}", f"v_cvt_pk_bf16_f32 v{ET+9}, v{ET+2}, v{ET+3}"]
        return o
    def ep_store(y):
        if y: a(f"s_add_u32 s{ust}, s{ust}, 114688")
        a(f"buffer_store_dwordx2 v[{ET+8}:{ET+9}], v{UA}, s[{S_WS}:{S_WS+3}], s{ust} offen sc1")
        vm.add(("st", y))
    def body(m, lds, valu=()):
        lds = list(lds); valu = list(valu)
        nl = max(C.ldsper, -(-len(lds)//4)); nv = -(-len(valu)//4)
        for k in range(4):
            if k < len(m): a(m[k])
            for x in lds[k*nl:(k+1)*nl]: a(x)
            for x in valu[k*nv:(k+1)*nv]: a(x)
    for s in range(C.init): act(4, s)
    late = [int(c) for c in (C.schx if C.optx else C.schw)]
    assert sum(late) == 8 and len(late) == 6
    nxt = 12
    em = ep_math()
    deferred = []
    E_ = [int(c, 16) for c in C.eps]
    for s in range(16):
        tags = [("act", 4, s)] + ([("st", 0)] if s == C.pubs else [])
        a(f"s_waitcnt vmcnt({vm.need(*tags)}) lgkmcnt(0)\ns_barrier")
        if s not in (2, 3, 5, 6, 7): stamp(a, f"z4.{s:02d}")
        if s == 0: stamp(a, "mlp1.b0")
        if C.defer == 2 and s not in (E_[0], E_[1]):
            for k in deferred: act(4, k)
            deferred = []
        lds = reads(4, s); valu = []
        if s == 0: valu = [f"v_lshlrev_b32 v{B1}, 16, v{B1+2}", f"v_and_b32 v{B1+1}, 0xffff0000, v{B1+2}", f"v_lshlrev_b32 v{B1+2}, 16, v{B1+3}", f"v_and_b32 v{B1+3}, 0xffff0000, v{B1+3}"]
        if s == E_[0]: lds += ep_w(0, range(8))
        if s == E_[1]: lds += ep_w(0, range(8, 16))
        if s == E_[2]: lds += ep_r()
        if s == E_[3]: valu += em[:24]
        if s == E_[4]: valu += em[24:]
        if s == E_[5]: lds += wr(range(4, 8))
        if s == E_[6]: lds += wr(range(8, 12))
        body(mfmas(4, s-1) if s else [], lds, valu)
        if s == C.pubs:
            stamp(a, "mlp1.pubA")
            if_wave_eq(a, 0, lambda: publish(a, "U", sJ))
        if s == E_[4]: ep_store(0)
        if s == 0:
            for k in range(C.init, R): act(4, k)
        if s >= 1 and s - 1 + R < 16:
            deferred.append(s - 1 + R)
            if not (C.defer and s in (E_[0], E_[1])):
                for k in deferred: act(4, k)
                deferred = []
        if s >= 11:
            n = late[s-11]
            assert nxt + n <= 12 + 4*(s > E_[5]) + 4*(s > E_[6]) + 2*(s >= 13) + 2*(s >= 14)
            wdma(range(nxt, nxt + n)); nxt += n
    assert E_[0] >= 9 and E_[2] > E_[1] and E_[3] > E_[2] and E_[5] >= 10 and E_[6] >= 11
    a("s_waitcnt lgkmcnt(0)")
    for x in mfmas(4, 15): a(x)
    stamp(a, "mlp1.loop"); stamp(a, "z4.loop")
    a("s_nop 9")
    for x in ep_w(1): a(x)
    if C.pubs >= 16: a(f"s_waitcnt vmcnt({vm.need(('st', 0))})")
    a("s_waitcnt lgkmcnt(0)\ns_barrier")
    stamp(a, "z4.ep")
    for x in ep_r(): a(x)
    if C.pubs >= 16: if_wave_eq(a, 0, lambda: publish(a, "U", sJ))
    wdma(range(nxt, 20))
    if C.n1 == 0: apoll_issue(a, fa, PV_); vm.add("pa")
    a("s_waitcnt lgkmcnt(0)")
    for x in em: a(x)
    ep_store(1)
    stamp(a, "mlp1.st"); stamp(a, "z4.st")
    npre = 20 + C.n1 + C.n2
    if C.n1:
        a(f"s_waitcnt vmcnt({vm.need(('w', 15))})")
        wread(range(12, 16))
        a("s_waitcnt lgkmcnt(0)")
        apoll_issue(a, fa, PV_); vm.add("pa")
        wdma(range(20, 20 + C.n1))
        a(f"s_waitcnt vmcnt({vm.need('pa')})")
        wread(range(16, 20))
        a("s_barrier")
        stamp(a, "z4.xdrain")
        if_wave_eq(a, 0, lambda: publish(a, "UB", sJ))
        a("s_waitcnt lgkmcnt(0)")
        wdma(range(20 + C.n1, npre))
        first = 0
    else:
        a(f"s_waitcnt vmcnt({vm.need('pa')})")
        wread(range(12, 20))
        apoll_check(a, fa, PV_, 28)
        act(5, 0); act(5, 1)
        a(f"s_waitcnt vmcnt({vm.need(('st', 1))})\ns_barrier")
        stamp(a, "z4.xdrain")
        if_wave_eq(a, 0, lambda: publish(a, "UB", sJ))
        first = 2
    a(f"s_branch {LM}")
    a(f"{LS}:")
    a("s_waitcnt vmcnt(0)")
    wread(range(4, 12)); a("s_waitcnt lgkmcnt(0)")
    keep = vm.ops[:]
    wdma(range(12, 20))
    a("s_waitcnt vmcnt(0)")
    wread(range(12, 20)); a("s_waitcnt lgkmcnt(0)")
    wdma(range(20, npre))
    a(f"v_mov_b32 v{PV_}, 28\ns_waitcnt vmcnt(0)")
    if_wave_eq(a, 0, lambda: poll(a, "U", sJ, 28))
    a("s_barrier")
    for k in range(first): act(5, k)
    vm.ops = keep
    a(f"{LM}:")
    if first == 0: apoll_check(a, fa, PV_, 28)
    stamp(a, "mlp2.polled"); stamp(a, "z4.zpolled")
    for k in range(first, C.init5): act(5, k)
    ep2_read_addr(a, RA_, EP+16, E+32768, ewb, ET)
    sch = [int(c) for c in C.sch2]
    extra = list(range(12))
    assert sum(sch[:5]) <= 7
    def point(p):
        for _ in range(sch[p]):
            k = extra.pop(0); qkv_piece8(a, qb, k); vm.add(("x", k))
    sb = C.sb
    na = max(first, C.init5); nw = npre
    for s in range(14):
        tags = [("act", 5, s)]
        if s == sb: tags.append("pb")
        if s == 5: tags.append(("w", 23))
        if s == 6: tags.append(("w", 27))
        a(f"s_waitcnt vmcnt({vm.need(*tags)}) lgkmcnt(0)\ns_barrier")
        if s not in (8, 9, 10): stamp(a, f"z5.{s:02d}")
        if s == 0: stamp(a, "mlp2.b0")
        lds = reads(5, s); valu = []
        if s == 0:
            for e in range(4): valu += [f"v_lshlrev_b32 v{ADD+2*e}, 16, v{vRES+e}", f"v_and_b32 v{ADD+1+2*e}, 0xffff0000, v{vRES+e}"]
            valu.append(f"v_lshlrev_b32 v{B2}, 16, v{B2}")
            for e in range(8): valu.append(f"v_add_f32 v{ADD+e}, v{ADD+e}, v{B2}")
        if s == 5: lds += wr(range(20, 24))
        if s == 6: lds += wr(range(24, 28))
        if s == C.wa5: lds += ep2_writes(ACC, EP+16, ewb)
        body(mfmas(5, s-1) if s else [], lds, valu)
        if s == sb:
            apoll_check(a, fb, PV_, 28)
            stamp(a, "mlp2.pollB")
        if s == C.pbi: apoll_issue(a, fb, PV_); vm.add("pb")
        lim = min(14, s + 4, 7 if s < sb else 14)
        want = min(lim, na + 1) if nw < 28 and not C.deep else lim
        want = max(want, min(lim, s + 3))
        while na < want: act(5, na); na += 1
        if nw < 28: wdma((nw, nw+1)); nw += 2
        if s == C.q5s and C.pret:
            a(f"buffer_load_dword v{ET+1}, v{vXO}, s[{S_XD}:{S_XD+3}], s{sXO} offen sc1")
            a(f"s_lshl_b32 s{T}, s{sI}, 3\ns_add_u32 s{T}, s{T}, s{sJ}\ns_lshl_b32 s{T}, s{T}, 9\ns_add_u32 s{T}, s{T}, {WS_ST2}\nv_lshlrev_b32 v{ET+2}, 3, v{vL}")
            a(f"buffer_load_dword v{ET+2}, v{ET+2}, s[{S_WS}:{S_WS+3}], s{T} offen sc1")
            vm.add("pre", 2)
        if s == C.q5s and C.q5:
            a(f"s_lshr_b32 s{T}, s2, 3\ns_lshl_b32 s{T}, s{T}, 3\ns_add_u32 s{T}, s{T}, s{sW}\ns_mul_i32 s{T}, s{T}, {6*1024}")
            if C.q5 == 1: a(f"s_add_u32 s{T}, s{T}, 384\nv_min_u32 v{ET}, 5, v{vL}\nv_lshlrev_b32 v{ET}, 10, v{ET}")
            else: a(f"v_min_u32 v{ET}, 47, v{vL}\nv_lshlrev_b32 v{ET}, 7, v{ET}")
            a(f"buffer_load_dword v{ET}, v{ET}, s[{S_QKV}:{S_QKV+3}], s{T} offen"); vm.add("q5")
    assert na == 14 and nw == 28
    a(f"s_waitcnt lgkmcnt({15 if C.wa5 == 13 else 0})")
    for x in mfmas(5, 13): a(x)
    stamp(a, "mlp2.loop")
    a("s_nop 9")
    OUT = 80
    for x in ep2_writes(ACC+16, E+32768, ewb): a(x)
    point(0); point(1); point(2)
    a("s_waitcnt lgkmcnt(0)\ns_barrier")
    ep2_sum(a, RA_, ADD, OUT)
    point(3)
    for e in range(4): a(f"v_cvt_pk_bf16_f32 v{vRES+e}, v{OUT+2*e}, v{OUT+1+2*e}")
    if C.finplain:
        Lf = a.label()
        a(f"s_cmp_eq_u32 s{sL}, 0\ns_cbranch_scc1 {Lf}\nbuffer_store_dwordx4 v[{vRES}:{vRES+3}], v{vXO}, s[{S_XD}:{S_XD+3}], s{sXO} offen{' nt' if C.finplain == 2 else ''}\ns_branch L_fin\n{Lf}:")
    rstore(a, f"buffer_store_dwordx4 v[{vRES}:{vRES+3}], v{vXO}, s[{S_XD}:{S_XD+3}], s{sXO} offen", bulk=True)
    stamp(a, "mlp2.st")
    a(f"s_cmp_lg_u32 s{sL}, 0\ns_cbranch_scc1 L_fin")
    a("v_mov_b32 v64, 0\nv_mov_b32 v65, 0\nv_mov_b32 v68, 0x3f803f80")
    for e in range(4): a(f"v_dot2c_f32_bf16 v64, v{vRES+e}, v68\nv_dot2c_f32_bf16 v65, v{vRES+e}, v{vRES+e}")
    a(f"s_lshl_b32 s{T}, s{sI}, 3\ns_add_u32 s{T}, s{T}, s{sJ}\ns_lshl_b32 s{T}, s{T}, 9\ns_add_u32 s{T}, s{T}, {WS_ST2}\nv_lshlrev_b32 v66, 3, v{vN}")
    dpp_red8(a, [64, 65])
    a(f"v_cmp_eq_u32 vcc, 0, v{vC}\ns_and_saveexec_b64 s[{T+10}:{T+11}], vcc")
    rstore(a, f"buffer_store_dwordx2 v[64:65], v66, s[{S_WS}:{S_WS+3}], s{T} offen", bulk=True)
    a(f"s_mov_b64 exec, s[{T+10}:{T+11}]")
    point(4)
    a(f"s_waitcnt vmcnt({sch[4]})\ns_barrier")
    stamp(a, "mlp2.end")
    if_wave_eq(a, 4, lambda: publish(a, "X", sI))
    point(5)

def main(out):
    a = Asm()
    K = NAME + "_kernel"
    a.L.append(f".globl {K}\n.p2align 8\n.type {K},@function\n{K}:")
    prologue(a)
    prologue2(a)
    a(f"buffer_load_dwordx4 v[{vRES}:{vRES+3}], v{vXO}, s[{S_XS}:{S_XS+3}], s{sXO} offen")
    stamp(a, "entry2")
    a(f"s_cmp_lt_u32 s{sW}, 4\ns_cbranch_scc1 L_p1_cons")
    layer0_helpers(a)
    a("L_layer:")
    ool = phase1(a)
    phase2(a)
    phase3(a)
    mlp(a)
    a(f"s_mov_b32 s{S_XS}, s{S_XD}\ns_mov_b32 s{S_XS+1}, s{S_XD+1}\ns_mov_b32 s{S_XD}, s{sOUT}\ns_mov_b32 s{S_XD+1}, s{sOUT+1}")
    a(f"s_mov_b32 s{sL}, 1\ns_mov_b32 s{sLB}, {LSTRIDE}")
    if C.stamp: a("v_mov_b32 v7, v6")
    a("s_branch L_layer")
    a("L_fin:")
    if C.stamp:
        a("s_waitcnt vmcnt(0)")
        stamp(a, "fin")
        a(f"s_lshl_b32 s{T}, s2, 3\ns_add_u32 s{T}, s{T}, s{sW}\ns_lshl_b32 s{T}, s{T}, 9\ns_add_u32 s{T}, s{T}, {WS_STAMP}\nv_lshlrev_b32 v16, 2, v{vL}")
        a(f"buffer_store_dword v7, v16, s[{S_WS}:{S_WS+3}], s{T} offen\nbuffer_store_dword v6, v16, s[{S_WS}:{S_WS+3}], s{T} offen offset:256")
    a("L_end:\ns_endpgm")
    softmax_safe(a)
    for x in ool: a(x)
    s = HDR + "; @launch grid=(256,1,1) block=(512,1,1) lds=163840\n"
    s += '.amdgcn_target "amdgcn-amd-amdhsa--gfx950"\n.text\n' + a.text().replace("CODE_SPAN", str(C.span))
    s += f""".section .rodata,"a"
.p2align 6
.amdhsa_kernel {K}
  .amdhsa_next_free_vgpr 256
  .amdhsa_next_free_sgpr 102
  .amdhsa_accum_offset {NARCH}
  .amdhsa_group_segment_fixed_size 0
  .amdhsa_kernarg_size 88
  .amdhsa_user_sgpr_count 2
  .amdhsa_user_sgpr_kernarg_segment_ptr 1
  .amdhsa_system_sgpr_workgroup_id_x 1
.end_amdhsa_kernel
"""
    open(out, "w").write(s)
    if C.stamp: open(out + ".stamps", "w").write("\n".join(STAMPS))

if __name__ == "__main__":
    for arg in sys.argv[2:]:
        k, v = arg.split("="); setattr(C, k, v if isinstance(getattr(C, k), str) else type(getattr(C, k))(int(v)))
    main(sys.argv[1])
```

```python
import sys, struct
NAME = "interleave_layers__softmax_full_mha__mixer_token_mlp__prompt"
HDR = open("cdna_kernels/%s.s.ref" % NAME).read().split("; Override launch")[0]
MB = 1 << 20
WS_KV, WS_O, WS_H, WS_U, WS_X2, WS_ST = 0*MB, 4*MB, 6*MB, 8*MB, 10*MB, 12*MB
LSTRIDE = 16*MB
WS_FLAG = 32*MB
WS_XT = WS_FLAG + 131072
WS_STAMP = 40*MB
KA = dict(x=0, wqkv=8, wo=16, w1=32, b1=40, w2=48, b2=56, out=64, dbg=72, ws=80)
SZ = dict(x=2048*512*2, wqkv=512*1536*2, wo=512*512*2, w1=2048*1792*2, b1=1792*2, w2=1792*2048*2, b2=2048*2,
          out=2048*512*2, dbg=256, ws=1 << 28)
FL = dict(KV=0, H=64, U=128, O=192, X=224, UB=256, KL=320)
COLK = ('KV', 'H', 'U', 'UB')
SPIN = 200000
NARCH = 144

class Cfg:
    stamp = False
    prio = True
    lowtiles = 1
    D = 3
    nB = 12
    sch1 = '033343'
    sch2 = '003040'
    sch3 = '426'
    stouch = 0
    p1touch = 0
    now1 = 0
    local = 1
    schw = '002222'
    eps = '99abbbc'
    wlast = 1
    defer = 0
    optx = 0
    n1 = 0
    n2 = 0
    deep = 1
    wa5 = 13
    xp = 2
    early = 6
    q5 = 1
    q5s = 10
    lf = 1
    lfi = 1
    lfc = 2
    c3 = 1
    pub12 = 1
    w1nt = 0
    w2nt = 0
    xrot = 1
    xnt = 0
    lateinit = 1
    arrs = 4
    dbgs = 9
    sent = 1
    ldo = 1
    preto = 1
    sentwait = 1
    fixed = 1
    lprio = 0
    wo1 = 12
    finplain = 0
    vtlb = 0
    vsh = 21
    ntkv = 0
    ntact = 0
    qrot = 0
    w1mask = 7
    w1e = -2
    schx = '01434'
    pbi = 2
    sb = 4
    init5 = 4
    schv = '22220'
    pubs = 14
    pbs = 3
    init = 4
    pae = 1
    order = 1
    ldsper = 3
    epa = 0
    t2 = 28
    sonly = ''
    tmix = 1
    cpf = 0
    span = 30720
    ldata = 0
    pret = 0
    prett = 24
    hs1 = '322211222000'
    hs0 = '222222220000'
    h0first = 4
    h0second = 4
    w1t = 9
    p1per = 4
    qtouch = 2
    pper = 16
    plow = 3
    split = 1
    kvfix = 0
    xsel = 'wot'
    nofirst = 0
    tlb = 0
    lowhalf = 3
    jrot = 6
    nox = 0
    notr = 0
    loop = 0
    pad = 0
    align = 3
    nQ = 12
C = Cfg()

class Asm:
    def __init__(self): self.L = []; self.n = 0
    def __call__(self, s):
        for line in s.split("\n"):
            line = line.strip()
            if line: self.L.append(("" if line.endswith(":") else "    ") + line)
    def label(self, p="L"):
        self.n += 1; return f"{p}{self.n}"
    def text(self): return "\n".join(self.L) + "\n"

def f2u(x): return hex(struct.unpack("<I", struct.pack("<f", x))[0])

S_XS, S_QKV, S_WS, S_WO, S_W1, S_W2, S_B1, S_B2, S_XD, S_DBG, S_KV = 8, 12, 16, 20, 24, 28, 32, 36, 40, 44, 80
sI, sJ, sW, sL, sLB, sFL = 48, 49, 50, 51, 52, 53
sW2S = 54
sVW = 55
sLOC = 56
sXO = 57
sOUT = 58
sR2 = 80
T = 60
sST = 76
sRET = 84
vL, vN, vC, vL16, vXO = 1, 2, 3, 4, 5
vRES = 8
vF2, vTRF, vWQ = 12, 13, 14
TV = 16
E, V = 0, 65536
QX = V + 11*8192
SVO = 32768
STG = V

STAMPS = []
def stamp(a, name):
    if not C.stamp: return
    if C.sonly:
        if not (name == "start" or any(name.startswith(p) for p in C.sonly.split(","))): return
    elif name.startswith("z") or name.startswith("entry"): return
    k = len(STAMPS); assert k < 32
    a(f"s_memtime s[{sST}:{sST+1}]\ns_memrealtime s[{sST+2}:{sST+3}]\ns_waitcnt lgkmcnt(0)")
    a(f"v_writelane_b32 v6, s{sST}, {k}\nv_writelane_b32 v6, s{sST+2}, {k+32}")
    STAMPS.append(name)

def dpp_red8(a, regs):
    for pat in ("quad_perm:[1,0,3,2]", "quad_perm:[2,3,0,1]", "row_half_mirror"):
        a("s_nop 1")
        for r in regs: a(f"v_add_f32_dpp v{r}, v{r}, v{r} {pat} row_mask:0xf bank_mask:0xf")

def tr_addr(a, vd, xh, perm, t0, t1):
    a(f"v_lshrrev_b32 v{t0}, 5, v{vL}\nv_lshlrev_b32 v{t0}, {2 if perm else 3}, v{t0}")
    a(f"v_bfe_u32 v{t1}, v{vL}, 2, 2\nv_add_u32 v{t0}, v{t0}, v{t1}\nv_lshlrev_b32 v{vd}, 7, v{t0}")
    a(f"v_lshrrev_b32 v{t1}, 1, v{t1}\nv_xor_b32 v{t1}, {xh}, v{t1}\nv_lshl_add_u32 v{vd}, v{t1}, 6, v{vd}")
    a(f"v_bfe_u32 v{t1}, v{vL}, 4, 1\nv_lshl_add_u32 v{vd}, v{t1}, 5, v{vd}")
    a(f"v_and_b32 v{t1}, 3, v{vL}\nv_lshl_add_u32 v{vd}, v{t1}, 3, v{vd}")

def interleave(a, m, r):
    per = -(-len(r)//len(m))
    for x in range(len(m)):
        a(m[x])
        for y in r[x*per:(x+1)*per]: a(y)

def rstore(a, instr, bulk=False):
    if not C.local or (bulk and not C.ldata):
        a(instr + " sc1"); return
    L = a.label(); L2 = a.label()
    a(f"s_cmp_eq_u32 s{sLOC}, 1\ns_cbranch_scc1 {L}\n{instr} sc1\ns_branch {L2}\n{L}:\n{instr}\n{L2}:")

def publish(a, kind, group_s, tv=None):
    if kind not in COLK:
        a(f"s_lshl_b32 s{T}, s{group_s}, 7\ns_add_u32 s{T}, s{T}, {FL[kind]*128}\ns_add_u32 s{T}, s{T}, s{sFL}\ns_lshl_b32 s{T+1}, s{sJ}, 4\ns_add_u32 s{T}, s{T}, s{T+1}")
        a(f"v_mov_b32 v{TV}, 1\ns_mov_b64 exec, 1")
        rstore(a, f"buffer_store_dword v{TV}, v{vL16}, s[{S_WS}:{S_WS+3}], s{T} offen")
        a("s_mov_b64 exec, -1")
        return
    col = kind in COLK
    a(f"s_lshl_b32 s{T}, s{group_s}, {10 if col else 7}\ns_add_u32 s{T}, s{T}, {FL[kind]*128}\ns_add_u32 s{T}, s{T}, s{sFL}")
    a(f"v_mov_b32 v{TV}, 1\nv_lshlrev_b32 v{TV+1}, 7, v{vL}\ns_mov_b64 exec, {0xff if col else 1}")
    a(f"buffer_atomic_add v{TV}, v{TV+1}, s[{S_WS}:{S_WS+3}], s{T} offen sc1")
    a("s_mov_b64 exec, -1")

def poll(a, kind, group_s, n):
    col = kind in COLK
    a(f"s_lshl_b32 s{T}, s{group_s}, {10 if col else 7}\ns_add_u32 s{T}, s{T}, {FL[kind]*128}\ns_add_u32 s{T}, s{T}, s{sFL}")
    if col: a(f"s_lshr_b32 s{T+1}, s{sI}, 2\ns_lshl_b32 s{T+1}, s{T+1}, 7\ns_add_u32 s{T}, s{T}, s{T+1}")
    a(f"s_mov_b64 exec, {1 if col else 0xff}\ns_mov_b32 s{T+1}, {SPIN}")
    LP = a.label(); LD = a.label()
    a(f"{LP}:")
    a(f"buffer_load_dword v{TV}, v{vL16}, s[{S_WS}:{S_WS+3}], s{T} offen sc1")
    a(f"s_waitcnt vmcnt(0)\nv_cmp_ne_u32 vcc, {n if col else 1}, v{TV}")
    a(f"s_cbranch_vccz {LD}")
    a(f"s_sub_u32 s{T+1}, s{T+1}, 1\ns_cmp_lg_u32 s{T+1}, 0\ns_cbranch_scc1 {LP}")
    a(f"{LD}:\ns_mov_b64 exec, -1")

def kl_addr(a):
    a(f"s_lshr_b32 s{T}, s{sI}, 2\ns_lshl_b32 s{T}, s{T}, 3\ns_add_u32 s{T}, s{T}, s{sJ}\ns_lshl_b32 s{T}, s{T}, 7\ns_add_u32 s{T}, s{T}, {FL['KL']*128}\ns_add_u32 s{T}, s{T}, s{sFL}")

def kl_publish(a):
    kl_addr(a)
    a(f"s_and_b32 s{T+1}, s{sI}, 3\ns_lshl_b32 s{T+1}, s{T+1}, 4\ns_add_u32 s{T}, s{T}, s{T+1}\nv_mov_b32 v{TV+3}, 1\ns_mov_b64 exec, 1")
    rstore(a, f"buffer_store_dword v{TV+3}, v{vL16}, s[{S_WS}:{S_WS+3}], s{T} offen")
    a("s_mov_b64 exec, -1")

def kl_poll(a):
    kl_addr(a)
    a(f"s_mov_b64 exec, 15\ns_mov_b32 s{T+1}, {SPIN}")
    LP = a.label(); LD = a.label()
    a(f"{LP}:\nbuffer_load_dword v{TV}, v{vL16}, s[{S_WS}:{S_WS+3}], s{T} offen sc1\ns_waitcnt vmcnt(0)\nv_cmp_ne_u32 vcc, 1, v{TV}\ns_cbranch_vccz {LD}")
    a(f"s_sub_u32 s{T+1}, s{T+1}, 1\ns_cmp_lg_u32 s{T+1}, 0\ns_cbranch_scc1 {LP}\n{LD}:\ns_mov_b64 exec, -1")

def if_wave_eq(a, w, body):
    L = a.label()
    a(f"s_cmp_lg_u32 s{sW}, {w}\ns_cbranch_scc1 {L}")
    body()
    a(f"{L}:")

def qslot(u): return (u + 5) % 12
def qkv_src(u): return (u >> 1)*64*3072 + (1 + (u & 1))*1024 if u < 16 else (u-16)*64*3072

def qkv_row(a, d, base, u):
    if not C.qrot:
        a(f"s_mov_b32 s{d}, s{base}"); return qkv_src(u)
    a(f"s_add_u32 s{d}, s{sR2}, {u >> 1 if u < 16 else u - 16}\ns_and_b32 s{d}, s{d}, 7\ns_mul_i32 s{d}, s{d}, {64*3072}\ns_add_u32 s{d}, s{d}, s{base}")
    return (1 + (u & 1))*1024 if u < 16 else 0

def qkv_base8(a, s):
    a(f"s_mul_i32 s{s}, s{sW}, {8*3072}\ns_lshl_b32 s{T}, s{sJ}, 7\ns_add_u32 s{s}, s{s}, s{T}")

def qkv_piece8(a, s, u):
    seg = qkv_row(a, T, s, u)
    a(f"s_add_u32 m0, s{sVW}, {qslot(u)*8192}\ns_add_u32 s{T}, s{T}, {seg}")
    a(f"buffer_load_dwordx4 v{vWQ}, s[{S_QKV}:{S_QKV+3}], s{T} offen lds")

def w2_dma(a, f):
    a(f"s_add_u32 m0, s{sVW}, {SVO + ((f+4) % 8)*8192}\ns_add_u32 s{T}, s{sW2S}, {f*16*4096}")
    a(f"buffer_load_dwordx4 v{vF2}, s[{S_W2}:{S_W2+3}], s{T} offen lds")

def frag_reads(dst, vaddr, off):
    p, n = dst[0], int(dst[1:])
    return [f"ds_read_b64_tr_b16 {p}[{n}:{n+1}], v{vaddr} offset:{off}", f"ds_read_b64_tr_b16 {p}[{n+2}:{n+3}], v{vaddr} offset:{off+256}"]

W2V = 32
def w2_reg(f): return f"v{W2V+4*f}" if f < 4 else f"a{4*(f-4)}"
def w2_reads(f): return frag_reads(w2_reg(f), vTRF, ((f+4) % 8)*8192)

def prologue(a):
    if C.stamp: a("s_memtime s[96:97]\ns_memrealtime s[98:99]")
    a("s_load_dwordx16 s[64:79], s[0:1], 0\ns_load_dwordx4 s[84:87], s[0:1], 64\ns_load_dwordx2 s[88:89], s[0:1], 80")
    a(f"s_cmp_ge_u32 s2, 256\ns_cbranch_scc1 L_end")
    a(f"v_lshrrev_b32 v{vL}, 6, v0\ns_lshr_b32 s{sJ}, s2, 5\nv_readfirstlane_b32 s{sW}, v{vL}\nv_and_b32 v{vL}, 63, v0")
    a(f"s_and_b32 s{sI}, s2, 7\ns_lshl_b32 s{sI}, s{sI}, 2\ns_bfe_u32 s{T}, s2, 0x20003\ns_or_b32 s{sI}, s{sI}, s{T}")
    a(f"v_lshrrev_b32 v{vN}, 3, v0\nv_and_b32 v{vC}, 7, v0")
    a(f"s_lshl_b32 s{T}, s{sJ}, {3 if C.xrot else 6}\nv_add_u32 v42, s{T}, v{vN}\nv_and_b32 v42, 63, v42")
    a(f"v_bfe_u32 v41, v42, 1, 3\nv_xor_b32 v41, v41, v{vC}\nv_lshlrev_b32 v41, 4, v41\nv_lshl_add_u32 v{vXD}, v42, 10, v41")
    a(f"s_mov_b32 s{S_XS+2}, {hex(SZ['x'])}\ns_mov_b32 s{S_XS+3}, 0x00020000\ns_mov_b32 s{S_QKV+2}, {hex(SZ['wqkv'])}\ns_mov_b32 s{S_QKV+3}, s{S_XS+3}")
    a(f"s_and_b32 s{sR2}, s{sI}, {3 if C.qrot else 0}\ns_lshl_b32 s{sR2}, s{sR2}, 1")
    if C.qtouch:
        a(f"s_mul_i32 s{T+2}, s2, {48*128}\ns_lshr_b32 s{T+3}, s2, 3\ns_mul_i32 s{T+3}, s{T+3}, {48*1024}\ns_addk_i32 s{T+3}, 384")
        a(f"s_cmp_eq_u32 s{sW}, 0\ns_cselect_b32 s{T+2}, s{T+2}, s{T+3}\ns_cselect_b32 s{T+3}, 7, 10\nv_min_u32 v41, 47, v{vL}\nv_lshlrev_b32 v41, s{T+3}, v41")
    if C.stamp: a("v_mov_b32 v6, 0\nv_mov_b32 v7, 0")
    L = a.label()
    a(f"s_cmp_gt_u32 s{sW}, 1\ns_waitcnt lgkmcnt(0)\ns_mov_b64 s[{S_XS}:{S_XS+1}], s[64:65]\ns_mov_b64 s[{S_QKV}:{S_QKV+1}], s[66:67]")
    if C.qtouch: a(f"s_cbranch_scc1 {L}\nbuffer_load_dword v143, v41, s[{S_QKV}:{S_QKV+3}], s{T+2} offen\n{L}:")
    x_dma(a, fl="")
    for s, n in ((S_WO, "wo"), (S_W1, "w1"), (S_W2, "w2"), (S_B1, "b1"), (S_B2, "b2")):
        a(f"s_mov_b64 s[{s}:{s+1}], s[{64 + KA[n]//4}:{65 + KA[n]//4}]")
    a(f"s_mov_b64 s[{sOUT}:{sOUT+1}], s[84:85]\ns_mov_b64 s[{S_DBG}:{S_DBG+1}], s[86:87]\ns_mov_b64 s[{S_WS}:{S_WS+1}], s[88:89]")
    if C.stamp:
        a(f"v_writelane_b32 v6, s96, 0\nv_writelane_b32 v6, s98, 32"); STAMPS.append("start")
    for s, n in ((S_WS, "ws"), (S_WO, "wo"), (S_W1, "w1"), (S_W2, "w2"), (S_B1, "b1"), (S_B2, "b2"), (S_DBG, "dbg"), (S_XD, "x")):
        a(f"s_mov_b32 s{s+2}, {hex(SZ[n])}\ns_mov_b32 s{s+3}, 0x00020000")
    a(f"s_add_u32 s{S_XD}, s{S_WS}, {WS_X2}\ns_addc_u32 s{S_XD+1}, s{S_WS+1}, 0")
    a(f"v_lshlrev_b32 v{vL16}, 4, v{vL}")
    a(f"s_lshl_b32 s{sXO}, s{sI}, 16\ns_lshl_b32 s{T}, s{sJ}, 7\ns_add_u32 s{sXO}, s{sXO}, s{T}")
    a(f"s_mov_b32 s{sLOC}, 0\ns_mov_b32 s{sL}, 0\ns_mov_b32 s{sLB}, 0\ns_mov_b32 s{sFL}, {WS_FLAG}")
    a(f"v_lshrrev_b32 v40, 3, v{vL}\nv_bfe_u32 v41, v{vL}, 4, 1\nv_lshlrev_b32 v41, 2, v41\nv_and_b32 v42, 7, v{vL}\nv_xor_b32 v41, v41, v42\nv_lshlrev_b32 v41, 4, v41")
    a(f"v_mul_u32_u24 v{vWQ}, 3072, v40\nv_add_u32 v{vWQ}, v{vWQ}, v41")
    a(f"s_lshl_b32 s{sVW}, s{sW}, 10\ns_add_u32 s{sVW}, s{sVW}, {V}")
    a(f"v_bfe_u32 v41, v{vN}, 1, 1\nv_bfe_u32 v42, v{vN}, 2, 1\nv_and_b32 v{vN}, 0x39, v{vN}\nv_lshl_add_u32 v{vN}, v41, 2, v{vN}\nv_lshl_add_u32 v{vN}, v42, 1, v{vN}")
    a(f"v_lshlrev_b32 v{vXO}, 10, v{vN}\nv_lshl_add_u32 v{vXO}, v{vC}, 4, v{vXO}")

def prologue2(a):
    a(f"v_lshrrev_b32 v42, 2, v{vL}\nv_and_b32 v43, 3, v{vL}\nv_lshlrev_b32 v43, 4, v43")
    a(f"v_lshl_add_u32 v{vF2}, v42, 12, v43")
    a(f"v_lshrrev_b32 v42, 5, v{vL}\nv_lshlrev_b32 v42, 3, v42\nv_bfe_u32 v43, v{vL}, 2, 2\nv_add_u32 v42, v42, v43\nv_lshlrev_b32 v{vTRF}, 6, v42")
    a(f"v_bfe_u32 v43, v{vL}, 4, 1\nv_lshl_add_u32 v{vTRF}, v43, 5, v{vTRF}\nv_and_b32 v43, 3, v{vL}\nv_lshl_add_u32 v{vTRF}, v43, 3, v{vTRF}")
    a(f"v_add_u32 v{vTRF}, s{sVW}, v{vTRF}\nv_add_u32 v{vTRF}, {SVO}, v{vTRF}")
    a(f"s_lshr_b32 s{sW2S}, s{sW}, 1\ns_mul_i32 s{sW2S}, s{sW2S}, {448*4096}\ns_lshl_b32 s{T}, s{sI}, 7\ns_add_u32 s{sW2S}, s{sW2S}, s{T}")
    a(f"s_and_b32 s{T}, s{sW}, 1\ns_lshl_b32 s{T}, s{T}, 6\ns_add_u32 s{sW2S}, s{sW2S}, s{T}")

def tlb_touch(a):
    if not C.tlb: return
    a(f"s_sub_u32 s{T+4}, s{sW}, 4\ns_lshl_b32 s{T}, s{T+4}, 21")
    for k in range(4): a(f"s_add_u32 s{T+1}, s{T}, {(k & 1)*8*MB + (k >> 1)*LSTRIDE}\ns_buffer_load_dword s86, s[{S_WS}:{S_WS+3}], s{T+1}")
    for srd in (S_W1, S_W2): a(f"s_buffer_load_dword s86, s[{srd}:{srd+3}], s{T}")
    a(f"s_lshl_b32 s{T}, s{T+4}, 19\ns_load_dword s86, s[{sOUT}:{sOUT+1}], s{T}")
    a(f"s_buffer_load_dword s86, s[{S_WO}:{S_WO+3}], 0\ns_buffer_load_dword s86, s[{S_B1}:{S_B1+3}], 0\ns_buffer_load_dword s86, s[{S_B2}:{S_B2+3}], 0")

def init_sync(a, w=3):
    def body():
        a("v_mov_b32 v44, 0\nv_mov_b32 v45, 0\nv_mov_b32 v46, 0\nv_mov_b32 v47, 0")
        a(f"s_lshl_b32 s{T}, s2, 10\ns_add_u32 s{T}, s{T}, {WS_ST}\ns_add_u32 s{T+1}, s{T}, {LSTRIDE}")
        a(f"buffer_store_dwordx4 v[44:47], v{vL16}, s[{S_WS}:{S_WS+3}], s{T} offen sc1")
        a(f"buffer_store_dwordx4 v[44:47], v{vL16}, s[{S_WS}:{S_WS+3}], s{T+1} offen sc1")
        a(f"s_lshl_b32 s{T}, s2, 9\ns_add_u32 s{T}, s{T}, {WS_FLAG}\ns_mov_b32 exec_hi, 0")
        a(f"buffer_store_dwordx4 v[44:47], v{vL16}, s[{S_WS}:{S_WS+3}], s{T} offen sc1")
        if C.sent:
            a(f"s_mov_b64 exec, -1\nv_mov_b32 v100, -1\nv_mov_b32 v101, -1\nv_mov_b32 v102, -1\nv_mov_b32 v103, -1\ns_lshl_b32 s{T}, s2, 13\ns_add_u32 s{T}, s{T}, {WS_O}\ns_add_u32 s{T+1}, s{T}, 4096")
            for k in range(8): a(f"buffer_store_dwordx4 v[100:103], v{vL16}, s[{S_WS}:{S_WS+3}], s{T + (k >> 2)} offen offset:{(k & 3)*1024} sc1")
        a(f"s_getreg_b32 s{T+1}, hwreg(HW_REG_XCC_ID, 0, 4)\ns_mov_b64 exec, 1\nv_mov_b32 v48, s{T+1}")
        a(f"s_lshl_b32 s{T}, s{sI}, 3\ns_add_u32 s{T}, s{T}, s{sJ}\ns_lshl_b32 s{T}, s{T}, 4\ns_add_u32 s{T}, s{T}, {WS_XT}")
        a(f"buffer_store_dword v48, v{vL16}, s[{S_WS}:{S_WS+3}], s{T} offen sc1")
        a("s_mov_b64 exec, -1")
    if_wave_eq(a, w, body)

def init_arrive(a, w=3, pre="s_nop 0", tv=TV):
    L = a.label()
    a(f"s_cmp_lg_u32 s{sW}, {w}\ns_cbranch_scc1 {L}\n{pre}")
    a(f"v_mov_b32 v{tv}, 1\nv_mov_b32 v{tv+1}, 0\ns_and_b32 s{T}, s2, 63\ns_lshl_b32 s{T}, s{T}, 2\ns_mov_b64 exec, 1")
    a(f"buffer_atomic_add v{tv}, v{tv+1}, s[{S_DBG}:{S_DBG+3}], s{T} offen sc1")
    a(f"s_mov_b64 exec, -1\n{L}:")

def wait_init(a, vaddr):
    a(f"s_mov_b32 s{T+1}, {SPIN}")
    LP = a.label(); LD = a.label()
    a(f"{LP}:\nv_cmp_gt_u32 vcc, 4, v{TV+2}\ns_cbranch_vccz {LD}")
    a(f"buffer_load_dword v{TV+2}, v{vaddr}, s[{S_DBG}:{S_DBG+3}], 0 offen sc1\ns_waitcnt vmcnt(0)")
    a(f"s_sub_u32 s{T+1}, s{T+1}, 1\ns_cmp_lg_u32 s{T+1}, 0\ns_cbranch_scc1 {LP}")
    a(f"{LD}:\ns_mov_b64 exec, -1")

class VM:
    def __init__(self): self.ops = []
    def add(self, tag, n=1): self.ops += [tag]*n
    def need(self, *tags):
        last = max(k for k, t in enumerate(self.ops) if t in tags)
        return min(63, len(self.ops) - 1 - last)

vXD = 15
TAB = V + 5*8192
WS_ST2 = 12*MB + 512*1024
WS_CS = 13*MB

def x_dma(a, qs=range(8), fl="sc1"):
    X1 = 81
    a(f"s_lshl_b32 s{T}, s{sI}, 16\n" + (f"s_add_u32 s{T+1}, s{sW}, s{sJ}\ns_and_b32 s{T+1}, s{T+1}, 7\ns_lshl_b32 s{T+1}, s{T+1}, 10" if C.xrot else f"s_lshl_b32 s{T+1}, s{sW}, 10"))
    for q in qs:
        if not C.qrot:
            a(f"s_add_u32 m0, s{T+1}, {E + q*8192 - q*128}\ns_nop 0\nbuffer_load_dwordx4 v{vXD}, s[{S_XS}:{S_XS+3}], s{T} offen offset:{128*q} {fl} lds")
            continue
        if q % 2 == 0 or q == qs[0]: a(f"s_add_u32 s{X1}, s{sR2}, {q & 6}\ns_and_b32 s{X1}, s{X1}, 7\ns_lshl_b32 s{X1}, s{X1}, 7\ns_add_u32 s{X1}, s{X1}, s{T}")
        a(f"s_add_u32 m0, s{T+1}, {E + q*8192 - (q & 1)*128}\ns_nop 0")
        a(f"buffer_load_dwordx4 v{vXD}, s[{S_XS}:{S_XS+3}], s{X1} offen offset:{128*(q & 1)} {fl} lds")

def split_hi_lo(a, src, hi2, lo2, t, neg=False):
    if neg: a(f"v_sub_f32 v{src}, 0, v{src}")
    a(f"v_cvt_pk_bf16_f32 v{t}, v{src}, v{src}\nv_and_b32 v{t}, 0xffff0000, v{t}\nv_sub_f32 v{t+1}, v{src}, v{t}")

def own_stats(a, D, A, MUo, Ro, ADo):
    a(f"s_add_u32 s{T}, s{sW}, s{sJ}\ns_and_b32 s{T}, s{T}, 7" if C.xrot else f"s_mov_b32 s{T}, s{sW}")
    a(f"s_lshl_b32 s{T+1}, s{T}, 10\nv_add_u32 v{ADo}, s{T+1}, v{vL16}")
    for q in range(8): a(f"ds_read_b128 v[{D+4*q}:{D+4*q+3}], v{ADo} offset:{q*8192}")
    for r in range(4): a(f"v_mov_b32 v{A+r}, 0")
    a(f"v_mov_b32 v{A+4}, 0x3f803f80\ns_lshl_b32 s{T}, s{T}, 5\ns_add_u32 s{T}, s{T}, {TAB}\nv_lshrrev_b32 v{ADo}, 3, v{vL}\nv_lshlrev_b32 v{ADo}, 2, v{ADo}\nv_add_u32 v{ADo}, s{T}, v{ADo}")
    for q in range(8):
        a(f"s_waitcnt lgkmcnt({7-q})")
        for e in (0, 2):
            r = D+4*q+e
            a(f"v_dot2c_f32_bf16 v{A}, v{r}, v{A+4}\nv_dot2c_f32_bf16 v{A+2}, v{r}, v{r}\nv_dot2c_f32_bf16 v{A+1}, v{r+1}, v{A+4}\nv_dot2c_f32_bf16 v{A+3}, v{r+1}, v{r+1}")
    a(f"s_nop 2\nv_add_f32 v{MUo}, v{A}, v{A+1}\nv_add_f32 v{Ro}, v{A+2}, v{A+3}")
    dpp_red8(a, [MUo, Ro])
    a(f"v_mul_f32 v{MUo}, {f2u(1/512)}, v{MUo}\nv_mul_f32 v{Ro}, {f2u(1/512)}, v{Ro}")
    a(f"v_fma_f32 v{Ro}, -v{MUo}, v{MUo}, v{Ro}\nv_max_f32 v{Ro}, 0, v{Ro}\nv_add_f32 v{Ro}, {f2u(1e-5)}, v{Ro}\nv_rsq_f32 v{Ro}, v{Ro}")

def layer0_helpers(a):
    LJ = "L_p1_join"; LB = a.label()
    a(f"s_cmp_ge_u32 s{sW}, 6\ns_cbranch_scc1 {LB}")
    src, dst = T+2, T+3
    a(f"s_sub_u32 s{dst}, s{sW}, 4\ns_mul_i32 s{src}, s{dst}, {32*3072}\ns_lshl_b32 s{T}, s{sJ}, 7\ns_add_u32 s{src}, s{src}, s{T}")
    a(f"s_lshl_b32 s{dst}, s{dst}, 12\ns_add_u32 s{dst}, s{dst}, {V}")
    vm = VM()
    def unit(u):
        seg = qkv_row(a, T+1, src, u)
        for p in range(4):
            a(f"s_add_u32 m0, s{dst}, {qslot(u)*8192 + p*1024}\ns_add_u32 s{T}, s{T+1}, {seg + p*8*3072}")
            a(f"buffer_load_dwordx4 v{vWQ}, s[{S_QKV}:{S_QKV+3}], s{T} offen lds")
        vm.add(("w", u), 4)
    for u in range(C.h0first): unit(u)
    a(f"s_waitcnt vmcnt({4*C.h0first})")
    own_stats(a, 48, 80, 42, 44, 40)
    issued = C.h0first
    for u in range(C.h0second): unit(issued); issued += 1
    sched = [int(c) for c in C.hs0]
    for s in range(12):
        a(f"s_waitcnt vmcnt({vm.need(('w', 2*s+1))})" + (" lgkmcnt(0)" if s == 8 else "") + "\ns_barrier")
        if s == 7: a("ds_write_b32 v40, v42\nds_write_b32 v40, v44 offset:256")
        for _ in range(sched[s]):
            assert issued < 2*s + 12 and issued < 24
            unit(issued); issued += 1
        assert s == 11 or issued >= 2*s + 4
    assert issued == 24
    a(f"s_barrier\ns_branch {LJ}")
    a(f"{LB}:")
    init_sync(a, 7)
    if C.vtlb:
        def body():
            sh = C.vsh
            a(f"v_lshlrev_b32 v49, {sh}, v{vL}\ns_lshl_b32 s{T}, s2, 7")
            a(f"s_mov_b32 s{S_WS+2}, {hex(34*MB)}\nbuffer_load_dword v136, v49, s[{S_WS}:{S_WS+3}], s{T} offen\ns_mov_b32 s{S_WS+2}, {hex(SZ['ws'])}")
            for k, srd in enumerate((S_W1, S_W2, S_WO)): a(f"buffer_load_dword v{137+k}, v49, s[{srd}:{srd+3}], s{T} offen")
            a(f"buffer_load_dword v140, v49, s[{S_B1}:{S_B1+3}], 0 offen\nbuffer_load_dword v140, v49, s[{S_B2}:{S_B2+3}], 0 offen")
            a(f"v_and_b32 v50, 0x1fffff, v49\nglobal_load_dword v140, v50, s[{sOUT}:{sOUT+1}]")
        if_wave_eq(a, 6, body)
    L4 = a.label()
    a(f"s_waitcnt vmcnt({12 if C.sent else 4})\ns_cmp_eq_u32 s{sW}, 7\ns_cbranch_scc1 {L4}\ns_waitcnt vmcnt({7 if C.vtlb else 0})\n{L4}:")
    def w1touch(mask):
        a(f"s_lshl_b32 s{T}, s2, 1\ns_add_u32 s{T}, s{T}, s{sW}\ns_sub_u32 s{T}, s{T}, 6\ns_mul_i32 s{T+1}, s{T}, {112*128}\nv_min_u32 v49, 55, v{vL}\nv_lshlrev_b32 v49, 7, v49")
        if mask & 1: a(f"buffer_load_dword v141, v49, s[{S_W1}:{S_W1+3}], s{T+1} offen")
        if mask & 2: a(f"s_add_u32 s{T+1}, s{T+1}, {56*128}\nbuffer_load_dword v142, v49, s[{S_W1}:{S_W1+3}], s{T+1} offen")
        if mask & 4: a(f"s_lshl_b32 s{T+1}, s{T}, 10\nv_and_b32 v49, 0x380, v49\nbuffer_load_dword v143, v49, s[{S_WO}:{S_WO+3}], s{T+1} offen")
    if C.w1e == -1: w1touch(7 & ~C.w1mask)
    own_stats(a, 52, 84, 42, 43, 40)
    for s in range(12):
        if s == 8: a("s_waitcnt lgkmcnt(0)")
        a("s_barrier")
        if s == 7: a("ds_write_b32 v40, v42\nds_write_b32 v40, v43 offset:256")
        if s == C.arrs: init_arrive(a, 7, pre="s_waitcnt vmcnt(0)")
        if s == C.dbgs: a(f"v_lshlrev_b32 v41, 2, v{vL}\nbuffer_load_dword v{TV+2}, v41, s[{S_DBG}:{S_DBG+3}], 0 offen sc1")
        if s == C.w1t: w1touch(C.w1mask)
        if s == C.w1e: w1touch(7 & ~C.w1mask)
    assert C.w1t >= C.dbgs and C.w1e < C.dbgs
    a(f"s_waitcnt vmcnt({bin(C.w1mask).count('1') if C.w1t < 12 else 0})")
    if_wave_eq(a, 6, lambda: wait_init(a, 41))
    a("s_barrier")
    def pub():
        if C.lf: kl_publish(a)
        publish(a, "KV", sJ)
    if_wave_eq(a, 6, pub)
    a(f"s_branch {LJ}")

def helper_setup(a):
    src, dst = T+2, T+3
    a(f"s_sub_u32 s{dst}, s{sW}, 4\ns_mul_i32 s{src}, s{dst}, {16*3072}\ns_lshl_b32 s{T}, s{sJ}, 7\ns_add_u32 s{src}, s{src}, s{T}")
    a(f"s_lshl_b32 s{T}, s{dst}, 4\nv_lshrrev_b32 v40, 2, v{vL}\nv_add_u32 v40, s{T}, v40")
    a(f"s_lshl_b32 s{dst}, s{dst}, 11\ns_add_u32 s{dst}, s{dst}, {V}")

def helper_unit(a, u, vm):
    seg = qkv_row(a, T+1, T+2, u)
    for p in range(2):
        a(f"s_add_u32 m0, s{T+3}, {qslot(u)*8192 + p*1024}\ns_add_u32 s{T}, s{T+1}, {seg + p*8*3072}")
        a(f"buffer_load_dwordx4 v{vWQ}, s[{S_QKV}:{S_QKV+3}], s{T} offen lds")
    vm.add(("w", u), 2)

def helper_loop(a, layer, vm, issued, sched, LJ):
    ROW, S1, S2, G = 40, 42, 44, 48
    first = issued
    for s in range(12):
        tags = [t for t in [("x", s), ("w", 2*s+1)] if t in vm.ops]
        if s == 6 and layer == 1: tags.append("g")
        if tags: a(f"s_waitcnt vmcnt({vm.need(*tags)})")
        if s == 8: a("s_waitcnt lgkmcnt(0)")
        a("s_barrier")
        if s == 7: a(f"ds_write_b32 v{ROW}, v{S1}\nds_write_b32 v{ROW}, v{S2} offset:256")
        for _ in range(sched[s]):
            assert issued < 2*s + 12 and issued < 24
            helper_unit(a, issued, vm); issued += 1
        assert s == 11 or issued >= 2*s + 4
        if s == 6:
            if layer == 1: a(f"v_add_f32 v{S1}, v{G}, v{G+2}\nv_add_f32 v{S2}, v{G+1}, v{G+3}")
            for pat in ("quad_perm:[1,0,3,2]", "quad_perm:[2,3,0,1]"):
                a("s_nop 1")
                for r in (S1, S2): a(f"v_add_f32_dpp v{r}, v{r}, v{r} {pat} row_mask:0xf bank_mask:0xf")
            a(f"v_mul_f32 v{S1}, {f2u(1/512)}, v{S1}\nv_mul_f32 v{S2}, {f2u(1/512)}, v{S2}")
            a(f"v_fma_f32 v{S2}, -v{S1}, v{S1}, v{S2}\nv_max_f32 v{S2}, 0, v{S2}\nv_add_f32 v{S2}, {f2u(1e-5)}, v{S2}\nv_rsq_f32 v{S2}, v{S2}")
            a(f"v_lshlrev_b32 v{ROW}, 2, v{ROW}\nv_add_u32 v{ROW}, {TAB}, v{ROW}")
        if s == 8 and layer == 0:
            a(f"v_lshlrev_b32 v46, 2, v{vL}\nbuffer_load_dword v{TV+2}, v46, s[{S_DBG}:{S_DBG+3}], 0 offen sc1"); vm.add("dbg")
        if s == C.w1t and layer == 0:
            a(f"s_lshl_b32 s{T}, s2, 2\ns_add_u32 s{T}, s{T}, s{sW}\ns_sub_u32 s{T}, s{T}, 4\ns_mul_i32 s{T+1}, s{T}, {56*128}\nv_min_u32 v47, 55, v{vL}\nv_lshlrev_b32 v47, 7, v47")
            a(f"buffer_load_dword v142, v47, s[{S_W1}:{S_W1+3}], s{T+1} offen")
            a(f"s_lshl_b32 s{T+1}, s{T}, 9\nv_and_b32 v47, 0x180, v47\nbuffer_load_dword v143, v47, s[{S_WO}:{S_WO+3}], s{T+1} offen")
            vm.add("t", 2)
    assert issued == 24
    if layer == 0: a(f"s_waitcnt vmcnt({vm.need('dbg')})")
    def w4():
        if layer == 0: wait_init(a, 46)
        if C.lf: kl_publish(a)
        publish(a, "KV", sJ)
    if C.pub12:
        if layer == 0: if_wave_eq(a, 4, lambda: wait_init(a, 46))
        a("s_barrier")
        def w4b():
            if C.lf: kl_publish(a)
            publish(a, "KV", sJ)
        if_wave_eq(a, 4, w4b)
    else:
        if_wave_eq(a, 4, w4)
        a("s_barrier")
    a(f"s_branch {LJ}")

def x_start(a):
    a(f"s_mov_b32 s{sFL}, {WS_FLAG + 512*128}\ns_barrier")
    stamp(a, "p1.polled")
    if C.xp < 8:
        x_dma(a, range(C.xp)); a("s_barrier"); x_dma(a, range(C.xp, 8))
    else: x_dma(a)

def phase1(a):
    LC = "L_p1_cons"; LJ = "L_p1_join"
    a(f"s_cmp_lt_u32 s{sW}, 4\ns_cbranch_scc1 {LC}")
    helper_setup(a)
    a(f"v_and_b32 v41, 3, v{vL}\nv_lshlrev_b32 v41, 9, v41\nv_lshl_add_u32 v41, v40, 3, v41")
    if_wave_eq(a, 4, lambda: poll(a, "X", sI, 8))
    keep = C.stamp; C.stamp = False; x_start(a); C.stamp = keep
    a(f"s_lshl_b32 s{T}, s{sI}, 12\ns_add_u32 s{T}, s{T}, {WS_ST2}")
    a(f"buffer_load_dwordx2 v[48:49], v41, s[{S_WS}:{S_WS+3}], s{T} offen sc1\nbuffer_load_dwordx2 v[50:51], v41, s[{S_WS}:{S_WS+3}], s{T} offen offset:2048 sc1")
    vm = VM()
    for q in range(8): vm.add(("x", q))
    vm.add("g", 2)
    helper_loop(a, 1, vm, sum(int(c) for c in C.sch2), [int(c) for c in C.hs1], LJ)
    a(f"{LC}:")
    tt, ch = T+2, T+3
    a(f"s_and_b32 s{tt}, s{sW}, 1\ns_lshr_b32 s{ch}, s{sW}, 1")
    XA = 40
    a(f"v_and_b32 v44, 31, v{vL}\ns_lshl_b32 s{T}, s{tt}, 5\nv_add_u32 v44, s{T}, v44\nv_lshlrev_b32 v38, 2, v44\nv_add_u32 v38, {TAB}, v38")
    a(f"v_bfe_u32 v45, v{vL}, 1, 3\nv_lshrrev_b32 v46, 5, v{vL}\nv_xor_b32 v45, v45, v46\nv_lshlrev_b32 v45, 4, v45\nv_lshl_add_u32 v{XA}, v44, 7, v45")
    for m in range(1, 4): a(f"v_xor_b32 v{XA+m}, {32*m}, v{XA}")
    a(f"s_lshl_b32 s{T}, s{tt}, 7\ns_add_u32 s{T}, s{T}, {TAB+256}\nv_lshlrev_b32 v37, 4, v46\nv_add_u32 v37, s{T}, v37")
    WL, WH = 44, 45
    tr_addr(a, WL, f"s{ch}", False, 46, 47)
    a(f"v_add_u32 v{WL}, {V}, v{WL}\nv_add_u32 v{WH}, {6*8192}, v{WL}")
    AK, AV, AQ = 48, 64, 80
    CS, SEL = 24, 32
    SIX = 21
    a(f"v_lshrrev_b32 v46, 4, v{vL}\nv_xor_b32 v46, v46, v{vL}\nv_and_b32 v46, 2, v46\nv_and_b32 v47, 12, v{vL}\nv_or_b32 v46, v46, v47\nv_mov_b32 v47, 0x3f803f80")
    a(f"v_cmp_eq_u32 vcc, 0, v46\ns_nop 1\nv_cndmask_b32 v{SEL}, 0, v47, vcc\nv_cmp_eq_u32 vcc, 4, v46\nv_mov_b32 v{SEL+1}, v{SEL}\ns_nop 0\nv_cndmask_b32 v{SEL+2}, 0, v47, vcc\nv_mov_b32 v{SEL+3}, v{SEL+2}")
    a(f"v_and_b32 v46, 1, v{vL}\nv_mul_u32_u24 v46, 0xaaaa, v46\nv_or_b32 v{SIX}, 0x4444, v46\nv_lshl_add_u32 v{SIX}, v{SIX}, 16, v{SIX}")
    csoff = T+8
    a(f"s_lshl_b32 s{csoff}, s2, 2\ns_add_u32 s{csoff}, s{csoff}, s{sW}\ns_lshl_b32 s{csoff}, s{csoff}, 10\ns_add_u32 s{csoff}, s{csoff}, {WS_CS}")
    for r in range(8): a(f"v_mov_b32 v{CS+r}, 0")
    def fr(buf, n):
        if buf == 0: return ("a", n)
        return ("a", 64+n) if n < 48 else ("v", 96 + n - 48)
    def R(buf, n, w):
        p, b = fr(buf, n); return f"{p}[{b}:{b+w-1}]"
    def wslot(u):
        s = qslot(u)
        return (WL, s*8192) if s < 6 else (WH, (s-6)*8192)
    def rd(s):
        buf = s & 1; out = []
        if s < 8:
            for t in range(4):
                out.append(f"ds_read_b128 {R(buf, 12*t, 4)}, v{XA+t} offset:{8192*s}")
                for seg in range(2):
                    va, off = wslot(2*s+seg)
                    for e in range(2):
                        out.append(f"ds_read_b64_tr_b16 {R(buf, 12*t+4+4*seg+2*e, 2)}, v{va} offset:{off + t*2048 + e*512}")
        else:
            for t in range(8):
                out.append(f"ds_read_b128 {R(buf, 16*(t>>1)+4*(t&1), 4)}, v{XA+(t&3)} offset:{16384*(s-8) + (t>>2)*8192}")
                va, off = wslot(2*s + (t >> 2))
                for e in range(2):
                    out.append(f"ds_read_b64_tr_b16 {R(buf, 16*(t>>1)+8+4*(t&1)+2*e, 2)}, v{va} offset:{off + (t&3)*2048 + e*512}")
        return out
    def mf(s):
        buf = s & 1; out = []
        if s < 8:
            for t in range(4):
                z = s == 0 and t == 0
                out.append(f"v_mfma_f32_32x32x16_bf16 v[{AK}:{AK+15}], {R(buf, 12*t+4, 4)}, {R(buf, 12*t, 4)}, " + ("0" if z else f"v[{AK}:{AK+15}]"))
                out.append(f"v_mfma_f32_32x32x16_bf16 v[{AV}:{AV+15}], {R(buf, 12*t, 4)}, {R(buf, 12*t+8, 4)}, " + ("0" if z else f"v[{AV}:{AV+15}]"))
        else:
            for t in range(8):
                out.append(f"v_mfma_f32_32x32x16_bf16 v[{AQ}:{AQ+15}], {R(buf, 16*(t>>1)+8+4*(t&1), 4)}, {R(buf, 16*(t>>1)+4*(t&1), 4)}, " + ("0" if s == 8 and t == 0 else f"v[{AQ}:{AQ+15}]"))
        return out
    OOL = []
    def csum(s):
        buf = s & 1
        L = a.label("Lcs"); LR = a.label("Lcr")
        a(f"s_cbranch_vccnz {L}\n{LR}:")
        o = [f"{L}:"]
        if s < 8:
            for t in range(4): o.append(f"v_smfmac_f32_16x16x64_bf16 v[{CS}:{CS+3}], v[{SEL}:{SEL+3}], {R(buf, 12*t+4, 8)}, v{SIX}")
            if s == 6: o += ["ds_write_b32 v126, v124", "ds_write_b32 v126, v125 offset:256"]
            if s == 7: o += ["s_nop 7", f"v_add_f32 v{ST4}, v{CS}, v{CS+1}", f"v_add_f32 v{ST4+1}, v{CS+2}, v{CS+3}"]
        else:
            for p in range(4): o.append(f"v_smfmac_f32_16x16x64_bf16 v[{CS+4}:{CS+7}], v[{SEL}:{SEL+3}], {R(buf, 16*p+8, 8)}, v{SIX}")
            if s == 11: o += ["s_nop 7", f"v_add_f32 v{CS+4}, v{CS+4}, v{CS+5}", f"v_add_f32 v{CS+6}, v{CS+6}, v{CS+7}", f"v_add_f32 v{ST4+2}, v{CS+4}, v{CS+6}"]
        o.append(f"s_branch {LR}")
        OOL.append("\n".join(o))
    ST4 = 16
    def inter(m, r, per):
        per = max(per, -(-len(r)//len(m)))
        for x in range(len(m)):
            a(m[x])
            for y in r[x*per:(x+1)*per]: a(y)
    a(f"s_lshl_b32 s{T+4}, s{sI}, 1\ns_add_u32 s{T+4}, s{T+4}, s{tt}")
    a(f"s_lshl_b32 s{T+5}, s{sJ}, 2\ns_lshl_b32 s{T+6}, s{ch}, 1\ns_add_u32 s{T+5}, s{T+5}, s{T+6}")
    a(f"s_lshl_b32 s{T+5}, s{T+5}, 6\ns_add_u32 s{T+5}, s{T+5}, s{T+4}")
    a(f"s_lshl_b32 s{T+4}, s{T+5}, 11\ns_add_u32 s{T+4}, s{T+4}, s{sLB}\ns_add_u32 s{T+5}, s{T+4}, 131072")
    assert WS_KV == 0
    a(f"v_and_b32 v46, 0x33, v{vL}\nv_bfe_u32 v47, v{vL}, 2, 1\nv_lshl_add_u32 v46, v47, 3, v46\nv_bfe_u32 v47, v{vL}, 3, 1\nv_lshl_add_u32 v46, v47, 2, v46\nv_lshlrev_b32 v46, 4, v46")
    a(f"v_bfe_u32 v39, v{vL}, 4, 1\nv_lshlrev_b32 v47, 17, v39\nv_lshrrev_b32 v39, 5, v{vL}\nv_lshl_add_u32 v47, v39, 8, v47\nv_and_b32 v39, 15, v{vL}\nv_lshl_add_u32 v47, v39, 4, v47")
    Lx = a.label()
    a(f"s_cmp_eq_u32 s{sL}, 0\ns_cbranch_scc1 L_p1_stats0")
    x_start(a)
    a(f"{Lx}:")
    b = Asm(); b.n = 91000
    b("L_p1_stats0:\ns_waitcnt vmcnt(0)")
    stamp(b, "p1.xarr")
    own_stats(b, 48, 116, 124, 125, 126)
    b(f"s_branch {Lx}")
    OOL.append("\n".join(b.L))
    a(f"buffer_load_dwordx4 v[{ST4}:{ST4+3}], v{vL16}, s[{S_WS}:{S_WS+3}], s{csoff} offen sc1")
    a("s_waitcnt vmcnt(8)\ns_barrier")
    stamp(a, "p1.b0")
    for x in rd(0): a(x)
    P, RB, MU, RR = 112, 128, 36, 39
    def aug_w(seg, d):
        return [f"v_cvt_pk_bf16_f32 v{d}, v{ST4+seg}, v{ST4+seg}", f"v_and_b32 v{d+1}, 0xffff0000, v{d}", f"v_sub_f32 v{d+1}, v{ST4+seg}, v{d+1}", f"v_cvt_pk_bf16_f32 v{d+1}, v{d+1}, v{d+1}"]
    XM = 22
    a(f"s_cmp_eq_u32 s{sL}, 0\ns_cselect_b64 vcc, -1, 0")
    def waitbar(s):
        vmw = f"vmcnt({7-s}) " if s < 7 else ("vmcnt(0) " if s == 7 or (s == 10 and not C.pub12) else "")
        a(f"s_waitcnt {vmw}lgkmcnt(0)\ns_barrier")
        stamp(a, f"zq.{s+1:02d}")
    waitbar(0)
    for s in range(12):
        m = mf(s)
        r = rd(s+1) if s < 11 else []
        csum(s)
        if s == 7:
            tab = [f"ds_read_b32 v{MU}, v38", f"ds_read_b32 v{RR}, v38 offset:256"] + [f"ds_read_b128 v[{RB+4*k}:{RB+4*k+3}], v37 offset:{32*k}" for k in range(4)]
            mk = m[0::2]; mv = m[1::2]
            aw = aug_w(0, 24) + aug_w(1, 26)
            xm = [f"v_sub_f32 v{MU}, 0, v{MU}", f"v_cvt_pk_bf16_f32 v{XM}, v{MU}, v{MU}", f"v_and_b32 v{XM+1}, 0xffff0000, v{XM}", f"v_sub_f32 v{XM+1}, v{MU}, v{XM+1}", f"v_cvt_pk_bf16_f32 v{XM}, v{MU}, v{XM+1}", f"v_mov_b32 v{XM+1}, v{XM}"]
            a(mk[0]); [a(x) for x in tab]
            a(mk[1]); [a(x) for x in aw[:4] + r[:3]]
            a(mk[2]); [a(x) for x in aw[4:] + r[3:6]]
            a(mk[3]); a("s_waitcnt lgkmcnt(10)"); [a(x) for x in xm]
            a(mv[0]); [a(x) for x in r[6:9]]
            a(f"v_mfma_f32_32x32x8_bf16 v[{AK}:{AK+15}], v[24:25], v[{XM}:{XM+1}], v[{AK}:{AK+15}]"); [a(x) for x in r[9:14]]
            a(mv[1]); [a(x) for x in r[14:19]]
            a(mv[2]); [a(x) for x in r[19:24]]
            a(mv[3])
            for k in range(10): a(f"v_mul_f32 v{AK+k}, v{AK+k}, v{RR}")
            a(f"v_mfma_f32_32x32x8_bf16 v[{AV}:{AV+15}], v[{XM}:{XM+1}], v[26:27], v[{AV}:{AV+15}]")
            for k in range(10, 16): a(f"v_mul_f32 v{AK+k}, v{AK+k}, v{RR}")
            for k in range(8): a(f"v_cvt_pk_bf16_f32 v{P+k}, v{AK+2*k}, v{AK+2*k+1}")
            a(f"buffer_store_dwordx4 v[{P}:{P+3}], v46, s[{S_WS}:{S_WS+3}], s{T+4} offen sc1")
            a(f"buffer_store_dwordx4 v[{P+4}:{P+7}], v46, s[{S_WS}:{S_WS+3}], s{T+5} offen sc1")
            a("s_waitcnt lgkmcnt(15)")
            for k in range(16): a(f"v_mul_f32 v{AV+k}, v{AV+k}, v{RB+k}")
            for k in range(8): a(f"v_cvt_pk_bf16_f32 v{P+8+k}, v{AV+2*k}, v{AV+2*k+1}")
            a(f"buffer_store_dwordx4 v[{P+8}:{P+11}], v47, s[{S_WS}:{S_WS+3}], s{T+4} offen offset:1024 sc1")
            a(f"buffer_store_dwordx4 v[{P+12}:{P+15}], v47, s[{S_WS}:{S_WS+3}], s{T+4} offen offset:1536 sc1")
            stamp(a, "p1.kvst")
            waitbar(8)
        elif s < 11:
            e = C.early
            per = -(-len(r)//min(e, 5))
            for x in range(8):
                a(m[x])
                for y in r[x*per:(x+1)*per]: a(y)
                if x == e: waitbar(s+1) if s < 10 else a("s_waitcnt vmcnt(0) lgkmcnt(0)\ns_barrier")
        else:
            aw = aug_w(2, 24)
            a(m[0])
            a(f"s_lshl_b32 s{T+6}, s{ch}, 12\ns_lshl_b32 s{T+7}, s{tt}, 10\ns_add_u32 s{T+6}, s{T+6}, s{T+7}\ns_add_u32 s{T+6}, s{T+6}, {QX}\nv_add_u32 v46, s{T+6}, v{vL16}")
            a(m[1]); [a(x) for x in aw]
            a(f"v_mul_f32 v{RR}, {f2u(0.25*1.4426950408889634)}, v{RR}")
            for x in m[2:]: a(x)
    stamp(a, "p1.mfma")
    a("s_nop 9")
    a(f"v_mfma_f32_32x32x8_bf16 v[{AQ}:{AQ+15}], v[24:25], v[{XM}:{XM+1}], v[{AQ}:{AQ+15}]")
    a(f"buffer_store_dwordx4 v[{ST4}:{ST4+3}], v{vL16}, s[{S_WS}:{S_WS+3}], s{csoff} offen sc1")
    a("s_nop 10")
    for r in range(16): a(f"v_mul_f32 v{AQ+r}, v{AQ+r}, v{RR}")
    for r in range(8): a(f"v_cvt_pk_bf16_f32 v{P+r}, v{AQ+2*r}, v{AQ+2*r+1}")
    a(f"ds_write_b128 v46, v[{P}:{P+3}]\nds_write_b128 v46, v[{P+4}:{P+7}] offset:2048")
    a(f"{LJ}:")
    return OOL

hh, kh, head, kvs, w1s, w1c, wos, tch, ring, kro, kfa = T+2, T+3, T+4, T+5, T+6, T+7, T+8, T+9, T+10, T+11, T+12
TD, VA_, IDX, TA, vF1, vWO, SGA, Q, S, O, KR, VR = 16, 18, 19, 20, 21, 22, 23, 24, [32, 48], [80, 64], 96, 112
ost, osrc, cgive, ctake = 88, 90, 92, 93
CST = E + 33792
CMB = E + 37888

def wo_reads():
    o = []
    for t in range(8):
        for y in range(2):
            b = 80 + 8*t + 4*y
            o += [f"ds_read_b64_tr_b16 v[{b}:{b+1}], v{20+2*y} offset:{t*2048}", f"ds_read_b64_tr_b16 v[{b+2}:{b+3}], v{20+2*y} offset:{t*2048+1024}"]
    return o

def phase2(a):
    t0, t1 = S[0], S[0]+1
    a(f"s_and_b32 s{hh}, s{sW}, 3\ns_lshr_b32 s{kh}, s{sW}, 2\ns_lshl_b32 s{head}, s{sJ}, 2\ns_add_u32 s{head}, s{head}, s{hh}")
    a(f"s_lshl_b32 s{kvs}, s{head}, 17\ns_lshl_b32 s{T}, s{kh}, 11\ns_add_u32 s{kvs}, s{kvs}, s{T}\ns_add_u32 s{kvs}, s{kvs}, s{sLB}")
    a(f"s_lshr_b32 s{kro}, s{sI}, 2\ns_lshl_b32 s{kro}, s{kro}, 14")
    a(f"s_lshl_b32 s{ring}, s{sW}, 12")
    Lk = a.label()
    a(f"s_cmp_lt_u32 s{sW}, 4\ns_cbranch_scc1 {Lk}")
    a(f"v_and_b32 v{t0}, 3, v{vL}\nv_cmp_eq_u32 vcc, 1, v{t0}\nv_mov_b32 v{t1}, 0x3f803f80\ns_nop 0\nv_cndmask_b32 v{t0+4}, 0, v{t1}, vcc")
    a(f"v_mov_b32 v{t0+5}, v{t0+4}\nv_mov_b32 v{t0+6}, v{t0+4}\nv_mov_b32 v{t0+7}, v{t0+4}")
    a(f"s_lshl_b32 s{T}, s{sW}, 10\ns_add_u32 s{T}, s{T}, {CST - 4096}\nv_add_u32 v{t0}, s{T}, v{vL16}\nds_write_b128 v{t0}, v[{t0+4}:{t0+7}]")
    if C.lf: if_wave_eq(a, 5, lambda: kl_poll(a))
    else: if_wave_eq(a, 5, lambda: poll(a, "KV", sJ, 32))
    a(f"{Lk}:")
    def post_setup():
        a(f"v_lshrrev_b32 v{t0}, 5, v{vL}\nv_lshlrev_b32 v{VA_}, 8, v{t0}\nv_and_b32 v{t0}, 15, v{vL}\nv_lshl_add_u32 v{VA_}, v{t0}, 4, v{VA_}\nv_add_u32 v{VA_}, s{ring}, v{VA_}\nv_add_u32 v{VA_}, 1024, v{VA_}")
        a(f"v_add_u32 v{t1}, 4, v{t0}\nv_and_b32 v{t1}, 8, v{t1}\nv_lshlrev_b32 v{t1}, 3, v{t1}\nv_add_u32 v{t1}, {CST}, v{t1}")
        a(f"v_and_b32 v{t0}, 11, v{vL}\nv_cmp_eq_u32 vcc, 0, v{t0}\nv_add_u32 v{t0}, 16, v{t1}\ns_nop 0\nv_cndmask_b32 v{t1}, v{t1}, v{t0}, vcc")
        a(f"v_and_b32 v{t0}, 16, v{vL}\nv_cmp_eq_u32 vcc, 0, v{t0}\ns_nop 1\nv_cndmask_b32 v{VA_}, v{t1}, v{VA_}, vcc")
        a(f"v_mov_b32 v{IDX}, 0xdddddddd")
        for r in range(32): a(f"v_mov_b32 v{64+r}, 0")
        if C.now1: a(f"s_mov_b32 s{S_W1+2}, 0")
        a(f"s_cmp_lg_u32 s{sL}, 0\ns_cselect_b32 s{S_QKV+2}, 0, s{S_QKV+2}")
        a(f"s_lshr_b32 s{w1s}, s{sW}, 1\ns_mul_i32 s{w1s}, s{w1s}, {512*3584}\ns_lshl_b32 s{T}, s{sI}, 7\ns_add_u32 s{w1s}, s{w1s}, s{T}")
        a(f"s_and_b32 s{T+1}, s{sW}, 1\ns_lshl_b32 s{T+1}, s{T+1}, 6\ns_add_u32 s{w1s}, s{w1s}, s{T+1}\ns_sub_u32 s{w1s}, s{w1s}, {16*3584}")
        if C.tmix:
            a(f"s_lshl_b32 s{tch}, s{sJ}, 2\ns_and_b32 s{T+1}, s{sI}, 3\ns_add_u32 s{tch}, s{tch}, s{T+1}\ns_lshl_b32 s{tch}, s{tch}, 3\ns_add_u32 s{tch}, s{tch}, s{sW}\ns_mul_i32 s{tch}, s{tch}, {7*4096}")
            a(f"s_lshr_b32 s{T+1}, s{sI}, 2\ns_lshl_b32 s{T+1}, s{T+1}, 9\ns_add_u32 s{tch}, s{tch}, s{T+1}")
            a(f"v_lshrrev_b32 v{TA}, 2, v{vL}\nv_lshlrev_b32 v{TA}, 12, v{TA}\nv_and_b32 v{t1}, 3, v{vL}\nv_lshl_add_u32 v{TA}, v{t1}, 7, v{TA}")
        else:
            a(f"s_lshl_b32 s{tch}, s{sJ}, 3\ns_add_u32 s{tch}, s{tch}, s{sW}\ns_mul_i32 s{tch}, s{tch}, {28*4096}\ns_add_u32 s{tch}, s{tch}, s{T}")
            a(f"v_lshlrev_b32 v{TA}, 12, v{vL}")
        a(f"v_cmp_gt_u32 vcc, 28, v{vL}\nv_mov_b32 v{t1}, 0x40000000\ns_nop 0\nv_cndmask_b32 v{TA}, v{t1}, v{TA}, vcc")
        a(f"s_lshl_b32 s{wos}, s{sW}, 13\ns_lshl_b32 s{T}, s{sJ}, 7\ns_add_u32 s{wos}, s{wos}, s{T}")
        a(f"s_lshl_b32 s{T}, s{hh}, 11\ns_add_u32 s{T}, s{T}, {QX}\nv_add_u32 v{t1}, s{T}, v{vL16}\nv_subrev_u32 v{SGA}, {SVO}, v{vTRF}")
        a(f"v_lshrrev_b32 v{t0+2}, 2, v{vL}\nv_and_b32 v{t0+3}, 3, v{vL}\nv_lshlrev_b32 v{t0+3}, 4, v{t0+3}\nv_mul_u32_u24 v{vF1}, 3584, v{t0+2}\nv_add_u32 v{vF1}, v{vF1}, v{t0+3}")
        a(f"v_lshrrev_b32 v{t0+2}, 3, v{vL}\nv_lshlrev_b32 v{t0+2}, 11, v{t0+2}\nv_sub_u32 v{vWO}, v{vWQ}, v{t0+2}")
        if C.lf: flag_addr(a, "KV", kfa)
    a("s_waitcnt lgkmcnt(0)\ns_barrier")
    stamp(a, "p2.start")
    vm = VM()
    kcur = T+13
    assert C.lfi < C.lfc
    GP = 128
    def kv_issue(t):
        k = KR + 4*(t & 3)
        if t % 4 == 0: a(f"s_add_u32 s{kcur}, s{kvs}, s{kro}\ns_add_u32 s{kro}, s{kro}, 16384\ns_and_b32 s{kro}, s{kro}, 0x1ffff")
        else: a(f"s_addk_i32 s{kcur}, 4096")
        a(f"s_add_u32 m0, s{ring}, {(t & 3)*1024}")
        a(f"buffer_load_dwordx4 v[{k}:{k+3}], v{vL16}, s[{S_WS}:{S_WS+3}], s{kcur} offen sc1{' nt' if C.ntkv else ''}")
        a(f"buffer_load_dwordx4 v{vL16}, s[{S_WS}:{S_WS+3}], s{kcur} offen offset:1024 sc1{' nt' if C.ntkv else ''} lds")
        vm.add(("kv", t), 2)
    def v_read(t):
        v = VR + 8*(t & 1)
        a(f"ds_read_b128 v[{v}:{v+3}], v{VA_} offset:{(t & 3)*1024}\nds_read_b128 v[{v+4}:{v+7}], v{VA_} offset:{(t & 3)*1024 + 512}")
    def w1_issue(f):
        if f % 4 == 0:
            a(f"s_and_b32 s{w1c}, s{sJ}, {C.jrot}\ns_add_u32 s{w1c}, s{w1c}, {f//4}\ns_and_b32 s{w1c}, s{w1c}, 7\ns_mul_i32 s{w1c}, s{w1c}, {64*3584}\ns_add_u32 s{w1c}, s{w1c}, s{w1s}")
        a(f"s_add_u32 m0, s{sVW}, {STG - V + (f & 3)*8192}\ns_add_u32 s{w1c}, s{w1c}, {16*3584}")
        a(f"buffer_load_dwordx4 v{vF1}, s[{S_W1}:{S_W1+3}], s{w1c} offen{' nt' if C.w1nt else ''} lds")
        vm.add(("w1", f))
    def wo_issue(u):
        a(f"s_add_u32 m0, s{sVW}, {SVO + u*8192}\ns_add_u32 s{T}, s{wos}, {u*65536}")
        a(f"buffer_load_dwordx4 v{vWO}, s[{S_WO}:{S_WO+3}], s{T} offen lds")
        vm.add(("wo", u))
    def touch(n):
        a(f"s_cmp_eq_u32 s{sJ}, {n}\ns_cselect_b32 s{T}, s{tch}, 0x40000000")
        a(f"buffer_load_dword v{TD}, v{TA}, s[{S_W2}:{S_W2+3}], s{T} offen")
        vm.add(("t", n))
    def ex(s, r0, r1):
        for r in range(r0, r1): a(f"v_exp_f32 v{s+r}, v{s+r}")
    def setprio(p):
        L = a.label()
        a(f"s_cmp_lg_u32 s{kh}, 0\ns_cbranch_scc1 {L}\ns_setprio {p}\n{L}:")
    def qk(q, t): a(f"v_mfma_f32_32x32x16_bf16 v[{S[q]}:{S[q]+15}], v[{KR+4*(t&3)}:{KR+4*(t&3)+3}], v[{Q+4*q}:{Q+4*q+3}], 0")
    def pv(q, t, h): a(f"v_smfmac_f32_32x32x32_bf16 v[{O[q]}:{O[q]+15}], v[{VR+8*(t&1)+4*h}:{VR+8*(t&1)+4*h+3}], v[{S[q]+8*h}:{S[q]+8*h+7}], v{IDX}")
    kv_issue(0); kv_issue(1)
    post_setup()
    a(f"s_lshl_b32 s{T}, s{kh}, 10\nv_add_u32 v{t1}, s{T}, v{t1}\nv_xor_b32 v{t0}, 1024, v{t1}")
    a(f"ds_read_b128 v[{Q}:{Q+3}], v{t0}\nds_read_b128 v[{Q+4}:{Q+7}], v{t1}")
    a(f"s_lshl_b32 s{ost}, s{sI}, 1\ns_add_u32 s{ost}, s{ost}, s{kh}\ns_lshl_b32 s{ost}, s{ost}, 5\ns_add_u32 s{ost}, s{ost}, s{head}\ns_lshl_b32 s{ost}, s{ost}, 10")
    a(f"s_add_u32 s{ost}, s{ost}, {WS_O}\ns_add_u32 s{ost}, s{ost}, s{sLB}")
    a(f"s_and_b32 s{osrc}, s{sW}, 1\ns_lshl_b32 s{osrc}, s{osrc}, 15\ns_lshr_b32 s{T}, s{sW}, 1\ns_lshl_b32 s{T}, s{T}, 13\ns_add_u32 s{osrc}, s{osrc}, s{T}")
    a(f"s_lshl_b32 s{T}, s{sI}, 16\ns_add_u32 s{osrc}, s{osrc}, s{T}\ns_add_u32 s{osrc}, s{osrc}, {WS_O}\ns_add_u32 s{osrc}, s{osrc}, s{sLB}\ns_add_u32 s{osrc+1}, s{osrc}, 4096")
    a(f"s_mul_i32 s{cgive}, s{sW}, 3072\ns_add_u32 s{cgive}, s{cgive}, {CMB}\ns_xor_b32 s{ctake}, s{sW}, 4\ns_mul_i32 s{ctake}, s{ctake}, 3072\ns_add_u32 s{ctake}, s{ctake}, {CMB}")
    tr_addr(a, 131, "0", True, 132, 133)
    a(f"s_lshr_b32 s{T}, s{sW}, 1\ns_lshl_b32 s{T}, s{T}, 14\ns_add_u32 s{T}, s{T}, {V+SVO}\nv_add_u32 v131, s{T}, v131")
    if C.prio: a("s_setprio 1")
    a(f"s_waitcnt vmcnt(2) lgkmcnt(0)")
    qk(0, 0)
    v_read(0)
    kv_issue(2); kv_issue(3)
    a(f"s_lshr_b32 s{T}, s{sI}, 2\ns_lshl_b32 s{T}, s{T}, 9\ns_add_u32 s{T}, s{T}, {WS_XT}\nv_and_b32 v17, 0x1f0, v{vL16}")
    a(f"buffer_load_dword v17, v17, s[{S_WS}:{S_WS+3}], s{T} offen sc1"); vm.add("xt")
    if C.c3:
        a(f"s_lshr_b32 s{T}, s2, 3\ns_lshl_b32 s{T}, s{T}, 3\ns_add_u32 s{T}, s{T}, s{sW}\ns_lshl_b32 s{T+1}, s{T}, 11\ns_add_u32 s{T+1}, s{T+1}, 384")
        a(f"v_min_u32 v{GP+1}, 1, v{vL}\nv_lshlrev_b32 v{GP+1}, 10, v{GP+1}\nbuffer_load_dword v{GP+1}, v{GP+1}, s[{S_WO}:{S_WO+3}], s{T+1} offen")
        a(f"s_mul_i32 s{T}, s{T}, {8*3584}\ns_or_b32 s{T+1}, s{sI}, 3\ns_lshl_b32 s{T+1}, s{T+1}, 7\ns_add_u32 s{T}, s{T}, s{T+1}")
        a(f"v_min_u32 v{GP+2}, 7, v{vL}\nv_mul_u32_u24 v{GP+2}, 3584, v{GP+2}\nbuffer_load_dword v{GP+2}, v{GP+2}, s[{S_W1}:{S_W1+3}], s{T} offen")
        vm.add("c3", 2)
    stamp(a, "p2.kv0")
    a("s_nop 1")
    per = C.pper; low = C.plow
    for t in range(32):
        for q in range(2):
            hidx = 2*t + q
            if C.prio and hidx % per == 0: setprio(2)
            if C.prio and hidx % per == per - low: setprio(0)
            ex(S[q], 0, 2)
            if q == 0:
                if t > 0: pv(1, t-1, 1)
            else: pv(0, t, 1)
            ex(S[q], 2, 5)
            if q == 0:
                qk(1, t)
                need = [("kv", t+1)] if t < 31 else []
                if not C.nox and 3 <= t < 31: need.append(("w1", t-3))
                if C.lf and t == C.lfc: need.append("gp")
                a(f"s_waitcnt vmcnt({vm.need(*need) if need else 63}) lgkmcnt(0)")
                if C.lf and t == C.lfi: apoll_issue(a, kfa, GP); vm.add("gp")
                if C.lf and t == C.lfc:
                    apoll_check(a, kfa, GP, 32)
                    for k in range(4, t+4): kv_issue(k)
                if t+4 < 32 and not (C.lf and t < C.lfc): kv_issue(t+4)
                if t+1 < 32: v_read(t+1)
                if not C.nox and not C.split:
                    w1_issue(t)
                    if 3 <= t < 31:
                        for x in frag_reads(f"a{4*(t-3)}", SGA, ((t-3) & 3)*8192): a(x)
            else:
                if t < 31: qk(0, t+1)
                if not C.nox:
                    if C.split:
                        w1_issue(t)
                        if 3 <= t < 31:
                            for x in frag_reads(f"a{4*(t-3)}", SGA, ((t-3) & 3)*8192): a(x)
                    if t == C.prett and C.preto:
                        a(f"buffer_load_dword v{TD}, v{vL16}, s[{S_WS}:{S_WS+3}], s{ost} offen sc1")
                        vm.add("pre")
                    if t % 3 == 1 and t < 24: wo_issue(t//3)
                    if t == 8: a(f"v_readfirstlane_b32 s{T}, v17\ns_nop 1\nv_cmp_ne_u32 vcc, s{T}, v17\ns_nop 1\ns_cmp_eq_u64 vcc, 0\ns_cselect_b32 s{sLOC}, 1, 0")
                    if t % 4 == 3 and C.stouch == 1: touch(t//4)
                    if t % 3 == 2 and t < 24 and C.stouch == 2: touch(t//3)
                    if t == C.t2:
                        a(f"buffer_load_dword v{TD}, v{TA}, s[{S_W2}:{S_W2+3}], s{tch} offen{' nt' if C.w2nt else ''}"); vm.add("t2")
            ex(S[q], 5, 11)
            pv(q, t, 0)
            if t == 31 and q == 1:
                a(f"s_mov_b32 m0, s{cgive}\nv_mov_b32 v20, v131\nv_xor_b32 v22, 64, v131")
                for r in range(9): a(f"ds_write_addtid_b32 v{O[0]+r} offset:{256*r}")
            ex(S[q], 11, 16)
    a("s_nop 1")
    pv(1, 31, 1)
    if C.prio: a("s_setprio 0")
    stamp(a, "p2.loop")
    M, N = O[1], 36
    assert vm.need(("wo", 7)) >= vm.need(("kv", 31))
    a(f"s_mov_b32 m0, s{ctake}\ns_waitcnt lgkmcnt(0)\ns_barrier")
    stamp(a, "zc.cmb")
    for r in range(9): a(f"ds_read_addtid_b32 v{N+r} offset:{256*r}")
    wr_ = wo_reads()
    for x in wr_[:6]: a(x)
    a("s_waitcnt lgkmcnt(6)")
    for r in range(9): a(f"v_add_f32 v{M+r}, v{M+r}, v{N+r}")
    for x in wr_[6:C.wo1]: a(x)
    a(f"v_add_f32 v{N}, abs(v{M}), abs(v{M+1})\nv_add_f32 v{N+1}, abs(v{M+2}), abs(v{M+3})\nv_add_f32 v{N+2}, abs(v{M+4}), abs(v{M+5})\nv_add_f32 v{N+3}, abs(v{M+6}), abs(v{M+7})")
    a(f"v_add_f32 v{N}, v{N}, v{N+1}\nv_add_f32 v{N+2}, v{N+2}, v{N+3}\nv_cmp_nge_f32 vcc, {f2u(2.0**60)}, v{M+8}\nv_add_f32 v{N}, v{N}, v{N+2}")
    a(f"s_mov_b64 s[{T+12}:{T+13}], vcc\nv_cmp_nle_f32 vcc, {f2u(2.0**-60)}, v{M+8}\ns_nop 0\ns_or_b64 s[{T+12}:{T+13}], s[{T+12}:{T+13}], vcc")
    a(f"v_cmp_ngt_f32 vcc, 0x7f800000, v{N}\ns_nop 0\ns_or_b64 s[{T+12}:{T+13}], s[{T+12}:{T+13}], vcc\ns_cbranch_scc1 L_softmax_safe\nL_softmax_done:")
    a(f"v_rcp_f32 v{M+8}, v{M+8}\ns_nop 0")
    for r in range(8): a(f"v_mul_f32 v{M+r}, v{M+r}, v{M+8}")
    for r in range(4): a(f"v_cvt_pk_bf16_f32 v{N+r}, v{M+2*r}, v{M+1+2*r}")
    if C.sent:
        for r in range(4): a(f"v_min_u32 v{N+r}, -2, v{N+r}")
    rstore(a, f"buffer_store_dwordx4 v[{N}:{N+3}], v{vL16}, s[{S_WS}:{S_WS+3}], s{ost} offen", bulk=not C.ldo)
    for x in wr_[C.wo1:]: a(x)

def softmax_safe(a):
    M = O[1]
    QF, KF, VF, SS, CC, OO, MX, VO = Q+4, 104, 108, 48, 80, 120, 116, 117
    base, cur, n = T+12, T+13, T+14
    a("L_softmax_safe:")
    a("s_waitcnt lgkmcnt(0)")
    a(f"s_lshl_b32 s{base}, s{head}, 17\ns_add_u32 s{base}, s{base}, s{sLB}")
    a(f"v_mov_b32 v{MX}, 0xff800000\ns_mov_b32 s{cur}, s{base}\ns_mov_b32 s{n}, 64")
    L1 = a.label()
    a(f"{L1}:")
    a(f"buffer_load_dwordx4 v[{KF}:{KF+3}], v{vL16}, s[{S_WS}:{S_WS+3}], s{cur} offen sc1\ns_waitcnt vmcnt(0)")
    a(f"v_mfma_f32_32x32x16_bf16 v[{SS}:{SS+15}], v[{KF}:{KF+3}], v[{QF}:{QF+3}], 0\ns_nop 15")
    for r in range(0, 16, 2): a(f"v_max3_f32 v{MX}, v{MX}, v{SS+r}, v{SS+r+1}")
    a(f"s_add_u32 s{cur}, s{cur}, 2048\ns_sub_u32 s{n}, s{n}, 1\ns_cmp_lg_u32 s{n}, 0\ns_cbranch_scc1 {L1}")
    a(f"v_mov_b32 v{VO}, v{MX}\ns_nop 1\nv_permlane32_swap_b32 v{MX}, v{VO}\ns_nop 1\nv_max_f32 v{MX}, v{MX}, v{VO}")
    for r in range(16): a(f"v_sub_f32 v{CC+r}, 0, v{MX}\nv_mov_b32 v{OO+r}, 0")
    for r in range(8): a(f"v_mov_b32 v{VF+r}, 0x3f803f80")
    a(f"v_lshrrev_b32 v{MX}, 5, v{vL}\nv_lshlrev_b32 v{VO}, 8, v{MX}\nv_and_b32 v{MX}, 15, v{vL}\nv_lshl_add_u32 v{VO}, v{MX}, 4, v{VO}")
    a(f"s_mov_b32 s{cur}, s{base}\ns_mov_b32 s{n}, 64")
    L2 = a.label()
    a(f"{L2}:")
    a(f"buffer_load_dwordx4 v[{KF}:{KF+3}], v{vL16}, s[{S_WS}:{S_WS+3}], s{cur} offen sc1")
    a("s_mov_b32 exec_lo, 0xffff\ns_mov_b32 exec_hi, 0xffff")
    a(f"buffer_load_dwordx4 v[{VF}:{VF+3}], v{VO}, s[{S_WS}:{S_WS+3}], s{cur} offen offset:1024 sc1")
    a(f"buffer_load_dwordx4 v[{VF+4}:{VF+7}], v{VO}, s[{S_WS}:{S_WS+3}], s{cur} offen offset:1536 sc1")
    a("s_mov_b64 exec, -1\ns_waitcnt vmcnt(0)")
    a(f"v_mfma_f32_32x32x16_bf16 v[{SS}:{SS+15}], v[{KF}:{KF+3}], v[{QF}:{QF+3}], v[{CC}:{CC+15}]\ns_nop 15")
    for r in range(16): a(f"v_exp_f32 v{SS+r}, v{SS+r}")
    a("s_nop 1")
    a(f"v_smfmac_f32_32x32x32_bf16 v[{OO}:{OO+15}], v[{VF}:{VF+3}], v[{SS}:{SS+7}], v{IDX}")
    a(f"v_smfmac_f32_32x32x32_bf16 v[{OO}:{OO+15}], v[{VF+4}:{VF+7}], v[{SS+8}:{SS+15}], v{IDX}\ns_nop 15")
    a(f"s_add_u32 s{cur}, s{cur}, 2048\ns_sub_u32 s{n}, s{n}, 1\ns_cmp_lg_u32 s{n}, 0\ns_cbranch_scc1 {L2}")
    for r in range(9): a(f"v_mov_b32 v{M+r}, v{OO+r}")
    for x in wo_reads()[:C.wo1]: a(x)
    a("s_branch L_softmax_done")

EOFF = 61692
def ep2_writes(acc, base, sw4k):
    off = EOFF if base >= EOFF else 0
    o = [f"ds_write_addtid_b32 v{acc+r} offset:{off + r*256}" for r in range(16)]
    o[0] = f"s_add_u32 m0, s{sw4k}, {base - off}\ns_nop 0\n" + o[0]
    return o

def ep2_read_addr(a, ra, base0, base1, sw4k, tv):
    a(f"s_and_b32 s{T}, s{sW}, 1\ns_lshl_b32 s{T}, s{T}, 2\ns_lshr_b32 s{T+1}, s{sW}, 1\ns_add_u32 s{T}, s{T}, s{T+1}\ns_lshl_b32 s{sw4k}, s{T}, 12")
    a(f"s_lshr_b32 s{T}, s{sW}, 2\ns_lshl_b32 s{T}, s{T}, 14\ns_and_b32 s{T+1}, s{sW}, 3\ns_lshl_b32 s{T+1}, s{T+1}, 10\ns_add_u32 s{T}, s{T}, s{T+1}\ns_add_u32 s{T}, s{T}, {base0}")
    a(f"v_and_b32 v{tv}, 3, v{vN}\nv_lshlrev_b32 v{ra}, 8, v{tv}\nv_bfe_u32 v{tv}, v{vN}, 2, 1\nv_lshl_add_u32 v{ra}, v{tv}, 7, v{ra}\nv_and_b32 v{tv}, 3, v{vC}\nv_lshl_add_u32 v{ra}, v{tv}, 5, v{ra}")
    a(f"v_add_u32 v{ra}, s{T}, v{ra}\nv_lshrrev_b32 v{tv}, 2, v{vC}\nv_mul_i32_i24 v{tv}, {base1 - base0}, v{tv}\nv_add_u32 v{ra}, v{ra}, v{tv}")

def ep2_sum(a, ra, add0, out):
    for k in range(4):
        a(f"ds_read_b128 v[{out+8*k}:{out+8*k+3}], v{ra} offset:{4096*k}\nds_read_b128 v[{out+8*k+4}:{out+8*k+7}], v{ra} offset:{4096*k+16}")
    a("s_waitcnt lgkmcnt(6)")
    for e in range(8): a(f"v_add_f32 v{out+e}, v{out+e}, v{add0+e}")
    a("s_waitcnt lgkmcnt(2)")
    for e in range(8): a(f"v_add_f32 v{out+8+e}, v{out+8+e}, v{out+16+e}")
    for e in range(8): a(f"v_add_f32 v{out+e}, v{out+e}, v{out+8+e}")
    a("s_waitcnt lgkmcnt(0)")
    for e in range(8): a(f"v_add_f32 v{out+e}, v{out+e}, v{out+24+e}")

def unpack8(a, dst, src):
    for e in range(4): a(f"v_lshlrev_b32 v{dst+2*e}, 16, v{src+e}\nv_and_b32 v{dst+1+2*e}, 0xffff0000, v{src+e}")

def phase3(a):
    stamp(a, "zc.ost")
    OF, ACC, WF = 16, 48, 80
    src = osrc
    n3 = [int(c) for c in C.sch3]; assert n3[0] == 4 and sum(n3) == 12
    spin = T+6
    if not C.sent:
        a("s_waitcnt vmcnt(0) lgkmcnt(0)\ns_barrier")
        stamp(a, "p2.end")
        if_wave_eq(a, 0, lambda: publish(a, "O", sI))
        for f in range(n3[0]): w2_dma(a, f)
        if_wave_eq(a, 0, lambda: poll(a, "O", sI, 8))
        a("s_barrier")
        stamp(a, "proj.polled")
    else:
        a(f"s_mov_b32 s{spin}, {SPIN}\ns_waitcnt {'vmcnt(0) ' if C.sentwait == 1 else ''}lgkmcnt(0)\ns_barrier")
        stamp(a, "p2.end")
    LT = a.label()
    a(f"{LT}:")
    for t in range(8):
        if C.lprio and t % 2 == 0: a(f"s_setprio {3 - t//2}")
        a(f"buffer_load_dwordx4 v[{OF+4*t}:{OF+4*t+3}], v{vL16}, s[{S_WS}:{S_WS+3}], s{src + (t >> 2)} offen offset:{(t & 3)*1024} sc1")
    for t in range(8):
        a(f"s_waitcnt vmcnt({7-t})")
        for y in range(2):
            c = "0" if t == 0 else f"v[{ACC+16*y}:{ACC+16*y+15}]"
            a(f"v_mfma_f32_32x32x16_bf16 v[{ACC+16*y}:{ACC+16*y+15}], v[{OF+4*t}:{OF+4*t+3}], v[{WF+8*t+4*y}:{WF+8*t+4*y+3}], {c}")
            if C.sent:
                o = OF + 4*t + 2*y
                a(f"v_max_u32 v0, v{o}, v{o+1}" if t == 0 and y == 0 else f"v_max3_u32 v0, v0, v{o}, v{o+1}")
    if C.sent:
        a(f"v_cmp_eq_u32 vcc, -1, v0\ns_sub_u32 s{spin}, s{spin}, 1\ns_cselect_b64 vcc, 0, vcc\ns_cbranch_vccnz {LT}")
    ep2_read_addr(a, 88, V+SVO, E+16, T+4, 80)
    stamp(a, "proj.loop")
    OUT = 104
    for x in ep2_writes(ACC, V+SVO, T+4) + ep2_writes(ACC+16, E+16, T+4): a(x)
    unpack8(a, 96, vRES)
    if C.sent:
        for f in range(n3[0]): w2_dma(a, f)
    a("s_waitcnt lgkmcnt(0)\ns_barrier")
    stamp(a, "zc.epb")
    ep2_sum(a, 88, 96, OUT)
    for e in range(4): a(f"v_cvt_pk_bf16_f32 v{vRES+e}, v{OUT+2*e}, v{OUT+1+2*e}")
    a("v_mov_b32 v64, 0\nv_mov_b32 v65, 0\nv_mov_b32 v66, 1\nv_mov_b32 v67, 1\nv_mov_b32 v68, 0x3f803f80")
    for e in range(4): a(f"v_dot2c_f32_bf16 v64, v{vRES+e}, v68\nv_dot2c_f32_bf16 v65, v{vRES+e}, v{vRES+e}")
    a(f"s_lshl_b32 s{T}, s{sI}, 13\ns_add_u32 s{T}, s{T}, {WS_ST}\ns_add_u32 s{T}, s{T}, s{sLB}\ns_lshl_b32 s{T+1}, s{sJ}, 10\ns_add_u32 s{T+1}, s{T+1}, s{T}")
    a(f"v_lshlrev_b32 v56, 4, v{vN}\nv_lshl_add_u32 v57, v{vC}, 10, v56")
    dpp_red8(a, [64, 65])
    a(f"v_cmp_eq_u32 vcc, 0, v{vC}\ns_and_saveexec_b64 s[{T+2}:{T+3}], vcc")
    rstore(a, f"buffer_store_dwordx4 v[64:67], v56, s[{S_WS}:{S_WS+3}], s{T+1} offen")
    a(f"s_mov_b64 exec, s[{T+2}:{T+3}]")
    stamp(a, "proj.st")
    a(f"v_subrev_u32 v59, {SVO}, v{vTRF}")
    for c in range(4):
        for x in frag_reads(f"v{W1T+4*c}", 59, c*8192): a(x)
    if not C.sent:
        for f in range(4):
            for x in w2_reads(f): a(x)
    unpack8(a, 80, vRES)
    a(f"v_lshrrev_b32 v58, 2, v{vC}\nv_lshlrev_b32 v58, 17, v58\nv_lshl_add_u32 v58, v{vN}, 6, v58\nv_and_b32 v60, 3, v{vC}\nv_lshl_add_u32 v58, v60, 4, v58")
    LP = a.label(); LD = a.label()
    a(f"s_mov_b32 s{T+2}, {SPIN}")
    a(f"{LP}:")
    a(f"buffer_load_dwordx4 v[68:71], v57, s[{S_WS}:{S_WS+3}], s{T} offen sc1")
    a("s_waitcnt vmcnt(0)\nv_and_b32 v72, v70, v71\nv_cmp_ne_u32 vcc, 1, v72")
    a(f"s_cbranch_vccz {LD}")
    a(f"s_sub_u32 s{T+2}, s{T+2}, 1\ns_cmp_lg_u32 s{T+2}, 0\ns_cbranch_scc1 {LP}")
    a(f"{LD}:")
    stamp(a, "proj.stat")
    if C.sent:
        for f in range(4):
            for x in w2_reads(f): a(x)
    dpp_red8(a, [68, 69])
    a(f"v_mul_f32 v68, {f2u(1/512)}, v68\nv_mul_f32 v69, {f2u(1/512)}, v69")
    a("v_fma_f32 v69, -v68, v68, v69\nv_max_f32 v69, 0, v69")
    a(f"v_add_f32 v70, {f2u(1e-5)}, v69\nv_rsq_f32 v70, v70\ns_nop 0")
    a(f"v_mul_f32 v71, v70, v70\nv_mul_f32 v71, v71, v69\nv_add_f32 v71, {f2u(1e-5)}, v71\nv_rsq_f32 v71, v71\ns_nop 0")
    a("v_mul_f32 v70, v70, v71\nv_mul_f32 v71, v68, v70\nv_sub_f32 v71, 0, v71")
    for e in range(8): a(f"v_fma_f32 v{80+e}, v{80+e}, v70, v71")
    for e in range(4): a(f"v_cvt_pk_bf16_f32 v{72+e}, v{80+2*e}, v{81+2*e}")
    a(f"s_lshl_b32 s{T}, s{sJ}, 18\ns_lshl_b32 s{T+1}, s{sI}, 12\ns_add_u32 s{T}, s{T}, s{T+1}\ns_add_u32 s{T}, s{T}, {WS_H}\ns_add_u32 s{T}, s{T}, s{sLB}")
    a(f"buffer_store_dwordx4 v[72:75], v58, s[{S_WS}:{S_WS+3}], s{T} offen sc1")
    stamp(a, "zc.hst")
    a("s_waitcnt lgkmcnt(0)")
    rest3 = [8, 9, 10, 11, 4, 5, 6, 7]
    assert n3[1] <= 4
    for f in rest3[:n3[1]]: w2_dma(a, f)
    a(f"s_waitcnt vmcnt({n3[1]})\ns_barrier")
    stamp(a, "proj.end")
    if_wave_eq(a, 0, lambda: publish(a, "H", sJ))
    if C.sent:
        L = a.label()
        a(f"s_cmp_lg_u32 s{sL}, 0\ns_cbranch_scc1 {L}\nv_mov_b32 v76, -1\nv_mov_b32 v77, -1\nv_mov_b32 v78, -1\nv_mov_b32 v79, -1")
        a(f"s_add_u32 s{T}, s{ost}, {LSTRIDE}\nbuffer_store_dwordx4 v[76:79], v{vL16}, s[{S_WS}:{S_WS+3}], s{T} offen sc1\n{L}:")
    for f in rest3[n3[1]:]: w2_dma(a, f)

EPO = 61440
W1T = 128

def flag_addr(a, kind, sd):
    a(f"s_lshl_b32 s{sd}, s{sJ}, 10\ns_add_u32 s{sd}, s{sd}, {FL[kind]*128}\ns_add_u32 s{sd}, s{sd}, s{sFL}")
    a(f"s_lshr_b32 s{T+1}, s{sI}, 2\ns_lshl_b32 s{T+1}, s{T+1}, 7\ns_add_u32 s{sd}, s{sd}, s{T+1}")

def apoll_issue(a, sd, v):
    a(f"s_mov_b64 exec, 1\nbuffer_load_dword v{v}, v{vL16}, s[{S_WS}:{S_WS+3}], s{sd} offen sc1\ns_mov_b64 exec, -1")

def apoll_check(a, sd, v, n):
    LP = a.label(); LD = a.label()
    a(f"s_mov_b64 exec, 1\ns_mov_b32 s{T+1}, {SPIN}\n{LP}:\nv_cmp_ne_u32 vcc, {n}, v{v}\ns_cbranch_vccz {LD}")
    a(f"buffer_load_dword v{v}, v{vL16}, s[{S_WS}:{S_WS+3}], s{sd} offen sc1\ns_waitcnt vmcnt(0)")
    a(f"s_sub_u32 s{T+1}, s{T+1}, 1\ns_cmp_lg_u32 s{T+1}, 0\ns_cbranch_scc1 {LP}\n{LD}:\ns_mov_b64 exec, -1")

def mlp(a):
    R = 4
    EP = STG
    ERA, UA, YA5, B1, YA4, C1, RA_, WA_, ADD = 21, 20, 22, 24, 28, 29, 30, 128, 136
    ACC, F, ET, PV_, B2 = 48, [80, 96], 112, 19, 18
    src4, dst, qb, src5, rot, ust, fa, fb, gc2, ewb = T+2, T+3, T+4, T+5, T+6, T+7, T+8, T+9, T+11, T+12
    a(f"v_lshlrev_b32 v{ERA}, 1, v{vN}\ns_lshl_b32 s{T}, s{sI}, 7")
    a(f"buffer_load_ushort v{B2}, v{ERA}, s[{S_B2}:{S_B2+3}], s{T} offen")
    a(f"s_lshr_b32 s{T}, s{sW}, 1\ns_and_b32 s{T+1}, s{sW}, 1\ns_lshl_b32 s{T+1}, s{T+1}, 11\ns_add_u32 s{T+1}, s{T+1}, s{sLB}")
    a(f"s_mul_i32 s{src5}, s{sJ}, {2*114688}\ns_mul_i32 s{dst}, s{T}, {28*1024}\ns_add_u32 s{src5}, s{src5}, s{dst}\ns_add_u32 s{src5}, s{src5}, s{T+1}\ns_add_u32 s{src5}, s{src5}, {WS_U}")
    a(f"s_lshl_b32 s{src4}, s{sJ}, 18\ns_lshl_b32 s{dst}, s{T}, 15\ns_add_u32 s{src4}, s{src4}, s{dst}\ns_add_u32 s{src4}, s{src4}, s{T+1}\ns_add_u32 s{src4}, s{src4}, {WS_H}")
    a(f"s_mul_i32 s{ust}, s{sJ}, {2*114688}\ns_lshl_b32 s{dst}, s{sI}, 12\ns_add_u32 s{ust}, s{ust}, s{dst}\ns_lshl_b32 s{dst}, s{T}, 9\ns_add_u32 s{ust}, s{ust}, s{dst}\ns_add_u32 s{ust}, s{ust}, s{T+1}\ns_add_u32 s{ust}, s{ust}, {WS_U}")
    a(f"s_lshl_b32 s{dst}, s{sW}, 11\ns_lshl_b32 s{T}, s{T}, 12")
    a(f"v_bfe_u32 v16, v{vL}, 3, 2\nv_lshlrev_b32 v{YA5}, 9, v16\nv_and_b32 v16, 3, v{vL}\nv_lshl_add_u32 v{YA5}, v16, 7, v{YA5}\nv_bfe_u32 v16, v{vL}, 2, 1\nv_lshl_add_u32 v{YA5}, v16, 6, v{YA5}")
    a(f"v_bfe_u32 v16, v{vL}, 1, 1\nv_bfe_u32 v17, v{vL}, 4, 1\nv_lshl_add_u32 v16, v17, 1, v16\nv_lshrrev_b32 v17, 5, v{vL}\nv_xor_b32 v16, v16, v17\nv_lshl_add_u32 v{YA5}, v16, 4, v{YA5}")
    a(f"v_add_u32 v{YA5}, s{T}, v{YA5}\nv_xor_b32 v{YA5+1}, 32, v{YA5}")
    a(f"s_sub_u32 s{T}, s{T}, s{sVW}\ns_sub_u32 s{T}, s{T}, {SVO}\nv_add_u32 v{YA4}, s{T}, v{vTRF}")
    a(f"s_and_b32 s{T}, s{sW}, 1\ns_lshl_b32 s{T}, s{T}, 11\nv_add_u32 v31, s{T}, v{YA4}")
    a(f"s_and_b32 s{rot}, s{sJ}, {C.jrot}\ns_lshl_b32 s{rot}, s{rot}, 12")
    qkv_base8(a, qb)
    flag_addr(a, "U", fa); flag_addr(a, "UB", fb)
    LS = a.label(); LM = a.label()
    a(f"s_cmp_ge_u32 s{sI}, 28\ns_cbranch_scc1 {LS}")
    vm = VM()
    a(f"s_and_b32 s{T}, s{sW}, 1\ns_lshr_b32 s{T+1}, s{sW}, 1")
    a(f"s_lshl_b32 s{ewb}, s{T}, 14\ns_add_u32 s{ewb}, s{ewb}, {EP}\ns_lshl_b32 s{T+10}, s{T+1}, 10\ns_add_u32 s{T+10}, s{T+10}, s{ewb}\nv_add_u32 v{ERA}, s{T+10}, v{vL16}")
    a(f"s_lshl_b32 s{T+10}, s{T+1}, 12\ns_add_u32 s{ewb}, s{ewb}, s{T+10}")
    a(f"s_lshl_b32 s{T}, s{T}, 6\ns_lshl_b32 s{T+10}, s{sI}, 7\ns_add_u32 s{T}, s{T}, s{T+10}\nv_lshlrev_b32 v16, 3, v{vC}")
    a(f"buffer_load_dwordx2 v[{B1+2}:{B1+3}], v16, s[{S_B1}:{S_B1+3}], s{T} offen")
    a(f"v_lshrrev_b32 v17, 5, v{vL}\ns_lshr_b32 s{T+1}, s{T+1}, 1\ns_lshl_b32 s{T+1}, s{T+1}, 1\nv_or_b32 v17, s{T+1}, v17\nv_lshlrev_b32 v17, 4, v17\nv_lshlrev_b32 v{UA}, 3, v{vL}\nv_xor_b32 v{UA}, v{UA}, v17")
    c1 = -2*0.7978845608028654*1.4426950408889634
    a(f"s_mov_b32 s{gc2}, {f2u(c1*0.044715)}\nv_mov_b32 v{C1}, {f2u(c1)}")
    if_wave_eq(a, 0, lambda: poll(a, "H", sJ, 32))
    a("s_barrier")
    stamp(a, "mlp1.polled"); stamp(a, "z3.poll")
    def act(p, s):
        if p == 4: a(f"s_add_u32 s{T}, s{rot}, {(s & 7)*4096}\ns_and_b32 s{T}, s{T}, 0x7fff\ns_add_u32 s{T}, s{T}, s{src4}\ns_add_u32 m0, s{dst}, {(s % R)*16384}" + (f"\ns_add_u32 s{T}, s{T}, 131072" if s >= 8 else "\ns_nop 0"))
        else: a(f"s_add_u32 m0, s{dst}, {(s % R)*16384}\ns_add_u32 s{T}, s{src5}, {(s//7)*114688 + (s % 7)*4096}")
        nt = " nt" if C.ntact else ""
        a(f"buffer_load_dwordx4 v{vL16}, s[{S_WS}:{S_WS+3}], s{T} offen sc1{nt} lds\nbuffer_load_dwordx4 v{vL16}, s[{S_WS}:{S_WS+3}], s{T} offen offset:1024 sc1{nt} lds")
        vm.add(("act", p, s), 2)
    def reads(p, s):
        out = []; o = (s % R)*16384
        for t in range(4):
            b = F[s & 1] + 4*t
            if p == 4: out += [f"ds_read_b64_tr_b16 v[{b}:{b+1}], v{YA4} offset:{o + t*1024}", f"ds_read_b64_tr_b16 v[{b+2}:{b+3}], v{YA4} offset:{o + t*1024 + 256}"]
            else: out.append(f"ds_read_b128 v[{b}:{b+3}], v{YA5 + (t & 1)} offset:{o + (t >> 1)*2048}")
        return out
    def mfmas(p, s):
        out = []
        n = 8 if p == 4 else 7
        y = s // n
        for t in range(4):
            f = 4*(s % n) + t
            if p == 4: X = f"a[{4*f}:{4*f+3}]" if f < 28 else f"v[{W1T+4*(f-28)}:{W1T+4*(f-28)+3}]"
            else: r = w2_reg(f); X = f"{r[0]}[{int(r[1:])}:{int(r[1:])+3}]"
            Y = f"v[{F[s & 1]+4*t}:{F[s & 1]+4*t+3}]"
            c = "0" if f == 0 else f"v[{ACC+16*y}:{ACC+16*y+15}]"
            A_, B_ = (Y, X) if p == 4 else (X, Y)
            out.append(f"v_mfma_f32_32x32x16_bf16 v[{ACC+16*y}:{ACC+16*y+15}], {A_}, {B_}, {c}")
        return out
    RW = 31
    def inring(f): return C.optx and 20 <= f < 24
    def wdma(fs):
        for f in fs:
            if inring(f):
                a(f"s_add_u32 m0, s{dst}, {((f-20) >> 1)*16384 + (f & 1)*1024}\ns_add_u32 s{T}, s{sW2S}, {f*16*4096}")
                a(f"buffer_load_dwordx4 v{vF2}, s[{S_W2}:{S_W2+3}], s{T} offen lds")
            else: w2_dma(a, f)
            vm.add(("w", f))
    def wr(fs): return [x for f in fs for x in (frag_reads(w2_reg(f), RW, ((f-20) >> 1)*16384 + (f & 1)*1024) if inring(f) else w2_reads(f))]
    def wread(fs):
        for x in wr(fs): a(x)
    def ep_w(y, rs=range(16)):
        o = [f"ds_write_addtid_b32 v{ACC+16*y+r} offset:{EPO + r*256}" for r in rs]
        o[0] = f"s_sub_u32 m0, s{ewb}, {EPO}\ns_nop 0\n" + o[0]
        return o
    def ep_r(): return [f"ds_read_b128 v[{ET+4*p}:{ET+4*p+3}], v{ERA} offset:{p*4096}" for p in range(4)]
    def ep_math():
        o = []
        for e in range(4): o += [f"v_add_f32 v{ET+e}, v{ET+e}, v{ET+4+e}", f"v_add_f32 v{ET+8+e}, v{ET+8+e}, v{ET+12+e}"]
        for e in range(4): o.append(f"v_add_f32 v{ET+e}, v{ET+e}, v{B1+e}")
        for e in range(4): o.append(f"v_add_f32 v{ET+e}, v{ET+e}, v{ET+8+e}")
        G = ET+4
        for e in range(4): o.append(f"v_mul_f32 v{G+e}, v{ET+e}, v{ET+e}")
        for e in range(4): o.append(f"v_fma_f32 v{G+e}, v{G+e}, s{gc2}, v{C1}")
        for e in range(4): o.append(f"v_mul_f32 v{G+e}, v{G+e}, v{ET+e}")
        for e in range(4): o.append(f"v_exp_f32 v{G+e}, v{G+e}")
        for e in range(4): o.append(f"v_add_f32 v{G+e}, 1.0, v{G+e}")
        for e in range(4): o.append(f"v_rcp_f32 v{G+e}, v{G+e}")
        for e in range(4): o.append(f"v_mul_f32 v{ET+e}, v{ET+e}, v{G+e}")
        o += [f"v_cvt_pk_bf16_f32 v{ET+8}, v{ET}, v{ET+1}", f"v_cvt_pk_bf16_f32 v{ET+9}, v{ET+2}, v{ET+3}"]
        return o
    def ep_store(y):
        if y: a(f"s_add_u32 s{ust}, s{ust}, 114688")
        a(f"buffer_store_dwordx2 v[{ET+8}:{ET+9}], v{UA}, s[{S_WS}:{S_WS+3}], s{ust} offen sc1")
        vm.add(("st", y))
    def body(m, lds, valu=()):
        lds = list(lds); valu = list(valu)
        nl = max(C.ldsper, -(-len(lds)//4)); nv = -(-len(valu)//4)
        for k in range(4):
            if k < len(m): a(m[k])
            for x in lds[k*nl:(k+1)*nl]: a(x)
            for x in valu[k*nv:(k+1)*nv]: a(x)
    for s in range(C.init): act(4, s)
    late = [int(c) for c in (C.schx if C.optx else C.schw)]
    assert sum(late) == 8 and len(late) == 6
    nxt = 12
    em = ep_math()
    deferred = []
    E_ = [int(c, 16) for c in C.eps]
    for s in range(16):
        tags = [("act", 4, s)] + ([("st", 0)] if s == C.pubs else [])
        a(f"s_waitcnt vmcnt({vm.need(*tags)}) lgkmcnt(0)\ns_barrier")
        if s not in (2, 3, 5, 6, 7): stamp(a, f"z4.{s:02d}")
        if s == 0: stamp(a, "mlp1.b0")
        if C.defer == 2 and s not in (E_[0], E_[1]):
            for k in deferred: act(4, k)
            deferred = []
        lds = reads(4, s); valu = []
        if s == 0: valu = [f"v_lshlrev_b32 v{B1}, 16, v{B1+2}", f"v_and_b32 v{B1+1}, 0xffff0000, v{B1+2}", f"v_lshlrev_b32 v{B1+2}, 16, v{B1+3}", f"v_and_b32 v{B1+3}, 0xffff0000, v{B1+3}"]
        if s == E_[0]: lds += ep_w(0, range(8))
        if s == E_[1]: lds += ep_w(0, range(8, 16))
        if s == E_[2]: lds += ep_r()
        if s == E_[3]: valu += em[:24]
        if s == E_[4]: valu += em[24:]
        if s == E_[5]: lds += wr(range(4, 8))
        if s == E_[6]: lds += wr(range(8, 12))
        body(mfmas(4, s-1) if s else [], lds, valu)
        if s == C.pubs:
            stamp(a, "mlp1.pubA")
            if_wave_eq(a, 0, lambda: publish(a, "U", sJ))
        if s == E_[4]: ep_store(0)
        if s == 0:
            for k in range(C.init, R): act(4, k)
        if s >= 1 and s - 1 + R < 16:
            deferred.append(s - 1 + R)
            if not (C.defer and s in (E_[0], E_[1])):
                for k in deferred: act(4, k)
                deferred = []
        if s >= 11:
            n = late[s-11]
            assert nxt + n <= 12 + 4*(s > E_[5]) + 4*(s > E_[6]) + 2*(s >= 13) + 2*(s >= 14)
            wdma(range(nxt, nxt + n)); nxt += n
    assert E_[0] >= 9 and E_[2] > E_[1] and E_[3] > E_[2] and E_[5] >= 10 and E_[6] >= 11
    a("s_waitcnt lgkmcnt(0)")
    for x in mfmas(4, 15): a(x)
    stamp(a, "mlp1.loop"); stamp(a, "z4.loop")
    a("s_nop 9")
    for x in ep_w(1): a(x)
    if C.pubs >= 16: a(f"s_waitcnt vmcnt({vm.need(('st', 0))})")
    a("s_waitcnt lgkmcnt(0)\ns_barrier")
    stamp(a, "z4.ep")
    for x in ep_r(): a(x)
    if C.pubs >= 16: if_wave_eq(a, 0, lambda: publish(a, "U", sJ))
    wdma(range(nxt, 20))
    if C.n1 == 0: apoll_issue(a, fa, PV_); vm.add("pa")
    a("s_waitcnt lgkmcnt(0)")
    for x in em: a(x)
    ep_store(1)
    stamp(a, "mlp1.st"); stamp(a, "z4.st")
    npre = 20 + C.n1 + C.n2
    if C.n1:
        a(f"s_waitcnt vmcnt({vm.need(('w', 15))})")
        wread(range(12, 16))
        a("s_waitcnt lgkmcnt(0)")
        apoll_issue(a, fa, PV_); vm.add("pa")
        wdma(range(20, 20 + C.n1))
        a(f"s_waitcnt vmcnt({vm.need('pa')})")
        wread(range(16, 20))
        a("s_barrier")
        stamp(a, "z4.xdrain")
        if_wave_eq(a, 0, lambda: publish(a, "UB", sJ))
        a("s_waitcnt lgkmcnt(0)")
        wdma(range(20 + C.n1, npre))
        first = 0
    else:
        a(f"s_waitcnt vmcnt({vm.need('pa')})")
        wread(range(12, 20))
        apoll_check(a, fa, PV_, 28)
        act(5, 0); act(5, 1)
        a(f"s_waitcnt vmcnt({vm.need(('st', 1))})\ns_barrier")
        stamp(a, "z4.xdrain")
        if_wave_eq(a, 0, lambda: publish(a, "UB", sJ))
        first = 2
    a(f"s_branch {LM}")
    a(f"{LS}:")
    a("s_waitcnt vmcnt(0)")
    wread(range(4, 12)); a("s_waitcnt lgkmcnt(0)")
    keep = vm.ops[:]
    wdma(range(12, 20))
    a("s_waitcnt vmcnt(0)")
    wread(range(12, 20)); a("s_waitcnt lgkmcnt(0)")
    wdma(range(20, npre))
    a(f"v_mov_b32 v{PV_}, 28\ns_waitcnt vmcnt(0)")
    if_wave_eq(a, 0, lambda: poll(a, "U", sJ, 28))
    a("s_barrier")
    for k in range(first): act(5, k)
    vm.ops = keep
    a(f"{LM}:")
    if first == 0: apoll_check(a, fa, PV_, 28)
    stamp(a, "mlp2.polled"); stamp(a, "z4.zpolled")
    for k in range(first, C.init5): act(5, k)
    ep2_read_addr(a, RA_, EP+16, E+32768, ewb, ET)
    sch = [int(c) for c in C.sch2]
    extra = list(range(12))
    assert sum(sch[:5]) <= 7
    def point(p):
        for _ in range(sch[p]):
            k = extra.pop(0); qkv_piece8(a, qb, k); vm.add(("x", k))
    sb = C.sb
    na = max(first, C.init5); nw = npre
    for s in range(14):
        tags = [("act", 5, s)]
        if s == sb: tags.append("pb")
        if s == 5: tags.append(("w", 23))
        if s == 6: tags.append(("w", 27))
        a(f"s_waitcnt vmcnt({vm.need(*tags)}) lgkmcnt(0)\ns_barrier")
        if s not in (8, 9, 10): stamp(a, f"z5.{s:02d}")
        if s == 0: stamp(a, "mlp2.b0")
        lds = reads(5, s); valu = []
        if s == 0:
            for e in range(4): valu += [f"v_lshlrev_b32 v{ADD+2*e}, 16, v{vRES+e}", f"v_and_b32 v{ADD+1+2*e}, 0xffff0000, v{vRES+e}"]
            valu.append(f"v_lshlrev_b32 v{B2}, 16, v{B2}")
            for e in range(8): valu.append(f"v_add_f32 v{ADD+e}, v{ADD+e}, v{B2}")
        if s == 5: lds += wr(range(20, 24))
        if s == 6: lds += wr(range(24, 28))
        if s == C.wa5: lds += ep2_writes(ACC, EP+16, ewb)
        body(mfmas(5, s-1) if s else [], lds, valu)
        if s == sb:
            apoll_check(a, fb, PV_, 28)
            stamp(a, "mlp2.pollB")
        if s == C.pbi: apoll_issue(a, fb, PV_); vm.add("pb")
        lim = min(14, s + 4, 7 if s < sb else 14)
        want = min(lim, na + 1) if nw < 28 and not C.deep else lim
        want = max(want, min(lim, s + 3))
        while na < want: act(5, na); na += 1
        if nw < 28: wdma((nw, nw+1)); nw += 2
        if s == C.q5s and C.pret:
            a(f"buffer_load_dword v{ET+1}, v{vXO}, s[{S_XD}:{S_XD+3}], s{sXO} offen sc1")
            a(f"s_lshl_b32 s{T}, s{sI}, 3\ns_add_u32 s{T}, s{T}, s{sJ}\ns_lshl_b32 s{T}, s{T}, 9\ns_add_u32 s{T}, s{T}, {WS_ST2}\nv_lshlrev_b32 v{ET+2}, 3, v{vL}")
            a(f"buffer_load_dword v{ET+2}, v{ET+2}, s[{S_WS}:{S_WS+3}], s{T} offen sc1")
            vm.add("pre", 2)
        if s == C.q5s and C.q5:
            a(f"s_lshr_b32 s{T}, s2, 3\ns_lshl_b32 s{T}, s{T}, 3\ns_add_u32 s{T}, s{T}, s{sW}\ns_mul_i32 s{T}, s{T}, {6*1024}")
            if C.q5 == 1: a(f"s_add_u32 s{T}, s{T}, 384\nv_min_u32 v{ET}, 5, v{vL}\nv_lshlrev_b32 v{ET}, 10, v{ET}")
            else: a(f"v_min_u32 v{ET}, 47, v{vL}\nv_lshlrev_b32 v{ET}, 7, v{ET}")
            a(f"buffer_load_dword v{ET}, v{ET}, s[{S_QKV}:{S_QKV+3}], s{T} offen"); vm.add("q5")
    assert na == 14 and nw == 28
    a(f"s_waitcnt lgkmcnt({15 if C.wa5 == 13 else 0})")
    for x in mfmas(5, 13): a(x)
    stamp(a, "mlp2.loop")
    a("s_nop 9")
    OUT = 80
    for x in ep2_writes(ACC+16, E+32768, ewb): a(x)
    point(0); point(1); point(2)
    a("s_waitcnt lgkmcnt(0)\ns_barrier")
    ep2_sum(a, RA_, ADD, OUT)
    point(3)
    for e in range(4): a(f"v_cvt_pk_bf16_f32 v{vRES+e}, v{OUT+2*e}, v{OUT+1+2*e}")
    if C.finplain:
        Lf = a.label()
        a(f"s_cmp_eq_u32 s{sL}, 0\ns_cbranch_scc1 {Lf}\nbuffer_store_dwordx4 v[{vRES}:{vRES+3}], v{vXO}, s[{S_XD}:{S_XD+3}], s{sXO} offen{' nt' if C.finplain == 2 else ''}\ns_branch L_fin\n{Lf}:")
    rstore(a, f"buffer_store_dwordx4 v[{vRES}:{vRES+3}], v{vXO}, s[{S_XD}:{S_XD+3}], s{sXO} offen", bulk=True)
    stamp(a, "mlp2.st")
    a(f"s_cmp_lg_u32 s{sL}, 0\ns_cbranch_scc1 L_fin")
    a("v_mov_b32 v64, 0\nv_mov_b32 v65, 0\nv_mov_b32 v68, 0x3f803f80")
    for e in range(4): a(f"v_dot2c_f32_bf16 v64, v{vRES+e}, v68\nv_dot2c_f32_bf16 v65, v{vRES+e}, v{vRES+e}")
    a(f"s_lshl_b32 s{T}, s{sI}, 3\ns_add_u32 s{T}, s{T}, s{sJ}\ns_lshl_b32 s{T}, s{T}, 9\ns_add_u32 s{T}, s{T}, {WS_ST2}\nv_lshlrev_b32 v66, 3, v{vN}")
    dpp_red8(a, [64, 65])
    a(f"v_cmp_eq_u32 vcc, 0, v{vC}\ns_and_saveexec_b64 s[{T+10}:{T+11}], vcc")
    rstore(a, f"buffer_store_dwordx2 v[64:65], v66, s[{S_WS}:{S_WS+3}], s{T} offen", bulk=True)
    a(f"s_mov_b64 exec, s[{T+10}:{T+11}]")
    point(4)
    a(f"s_waitcnt vmcnt({sch[4]})\ns_barrier")
    stamp(a, "mlp2.end")
    if_wave_eq(a, 4, lambda: publish(a, "X", sI))
    point(5)

def main(out):
    a = Asm()
    K = NAME + "_kernel"
    a.L.append(f".globl {K}\n.p2align 8\n.type {K},@function\n{K}:")
    prologue(a)
    prologue2(a)
    a(f"buffer_load_dwordx4 v[{vRES}:{vRES+3}], v{vXO}, s[{S_XS}:{S_XS+3}], s{sXO} offen")
    stamp(a, "entry2")
    a(f"s_cmp_lt_u32 s{sW}, 4\ns_cbranch_scc1 L_p1_cons")
    layer0_helpers(a)
    a("L_layer:")
    ool = phase1(a)
    phase2(a)
    phase3(a)
    mlp(a)
    a(f"s_mov_b32 s{S_XS}, s{S_XD}\ns_mov_b32 s{S_XS+1}, s{S_XD+1}\ns_mov_b32 s{S_XD}, s{sOUT}\ns_mov_b32 s{S_XD+1}, s{sOUT+1}")
    a(f"s_mov_b32 s{sL}, 1\ns_mov_b32 s{sLB}, {LSTRIDE}")
    if C.stamp: a("v_mov_b32 v7, v6")
    a("s_branch L_layer")
    a("L_fin:")
    if C.stamp:
        a("s_waitcnt vmcnt(0)")
        stamp(a, "fin")
        a(f"s_lshl_b32 s{T}, s2, 3\ns_add_u32 s{T}, s{T}, s{sW}\ns_lshl_b32 s{T}, s{T}, 9\ns_add_u32 s{T}, s{T}, {WS_STAMP}\nv_lshlrev_b32 v16, 2, v{vL}")
        a(f"buffer_store_dword v7, v16, s[{S_WS}:{S_WS+3}], s{T} offen\nbuffer_store_dword v6, v16, s[{S_WS}:{S_WS+3}], s{T} offen offset:256")
    a("L_end:\ns_endpgm")
    softmax_safe(a)
    for x in ool: a(x)
    s = HDR + "; @launch grid=(256,1,1) block=(512,1,1) lds=163840\n"
    s += '.amdgcn_target "amdgcn-amd-amdhsa--gfx950"\n.text\n' + a.text().replace("CODE_SPAN", str(C.span))
    s += f""".section .rodata,"a"
.p2align 6
.amdhsa_kernel {K}
  .amdhsa_next_free_vgpr 256
  .amdhsa_next_free_sgpr 102
  .amdhsa_accum_offset {NARCH}
  .amdhsa_group_segment_fixed_size 0
  .amdhsa_kernarg_size 88
  .amdhsa_user_sgpr_count 2
  .amdhsa_user_sgpr_kernarg_segment_ptr 1
  .amdhsa_system_sgpr_workgroup_id_x 1
.end_amdhsa_kernel
"""
    open(out, "w").write(s)
    if C.stamp: open(out + ".stamps", "w").write("\n".join(STAMPS))

if __name__ == "__main__":
    for arg in sys.argv[2:]:
        k, v = arg.split("="); setattr(C, k, v if isinstance(getattr(C, k), str) else type(getattr(C, k))(int(v)))
    main(sys.argv[1])
```

```python
import sys, struct
NAME = "interleave_layers__softmax_full_mha__mixer_token_mlp__prompt"
HDR = open("cdna_kernels/%s.s.ref" % NAME).read().split("; Override launch")[0]
MB = 1 << 20
WS_KV, WS_O, WS_H, WS_U, WS_X2, WS_ST = 0*MB, 4*MB, 6*MB, 8*MB, 10*MB, 12*MB
LSTRIDE = 16*MB
WS_FLAG = 32*MB
WS_XT = WS_FLAG + 131072
WS_STAMP = 40*MB
KA = dict(x=0, wqkv=8, wo=16, w1=32, b1=40, w2=48, b2=56, out=64, dbg=72, ws=80)
SZ = dict(x=2048*512*2, wqkv=512*1536*2, wo=512*512*2, w1=2048*1792*2, b1=1792*2, w2=1792*2048*2, b2=2048*2,
          out=2048*512*2, dbg=256, ws=1 << 28)
FL = dict(KV=0, H=64, U=128, O=192, X=224, UB=256, KL=320)
COLK = ('KV', 'H', 'U', 'UB')
SPIN = 200000
NARCH = 144

class Cfg:
    stamp = False
    prio = True
    lowtiles = 1
    D = 3
    nB = 12
    sch1 = '033343'
    sch2 = '003040'
    sch3 = '426'
    stouch = 0
    p1touch = 0
    now1 = 0
    local = 1
    schw = '002222'
    eps = '99abbbc'
    wlast = 1
    defer = 0
    optx = 0
    n1 = 0
    n2 = 0
    deep = 1
    wa5 = 13
    xp = 2
    early = 6
    q5 = 1
    q5s = 10
    lf = 1
    lfi = 1
    lfc = 2
    c3 = 1
    pub12 = 1
    w1nt = 0
    w2nt = 0
    xrot = 1
    xnt = 0
    lateinit = 1
    arrs = 4
    dbgs = 9
    sent = 1
    ldo = 1
    preto = 1
    sentwait = 1
    fixed = 1
    lprio = 0
    wo1 = 12
    finplain = 0
    vtlb = 0
    vsh = 21
    ntkv = 0
    ntact = 0
    qrot = 0
    w1mask = 7
    w1e = -2
    schx = '01434'
    pbi = 2
    sb = 4
    init5 = 4
    schv = '22220'
    pubs = 14
    pbs = 3
    init = 4
    pae = 1
    order = 1
    ldsper = 3
    epa = 0
    t2 = 28
    sonly = ''
    tmix = 1
    cpf = 0
    span = 32640
    early2 = 0
    ldata = 0
    pret = 0
    prett = 24
    hs1 = '322211222000'
    hs0 = '222222220000'
    h0first = 4
    h0second = 4
    w1t = 9
    p1per = 4
    qtouch = 2
    pper = 16
    plow = 3
    split = 1
    kvfix = 0
    xsel = 'wot'
    nofirst = 0
    tlb = 0
    lowhalf = 3
    jrot = 6
    nox = 0
    notr = 0
    loop = 0
    pad = 0
    align = 3
    nQ = 12
C = Cfg()

class Asm:
    def __init__(self): self.L = []; self.n = 0
    def __call__(self, s):
        for line in s.split("\n"):
            line = line.strip()
            if line: self.L.append(("" if line.endswith(":") else "    ") + line)
    def label(self, p="L"):
        self.n += 1; return f"{p}{self.n}"
    def text(self): return "\n".join(self.L) + "\n"

def f2u(x): return hex(struct.unpack("<I", struct.pack("<f", x))[0])

S_XS, S_QKV, S_WS, S_WO, S_W1, S_W2, S_B1, S_B2, S_XD, S_DBG, S_KV = 8, 12, 16, 20, 24, 28, 32, 36, 40, 44, 80
sI, sJ, sW, sL, sLB, sFL = 48, 49, 50, 51, 52, 53
sW2S = 54
sVW = 55
sLOC = 56
sXO = 57
sOUT = 58
sR2 = 80
T = 60
sST = 76
sRET = 84
vL, vN, vC, vL16, vXO = 1, 2, 3, 4, 5
vRES = 8
vF2, vTRF, vWQ = 12, 13, 14
TV = 16
E, V = 0, 65536
QX = V + 11*8192
SVO = 32768
STG = V

STAMPS = []
def stamp(a, name):
    if not C.stamp: return
    if C.sonly:
        if not (name == "start" or any(name.startswith(p) for p in C.sonly.split(","))): return
    elif name.startswith("z") or name.startswith("entry"): return
    k = len(STAMPS); assert k < 32
    a(f"s_memtime s[{sST}:{sST+1}]\ns_memrealtime s[{sST+2}:{sST+3}]\ns_waitcnt lgkmcnt(0)")
    a(f"v_writelane_b32 v6, s{sST}, {k}\nv_writelane_b32 v6, s{sST+2}, {k+32}")
    STAMPS.append(name)

def dpp_red8(a, regs):
    for pat in ("quad_perm:[1,0,3,2]", "quad_perm:[2,3,0,1]", "row_half_mirror"):
        a("s_nop 1")
        for r in regs: a(f"v_add_f32_dpp v{r}, v{r}, v{r} {pat} row_mask:0xf bank_mask:0xf")

def tr_addr(a, vd, xh, perm, t0, t1):
    a(f"v_lshrrev_b32 v{t0}, 5, v{vL}\nv_lshlrev_b32 v{t0}, {2 if perm else 3}, v{t0}")
    a(f"v_bfe_u32 v{t1}, v{vL}, 2, 2\nv_add_u32 v{t0}, v{t0}, v{t1}\nv_lshlrev_b32 v{vd}, 7, v{t0}")
    a(f"v_lshrrev_b32 v{t1}, 1, v{t1}\nv_xor_b32 v{t1}, {xh}, v{t1}\nv_lshl_add_u32 v{vd}, v{t1}, 6, v{vd}")
    a(f"v_bfe_u32 v{t1}, v{vL}, 4, 1\nv_lshl_add_u32 v{vd}, v{t1}, 5, v{vd}")
    a(f"v_and_b32 v{t1}, 3, v{vL}\nv_lshl_add_u32 v{vd}, v{t1}, 3, v{vd}")

def interleave(a, m, r):
    per = -(-len(r)//len(m))
    for x in range(len(m)):
        a(m[x])
        for y in r[x*per:(x+1)*per]: a(y)

def rstore(a, instr, bulk=False):
    if not C.local or (bulk and not C.ldata):
        a(instr + " sc1"); return
    L = a.label(); L2 = a.label()
    a(f"s_cmp_eq_u32 s{sLOC}, 1\ns_cbranch_scc1 {L}\n{instr} sc1\ns_branch {L2}\n{L}:\n{instr}\n{L2}:")

def publish(a, kind, group_s, tv=None):
    if kind not in COLK:
        a(f"s_lshl_b32 s{T}, s{group_s}, 7\ns_add_u32 s{T}, s{T}, {FL[kind]*128}\ns_add_u32 s{T}, s{T}, s{sFL}\ns_lshl_b32 s{T+1}, s{sJ}, 4\ns_add_u32 s{T}, s{T}, s{T+1}")
        a(f"v_mov_b32 v{TV}, 1\ns_mov_b64 exec, 1")
        rstore(a, f"buffer_store_dword v{TV}, v{vL16}, s[{S_WS}:{S_WS+3}], s{T} offen")
        a("s_mov_b64 exec, -1")
        return
    col = kind in COLK
    a(f"s_lshl_b32 s{T}, s{group_s}, {10 if col else 7}\ns_add_u32 s{T}, s{T}, {FL[kind]*128}\ns_add_u32 s{T}, s{T}, s{sFL}")
    a(f"v_mov_b32 v{TV}, 1\nv_lshlrev_b32 v{TV+1}, 7, v{vL}\ns_mov_b64 exec, {0xff if col else 1}")
    a(f"buffer_atomic_add v{TV}, v{TV+1}, s[{S_WS}:{S_WS+3}], s{T} offen sc1")
    a("s_mov_b64 exec, -1")

def poll(a, kind, group_s, n):
    col = kind in COLK
    a(f"s_lshl_b32 s{T}, s{group_s}, {10 if col else 7}\ns_add_u32 s{T}, s{T}, {FL[kind]*128}\ns_add_u32 s{T}, s{T}, s{sFL}")
    if col: a(f"s_lshr_b32 s{T+1}, s{sI}, 2\ns_lshl_b32 s{T+1}, s{T+1}, 7\ns_add_u32 s{T}, s{T}, s{T+1}")
    a(f"s_mov_b64 exec, {1 if col else 0xff}\ns_mov_b32 s{T+1}, {SPIN}")
    LP = a.label(); LD = a.label()
    a(f"{LP}:")
    a(f"buffer_load_dword v{TV}, v{vL16}, s[{S_WS}:{S_WS+3}], s{T} offen sc1")
    a(f"s_waitcnt vmcnt(0)\nv_cmp_ne_u32 vcc, {n if col else 1}, v{TV}")
    a(f"s_cbranch_vccz {LD}")
    a(f"s_sub_u32 s{T+1}, s{T+1}, 1\ns_cmp_lg_u32 s{T+1}, 0\ns_cbranch_scc1 {LP}")
    a(f"{LD}:\ns_mov_b64 exec, -1")

def kl_addr(a):
    a(f"s_lshr_b32 s{T}, s{sI}, 2\ns_lshl_b32 s{T}, s{T}, 3\ns_add_u32 s{T}, s{T}, s{sJ}\ns_lshl_b32 s{T}, s{T}, 7\ns_add_u32 s{T}, s{T}, {FL['KL']*128}\ns_add_u32 s{T}, s{T}, s{sFL}")

def kl_publish(a):
    kl_addr(a)
    a(f"s_and_b32 s{T+1}, s{sI}, 3\ns_lshl_b32 s{T+1}, s{T+1}, 4\ns_add_u32 s{T}, s{T}, s{T+1}\nv_mov_b32 v{TV+3}, 1\ns_mov_b64 exec, 1")
    rstore(a, f"buffer_store_dword v{TV+3}, v{vL16}, s[{S_WS}:{S_WS+3}], s{T} offen")
    a("s_mov_b64 exec, -1")

def kl_poll(a):
    kl_addr(a)
    a(f"s_mov_b64 exec, 15\ns_mov_b32 s{T+1}, {SPIN}")
    LP = a.label(); LD = a.label()
    a(f"{LP}:\nbuffer_load_dword v{TV}, v{vL16}, s[{S_WS}:{S_WS+3}], s{T} offen sc1\ns_waitcnt vmcnt(0)\nv_cmp_ne_u32 vcc, 1, v{TV}\ns_cbranch_vccz {LD}")
    a(f"s_sub_u32 s{T+1}, s{T+1}, 1\ns_cmp_lg_u32 s{T+1}, 0\ns_cbranch_scc1 {LP}\n{LD}:\ns_mov_b64 exec, -1")

def if_wave_eq(a, w, body):
    L = a.label()
    a(f"s_cmp_lg_u32 s{sW}, {w}\ns_cbranch_scc1 {L}")
    body()
    a(f"{L}:")

def qslot(u): return (u + 5) % 12
def qkv_src(u): return (u >> 1)*64*3072 + (1 + (u & 1))*1024 if u < 16 else (u-16)*64*3072

def qkv_row(a, d, base, u):
    if not C.qrot:
        a(f"s_mov_b32 s{d}, s{base}"); return qkv_src(u)
    a(f"s_add_u32 s{d}, s{sR2}, {u >> 1 if u < 16 else u - 16}\ns_and_b32 s{d}, s{d}, 7\ns_mul_i32 s{d}, s{d}, {64*3072}\ns_add_u32 s{d}, s{d}, s{base}")
    return (1 + (u & 1))*1024 if u < 16 else 0

def qkv_base8(a, s):
    a(f"s_mul_i32 s{s}, s{sW}, {8*3072}\ns_lshl_b32 s{T}, s{sJ}, 7\ns_add_u32 s{s}, s{s}, s{T}")

def qkv_piece8(a, s, u):
    seg = qkv_row(a, T, s, u)
    a(f"s_add_u32 m0, s{sVW}, {qslot(u)*8192}\ns_add_u32 s{T}, s{T}, {seg}")
    a(f"buffer_load_dwordx4 v{vWQ}, s[{S_QKV}:{S_QKV+3}], s{T} offen lds")

def w2_dma(a, f):
    a(f"s_add_u32 m0, s{sVW}, {SVO + ((f+4) % 8)*8192}\ns_add_u32 s{T}, s{sW2S}, {f*16*4096}")
    a(f"buffer_load_dwordx4 v{vF2}, s[{S_W2}:{S_W2+3}], s{T} offen lds")

def frag_reads(dst, vaddr, off):
    p, n = dst[0], int(dst[1:])
    return [f"ds_read_b64_tr_b16 {p}[{n}:{n+1}], v{vaddr} offset:{off}", f"ds_read_b64_tr_b16 {p}[{n+2}:{n+3}], v{vaddr} offset:{off+256}"]

W2V = 32
def w2_reg(f): return f"v{W2V+4*f}" if f < 4 else f"a{4*(f-4)}"
def w2_reads(f): return frag_reads(w2_reg(f), vTRF, ((f+4) % 8)*8192)

def prologue(a):
    if C.stamp: a("s_memtime s[96:97]\ns_memrealtime s[98:99]")
    a("s_load_dwordx16 s[64:79], s[0:1], 0\ns_load_dwordx4 s[84:87], s[0:1], 64\ns_load_dwordx2 s[88:89], s[0:1], 80")
    a(f"s_cmp_ge_u32 s2, 256\ns_cbranch_scc1 L_end")
    if C.cpf:
        if C.cpf == 1: a(f"s_getpc_b64 s[{T+2}:{T+3}]\ns_lshr_b32 s{T}, s2, 3\ns_lshl_b32 s{T}, s{T}, 10\nv_lshrrev_b32 v41, 6, v0\nv_lshlrev_b32 v41, 7, v41\nv_add_u32 v41, s{T}, v41")
        else: a(f"s_getpc_b64 s[{T+2}:{T+3}]\nv_lshlrev_b32 v41, 6, v0")
        a(f"v_min_u32 v41, CODE_SPAN, v41\nglobal_load_dword v142, v41, s[{T+2}:{T+3}]")
    a(f"v_lshrrev_b32 v{vL}, 6, v0\ns_lshr_b32 s{sJ}, s2, 5\nv_readfirstlane_b32 s{sW}, v{vL}\nv_and_b32 v{vL}, 63, v0")
    a(f"s_and_b32 s{sI}, s2, 7\ns_lshl_b32 s{sI}, s{sI}, 2\ns_bfe_u32 s{T}, s2, 0x20003\ns_or_b32 s{sI}, s{sI}, s{T}")
    a(f"v_lshrrev_b32 v{vN}, 3, v0\nv_and_b32 v{vC}, 7, v0")
    a(f"s_lshl_b32 s{T}, s{sJ}, {3 if C.xrot else 6}\nv_add_u32 v42, s{T}, v{vN}\nv_and_b32 v42, 63, v42")
    a(f"v_bfe_u32 v41, v42, 1, 3\nv_xor_b32 v41, v41, v{vC}\nv_lshlrev_b32 v41, 4, v41\nv_lshl_add_u32 v{vXD}, v42, 10, v41")
    a(f"s_mov_b32 s{S_XS+2}, {hex(SZ['x'])}\ns_mov_b32 s{S_XS+3}, 0x00020000\ns_mov_b32 s{S_QKV+2}, {hex(SZ['wqkv'])}\ns_mov_b32 s{S_QKV+3}, s{S_XS+3}")
    a(f"s_and_b32 s{sR2}, s{sI}, {3 if C.qrot else 0}\ns_lshl_b32 s{sR2}, s{sR2}, 1")
    if C.qtouch:
        a(f"s_mul_i32 s{T+2}, s2, {48*128}\ns_lshr_b32 s{T+3}, s2, 3\ns_mul_i32 s{T+3}, s{T+3}, {48*1024}\ns_addk_i32 s{T+3}, 384")
        a(f"s_cmp_eq_u32 s{sW}, 0\ns_cselect_b32 s{T+2}, s{T+2}, s{T+3}\ns_cselect_b32 s{T+3}, 7, 10\nv_min_u32 v41, 47, v{vL}\nv_lshlrev_b32 v41, s{T+3}, v41")
    if C.stamp: a("v_mov_b32 v6, 0\nv_mov_b32 v7, 0")
    def rest():
        for s, n in ((S_WS, "ws"), (S_WO, "wo"), (S_W1, "w1"), (S_W2, "w2"), (S_B1, "b1"), (S_B2, "b2"), (S_DBG, "dbg"), (S_XD, "x")):
            a(f"s_mov_b32 s{s+2}, {hex(SZ[n])}\ns_mov_b32 s{s+3}, 0x00020000")
        a(f"v_lshlrev_b32 v{vL16}, 4, v{vL}")
        a(f"s_lshl_b32 s{sXO}, s{sI}, 16\ns_lshl_b32 s{T}, s{sJ}, 7\ns_add_u32 s{sXO}, s{sXO}, s{T}")
        a(f"s_mov_b32 s{sLOC}, 0\ns_mov_b32 s{sL}, 0\ns_mov_b32 s{sLB}, 0\ns_mov_b32 s{sFL}, {WS_FLAG}")
        a(f"v_lshrrev_b32 v40, 3, v{vL}\nv_bfe_u32 v43, v{vL}, 4, 1\nv_lshlrev_b32 v43, 2, v43\nv_and_b32 v42, 7, v{vL}\nv_xor_b32 v43, v43, v42\nv_lshlrev_b32 v43, 4, v43")
        a(f"v_mul_u32_u24 v{vWQ}, 3072, v40\nv_add_u32 v{vWQ}, v{vWQ}, v43")
        a(f"s_lshl_b32 s{sVW}, s{sW}, 10\ns_add_u32 s{sVW}, s{sVW}, {V}")
        a(f"v_bfe_u32 v43, v{vN}, 1, 1\nv_bfe_u32 v42, v{vN}, 2, 1\nv_and_b32 v{vN}, 0x39, v{vN}\nv_lshl_add_u32 v{vN}, v43, 2, v{vN}\nv_lshl_add_u32 v{vN}, v42, 1, v{vN}")
        a(f"v_lshlrev_b32 v{vXO}, 10, v{vN}\nv_lshl_add_u32 v{vXO}, v{vC}, 4, v{vXO}")
        prologue2(a)
    if C.early2: rest()
    L = a.label()
    a(f"s_cmp_gt_u32 s{sW}, 1\ns_waitcnt lgkmcnt(0)\ns_mov_b64 s[{S_XS}:{S_XS+1}], s[64:65]\ns_mov_b64 s[{S_QKV}:{S_QKV+1}], s[66:67]")
    if C.qtouch: a(f"s_cbranch_scc1 {L}\nbuffer_load_dword v143, v41, s[{S_QKV}:{S_QKV+3}], s{T+2} offen\n{L}:")
    x_dma(a, fl="")
    for s, n in ((S_WO, "wo"), (S_W1, "w1"), (S_W2, "w2"), (S_B1, "b1"), (S_B2, "b2")):
        a(f"s_mov_b64 s[{s}:{s+1}], s[{64 + KA[n]//4}:{65 + KA[n]//4}]")
    a(f"s_mov_b64 s[{sOUT}:{sOUT+1}], s[84:85]\ns_mov_b64 s[{S_DBG}:{S_DBG+1}], s[86:87]\ns_mov_b64 s[{S_WS}:{S_WS+1}], s[88:89]")
    if C.stamp:
        a(f"v_writelane_b32 v6, s96, 0\nv_writelane_b32 v6, s98, 32"); STAMPS.append("start")
    a(f"s_add_u32 s{S_XD}, s{S_WS}, {WS_X2}\ns_addc_u32 s{S_XD+1}, s{S_WS+1}, 0")
    if not C.early2: rest()

def prologue2(a):
    a(f"v_lshrrev_b32 v42, 2, v{vL}\nv_and_b32 v43, 3, v{vL}\nv_lshlrev_b32 v43, 4, v43")
    a(f"v_lshl_add_u32 v{vF2}, v42, 12, v43")
    a(f"v_lshrrev_b32 v42, 5, v{vL}\nv_lshlrev_b32 v42, 3, v42\nv_bfe_u32 v43, v{vL}, 2, 2\nv_add_u32 v42, v42, v43\nv_lshlrev_b32 v{vTRF}, 6, v42")
    a(f"v_bfe_u32 v43, v{vL}, 4, 1\nv_lshl_add_u32 v{vTRF}, v43, 5, v{vTRF}\nv_and_b32 v43, 3, v{vL}\nv_lshl_add_u32 v{vTRF}, v43, 3, v{vTRF}")
    a(f"v_add_u32 v{vTRF}, s{sVW}, v{vTRF}\nv_add_u32 v{vTRF}, {SVO}, v{vTRF}")
    a(f"s_lshr_b32 s{sW2S}, s{sW}, 1\ns_mul_i32 s{sW2S}, s{sW2S}, {448*4096}\ns_lshl_b32 s{T}, s{sI}, 7\ns_add_u32 s{sW2S}, s{sW2S}, s{T}")
    a(f"s_and_b32 s{T}, s{sW}, 1\ns_lshl_b32 s{T}, s{T}, 6\ns_add_u32 s{sW2S}, s{sW2S}, s{T}")

def tlb_touch(a):
    if not C.tlb: return
    a(f"s_sub_u32 s{T+4}, s{sW}, 4\ns_lshl_b32 s{T}, s{T+4}, 21")
    for k in range(4): a(f"s_add_u32 s{T+1}, s{T}, {(k & 1)*8*MB + (k >> 1)*LSTRIDE}\ns_buffer_load_dword s86, s[{S_WS}:{S_WS+3}], s{T+1}")
    for srd in (S_W1, S_W2): a(f"s_buffer_load_dword s86, s[{srd}:{srd+3}], s{T}")
    a(f"s_lshl_b32 s{T}, s{T+4}, 19\ns_load_dword s86, s[{sOUT}:{sOUT+1}], s{T}")
    a(f"s_buffer_load_dword s86, s[{S_WO}:{S_WO+3}], 0\ns_buffer_load_dword s86, s[{S_B1}:{S_B1+3}], 0\ns_buffer_load_dword s86, s[{S_B2}:{S_B2+3}], 0")

def init_sync(a, w=3):
    def body():
        a("v_mov_b32 v44, 0\nv_mov_b32 v45, 0\nv_mov_b32 v46, 0\nv_mov_b32 v47, 0")
        a(f"s_lshl_b32 s{T}, s2, 10\ns_add_u32 s{T}, s{T}, {WS_ST}\ns_add_u32 s{T+1}, s{T}, {LSTRIDE}")
        a(f"buffer_store_dwordx4 v[44:47], v{vL16}, s[{S_WS}:{S_WS+3}], s{T} offen sc1")
        a(f"buffer_store_dwordx4 v[44:47], v{vL16}, s[{S_WS}:{S_WS+3}], s{T+1} offen sc1")
        a(f"s_lshl_b32 s{T}, s2, 9\ns_add_u32 s{T}, s{T}, {WS_FLAG}\ns_mov_b32 exec_hi, 0")
        a(f"buffer_store_dwordx4 v[44:47], v{vL16}, s[{S_WS}:{S_WS+3}], s{T} offen sc1")
        if C.sent:
            a(f"s_mov_b64 exec, -1\nv_mov_b32 v100, -1\nv_mov_b32 v101, -1\nv_mov_b32 v102, -1\nv_mov_b32 v103, -1\ns_lshl_b32 s{T}, s2, 13\ns_add_u32 s{T}, s{T}, {WS_O}\ns_add_u32 s{T+1}, s{T}, 4096")
            for k in range(8): a(f"buffer_store_dwordx4 v[100:103], v{vL16}, s[{S_WS}:{S_WS+3}], s{T + (k >> 2)} offen offset:{(k & 3)*1024} sc1")
        a(f"s_getreg_b32 s{T+1}, hwreg(HW_REG_XCC_ID, 0, 4)\ns_mov_b64 exec, 1\nv_mov_b32 v48, s{T+1}")
        a(f"s_lshl_b32 s{T}, s{sI}, 3\ns_add_u32 s{T}, s{T}, s{sJ}\ns_lshl_b32 s{T}, s{T}, 4\ns_add_u32 s{T}, s{T}, {WS_XT}")
        a(f"buffer_store_dword v48, v{vL16}, s[{S_WS}:{S_WS+3}], s{T} offen sc1")
        a("s_mov_b64 exec, -1")
    if_wave_eq(a, w, body)

def init_arrive(a, w=3, pre="s_nop 0", tv=TV):
    L = a.label()
    a(f"s_cmp_lg_u32 s{sW}, {w}\ns_cbranch_scc1 {L}\n{pre}")
    a(f"v_mov_b32 v{tv}, 1\nv_mov_b32 v{tv+1}, 0\ns_and_b32 s{T}, s2, 63\ns_lshl_b32 s{T}, s{T}, 2\ns_mov_b64 exec, 1")
    a(f"buffer_atomic_add v{tv}, v{tv+1}, s[{S_DBG}:{S_DBG+3}], s{T} offen sc1")
    a(f"s_mov_b64 exec, -1\n{L}:")

def wait_init(a, vaddr):
    a(f"s_mov_b32 s{T+1}, {SPIN}")
    LP = a.label(); LD = a.label()
    a(f"{LP}:\nv_cmp_gt_u32 vcc, 4, v{TV+2}\ns_cbranch_vccz {LD}")
    a(f"buffer_load_dword v{TV+2}, v{vaddr}, s[{S_DBG}:{S_DBG+3}], 0 offen sc1\ns_waitcnt vmcnt(0)")
    a(f"s_sub_u32 s{T+1}, s{T+1}, 1\ns_cmp_lg_u32 s{T+1}, 0\ns_cbranch_scc1 {LP}")
    a(f"{LD}:\ns_mov_b64 exec, -1")

class VM:
    def __init__(self): self.ops = []
    def add(self, tag, n=1): self.ops += [tag]*n
    def need(self, *tags):
        last = max(k for k, t in enumerate(self.ops) if t in tags)
        return min(63, len(self.ops) - 1 - last)

vXD = 15
TAB = V + 5*8192
WS_ST2 = 12*MB + 512*1024
WS_CS = 13*MB

def x_dma(a, qs=range(8), fl="sc1"):
    X1 = 81
    a(f"s_lshl_b32 s{T}, s{sI}, 16\n" + (f"s_add_u32 s{T+1}, s{sW}, s{sJ}\ns_and_b32 s{T+1}, s{T+1}, 7\ns_lshl_b32 s{T+1}, s{T+1}, 10" if C.xrot else f"s_lshl_b32 s{T+1}, s{sW}, 10"))
    for q in qs:
        if not C.qrot:
            a(f"s_add_u32 m0, s{T+1}, {E + q*8192 - q*128}\ns_nop 0\nbuffer_load_dwordx4 v{vXD}, s[{S_XS}:{S_XS+3}], s{T} offen offset:{128*q} {fl} lds")
            continue
        if q % 2 == 0 or q == qs[0]: a(f"s_add_u32 s{X1}, s{sR2}, {q & 6}\ns_and_b32 s{X1}, s{X1}, 7\ns_lshl_b32 s{X1}, s{X1}, 7\ns_add_u32 s{X1}, s{X1}, s{T}")
        a(f"s_add_u32 m0, s{T+1}, {E + q*8192 - (q & 1)*128}\ns_nop 0")
        a(f"buffer_load_dwordx4 v{vXD}, s[{S_XS}:{S_XS+3}], s{X1} offen offset:{128*(q & 1)} {fl} lds")

def split_hi_lo(a, src, hi2, lo2, t, neg=False):
    if neg: a(f"v_sub_f32 v{src}, 0, v{src}")
    a(f"v_cvt_pk_bf16_f32 v{t}, v{src}, v{src}\nv_and_b32 v{t}, 0xffff0000, v{t}\nv_sub_f32 v{t+1}, v{src}, v{t}")

def own_stats(a, D, A, MUo, Ro, ADo):
    a(f"s_add_u32 s{T}, s{sW}, s{sJ}\ns_and_b32 s{T}, s{T}, 7" if C.xrot else f"s_mov_b32 s{T}, s{sW}")
    a(f"s_lshl_b32 s{T+1}, s{T}, 10\nv_add_u32 v{ADo}, s{T+1}, v{vL16}")
    for q in range(8): a(f"ds_read_b128 v[{D+4*q}:{D+4*q+3}], v{ADo} offset:{q*8192}")
    for r in range(4): a(f"v_mov_b32 v{A+r}, 0")
    a(f"v_mov_b32 v{A+4}, 0x3f803f80\ns_lshl_b32 s{T}, s{T}, 5\ns_add_u32 s{T}, s{T}, {TAB}\nv_lshrrev_b32 v{ADo}, 3, v{vL}\nv_lshlrev_b32 v{ADo}, 2, v{ADo}\nv_add_u32 v{ADo}, s{T}, v{ADo}")
    for q in range(8):
        a(f"s_waitcnt lgkmcnt({7-q})")
        for e in (0, 2):
            r = D+4*q+e
            a(f"v_dot2c_f32_bf16 v{A}, v{r}, v{A+4}\nv_dot2c_f32_bf16 v{A+2}, v{r}, v{r}\nv_dot2c_f32_bf16 v{A+1}, v{r+1}, v{A+4}\nv_dot2c_f32_bf16 v{A+3}, v{r+1}, v{r+1}")
    a(f"s_nop 2\nv_add_f32 v{MUo}, v{A}, v{A+1}\nv_add_f32 v{Ro}, v{A+2}, v{A+3}")
    dpp_red8(a, [MUo, Ro])
    a(f"v_mul_f32 v{MUo}, {f2u(1/512)}, v{MUo}\nv_mul_f32 v{Ro}, {f2u(1/512)}, v{Ro}")
    a(f"v_fma_f32 v{Ro}, -v{MUo}, v{MUo}, v{Ro}\nv_max_f32 v{Ro}, 0, v{Ro}\nv_add_f32 v{Ro}, {f2u(1e-5)}, v{Ro}\nv_rsq_f32 v{Ro}, v{Ro}")

def layer0_helpers(a):
    LJ = "L_p1_join"; LB = a.label()
    a(f"s_cmp_ge_u32 s{sW}, 6\ns_cbranch_scc1 {LB}")
    src, dst = T+2, T+3
    a(f"s_sub_u32 s{dst}, s{sW}, 4\ns_mul_i32 s{src}, s{dst}, {32*3072}\ns_lshl_b32 s{T}, s{sJ}, 7\ns_add_u32 s{src}, s{src}, s{T}")
    a(f"s_lshl_b32 s{dst}, s{dst}, 12\ns_add_u32 s{dst}, s{dst}, {V}")
    vm = VM()
    def unit(u):
        seg = qkv_row(a, T+1, src, u)
        for p in range(4):
            a(f"s_add_u32 m0, s{dst}, {qslot(u)*8192 + p*1024}\ns_add_u32 s{T}, s{T+1}, {seg + p*8*3072}")
            a(f"buffer_load_dwordx4 v{vWQ}, s[{S_QKV}:{S_QKV+3}], s{T} offen lds")
        vm.add(("w", u), 4)
    for u in range(C.h0first): unit(u)
    a(f"s_waitcnt vmcnt({4*C.h0first})")
    own_stats(a, 48, 80, 42, 44, 40)
    issued = C.h0first
    for u in range(C.h0second): unit(issued); issued += 1
    sched = [int(c) for c in C.hs0]
    for s in range(12):
        a(f"s_waitcnt vmcnt({vm.need(('w', 2*s+1))})" + (" lgkmcnt(0)" if s == 8 else "") + "\ns_barrier")
        if s == 7: a("ds_write_b32 v40, v42\nds_write_b32 v40, v44 offset:256")
        for _ in range(sched[s]):
            assert issued < 2*s + 12 and issued < 24
            unit(issued); issued += 1
        assert s == 11 or issued >= 2*s + 4
    assert issued == 24
    a(f"s_barrier\ns_branch {LJ}")
    a(f"{LB}:")
    init_sync(a, 7)
    if C.vtlb:
        def body():
            sh = C.vsh
            a(f"v_lshlrev_b32 v49, {sh}, v{vL}\ns_lshl_b32 s{T}, s2, 7")
            a(f"s_mov_b32 s{S_WS+2}, {hex(34*MB)}\nbuffer_load_dword v136, v49, s[{S_WS}:{S_WS+3}], s{T} offen\ns_mov_b32 s{S_WS+2}, {hex(SZ['ws'])}")
            for k, srd in enumerate((S_W1, S_W2, S_WO)): a(f"buffer_load_dword v{137+k}, v49, s[{srd}:{srd+3}], s{T} offen")
            a(f"buffer_load_dword v140, v49, s[{S_B1}:{S_B1+3}], 0 offen\nbuffer_load_dword v140, v49, s[{S_B2}:{S_B2+3}], 0 offen")
            a(f"v_and_b32 v50, 0x1fffff, v49\nglobal_load_dword v140, v50, s[{sOUT}:{sOUT+1}]")
        if_wave_eq(a, 6, body)
    L4 = a.label()
    a(f"s_waitcnt vmcnt({12 if C.sent else 4})\ns_cmp_eq_u32 s{sW}, 7\ns_cbranch_scc1 {L4}\ns_waitcnt vmcnt({7 if C.vtlb else 0})\n{L4}:")
    def w1touch(mask):
        a(f"s_lshl_b32 s{T}, s2, 1\ns_add_u32 s{T}, s{T}, s{sW}\ns_sub_u32 s{T}, s{T}, 6\ns_mul_i32 s{T+1}, s{T}, {112*128}\nv_min_u32 v49, 55, v{vL}\nv_lshlrev_b32 v49, 7, v49")
        if mask & 1: a(f"buffer_load_dword v141, v49, s[{S_W1}:{S_W1+3}], s{T+1} offen")
        if mask & 2: a(f"s_add_u32 s{T+1}, s{T+1}, {56*128}\nbuffer_load_dword v142, v49, s[{S_W1}:{S_W1+3}], s{T+1} offen")
        if mask & 4: a(f"s_lshl_b32 s{T+1}, s{T}, 10\nv_and_b32 v49, 0x380, v49\nbuffer_load_dword v143, v49, s[{S_WO}:{S_WO+3}], s{T+1} offen")
    if C.w1e == -1: w1touch(7 & ~C.w1mask)
    own_stats(a, 52, 84, 42, 43, 40)
    for s in range(12):
        if s == 8: a("s_waitcnt lgkmcnt(0)")
        a("s_barrier")
        if s == 7: a("ds_write_b32 v40, v42\nds_write_b32 v40, v43 offset:256")
        if s == C.arrs: init_arrive(a, 7, pre="s_waitcnt vmcnt(0)")
        if s == C.dbgs: a(f"v_lshlrev_b32 v41, 2, v{vL}\nbuffer_load_dword v{TV+2}, v41, s[{S_DBG}:{S_DBG+3}], 0 offen sc1")
        if s == C.w1t: w1touch(C.w1mask)
        if s == C.w1e: w1touch(7 & ~C.w1mask)
    assert C.w1t >= C.dbgs and C.w1e < C.dbgs
    a(f"s_waitcnt vmcnt({bin(C.w1mask).count('1') if C.w1t < 12 else 0})")
    if_wave_eq(a, 6, lambda: wait_init(a, 41))
    a("s_barrier")
    def pub():
        if C.lf: kl_publish(a)
        publish(a, "KV", sJ)
    if_wave_eq(a, 6, pub)
    a(f"s_branch {LJ}")

def helper_setup(a):
    src, dst = T+2, T+3
    a(f"s_sub_u32 s{dst}, s{sW}, 4\ns_mul_i32 s{src}, s{dst}, {16*3072}\ns_lshl_b32 s{T}, s{sJ}, 7\ns_add_u32 s{src}, s{src}, s{T}")
    a(f"s_lshl_b32 s{T}, s{dst}, 4\nv_lshrrev_b32 v40, 2, v{vL}\nv_add_u32 v40, s{T}, v40")
    a(f"s_lshl_b32 s{dst}, s{dst}, 11\ns_add_u32 s{dst}, s{dst}, {V}")

def helper_unit(a, u, vm):
    seg = qkv_row(a, T+1, T+2, u)
    for p in range(2):
        a(f"s_add_u32 m0, s{T+3}, {qslot(u)*8192 + p*1024}\ns_add_u32 s{T}, s{T+1}, {seg + p*8*3072}")
        a(f"buffer_load_dwordx4 v{vWQ}, s[{S_QKV}:{S_QKV+3}], s{T} offen lds")
    vm.add(("w", u), 2)

def helper_loop(a, layer, vm, issued, sched, LJ):
    ROW, S1, S2, G = 40, 42, 44, 48
    first = issued
    for s in range(12):
        tags = [t for t in [("x", s), ("w", 2*s+1)] if t in vm.ops]
        if s == 6 and layer == 1: tags.append("g")
        if tags: a(f"s_waitcnt vmcnt({vm.need(*tags)})")
        if s == 8: a("s_waitcnt lgkmcnt(0)")
        a("s_barrier")
        if s == 7: a(f"ds_write_b32 v{ROW}, v{S1}\nds_write_b32 v{ROW}, v{S2} offset:256")
        for _ in range(sched[s]):
            assert issued < 2*s + 12 and issued < 24
            helper_unit(a, issued, vm); issued += 1
        assert s == 11 or issued >= 2*s + 4
        if s == 6:
            if layer == 1: a(f"v_add_f32 v{S1}, v{G}, v{G+2}\nv_add_f32 v{S2}, v{G+1}, v{G+3}")
            for pat in ("quad_perm:[1,0,3,2]", "quad_perm:[2,3,0,1]"):
                a("s_nop 1")
                for r in (S1, S2): a(f"v_add_f32_dpp v{r}, v{r}, v{r} {pat} row_mask:0xf bank_mask:0xf")
            a(f"v_mul_f32 v{S1}, {f2u(1/512)}, v{S1}\nv_mul_f32 v{S2}, {f2u(1/512)}, v{S2}")
            a(f"v_fma_f32 v{S2}, -v{S1}, v{S1}, v{S2}\nv_max_f32 v{S2}, 0, v{S2}\nv_add_f32 v{S2}, {f2u(1e-5)}, v{S2}\nv_rsq_f32 v{S2}, v{S2}")
            a(f"v_lshlrev_b32 v{ROW}, 2, v{ROW}\nv_add_u32 v{ROW}, {TAB}, v{ROW}")
        if s == 8 and layer == 0:
            a(f"v_lshlrev_b32 v46, 2, v{vL}\nbuffer_load_dword v{TV+2}, v46, s[{S_DBG}:{S_DBG+3}], 0 offen sc1"); vm.add("dbg")
        if s == C.w1t and layer == 0:
            a(f"s_lshl_b32 s{T}, s2, 2\ns_add_u32 s{T}, s{T}, s{sW}\ns_sub_u32 s{T}, s{T}, 4\ns_mul_i32 s{T+1}, s{T}, {56*128}\nv_min_u32 v47, 55, v{vL}\nv_lshlrev_b32 v47, 7, v47")
            a(f"buffer_load_dword v142, v47, s[{S_W1}:{S_W1+3}], s{T+1} offen")
            a(f"s_lshl_b32 s{T+1}, s{T}, 9\nv_and_b32 v47, 0x180, v47\nbuffer_load_dword v143, v47, s[{S_WO}:{S_WO+3}], s{T+1} offen")
            vm.add("t", 2)
    assert issued == 24
    if layer == 0: a(f"s_waitcnt vmcnt({vm.need('dbg')})")
    def w4():
        if layer == 0: wait_init(a, 46)
        if C.lf: kl_publish(a)
        publish(a, "KV", sJ)
    if C.pub12:
        if layer == 0: if_wave_eq(a, 4, lambda: wait_init(a, 46))
        a("s_barrier")
        def w4b():
            if C.lf: kl_publish(a)
            publish(a, "KV", sJ)
        if_wave_eq(a, 4, w4b)
    else:
        if_wave_eq(a, 4, w4)
        a("s_barrier")
    a(f"s_branch {LJ}")

def x_start(a):
    a(f"s_mov_b32 s{sFL}, {WS_FLAG + 512*128}\ns_barrier")
    stamp(a, "p1.polled")
    if C.xp < 8:
        x_dma(a, range(C.xp)); a("s_barrier"); x_dma(a, range(C.xp, 8))
    else: x_dma(a)

def phase1(a):
    LC = "L_p1_cons"; LJ = "L_p1_join"
    a(f"s_cmp_lt_u32 s{sW}, 4\ns_cbranch_scc1 {LC}")
    helper_setup(a)
    a(f"v_and_b32 v41, 3, v{vL}\nv_lshlrev_b32 v41, 9, v41\nv_lshl_add_u32 v41, v40, 3, v41")
    if_wave_eq(a, 4, lambda: poll(a, "X", sI, 8))
    keep = C.stamp; C.stamp = False; x_start(a); C.stamp = keep
    a(f"s_lshl_b32 s{T}, s{sI}, 12\ns_add_u32 s{T}, s{T}, {WS_ST2}")
    a(f"buffer_load_dwordx2 v[48:49], v41, s[{S_WS}:{S_WS+3}], s{T} offen sc1\nbuffer_load_dwordx2 v[50:51], v41, s[{S_WS}:{S_WS+3}], s{T} offen offset:2048 sc1")
    vm = VM()
    for q in range(8): vm.add(("x", q))
    vm.add("g", 2)
    helper_loop(a, 1, vm, sum(int(c) for c in C.sch2), [int(c) for c in C.hs1], LJ)
    a(f"{LC}:")
    tt, ch = T+2, T+3
    a(f"s_and_b32 s{tt}, s{sW}, 1\ns_lshr_b32 s{ch}, s{sW}, 1")
    XA = 40
    a(f"v_and_b32 v44, 31, v{vL}\ns_lshl_b32 s{T}, s{tt}, 5\nv_add_u32 v44, s{T}, v44\nv_lshlrev_b32 v38, 2, v44\nv_add_u32 v38, {TAB}, v38")
    a(f"v_bfe_u32 v45, v{vL}, 1, 3\nv_lshrrev_b32 v46, 5, v{vL}\nv_xor_b32 v45, v45, v46\nv_lshlrev_b32 v45, 4, v45\nv_lshl_add_u32 v{XA}, v44, 7, v45")
    for m in range(1, 4): a(f"v_xor_b32 v{XA+m}, {32*m}, v{XA}")
    a(f"s_lshl_b32 s{T}, s{tt}, 7\ns_add_u32 s{T}, s{T}, {TAB+256}\nv_lshlrev_b32 v37, 4, v46\nv_add_u32 v37, s{T}, v37")
    WL, WH = 44, 45
    tr_addr(a, WL, f"s{ch}", False, 46, 47)
    a(f"v_add_u32 v{WL}, {V}, v{WL}\nv_add_u32 v{WH}, {6*8192}, v{WL}")
    AK, AV, AQ = 48, 64, 80
    CS, SEL = 24, 32
    SIX = 21
    a(f"v_lshrrev_b32 v46, 4, v{vL}\nv_xor_b32 v46, v46, v{vL}\nv_and_b32 v46, 2, v46\nv_and_b32 v47, 12, v{vL}\nv_or_b32 v46, v46, v47\nv_mov_b32 v47, 0x3f803f80")
    a(f"v_cmp_eq_u32 vcc, 0, v46\ns_nop 1\nv_cndmask_b32 v{SEL}, 0, v47, vcc\nv_cmp_eq_u32 vcc, 4, v46\nv_mov_b32 v{SEL+1}, v{SEL}\ns_nop 0\nv_cndmask_b32 v{SEL+2}, 0, v47, vcc\nv_mov_b32 v{SEL+3}, v{SEL+2}")
    a(f"v_and_b32 v46, 1, v{vL}\nv_mul_u32_u24 v46, 0xaaaa, v46\nv_or_b32 v{SIX}, 0x4444, v46\nv_lshl_add_u32 v{SIX}, v{SIX}, 16, v{SIX}")
    csoff = T+8
    a(f"s_lshl_b32 s{csoff}, s2, 2\ns_add_u32 s{csoff}, s{csoff}, s{sW}\ns_lshl_b32 s{csoff}, s{csoff}, 10\ns_add_u32 s{csoff}, s{csoff}, {WS_CS}")
    for r in range(8): a(f"v_mov_b32 v{CS+r}, 0")
    def fr(buf, n):
        if buf == 0: return ("a", n)
        return ("a", 64+n) if n < 48 else ("v", 96 + n - 48)
    def R(buf, n, w):
        p, b = fr(buf, n); return f"{p}[{b}:{b+w-1}]"
    def wslot(u):
        s = qslot(u)
        return (WL, s*8192) if s < 6 else (WH, (s-6)*8192)
    def rd(s):
        buf = s & 1; out = []
        if s < 8:
            for t in range(4):
                out.append(f"ds_read_b128 {R(buf, 12*t, 4)}, v{XA+t} offset:{8192*s}")
                for seg in range(2):
                    va, off = wslot(2*s+seg)
                    for e in range(2):
                        out.append(f"ds_read_b64_tr_b16 {R(buf, 12*t+4+4*seg+2*e, 2)}, v{va} offset:{off + t*2048 + e*512}")
        else:
            for t in range(8):
                out.append(f"ds_read_b128 {R(buf, 16*(t>>1)+4*(t&1), 4)}, v{XA+(t&3)} offset:{16384*(s-8) + (t>>2)*8192}")
                va, off = wslot(2*s + (t >> 2))
                for e in range(2):
                    out.append(f"ds_read_b64_tr_b16 {R(buf, 16*(t>>1)+8+4*(t&1)+2*e, 2)}, v{va} offset:{off + (t&3)*2048 + e*512}")
        return out
    def mf(s):
        buf = s & 1; out = []
        if s < 8:
            for t in range(4):
                z = s == 0 and t == 0
                out.append(f"v_mfma_f32_32x32x16_bf16 v[{AK}:{AK+15}], {R(buf, 12*t+4, 4)}, {R(buf, 12*t, 4)}, " + ("0" if z else f"v[{AK}:{AK+15}]"))
                out.append(f"v_mfma_f32_32x32x16_bf16 v[{AV}:{AV+15}], {R(buf, 12*t, 4)}, {R(buf, 12*t+8, 4)}, " + ("0" if z else f"v[{AV}:{AV+15}]"))
        else:
            for t in range(8):
                out.append(f"v_mfma_f32_32x32x16_bf16 v[{AQ}:{AQ+15}], {R(buf, 16*(t>>1)+8+4*(t&1), 4)}, {R(buf, 16*(t>>1)+4*(t&1), 4)}, " + ("0" if s == 8 and t == 0 else f"v[{AQ}:{AQ+15}]"))
        return out
    OOL = []
    def csum(s):
        buf = s & 1
        L = a.label("Lcs"); LR = a.label("Lcr")
        a(f"s_cbranch_vccnz {L}\n{LR}:")
        o = [f"{L}:"]
        if s < 8:
            for t in range(4): o.append(f"v_smfmac_f32_16x16x64_bf16 v[{CS}:{CS+3}], v[{SEL}:{SEL+3}], {R(buf, 12*t+4, 8)}, v{SIX}")
            if s == 6: o += ["ds_write_b32 v126, v124", "ds_write_b32 v126, v125 offset:256"]
            if s == 7: o += ["s_nop 7", f"v_add_f32 v{ST4}, v{CS}, v{CS+1}", f"v_add_f32 v{ST4+1}, v{CS+2}, v{CS+3}"]
        else:
            for p in range(4): o.append(f"v_smfmac_f32_16x16x64_bf16 v[{CS+4}:{CS+7}], v[{SEL}:{SEL+3}], {R(buf, 16*p+8, 8)}, v{SIX}")
            if s == 11: o += ["s_nop 7", f"v_add_f32 v{CS+4}, v{CS+4}, v{CS+5}", f"v_add_f32 v{CS+6}, v{CS+6}, v{CS+7}", f"v_add_f32 v{ST4+2}, v{CS+4}, v{CS+6}"]
        o.append(f"s_branch {LR}")
        OOL.append("\n".join(o))
    ST4 = 16
    def inter(m, r, per):
        per = max(per, -(-len(r)//len(m)))
        for x in range(len(m)):
            a(m[x])
            for y in r[x*per:(x+1)*per]: a(y)
    a(f"s_lshl_b32 s{T+4}, s{sI}, 1\ns_add_u32 s{T+4}, s{T+4}, s{tt}")
    a(f"s_lshl_b32 s{T+5}, s{sJ}, 2\ns_lshl_b32 s{T+6}, s{ch}, 1\ns_add_u32 s{T+5}, s{T+5}, s{T+6}")
    a(f"s_lshl_b32 s{T+5}, s{T+5}, 6\ns_add_u32 s{T+5}, s{T+5}, s{T+4}")
    a(f"s_lshl_b32 s{T+4}, s{T+5}, 11\ns_add_u32 s{T+4}, s{T+4}, s{sLB}\ns_add_u32 s{T+5}, s{T+4}, 131072")
    assert WS_KV == 0
    a(f"v_and_b32 v46, 0x33, v{vL}\nv_bfe_u32 v47, v{vL}, 2, 1\nv_lshl_add_u32 v46, v47, 3, v46\nv_bfe_u32 v47, v{vL}, 3, 1\nv_lshl_add_u32 v46, v47, 2, v46\nv_lshlrev_b32 v46, 4, v46")
    a(f"v_bfe_u32 v39, v{vL}, 4, 1\nv_lshlrev_b32 v47, 17, v39\nv_lshrrev_b32 v39, 5, v{vL}\nv_lshl_add_u32 v47, v39, 8, v47\nv_and_b32 v39, 15, v{vL}\nv_lshl_add_u32 v47, v39, 4, v47")
    Lx = a.label()
    a(f"s_cmp_eq_u32 s{sL}, 0\ns_cbranch_scc1 L_p1_stats0")
    x_start(a)
    a(f"{Lx}:")
    b = Asm(); b.n = 91000
    b("L_p1_stats0:\ns_waitcnt vmcnt(0)")
    stamp(b, "p1.xarr")
    own_stats(b, 48, 116, 124, 125, 126)
    b(f"s_branch {Lx}")
    OOL.append("\n".join(b.L))
    a(f"buffer_load_dwordx4 v[{ST4}:{ST4+3}], v{vL16}, s[{S_WS}:{S_WS+3}], s{csoff} offen sc1")
    a("s_waitcnt vmcnt(8)\ns_barrier")
    stamp(a, "p1.b0")
    for x in rd(0): a(x)
    P, RB, MU, RR = 112, 128, 36, 39
    def aug_w(seg, d):
        return [f"v_cvt_pk_bf16_f32 v{d}, v{ST4+seg}, v{ST4+seg}", f"v_and_b32 v{d+1}, 0xffff0000, v{d}", f"v_sub_f32 v{d+1}, v{ST4+seg}, v{d+1}", f"v_cvt_pk_bf16_f32 v{d+1}, v{d+1}, v{d+1}"]
    XM = 22
    a(f"s_cmp_eq_u32 s{sL}, 0\ns_cselect_b64 vcc, -1, 0")
    def waitbar(s):
        vmw = f"vmcnt({7-s}) " if s < 7 else ("vmcnt(0) " if s == 7 or (s == 10 and not C.pub12) else "")
        a(f"s_waitcnt {vmw}lgkmcnt(0)\ns_barrier")
        stamp(a, f"zq.{s+1:02d}")
    waitbar(0)
    for s in range(12):
        m = mf(s)
        r = rd(s+1) if s < 11 else []
        csum(s)
        if s == 7:
            tab = [f"ds_read_b32 v{MU}, v38", f"ds_read_b32 v{RR}, v38 offset:256"] + [f"ds_read_b128 v[{RB+4*k}:{RB+4*k+3}], v37 offset:{32*k}" for k in range(4)]
            mk = m[0::2]; mv = m[1::2]
            aw = aug_w(0, 24) + aug_w(1, 26)
            xm = [f"v_sub_f32 v{MU}, 0, v{MU}", f"v_cvt_pk_bf16_f32 v{XM}, v{MU}, v{MU}", f"v_and_b32 v{XM+1}, 0xffff0000, v{XM}", f"v_sub_f32 v{XM+1}, v{MU}, v{XM+1}", f"v_cvt_pk_bf16_f32 v{XM}, v{MU}, v{XM+1}", f"v_mov_b32 v{XM+1}, v{XM}"]
            a(mk[0]); [a(x) for x in tab]
            a(mk[1]); [a(x) for x in aw[:4] + r[:3]]
            a(mk[2]); [a(x) for x in aw[4:] + r[3:6]]
            a(mk[3]); a("s_waitcnt lgkmcnt(10)"); [a(x) for x in xm]
            a(mv[0]); [a(x) for x in r[6:9]]
            a(f"v_mfma_f32_32x32x8_bf16 v[{AK}:{AK+15}], v[24:25], v[{XM}:{XM+1}], v[{AK}:{AK+15}]"); [a(x) for x in r[9:14]]
            a(mv[1]); [a(x) for x in r[14:19]]
            a(mv[2]); [a(x) for x in r[19:24]]
            a(mv[3])
            for k in range(10): a(f"v_mul_f32 v{AK+k}, v{AK+k}, v{RR}")
            a(f"v_mfma_f32_32x32x8_bf16 v[{AV}:{AV+15}], v[{XM}:{XM+1}], v[26:27], v[{AV}:{AV+15}]")
            for k in range(10, 16): a(f"v_mul_f32 v{AK+k}, v{AK+k}, v{RR}")
            for k in range(8): a(f"v_cvt_pk_bf16_f32 v{P+k}, v{AK+2*k}, v{AK+2*k+1}")
            a(f"buffer_store_dwordx4 v[{P}:{P+3}], v46, s[{S_WS}:{S_WS+3}], s{T+4} offen sc1")
            a(f"buffer_store_dwordx4 v[{P+4}:{P+7}], v46, s[{S_WS}:{S_WS+3}], s{T+5} offen sc1")
            a("s_waitcnt lgkmcnt(15)")
            for k in range(16): a(f"v_mul_f32 v{AV+k}, v{AV+k}, v{RB+k}")
            for k in range(8): a(f"v_cvt_pk_bf16_f32 v{P+8+k}, v{AV+2*k}, v{AV+2*k+1}")
            a(f"buffer_store_dwordx4 v[{P+8}:{P+11}], v47, s[{S_WS}:{S_WS+3}], s{T+4} offen offset:1024 sc1")
            a(f"buffer_store_dwordx4 v[{P+12}:{P+15}], v47, s[{S_WS}:{S_WS+3}], s{T+4} offen offset:1536 sc1")
            stamp(a, "p1.kvst")
            waitbar(8)
        elif s < 11:
            e = C.early
            per = -(-len(r)//min(e, 5))
            for x in range(8):
                a(m[x])
                for y in r[x*per:(x+1)*per]: a(y)
                if x == e: waitbar(s+1) if s < 10 else a("s_waitcnt vmcnt(0) lgkmcnt(0)\ns_barrier")
        else:
            aw = aug_w(2, 24)
            a(m[0])
            a(f"s_lshl_b32 s{T+6}, s{ch}, 12\ns_lshl_b32 s{T+7}, s{tt}, 10\ns_add_u32 s{T+6}, s{T+6}, s{T+7}\ns_add_u32 s{T+6}, s{T+6}, {QX}\nv_add_u32 v46, s{T+6}, v{vL16}")
            a(m[1]); [a(x) for x in aw]
            a(f"v_mul_f32 v{RR}, {f2u(0.25*1.4426950408889634)}, v{RR}")
            for x in m[2:]: a(x)
    stamp(a, "p1.mfma")
    a("s_nop 9")
    a(f"v_mfma_f32_32x32x8_bf16 v[{AQ}:{AQ+15}], v[24:25], v[{XM}:{XM+1}], v[{AQ}:{AQ+15}]")
    a(f"buffer_store_dwordx4 v[{ST4}:{ST4+3}], v{vL16}, s[{S_WS}:{S_WS+3}], s{csoff} offen sc1")
    a("s_nop 10")
    for r in range(16): a(f"v_mul_f32 v{AQ+r}, v{AQ+r}, v{RR}")
    for r in range(8): a(f"v_cvt_pk_bf16_f32 v{P+r}, v{AQ+2*r}, v{AQ+2*r+1}")
    a(f"ds_write_b128 v46, v[{P}:{P+3}]\nds_write_b128 v46, v[{P+4}:{P+7}] offset:2048")
    a(f"{LJ}:")
    return OOL

hh, kh, head, kvs, w1s, w1c, wos, tch, ring, kro, kfa = T+2, T+3, T+4, T+5, T+6, T+7, T+8, T+9, T+10, T+11, T+12
TD, VA_, IDX, TA, vF1, vWO, SGA, Q, S, O, KR, VR = 16, 18, 19, 20, 21, 22, 23, 24, [32, 48], [80, 64], 96, 112
ost, osrc, cgive, ctake = 88, 90, 92, 93
CST = E + 33792
CMB = E + 37888

def wo_reads():
    o = []
    for t in range(8):
        for y in range(2):
            b = 80 + 8*t + 4*y
            o += [f"ds_read_b64_tr_b16 v[{b}:{b+1}], v{20+2*y} offset:{t*2048}", f"ds_read_b64_tr_b16 v[{b+2}:{b+3}], v{20+2*y} offset:{t*2048+1024}"]
    return o

def phase2(a):
    t0, t1 = S[0], S[0]+1
    a(f"s_and_b32 s{hh}, s{sW}, 3\ns_lshr_b32 s{kh}, s{sW}, 2\ns_lshl_b32 s{head}, s{sJ}, 2\ns_add_u32 s{head}, s{head}, s{hh}")
    a(f"s_lshl_b32 s{kvs}, s{head}, 17\ns_lshl_b32 s{T}, s{kh}, 11\ns_add_u32 s{kvs}, s{kvs}, s{T}\ns_add_u32 s{kvs}, s{kvs}, s{sLB}")
    a(f"s_lshr_b32 s{kro}, s{sI}, 2\ns_lshl_b32 s{kro}, s{kro}, 14")
    a(f"s_lshl_b32 s{ring}, s{sW}, 12")
    Lk = a.label()
    a(f"s_cmp_lt_u32 s{sW}, 4\ns_cbranch_scc1 {Lk}")
    a(f"v_and_b32 v{t0}, 3, v{vL}\nv_cmp_eq_u32 vcc, 1, v{t0}\nv_mov_b32 v{t1}, 0x3f803f80\ns_nop 0\nv_cndmask_b32 v{t0+4}, 0, v{t1}, vcc")
    a(f"v_mov_b32 v{t0+5}, v{t0+4}\nv_mov_b32 v{t0+6}, v{t0+4}\nv_mov_b32 v{t0+7}, v{t0+4}")
    a(f"s_lshl_b32 s{T}, s{sW}, 10\ns_add_u32 s{T}, s{T}, {CST - 4096}\nv_add_u32 v{t0}, s{T}, v{vL16}\nds_write_b128 v{t0}, v[{t0+4}:{t0+7}]")
    if C.lf: if_wave_eq(a, 5, lambda: kl_poll(a))
    else: if_wave_eq(a, 5, lambda: poll(a, "KV", sJ, 32))
    a(f"{Lk}:")
    def post_setup():
        a(f"v_lshrrev_b32 v{t0}, 5, v{vL}\nv_lshlrev_b32 v{VA_}, 8, v{t0}\nv_and_b32 v{t0}, 15, v{vL}\nv_lshl_add_u32 v{VA_}, v{t0}, 4, v{VA_}\nv_add_u32 v{VA_}, s{ring}, v{VA_}\nv_add_u32 v{VA_}, 1024, v{VA_}")
        a(f"v_add_u32 v{t1}, 4, v{t0}\nv_and_b32 v{t1}, 8, v{t1}\nv_lshlrev_b32 v{t1}, 3, v{t1}\nv_add_u32 v{t1}, {CST}, v{t1}")
        a(f"v_and_b32 v{t0}, 11, v{vL}\nv_cmp_eq_u32 vcc, 0, v{t0}\nv_add_u32 v{t0}, 16, v{t1}\ns_nop 0\nv_cndmask_b32 v{t1}, v{t1}, v{t0}, vcc")
        a(f"v_and_b32 v{t0}, 16, v{vL}\nv_cmp_eq_u32 vcc, 0, v{t0}\ns_nop 1\nv_cndmask_b32 v{VA_}, v{t1}, v{VA_}, vcc")
        a(f"v_mov_b32 v{IDX}, 0xdddddddd")
        for r in range(32): a(f"v_mov_b32 v{64+r}, 0")
        if C.now1: a(f"s_mov_b32 s{S_W1+2}, 0")
        a(f"s_cmp_lg_u32 s{sL}, 0\ns_cselect_b32 s{S_QKV+2}, 0, s{S_QKV+2}")
        a(f"s_lshr_b32 s{w1s}, s{sW}, 1\ns_mul_i32 s{w1s}, s{w1s}, {512*3584}\ns_lshl_b32 s{T}, s{sI}, 7\ns_add_u32 s{w1s}, s{w1s}, s{T}")
        a(f"s_and_b32 s{T+1}, s{sW}, 1\ns_lshl_b32 s{T+1}, s{T+1}, 6\ns_add_u32 s{w1s}, s{w1s}, s{T+1}\ns_sub_u32 s{w1s}, s{w1s}, {16*3584}")
        if C.tmix:
            a(f"s_lshl_b32 s{tch}, s{sJ}, 2\ns_and_b32 s{T+1}, s{sI}, 3\ns_add_u32 s{tch}, s{tch}, s{T+1}\ns_lshl_b32 s{tch}, s{tch}, 3\ns_add_u32 s{tch}, s{tch}, s{sW}\ns_mul_i32 s{tch}, s{tch}, {7*4096}")
            a(f"s_lshr_b32 s{T+1}, s{sI}, 2\ns_lshl_b32 s{T+1}, s{T+1}, 9\ns_add_u32 s{tch}, s{tch}, s{T+1}")
            a(f"v_lshrrev_b32 v{TA}, 2, v{vL}\nv_lshlrev_b32 v{TA}, 12, v{TA}\nv_and_b32 v{t1}, 3, v{vL}\nv_lshl_add_u32 v{TA}, v{t1}, 7, v{TA}")
        else:
            a(f"s_lshl_b32 s{tch}, s{sJ}, 3\ns_add_u32 s{tch}, s{tch}, s{sW}\ns_mul_i32 s{tch}, s{tch}, {28*4096}\ns_add_u32 s{tch}, s{tch}, s{T}")
            a(f"v_lshlrev_b32 v{TA}, 12, v{vL}")
        a(f"v_cmp_gt_u32 vcc, 28, v{vL}\nv_mov_b32 v{t1}, 0x40000000\ns_nop 0\nv_cndmask_b32 v{TA}, v{t1}, v{TA}, vcc")
        a(f"s_lshl_b32 s{wos}, s{sW}, 13\ns_lshl_b32 s{T}, s{sJ}, 7\ns_add_u32 s{wos}, s{wos}, s{T}")
        a(f"s_lshl_b32 s{T}, s{hh}, 11\ns_add_u32 s{T}, s{T}, {QX}\nv_add_u32 v{t1}, s{T}, v{vL16}\nv_subrev_u32 v{SGA}, {SVO}, v{vTRF}")
        a(f"v_lshrrev_b32 v{t0+2}, 2, v{vL}\nv_and_b32 v{t0+3}, 3, v{vL}\nv_lshlrev_b32 v{t0+3}, 4, v{t0+3}\nv_mul_u32_u24 v{vF1}, 3584, v{t0+2}\nv_add_u32 v{vF1}, v{vF1}, v{t0+3}")
        a(f"v_lshrrev_b32 v{t0+2}, 3, v{vL}\nv_lshlrev_b32 v{t0+2}, 11, v{t0+2}\nv_sub_u32 v{vWO}, v{vWQ}, v{t0+2}")
        if C.lf: flag_addr(a, "KV", kfa)
    a("s_waitcnt lgkmcnt(0)\ns_barrier")
    stamp(a, "p2.start")
    vm = VM()
    kcur = T+13
    assert C.lfi < C.lfc
    GP = 128
    def kv_issue(t):
        k = KR + 4*(t & 3)
        if t % 4 == 0: a(f"s_add_u32 s{kcur}, s{kvs}, s{kro}\ns_add_u32 s{kro}, s{kro}, 16384\ns_and_b32 s{kro}, s{kro}, 0x1ffff")
        else: a(f"s_addk_i32 s{kcur}, 4096")
        a(f"s_add_u32 m0, s{ring}, {(t & 3)*1024}")
        a(f"buffer_load_dwordx4 v[{k}:{k+3}], v{vL16}, s[{S_WS}:{S_WS+3}], s{kcur} offen sc1{' nt' if C.ntkv else ''}")
        a(f"buffer_load_dwordx4 v{vL16}, s[{S_WS}:{S_WS+3}], s{kcur} offen offset:1024 sc1{' nt' if C.ntkv else ''} lds")
        vm.add(("kv", t), 2)
    def v_read(t):
        v = VR + 8*(t & 1)
        a(f"ds_read_b128 v[{v}:{v+3}], v{VA_} offset:{(t & 3)*1024}\nds_read_b128 v[{v+4}:{v+7}], v{VA_} offset:{(t & 3)*1024 + 512}")
    def w1_issue(f):
        if f % 4 == 0:
            a(f"s_and_b32 s{w1c}, s{sJ}, {C.jrot}\ns_add_u32 s{w1c}, s{w1c}, {f//4}\ns_and_b32 s{w1c}, s{w1c}, 7\ns_mul_i32 s{w1c}, s{w1c}, {64*3584}\ns_add_u32 s{w1c}, s{w1c}, s{w1s}")
        a(f"s_add_u32 m0, s{sVW}, {STG - V + (f & 3)*8192}\ns_add_u32 s{w1c}, s{w1c}, {16*3584}")
        a(f"buffer_load_dwordx4 v{vF1}, s[{S_W1}:{S_W1+3}], s{w1c} offen{' nt' if C.w1nt else ''} lds")
        vm.add(("w1", f))
    def wo_issue(u):
        a(f"s_add_u32 m0, s{sVW}, {SVO + u*8192}\ns_add_u32 s{T}, s{wos}, {u*65536}")
        a(f"buffer_load_dwordx4 v{vWO}, s[{S_WO}:{S_WO+3}], s{T} offen lds")
        vm.add(("wo", u))
    def touch(n):
        a(f"s_cmp_eq_u32 s{sJ}, {n}\ns_cselect_b32 s{T}, s{tch}, 0x40000000")
        a(f"buffer_load_dword v{TD}, v{TA}, s[{S_W2}:{S_W2+3}], s{T} offen")
        vm.add(("t", n))
    def ex(s, r0, r1):
        for r in range(r0, r1): a(f"v_exp_f32 v{s+r}, v{s+r}")
    def setprio(p):
        L = a.label()
        a(f"s_cmp_lg_u32 s{kh}, 0\ns_cbranch_scc1 {L}\ns_setprio {p}\n{L}:")
    def qk(q, t): a(f"v_mfma_f32_32x32x16_bf16 v[{S[q]}:{S[q]+15}], v[{KR+4*(t&3)}:{KR+4*(t&3)+3}], v[{Q+4*q}:{Q+4*q+3}], 0")
    def pv(q, t, h): a(f"v_smfmac_f32_32x32x32_bf16 v[{O[q]}:{O[q]+15}], v[{VR+8*(t&1)+4*h}:{VR+8*(t&1)+4*h+3}], v[{S[q]+8*h}:{S[q]+8*h+7}], v{IDX}")
    kv_issue(0); kv_issue(1)
    post_setup()
    a(f"s_lshl_b32 s{T}, s{kh}, 10\nv_add_u32 v{t1}, s{T}, v{t1}\nv_xor_b32 v{t0}, 1024, v{t1}")
    a(f"ds_read_b128 v[{Q}:{Q+3}], v{t0}\nds_read_b128 v[{Q+4}:{Q+7}], v{t1}")
    a(f"s_lshl_b32 s{ost}, s{sI}, 1\ns_add_u32 s{ost}, s{ost}, s{kh}\ns_lshl_b32 s{ost}, s{ost}, 5\ns_add_u32 s{ost}, s{ost}, s{head}\ns_lshl_b32 s{ost}, s{ost}, 10")
    a(f"s_add_u32 s{ost}, s{ost}, {WS_O}\ns_add_u32 s{ost}, s{ost}, s{sLB}")
    a(f"s_and_b32 s{osrc}, s{sW}, 1\ns_lshl_b32 s{osrc}, s{osrc}, 15\ns_lshr_b32 s{T}, s{sW}, 1\ns_lshl_b32 s{T}, s{T}, 13\ns_add_u32 s{osrc}, s{osrc}, s{T}")
    a(f"s_lshl_b32 s{T}, s{sI}, 16\ns_add_u32 s{osrc}, s{osrc}, s{T}\ns_add_u32 s{osrc}, s{osrc}, {WS_O}\ns_add_u32 s{osrc}, s{osrc}, s{sLB}\ns_add_u32 s{osrc+1}, s{osrc}, 4096")
    a(f"s_mul_i32 s{cgive}, s{sW}, 3072\ns_add_u32 s{cgive}, s{cgive}, {CMB}\ns_xor_b32 s{ctake}, s{sW}, 4\ns_mul_i32 s{ctake}, s{ctake}, 3072\ns_add_u32 s{ctake}, s{ctake}, {CMB}")
    tr_addr(a, 131, "0", True, 132, 133)
    a(f"s_lshr_b32 s{T}, s{sW}, 1\ns_lshl_b32 s{T}, s{T}, 14\ns_add_u32 s{T}, s{T}, {V+SVO}\nv_add_u32 v131, s{T}, v131")
    if C.prio: a("s_setprio 1")
    a(f"s_waitcnt vmcnt(2) lgkmcnt(0)")
    qk(0, 0)
    v_read(0)
    kv_issue(2); kv_issue(3)
    a(f"s_lshr_b32 s{T}, s{sI}, 2\ns_lshl_b32 s{T}, s{T}, 9\ns_add_u32 s{T}, s{T}, {WS_XT}\nv_and_b32 v17, 0x1f0, v{vL16}")
    a(f"buffer_load_dword v17, v17, s[{S_WS}:{S_WS+3}], s{T} offen sc1"); vm.add("xt")
    if C.c3:
        a(f"s_lshr_b32 s{T}, s2, 3\ns_lshl_b32 s{T}, s{T}, 3\ns_add_u32 s{T}, s{T}, s{sW}\ns_lshl_b32 s{T+1}, s{T}, 11\ns_add_u32 s{T+1}, s{T+1}, 384")
        a(f"v_min_u32 v{GP+1}, 1, v{vL}\nv_lshlrev_b32 v{GP+1}, 10, v{GP+1}\nbuffer_load_dword v{GP+1}, v{GP+1}, s[{S_WO}:{S_WO+3}], s{T+1} offen")
        a(f"s_mul_i32 s{T}, s{T}, {8*3584}\ns_or_b32 s{T+1}, s{sI}, 3\ns_lshl_b32 s{T+1}, s{T+1}, 7\ns_add_u32 s{T}, s{T}, s{T+1}")
        a(f"v_min_u32 v{GP+2}, 7, v{vL}\nv_mul_u32_u24 v{GP+2}, 3584, v{GP+2}\nbuffer_load_dword v{GP+2}, v{GP+2}, s[{S_W1}:{S_W1+3}], s{T} offen")
        vm.add("c3", 2)
    stamp(a, "p2.kv0")
    a("s_nop 1")
    per = C.pper; low = C.plow
    for t in range(32):
        for q in range(2):
            hidx = 2*t + q
            if C.prio and hidx % per == 0: setprio(2)
            if C.prio and hidx % per == per - low: setprio(0)
            ex(S[q], 0, 2)
            if q == 0:
                if t > 0: pv(1, t-1, 1)
            else: pv(0, t, 1)
            ex(S[q], 2, 5)
            if q == 0:
                qk(1, t)
                need = [("kv", t+1)] if t < 31 else []
                if not C.nox and 3 <= t < 31: need.append(("w1", t-3))
                if C.lf and t == C.lfc: need.append("gp")
                a(f"s_waitcnt vmcnt({vm.need(*need) if need else 63}) lgkmcnt(0)")
                if C.lf and t == C.lfi: apoll_issue(a, kfa, GP); vm.add("gp")
                if C.lf and t == C.lfc:
                    apoll_check(a, kfa, GP, 32)
                    for k in range(4, t+4): kv_issue(k)
                if t+4 < 32 and not (C.lf and t < C.lfc): kv_issue(t+4)
                if t+1 < 32: v_read(t+1)
                if not C.nox and not C.split:
                    w1_issue(t)
                    if 3 <= t < 31:
                        for x in frag_reads(f"a{4*(t-3)}", SGA, ((t-3) & 3)*8192): a(x)
            else:
                if t < 31: qk(0, t+1)
                if not C.nox:
                    if C.split:
                        w1_issue(t)
                        if 3 <= t < 31:
                            for x in frag_reads(f"a{4*(t-3)}", SGA, ((t-3) & 3)*8192): a(x)
                    if t == C.prett and C.preto:
                        a(f"buffer_load_dword v{TD}, v{vL16}, s[{S_WS}:{S_WS+3}], s{ost} offen sc1")
                        vm.add("pre")
                    if t % 3 == 1 and t < 24: wo_issue(t//3)
                    if t == 8: a(f"v_readfirstlane_b32 s{T}, v17\ns_nop 1\nv_cmp_ne_u32 vcc, s{T}, v17\ns_nop 1\ns_cmp_eq_u64 vcc, 0\ns_cselect_b32 s{sLOC}, 1, 0")
                    if t % 4 == 3 and C.stouch == 1: touch(t//4)
                    if t % 3 == 2 and t < 24 and C.stouch == 2: touch(t//3)
                    if t == C.t2:
                        a(f"buffer_load_dword v{TD}, v{TA}, s[{S_W2}:{S_W2+3}], s{tch} offen{' nt' if C.w2nt else ''}"); vm.add("t2")
            ex(S[q], 5, 11)
            pv(q, t, 0)
            if t == 31 and q == 1:
                a(f"s_mov_b32 m0, s{cgive}\nv_mov_b32 v20, v131\nv_xor_b32 v22, 64, v131")
                for r in range(9): a(f"ds_write_addtid_b32 v{O[0]+r} offset:{256*r}")
            ex(S[q], 11, 16)
    a("s_nop 1")
    pv(1, 31, 1)
    if C.prio: a("s_setprio 0")
    stamp(a, "p2.loop")
    M, N = O[1], 36
    assert vm.need(("wo", 7)) >= vm.need(("kv", 31))
    a(f"s_mov_b32 m0, s{ctake}\ns_waitcnt lgkmcnt(0)\ns_barrier")
    stamp(a, "zc.cmb")
    for r in range(9): a(f"ds_read_addtid_b32 v{N+r} offset:{256*r}")
    wr_ = wo_reads()
    for x in wr_[:6]: a(x)
    a("s_waitcnt lgkmcnt(6)")
    for r in range(9): a(f"v_add_f32 v{M+r}, v{M+r}, v{N+r}")
    for x in wr_[6:C.wo1]: a(x)
    a(f"v_add_f32 v{N}, abs(v{M}), abs(v{M+1})\nv_add_f32 v{N+1}, abs(v{M+2}), abs(v{M+3})\nv_add_f32 v{N+2}, abs(v{M+4}), abs(v{M+5})\nv_add_f32 v{N+3}, abs(v{M+6}), abs(v{M+7})")
    a(f"v_add_f32 v{N}, v{N}, v{N+1}\nv_add_f32 v{N+2}, v{N+2}, v{N+3}\nv_cmp_nge_f32 vcc, {f2u(2.0**60)}, v{M+8}\nv_add_f32 v{N}, v{N}, v{N+2}")
    a(f"s_mov_b64 s[{T+12}:{T+13}], vcc\nv_cmp_nle_f32 vcc, {f2u(2.0**-60)}, v{M+8}\ns_nop 0\ns_or_b64 s[{T+12}:{T+13}], s[{T+12}:{T+13}], vcc")
    a(f"v_cmp_ngt_f32 vcc, 0x7f800000, v{N}\ns_nop 0\ns_or_b64 s[{T+12}:{T+13}], s[{T+12}:{T+13}], vcc\ns_cbranch_scc1 L_softmax_safe\nL_softmax_done:")
    a(f"v_rcp_f32 v{M+8}, v{M+8}\ns_nop 0")
    for r in range(8): a(f"v_mul_f32 v{M+r}, v{M+r}, v{M+8}")
    for r in range(4): a(f"v_cvt_pk_bf16_f32 v{N+r}, v{M+2*r}, v{M+1+2*r}")
    if C.sent:
        for r in range(4): a(f"v_min_u32 v{N+r}, -2, v{N+r}")
    rstore(a, f"buffer_store_dwordx4 v[{N}:{N+3}], v{vL16}, s[{S_WS}:{S_WS+3}], s{ost} offen", bulk=not C.ldo)
    for x in wr_[C.wo1:]: a(x)

def softmax_safe(a):
    M = O[1]
    QF, KF, VF, SS, CC, OO, MX, VO = Q+4, 104, 108, 48, 80, 120, 116, 117
    base, cur, n = T+12, T+13, T+14
    a("L_softmax_safe:")
    a("s_waitcnt lgkmcnt(0)")
    a(f"s_lshl_b32 s{base}, s{head}, 17\ns_add_u32 s{base}, s{base}, s{sLB}")
    a(f"v_mov_b32 v{MX}, 0xff800000\ns_mov_b32 s{cur}, s{base}\ns_mov_b32 s{n}, 64")
    L1 = a.label()
    a(f"{L1}:")
    a(f"buffer_load_dwordx4 v[{KF}:{KF+3}], v{vL16}, s[{S_WS}:{S_WS+3}], s{cur} offen sc1\ns_waitcnt vmcnt(0)")
    a(f"v_mfma_f32_32x32x16_bf16 v[{SS}:{SS+15}], v[{KF}:{KF+3}], v[{QF}:{QF+3}], 0\ns_nop 15")
    for r in range(0, 16, 2): a(f"v_max3_f32 v{MX}, v{MX}, v{SS+r}, v{SS+r+1}")
    a(f"s_add_u32 s{cur}, s{cur}, 2048\ns_sub_u32 s{n}, s{n}, 1\ns_cmp_lg_u32 s{n}, 0\ns_cbranch_scc1 {L1}")
    a(f"v_mov_b32 v{VO}, v{MX}\ns_nop 1\nv_permlane32_swap_b32 v{MX}, v{VO}\ns_nop 1\nv_max_f32 v{MX}, v{MX}, v{VO}")
    for r in range(16): a(f"v_sub_f32 v{CC+r}, 0, v{MX}\nv_mov_b32 v{OO+r}, 0")
    for r in range(8): a(f"v_mov_b32 v{VF+r}, 0x3f803f80")
    a(f"v_lshrrev_b32 v{MX}, 5, v{vL}\nv_lshlrev_b32 v{VO}, 8, v{MX}\nv_and_b32 v{MX}, 15, v{vL}\nv_lshl_add_u32 v{VO}, v{MX}, 4, v{VO}")
    a(f"s_mov_b32 s{cur}, s{base}\ns_mov_b32 s{n}, 64")
    L2 = a.label()
    a(f"{L2}:")
    a(f"buffer_load_dwordx4 v[{KF}:{KF+3}], v{vL16}, s[{S_WS}:{S_WS+3}], s{cur} offen sc1")
    a("s_mov_b32 exec_lo, 0xffff\ns_mov_b32 exec_hi, 0xffff")
    a(f"buffer_load_dwordx4 v[{VF}:{VF+3}], v{VO}, s[{S_WS}:{S_WS+3}], s{cur} offen offset:1024 sc1")
    a(f"buffer_load_dwordx4 v[{VF+4}:{VF+7}], v{VO}, s[{S_WS}:{S_WS+3}], s{cur} offen offset:1536 sc1")
    a("s_mov_b64 exec, -1\ns_waitcnt vmcnt(0)")
    a(f"v_mfma_f32_32x32x16_bf16 v[{SS}:{SS+15}], v[{KF}:{KF+3}], v[{QF}:{QF+3}], v[{CC}:{CC+15}]\ns_nop 15")
    for r in range(16): a(f"v_exp_f32 v{SS+r}, v{SS+r}")
    a("s_nop 1")
    a(f"v_smfmac_f32_32x32x32_bf16 v[{OO}:{OO+15}], v[{VF}:{VF+3}], v[{SS}:{SS+7}], v{IDX}")
    a(f"v_smfmac_f32_32x32x32_bf16 v[{OO}:{OO+15}], v[{VF+4}:{VF+7}], v[{SS+8}:{SS+15}], v{IDX}\ns_nop 15")
    a(f"s_add_u32 s{cur}, s{cur}, 2048\ns_sub_u32 s{n}, s{n}, 1\ns_cmp_lg_u32 s{n}, 0\ns_cbranch_scc1 {L2}")
    for r in range(9): a(f"v_mov_b32 v{M+r}, v{OO+r}")
    for x in wo_reads()[:C.wo1]: a(x)
    a("s_branch L_softmax_done")

EOFF = 61692
def ep2_writes(acc, base, sw4k):
    off = EOFF if base >= EOFF else 0
    o = [f"ds_write_addtid_b32 v{acc+r} offset:{off + r*256}" for r in range(16)]
    o[0] = f"s_add_u32 m0, s{sw4k}, {base - off}\ns_nop 0\n" + o[0]
    return o

def ep2_read_addr(a, ra, base0, base1, sw4k, tv):
    a(f"s_and_b32 s{T}, s{sW}, 1\ns_lshl_b32 s{T}, s{T}, 2\ns_lshr_b32 s{T+1}, s{sW}, 1\ns_add_u32 s{T}, s{T}, s{T+1}\ns_lshl_b32 s{sw4k}, s{T}, 12")
    a(f"s_lshr_b32 s{T}, s{sW}, 2\ns_lshl_b32 s{T}, s{T}, 14\ns_and_b32 s{T+1}, s{sW}, 3\ns_lshl_b32 s{T+1}, s{T+1}, 10\ns_add_u32 s{T}, s{T}, s{T+1}\ns_add_u32 s{T}, s{T}, {base0}")
    a(f"v_and_b32 v{tv}, 3, v{vN}\nv_lshlrev_b32 v{ra}, 8, v{tv}\nv_bfe_u32 v{tv}, v{vN}, 2, 1\nv_lshl_add_u32 v{ra}, v{tv}, 7, v{ra}\nv_and_b32 v{tv}, 3, v{vC}\nv_lshl_add_u32 v{ra}, v{tv}, 5, v{ra}")
    a(f"v_add_u32 v{ra}, s{T}, v{ra}\nv_lshrrev_b32 v{tv}, 2, v{vC}\nv_mul_i32_i24 v{tv}, {base1 - base0}, v{tv}\nv_add_u32 v{ra}, v{ra}, v{tv}")

def ep2_sum(a, ra, add0, out):
    for k in range(4):
        a(f"ds_read_b128 v[{out+8*k}:{out+8*k+3}], v{ra} offset:{4096*k}\nds_read_b128 v[{out+8*k+4}:{out+8*k+7}], v{ra} offset:{4096*k+16}")
    a("s_waitcnt lgkmcnt(6)")
    for e in range(8): a(f"v_add_f32 v{out+e}, v{out+e}, v{add0+e}")
    a("s_waitcnt lgkmcnt(2)")
    for e in range(8): a(f"v_add_f32 v{out+8+e}, v{out+8+e}, v{out+16+e}")
    for e in range(8): a(f"v_add_f32 v{out+e}, v{out+e}, v{out+8+e}")
    a("s_waitcnt lgkmcnt(0)")
    for e in range(8): a(f"v_add_f32 v{out+e}, v{out+e}, v{out+24+e}")

def unpack8(a, dst, src):
    for e in range(4): a(f"v_lshlrev_b32 v{dst+2*e}, 16, v{src+e}\nv_and_b32 v{dst+1+2*e}, 0xffff0000, v{src+e}")

def phase3(a):
    stamp(a, "zc.ost")
    OF, ACC, WF = 16, 48, 80
    src = osrc
    n3 = [int(c) for c in C.sch3]; assert n3[0] == 4 and sum(n3) == 12
    spin = T+6
    if not C.sent:
        a("s_waitcnt vmcnt(0) lgkmcnt(0)\ns_barrier")
        stamp(a, "p2.end")
        if_wave_eq(a, 0, lambda: publish(a, "O", sI))
        for f in range(n3[0]): w2_dma(a, f)
        if_wave_eq(a, 0, lambda: poll(a, "O", sI, 8))
        a("s_barrier")
        stamp(a, "proj.polled")
    else:
        a(f"s_mov_b32 s{spin}, {SPIN}\ns_waitcnt {'vmcnt(0) ' if C.sentwait == 1 else ''}lgkmcnt(0)\ns_barrier")
        stamp(a, "p2.end")
    LT = a.label()
    a(f"{LT}:")
    for t in range(8):
        if C.lprio and t % 2 == 0: a(f"s_setprio {3 - t//2}")
        a(f"buffer_load_dwordx4 v[{OF+4*t}:{OF+4*t+3}], v{vL16}, s[{S_WS}:{S_WS+3}], s{src + (t >> 2)} offen offset:{(t & 3)*1024} sc1")
    for t in range(8):
        a(f"s_waitcnt vmcnt({7-t})")
        for y in range(2):
            c = "0" if t == 0 else f"v[{ACC+16*y}:{ACC+16*y+15}]"
            a(f"v_mfma_f32_32x32x16_bf16 v[{ACC+16*y}:{ACC+16*y+15}], v[{OF+4*t}:{OF+4*t+3}], v[{WF+8*t+4*y}:{WF+8*t+4*y+3}], {c}")
            if C.sent:
                o = OF + 4*t + 2*y
                a(f"v_max_u32 v0, v{o}, v{o+1}" if t == 0 and y == 0 else f"v_max3_u32 v0, v0, v{o}, v{o+1}")
    if C.sent:
        a(f"v_cmp_eq_u32 vcc, -1, v0\ns_sub_u32 s{spin}, s{spin}, 1\ns_cselect_b64 vcc, 0, vcc\ns_cbranch_vccnz {LT}")
    ep2_read_addr(a, 88, V+SVO, E+16, T+4, 80)
    stamp(a, "proj.loop")
    OUT = 104
    for x in ep2_writes(ACC, V+SVO, T+4) + ep2_writes(ACC+16, E+16, T+4): a(x)
    unpack8(a, 96, vRES)
    if C.sent:
        for f in range(n3[0]): w2_dma(a, f)
    a("s_waitcnt lgkmcnt(0)\ns_barrier")
    stamp(a, "zc.epb")
    ep2_sum(a, 88, 96, OUT)
    for e in range(4): a(f"v_cvt_pk_bf16_f32 v{vRES+e}, v{OUT+2*e}, v{OUT+1+2*e}")
    a("v_mov_b32 v64, 0\nv_mov_b32 v65, 0\nv_mov_b32 v66, 1\nv_mov_b32 v67, 1\nv_mov_b32 v68, 0x3f803f80")
    for e in range(4): a(f"v_dot2c_f32_bf16 v64, v{vRES+e}, v68\nv_dot2c_f32_bf16 v65, v{vRES+e}, v{vRES+e}")
    a(f"s_lshl_b32 s{T}, s{sI}, 13\ns_add_u32 s{T}, s{T}, {WS_ST}\ns_add_u32 s{T}, s{T}, s{sLB}\ns_lshl_b32 s{T+1}, s{sJ}, 10\ns_add_u32 s{T+1}, s{T+1}, s{T}")
    a(f"v_lshlrev_b32 v56, 4, v{vN}\nv_lshl_add_u32 v57, v{vC}, 10, v56")
    dpp_red8(a, [64, 65])
    a(f"v_cmp_eq_u32 vcc, 0, v{vC}\ns_and_saveexec_b64 s[{T+2}:{T+3}], vcc")
    rstore(a, f"buffer_store_dwordx4 v[64:67], v56, s[{S_WS}:{S_WS+3}], s{T+1} offen")
    a(f"s_mov_b64 exec, s[{T+2}:{T+3}]")
    stamp(a, "proj.st")
    a(f"v_subrev_u32 v59, {SVO}, v{vTRF}")
    for c in range(4):
        for x in frag_reads(f"v{W1T+4*c}", 59, c*8192): a(x)
    if not C.sent:
        for f in range(4):
            for x in w2_reads(f): a(x)
    unpack8(a, 80, vRES)
    a(f"v_lshrrev_b32 v58, 2, v{vC}\nv_lshlrev_b32 v58, 17, v58\nv_lshl_add_u32 v58, v{vN}, 6, v58\nv_and_b32 v60, 3, v{vC}\nv_lshl_add_u32 v58, v60, 4, v58")
    LP = a.label(); LD = a.label()
    a(f"s_mov_b32 s{T+2}, {SPIN}")
    a(f"{LP}:")
    a(f"buffer_load_dwordx4 v[68:71], v57, s[{S_WS}:{S_WS+3}], s{T} offen sc1")
    a("s_waitcnt vmcnt(0)\nv_and_b32 v72, v70, v71\nv_cmp_ne_u32 vcc, 1, v72")
    a(f"s_cbranch_vccz {LD}")
    a(f"s_sub_u32 s{T+2}, s{T+2}, 1\ns_cmp_lg_u32 s{T+2}, 0\ns_cbranch_scc1 {LP}")
    a(f"{LD}:")
    stamp(a, "proj.stat")
    if C.sent:
        for f in range(4):
            for x in w2_reads(f): a(x)
    dpp_red8(a, [68, 69])
    a(f"v_mul_f32 v68, {f2u(1/512)}, v68\nv_mul_f32 v69, {f2u(1/512)}, v69")
    a("v_fma_f32 v69, -v68, v68, v69\nv_max_f32 v69, 0, v69")
    a(f"v_add_f32 v70, {f2u(1e-5)}, v69\nv_rsq_f32 v70, v70\ns_nop 0")
    a(f"v_mul_f32 v71, v70, v70\nv_mul_f32 v71, v71, v69\nv_add_f32 v71, {f2u(1e-5)}, v71\nv_rsq_f32 v71, v71\ns_nop 0")
    a("v_mul_f32 v70, v70, v71\nv_mul_f32 v71, v68, v70\nv_sub_f32 v71, 0, v71")
    for e in range(8): a(f"v_fma_f32 v{80+e}, v{80+e}, v70, v71")
    for e in range(4): a(f"v_cvt_pk_bf16_f32 v{72+e}, v{80+2*e}, v{81+2*e}")
    a(f"s_lshl_b32 s{T}, s{sJ}, 18\ns_lshl_b32 s{T+1}, s{sI}, 12\ns_add_u32 s{T}, s{T}, s{T+1}\ns_add_u32 s{T}, s{T}, {WS_H}\ns_add_u32 s{T}, s{T}, s{sLB}")
    a(f"buffer_store_dwordx4 v[72:75], v58, s[{S_WS}:{S_WS+3}], s{T} offen sc1")
    stamp(a, "zc.hst")
    a("s_waitcnt lgkmcnt(0)")
    rest3 = [8, 9, 10, 11, 4, 5, 6, 7]
    assert n3[1] <= 4
    for f in rest3[:n3[1]]: w2_dma(a, f)
    a(f"s_waitcnt vmcnt({n3[1]})\ns_barrier")
    stamp(a, "proj.end")
    if_wave_eq(a, 0, lambda: publish(a, "H", sJ))
    if C.sent:
        L = a.label()
        a(f"s_cmp_lg_u32 s{sL}, 0\ns_cbranch_scc1 {L}\nv_mov_b32 v76, -1\nv_mov_b32 v77, -1\nv_mov_b32 v78, -1\nv_mov_b32 v79, -1")
        a(f"s_add_u32 s{T}, s{ost}, {LSTRIDE}\nbuffer_store_dwordx4 v[76:79], v{vL16}, s[{S_WS}:{S_WS+3}], s{T} offen sc1\n{L}:")
    for f in rest3[n3[1]:]: w2_dma(a, f)

EPO = 61440
W1T = 128

def flag_addr(a, kind, sd):
    a(f"s_lshl_b32 s{sd}, s{sJ}, 10\ns_add_u32 s{sd}, s{sd}, {FL[kind]*128}\ns_add_u32 s{sd}, s{sd}, s{sFL}")
    a(f"s_lshr_b32 s{T+1}, s{sI}, 2\ns_lshl_b32 s{T+1}, s{T+1}, 7\ns_add_u32 s{sd}, s{sd}, s{T+1}")

def apoll_issue(a, sd, v):
    a(f"s_mov_b64 exec, 1\nbuffer_load_dword v{v}, v{vL16}, s[{S_WS}:{S_WS+3}], s{sd} offen sc1\ns_mov_b64 exec, -1")

def apoll_check(a, sd, v, n):
    LP = a.label(); LD = a.label()
    a(f"s_mov_b64 exec, 1\ns_mov_b32 s{T+1}, {SPIN}\n{LP}:\nv_cmp_ne_u32 vcc, {n}, v{v}\ns_cbranch_vccz {LD}")
    a(f"buffer_load_dword v{v}, v{vL16}, s[{S_WS}:{S_WS+3}], s{sd} offen sc1\ns_waitcnt vmcnt(0)")
    a(f"s_sub_u32 s{T+1}, s{T+1}, 1\ns_cmp_lg_u32 s{T+1}, 0\ns_cbranch_scc1 {LP}\n{LD}:\ns_mov_b64 exec, -1")

def mlp(a):
    R = 4
    EP = STG
    ERA, UA, YA5, B1, YA4, C1, RA_, WA_, ADD = 21, 20, 22, 24, 28, 29, 30, 128, 136
    ACC, F, ET, PV_, B2 = 48, [80, 96], 112, 19, 18
    src4, dst, qb, src5, rot, ust, fa, fb, gc2, ewb = T+2, T+3, T+4, T+5, T+6, T+7, T+8, T+9, T+11, T+12
    a(f"v_lshlrev_b32 v{ERA}, 1, v{vN}\ns_lshl_b32 s{T}, s{sI}, 7")
    a(f"buffer_load_ushort v{B2}, v{ERA}, s[{S_B2}:{S_B2+3}], s{T} offen")
    a(f"s_lshr_b32 s{T}, s{sW}, 1\ns_and_b32 s{T+1}, s{sW}, 1\ns_lshl_b32 s{T+1}, s{T+1}, 11\ns_add_u32 s{T+1}, s{T+1}, s{sLB}")
    a(f"s_mul_i32 s{src5}, s{sJ}, {2*114688}\ns_mul_i32 s{dst}, s{T}, {28*1024}\ns_add_u32 s{src5}, s{src5}, s{dst}\ns_add_u32 s{src5}, s{src5}, s{T+1}\ns_add_u32 s{src5}, s{src5}, {WS_U}")
    a(f"s_lshl_b32 s{src4}, s{sJ}, 18\ns_lshl_b32 s{dst}, s{T}, 15\ns_add_u32 s{src4}, s{src4}, s{dst}\ns_add_u32 s{src4}, s{src4}, s{T+1}\ns_add_u32 s{src4}, s{src4}, {WS_H}")
    a(f"s_mul_i32 s{ust}, s{sJ}, {2*114688}\ns_lshl_b32 s{dst}, s{sI}, 12\ns_add_u32 s{ust}, s{ust}, s{dst}\ns_lshl_b32 s{dst}, s{T}, 9\ns_add_u32 s{ust}, s{ust}, s{dst}\ns_add_u32 s{ust}, s{ust}, s{T+1}\ns_add_u32 s{ust}, s{ust}, {WS_U}")
    a(f"s_lshl_b32 s{dst}, s{sW}, 11\ns_lshl_b32 s{T}, s{T}, 12")
    a(f"v_bfe_u32 v16, v{vL}, 3, 2\nv_lshlrev_b32 v{YA5}, 9, v16\nv_and_b32 v16, 3, v{vL}\nv_lshl_add_u32 v{YA5}, v16, 7, v{YA5}\nv_bfe_u32 v16, v{vL}, 2, 1\nv_lshl_add_u32 v{YA5}, v16, 6, v{YA5}")
    a(f"v_bfe_u32 v16, v{vL}, 1, 1\nv_bfe_u32 v17, v{vL}, 4, 1\nv_lshl_add_u32 v16, v17, 1, v16\nv_lshrrev_b32 v17, 5, v{vL}\nv_xor_b32 v16, v16, v17\nv_lshl_add_u32 v{YA5}, v16, 4, v{YA5}")
    a(f"v_add_u32 v{YA5}, s{T}, v{YA5}\nv_xor_b32 v{YA5+1}, 32, v{YA5}")
    a(f"s_sub_u32 s{T}, s{T}, s{sVW}\ns_sub_u32 s{T}, s{T}, {SVO}\nv_add_u32 v{YA4}, s{T}, v{vTRF}")
    a(f"s_and_b32 s{T}, s{sW}, 1\ns_lshl_b32 s{T}, s{T}, 11\nv_add_u32 v31, s{T}, v{YA4}")
    a(f"s_and_b32 s{rot}, s{sJ}, {C.jrot}\ns_lshl_b32 s{rot}, s{rot}, 12")
    qkv_base8(a, qb)
    flag_addr(a, "U", fa); flag_addr(a, "UB", fb)
    LS = a.label(); LM = a.label()
    a(f"s_cmp_ge_u32 s{sI}, 28\ns_cbranch_scc1 {LS}")
    vm = VM()
    a(f"s_and_b32 s{T}, s{sW}, 1\ns_lshr_b32 s{T+1}, s{sW}, 1")
    a(f"s_lshl_b32 s{ewb}, s{T}, 14\ns_add_u32 s{ewb}, s{ewb}, {EP}\ns_lshl_b32 s{T+10}, s{T+1}, 10\ns_add_u32 s{T+10}, s{T+10}, s{ewb}\nv_add_u32 v{ERA}, s{T+10}, v{vL16}")
    a(f"s_lshl_b32 s{T+10}, s{T+1}, 12\ns_add_u32 s{ewb}, s{ewb}, s{T+10}")
    a(f"s_lshl_b32 s{T}, s{T}, 6\ns_lshl_b32 s{T+10}, s{sI}, 7\ns_add_u32 s{T}, s{T}, s{T+10}\nv_lshlrev_b32 v16, 3, v{vC}")
    a(f"buffer_load_dwordx2 v[{B1+2}:{B1+3}], v16, s[{S_B1}:{S_B1+3}], s{T} offen")
    a(f"v_lshrrev_b32 v17, 5, v{vL}\ns_lshr_b32 s{T+1}, s{T+1}, 1\ns_lshl_b32 s{T+1}, s{T+1}, 1\nv_or_b32 v17, s{T+1}, v17\nv_lshlrev_b32 v17, 4, v17\nv_lshlrev_b32 v{UA}, 3, v{vL}\nv_xor_b32 v{UA}, v{UA}, v17")
    c1 = -2*0.7978845608028654*1.4426950408889634
    a(f"s_mov_b32 s{gc2}, {f2u(c1*0.044715)}\nv_mov_b32 v{C1}, {f2u(c1)}")
    if_wave_eq(a, 0, lambda: poll(a, "H", sJ, 32))
    a("s_barrier")
    stamp(a, "mlp1.polled"); stamp(a, "z3.poll")
    def act(p, s):
        if p == 4: a(f"s_add_u32 s{T}, s{rot}, {(s & 7)*4096}\ns_and_b32 s{T}, s{T}, 0x7fff\ns_add_u32 s{T}, s{T}, s{src4}\ns_add_u32 m0, s{dst}, {(s % R)*16384}" + (f"\ns_add_u32 s{T}, s{T}, 131072" if s >= 8 else "\ns_nop 0"))
        else: a(f"s_add_u32 m0, s{dst}, {(s % R)*16384}\ns_add_u32 s{T}, s{src5}, {(s//7)*114688 + (s % 7)*4096}")
        nt = " nt" if C.ntact else ""
        a(f"buffer_load_dwordx4 v{vL16}, s[{S_WS}:{S_WS+3}], s{T} offen sc1{nt} lds\nbuffer_load_dwordx4 v{vL16}, s[{S_WS}:{S_WS+3}], s{T} offen offset:1024 sc1{nt} lds")
        vm.add(("act", p, s), 2)
    def reads(p, s):
        out = []; o = (s % R)*16384
        for t in range(4):
            b = F[s & 1] + 4*t
            if p == 4: out += [f"ds_read_b64_tr_b16 v[{b}:{b+1}], v{YA4} offset:{o + t*1024}", f"ds_read_b64_tr_b16 v[{b+2}:{b+3}], v{YA4} offset:{o + t*1024 + 256}"]
            else: out.append(f"ds_read_b128 v[{b}:{b+3}], v{YA5 + (t & 1)} offset:{o + (t >> 1)*2048}")
        return out
    def mfmas(p, s):
        out = []
        n = 8 if p == 4 else 7
        y = s // n
        for t in range(4):
            f = 4*(s % n) + t
            if p == 4: X = f"a[{4*f}:{4*f+3}]" if f < 28 else f"v[{W1T+4*(f-28)}:{W1T+4*(f-28)+3}]"
            else: r = w2_reg(f); X = f"{r[0]}[{int(r[1:])}:{int(r[1:])+3}]"
            Y = f"v[{F[s & 1]+4*t}:{F[s & 1]+4*t+3}]"
            c = "0" if f == 0 else f"v[{ACC+16*y}:{ACC+16*y+15}]"
            A_, B_ = (Y, X) if p == 4 else (X, Y)
            out.append(f"v_mfma_f32_32x32x16_bf16 v[{ACC+16*y}:{ACC+16*y+15}], {A_}, {B_}, {c}")
        return out
    RW = 31
    def inring(f): return C.optx and 20 <= f < 24
    def wdma(fs):
        for f in fs:
            if inring(f):
                a(f"s_add_u32 m0, s{dst}, {((f-20) >> 1)*16384 + (f & 1)*1024}\ns_add_u32 s{T}, s{sW2S}, {f*16*4096}")
                a(f"buffer_load_dwordx4 v{vF2}, s[{S_W2}:{S_W2+3}], s{T} offen lds")
            else: w2_dma(a, f)
            vm.add(("w", f))
    def wr(fs): return [x for f in fs for x in (frag_reads(w2_reg(f), RW, ((f-20) >> 1)*16384 + (f & 1)*1024) if inring(f) else w2_reads(f))]
    def wread(fs):
        for x in wr(fs): a(x)
    def ep_w(y, rs=range(16)):
        o = [f"ds_write_addtid_b32 v{ACC+16*y+r} offset:{EPO + r*256}" for r in rs]
        o[0] = f"s_sub_u32 m0, s{ewb}, {EPO}\ns_nop 0\n" + o[0]
        return o
    def ep_r(): return [f"ds_read_b128 v[{ET+4*p}:{ET+4*p+3}], v{ERA} offset:{p*4096}" for p in range(4)]
    def ep_math():
        o = []
        for e in range(4): o += [f"v_add_f32 v{ET+e}, v{ET+e}, v{ET+4+e}", f"v_add_f32 v{ET+8+e}, v{ET+8+e}, v{ET+12+e}"]
        for e in range(4): o.append(f"v_add_f32 v{ET+e}, v{ET+e}, v{B1+e}")
        for e in range(4): o.append(f"v_add_f32 v{ET+e}, v{ET+e}, v{ET+8+e}")
        G = ET+4
        for e in range(4): o.append(f"v_mul_f32 v{G+e}, v{ET+e}, v{ET+e}")
        for e in range(4): o.append(f"v_fma_f32 v{G+e}, v{G+e}, s{gc2}, v{C1}")
        for e in range(4): o.append(f"v_mul_f32 v{G+e}, v{G+e}, v{ET+e}")
        for e in range(4): o.append(f"v_exp_f32 v{G+e}, v{G+e}")
        for e in range(4): o.append(f"v_add_f32 v{G+e}, 1.0, v{G+e}")
        for e in range(4): o.append(f"v_rcp_f32 v{G+e}, v{G+e}")
        for e in range(4): o.append(f"v_mul_f32 v{ET+e}, v{ET+e}, v{G+e}")
        o += [f"v_cvt_pk_bf16_f32 v{ET+8}, v{ET}, v{ET+1}", f"v_cvt_pk_bf16_f32 v{ET+9}, v{ET+2}, v{ET+3}"]
        return o
    def ep_store(y):
        if y: a(f"s_add_u32 s{ust}, s{ust}, 114688")
        a(f"buffer_store_dwordx2 v[{ET+8}:{ET+9}], v{UA}, s[{S_WS}:{S_WS+3}], s{ust} offen sc1")
        vm.add(("st", y))
    def body(m, lds, valu=()):
        lds = list(lds); valu = list(valu)
        nl = max(C.ldsper, -(-len(lds)//4)); nv = -(-len(valu)//4)
        for k in range(4):
            if k < len(m): a(m[k])
            for x in lds[k*nl:(k+1)*nl]: a(x)
            for x in valu[k*nv:(k+1)*nv]: a(x)
    for s in range(C.init): act(4, s)
    late = [int(c) for c in (C.schx if C.optx else C.schw)]
    assert sum(late) == 8 and len(late) == 6
    nxt = 12
    em = ep_math()
    deferred = []
    E_ = [int(c, 16) for c in C.eps]
    for s in range(16):
        tags = [("act", 4, s)] + ([("st", 0)] if s == C.pubs else [])
        a(f"s_waitcnt vmcnt({vm.need(*tags)}) lgkmcnt(0)\ns_barrier")
        if s not in (2, 3, 5, 6, 7): stamp(a, f"z4.{s:02d}")
        if s == 0: stamp(a, "mlp1.b0")
        if C.defer == 2 and s not in (E_[0], E_[1]):
            for k in deferred: act(4, k)
            deferred = []
        lds = reads(4, s); valu = []
        if s == 0: valu = [f"v_lshlrev_b32 v{B1}, 16, v{B1+2}", f"v_and_b32 v{B1+1}, 0xffff0000, v{B1+2}", f"v_lshlrev_b32 v{B1+2}, 16, v{B1+3}", f"v_and_b32 v{B1+3}, 0xffff0000, v{B1+3}"]
        if s == E_[0]: lds += ep_w(0, range(8))
        if s == E_[1]: lds += ep_w(0, range(8, 16))
        if s == E_[2]: lds += ep_r()
        if s == E_[3]: valu += em[:24]
        if s == E_[4]: valu += em[24:]
        if s == E_[5]: lds += wr(range(4, 8))
        if s == E_[6]: lds += wr(range(8, 12))
        body(mfmas(4, s-1) if s else [], lds, valu)
        if s == C.pubs:
            stamp(a, "mlp1.pubA")
            if_wave_eq(a, 0, lambda: publish(a, "U", sJ))
        if s == E_[4]: ep_store(0)
        if s == 0:
            for k in range(C.init, R): act(4, k)
        if s >= 1 and s - 1 + R < 16:
            deferred.append(s - 1 + R)
            if not (C.defer and s in (E_[0], E_[1])):
                for k in deferred: act(4, k)
                deferred = []
        if s >= 11:
            n = late[s-11]
            assert nxt + n <= 12 + 4*(s > E_[5]) + 4*(s > E_[6]) + 2*(s >= 13) + 2*(s >= 14)
            wdma(range(nxt, nxt + n)); nxt += n
    assert E_[0] >= 9 and E_[2] > E_[1] and E_[3] > E_[2] and E_[5] >= 10 and E_[6] >= 11
    a("s_waitcnt lgkmcnt(0)")
    for x in mfmas(4, 15): a(x)
    stamp(a, "mlp1.loop"); stamp(a, "z4.loop")
    a("s_nop 9")
    for x in ep_w(1): a(x)
    if C.pubs >= 16: a(f"s_waitcnt vmcnt({vm.need(('st', 0))})")
    a("s_waitcnt lgkmcnt(0)\ns_barrier")
    stamp(a, "z4.ep")
    for x in ep_r(): a(x)
    if C.pubs >= 16: if_wave_eq(a, 0, lambda: publish(a, "U", sJ))
    wdma(range(nxt, 20))
    if C.n1 == 0: apoll_issue(a, fa, PV_); vm.add("pa")
    a("s_waitcnt lgkmcnt(0)")
    for x in em: a(x)
    ep_store(1)
    stamp(a, "mlp1.st"); stamp(a, "z4.st")
    npre = 20 + C.n1 + C.n2
    if C.n1:
        a(f"s_waitcnt vmcnt({vm.need(('w', 15))})")
        wread(range(12, 16))
        a("s_waitcnt lgkmcnt(0)")
        apoll_issue(a, fa, PV_); vm.add("pa")
        wdma(range(20, 20 + C.n1))
        a(f"s_waitcnt vmcnt({vm.need('pa')})")
        wread(range(16, 20))
        a("s_barrier")
        stamp(a, "z4.xdrain")
        if_wave_eq(a, 0, lambda: publish(a, "UB", sJ))
        a("s_waitcnt lgkmcnt(0)")
        wdma(range(20 + C.n1, npre))
        first = 0
    else:
        a(f"s_waitcnt vmcnt({vm.need('pa')})")
        wread(range(12, 20))
        apoll_check(a, fa, PV_, 28)
        act(5, 0); act(5, 1)
        a(f"s_waitcnt vmcnt({vm.need(('st', 1))})\ns_barrier")
        stamp(a, "z4.xdrain")
        if_wave_eq(a, 0, lambda: publish(a, "UB", sJ))
        first = 2
    a(f"s_branch {LM}")
    a(f"{LS}:")
    a("s_waitcnt vmcnt(0)")
    wread(range(4, 12)); a("s_waitcnt lgkmcnt(0)")
    keep = vm.ops[:]
    wdma(range(12, 20))
    a("s_waitcnt vmcnt(0)")
    wread(range(12, 20)); a("s_waitcnt lgkmcnt(0)")
    wdma(range(20, npre))
    a(f"v_mov_b32 v{PV_}, 28\ns_waitcnt vmcnt(0)")
    if_wave_eq(a, 0, lambda: poll(a, "U", sJ, 28))
    a("s_barrier")
    for k in range(first): act(5, k)
    vm.ops = keep
    a(f"{LM}:")
    if first == 0: apoll_check(a, fa, PV_, 28)
    stamp(a, "mlp2.polled"); stamp(a, "z4.zpolled")
    for k in range(first, C.init5): act(5, k)
    ep2_read_addr(a, RA_, EP+16, E+32768, ewb, ET)
    sch = [int(c) for c in C.sch2]
    extra = list(range(12))
    assert sum(sch[:5]) <= 7
    def point(p):
        for _ in range(sch[p]):
            k = extra.pop(0); qkv_piece8(a, qb, k); vm.add(("x", k))
    sb = C.sb
    na = max(first, C.init5); nw = npre
    for s in range(14):
        tags = [("act", 5, s)]
        if s == sb: tags.append("pb")
        if s == 5: tags.append(("w", 23))
        if s == 6: tags.append(("w", 27))
        a(f"s_waitcnt vmcnt({vm.need(*tags)}) lgkmcnt(0)\ns_barrier")
        if s not in (8, 9, 10): stamp(a, f"z5.{s:02d}")
        if s == 0: stamp(a, "mlp2.b0")
        lds = reads(5, s); valu = []
        if s == 0:
            for e in range(4): valu += [f"v_lshlrev_b32 v{ADD+2*e}, 16, v{vRES+e}", f"v_and_b32 v{ADD+1+2*e}, 0xffff0000, v{vRES+e}"]
            valu.append(f"v_lshlrev_b32 v{B2}, 16, v{B2}")
            for e in range(8): valu.append(f"v_add_f32 v{ADD+e}, v{ADD+e}, v{B2}")
        if s == 5: lds += wr(range(20, 24))
        if s == 6: lds += wr(range(24, 28))
        if s == C.wa5: lds += ep2_writes(ACC, EP+16, ewb)
        body(mfmas(5, s-1) if s else [], lds, valu)
        if s == sb:
            apoll_check(a, fb, PV_, 28)
            stamp(a, "mlp2.pollB")
        if s == C.pbi: apoll_issue(a, fb, PV_); vm.add("pb")
        lim = min(14, s + 4, 7 if s < sb else 14)
        want = min(lim, na + 1) if nw < 28 and not C.deep else lim
        want = max(want, min(lim, s + 3))
        while na < want: act(5, na); na += 1
        if nw < 28: wdma((nw, nw+1)); nw += 2
        if s == C.q5s and C.pret:
            a(f"buffer_load_dword v{ET+1}, v{vXO}, s[{S_XD}:{S_XD+3}], s{sXO} offen sc1")
            a(f"s_lshl_b32 s{T}, s{sI}, 3\ns_add_u32 s{T}, s{T}, s{sJ}\ns_lshl_b32 s{T}, s{T}, 9\ns_add_u32 s{T}, s{T}, {WS_ST2}\nv_lshlrev_b32 v{ET+2}, 3, v{vL}")
            a(f"buffer_load_dword v{ET+2}, v{ET+2}, s[{S_WS}:{S_WS+3}], s{T} offen sc1")
            vm.add("pre", 2)
        if s == C.q5s and C.q5:
            a(f"s_lshr_b32 s{T}, s2, 3\ns_lshl_b32 s{T}, s{T}, 3\ns_add_u32 s{T}, s{T}, s{sW}\ns_mul_i32 s{T}, s{T}, {6*1024}")
            if C.q5 == 1: a(f"s_add_u32 s{T}, s{T}, 384\nv_min_u32 v{ET}, 5, v{vL}\nv_lshlrev_b32 v{ET}, 10, v{ET}")
            else: a(f"v_min_u32 v{ET}, 47, v{vL}\nv_lshlrev_b32 v{ET}, 7, v{ET}")
            a(f"buffer_load_dword v{ET}, v{ET}, s[{S_QKV}:{S_QKV+3}], s{T} offen"); vm.add("q5")
    assert na == 14 and nw == 28
    a(f"s_waitcnt lgkmcnt({15 if C.wa5 == 13 else 0})")
    for x in mfmas(5, 13): a(x)
    stamp(a, "mlp2.loop")
    a("s_nop 9")
    OUT = 80
    for x in ep2_writes(ACC+16, E+32768, ewb): a(x)
    point(0); point(1); point(2)
    a("s_waitcnt lgkmcnt(0)\ns_barrier")
    ep2_sum(a, RA_, ADD, OUT)
    point(3)
    for e in range(4): a(f"v_cvt_pk_bf16_f32 v{vRES+e}, v{OUT+2*e}, v{OUT+1+2*e}")
    if C.finplain:
        Lf = a.label()
        a(f"s_cmp_eq_u32 s{sL}, 0\ns_cbranch_scc1 {Lf}\nbuffer_store_dwordx4 v[{vRES}:{vRES+3}], v{vXO}, s[{S_XD}:{S_XD+3}], s{sXO} offen{' nt' if C.finplain == 2 else ''}\ns_branch L_fin\n{Lf}:")
    rstore(a, f"buffer_store_dwordx4 v[{vRES}:{vRES+3}], v{vXO}, s[{S_XD}:{S_XD+3}], s{sXO} offen", bulk=True)
    stamp(a, "mlp2.st")
    a(f"s_cmp_lg_u32 s{sL}, 0\ns_cbranch_scc1 L_fin")
    a("v_mov_b32 v64, 0\nv_mov_b32 v65, 0\nv_mov_b32 v68, 0x3f803f80")
    for e in range(4): a(f"v_dot2c_f32_bf16 v64, v{vRES+e}, v68\nv_dot2c_f32_bf16 v65, v{vRES+e}, v{vRES+e}")
    a(f"s_lshl_b32 s{T}, s{sI}, 3\ns_add_u32 s{T}, s{T}, s{sJ}\ns_lshl_b32 s{T}, s{T}, 9\ns_add_u32 s{T}, s{T}, {WS_ST2}\nv_lshlrev_b32 v66, 3, v{vN}")
    dpp_red8(a, [64, 65])
    a(f"v_cmp_eq_u32 vcc, 0, v{vC}\ns_and_saveexec_b64 s[{T+10}:{T+11}], vcc")
    rstore(a, f"buffer_store_dwordx2 v[64:65], v66, s[{S_WS}:{S_WS+3}], s{T} offen", bulk=True)
    a(f"s_mov_b64 exec, s[{T+10}:{T+11}]")
    point(4)
    a(f"s_waitcnt vmcnt({sch[4]})\ns_barrier")
    stamp(a, "mlp2.end")
    if_wave_eq(a, 4, lambda: publish(a, "X", sI))
    point(5)

def main(out):
    a = Asm()
    K = NAME + "_kernel"
    a.L.append(f".globl {K}\n.p2align 8\n.type {K},@function\n{K}:")
    prologue(a)
    a(f"buffer_load_dwordx4 v[{vRES}:{vRES+3}], v{vXO}, s[{S_XS}:{S_XS+3}], s{sXO} offen")
    stamp(a, "entry2")
    a(f"s_cmp_lt_u32 s{sW}, 4\ns_cbranch_scc1 L_p1_cons")
    layer0_helpers(a)
    ool_at = len(a.L)
    a("L_layer:")
    ool = phase1(a)
    phase2(a)
    phase3(a)
    mlp(a)
    a(f"s_mov_b32 s{S_XS}, s{S_XD}\ns_mov_b32 s{S_XS+1}, s{S_XD+1}\ns_mov_b32 s{S_XD}, s{sOUT}\ns_mov_b32 s{S_XD+1}, s{sOUT+1}")
    a(f"s_mov_b32 s{sL}, 1\ns_mov_b32 s{sLB}, {LSTRIDE}")
    if C.stamp: a("v_mov_b32 v7, v6")
    a("s_branch L_layer")
    a("L_fin:")
    if C.stamp:
        a("s_waitcnt vmcnt(0)")
        stamp(a, "fin")
        a(f"s_lshl_b32 s{T}, s2, 3\ns_add_u32 s{T}, s{T}, s{sW}\ns_lshl_b32 s{T}, s{T}, 9\ns_add_u32 s{T}, s{T}, {WS_STAMP}\nv_lshlrev_b32 v16, 2, v{vL}")
        a(f"buffer_store_dword v7, v16, s[{S_WS}:{S_WS+3}], s{T} offen\nbuffer_store_dword v6, v16, s[{S_WS}:{S_WS+3}], s{T} offen offset:256")
    a("L_end:\ns_endpgm")
    softmax_safe(a)
    b = Asm()
    for x in ool[-13:-12] + [o for o in ool if o is not ool[-13]] if False else ool: b(x)
    a.L[ool_at:ool_at] = b.L
    s = HDR + "; @launch grid=(256,1,1) block=(512,1,1) lds=163840\n"
    s += '.amdgcn_target "amdgcn-amd-amdhsa--gfx950"\n.text\n' + a.text().replace("CODE_SPAN", str(C.span))
    s += f""".section .rodata,"a"
.p2align 6
.amdhsa_kernel {K}
  .amdhsa_next_free_vgpr 256
  .amdhsa_next_free_sgpr 102
  .amdhsa_accum_offset {NARCH}
  .amdhsa_group_segment_fixed_size 0
  .amdhsa_kernarg_size 88
  .amdhsa_user_sgpr_count 2
  .amdhsa_user_sgpr_kernarg_segment_ptr 1
  .amdhsa_system_sgpr_workgroup_id_x 1
.end_amdhsa_kernel
"""
    open(out, "w").write(s)
    if C.stamp: open(out + ".stamps", "w").write("\n".join(STAMPS))

if __name__ == "__main__":
    for arg in sys.argv[2:]:
        k, v = arg.split("="); setattr(C, k, v if isinstance(getattr(C, k), str) else type(getattr(C, k))(int(v)))
    main(sys.argv[1])
```

```python
import sys, struct
NAME = "interleave_layers__softmax_full_mha__mixer_token_mlp__prompt"
HDR = open("cdna_kernels/%s.s.ref" % NAME).read().split("; Override launch")[0]
MB = 1 << 20
WS_KV, WS_O, WS_H, WS_U, WS_X2, WS_ST = 0*MB, 4*MB, 6*MB, 8*MB, 10*MB, 12*MB
LSTRIDE = 16*MB
WS_FLAG = 32*MB
WS_XT = WS_FLAG + 131072
WS_STAMP = 40*MB
KA = dict(x=0, wqkv=8, wo=16, w1=32, b1=40, w2=48, b2=56, out=64, dbg=72, ws=80)
SZ = dict(x=2048*512*2, wqkv=512*1536*2, wo=512*512*2, w1=2048*1792*2, b1=1792*2, w2=1792*2048*2, b2=2048*2,
          out=2048*512*2, dbg=256, ws=1 << 28)
FL = dict(KV=0, H=64, U=128, O=192, X=224, UB=256, KL=320)
COLK = ('KV', 'H', 'U', 'UB')
SPIN = 200000
NARCH = 144

class Cfg:
    stamp = False
    prio = True
    lowtiles = 1
    D = 3
    nB = 12
    sch1 = '033343'
    sch2 = '003040'
    sch3 = '426'
    stouch = 0
    p1touch = 0
    now1 = 0
    local = 1
    schw = '001124'
    eps = '99abbbc'
    wlast = 1
    defer = 0
    optx = 0
    n1 = 0
    n2 = 0
    deep = 1
    wa5 = 13
    xp = 2
    early = 6
    q5 = 1
    q5s = 10
    lf = 1
    lfi = 1
    lfc = 2
    c3 = 1
    pub12 = 1
    w1nt = 0
    w2nt = 0
    xrot = 1
    xnt = 0
    lateinit = 1
    arrs = 4
    dbgs = 9
    sent = 1
    ldo = 1
    preto = 1
    sentwait = 1
    fixed = 1
    lprio = 0
    wo1 = 8
    x4 = 2
    xr8 = 1
    cpos = 11
    mp = '25b'
    vmask = 0
    kvsame = 0
    prets = 1
    w2pos = 0
    skip7 = 1
    wfirst = 0
    finplain = 0
    vtlb = 0
    vsh = 21
    ntkv = 0
    ntact = 0
    qrot = 0
    w1mask = 7
    w1e = -2
    schx = '01434'
    pbi = 2
    sb = 4
    init5 = 4
    schv = '22220'
    pubs = 14
    pbs = 3
    init = 4
    pae = 1
    order = 1
    ldsper = 3
    epa = 0
    t2 = 28
    sonly = ''
    tmix = 1
    cpf = 0
    span = 32640
    early2 = 0
    ldata = 0
    pret = 0
    prett = 24
    hs1 = '322211222000'
    hs0 = '222222220000'
    h0first = 4
    h0second = 4
    w1t = 9
    p1per = 4
    qtouch = 2
    pper = 16
    plow = 4
    split = 1
    kvfix = 0
    xsel = 'wot'
    nofirst = 0
    tlb = 0
    lowhalf = 3
    jrot = 6
    nox = 0
    notr = 0
    loop = 0
    pad = 0
    align = 3
    nQ = 12
C = Cfg()

class Asm:
    def __init__(self): self.L = []; self.n = 0
    def __call__(self, s):
        for line in s.split("\n"):
            line = line.strip()
            if line: self.L.append(("" if line.endswith(":") else "    ") + line)
    def label(self, p="L"):
        self.n += 1; return f"{p}{self.n}"
    def text(self): return "\n".join(self.L) + "\n"

def f2u(x): return hex(struct.unpack("<I", struct.pack("<f", x))[0])

S_XS, S_QKV, S_WS, S_WO, S_W1, S_W2, S_B1, S_B2, S_XD, S_DBG, S_KV = 8, 12, 16, 20, 24, 28, 32, 36, 40, 44, 80
sI, sJ, sW, sL, sLB, sFL = 48, 49, 50, 51, 52, 53
sW2S = 54
sVW = 55
sLOC = 56
sXO = 57
sOUT = 58
sJR = 83
sR2 = 80
T = 60
sST = 76
sRET = 84
vL, vN, vC, vL16, vXO = 1, 2, 3, 4, 5
vRES = 8
vF2, vTRF, vWQ = 12, 13, 14
TV = 16
E, V = 0, 65536
QX = V + 11*8192
SVO = 32768
STG = V

STAMPS = []
def stamp(a, name):
    if not C.stamp: return
    if C.sonly:
        if not (name == "start" or any(name.startswith(p) for p in C.sonly.split(","))): return
    elif name.startswith("z") or name.startswith("entry"): return
    k = len(STAMPS); assert k < 32
    a(f"s_memtime s[{sST}:{sST+1}]\ns_memrealtime s[{sST+2}:{sST+3}]\ns_waitcnt lgkmcnt(0)")
    a(f"v_writelane_b32 v6, s{sST}, {k}\nv_writelane_b32 v6, s{sST+2}, {k+32}")
    STAMPS.append(name)

def dpp_red8(a, regs):
    for pat in ("quad_perm:[1,0,3,2]", "quad_perm:[2,3,0,1]", "row_half_mirror"):
        a("s_nop 1")
        for r in regs: a(f"v_add_f32_dpp v{r}, v{r}, v{r} {pat} row_mask:0xf bank_mask:0xf")

def tr_addr(a, vd, xh, perm, t0, t1):
    a(f"v_lshrrev_b32 v{t0}, 5, v{vL}\nv_lshlrev_b32 v{t0}, {2 if perm else 3}, v{t0}")
    a(f"v_bfe_u32 v{t1}, v{vL}, 2, 2\nv_add_u32 v{t0}, v{t0}, v{t1}\nv_lshlrev_b32 v{vd}, 7, v{t0}")
    a(f"v_lshrrev_b32 v{t1}, 1, v{t1}\nv_xor_b32 v{t1}, {xh}, v{t1}\nv_lshl_add_u32 v{vd}, v{t1}, 6, v{vd}")
    a(f"v_bfe_u32 v{t1}, v{vL}, 4, 1\nv_lshl_add_u32 v{vd}, v{t1}, 5, v{vd}")
    a(f"v_and_b32 v{t1}, 3, v{vL}\nv_lshl_add_u32 v{vd}, v{t1}, 3, v{vd}")

def interleave(a, m, r):
    per = -(-len(r)//len(m))
    for x in range(len(m)):
        a(m[x])
        for y in r[x*per:(x+1)*per]: a(y)

def rstore(a, instr, bulk=False):
    if not C.local or (bulk and not C.ldata):
        a(instr + " sc1"); return
    L = a.label(); L2 = a.label()
    a(f"s_cmp_eq_u32 s{sLOC}, 1\ns_cbranch_scc1 {L}\n{instr} sc1\ns_branch {L2}\n{L}:\n{instr}\n{L2}:")

def publish(a, kind, group_s, tv=None):
    if kind not in COLK:
        a(f"s_lshl_b32 s{T}, s{group_s}, 7\ns_add_u32 s{T}, s{T}, {FL[kind]*128}\ns_add_u32 s{T}, s{T}, s{sFL}\ns_lshl_b32 s{T+1}, s{sJ}, 4\ns_add_u32 s{T}, s{T}, s{T+1}")
        a(f"v_mov_b32 v{TV}, 1\ns_mov_b64 exec, 1")
        rstore(a, f"buffer_store_dword v{TV}, v{vL16}, s[{S_WS}:{S_WS+3}], s{T} offen")
        a("s_mov_b64 exec, -1")
        return
    col = kind in COLK
    a(f"s_lshl_b32 s{T}, s{group_s}, {10 if col else 7}\ns_add_u32 s{T}, s{T}, {FL[kind]*128}\ns_add_u32 s{T}, s{T}, s{sFL}")
    a(f"v_mov_b32 v{TV}, 1\nv_lshlrev_b32 v{TV+1}, 7, v{vL}\ns_mov_b64 exec, {0xff if col else 1}")
    a(f"buffer_atomic_add v{TV}, v{TV+1}, s[{S_WS}:{S_WS+3}], s{T} offen sc1")
    a("s_mov_b64 exec, -1")

def poll(a, kind, group_s, n):
    col = kind in COLK
    a(f"s_lshl_b32 s{T}, s{group_s}, {10 if col else 7}\ns_add_u32 s{T}, s{T}, {FL[kind]*128}\ns_add_u32 s{T}, s{T}, s{sFL}")
    if col: a(f"s_lshr_b32 s{T+1}, s{sI}, 2\ns_lshl_b32 s{T+1}, s{T+1}, 7\ns_add_u32 s{T}, s{T}, s{T+1}")
    a(f"s_mov_b64 exec, {1 if col else 0xff}\ns_mov_b32 s{T+1}, {SPIN}")
    LP = a.label(); LD = a.label()
    a(f"{LP}:")
    a(f"buffer_load_dword v{TV}, v{vL16}, s[{S_WS}:{S_WS+3}], s{T} offen sc1")
    a(f"s_waitcnt vmcnt(0)\nv_cmp_ne_u32 vcc, {n if col else 1}, v{TV}")
    a(f"s_cbranch_vccz {LD}")
    a(f"s_sub_u32 s{T+1}, s{T+1}, 1\ns_cmp_lg_u32 s{T+1}, 0\ns_cbranch_scc1 {LP}")
    a(f"{LD}:\ns_mov_b64 exec, -1")

def kl_addr(a):
    a(f"s_lshr_b32 s{T}, s{sI}, 2\ns_lshl_b32 s{T}, s{T}, 3\ns_add_u32 s{T}, s{T}, s{sJ}\ns_lshl_b32 s{T}, s{T}, 7\ns_add_u32 s{T}, s{T}, {FL['KL']*128}\ns_add_u32 s{T}, s{T}, s{sFL}")

def kl_publish(a):
    kl_addr(a)
    a(f"s_and_b32 s{T+1}, s{sI}, 3\ns_lshl_b32 s{T+1}, s{T+1}, 4\ns_add_u32 s{T}, s{T}, s{T+1}\nv_mov_b32 v{TV+3}, 1\ns_mov_b64 exec, 1")
    rstore(a, f"buffer_store_dword v{TV+3}, v{vL16}, s[{S_WS}:{S_WS+3}], s{T} offen")
    a("s_mov_b64 exec, -1")

def kl_poll(a):
    kl_addr(a)
    a(f"s_mov_b64 exec, 15\ns_mov_b32 s{T+1}, {SPIN}")
    LP = a.label(); LD = a.label()
    a(f"{LP}:\nbuffer_load_dword v{TV}, v{vL16}, s[{S_WS}:{S_WS+3}], s{T} offen sc1\ns_waitcnt vmcnt(0)\nv_cmp_ne_u32 vcc, 1, v{TV}\ns_cbranch_vccz {LD}")
    a(f"s_sub_u32 s{T+1}, s{T+1}, 1\ns_cmp_lg_u32 s{T+1}, 0\ns_cbranch_scc1 {LP}\n{LD}:\ns_mov_b64 exec, -1")

def if_wave_eq(a, w, body):
    L = a.label()
    a(f"s_cmp_lg_u32 s{sW}, {w}\ns_cbranch_scc1 {L}")
    body()
    a(f"{L}:")

def qslot(u): return (u + 5) % 12
def qkv_src(u): return (u >> 1)*64*3072 + (1 + (u & 1))*1024 if u < 16 else (u-16)*64*3072

def qkv_row(a, d, base, u):
    if not C.qrot:
        a(f"s_mov_b32 s{d}, s{base}"); return qkv_src(u)
    a(f"s_add_u32 s{d}, s{sR2}, {u >> 1 if u < 16 else u - 16}\ns_and_b32 s{d}, s{d}, 7\ns_mul_i32 s{d}, s{d}, {64*3072}\ns_add_u32 s{d}, s{d}, s{base}")
    return (1 + (u & 1))*1024 if u < 16 else 0

def qkv_base8(a, s):
    a(f"s_mul_i32 s{s}, s{sW}, {8*3072}\ns_lshl_b32 s{T}, s{sJ}, 7\ns_add_u32 s{s}, s{s}, s{T}")

def qkv_piece8(a, s, u):
    seg = qkv_row(a, T, s, u)
    a(f"s_add_u32 m0, s{sVW}, {qslot(u)*8192}\ns_add_u32 s{T}, s{T}, {seg}")
    a(f"buffer_load_dwordx4 v{vWQ}, s[{S_QKV}:{S_QKV+3}], s{T} offen lds")

def w2_dma(a, f):
    a(f"s_add_u32 m0, s{sVW}, {SVO + ((f+4) % 8)*8192}\ns_add_u32 s{T}, s{sW2S}, {f*16*4096}")
    a(f"buffer_load_dwordx4 v{vF2}, s[{S_W2}:{S_W2+3}], s{T} offen lds")

def frag_reads(dst, vaddr, off):
    p, n = dst[0], int(dst[1:])
    return [f"ds_read_b64_tr_b16 {p}[{n}:{n+1}], v{vaddr} offset:{off}", f"ds_read_b64_tr_b16 {p}[{n+2}:{n+3}], v{vaddr} offset:{off+256}"]

W2V = 32
def w2_reg(f):
    if C.x4 and f >= 24: return f"v{112+4*(f-24)}"
    return f"v{W2V+4*f}" if f < 4 else f"a{4*(f-4)}"
def w2x_dma(a):
    for c in range(4):
        a(f"s_add_u32 m0, s{sVW}, {c*8192}\ns_add_u32 s{T}, s{sW2S}, {(24+c)*16*4096}\nbuffer_load_dwordx4 v{vF2}, s[{S_W2}:{S_W2+3}], s{T} offen lds")
def w2_reads(f): return frag_reads(w2_reg(f), vTRF, ((f+4) % 8)*8192)

def prologue(a):
    if C.stamp: a("s_memtime s[96:97]\ns_memrealtime s[98:99]")
    a("s_load_dwordx16 s[64:79], s[0:1], 0\ns_load_dwordx4 s[84:87], s[0:1], 64\ns_load_dwordx2 s[88:89], s[0:1], 80")
    a(f"s_cmp_ge_u32 s2, 256\ns_cbranch_scc1 L_end")
    if C.cpf:
        if C.cpf == 1: a(f"s_getpc_b64 s[{T+2}:{T+3}]\ns_lshr_b32 s{T}, s2, 3\ns_lshl_b32 s{T}, s{T}, 10\nv_lshrrev_b32 v41, 6, v0\nv_lshlrev_b32 v41, 7, v41\nv_add_u32 v41, s{T}, v41")
        else: a(f"s_getpc_b64 s[{T+2}:{T+3}]\nv_lshlrev_b32 v41, 6, v0")
        a(f"v_min_u32 v41, CODE_SPAN, v41\nglobal_load_dword v142, v41, s[{T+2}:{T+3}]")
    a(f"v_lshrrev_b32 v{vL}, 6, v0\ns_lshr_b32 s{sJ}, s2, 5\nv_readfirstlane_b32 s{sW}, v{vL}\nv_and_b32 v{vL}, 63, v0")
    a(f"s_and_b32 s{sI}, s2, 7\ns_lshl_b32 s{sI}, s{sI}, 2\ns_bfe_u32 s{T}, s2, 0x20003\ns_or_b32 s{sI}, s{sI}, s{T}")
    a(f"v_lshrrev_b32 v{vN}, 3, v0\nv_and_b32 v{vC}, 7, v0")
    a(f"s_lshl_b32 s{T}, s{sJ}, {3 if C.xrot else 6}\nv_add_u32 v42, s{T}, v{vN}\nv_and_b32 v42, 63, v42")
    a(f"v_bfe_u32 v41, v42, 1, 3\nv_xor_b32 v41, v41, v{vC}\nv_lshlrev_b32 v41, 4, v41\nv_lshl_add_u32 v{vXD}, v42, 10, v41")
    a(f"s_mov_b32 s{S_XS+2}, {hex(SZ['x'])}\ns_mov_b32 s{S_XS+3}, 0x00020000\ns_mov_b32 s{S_QKV+2}, {hex(SZ['wqkv'])}\ns_mov_b32 s{S_QKV+3}, s{S_XS+3}")
    a(f"s_and_b32 s{sR2}, s{sI}, {3 if C.qrot else 0}\ns_lshl_b32 s{sR2}, s{sR2}, 1")
    if C.qtouch:
        a(f"s_mul_i32 s{T+2}, s2, {48*128}\ns_lshr_b32 s{T+3}, s2, 3\ns_mul_i32 s{T+3}, s{T+3}, {48*1024}\ns_addk_i32 s{T+3}, 384")
        a(f"s_cmp_eq_u32 s{sW}, 0\ns_cselect_b32 s{T+2}, s{T+2}, s{T+3}\ns_cselect_b32 s{T+3}, 7, 10\nv_min_u32 v41, 47, v{vL}\nv_lshlrev_b32 v41, s{T+3}, v41")
    if C.stamp: a("v_mov_b32 v6, 0\nv_mov_b32 v7, 0")
    def rest():
        for s, n in ((S_WS, "ws"), (S_WO, "wo"), (S_W1, "w1"), (S_W2, "w2"), (S_B1, "b1"), (S_B2, "b2"), (S_DBG, "dbg"), (S_XD, "x")):
            a(f"s_mov_b32 s{s+2}, {hex(SZ[n])}\ns_mov_b32 s{s+3}, 0x00020000")
        a(f"v_lshlrev_b32 v{vL16}, 4, v{vL}")
        a(f"s_lshl_b32 s{sXO}, s{sI}, 16\ns_lshl_b32 s{T}, s{sJ}, 7\ns_add_u32 s{sXO}, s{sXO}, s{T}")
        a(f"s_mov_b32 s{sLOC}, 0\ns_mov_b32 s{sL}, 0\ns_mov_b32 s{sLB}, 0\ns_mov_b32 s{sFL}, {WS_FLAG}")
        a(f"v_lshrrev_b32 v40, 3, v{vL}\nv_bfe_u32 v43, v{vL}, 4, 1\nv_lshlrev_b32 v43, 2, v43\nv_and_b32 v42, 7, v{vL}\nv_xor_b32 v43, v43, v42\nv_lshlrev_b32 v43, 4, v43")
        a(f"v_mul_u32_u24 v{vWQ}, 3072, v40\nv_add_u32 v{vWQ}, v{vWQ}, v43")
        a(f"s_lshl_b32 s{sVW}, s{sW}, 10\ns_add_u32 s{sVW}, s{sVW}, {V}")
        a(f"v_bfe_u32 v43, v{vN}, 1, 1\nv_bfe_u32 v42, v{vN}, 2, 1\nv_and_b32 v{vN}, 0x39, v{vN}\nv_lshl_add_u32 v{vN}, v43, 2, v{vN}\nv_lshl_add_u32 v{vN}, v42, 1, v{vN}")
        a(f"v_lshlrev_b32 v{vXO}, 10, v{vN}\nv_lshl_add_u32 v{vXO}, v{vC}, 4, v{vXO}")
        a(f"s_and_b32 s{sJR}, s{sJ}, {C.jrot}" + (f"\ns_lshr_b32 s{T}, s{sI}, 2\ns_add_u32 s{sJR}, s{sJR}, s{T}\ns_and_b32 s{sJR}, s{sJR}, 7" if C.xr8 else ""))
        prologue2(a)
    if C.early2: rest()
    L = a.label()
    a(f"s_cmp_gt_u32 s{sW}, 1\ns_waitcnt lgkmcnt(0)\ns_mov_b64 s[{S_XS}:{S_XS+1}], s[64:65]\ns_mov_b64 s[{S_QKV}:{S_QKV+1}], s[66:67]")
    if C.qtouch: a(f"s_cbranch_scc1 {L}\nbuffer_load_dword v143, v41, s[{S_QKV}:{S_QKV+3}], s{T+2} offen\n{L}:")
    x_dma(a, fl="")
    for s, n in ((S_WO, "wo"), (S_W1, "w1"), (S_W2, "w2"), (S_B1, "b1"), (S_B2, "b2")):
        a(f"s_mov_b64 s[{s}:{s+1}], s[{64 + KA[n]//4}:{65 + KA[n]//4}]")
    a(f"s_mov_b64 s[{sOUT}:{sOUT+1}], s[84:85]\ns_mov_b64 s[{S_DBG}:{S_DBG+1}], s[86:87]\ns_mov_b64 s[{S_WS}:{S_WS+1}], s[88:89]")
    if C.stamp:
        a(f"v_writelane_b32 v6, s96, 0\nv_writelane_b32 v6, s98, 32"); STAMPS.append("start")
    a(f"s_add_u32 s{S_XD}, s{S_WS}, {WS_X2}\ns_addc_u32 s{S_XD+1}, s{S_WS+1}, 0")
    if not C.early2: rest()

def prologue2(a):
    a(f"v_lshrrev_b32 v42, 2, v{vL}\nv_and_b32 v43, 3, v{vL}\nv_lshlrev_b32 v43, 4, v43")
    a(f"v_lshl_add_u32 v{vF2}, v42, 12, v43")
    a(f"v_lshrrev_b32 v42, 5, v{vL}\nv_lshlrev_b32 v42, 3, v42\nv_bfe_u32 v43, v{vL}, 2, 2\nv_add_u32 v42, v42, v43\nv_lshlrev_b32 v{vTRF}, 6, v42")
    a(f"v_bfe_u32 v43, v{vL}, 4, 1\nv_lshl_add_u32 v{vTRF}, v43, 5, v{vTRF}\nv_and_b32 v43, 3, v{vL}\nv_lshl_add_u32 v{vTRF}, v43, 3, v{vTRF}")
    a(f"v_add_u32 v{vTRF}, s{sVW}, v{vTRF}\nv_add_u32 v{vTRF}, {SVO}, v{vTRF}")
    a(f"s_lshr_b32 s{sW2S}, s{sW}, 1\ns_mul_i32 s{sW2S}, s{sW2S}, {448*4096}\ns_lshl_b32 s{T}, s{sI}, 7\ns_add_u32 s{sW2S}, s{sW2S}, s{T}")
    a(f"s_and_b32 s{T}, s{sW}, 1\ns_lshl_b32 s{T}, s{T}, 6\ns_add_u32 s{sW2S}, s{sW2S}, s{T}")

def tlb_touch(a):
    if not C.tlb: return
    a(f"s_sub_u32 s{T+4}, s{sW}, 4\ns_lshl_b32 s{T}, s{T+4}, 21")
    for k in range(4): a(f"s_add_u32 s{T+1}, s{T}, {(k & 1)*8*MB + (k >> 1)*LSTRIDE}\ns_buffer_load_dword s86, s[{S_WS}:{S_WS+3}], s{T+1}")
    for srd in (S_W1, S_W2): a(f"s_buffer_load_dword s86, s[{srd}:{srd+3}], s{T}")
    a(f"s_lshl_b32 s{T}, s{T+4}, 19\ns_load_dword s86, s[{sOUT}:{sOUT+1}], s{T}")
    a(f"s_buffer_load_dword s86, s[{S_WO}:{S_WO+3}], 0\ns_buffer_load_dword s86, s[{S_B1}:{S_B1+3}], 0\ns_buffer_load_dword s86, s[{S_B2}:{S_B2+3}], 0")

def init_sync(a, w=3):
    def body():
        a("v_mov_b32 v44, 0\nv_mov_b32 v45, 0\nv_mov_b32 v46, 0\nv_mov_b32 v47, 0")
        a(f"s_lshl_b32 s{T}, s2, 10\ns_add_u32 s{T}, s{T}, {WS_ST}\ns_add_u32 s{T+1}, s{T}, {LSTRIDE}")
        a(f"buffer_store_dwordx4 v[44:47], v{vL16}, s[{S_WS}:{S_WS+3}], s{T} offen sc1")
        a(f"buffer_store_dwordx4 v[44:47], v{vL16}, s[{S_WS}:{S_WS+3}], s{T+1} offen sc1")
        a(f"s_lshl_b32 s{T}, s2, 9\ns_add_u32 s{T}, s{T}, {WS_FLAG}\ns_mov_b32 exec_hi, 0")
        a(f"buffer_store_dwordx4 v[44:47], v{vL16}, s[{S_WS}:{S_WS+3}], s{T} offen sc1")
        if C.sent:
            a(f"s_mov_b64 exec, -1\nv_mov_b32 v100, -1\nv_mov_b32 v101, -1\nv_mov_b32 v102, -1\nv_mov_b32 v103, -1\ns_lshl_b32 s{T}, s2, 13\ns_add_u32 s{T}, s{T}, {WS_O}\ns_add_u32 s{T+1}, s{T}, 4096")
            for k in range(8): a(f"buffer_store_dwordx4 v[100:103], v{vL16}, s[{S_WS}:{S_WS+3}], s{T + (k >> 2)} offen offset:{(k & 3)*1024} sc1")
        a(f"s_getreg_b32 s{T+1}, hwreg(HW_REG_XCC_ID, 0, 4)\ns_mov_b64 exec, 1\nv_mov_b32 v48, s{T+1}")
        a(f"s_lshl_b32 s{T}, s{sI}, 3\ns_add_u32 s{T}, s{T}, s{sJ}\ns_lshl_b32 s{T}, s{T}, 4\ns_add_u32 s{T}, s{T}, {WS_XT}")
        a(f"buffer_store_dword v48, v{vL16}, s[{S_WS}:{S_WS+3}], s{T} offen sc1")
        a("s_mov_b64 exec, -1")
    if_wave_eq(a, w, body)

def init_arrive(a, w=3, pre="s_nop 0", tv=TV):
    L = a.label()
    a(f"s_cmp_lg_u32 s{sW}, {w}\ns_cbranch_scc1 {L}\n{pre}")
    a(f"v_mov_b32 v{tv}, 1\nv_mov_b32 v{tv+1}, 0\ns_and_b32 s{T}, s2, 63\ns_lshl_b32 s{T}, s{T}, 2\ns_mov_b64 exec, 1")
    a(f"buffer_atomic_add v{tv}, v{tv+1}, s[{S_DBG}:{S_DBG+3}], s{T} offen sc1")
    a(f"s_mov_b64 exec, -1\n{L}:")

def wait_init(a, vaddr):
    a(f"s_mov_b32 s{T+1}, {SPIN}")
    LP = a.label(); LD = a.label()
    a(f"{LP}:\nv_cmp_gt_u32 vcc, 4, v{TV+2}\ns_cbranch_vccz {LD}")
    a(f"buffer_load_dword v{TV+2}, v{vaddr}, s[{S_DBG}:{S_DBG+3}], 0 offen sc1\ns_waitcnt vmcnt(0)")
    a(f"s_sub_u32 s{T+1}, s{T+1}, 1\ns_cmp_lg_u32 s{T+1}, 0\ns_cbranch_scc1 {LP}")
    a(f"{LD}:\ns_mov_b64 exec, -1")

class VM:
    def __init__(self): self.ops = []
    def add(self, tag, n=1): self.ops += [tag]*n
    def need(self, *tags):
        last = max(k for k, t in enumerate(self.ops) if t in tags)
        return min(63, len(self.ops) - 1 - last)

vXD = 15
TAB = V + 5*8192
WS_ST2 = 12*MB + 512*1024
WS_CS = 13*MB

def x_dma(a, qs=range(8), fl="sc1"):
    X1 = 81
    a(f"s_lshl_b32 s{T}, s{sI}, 16\n" + (f"s_add_u32 s{T+1}, s{sW}, s{sJ}\ns_and_b32 s{T+1}, s{T+1}, 7\ns_lshl_b32 s{T+1}, s{T+1}, 10" if C.xrot else f"s_lshl_b32 s{T+1}, s{sW}, 10"))
    for q in qs:
        if not C.qrot:
            a(f"s_add_u32 m0, s{T+1}, {E + q*8192 - q*128}\ns_nop 0\nbuffer_load_dwordx4 v{vXD}, s[{S_XS}:{S_XS+3}], s{T} offen offset:{128*q} {fl} lds")
            continue
        if q % 2 == 0 or q == qs[0]: a(f"s_add_u32 s{X1}, s{sR2}, {q & 6}\ns_and_b32 s{X1}, s{X1}, 7\ns_lshl_b32 s{X1}, s{X1}, 7\ns_add_u32 s{X1}, s{X1}, s{T}")
        a(f"s_add_u32 m0, s{T+1}, {E + q*8192 - (q & 1)*128}\ns_nop 0")
        a(f"buffer_load_dwordx4 v{vXD}, s[{S_XS}:{S_XS+3}], s{X1} offen offset:{128*(q & 1)} {fl} lds")

def split_hi_lo(a, src, hi2, lo2, t, neg=False):
    if neg: a(f"v_sub_f32 v{src}, 0, v{src}")
    a(f"v_cvt_pk_bf16_f32 v{t}, v{src}, v{src}\nv_and_b32 v{t}, 0xffff0000, v{t}\nv_sub_f32 v{t+1}, v{src}, v{t}")

def own_stats(a, D, A, MUo, Ro, ADo):
    a(f"s_add_u32 s{T}, s{sW}, s{sJ}\ns_and_b32 s{T}, s{T}, 7" if C.xrot else f"s_mov_b32 s{T}, s{sW}")
    a(f"s_lshl_b32 s{T+1}, s{T}, 10\nv_add_u32 v{ADo}, s{T+1}, v{vL16}")
    for q in range(8): a(f"ds_read_b128 v[{D+4*q}:{D+4*q+3}], v{ADo} offset:{q*8192}")
    for r in range(4): a(f"v_mov_b32 v{A+r}, 0")
    a(f"v_mov_b32 v{A+4}, 0x3f803f80\ns_lshl_b32 s{T}, s{T}, 5\ns_add_u32 s{T}, s{T}, {TAB}\nv_lshrrev_b32 v{ADo}, 3, v{vL}\nv_lshlrev_b32 v{ADo}, 2, v{ADo}\nv_add_u32 v{ADo}, s{T}, v{ADo}")
    for q in range(8):
        a(f"s_waitcnt lgkmcnt({7-q})")
        for e in (0, 2):
            r = D+4*q+e
            a(f"v_dot2c_f32_bf16 v{A}, v{r}, v{A+4}\nv_dot2c_f32_bf16 v{A+2}, v{r}, v{r}\nv_dot2c_f32_bf16 v{A+1}, v{r+1}, v{A+4}\nv_dot2c_f32_bf16 v{A+3}, v{r+1}, v{r+1}")
    a(f"s_nop 2\nv_add_f32 v{MUo}, v{A}, v{A+1}\nv_add_f32 v{Ro}, v{A+2}, v{A+3}")
    dpp_red8(a, [MUo, Ro])
    a(f"v_mul_f32 v{MUo}, {f2u(1/512)}, v{MUo}\nv_mul_f32 v{Ro}, {f2u(1/512)}, v{Ro}")
    a(f"v_fma_f32 v{Ro}, -v{MUo}, v{MUo}, v{Ro}\nv_max_f32 v{Ro}, 0, v{Ro}\nv_add_f32 v{Ro}, {f2u(1e-5)}, v{Ro}\nv_rsq_f32 v{Ro}, v{Ro}")

def layer0_helpers(a):
    LJ = "L_p1_join"; LB = a.label()
    a(f"s_cmp_ge_u32 s{sW}, 6\ns_cbranch_scc1 {LB}")
    src, dst = T+2, T+3
    a(f"s_sub_u32 s{dst}, s{sW}, 4\ns_mul_i32 s{src}, s{dst}, {32*3072}\ns_lshl_b32 s{T}, s{sJ}, 7\ns_add_u32 s{src}, s{src}, s{T}")
    a(f"s_lshl_b32 s{dst}, s{dst}, 12\ns_add_u32 s{dst}, s{dst}, {V}")
    vm = VM()
    def unit(u):
        seg = qkv_row(a, T+1, src, u)
        for p in range(4):
            a(f"s_add_u32 m0, s{dst}, {qslot(u)*8192 + p*1024}\ns_add_u32 s{T}, s{T+1}, {seg + p*8*3072}")
            a(f"buffer_load_dwordx4 v{vWQ}, s[{S_QKV}:{S_QKV+3}], s{T} offen lds")
        vm.add(("w", u), 4)
    for u in range(C.h0first): unit(u)
    a(f"s_waitcnt vmcnt({4*C.h0first})")
    own_stats(a, 48, 80, 42, 44, 40)
    issued = C.h0first
    for u in range(C.h0second): unit(issued); issued += 1
    sched = [int(c) for c in C.hs0]
    for s in range(12):
        a(f"s_waitcnt vmcnt({vm.need(('w', 2*s+1))})" + (" lgkmcnt(0)" if s == 8 else "") + "\ns_barrier")
        if s == 7: a("ds_write_b32 v40, v42\nds_write_b32 v40, v44 offset:256")
        for _ in range(sched[s]):
            assert issued < 2*s + 12 and issued < 24
            unit(issued); issued += 1
        assert s == 11 or issued >= 2*s + 4
    assert issued == 24
    a(f"s_barrier\ns_branch {LJ}")
    a(f"{LB}:")
    init_sync(a, 7)
    if C.vtlb:
        def body():
            sh = C.vsh
            a(f"v_lshlrev_b32 v49, {sh}, v{vL}\ns_lshl_b32 s{T}, s2, 7")
            a(f"s_mov_b32 s{S_WS+2}, {hex(34*MB)}\nbuffer_load_dword v136, v49, s[{S_WS}:{S_WS+3}], s{T} offen\ns_mov_b32 s{S_WS+2}, {hex(SZ['ws'])}")
            for k, srd in enumerate((S_W1, S_W2, S_WO)): a(f"buffer_load_dword v{137+k}, v49, s[{srd}:{srd+3}], s{T} offen")
            a(f"buffer_load_dword v140, v49, s[{S_B1}:{S_B1+3}], 0 offen\nbuffer_load_dword v140, v49, s[{S_B2}:{S_B2+3}], 0 offen")
            a(f"v_and_b32 v50, 0x1fffff, v49\nglobal_load_dword v140, v50, s[{sOUT}:{sOUT+1}]")
        if_wave_eq(a, 6, body)
    L4 = a.label()
    a(f"s_waitcnt vmcnt({12 if C.sent else 4})\ns_cmp_eq_u32 s{sW}, 7\ns_cbranch_scc1 {L4}\ns_waitcnt vmcnt({7 if C.vtlb else 0})\n{L4}:")
    def w1touch(mask):
        a(f"s_lshl_b32 s{T}, s2, 1\ns_add_u32 s{T}, s{T}, s{sW}\ns_sub_u32 s{T}, s{T}, 6\ns_mul_i32 s{T+1}, s{T}, {112*128}\nv_min_u32 v49, 55, v{vL}\nv_lshlrev_b32 v49, 7, v49")
        if mask & 1: a(f"buffer_load_dword v141, v49, s[{S_W1}:{S_W1+3}], s{T+1} offen")
        if mask & 2: a(f"s_add_u32 s{T+1}, s{T+1}, {56*128}\nbuffer_load_dword v142, v49, s[{S_W1}:{S_W1+3}], s{T+1} offen")
        if mask & 4: a(f"s_lshl_b32 s{T+1}, s{T}, 10\nv_and_b32 v49, 0x380, v49\nbuffer_load_dword v143, v49, s[{S_WO}:{S_WO+3}], s{T+1} offen")
    if C.w1e == -1: w1touch(7 & ~C.w1mask)
    own_stats(a, 52, 84, 42, 43, 40)
    for s in range(12):
        if s == 8: a("s_waitcnt lgkmcnt(0)")
        a("s_barrier")
        if s == 7: a("ds_write_b32 v40, v42\nds_write_b32 v40, v43 offset:256")
        if s == C.arrs: init_arrive(a, 7, pre="s_waitcnt vmcnt(0)")
        if s == C.dbgs: a(f"v_lshlrev_b32 v41, 2, v{vL}\nbuffer_load_dword v{TV+2}, v41, s[{S_DBG}:{S_DBG+3}], 0 offen sc1")
        if s == C.w1t: w1touch(C.w1mask)
        if s == C.w1e: w1touch(7 & ~C.w1mask)
    assert C.w1t >= C.dbgs and C.w1e < C.dbgs
    a(f"s_waitcnt vmcnt({bin(C.w1mask).count('1') if C.w1t < 12 else 0})")
    if_wave_eq(a, 6, lambda: wait_init(a, 41))
    a("s_barrier")
    def pub():
        if C.lf: kl_publish(a)
        publish(a, "KV", sJ)
    if_wave_eq(a, 6, pub)
    a(f"s_branch {LJ}")

def helper_setup(a):
    src, dst = T+2, T+3
    a(f"s_sub_u32 s{dst}, s{sW}, 4\ns_mul_i32 s{src}, s{dst}, {16*3072}\ns_lshl_b32 s{T}, s{sJ}, 7\ns_add_u32 s{src}, s{src}, s{T}")
    a(f"s_lshl_b32 s{T}, s{dst}, 4\nv_lshrrev_b32 v40, 2, v{vL}\nv_add_u32 v40, s{T}, v40")
    a(f"s_lshl_b32 s{dst}, s{dst}, 11\ns_add_u32 s{dst}, s{dst}, {V}")

def helper_unit(a, u, vm):
    seg = qkv_row(a, T+1, T+2, u)
    for p in range(2):
        a(f"s_add_u32 m0, s{T+3}, {qslot(u)*8192 + p*1024}\ns_add_u32 s{T}, s{T+1}, {seg + p*8*3072}")
        a(f"buffer_load_dwordx4 v{vWQ}, s[{S_QKV}:{S_QKV+3}], s{T} offen lds")
    vm.add(("w", u), 2)

def helper_loop(a, layer, vm, issued, sched, LJ):
    ROW, S1, S2, G = 40, 42, 44, 48
    first = issued
    for s in range(12):
        tags = [t for t in [("x", s), ("w", 2*s+1)] if t in vm.ops]
        if s == 6 and layer == 1: tags.append("g")
        if tags: a(f"s_waitcnt vmcnt({vm.need(*tags)})")
        if s == 8: a("s_waitcnt lgkmcnt(0)")
        a("s_barrier")
        if s == 7: a(f"ds_write_b32 v{ROW}, v{S1}\nds_write_b32 v{ROW}, v{S2} offset:256")
        for _ in range(sched[s]):
            assert issued < 2*s + 12 and issued < 24
            helper_unit(a, issued, vm); issued += 1
        assert s == 11 or issued >= 2*s + 4
        if s == 6:
            if layer == 1: a(f"v_add_f32 v{S1}, v{G}, v{G+2}\nv_add_f32 v{S2}, v{G+1}, v{G+3}")
            for pat in ("quad_perm:[1,0,3,2]", "quad_perm:[2,3,0,1]"):
                a("s_nop 1")
                for r in (S1, S2): a(f"v_add_f32_dpp v{r}, v{r}, v{r} {pat} row_mask:0xf bank_mask:0xf")
            a(f"v_mul_f32 v{S1}, {f2u(1/512)}, v{S1}\nv_mul_f32 v{S2}, {f2u(1/512)}, v{S2}")
            a(f"v_fma_f32 v{S2}, -v{S1}, v{S1}, v{S2}\nv_max_f32 v{S2}, 0, v{S2}\nv_add_f32 v{S2}, {f2u(1e-5)}, v{S2}\nv_rsq_f32 v{S2}, v{S2}")
            a(f"v_lshlrev_b32 v{ROW}, 2, v{ROW}\nv_add_u32 v{ROW}, {TAB}, v{ROW}")
        if s == 8 and layer == 0:
            a(f"v_lshlrev_b32 v46, 2, v{vL}\nbuffer_load_dword v{TV+2}, v46, s[{S_DBG}:{S_DBG+3}], 0 offen sc1"); vm.add("dbg")
        if s == C.w1t and layer == 0:
            a(f"s_lshl_b32 s{T}, s2, 2\ns_add_u32 s{T}, s{T}, s{sW}\ns_sub_u32 s{T}, s{T}, 4\ns_mul_i32 s{T+1}, s{T}, {56*128}\nv_min_u32 v47, 55, v{vL}\nv_lshlrev_b32 v47, 7, v47")
            a(f"buffer_load_dword v142, v47, s[{S_W1}:{S_W1+3}], s{T+1} offen")
            a(f"s_lshl_b32 s{T+1}, s{T}, 9\nv_and_b32 v47, 0x180, v47\nbuffer_load_dword v143, v47, s[{S_WO}:{S_WO+3}], s{T+1} offen")
            vm.add("t", 2)
    assert issued == 24
    if layer == 0: a(f"s_waitcnt vmcnt({vm.need('dbg')})")
    def w4():
        if layer == 0: wait_init(a, 46)
        if C.lf: kl_publish(a)
        publish(a, "KV", sJ)
    if C.pub12:
        if layer == 0: if_wave_eq(a, 4, lambda: wait_init(a, 46))
        a("s_barrier")
        def w4b():
            if C.lf: kl_publish(a)
            publish(a, "KV", sJ)
        if_wave_eq(a, 4, w4b)
    else:
        if_wave_eq(a, 4, w4)
        a("s_barrier")
    a(f"s_branch {LJ}")

def x_start(a):
    a(f"s_mov_b32 s{sFL}, {WS_FLAG + 512*128}\ns_barrier")
    stamp(a, "p1.polled")
    if C.xp < 8:
        x_dma(a, range(C.xp)); a("s_barrier"); x_dma(a, range(C.xp, 8))
    else: x_dma(a)

def phase1(a):
    LC = "L_p1_cons"; LJ = "L_p1_join"
    a(f"s_cmp_lt_u32 s{sW}, 4\ns_cbranch_scc1 {LC}")
    helper_setup(a)
    a(f"v_and_b32 v41, 3, v{vL}\nv_lshlrev_b32 v41, 9, v41\nv_lshl_add_u32 v41, v40, 3, v41")
    if_wave_eq(a, 4, lambda: poll(a, "X", sI, 8))
    keep = C.stamp; C.stamp = False; x_start(a); C.stamp = keep
    a(f"s_lshl_b32 s{T}, s{sI}, 12\ns_add_u32 s{T}, s{T}, {WS_ST2}")
    a(f"buffer_load_dwordx2 v[48:49], v41, s[{S_WS}:{S_WS+3}], s{T} offen sc1\nbuffer_load_dwordx2 v[50:51], v41, s[{S_WS}:{S_WS+3}], s{T} offen offset:2048 sc1")
    vm = VM()
    for q in range(8): vm.add(("x", q))
    vm.add("g", 2)
    helper_loop(a, 1, vm, sum(int(c) for c in C.sch2), [int(c) for c in C.hs1], LJ)
    a(f"{LC}:")
    tt, ch = T+2, T+3
    a(f"s_and_b32 s{tt}, s{sW}, 1\ns_lshr_b32 s{ch}, s{sW}, 1")
    XA = 40
    a(f"v_and_b32 v44, 31, v{vL}\ns_lshl_b32 s{T}, s{tt}, 5\nv_add_u32 v44, s{T}, v44\nv_lshlrev_b32 v38, 2, v44\nv_add_u32 v38, {TAB}, v38")
    a(f"v_bfe_u32 v45, v{vL}, 1, 3\nv_lshrrev_b32 v46, 5, v{vL}\nv_xor_b32 v45, v45, v46\nv_lshlrev_b32 v45, 4, v45\nv_lshl_add_u32 v{XA}, v44, 7, v45")
    for m in range(1, 4): a(f"v_xor_b32 v{XA+m}, {32*m}, v{XA}")
    a(f"s_lshl_b32 s{T}, s{tt}, 7\ns_add_u32 s{T}, s{T}, {TAB+256}\nv_lshlrev_b32 v37, 4, v46\nv_add_u32 v37, s{T}, v37")
    WL, WH = 44, 45
    tr_addr(a, WL, f"s{ch}", False, 46, 47)
    a(f"v_add_u32 v{WL}, {V}, v{WL}\nv_add_u32 v{WH}, {6*8192}, v{WL}")
    AK, AV, AQ = 48, 64, 80
    CS, SEL = 24, 32
    SIX = 21
    a(f"v_lshrrev_b32 v46, 4, v{vL}\nv_xor_b32 v46, v46, v{vL}\nv_and_b32 v46, 2, v46\nv_and_b32 v47, 12, v{vL}\nv_or_b32 v46, v46, v47\nv_mov_b32 v47, 0x3f803f80")
    a(f"v_cmp_eq_u32 vcc, 0, v46\ns_nop 1\nv_cndmask_b32 v{SEL}, 0, v47, vcc\nv_cmp_eq_u32 vcc, 4, v46\nv_mov_b32 v{SEL+1}, v{SEL}\ns_nop 0\nv_cndmask_b32 v{SEL+2}, 0, v47, vcc\nv_mov_b32 v{SEL+3}, v{SEL+2}")
    a(f"v_and_b32 v46, 1, v{vL}\nv_mul_u32_u24 v46, 0xaaaa, v46\nv_or_b32 v{SIX}, 0x4444, v46\nv_lshl_add_u32 v{SIX}, v{SIX}, 16, v{SIX}")
    csoff = T+8
    a(f"s_lshl_b32 s{csoff}, s2, 2\ns_add_u32 s{csoff}, s{csoff}, s{sW}\ns_lshl_b32 s{csoff}, s{csoff}, 10\ns_add_u32 s{csoff}, s{csoff}, {WS_CS}")
    for r in range(8): a(f"v_mov_b32 v{CS+r}, 0")
    def fr(buf, n):
        if buf == 0: return ("a", n)
        return ("a", 64+n) if n < 48 else ("v", 96 + n - 48)
    def R(buf, n, w):
        p, b = fr(buf, n); return f"{p}[{b}:{b+w-1}]"
    def wslot(u):
        s = qslot(u)
        return (WL, s*8192) if s < 6 else (WH, (s-6)*8192)
    def rd(s):
        buf = s & 1; out = []
        if s < 8:
            for t in range(4):
                out.append(f"ds_read_b128 {R(buf, 12*t, 4)}, v{XA+t} offset:{8192*s}")
                for seg in range(2):
                    va, off = wslot(2*s+seg)
                    for e in range(2):
                        out.append(f"ds_read_b64_tr_b16 {R(buf, 12*t+4+4*seg+2*e, 2)}, v{va} offset:{off + t*2048 + e*512}")
        else:
            for t in range(8):
                out.append(f"ds_read_b128 {R(buf, 16*(t>>1)+4*(t&1), 4)}, v{XA+(t&3)} offset:{16384*(s-8) + (t>>2)*8192}")
                va, off = wslot(2*s + (t >> 2))
                for e in range(2):
                    out.append(f"ds_read_b64_tr_b16 {R(buf, 16*(t>>1)+8+4*(t&1)+2*e, 2)}, v{va} offset:{off + (t&3)*2048 + e*512}")
        return out
    def mf(s):
        buf = s & 1; out = []
        if s < 8:
            for t in range(4):
                z = s == 0 and t == 0
                out.append(f"v_mfma_f32_32x32x16_bf16 v[{AK}:{AK+15}], {R(buf, 12*t+4, 4)}, {R(buf, 12*t, 4)}, " + ("0" if z else f"v[{AK}:{AK+15}]"))
                out.append(f"v_mfma_f32_32x32x16_bf16 v[{AV}:{AV+15}], {R(buf, 12*t, 4)}, {R(buf, 12*t+8, 4)}, " + ("0" if z else f"v[{AV}:{AV+15}]"))
        else:
            for t in range(8):
                out.append(f"v_mfma_f32_32x32x16_bf16 v[{AQ}:{AQ+15}], {R(buf, 16*(t>>1)+8+4*(t&1), 4)}, {R(buf, 16*(t>>1)+4*(t&1), 4)}, " + ("0" if s == 8 and t == 0 else f"v[{AQ}:{AQ+15}]"))
        return out
    OOL = []
    def csum(s):
        buf = s & 1
        L = a.label("Lcs"); LR = a.label("Lcr")
        a(f"s_cbranch_vccnz {L}\n{LR}:")
        o = [f"{L}:"]
        if s < 8:
            for t in range(4): o.append(f"v_smfmac_f32_16x16x64_bf16 v[{CS}:{CS+3}], v[{SEL}:{SEL+3}], {R(buf, 12*t+4, 8)}, v{SIX}")
            if s == 6: o += ["ds_write_b32 v126, v124", "ds_write_b32 v126, v125 offset:256"]
            if s == 7: o += ["s_nop 7", f"v_add_f32 v{ST4}, v{CS}, v{CS+1}", f"v_add_f32 v{ST4+1}, v{CS+2}, v{CS+3}"]
        else:
            for p in range(4): o.append(f"v_smfmac_f32_16x16x64_bf16 v[{CS+4}:{CS+7}], v[{SEL}:{SEL+3}], {R(buf, 16*p+8, 8)}, v{SIX}")
            if s == 11: o += ["s_nop 7", f"v_add_f32 v{CS+4}, v{CS+4}, v{CS+5}", f"v_add_f32 v{CS+6}, v{CS+6}, v{CS+7}", f"v_add_f32 v{ST4+2}, v{CS+4}, v{CS+6}"]
        o.append(f"s_branch {LR}")
        OOL.append("\n".join(o))
    ST4 = 16
    def inter(m, r, per):
        per = max(per, -(-len(r)//len(m)))
        for x in range(len(m)):
            a(m[x])
            for y in r[x*per:(x+1)*per]: a(y)
    a(f"s_lshl_b32 s{T+4}, s{sI}, 1\ns_add_u32 s{T+4}, s{T+4}, s{tt}")
    a(f"s_lshl_b32 s{T+5}, s{sJ}, 2\ns_lshl_b32 s{T+6}, s{ch}, 1\ns_add_u32 s{T+5}, s{T+5}, s{T+6}")
    a(f"s_lshl_b32 s{T+5}, s{T+5}, 6\ns_add_u32 s{T+5}, s{T+5}, s{T+4}")
    a(f"s_lshl_b32 s{T+4}, s{T+5}, 11\ns_add_u32 s{T+4}, s{T+4}, s{sLB}\ns_add_u32 s{T+5}, s{T+4}, 131072")
    assert WS_KV == 0
    a(f"v_and_b32 v46, 0x33, v{vL}\nv_bfe_u32 v47, v{vL}, 2, 1\nv_lshl_add_u32 v46, v47, 3, v46\nv_bfe_u32 v47, v{vL}, 3, 1\nv_lshl_add_u32 v46, v47, 2, v46\nv_lshlrev_b32 v46, 4, v46")
    a(f"v_bfe_u32 v39, v{vL}, 4, 1\nv_lshlrev_b32 v47, 17, v39\nv_lshrrev_b32 v39, 5, v{vL}\nv_lshl_add_u32 v47, v39, 8, v47\nv_and_b32 v39, 15, v{vL}\nv_lshl_add_u32 v47, v39, 4, v47")
    Lx = a.label()
    a(f"s_cmp_eq_u32 s{sL}, 0\ns_cbranch_scc1 L_p1_stats0")
    x_start(a)
    a(f"{Lx}:")
    b = Asm(); b.n = 91000
    b("L_p1_stats0:\ns_waitcnt vmcnt(0)")
    stamp(b, "p1.xarr")
    own_stats(b, 48, 116, 124, 125, 126)
    b(f"s_branch {Lx}")
    OOL.append("\n".join(b.L))
    a(f"buffer_load_dwordx4 v[{ST4}:{ST4+3}], v{vL16}, s[{S_WS}:{S_WS+3}], s{csoff} offen sc1")
    a("s_waitcnt vmcnt(8)\ns_barrier")
    stamp(a, "p1.b0")
    for x in rd(0): a(x)
    P, RB, MU, RR = 112, 128, 36, 39
    def aug_w(seg, d):
        return [f"v_cvt_pk_bf16_f32 v{d}, v{ST4+seg}, v{ST4+seg}", f"v_and_b32 v{d+1}, 0xffff0000, v{d}", f"v_sub_f32 v{d+1}, v{ST4+seg}, v{d+1}", f"v_cvt_pk_bf16_f32 v{d+1}, v{d+1}, v{d+1}"]
    XM = 22
    a(f"s_cmp_eq_u32 s{sL}, 0\ns_cselect_b64 vcc, -1, 0")
    def waitbar(s):
        vmw = f"vmcnt({7-s}) " if s < 7 else ("vmcnt(0) " if s == 7 or (s == 10 and not C.pub12) else "")
        a(f"s_waitcnt {vmw}lgkmcnt(0)\ns_barrier")
        stamp(a, f"zq.{s+1:02d}")
    waitbar(0)
    for s in range(12):
        m = mf(s)
        r = rd(s+1) if s < 11 else []
        csum(s)
        if s == 7:
            tab = [f"ds_read_b32 v{MU}, v38", f"ds_read_b32 v{RR}, v38 offset:256"] + [f"ds_read_b128 v[{RB+4*k}:{RB+4*k+3}], v37 offset:{32*k}" for k in range(4)]
            mk = m[0::2]; mv = m[1::2]
            aw = aug_w(0, 24) + aug_w(1, 26)
            xm = [f"v_sub_f32 v{MU}, 0, v{MU}", f"v_cvt_pk_bf16_f32 v{XM}, v{MU}, v{MU}", f"v_and_b32 v{XM+1}, 0xffff0000, v{XM}", f"v_sub_f32 v{XM+1}, v{MU}, v{XM+1}", f"v_cvt_pk_bf16_f32 v{XM}, v{MU}, v{XM+1}", f"v_mov_b32 v{XM+1}, v{XM}"]
            a(mk[0]); [a(x) for x in tab]
            a(mk[1]); [a(x) for x in aw[:4] + r[:3]]
            a(mk[2]); [a(x) for x in aw[4:] + r[3:6]]
            a(mk[3]); a("s_waitcnt lgkmcnt(10)"); [a(x) for x in xm]
            a(mv[0]); [a(x) for x in r[6:9]]
            a(f"v_mfma_f32_32x32x8_bf16 v[{AK}:{AK+15}], v[24:25], v[{XM}:{XM+1}], v[{AK}:{AK+15}]"); [a(x) for x in r[9:14]]
            a(mv[1]); [a(x) for x in r[14:19]]
            a(mv[2]); [a(x) for x in r[19:24]]
            a(mv[3])
            for k in range(10): a(f"v_mul_f32 v{AK+k}, v{AK+k}, v{RR}")
            a(f"v_mfma_f32_32x32x8_bf16 v[{AV}:{AV+15}], v[{XM}:{XM+1}], v[26:27], v[{AV}:{AV+15}]")
            for k in range(10, 16): a(f"v_mul_f32 v{AK+k}, v{AK+k}, v{RR}")
            for k in range(8): a(f"v_cvt_pk_bf16_f32 v{P+k}, v{AK+2*k}, v{AK+2*k+1}")
            a(f"buffer_store_dwordx4 v[{P}:{P+3}], v46, s[{S_WS}:{S_WS+3}], s{T+4} offen sc1")
            a(f"buffer_store_dwordx4 v[{P+4}:{P+7}], v46, s[{S_WS}:{S_WS+3}], s{T+5} offen sc1")
            a("s_waitcnt lgkmcnt(15)")
            for k in range(16): a(f"v_mul_f32 v{AV+k}, v{AV+k}, v{RB+k}")
            for k in range(8): a(f"v_cvt_pk_bf16_f32 v{P+8+k}, v{AV+2*k}, v{AV+2*k+1}")
            a(f"buffer_store_dwordx4 v[{P+8}:{P+11}], v47, s[{S_WS}:{S_WS+3}], s{T+4} offen offset:1024 sc1")
            a(f"buffer_store_dwordx4 v[{P+12}:{P+15}], v47, s[{S_WS}:{S_WS+3}], s{T+4} offen offset:1536 sc1")
            stamp(a, "p1.kvst")
            waitbar(8)
        elif s < 11:
            e = C.early
            per = -(-len(r)//min(e, 5))
            for x in range(8):
                a(m[x])
                for y in r[x*per:(x+1)*per]: a(y)
                if x == e: waitbar(s+1) if s < 10 else a("s_waitcnt vmcnt(0) lgkmcnt(0)\ns_barrier")
        else:
            aw = aug_w(2, 24)
            a(m[0])
            a(f"s_lshl_b32 s{T+6}, s{ch}, 12\ns_lshl_b32 s{T+7}, s{tt}, 10\ns_add_u32 s{T+6}, s{T+6}, s{T+7}\ns_add_u32 s{T+6}, s{T+6}, {QX}\nv_add_u32 v46, s{T+6}, v{vL16}")
            a(m[1]); [a(x) for x in aw]
            a(f"v_mul_f32 v{RR}, {f2u(0.25*1.4426950408889634)}, v{RR}")
            for x in m[2:]: a(x)
    stamp(a, "p1.mfma")
    a("s_nop 9")
    a(f"v_mfma_f32_32x32x8_bf16 v[{AQ}:{AQ+15}], v[24:25], v[{XM}:{XM+1}], v[{AQ}:{AQ+15}]")
    a(f"buffer_store_dwordx4 v[{ST4}:{ST4+3}], v{vL16}, s[{S_WS}:{S_WS+3}], s{csoff} offen sc1")
    a("s_nop 10")
    for r in range(16): a(f"v_mul_f32 v{AQ+r}, v{AQ+r}, v{RR}")
    for r in range(8): a(f"v_cvt_pk_bf16_f32 v{P+r}, v{AQ+2*r}, v{AQ+2*r+1}")
    a(f"ds_write_b128 v46, v[{P}:{P+3}]\nds_write_b128 v46, v[{P+4}:{P+7}] offset:2048")
    a(f"{LJ}:")
    return OOL

hh, kh, head, kvs, w1s, w1c, wos, tch, ring, kro, kfa = T+2, T+3, T+4, T+5, T+6, T+7, T+8, T+9, T+10, T+11, T+12
TD, VA_, IDX, TA, vF1, vWO, SGA, Q, S, O, KR, VR = 16, 18, 19, 20, 21, 22, 23, 24, [32, 48], [80, 64], 96, 112
ost, osrc, cgive, ctake = 88, 90, 92, 93
CST = E + 33792
CMB = E + 37888

def wo_reads():
    o = []
    for t in range(8):
        for y in range(2):
            b = 80 + 8*t + 4*y
            o += [f"ds_read_b64_tr_b16 v[{b}:{b+1}], v{20+2*y} offset:{t*2048}", f"ds_read_b64_tr_b16 v[{b+2}:{b+3}], v{20+2*y} offset:{t*2048+1024}"]
    return o

def phase2(a):
    t0, t1 = S[0], S[0]+1
    a(f"s_and_b32 s{hh}, s{sW}, 3\ns_lshr_b32 s{kh}, s{sW}, 2\ns_lshl_b32 s{head}, s{sJ}, 2\ns_add_u32 s{head}, s{head}, s{hh}")
    a(f"s_lshl_b32 s{kvs}, s{head}, 17\ns_lshl_b32 s{T}, s{kh}, 11\ns_add_u32 s{kvs}, s{kvs}, s{T}\ns_add_u32 s{kvs}, s{kvs}, s{sLB}")
    a(f"s_lshr_b32 s{kro}, s{sI}, 2\ns_lshl_b32 s{kro}, s{kro}, 14")
    a(f"s_lshl_b32 s{ring}, s{sW}, 12")
    Lk = a.label()
    a(f"s_cmp_lt_u32 s{sW}, 4\ns_cbranch_scc1 {Lk}")
    a(f"v_and_b32 v{t0}, 3, v{vL}\nv_cmp_eq_u32 vcc, 1, v{t0}\nv_mov_b32 v{t1}, 0x3f803f80\ns_nop 0\nv_cndmask_b32 v{t0+4}, 0, v{t1}, vcc")
    a(f"v_mov_b32 v{t0+5}, v{t0+4}\nv_mov_b32 v{t0+6}, v{t0+4}\nv_mov_b32 v{t0+7}, v{t0+4}")
    a(f"s_lshl_b32 s{T}, s{sW}, 10\ns_add_u32 s{T}, s{T}, {CST - 4096}\nv_add_u32 v{t0}, s{T}, v{vL16}\nds_write_b128 v{t0}, v[{t0+4}:{t0+7}]")
    if C.lf: if_wave_eq(a, 5, lambda: kl_poll(a))
    else: if_wave_eq(a, 5, lambda: poll(a, "KV", sJ, 32))
    a(f"{Lk}:")
    def post_setup():
        a(f"v_lshrrev_b32 v{t0}, 5, v{vL}\nv_lshlrev_b32 v{VA_}, 8, v{t0}\nv_and_b32 v{t0}, 15, v{vL}\nv_lshl_add_u32 v{VA_}, v{t0}, 4, v{VA_}\nv_add_u32 v{VA_}, s{ring}, v{VA_}\nv_add_u32 v{VA_}, 1024, v{VA_}")
        a(f"v_add_u32 v{t1}, 4, v{t0}\nv_and_b32 v{t1}, 8, v{t1}\nv_lshlrev_b32 v{t1}, 3, v{t1}\nv_add_u32 v{t1}, {CST}, v{t1}")
        a(f"v_and_b32 v{t0}, 11, v{vL}\nv_cmp_eq_u32 vcc, 0, v{t0}\nv_add_u32 v{t0}, 16, v{t1}\ns_nop 0\nv_cndmask_b32 v{t1}, v{t1}, v{t0}, vcc")
        a(f"v_and_b32 v{t0}, 16, v{vL}\nv_cmp_eq_u32 vcc, 0, v{t0}\ns_nop 1\nv_cndmask_b32 v{VA_}, v{t1}, v{VA_}, vcc")
        a(f"v_mov_b32 v{IDX}, 0xdddddddd\ns_mov_b32 s94, 0xffff\ns_mov_b32 s95, 0xffff")
        for r in range(32): a(f"v_mov_b32 v{64+r}, 0")
        if C.skip7: a(f"s_cmp_ge_u32 s{sI}, 28\ns_cselect_b32 s{S_W1+2}, 0, s{S_W1+2}")
        a(f"s_cmp_lg_u32 s{sL}, 0\ns_cselect_b32 s{S_QKV+2}, 0, s{S_QKV+2}")
        a(f"s_lshr_b32 s{w1s}, s{sW}, 1\ns_mul_i32 s{w1s}, s{w1s}, {512*3584}\ns_lshl_b32 s{T}, s{sI}, 7\ns_add_u32 s{w1s}, s{w1s}, s{T}")
        a(f"s_and_b32 s{T+1}, s{sW}, 1\ns_lshl_b32 s{T+1}, s{T+1}, 6\ns_add_u32 s{w1s}, s{w1s}, s{T+1}\ns_sub_u32 s{w1s}, s{w1s}, {16*3584}")
        if C.tmix:
            a(f"s_lshl_b32 s{tch}, s{sJ}, 2\ns_and_b32 s{T+1}, s{sI}, 3\ns_add_u32 s{tch}, s{tch}, s{T+1}\ns_lshl_b32 s{tch}, s{tch}, 3\ns_add_u32 s{tch}, s{tch}, s{sW}\ns_mul_i32 s{tch}, s{tch}, {7*4096}")
            a(f"s_lshr_b32 s{T+1}, s{sI}, 2\ns_lshl_b32 s{T+1}, s{T+1}, 9\ns_add_u32 s{tch}, s{tch}, s{T+1}")
            a(f"v_lshrrev_b32 v{TA}, 2, v{vL}\nv_lshlrev_b32 v{TA}, 12, v{TA}\nv_and_b32 v{t1}, 3, v{vL}\nv_lshl_add_u32 v{TA}, v{t1}, 7, v{TA}")
        else:
            a(f"s_lshl_b32 s{tch}, s{sJ}, 3\ns_add_u32 s{tch}, s{tch}, s{sW}\ns_mul_i32 s{tch}, s{tch}, {28*4096}\ns_add_u32 s{tch}, s{tch}, s{T}")
            a(f"v_lshlrev_b32 v{TA}, 12, v{vL}")
        a(f"v_cmp_gt_u32 vcc, 28, v{vL}\nv_mov_b32 v{t1}, 0x40000000\ns_nop 0\nv_cndmask_b32 v{TA}, v{t1}, v{TA}, vcc")
        a(f"s_lshl_b32 s{wos}, s{sW}, 13\ns_lshl_b32 s{T}, s{sJ}, 7\ns_add_u32 s{wos}, s{wos}, s{T}")
        a(f"s_lshl_b32 s{T}, s{hh}, 11\ns_add_u32 s{T}, s{T}, {QX}\nv_add_u32 v{t1}, s{T}, v{vL16}\nv_subrev_u32 v{SGA}, {SVO}, v{vTRF}")
        a(f"v_lshrrev_b32 v{t0+2}, 2, v{vL}\nv_and_b32 v{t0+3}, 3, v{vL}\nv_lshlrev_b32 v{t0+3}, 4, v{t0+3}\nv_mul_u32_u24 v{vF1}, 3584, v{t0+2}\nv_add_u32 v{vF1}, v{vF1}, v{t0+3}")
        a(f"v_lshrrev_b32 v{t0+2}, 3, v{vL}\nv_lshlrev_b32 v{t0+2}, 11, v{t0+2}\nv_sub_u32 v{vWO}, v{vWQ}, v{t0+2}")
        if C.lf: flag_addr(a, "KV", kfa)
    a("s_waitcnt lgkmcnt(0)\ns_barrier")
    stamp(a, "p2.start")
    vm = VM()
    kcur = T+13
    assert C.lfi < C.lfc
    GP = 128
    def kv_issue(t):
        k = KR + 4*(t & 3)
        if t % 4 == 0: a(f"s_add_u32 s{kcur}, s{kvs}, s{kro}\ns_add_u32 s{kro}, s{kro}, 16384\ns_and_b32 s{kro}, s{kro}, {'0x3fff' if C.kvsame else '0x1ffff'}")
        else: a(f"s_addk_i32 s{kcur}, 4096")
        a(f"s_add_u32 m0, s{ring}, {(t & 3)*1024}")
        a(f"buffer_load_dwordx4 v[{k}:{k+3}], v{vL16}, s[{S_WS}:{S_WS+3}], s{kcur} offen sc1{' nt' if C.ntkv else ''}")
        a(f"buffer_load_dwordx4 v{vL16}, s[{S_WS}:{S_WS+3}], s{kcur} offen offset:1024 sc1{' nt' if C.ntkv else ''} lds")
        vm.add(("kv", t), 2)
    def v_read(t):
        v = VR + 8*(t & 1)
        msk = C.vmask and t >= 2
        if msk: a(f"s_mov_b64 exec, s[94:95]")
        a(f"ds_read_b128 v[{v}:{v+3}], v{VA_} offset:{(t & 3)*1024}\nds_read_b128 v[{v+4}:{v+7}], v{VA_} offset:{(t & 3)*1024 + 512}")
        if msk: a("s_mov_b64 exec, -1")
    def w1_issue(f):
        if f % 4 == 0:
            a(f"s_add_u32 s{w1c}, s{sJR}, {f//4}\ns_and_b32 s{w1c}, s{w1c}, 7\ns_mul_i32 s{w1c}, s{w1c}, {64*3584}\ns_add_u32 s{w1c}, s{w1c}, s{w1s}")
        a(f"s_add_u32 m0, s{sVW}, {STG - V + (f & 3)*8192}\ns_add_u32 s{w1c}, s{w1c}, {16*3584}")
        a(f"buffer_load_dwordx4 v{vF1}, s[{S_W1}:{S_W1+3}], s{w1c} offen{' nt' if C.w1nt else ''} lds")
        vm.add(("w1", f))
    def wo_issue(u):
        a(f"s_add_u32 m0, s{sVW}, {SVO + u*8192}\ns_add_u32 s{T}, s{wos}, {u*65536}")
        a(f"buffer_load_dwordx4 v{vWO}, s[{S_WO}:{S_WO+3}], s{T} offen lds")
        vm.add(("wo", u))
    def touch(n):
        a(f"s_cmp_eq_u32 s{sJ}, {n}\ns_cselect_b32 s{T}, s{tch}, 0x40000000")
        a(f"buffer_load_dword v{TD}, v{TA}, s[{S_W2}:{S_W2+3}], s{T} offen")
        vm.add(("t", n))
    def ex(s, r0, r1):
        for r in range(r0, r1): a(f"v_exp_f32 v{s+r}, v{s+r}")
    def setprio(p):
        L = a.label()
        a(f"s_cmp_lg_u32 s{kh}, 0\ns_cbranch_scc1 {L}\ns_setprio {p}\n{L}:")
    def qk(q, t): a(f"v_mfma_f32_32x32x16_bf16 v[{S[q]}:{S[q]+15}], v[{KR+4*(t&3)}:{KR+4*(t&3)+3}], v[{Q+4*q}:{Q+4*q+3}], 0")
    def pv(q, t, h): a(f"v_smfmac_f32_32x32x32_bf16 v[{O[q]}:{O[q]+15}], v[{VR+8*(t&1)+4*h}:{VR+8*(t&1)+4*h+3}], v[{S[q]+8*h}:{S[q]+8*h+7}], v{IDX}")
    kv_issue(0); kv_issue(1)
    post_setup()
    a(f"s_lshl_b32 s{T}, s{kh}, 10\nv_add_u32 v{t1}, s{T}, v{t1}\nv_xor_b32 v{t0}, 1024, v{t1}")
    a(f"ds_read_b128 v[{Q}:{Q+3}], v{t0}\nds_read_b128 v[{Q+4}:{Q+7}], v{t1}")
    a(f"s_lshl_b32 s{ost}, s{sI}, 1\ns_add_u32 s{ost}, s{ost}, s{kh}\ns_lshl_b32 s{ost}, s{ost}, 5\ns_add_u32 s{ost}, s{ost}, s{head}\ns_lshl_b32 s{ost}, s{ost}, 10")
    a(f"s_add_u32 s{ost}, s{ost}, {WS_O}\ns_add_u32 s{ost}, s{ost}, s{sLB}")
    a(f"s_and_b32 s{osrc}, s{sW}, 1\ns_lshl_b32 s{osrc}, s{osrc}, 15\ns_lshr_b32 s{T}, s{sW}, 1\ns_lshl_b32 s{T}, s{T}, 13\ns_add_u32 s{osrc}, s{osrc}, s{T}")
    a(f"s_lshl_b32 s{T}, s{sI}, 16\ns_add_u32 s{osrc}, s{osrc}, s{T}\ns_add_u32 s{osrc}, s{osrc}, {WS_O}\ns_add_u32 s{osrc}, s{osrc}, s{sLB}\ns_add_u32 s{osrc+1}, s{osrc}, 4096")
    a(f"s_mul_i32 s{cgive}, s{sW}, 3072\ns_add_u32 s{cgive}, s{cgive}, {CMB}\ns_xor_b32 s{ctake}, s{sW}, 4\ns_mul_i32 s{ctake}, s{ctake}, 3072\ns_add_u32 s{ctake}, s{ctake}, {CMB}")
    tr_addr(a, 131, "0", True, 132, 133)
    a(f"s_lshr_b32 s{T}, s{sW}, 1\ns_lshl_b32 s{T}, s{T}, 14\ns_add_u32 s{T}, s{T}, {V+SVO}\nv_add_u32 v131, s{T}, v131")
    if C.prio: a("s_setprio 1")
    a(f"s_waitcnt vmcnt(2) lgkmcnt(0)")
    qk(0, 0)
    v_read(0)
    kv_issue(2); kv_issue(3)
    a(f"s_lshr_b32 s{T}, s{sI}, 2\ns_lshl_b32 s{T}, s{T}, 9\ns_add_u32 s{T}, s{T}, {WS_XT}\nv_and_b32 v17, 0x1f0, v{vL16}")
    a(f"buffer_load_dword v17, v17, s[{S_WS}:{S_WS+3}], s{T} offen sc1"); vm.add("xt")
    if C.c3:
        a(f"s_lshr_b32 s{T}, s2, 3\ns_lshl_b32 s{T}, s{T}, 3\ns_add_u32 s{T}, s{T}, s{sW}\ns_lshl_b32 s{T+1}, s{T}, 11\ns_add_u32 s{T+1}, s{T+1}, 384")
        a(f"v_min_u32 v{GP+1}, 1, v{vL}\nv_lshlrev_b32 v{GP+1}, 10, v{GP+1}\nbuffer_load_dword v{GP+1}, v{GP+1}, s[{S_WO}:{S_WO+3}], s{T+1} offen")
        a(f"s_mul_i32 s{T}, s{T}, {8*3584}\ns_or_b32 s{T+1}, s{sI}, 3\ns_lshl_b32 s{T+1}, s{T+1}, 7\ns_add_u32 s{T}, s{T}, s{T+1}")
        a(f"v_min_u32 v{GP+2}, 7, v{vL}\nv_mul_u32_u24 v{GP+2}, 3584, v{GP+2}\nbuffer_load_dword v{GP+2}, v{GP+2}, s[{S_W1}:{S_W1+3}], s{T} offen")
        vm.add("c3", 2)
    stamp(a, "p2.kv0")
    a("s_nop 1")
    per = C.pper; low = C.plow
    m1, m2, m3 = [int(c, 16) for c in C.mp]; cp = min(max(C.cpos, m2), m3); assert m1 >= 2 and m3 >= 10
    for t in range(32):
        for q in range(2):
            hidx = 2*t + q
            if C.prio and hidx % per == 0: setprio(2)
            if C.prio and hidx % per == per - low: setprio(0)
            ex(S[q], 0, m1)
            if q == 0:
                if t > 0: pv(1, t-1, 1)
            else: pv(0, t, 1)
            ex(S[q], m1, m2)
            nq = len(a.L)
            if q == 0:
                qk(1, t)
                ex(S[q], m2, cp)
                need = [("kv", t+1)] if t < 31 else []
                if not C.nox and 3 <= t < 31: need.append(("w1", t-3))
                if C.lf and t == C.lfc: need.append("gp")
                a(f"s_waitcnt vmcnt({vm.need(*need) if need else 63}) lgkmcnt(0)")
                if C.lf and t == C.lfi: apoll_issue(a, kfa, GP); vm.add("gp")
                if C.lf and t == C.lfc:
                    apoll_check(a, kfa, GP, 32)
                    for k in range(4, t+4): kv_issue(k)
                if t+4 < 32 and not (C.lf and t < C.lfc): kv_issue(t+4)
                if t+1 < 32: v_read(t+1)
                if not C.nox and not C.split:
                    w1_issue(t)
                    if 3 <= t < 31:
                        for x in frag_reads(f"a{4*(t-3)}", SGA, ((t-3) & 3)*8192): a(x)
            else:
                if t < 31: qk(0, t+1)
                ex(S[q], m2, cp)
                if not C.nox:
                    if C.split:
                        w1_issue(t)
                        if 3 <= t < 31:
                            for x in frag_reads(f"a{4*(t-3)}", SGA, ((t-3) & 3)*8192): a(x)
                    if t == C.prett and C.preto:
                        a(f"buffer_load_dword v{TD}, v{vL16}, s[{S_WS}:{S_WS+3}], s{ost} offen sc1")
                        vm.add("pre")
                        if C.prets:
                            a(f"s_lshl_b32 s{T}, s{sI}, 3\ns_add_u32 s{T}, s{T}, s{sJ}\ns_lshl_b32 s{T}, s{T}, 10\ns_add_u32 s{T}, s{T}, {WS_ST}\ns_add_u32 s{T}, s{T}, s{sLB}")
                            a(f"buffer_load_dword v{TD}, v{vL16}, s[{S_WS}:{S_WS+3}], s{T} offen sc1")
                            vm.add("pre2")
                    if t % 3 == 1 and t < 24: wo_issue(t//3)
                    if t == 8: a(f"v_readfirstlane_b32 s{T}, v17\ns_nop 1\nv_cmp_ne_u32 vcc, s{T}, v17\ns_nop 1\ns_cmp_eq_u64 vcc, 0\ns_cselect_b32 s{sLOC}, 1, 0")
                    if t % 4 == 3 and C.stouch == 1: touch(t//4)
                    if t % 3 == 2 and t < 24 and C.stouch == 2: touch(t//3)
                    if t == C.t2:
                        a(f"buffer_load_dword v{TD}, v{TA}, s[{S_W2}:{S_W2+3}], s{tch} offen{' nt' if C.w2nt else ''}"); vm.add("t2")
            ex(S[q], cp, m3)
            pv(q, t, 0)
            if t == 31 and q == 1:
                a(f"s_mov_b32 m0, s{cgive}\nv_mov_b32 v20, v131\nv_xor_b32 v22, 64, v131")
                for r in range(9): a(f"ds_write_addtid_b32 v{O[0]+r} offset:{256*r}")
            ex(S[q], m3, 16)
            gap = sum(1 for x in a.L[nq+1:] if not x.endswith(':'))
            if gap < 12: a(f's_nop {11 - gap}')
    a("s_nop 1")
    pv(1, 31, 1)
    if C.prio: a("s_setprio 0")
    stamp(a, "p2.loop")
    M, N = O[1], 36
    assert C.nox or vm.need(("wo", 7)) >= vm.need(("kv", 31))
    a(f"s_mov_b32 m0, s{ctake}\ns_waitcnt lgkmcnt(0)\ns_barrier")
    stamp(a, "zc.cmb")
    for r in range(9): a(f"ds_read_addtid_b32 v{N+r} offset:{256*r}")
    wr_ = wo_reads()
    for x in wr_[:6]: a(x)
    a("s_waitcnt lgkmcnt(6)")
    for r in range(9): a(f"v_add_f32 v{M+r}, v{M+r}, v{N+r}")
    for x in wr_[6:C.wo1]: a(x)
    a(f"v_add_f32 v{N}, abs(v{M}), abs(v{M+1})\nv_add_f32 v{N+1}, abs(v{M+2}), abs(v{M+3})\nv_add_f32 v{N+2}, abs(v{M+4}), abs(v{M+5})\nv_add_f32 v{N+3}, abs(v{M+6}), abs(v{M+7})")
    a(f"v_add_f32 v{N}, v{N}, v{N+1}\nv_add_f32 v{N+2}, v{N+2}, v{N+3}\nv_cmp_nge_f32 vcc, {f2u(2.0**60)}, v{M+8}\nv_add_f32 v{N}, v{N}, v{N+2}")
    a(f"s_mov_b64 s[{T+12}:{T+13}], vcc\nv_cmp_nle_f32 vcc, {f2u(2.0**-60)}, v{M+8}\ns_nop 0\ns_or_b64 s[{T+12}:{T+13}], s[{T+12}:{T+13}], vcc")
    a(f"v_cmp_ngt_f32 vcc, 0x7f800000, v{N}\ns_nop 0\ns_or_b64 s[{T+12}:{T+13}], s[{T+12}:{T+13}], vcc\ns_cbranch_scc1 L_softmax_safe\nL_softmax_done:")
    a(f"v_rcp_f32 v{M+8}, v{M+8}\ns_nop 0")
    for r in range(8): a(f"v_mul_f32 v{M+r}, v{M+r}, v{M+8}")
    for r in range(4): a(f"v_cvt_pk_bf16_f32 v{N+r}, v{M+2*r}, v{M+1+2*r}")
    if C.sent:
        for r in range(4): a(f"v_min_u32 v{N+r}, -2, v{N+r}")
    rstore(a, f"buffer_store_dwordx4 v[{N}:{N+3}], v{vL16}, s[{S_WS}:{S_WS+3}], s{ost} offen", bulk=not C.ldo)
    for x in wr_[C.wo1:]: a(x)

def softmax_safe(a):
    M = O[1]
    QF, KF, VF, SS, CC, OO, MX, VO = Q+4, 104, 108, 48, 80, 120, 116, 117
    base, cur, n = T+12, T+13, T+14
    a("L_softmax_safe:")
    a("s_waitcnt lgkmcnt(0)")
    a(f"s_lshl_b32 s{base}, s{head}, 17\ns_add_u32 s{base}, s{base}, s{sLB}")
    a(f"v_mov_b32 v{MX}, 0xff800000\ns_mov_b32 s{cur}, s{base}\ns_mov_b32 s{n}, 64")
    L1 = a.label()
    a(f"{L1}:")
    a(f"buffer_load_dwordx4 v[{KF}:{KF+3}], v{vL16}, s[{S_WS}:{S_WS+3}], s{cur} offen sc1\ns_waitcnt vmcnt(0)")
    a(f"v_mfma_f32_32x32x16_bf16 v[{SS}:{SS+15}], v[{KF}:{KF+3}], v[{QF}:{QF+3}], 0\ns_nop 15")
    for r in range(0, 16, 2): a(f"v_max3_f32 v{MX}, v{MX}, v{SS+r}, v{SS+r+1}")
    a(f"s_add_u32 s{cur}, s{cur}, 2048\ns_sub_u32 s{n}, s{n}, 1\ns_cmp_lg_u32 s{n}, 0\ns_cbranch_scc1 {L1}")
    a(f"v_mov_b32 v{VO}, v{MX}\ns_nop 1\nv_permlane32_swap_b32 v{MX}, v{VO}\ns_nop 1\nv_max_f32 v{MX}, v{MX}, v{VO}")
    for r in range(16): a(f"v_sub_f32 v{CC+r}, 0, v{MX}\nv_mov_b32 v{OO+r}, 0")
    for r in range(8): a(f"v_mov_b32 v{VF+r}, 0x3f803f80")
    a(f"v_lshrrev_b32 v{MX}, 5, v{vL}\nv_lshlrev_b32 v{VO}, 8, v{MX}\nv_and_b32 v{MX}, 15, v{vL}\nv_lshl_add_u32 v{VO}, v{MX}, 4, v{VO}")
    a(f"s_mov_b32 s{cur}, s{base}\ns_mov_b32 s{n}, 64")
    L2 = a.label()
    a(f"{L2}:")
    a(f"buffer_load_dwordx4 v[{KF}:{KF+3}], v{vL16}, s[{S_WS}:{S_WS+3}], s{cur} offen sc1")
    a("s_mov_b32 exec_lo, 0xffff\ns_mov_b32 exec_hi, 0xffff")
    a(f"buffer_load_dwordx4 v[{VF}:{VF+3}], v{VO}, s[{S_WS}:{S_WS+3}], s{cur} offen offset:1024 sc1")
    a(f"buffer_load_dwordx4 v[{VF+4}:{VF+7}], v{VO}, s[{S_WS}:{S_WS+3}], s{cur} offen offset:1536 sc1")
    a("s_mov_b64 exec, -1\ns_waitcnt vmcnt(0)")
    a(f"v_mfma_f32_32x32x16_bf16 v[{SS}:{SS+15}], v[{KF}:{KF+3}], v[{QF}:{QF+3}], v[{CC}:{CC+15}]\ns_nop 15")
    for r in range(16): a(f"v_exp_f32 v{SS+r}, v{SS+r}")
    a("s_nop 1")
    a(f"v_smfmac_f32_32x32x32_bf16 v[{OO}:{OO+15}], v[{VF}:{VF+3}], v[{SS}:{SS+7}], v{IDX}")
    a(f"v_smfmac_f32_32x32x32_bf16 v[{OO}:{OO+15}], v[{VF+4}:{VF+7}], v[{SS+8}:{SS+15}], v{IDX}\ns_nop 15")
    a(f"s_add_u32 s{cur}, s{cur}, 2048\ns_sub_u32 s{n}, s{n}, 1\ns_cmp_lg_u32 s{n}, 0\ns_cbranch_scc1 {L2}")
    for r in range(9): a(f"v_mov_b32 v{M+r}, v{OO+r}")
    for x in wo_reads()[:C.wo1]: a(x)
    a("s_branch L_softmax_done")

EOFF = 61692
def ep2_writes(acc, base, sw4k):
    off = EOFF if base >= EOFF else 0
    o = [f"ds_write_addtid_b32 v{acc+r} offset:{off + r*256}" for r in range(16)]
    o[0] = f"s_add_u32 m0, s{sw4k}, {base - off}\ns_nop 0\n" + o[0]
    return o

def ep2_read_addr(a, ra, base0, base1, sw4k, tv):
    a(f"s_and_b32 s{T}, s{sW}, 1\ns_lshl_b32 s{T}, s{T}, 2\ns_lshr_b32 s{T+1}, s{sW}, 1\ns_add_u32 s{T}, s{T}, s{T+1}\ns_lshl_b32 s{sw4k}, s{T}, 12")
    a(f"s_lshr_b32 s{T}, s{sW}, 2\ns_lshl_b32 s{T}, s{T}, 14\ns_and_b32 s{T+1}, s{sW}, 3\ns_lshl_b32 s{T+1}, s{T+1}, 10\ns_add_u32 s{T}, s{T}, s{T+1}\ns_add_u32 s{T}, s{T}, {base0}")
    a(f"v_and_b32 v{tv}, 3, v{vN}\nv_lshlrev_b32 v{ra}, 8, v{tv}\nv_bfe_u32 v{tv}, v{vN}, 2, 1\nv_lshl_add_u32 v{ra}, v{tv}, 7, v{ra}\nv_and_b32 v{tv}, 3, v{vC}\nv_lshl_add_u32 v{ra}, v{tv}, 5, v{ra}")
    a(f"v_add_u32 v{ra}, s{T}, v{ra}\nv_lshrrev_b32 v{tv}, 2, v{vC}\nv_mul_i32_i24 v{tv}, {base1 - base0}, v{tv}\nv_add_u32 v{ra}, v{ra}, v{tv}")

def ep2_sum(a, ra, add0, out):
    for k in range(4):
        a(f"ds_read_b128 v[{out+8*k}:{out+8*k+3}], v{ra} offset:{4096*k}\nds_read_b128 v[{out+8*k+4}:{out+8*k+7}], v{ra} offset:{4096*k+16}")
    a("s_waitcnt lgkmcnt(6)")
    for e in range(8): a(f"v_add_f32 v{out+e}, v{out+e}, v{add0+e}")
    a("s_waitcnt lgkmcnt(2)")
    for e in range(8): a(f"v_add_f32 v{out+8+e}, v{out+8+e}, v{out+16+e}")
    for e in range(8): a(f"v_add_f32 v{out+e}, v{out+e}, v{out+8+e}")
    a("s_waitcnt lgkmcnt(0)")
    for e in range(8): a(f"v_add_f32 v{out+e}, v{out+e}, v{out+24+e}")

def unpack8(a, dst, src):
    for e in range(4): a(f"v_lshlrev_b32 v{dst+2*e}, 16, v{src+e}\nv_and_b32 v{dst+1+2*e}, 0xffff0000, v{src+e}")

def phase3(a):
    stamp(a, "zc.ost")
    OF, ACC, WF = 16, 48, 80
    src = osrc
    n3 = [int(c) for c in C.sch3]; assert n3[0] == 4 and sum(n3) == 12
    spin = T+6
    if not C.sent:
        a("s_waitcnt vmcnt(0) lgkmcnt(0)\ns_barrier")
        stamp(a, "p2.end")
        if_wave_eq(a, 0, lambda: publish(a, "O", sI))
        for f in range(n3[0]): w2_dma(a, f)
        if_wave_eq(a, 0, lambda: poll(a, "O", sI, 8))
        a("s_barrier")
        stamp(a, "proj.polled")
    else:
        a(f"s_mov_b32 s{spin}, {SPIN}\ns_waitcnt {'vmcnt(0) ' if C.sentwait == 1 else ''}lgkmcnt(0)\ns_barrier")
        stamp(a, "p2.end")
    LT = a.label()
    a(f"{LT}:")
    for t in range(8):
        if C.lprio and t % 2 == 0: a(f"s_setprio {3 - t//2}")
        a(f"buffer_load_dwordx4 v[{OF+4*t}:{OF+4*t+3}], v{vL16}, s[{S_WS}:{S_WS+3}], s{src + (t >> 2)} offen offset:{(t & 3)*1024} sc1")
    for t in range(8):
        a(f"s_waitcnt vmcnt({7-t})")
        for y in range(2):
            c = "0" if t == 0 else f"v[{ACC+16*y}:{ACC+16*y+15}]"
            a(f"v_mfma_f32_32x32x16_bf16 v[{ACC+16*y}:{ACC+16*y+15}], v[{OF+4*t}:{OF+4*t+3}], v[{WF+8*t+4*y}:{WF+8*t+4*y+3}], {c}")
            if C.sent:
                o = OF + 4*t + 2*y
                a(f"v_max_u32 v0, v{o}, v{o+1}" if t == 0 and y == 0 else f"v_max3_u32 v0, v0, v{o}, v{o+1}")
    if C.sent:
        a(f"v_cmp_eq_u32 vcc, -1, v0\ns_sub_u32 s{spin}, s{spin}, 1\ns_cselect_b64 vcc, 0, vcc\ns_cbranch_vccnz {LT}")
    if C.sent and C.w2pos == 1:
        for f in range(n3[0]): w2_dma(a, f)
    ep2_read_addr(a, 88, V+SVO, E+16, T+4, 80)
    stamp(a, "proj.loop")
    OUT = 104
    for x in ep2_writes(ACC, V+SVO, T+4) + ep2_writes(ACC+16, E+16, T+4): a(x)
    unpack8(a, 96, vRES)
    if C.sent and C.w2pos == 0:
        for f in range(n3[0]): w2_dma(a, f)
    a("s_waitcnt lgkmcnt(0)\ns_barrier")
    stamp(a, "zc.epb")
    ep2_sum(a, 88, 96, OUT)
    for e in range(4): a(f"v_cvt_pk_bf16_f32 v{vRES+e}, v{OUT+2*e}, v{OUT+1+2*e}")
    a("v_mov_b32 v64, 0\nv_mov_b32 v65, 0\nv_mov_b32 v66, 1\nv_mov_b32 v67, 1\nv_mov_b32 v68, 0x3f803f80")
    for e in range(4): a(f"v_dot2c_f32_bf16 v64, v{vRES+e}, v68\nv_dot2c_f32_bf16 v65, v{vRES+e}, v{vRES+e}")
    a(f"s_lshl_b32 s{T}, s{sI}, 13\ns_add_u32 s{T}, s{T}, {WS_ST}\ns_add_u32 s{T}, s{T}, s{sLB}\ns_lshl_b32 s{T+1}, s{sJ}, 10\ns_add_u32 s{T+1}, s{T+1}, s{T}")
    a(f"v_lshlrev_b32 v56, 4, v{vN}\nv_lshl_add_u32 v57, v{vC}, 10, v56")
    dpp_red8(a, [64, 65])
    a(f"v_cmp_eq_u32 vcc, 0, v{vC}\ns_and_saveexec_b64 s[{T+2}:{T+3}], vcc")
    rstore(a, f"buffer_store_dwordx4 v[64:67], v56, s[{S_WS}:{S_WS+3}], s{T+1} offen")
    a(f"s_mov_b64 exec, s[{T+2}:{T+3}]")
    stamp(a, "proj.st")
    a(f"v_subrev_u32 v59, {SVO}, v{vTRF}")
    for c in range(4):
        for x in frag_reads(f"v{W1T+4*c}", 59, c*8192): a(x)
    if not C.sent:
        for f in range(4):
            for x in w2_reads(f): a(x)
    unpack8(a, 80, vRES)
    a(f"v_lshrrev_b32 v58, 2, v{vC}\nv_lshlrev_b32 v58, 17, v58\nv_lshl_add_u32 v58, v{vN}, 6, v58\nv_and_b32 v60, 3, v{vC}\nv_lshl_add_u32 v58, v60, 4, v58")
    LP = a.label(); LD = a.label()
    a(f"s_mov_b32 s{T+2}, {SPIN}")
    a(f"{LP}:")
    a(f"buffer_load_dwordx4 v[68:71], v57, s[{S_WS}:{S_WS+3}], s{T} offen sc1")
    a("s_waitcnt vmcnt(0)\nv_and_b32 v72, v70, v71\nv_cmp_ne_u32 vcc, 1, v72")
    a(f"s_cbranch_vccz {LD}")
    a(f"s_sub_u32 s{T+2}, s{T+2}, 1\ns_cmp_lg_u32 s{T+2}, 0\ns_cbranch_scc1 {LP}")
    a(f"{LD}:")
    stamp(a, "proj.stat")
    if C.sent:
        for f in range(4):
            for x in w2_reads(f): a(x)
    if C.x4 == 1:
        a("s_waitcnt lgkmcnt(8)"); w2x_dma(a)
    dpp_red8(a, [68, 69])
    a(f"v_mul_f32 v68, {f2u(1/512)}, v68\nv_mul_f32 v69, {f2u(1/512)}, v69")
    a("v_fma_f32 v69, -v68, v68, v69\nv_max_f32 v69, 0, v69")
    a(f"v_add_f32 v70, {f2u(1e-5)}, v69\nv_rsq_f32 v70, v70\ns_nop 0")
    a(f"v_mul_f32 v71, v70, v70\nv_mul_f32 v71, v71, v69\nv_add_f32 v71, {f2u(1e-5)}, v71\nv_rsq_f32 v71, v71\ns_nop 0")
    a("v_mul_f32 v70, v70, v71\nv_mul_f32 v71, v68, v70\nv_sub_f32 v71, 0, v71")
    for e in range(8): a(f"v_fma_f32 v{80+e}, v{80+e}, v70, v71")
    for e in range(4): a(f"v_cvt_pk_bf16_f32 v{72+e}, v{80+2*e}, v{81+2*e}")
    a(f"s_lshl_b32 s{T}, s{sJ}, 18\ns_lshl_b32 s{T+1}, s{sI}, 12\ns_add_u32 s{T}, s{T}, s{T+1}\ns_add_u32 s{T}, s{T}, {WS_H}\ns_add_u32 s{T}, s{T}, s{sLB}")
    a(f"buffer_store_dwordx4 v[72:75], v58, s[{S_WS}:{S_WS+3}], s{T} offen sc1")
    stamp(a, "zc.hst")
    a("s_waitcnt lgkmcnt(0)")
    rest3 = [8, 9, 10, 11, 4, 5, 6, 7]
    assert n3[1] <= 4
    for f in rest3[:n3[1]]: w2_dma(a, f)
    a(f"s_waitcnt vmcnt({n3[1]})\ns_barrier")
    stamp(a, "proj.end")
    if_wave_eq(a, 0, lambda: publish(a, "H", sJ))
    if C.sent:
        L = a.label()
        a(f"s_cmp_lg_u32 s{sL}, 0\ns_cbranch_scc1 {L}\nv_mov_b32 v76, -1\nv_mov_b32 v77, -1\nv_mov_b32 v78, -1\nv_mov_b32 v79, -1")
        a(f"s_add_u32 s{T}, s{ost}, {LSTRIDE}\nbuffer_store_dwordx4 v[76:79], v{vL16}, s[{S_WS}:{S_WS+3}], s{T} offen sc1\n{L}:")
    for f in rest3[n3[1]:]: w2_dma(a, f)
    if C.x4 == 2: w2x_dma(a)

EPO = 61440
W1T = 128

def flag_addr(a, kind, sd):
    a(f"s_lshl_b32 s{sd}, s{sJ}, 10\ns_add_u32 s{sd}, s{sd}, {FL[kind]*128}\ns_add_u32 s{sd}, s{sd}, s{sFL}")
    a(f"s_lshr_b32 s{T+1}, s{sI}, 2\ns_lshl_b32 s{T+1}, s{T+1}, 7\ns_add_u32 s{sd}, s{sd}, s{T+1}")

def apoll_issue(a, sd, v):
    a(f"s_mov_b64 exec, 1\nbuffer_load_dword v{v}, v{vL16}, s[{S_WS}:{S_WS+3}], s{sd} offen sc1\ns_mov_b64 exec, -1")

def apoll_check(a, sd, v, n):
    LP = a.label(); LD = a.label()
    a(f"s_mov_b64 exec, 1\ns_mov_b32 s{T+1}, {SPIN}\n{LP}:\nv_cmp_ne_u32 vcc, {n}, v{v}\ns_cbranch_vccz {LD}")
    a(f"buffer_load_dword v{v}, v{vL16}, s[{S_WS}:{S_WS+3}], s{sd} offen sc1\ns_waitcnt vmcnt(0)")
    a(f"s_sub_u32 s{T+1}, s{T+1}, 1\ns_cmp_lg_u32 s{T+1}, 0\ns_cbranch_scc1 {LP}\n{LD}:\ns_mov_b64 exec, -1")

def mlp(a):
    R = 4
    EP = STG
    ERA, UA, YA5, B1, YA4, C1, RA_, WA_, ADD = 21, 20, 22, 24, 28, 29, 30, 128, 136
    ACC, F, ET, PV_, B2 = 48, [80, 96], (48 if C.x4 else 112), 19, 18
    TT = 128
    NW2 = 24 if C.x4 else 28
    xr = [x for c in range(4) for x in frag_reads(w2_reg(24+c), 17, c*8192)] if C.x4 else []
    src4, dst, qb, src5, rot, ust, fa, fb, gc2, ewb = T+2, T+3, T+4, T+5, T+6, T+7, T+8, T+9, T+11, T+12
    a(f"v_lshlrev_b32 v{ERA}, 1, v{vN}\ns_lshl_b32 s{T}, s{sI}, 7")
    a(f"buffer_load_ushort v{B2}, v{ERA}, s[{S_B2}:{S_B2+3}], s{T} offen")
    a(f"s_lshr_b32 s{T}, s{sW}, 1\ns_and_b32 s{T+1}, s{sW}, 1\ns_lshl_b32 s{T+1}, s{T+1}, 11\ns_add_u32 s{T+1}, s{T+1}, s{sLB}")
    a(f"s_mul_i32 s{src5}, s{sJ}, {2*114688}\ns_mul_i32 s{dst}, s{T}, {28*1024}\ns_add_u32 s{src5}, s{src5}, s{dst}\ns_add_u32 s{src5}, s{src5}, s{T+1}\ns_add_u32 s{src5}, s{src5}, {WS_U}")
    a(f"s_lshl_b32 s{src4}, s{sJ}, 18\ns_lshl_b32 s{dst}, s{T}, 15\ns_add_u32 s{src4}, s{src4}, s{dst}\ns_add_u32 s{src4}, s{src4}, s{T+1}\ns_add_u32 s{src4}, s{src4}, {WS_H}")
    a(f"s_mul_i32 s{ust}, s{sJ}, {2*114688}\ns_lshl_b32 s{dst}, s{sI}, 12\ns_add_u32 s{ust}, s{ust}, s{dst}\ns_lshl_b32 s{dst}, s{T}, 9\ns_add_u32 s{ust}, s{ust}, s{dst}\ns_add_u32 s{ust}, s{ust}, s{T+1}\ns_add_u32 s{ust}, s{ust}, {WS_U}")
    a(f"s_lshl_b32 s{dst}, s{sW}, 11\ns_lshl_b32 s{T}, s{T}, 12")
    a(f"v_bfe_u32 v16, v{vL}, 3, 2\nv_lshlrev_b32 v{YA5}, 9, v16\nv_and_b32 v16, 3, v{vL}\nv_lshl_add_u32 v{YA5}, v16, 7, v{YA5}\nv_bfe_u32 v16, v{vL}, 2, 1\nv_lshl_add_u32 v{YA5}, v16, 6, v{YA5}")
    a(f"v_bfe_u32 v16, v{vL}, 1, 1\nv_bfe_u32 v17, v{vL}, 4, 1\nv_lshl_add_u32 v16, v17, 1, v16\nv_lshrrev_b32 v17, 5, v{vL}\nv_xor_b32 v16, v16, v17\nv_lshl_add_u32 v{YA5}, v16, 4, v{YA5}")
    a(f"v_add_u32 v{YA5}, s{T}, v{YA5}\nv_xor_b32 v{YA5+1}, 32, v{YA5}")
    a(f"s_sub_u32 s{T}, s{T}, s{sVW}\ns_sub_u32 s{T}, s{T}, {SVO}\nv_add_u32 v{YA4}, s{T}, v{vTRF}")
    a(f"s_and_b32 s{T}, s{sW}, 1\ns_lshl_b32 s{T}, s{T}, 11\nv_add_u32 v31, s{T}, v{YA4}")
    a(f"s_lshl_b32 s{rot}, s{sJR}, 12")
    qkv_base8(a, qb)
    flag_addr(a, "U", fa); flag_addr(a, "UB", fb)
    LS = a.label(); LM = a.label()
    a(f"s_cmp_ge_u32 s{sI}, 28\ns_cbranch_scc1 {LS}")
    vm = VM()
    a(f"s_and_b32 s{T}, s{sW}, 1\ns_lshr_b32 s{T+1}, s{sW}, 1")
    a(f"s_lshl_b32 s{ewb}, s{T}, 14\ns_add_u32 s{ewb}, s{ewb}, {EP}\ns_lshl_b32 s{T+10}, s{T+1}, 10\ns_add_u32 s{T+10}, s{T+10}, s{ewb}\nv_add_u32 v{ERA}, s{T+10}, v{vL16}")
    a(f"s_lshl_b32 s{T+10}, s{T+1}, 12\ns_add_u32 s{ewb}, s{ewb}, s{T+10}")
    a(f"s_lshl_b32 s{T}, s{T}, 6\ns_lshl_b32 s{T+10}, s{sI}, 7\ns_add_u32 s{T}, s{T}, s{T+10}\nv_lshlrev_b32 v16, 3, v{vC}")
    a(f"buffer_load_dwordx2 v[{B1+2}:{B1+3}], v16, s[{S_B1}:{S_B1+3}], s{T} offen")
    a(f"v_lshrrev_b32 v17, 5, v{vL}\ns_lshr_b32 s{T+1}, s{T+1}, 1\ns_lshl_b32 s{T+1}, s{T+1}, 1\nv_or_b32 v17, s{T+1}, v17\nv_lshlrev_b32 v17, 4, v17\nv_lshlrev_b32 v{UA}, 3, v{vL}\nv_xor_b32 v{UA}, v{UA}, v17")
    c1 = -2*0.7978845608028654*1.4426950408889634
    a(f"s_mov_b32 s{gc2}, {f2u(c1*0.044715)}\nv_mov_b32 v{C1}, {f2u(c1)}")
    if_wave_eq(a, 0, lambda: poll(a, "H", sJ, 32))
    a("s_barrier")
    stamp(a, "mlp1.polled"); stamp(a, "z3.poll")
    def act(p, s):
        if p == 4: a(f"s_add_u32 s{T}, s{rot}, {(s & 7)*4096}\ns_and_b32 s{T}, s{T}, 0x7fff\ns_add_u32 s{T}, s{T}, s{src4}\ns_add_u32 m0, s{dst}, {(s % R)*16384}" + (f"\ns_add_u32 s{T}, s{T}, 131072" if s >= 8 else "\ns_nop 0"))
        else: a(f"s_add_u32 m0, s{dst}, {(s % R)*16384}\ns_add_u32 s{T}, s{src5}, {(s//7)*114688 + (s % 7)*4096}")
        nt = " nt" if C.ntact else ""
        a(f"buffer_load_dwordx4 v{vL16}, s[{S_WS}:{S_WS+3}], s{T} offen sc1{nt} lds\nbuffer_load_dwordx4 v{vL16}, s[{S_WS}:{S_WS+3}], s{T} offen offset:1024 sc1{nt} lds")
        vm.add(("act", p, s), 2)
    def reads(p, s):
        out = []; o = (s % R)*16384
        for t in range(4):
            b = F[s & 1] + 4*t
            if p == 4: out += [f"ds_read_b64_tr_b16 v[{b}:{b+1}], v{YA4} offset:{o + t*1024}", f"ds_read_b64_tr_b16 v[{b+2}:{b+3}], v{YA4} offset:{o + t*1024 + 256}"]
            else: out.append(f"ds_read_b128 v[{b}:{b+3}], v{YA5 + (t & 1)} offset:{o + (t >> 1)*2048}")
        return out
    def mfmas(p, s):
        out = []
        n = 8 if p == 4 else 7
        y = s // n
        for t in range(4):
            f = 4*(s % n) + t
            if p == 4: X = f"a[{4*f}:{4*f+3}]" if f < 28 else f"v[{W1T+4*(f-28)}:{W1T+4*(f-28)+3}]"
            else: r = w2_reg(f); X = f"{r[0]}[{int(r[1:])}:{int(r[1:])+3}]"
            Y = f"v[{F[s & 1]+4*t}:{F[s & 1]+4*t+3}]"
            c = "0" if f == 0 else f"v[{ACC+16*y}:{ACC+16*y+15}]"
            A_, B_ = (Y, X) if p == 4 else (X, Y)
            out.append(f"v_mfma_f32_32x32x16_bf16 v[{ACC+16*y}:{ACC+16*y+15}], {A_}, {B_}, {c}")
        return out
    RW = 31
    def inring(f): return C.optx and 20 <= f < 24
    def wdma(fs):
        for f in fs:
            if inring(f):
                a(f"s_add_u32 m0, s{dst}, {((f-20) >> 1)*16384 + (f & 1)*1024}\ns_add_u32 s{T}, s{sW2S}, {f*16*4096}")
                a(f"buffer_load_dwordx4 v{vF2}, s[{S_W2}:{S_W2+3}], s{T} offen lds")
            else: w2_dma(a, f)
            vm.add(("w", f))
    def wr(fs): return [x for f in fs for x in (frag_reads(w2_reg(f), RW, ((f-20) >> 1)*16384 + (f & 1)*1024) if inring(f) else w2_reads(f))]
    def wread(fs):
        for x in wr(fs): a(x)
    def ep_w(y, rs=range(16)):
        o = [f"ds_write_addtid_b32 v{ACC+16*y+r} offset:{EPO + r*256}" for r in rs]
        o[0] = f"s_sub_u32 m0, s{ewb}, {EPO}\ns_nop 0\n" + o[0]
        return o
    def ep_r(): return [f"ds_read_b128 v[{ET+4*p}:{ET+4*p+3}], v{ERA} offset:{p*4096}" for p in range(4)]
    def ep_math():
        o = []
        for e in range(4): o += [f"v_add_f32 v{ET+e}, v{ET+e}, v{ET+4+e}", f"v_add_f32 v{ET+8+e}, v{ET+8+e}, v{ET+12+e}"]
        for e in range(4): o.append(f"v_add_f32 v{ET+e}, v{ET+e}, v{B1+e}")
        for e in range(4): o.append(f"v_add_f32 v{ET+e}, v{ET+e}, v{ET+8+e}")
        G = ET+4
        for e in range(4): o.append(f"v_mul_f32 v{G+e}, v{ET+e}, v{ET+e}")
        for e in range(4): o.append(f"v_fma_f32 v{G+e}, v{G+e}, s{gc2}, v{C1}")
        for e in range(4): o.append(f"v_mul_f32 v{G+e}, v{G+e}, v{ET+e}")
        for e in range(4): o.append(f"v_exp_f32 v{G+e}, v{G+e}")
        for e in range(4): o.append(f"v_add_f32 v{G+e}, 1.0, v{G+e}")
        for e in range(4): o.append(f"v_rcp_f32 v{G+e}, v{G+e}")
        for e in range(4): o.append(f"v_mul_f32 v{ET+e}, v{ET+e}, v{G+e}")
        o += [f"v_cvt_pk_bf16_f32 v{ET+8}, v{ET}, v{ET+1}", f"v_cvt_pk_bf16_f32 v{ET+9}, v{ET+2}, v{ET+3}"]
        return o
    def ep_store(y):
        if y: a(f"s_add_u32 s{ust}, s{ust}, 114688")
        a(f"buffer_store_dwordx2 v[{ET+8}:{ET+9}], v{UA}, s[{S_WS}:{S_WS+3}], s{ust} offen sc1")
        vm.add(("st", y))
    def body(m, lds, valu=()):
        lds = list(lds); valu = list(valu)
        nl = max(C.ldsper, -(-len(lds)//4)); nv = -(-len(valu)//4)
        for k in range(4):
            if k < len(m): a(m[k])
            for x in lds[k*nl:(k+1)*nl]: a(x)
            for x in valu[k*nv:(k+1)*nv]: a(x)
    for s in range(C.init): act(4, s)
    late = [int(c) for c in (C.schx if C.optx else C.schw)]
    assert sum(late) == 8 and len(late) == 6
    nxt = 12
    em = ep_math()
    deferred = []
    E_ = [int(c, 16) for c in C.eps]
    for s in range(16):
        tags = [("act", 4, s)] + ([("st", 0)] if s == C.pubs else [])
        a(f"s_waitcnt vmcnt({vm.need(*tags)}) lgkmcnt(0)\ns_barrier")
        if s not in (2, 3, 5, 6, 7): stamp(a, f"z4.{s:02d}")
        if s == 0: stamp(a, "mlp1.b0")
        if C.defer == 2 and s not in (E_[0], E_[1]):
            for k in deferred: act(4, k)
            deferred = []
        lds = reads(4, s); valu = []
        if s == 0: valu = [f"v_lshlrev_b32 v{B1}, 16, v{B1+2}", f"v_and_b32 v{B1+1}, 0xffff0000, v{B1+2}", f"v_lshlrev_b32 v{B1+2}, 16, v{B1+3}", f"v_and_b32 v{B1+3}, 0xffff0000, v{B1+3}"]
        if C.wfirst and s == E_[0] == E_[1]: lds = ep_w(0) + lds
        else:
            if s == E_[0]: lds += ep_w(0, range(8))
            if s == E_[1]: lds += ep_w(0, range(8, 16))
        if s == 0 and C.x4:
            a(f"v_subrev_u32 v17, {SVO}, v{vTRF}"); lds += xr
        if s == E_[2]: lds += ep_r()
        if s == E_[3]: valu += em[:24]
        if s == E_[4]: valu += em[24:]
        if s == E_[5]: lds += wr(range(4, 8))
        if s == E_[6]: lds += wr(range(8, 12))
        body(mfmas(4, s-1) if s else [], lds, valu)
        if s == C.pubs:
            stamp(a, "mlp1.pubA")
            if_wave_eq(a, 0, lambda: publish(a, "U", sJ))
        if s == E_[4]: ep_store(0)
        if s == 0:
            for k in range(C.init, R): act(4, k)
        if s >= 1 and s - 1 + R < 16:
            deferred.append(s - 1 + R)
            if not (C.defer and s in (E_[0], E_[1])):
                for k in deferred: act(4, k)
                deferred = []
        if s >= 11:
            n = late[s-11]
            assert nxt + n <= 12 + 4*(s > E_[5]) + 4*(s > E_[6]) + 2*(s >= 13) + 2*(s >= 14)
            wdma(range(nxt, nxt + n)); nxt += n
    assert E_[0] >= 9 and E_[2] > E_[1] and E_[3] > E_[2] and E_[5] >= 10 and E_[6] >= 11
    a("s_waitcnt lgkmcnt(0)")
    for x in mfmas(4, 15): a(x)
    stamp(a, "mlp1.loop"); stamp(a, "z4.loop")
    a("s_nop 9")
    for x in ep_w(1): a(x)
    if C.pubs >= 16: a(f"s_waitcnt vmcnt({vm.need(('st', 0))})")
    a("s_waitcnt lgkmcnt(0)\ns_barrier")
    stamp(a, "z4.ep")
    for x in ep_r(): a(x)
    if C.pubs >= 16: if_wave_eq(a, 0, lambda: publish(a, "U", sJ))
    wdma(range(nxt, 20))
    if C.n1 == 0: apoll_issue(a, fa, PV_); vm.add("pa")
    a("s_waitcnt lgkmcnt(0)")
    for x in em: a(x)
    ep_store(1)
    stamp(a, "mlp1.st"); stamp(a, "z4.st")
    npre = 20 + C.n1 + C.n2
    if C.n1:
        a(f"s_waitcnt vmcnt({vm.need(('w', 15))})")
        wread(range(12, 16))
        a("s_waitcnt lgkmcnt(0)")
        apoll_issue(a, fa, PV_); vm.add("pa")
        wdma(range(20, 20 + C.n1))
        a(f"s_waitcnt vmcnt({vm.need('pa')})")
        wread(range(16, 20))
        a("s_barrier")
        stamp(a, "z4.xdrain")
        if_wave_eq(a, 0, lambda: publish(a, "UB", sJ))
        a("s_waitcnt lgkmcnt(0)")
        wdma(range(20 + C.n1, npre))
        first = 0
    else:
        a(f"s_waitcnt vmcnt({vm.need('pa')})")
        wread(range(12, 20))
        apoll_check(a, fa, PV_, 28)
        act(5, 0); act(5, 1)
        a(f"s_waitcnt vmcnt({vm.need(('st', 1))})\ns_barrier")
        stamp(a, "z4.xdrain")
        if_wave_eq(a, 0, lambda: publish(a, "UB", sJ))
        first = 2
    a(f"s_branch {LM}")
    a(f"{LS}:")
    a("s_waitcnt vmcnt(0)")
    if C.x4:
        a(f"v_subrev_u32 v17, {SVO}, v{vTRF}")
        for x in xr: a(x)
    wread(range(4, 12)); a("s_waitcnt lgkmcnt(0)")
    keep = vm.ops[:]
    wdma(range(12, 20))
    a("s_waitcnt vmcnt(0)")
    wread(range(12, 20)); a("s_waitcnt lgkmcnt(0)")
    wdma(range(20, npre))
    a(f"v_mov_b32 v{PV_}, 28\ns_waitcnt vmcnt(0)")
    if_wave_eq(a, 0, lambda: poll(a, "U", sJ, 28))
    a("s_barrier")
    for k in range(first): act(5, k)
    vm.ops = keep
    a(f"{LM}:")
    if first == 0: apoll_check(a, fa, PV_, 28)
    stamp(a, "mlp2.polled"); stamp(a, "z4.zpolled")
    for k in range(first, C.init5): act(5, k)
    ep2_read_addr(a, RA_, EP+16, E+32768, ewb, TT)
    sch = [int(c) for c in C.sch2]
    extra = list(range(12))
    assert sum(sch[:5]) <= 7
    def point(p):
        for _ in range(sch[p]):
            k = extra.pop(0); qkv_piece8(a, qb, k); vm.add(("x", k))
    sb = C.sb
    na = max(first, C.init5); nw = npre
    for s in range(14):
        tags = [("act", 5, s)]
        if s == sb: tags.append("pb")
        if s == 5: tags.append(("w", 23))
        if s == 6 and not C.x4: tags.append(("w", 27))
        a(f"s_waitcnt vmcnt({vm.need(*tags)}) lgkmcnt(0)\ns_barrier")
        if s not in (8, 9, 10): stamp(a, f"z5.{s:02d}")
        if s == 0: stamp(a, "mlp2.b0")
        lds = reads(5, s); valu = []
        if s == 0:
            for e in range(4): valu += [f"v_lshlrev_b32 v{ADD+2*e}, 16, v{vRES+e}", f"v_and_b32 v{ADD+1+2*e}, 0xffff0000, v{vRES+e}"]
            valu.append(f"v_lshlrev_b32 v{B2}, 16, v{B2}")
            for e in range(8): valu.append(f"v_add_f32 v{ADD+e}, v{ADD+e}, v{B2}")
        if s == 5: lds += wr(range(20, 24))
        if s == 6 and not C.x4: lds += wr(range(24, 28))
        if s == C.wa5: lds += ep2_writes(ACC, EP+16, ewb)
        body(mfmas(5, s-1) if s else [], lds, valu)
        if s == sb:
            apoll_check(a, fb, PV_, 28)
            stamp(a, "mlp2.pollB")
        if s == C.pbi: apoll_issue(a, fb, PV_); vm.add("pb")
        lim = min(14, s + 4, 7 if s < sb else 14)
        want = min(lim, na + 1) if nw < NW2 and not C.deep else lim
        want = max(want, min(lim, s + 3))
        while na < want: act(5, na); na += 1
        if nw < NW2: wdma((nw, nw+1)); nw += 2
        if s == C.q5s and C.pret:
            a(f"buffer_load_dword v{TT+1}, v{vXO}, s[{S_XD}:{S_XD+3}], s{sXO} offen sc1")
            a(f"s_lshl_b32 s{T}, s{sI}, 3\ns_add_u32 s{T}, s{T}, s{sJ}\ns_lshl_b32 s{T}, s{T}, 9\ns_add_u32 s{T}, s{T}, {WS_ST2}\nv_lshlrev_b32 v{TT+2}, 3, v{vL}")
            a(f"buffer_load_dword v{TT+2}, v{TT+2}, s[{S_WS}:{S_WS+3}], s{T} offen sc1")
            vm.add("pre", 2)
        if s == C.q5s and C.q5:
            a(f"s_lshr_b32 s{T}, s2, 3\ns_lshl_b32 s{T}, s{T}, 3\ns_add_u32 s{T}, s{T}, s{sW}\ns_mul_i32 s{T}, s{T}, {6*1024}")
            if C.q5 == 1: a(f"s_add_u32 s{T}, s{T}, 384\nv_min_u32 v{TT}, 5, v{vL}\nv_lshlrev_b32 v{TT}, 10, v{TT}")
            else: a(f"v_min_u32 v{TT}, 47, v{vL}\nv_lshlrev_b32 v{TT}, 7, v{TT}")
            a(f"buffer_load_dword v{TT}, v{TT}, s[{S_QKV}:{S_QKV+3}], s{T} offen"); vm.add("q5")
    assert na == 14 and nw == NW2
    a(f"s_waitcnt lgkmcnt({15 if C.wa5 == 13 else 0})")
    for x in mfmas(5, 13): a(x)
    stamp(a, "mlp2.loop")
    a("s_nop 9")
    OUT = 80
    for x in ep2_writes(ACC+16, E+32768, ewb): a(x)
    point(0); point(1); point(2)
    a("s_waitcnt lgkmcnt(0)\ns_barrier")
    ep2_sum(a, RA_, ADD, OUT)
    point(3)
    for e in range(4): a(f"v_cvt_pk_bf16_f32 v{vRES+e}, v{OUT+2*e}, v{OUT+1+2*e}")
    if C.finplain:
        Lf = a.label()
        a(f"s_cmp_eq_u32 s{sL}, 0\ns_cbranch_scc1 {Lf}\nbuffer_store_dwordx4 v[{vRES}:{vRES+3}], v{vXO}, s[{S_XD}:{S_XD+3}], s{sXO} offen{' nt' if C.finplain == 2 else ''}\ns_branch L_fin\n{Lf}:")
    rstore(a, f"buffer_store_dwordx4 v[{vRES}:{vRES+3}], v{vXO}, s[{S_XD}:{S_XD+3}], s{sXO} offen", bulk=True)
    stamp(a, "mlp2.st")
    a(f"s_cmp_lg_u32 s{sL}, 0\ns_cbranch_scc1 L_fin")
    a("v_mov_b32 v64, 0\nv_mov_b32 v65, 0\nv_mov_b32 v68, 0x3f803f80")
    for e in range(4): a(f"v_dot2c_f32_bf16 v64, v{vRES+e}, v68\nv_dot2c_f32_bf16 v65, v{vRES+e}, v{vRES+e}")
    a(f"s_lshl_b32 s{T}, s{sI}, 3\ns_add_u32 s{T}, s{T}, s{sJ}\ns_lshl_b32 s{T}, s{T}, 9\ns_add_u32 s{T}, s{T}, {WS_ST2}\nv_lshlrev_b32 v66, 3, v{vN}")
    dpp_red8(a, [64, 65])
    a(f"v_cmp_eq_u32 vcc, 0, v{vC}\ns_and_saveexec_b64 s[{T+10}:{T+11}], vcc")
    rstore(a, f"buffer_store_dwordx2 v[64:65], v66, s[{S_WS}:{S_WS+3}], s{T} offen", bulk=True)
    a(f"s_mov_b64 exec, s[{T+10}:{T+11}]")
    point(4)
    a(f"s_waitcnt vmcnt({sch[4]})\ns_barrier")
    stamp(a, "mlp2.end")
    if_wave_eq(a, 4, lambda: publish(a, "X", sI))
    point(5)

def main(out):
    a = Asm()
    K = NAME + "_kernel"
    a.L.append(f".globl {K}\n.p2align 8\n.type {K},@function\n{K}:")
    prologue(a)
    a(f"buffer_load_dwordx4 v[{vRES}:{vRES+3}], v{vXO}, s[{S_XS}:{S_XS+3}], s{sXO} offen")
    stamp(a, "entry2")
    a(f"s_cmp_lt_u32 s{sW}, 4\ns_cbranch_scc1 L_p1_cons")
    layer0_helpers(a)
    ool_at = len(a.L)
    a("L_layer:")
    ool = phase1(a)
    phase2(a)
    phase3(a)
    mlp(a)
    a(f"s_mov_b32 s{S_XS}, s{S_XD}\ns_mov_b32 s{S_XS+1}, s{S_XD+1}\ns_mov_b32 s{S_XD}, s{sOUT}\ns_mov_b32 s{S_XD+1}, s{sOUT+1}")
    a(f"s_mov_b32 s{sL}, 1\ns_mov_b32 s{sLB}, {LSTRIDE}")
    if C.stamp: a("v_mov_b32 v7, v6")
    a("s_branch L_layer")
    a("L_fin:")
    if C.stamp:
        a("s_waitcnt vmcnt(0)")
        stamp(a, "fin")
        a(f"s_lshl_b32 s{T}, s2, 3\ns_add_u32 s{T}, s{T}, s{sW}\ns_lshl_b32 s{T}, s{T}, 9\ns_add_u32 s{T}, s{T}, {WS_STAMP}\nv_lshlrev_b32 v16, 2, v{vL}")
        a(f"buffer_store_dword v7, v16, s[{S_WS}:{S_WS+3}], s{T} offen\nbuffer_store_dword v6, v16, s[{S_WS}:{S_WS+3}], s{T} offen offset:256")
    a("L_end:\ns_endpgm")
    softmax_safe(a)
    b = Asm()
    for x in ool[-13:-12] + [o for o in ool if o is not ool[-13]] if False else ool: b(x)
    a.L[ool_at:ool_at] = b.L
    s = HDR + "; @launch grid=(256,1,1) block=(512,1,1) lds=163840\n"
    s += '.amdgcn_target "amdgcn-amd-amdhsa--gfx950"\n.text\n' + a.text().replace("CODE_SPAN", str(C.span))
    s += f""".section .rodata,"a"
.p2align 6
.amdhsa_kernel {K}
  .amdhsa_next_free_vgpr 256
  .amdhsa_next_free_sgpr 102
  .amdhsa_accum_offset {NARCH}
  .amdhsa_group_segment_fixed_size 0
  .amdhsa_kernarg_size 88
  .amdhsa_user_sgpr_count 2
  .amdhsa_user_sgpr_kernarg_segment_ptr 1
  .amdhsa_system_sgpr_workgroup_id_x 1
.end_amdhsa_kernel
"""
    open(out, "w").write(s)
    if C.stamp: open(out + ".stamps", "w").write("\n".join(STAMPS))

if __name__ == "__main__":
    for arg in sys.argv[2:]:
        k, v = arg.split("="); setattr(C, k, v if isinstance(getattr(C, k), str) else type(getattr(C, k))(int(v)))
    main(sys.argv[1])
```

```python
import sys, struct
NAME = "interleave_layers__softmax_full_mha__mixer_token_mlp__prompt"
HDR = open("cdna_kernels/%s.s.ref" % NAME).read().split("; Override launch")[0]
MB = 1 << 20
WS_KV, WS_O, WS_H, WS_U, WS_X2, WS_ST = 0*MB, 4*MB, 6*MB, 8*MB, 10*MB, 12*MB
LSTRIDE = 16*MB
WS_FLAG = 32*MB
WS_XT = WS_FLAG + 131072
WS_STAMP = 40*MB
KA = dict(x=0, wqkv=8, wo=16, w1=32, b1=40, w2=48, b2=56, out=64, dbg=72, ws=80)
SZ = dict(x=2048*512*2, wqkv=512*1536*2, wo=512*512*2, w1=2048*1792*2, b1=1792*2, w2=1792*2048*2, b2=2048*2,
          out=2048*512*2, dbg=256, ws=1 << 28)
FL = dict(KV=0, H=64, U=128, O=192, X=224, UB=256, KL=320)
COLK = ('KV', 'H', 'U', 'UB')
SPIN = 200000
NARCH = 144

class Cfg:
    stamp = False
    prio = True
    lowtiles = 1
    D = 3
    nB = 12
    sch1 = '033343'
    sch2 = '003040'
    sch3 = '426'
    stouch = 0
    p1touch = 0
    now1 = 0
    local = 1
    schw = '001124'
    eps = '99abbbc'
    wlast = 1
    defer = 0
    optx = 0
    n1 = 0
    n2 = 0
    deep = 1
    wa5 = 13
    xp = 2
    early = 6
    q5 = 1
    q5s = 10
    lf = 1
    lfi = 1
    lfc = 2
    c3 = 1
    pub12 = 1
    w1nt = 0
    w2nt = 0
    xrot = 1
    xnt = 0
    lateinit = 1
    arrs = 4
    dbgs = 9
    sent = 1
    ldo = 1
    preto = 1
    sentwait = 1
    fixed = 1
    lprio = 0
    wo1 = 8
    x4 = 2
    xr8 = 1
    cpos = 11
    mp = '25b'
    vmask = 0
    kvsame = 0
    prets = 1
    w2pos = 0
    skip7 = 1
    wfirst = 0
    finplain = 0
    vtlb = 0
    vsh = 21
    ntkv = 0
    ntact = 0
    qrot = 0
    w1mask = 7
    w1e = -2
    schx = '01434'
    pbi = 2
    sb = 4
    init5 = 4
    schv = '22220'
    pubs = 14
    pbs = 3
    init = 4
    pae = 1
    order = 1
    ldsper = 3
    epa = 0
    t2 = 28
    sonly = ''
    tmix = 1
    cpf = 1
    cpf2 = 0
    span2 = 12288
    span = 32640
    early2 = 0
    ldata = 0
    pret = 0
    prett = 24
    hs1 = '322211222000'
    hs0 = '222222220000'
    h0first = 4
    h0second = 4
    w1t = 9
    p1per = 4
    qtouch = 2
    pper = 16
    plow = 4
    split = 1
    kvfix = 0
    xsel = 'wot'
    nofirst = 0
    tlb = 0
    lowhalf = 3
    jrot = 6
    nox = 0
    notr = 0
    loop = 0
    pad = 0
    align = 3
    nQ = 12
C = Cfg()

class Asm:
    def __init__(self): self.L = []; self.n = 0
    def __call__(self, s):
        for line in s.split("\n"):
            line = line.strip()
            if line: self.L.append(("" if line.endswith(":") else "    ") + line)
    def label(self, p="L"):
        self.n += 1; return f"{p}{self.n}"
    def text(self): return "\n".join(self.L) + "\n"

def f2u(x): return hex(struct.unpack("<I", struct.pack("<f", x))[0])

S_XS, S_QKV, S_WS, S_WO, S_W1, S_W2, S_B1, S_B2, S_XD, S_DBG, S_KV = 8, 12, 16, 20, 24, 28, 32, 36, 40, 44, 80
sI, sJ, sW, sL, sLB, sFL = 48, 49, 50, 51, 52, 53
sW2S = 54
sVW = 55
sLOC = 56
sXO = 57
sOUT = 58
sJR = 83
sR2 = 80
T = 60
sST = 76
sRET = 84
vL, vN, vC, vL16, vXO = 1, 2, 3, 4, 5
vRES = 8
vF2, vTRF, vWQ = 12, 13, 14
TV = 16
E, V = 0, 65536
QX = V + 11*8192
SVO = 32768
STG = V

STAMPS = []
def stamp(a, name):
    if not C.stamp: return
    if C.sonly:
        if not (name == "start" or any(name.startswith(p) for p in C.sonly.split(","))): return
    elif name.startswith("z") or name.startswith("entry"): return
    k = len(STAMPS); assert k < 32
    a(f"s_memtime s[{sST}:{sST+1}]\ns_memrealtime s[{sST+2}:{sST+3}]\ns_waitcnt lgkmcnt(0)")
    a(f"v_writelane_b32 v6, s{sST}, {k}\nv_writelane_b32 v6, s{sST+2}, {k+32}")
    STAMPS.append(name)

def dpp_red8(a, regs):
    for pat in ("quad_perm:[1,0,3,2]", "quad_perm:[2,3,0,1]", "row_half_mirror"):
        a("s_nop 1")
        for r in regs: a(f"v_add_f32_dpp v{r}, v{r}, v{r} {pat} row_mask:0xf bank_mask:0xf")

def tr_addr(a, vd, xh, perm, t0, t1):
    a(f"v_lshrrev_b32 v{t0}, 5, v{vL}\nv_lshlrev_b32 v{t0}, {2 if perm else 3}, v{t0}")
    a(f"v_bfe_u32 v{t1}, v{vL}, 2, 2\nv_add_u32 v{t0}, v{t0}, v{t1}\nv_lshlrev_b32 v{vd}, 7, v{t0}")
    a(f"v_lshrrev_b32 v{t1}, 1, v{t1}\nv_xor_b32 v{t1}, {xh}, v{t1}\nv_lshl_add_u32 v{vd}, v{t1}, 6, v{vd}")
    a(f"v_bfe_u32 v{t1}, v{vL}, 4, 1\nv_lshl_add_u32 v{vd}, v{t1}, 5, v{vd}")
    a(f"v_and_b32 v{t1}, 3, v{vL}\nv_lshl_add_u32 v{vd}, v{t1}, 3, v{vd}")

def interleave(a, m, r):
    per = -(-len(r)//len(m))
    for x in range(len(m)):
        a(m[x])
        for y in r[x*per:(x+1)*per]: a(y)

def rstore(a, instr, bulk=False):
    if not C.local or (bulk and not C.ldata):
        a(instr + " sc1"); return
    L = a.label(); L2 = a.label()
    a(f"s_cmp_eq_u32 s{sLOC}, 1\ns_cbranch_scc1 {L}\n{instr} sc1\ns_branch {L2}\n{L}:\n{instr}\n{L2}:")

def publish(a, kind, group_s, tv=None):
    if kind not in COLK:
        a(f"s_lshl_b32 s{T}, s{group_s}, 7\ns_add_u32 s{T}, s{T}, {FL[kind]*128}\ns_add_u32 s{T}, s{T}, s{sFL}\ns_lshl_b32 s{T+1}, s{sJ}, 4\ns_add_u32 s{T}, s{T}, s{T+1}")
        a(f"v_mov_b32 v{TV}, 1\ns_mov_b64 exec, 1")
        rstore(a, f"buffer_store_dword v{TV}, v{vL16}, s[{S_WS}:{S_WS+3}], s{T} offen")
        a("s_mov_b64 exec, -1")
        return
    col = kind in COLK
    a(f"s_lshl_b32 s{T}, s{group_s}, {10 if col else 7}\ns_add_u32 s{T}, s{T}, {FL[kind]*128}\ns_add_u32 s{T}, s{T}, s{sFL}")
    a(f"v_mov_b32 v{TV}, 1\nv_lshlrev_b32 v{TV+1}, 7, v{vL}\ns_mov_b64 exec, {0xff if col else 1}")
    a(f"buffer_atomic_add v{TV}, v{TV+1}, s[{S_WS}:{S_WS+3}], s{T} offen sc1")
    a("s_mov_b64 exec, -1")

def poll(a, kind, group_s, n):
    col = kind in COLK
    a(f"s_lshl_b32 s{T}, s{group_s}, {10 if col else 7}\ns_add_u32 s{T}, s{T}, {FL[kind]*128}\ns_add_u32 s{T}, s{T}, s{sFL}")
    if col: a(f"s_lshr_b32 s{T+1}, s{sI}, 2\ns_lshl_b32 s{T+1}, s{T+1}, 7\ns_add_u32 s{T}, s{T}, s{T+1}")
    a(f"s_mov_b64 exec, {1 if col else 0xff}\ns_mov_b32 s{T+1}, {SPIN}")
    LP = a.label(); LD = a.label()
    a(f"{LP}:")
    a(f"buffer_load_dword v{TV}, v{vL16}, s[{S_WS}:{S_WS+3}], s{T} offen sc1")
    a(f"s_waitcnt vmcnt(0)\nv_cmp_ne_u32 vcc, {n if col else 1}, v{TV}")
    a(f"s_cbranch_vccz {LD}")
    a(f"s_sub_u32 s{T+1}, s{T+1}, 1\ns_cmp_lg_u32 s{T+1}, 0\ns_cbranch_scc1 {LP}")
    a(f"{LD}:\ns_mov_b64 exec, -1")

def kl_addr(a):
    a(f"s_lshr_b32 s{T}, s{sI}, 2\ns_lshl_b32 s{T}, s{T}, 3\ns_add_u32 s{T}, s{T}, s{sJ}\ns_lshl_b32 s{T}, s{T}, 7\ns_add_u32 s{T}, s{T}, {FL['KL']*128}\ns_add_u32 s{T}, s{T}, s{sFL}")

def kl_publish(a):
    kl_addr(a)
    a(f"s_and_b32 s{T+1}, s{sI}, 3\ns_lshl_b32 s{T+1}, s{T+1}, 4\ns_add_u32 s{T}, s{T}, s{T+1}\nv_mov_b32 v{TV+3}, 1\ns_mov_b64 exec, 1")
    rstore(a, f"buffer_store_dword v{TV+3}, v{vL16}, s[{S_WS}:{S_WS+3}], s{T} offen")
    a("s_mov_b64 exec, -1")

def kl_poll(a):
    kl_addr(a)
    a(f"s_mov_b64 exec, 15\ns_mov_b32 s{T+1}, {SPIN}")
    LP = a.label(); LD = a.label()
    a(f"{LP}:\nbuffer_load_dword v{TV}, v{vL16}, s[{S_WS}:{S_WS+3}], s{T} offen sc1\ns_waitcnt vmcnt(0)\nv_cmp_ne_u32 vcc, 1, v{TV}\ns_cbranch_vccz {LD}")
    a(f"s_sub_u32 s{T+1}, s{T+1}, 1\ns_cmp_lg_u32 s{T+1}, 0\ns_cbranch_scc1 {LP}\n{LD}:\ns_mov_b64 exec, -1")

def if_wave_eq(a, w, body):
    L = a.label()
    a(f"s_cmp_lg_u32 s{sW}, {w}\ns_cbranch_scc1 {L}")
    body()
    a(f"{L}:")

def qslot(u): return (u + 5) % 12
def qkv_src(u): return (u >> 1)*64*3072 + (1 + (u & 1))*1024 if u < 16 else (u-16)*64*3072

def qkv_row(a, d, base, u):
    if not C.qrot:
        a(f"s_mov_b32 s{d}, s{base}"); return qkv_src(u)
    a(f"s_add_u32 s{d}, s{sR2}, {u >> 1 if u < 16 else u - 16}\ns_and_b32 s{d}, s{d}, 7\ns_mul_i32 s{d}, s{d}, {64*3072}\ns_add_u32 s{d}, s{d}, s{base}")
    return (1 + (u & 1))*1024 if u < 16 else 0

def qkv_base8(a, s):
    a(f"s_mul_i32 s{s}, s{sW}, {8*3072}\ns_lshl_b32 s{T}, s{sJ}, 7\ns_add_u32 s{s}, s{s}, s{T}")

def qkv_piece8(a, s, u):
    seg = qkv_row(a, T, s, u)
    a(f"s_add_u32 m0, s{sVW}, {qslot(u)*8192}\ns_add_u32 s{T}, s{T}, {seg}")
    a(f"buffer_load_dwordx4 v{vWQ}, s[{S_QKV}:{S_QKV+3}], s{T} offen lds")

def w2_dma(a, f):
    a(f"s_add_u32 m0, s{sVW}, {SVO + ((f+4) % 8)*8192}\ns_add_u32 s{T}, s{sW2S}, {f*16*4096}")
    a(f"buffer_load_dwordx4 v{vF2}, s[{S_W2}:{S_W2+3}], s{T} offen lds")

def frag_reads(dst, vaddr, off):
    p, n = dst[0], int(dst[1:])
    return [f"ds_read_b64_tr_b16 {p}[{n}:{n+1}], v{vaddr} offset:{off}", f"ds_read_b64_tr_b16 {p}[{n+2}:{n+3}], v{vaddr} offset:{off+256}"]

W2V = 32
def w2_reg(f):
    if C.x4 and f >= 24: return f"v{112+4*(f-24)}"
    return f"v{W2V+4*f}" if f < 4 else f"a{4*(f-4)}"
def w2x_dma(a):
    for c in range(4):
        a(f"s_add_u32 m0, s{sVW}, {c*8192}\ns_add_u32 s{T}, s{sW2S}, {(24+c)*16*4096}\nbuffer_load_dwordx4 v{vF2}, s[{S_W2}:{S_W2+3}], s{T} offen lds")
def w2_reads(f): return frag_reads(w2_reg(f), vTRF, ((f+4) % 8)*8192)

def prologue(a):
    if C.stamp: a("s_memtime s[96:97]\ns_memrealtime s[98:99]")
    a("s_load_dwordx16 s[64:79], s[0:1], 0\ns_load_dwordx4 s[84:87], s[0:1], 64\ns_load_dwordx2 s[88:89], s[0:1], 80")
    a(f"s_cmp_ge_u32 s2, 256\ns_cbranch_scc1 L_end")
    if C.cpf:
        if C.cpf == 1: a(f"s_getpc_b64 s[{T+2}:{T+3}]\nL_pc0:\ns_lshr_b32 s{T}, s2, 3\ns_lshl_b32 s{T}, s{T}, 10\nv_lshrrev_b32 v41, 6, v0\nv_lshlrev_b32 v41, 7, v41\nv_add_u32 v41, s{T}, v41")
        else: a(f"s_getpc_b64 s[{T+2}:{T+3}]\nL_pc0:\nv_lshlrev_b32 v41, 6, v0")
        a(f"v_min_u32 v41, CODE_SPAN, v41\nglobal_load_dword v142, v41, s[{T+2}:{T+3}]")
    a(f"v_lshrrev_b32 v{vL}, 6, v0\ns_lshr_b32 s{sJ}, s2, 5\nv_readfirstlane_b32 s{sW}, v{vL}\nv_and_b32 v{vL}, 63, v0")
    a(f"s_and_b32 s{sI}, s2, 7\ns_lshl_b32 s{sI}, s{sI}, 2\ns_bfe_u32 s{T}, s2, 0x20003\ns_or_b32 s{sI}, s{sI}, s{T}")
    a(f"v_lshrrev_b32 v{vN}, 3, v0\nv_and_b32 v{vC}, 7, v0")
    a(f"s_lshl_b32 s{T}, s{sJ}, {3 if C.xrot else 6}\nv_add_u32 v42, s{T}, v{vN}\nv_and_b32 v42, 63, v42")
    a(f"v_bfe_u32 v41, v42, 1, 3\nv_xor_b32 v41, v41, v{vC}\nv_lshlrev_b32 v41, 4, v41\nv_lshl_add_u32 v{vXD}, v42, 10, v41")
    a(f"s_mov_b32 s{S_XS+2}, {hex(SZ['x'])}\ns_mov_b32 s{S_XS+3}, 0x00020000\ns_mov_b32 s{S_QKV+2}, {hex(SZ['wqkv'])}\ns_mov_b32 s{S_QKV+3}, s{S_XS+3}")
    a(f"s_and_b32 s{sR2}, s{sI}, {3 if C.qrot else 0}\ns_lshl_b32 s{sR2}, s{sR2}, 1")
    if C.qtouch:
        a(f"s_mul_i32 s{T+2}, s2, {48*128}\ns_lshr_b32 s{T+3}, s2, 3\ns_mul_i32 s{T+3}, s{T+3}, {48*1024}\ns_addk_i32 s{T+3}, 384")
        a(f"s_cmp_eq_u32 s{sW}, 0\ns_cselect_b32 s{T+2}, s{T+2}, s{T+3}\ns_cselect_b32 s{T+3}, 7, 10\nv_min_u32 v41, 47, v{vL}\nv_lshlrev_b32 v41, s{T+3}, v41")
    if C.stamp: a("v_mov_b32 v6, 0\nv_mov_b32 v7, 0")
    def rest():
        for s, n in ((S_WS, "ws"), (S_WO, "wo"), (S_W1, "w1"), (S_W2, "w2"), (S_B1, "b1"), (S_B2, "b2"), (S_DBG, "dbg"), (S_XD, "x")):
            a(f"s_mov_b32 s{s+2}, {hex(SZ[n])}\ns_mov_b32 s{s+3}, 0x00020000")
        a(f"v_lshlrev_b32 v{vL16}, 4, v{vL}")
        a(f"s_lshl_b32 s{sXO}, s{sI}, 16\ns_lshl_b32 s{T}, s{sJ}, 7\ns_add_u32 s{sXO}, s{sXO}, s{T}")
        a(f"s_mov_b32 s{sLOC}, 0\ns_mov_b32 s{sL}, 0\ns_mov_b32 s{sLB}, 0\ns_mov_b32 s{sFL}, {WS_FLAG}")
        a(f"v_lshrrev_b32 v40, 3, v{vL}\nv_bfe_u32 v43, v{vL}, 4, 1\nv_lshlrev_b32 v43, 2, v43\nv_and_b32 v42, 7, v{vL}\nv_xor_b32 v43, v43, v42\nv_lshlrev_b32 v43, 4, v43")
        a(f"v_mul_u32_u24 v{vWQ}, 3072, v40\nv_add_u32 v{vWQ}, v{vWQ}, v43")
        a(f"s_lshl_b32 s{sVW}, s{sW}, 10\ns_add_u32 s{sVW}, s{sVW}, {V}")
        a(f"v_bfe_u32 v43, v{vN}, 1, 1\nv_bfe_u32 v42, v{vN}, 2, 1\nv_and_b32 v{vN}, 0x39, v{vN}\nv_lshl_add_u32 v{vN}, v43, 2, v{vN}\nv_lshl_add_u32 v{vN}, v42, 1, v{vN}")
        a(f"v_lshlrev_b32 v{vXO}, 10, v{vN}\nv_lshl_add_u32 v{vXO}, v{vC}, 4, v{vXO}")
        a(f"s_and_b32 s{sJR}, s{sJ}, {C.jrot}" + (f"\ns_lshr_b32 s{T}, s{sI}, 2\ns_add_u32 s{sJR}, s{sJR}, s{T}\ns_and_b32 s{sJR}, s{sJR}, 7" if C.xr8 else ""))
        prologue2(a)
    if C.early2: rest()
    L = a.label()
    a(f"s_cmp_gt_u32 s{sW}, 1\ns_waitcnt lgkmcnt(0)\ns_mov_b64 s[{S_XS}:{S_XS+1}], s[64:65]\ns_mov_b64 s[{S_QKV}:{S_QKV+1}], s[66:67]")
    if C.qtouch: a(f"s_cbranch_scc1 {L}\nbuffer_load_dword v143, v41, s[{S_QKV}:{S_QKV+3}], s{T+2} offen\n{L}:")
    x_dma(a, fl="")
    for s, n in ((S_WO, "wo"), (S_W1, "w1"), (S_W2, "w2"), (S_B1, "b1"), (S_B2, "b2")):
        a(f"s_mov_b64 s[{s}:{s+1}], s[{64 + KA[n]//4}:{65 + KA[n]//4}]")
    a(f"s_mov_b64 s[{sOUT}:{sOUT+1}], s[84:85]\ns_mov_b64 s[{S_DBG}:{S_DBG+1}], s[86:87]\ns_mov_b64 s[{S_WS}:{S_WS+1}], s[88:89]")
    if C.stamp:
        a(f"v_writelane_b32 v6, s96, 0\nv_writelane_b32 v6, s98, 32"); STAMPS.append("start")
    a(f"s_add_u32 s{S_XD}, s{S_WS}, {WS_X2}\ns_addc_u32 s{S_XD+1}, s{S_WS+1}, 0")
    if not C.early2: rest()

def prologue2(a):
    a(f"v_lshrrev_b32 v42, 2, v{vL}\nv_and_b32 v43, 3, v{vL}\nv_lshlrev_b32 v43, 4, v43")
    a(f"v_lshl_add_u32 v{vF2}, v42, 12, v43")
    a(f"v_lshrrev_b32 v42, 5, v{vL}\nv_lshlrev_b32 v42, 3, v42\nv_bfe_u32 v43, v{vL}, 2, 2\nv_add_u32 v42, v42, v43\nv_lshlrev_b32 v{vTRF}, 6, v42")
    a(f"v_bfe_u32 v43, v{vL}, 4, 1\nv_lshl_add_u32 v{vTRF}, v43, 5, v{vTRF}\nv_and_b32 v43, 3, v{vL}\nv_lshl_add_u32 v{vTRF}, v43, 3, v{vTRF}")
    a(f"v_add_u32 v{vTRF}, s{sVW}, v{vTRF}\nv_add_u32 v{vTRF}, {SVO}, v{vTRF}")
    a(f"s_lshr_b32 s{sW2S}, s{sW}, 1\ns_mul_i32 s{sW2S}, s{sW2S}, {448*4096}\ns_lshl_b32 s{T}, s{sI}, 7\ns_add_u32 s{sW2S}, s{sW2S}, s{T}")
    a(f"s_and_b32 s{T}, s{sW}, 1\ns_lshl_b32 s{T}, s{T}, 6\ns_add_u32 s{sW2S}, s{sW2S}, s{T}")

def tlb_touch(a):
    if not C.tlb: return
    a(f"s_sub_u32 s{T+4}, s{sW}, 4\ns_lshl_b32 s{T}, s{T+4}, 21")
    for k in range(4): a(f"s_add_u32 s{T+1}, s{T}, {(k & 1)*8*MB + (k >> 1)*LSTRIDE}\ns_buffer_load_dword s86, s[{S_WS}:{S_WS+3}], s{T+1}")
    for srd in (S_W1, S_W2): a(f"s_buffer_load_dword s86, s[{srd}:{srd+3}], s{T}")
    a(f"s_lshl_b32 s{T}, s{T+4}, 19\ns_load_dword s86, s[{sOUT}:{sOUT+1}], s{T}")
    a(f"s_buffer_load_dword s86, s[{S_WO}:{S_WO+3}], 0\ns_buffer_load_dword s86, s[{S_B1}:{S_B1+3}], 0\ns_buffer_load_dword s86, s[{S_B2}:{S_B2+3}], 0")

def init_sync(a, w=3):
    def body():
        a("v_mov_b32 v44, 0\nv_mov_b32 v45, 0\nv_mov_b32 v46, 0\nv_mov_b32 v47, 0")
        a(f"s_lshl_b32 s{T}, s2, 10\ns_add_u32 s{T}, s{T}, {WS_ST}\ns_add_u32 s{T+1}, s{T}, {LSTRIDE}")
        a(f"buffer_store_dwordx4 v[44:47], v{vL16}, s[{S_WS}:{S_WS+3}], s{T} offen sc1")
        a(f"buffer_store_dwordx4 v[44:47], v{vL16}, s[{S_WS}:{S_WS+3}], s{T+1} offen sc1")
        a(f"s_lshl_b32 s{T}, s2, 9\ns_add_u32 s{T}, s{T}, {WS_FLAG}\ns_mov_b32 exec_hi, 0")
        a(f"buffer_store_dwordx4 v[44:47], v{vL16}, s[{S_WS}:{S_WS+3}], s{T} offen sc1")
        if C.sent:
            a(f"s_mov_b64 exec, -1\nv_mov_b32 v100, -1\nv_mov_b32 v101, -1\nv_mov_b32 v102, -1\nv_mov_b32 v103, -1\ns_lshl_b32 s{T}, s2, 13\ns_add_u32 s{T}, s{T}, {WS_O}\ns_add_u32 s{T+1}, s{T}, 4096")
            for k in range(8): a(f"buffer_store_dwordx4 v[100:103], v{vL16}, s[{S_WS}:{S_WS+3}], s{T + (k >> 2)} offen offset:{(k & 3)*1024} sc1")
        a(f"s_getreg_b32 s{T+1}, hwreg(HW_REG_XCC_ID, 0, 4)\ns_mov_b64 exec, 1\nv_mov_b32 v48, s{T+1}")
        a(f"s_lshl_b32 s{T}, s{sI}, 3\ns_add_u32 s{T}, s{T}, s{sJ}\ns_lshl_b32 s{T}, s{T}, 4\ns_add_u32 s{T}, s{T}, {WS_XT}")
        a(f"buffer_store_dword v48, v{vL16}, s[{S_WS}:{S_WS+3}], s{T} offen sc1")
        a("s_mov_b64 exec, -1")
    if_wave_eq(a, w, body)

def init_arrive(a, w=3, pre="s_nop 0", tv=TV):
    L = a.label()
    a(f"s_cmp_lg_u32 s{sW}, {w}\ns_cbranch_scc1 {L}\n{pre}")
    a(f"v_mov_b32 v{tv}, 1\nv_mov_b32 v{tv+1}, 0\ns_and_b32 s{T}, s2, 63\ns_lshl_b32 s{T}, s{T}, 2\ns_mov_b64 exec, 1")
    a(f"buffer_atomic_add v{tv}, v{tv+1}, s[{S_DBG}:{S_DBG+3}], s{T} offen sc1")
    a(f"s_mov_b64 exec, -1\n{L}:")

def wait_init(a, vaddr):
    a(f"s_mov_b32 s{T+1}, {SPIN}")
    LP = a.label(); LD = a.label()
    a(f"{LP}:\nv_cmp_gt_u32 vcc, 4, v{TV+2}\ns_cbranch_vccz {LD}")
    a(f"buffer_load_dword v{TV+2}, v{vaddr}, s[{S_DBG}:{S_DBG+3}], 0 offen sc1\ns_waitcnt vmcnt(0)")
    a(f"s_sub_u32 s{T+1}, s{T+1}, 1\ns_cmp_lg_u32 s{T+1}, 0\ns_cbranch_scc1 {LP}")
    a(f"{LD}:\ns_mov_b64 exec, -1")

class VM:
    def __init__(self): self.ops = []
    def add(self, tag, n=1): self.ops += [tag]*n
    def need(self, *tags):
        last = max(k for k, t in enumerate(self.ops) if t in tags)
        return min(63, len(self.ops) - 1 - last)

vXD = 15
TAB = V + 5*8192
WS_ST2 = 12*MB + 512*1024
WS_CS = 13*MB

def x_dma(a, qs=range(8), fl="sc1"):
    X1 = 81
    a(f"s_lshl_b32 s{T}, s{sI}, 16\n" + (f"s_add_u32 s{T+1}, s{sW}, s{sJ}\ns_and_b32 s{T+1}, s{T+1}, 7\ns_lshl_b32 s{T+1}, s{T+1}, 10" if C.xrot else f"s_lshl_b32 s{T+1}, s{sW}, 10"))
    for q in qs:
        if not C.qrot:
            a(f"s_add_u32 m0, s{T+1}, {E + q*8192 - q*128}\ns_nop 0\nbuffer_load_dwordx4 v{vXD}, s[{S_XS}:{S_XS+3}], s{T} offen offset:{128*q} {fl} lds")
            continue
        if q % 2 == 0 or q == qs[0]: a(f"s_add_u32 s{X1}, s{sR2}, {q & 6}\ns_and_b32 s{X1}, s{X1}, 7\ns_lshl_b32 s{X1}, s{X1}, 7\ns_add_u32 s{X1}, s{X1}, s{T}")
        a(f"s_add_u32 m0, s{T+1}, {E + q*8192 - (q & 1)*128}\ns_nop 0")
        a(f"buffer_load_dwordx4 v{vXD}, s[{S_XS}:{S_XS+3}], s{X1} offen offset:{128*(q & 1)} {fl} lds")

def split_hi_lo(a, src, hi2, lo2, t, neg=False):
    if neg: a(f"v_sub_f32 v{src}, 0, v{src}")
    a(f"v_cvt_pk_bf16_f32 v{t}, v{src}, v{src}\nv_and_b32 v{t}, 0xffff0000, v{t}\nv_sub_f32 v{t+1}, v{src}, v{t}")

def own_stats(a, D, A, MUo, Ro, ADo):
    a(f"s_add_u32 s{T}, s{sW}, s{sJ}\ns_and_b32 s{T}, s{T}, 7" if C.xrot else f"s_mov_b32 s{T}, s{sW}")
    a(f"s_lshl_b32 s{T+1}, s{T}, 10\nv_add_u32 v{ADo}, s{T+1}, v{vL16}")
    for q in range(8): a(f"ds_read_b128 v[{D+4*q}:{D+4*q+3}], v{ADo} offset:{q*8192}")
    for r in range(4): a(f"v_mov_b32 v{A+r}, 0")
    a(f"v_mov_b32 v{A+4}, 0x3f803f80\ns_lshl_b32 s{T}, s{T}, 5\ns_add_u32 s{T}, s{T}, {TAB}\nv_lshrrev_b32 v{ADo}, 3, v{vL}\nv_lshlrev_b32 v{ADo}, 2, v{ADo}\nv_add_u32 v{ADo}, s{T}, v{ADo}")
    for q in range(8):
        a(f"s_waitcnt lgkmcnt({7-q})")
        for e in (0, 2):
            r = D+4*q+e
            a(f"v_dot2c_f32_bf16 v{A}, v{r}, v{A+4}\nv_dot2c_f32_bf16 v{A+2}, v{r}, v{r}\nv_dot2c_f32_bf16 v{A+1}, v{r+1}, v{A+4}\nv_dot2c_f32_bf16 v{A+3}, v{r+1}, v{r+1}")
    a(f"s_nop 2\nv_add_f32 v{MUo}, v{A}, v{A+1}\nv_add_f32 v{Ro}, v{A+2}, v{A+3}")
    dpp_red8(a, [MUo, Ro])
    a(f"v_mul_f32 v{MUo}, {f2u(1/512)}, v{MUo}\nv_mul_f32 v{Ro}, {f2u(1/512)}, v{Ro}")
    a(f"v_fma_f32 v{Ro}, -v{MUo}, v{MUo}, v{Ro}\nv_max_f32 v{Ro}, 0, v{Ro}\nv_add_f32 v{Ro}, {f2u(1e-5)}, v{Ro}\nv_rsq_f32 v{Ro}, v{Ro}")

def layer0_helpers(a):
    LJ = "L_p1_join"; LB = a.label()
    a(f"s_cmp_ge_u32 s{sW}, 6\ns_cbranch_scc1 {LB}")
    src, dst = T+2, T+3
    a(f"s_sub_u32 s{dst}, s{sW}, 4\ns_mul_i32 s{src}, s{dst}, {32*3072}\ns_lshl_b32 s{T}, s{sJ}, 7\ns_add_u32 s{src}, s{src}, s{T}")
    a(f"s_lshl_b32 s{dst}, s{dst}, 12\ns_add_u32 s{dst}, s{dst}, {V}")
    vm = VM()
    def unit(u):
        seg = qkv_row(a, T+1, src, u)
        for p in range(4):
            a(f"s_add_u32 m0, s{dst}, {qslot(u)*8192 + p*1024}\ns_add_u32 s{T}, s{T+1}, {seg + p*8*3072}")
            a(f"buffer_load_dwordx4 v{vWQ}, s[{S_QKV}:{S_QKV+3}], s{T} offen lds")
        vm.add(("w", u), 4)
    for u in range(C.h0first): unit(u)
    a(f"s_waitcnt vmcnt({4*C.h0first})")
    own_stats(a, 48, 80, 42, 44, 40)
    issued = C.h0first
    for u in range(C.h0second): unit(issued); issued += 1
    sched = [int(c) for c in C.hs0]
    for s in range(12):
        a(f"s_waitcnt vmcnt({vm.need(('w', 2*s+1))})" + (" lgkmcnt(0)" if s == 8 else "") + "\ns_barrier")
        if s == 7: a("ds_write_b32 v40, v42\nds_write_b32 v40, v44 offset:256")
        for _ in range(sched[s]):
            assert issued < 2*s + 12 and issued < 24
            unit(issued); issued += 1
        assert s == 11 or issued >= 2*s + 4
    assert issued == 24
    a(f"s_barrier\ns_branch {LJ}")
    a(f"{LB}:")
    init_sync(a, 7)
    if C.vtlb:
        def body():
            sh = C.vsh
            a(f"v_lshlrev_b32 v49, {sh}, v{vL}\ns_lshl_b32 s{T}, s2, 7")
            a(f"s_mov_b32 s{S_WS+2}, {hex(34*MB)}\nbuffer_load_dword v136, v49, s[{S_WS}:{S_WS+3}], s{T} offen\ns_mov_b32 s{S_WS+2}, {hex(SZ['ws'])}")
            for k, srd in enumerate((S_W1, S_W2, S_WO)): a(f"buffer_load_dword v{137+k}, v49, s[{srd}:{srd+3}], s{T} offen")
            a(f"buffer_load_dword v140, v49, s[{S_B1}:{S_B1+3}], 0 offen\nbuffer_load_dword v140, v49, s[{S_B2}:{S_B2+3}], 0 offen")
            a(f"v_and_b32 v50, 0x1fffff, v49\nglobal_load_dword v140, v50, s[{sOUT}:{sOUT+1}]")
        if_wave_eq(a, 6, body)
    L4 = a.label()
    a(f"s_waitcnt vmcnt({12 if C.sent else 4})\ns_cmp_eq_u32 s{sW}, 7\ns_cbranch_scc1 {L4}\ns_waitcnt vmcnt({7 if C.vtlb else 0})\n{L4}:")
    def w1touch(mask):
        a(f"s_lshl_b32 s{T}, s2, 1\ns_add_u32 s{T}, s{T}, s{sW}\ns_sub_u32 s{T}, s{T}, 6\ns_mul_i32 s{T+1}, s{T}, {112*128}\nv_min_u32 v49, 55, v{vL}\nv_lshlrev_b32 v49, 7, v49")
        if mask & 1: a(f"buffer_load_dword v141, v49, s[{S_W1}:{S_W1+3}], s{T+1} offen")
        if mask & 2: a(f"s_add_u32 s{T+1}, s{T+1}, {56*128}\nbuffer_load_dword v142, v49, s[{S_W1}:{S_W1+3}], s{T+1} offen")
        if mask & 4: a(f"s_lshl_b32 s{T+1}, s{T}, 10\nv_and_b32 v49, 0x380, v49\nbuffer_load_dword v143, v49, s[{S_WO}:{S_WO+3}], s{T+1} offen")
    if C.w1e == -1: w1touch(7 & ~C.w1mask)
    own_stats(a, 52, 84, 42, 43, 40)
    for s in range(12):
        if s == 8: a("s_waitcnt lgkmcnt(0)")
        a("s_barrier")
        if s == 7: a("ds_write_b32 v40, v42\nds_write_b32 v40, v43 offset:256")
        if s == C.arrs: init_arrive(a, 7, pre="s_waitcnt vmcnt(0)")
        if s == C.dbgs: a(f"v_lshlrev_b32 v41, 2, v{vL}\nbuffer_load_dword v{TV+2}, v41, s[{S_DBG}:{S_DBG+3}], 0 offen sc1")
        if s == C.w1t: w1touch(C.w1mask)
        if s == C.w1e: w1touch(7 & ~C.w1mask)
    assert C.w1t >= C.dbgs and C.w1e < C.dbgs
    a(f"s_waitcnt vmcnt({bin(C.w1mask).count('1') if C.w1t < 12 else 0})")
    if_wave_eq(a, 6, lambda: wait_init(a, 41))
    a("s_barrier")
    def pub():
        if C.lf: kl_publish(a)
        publish(a, "KV", sJ)
    if_wave_eq(a, 6, pub)
    a(f"s_branch {LJ}")

def helper_setup(a):
    src, dst = T+2, T+3
    a(f"s_sub_u32 s{dst}, s{sW}, 4\ns_mul_i32 s{src}, s{dst}, {16*3072}\ns_lshl_b32 s{T}, s{sJ}, 7\ns_add_u32 s{src}, s{src}, s{T}")
    a(f"s_lshl_b32 s{T}, s{dst}, 4\nv_lshrrev_b32 v40, 2, v{vL}\nv_add_u32 v40, s{T}, v40")
    a(f"s_lshl_b32 s{dst}, s{dst}, 11\ns_add_u32 s{dst}, s{dst}, {V}")

def helper_unit(a, u, vm):
    seg = qkv_row(a, T+1, T+2, u)
    for p in range(2):
        a(f"s_add_u32 m0, s{T+3}, {qslot(u)*8192 + p*1024}\ns_add_u32 s{T}, s{T+1}, {seg + p*8*3072}")
        a(f"buffer_load_dwordx4 v{vWQ}, s[{S_QKV}:{S_QKV+3}], s{T} offen lds")
    vm.add(("w", u), 2)

def helper_loop(a, layer, vm, issued, sched, LJ):
    ROW, S1, S2, G = 40, 42, 44, 48
    first = issued
    for s in range(12):
        tags = [t for t in [("x", s), ("w", 2*s+1)] if t in vm.ops]
        if s == 6 and layer == 1: tags.append("g")
        if tags: a(f"s_waitcnt vmcnt({vm.need(*tags)})")
        if s == 8: a("s_waitcnt lgkmcnt(0)")
        a("s_barrier")
        if s == 7: a(f"ds_write_b32 v{ROW}, v{S1}\nds_write_b32 v{ROW}, v{S2} offset:256")
        for _ in range(sched[s]):
            assert issued < 2*s + 12 and issued < 24
            helper_unit(a, issued, vm); issued += 1
        assert s == 11 or issued >= 2*s + 4
        if s == 6:
            if layer == 1: a(f"v_add_f32 v{S1}, v{G}, v{G+2}\nv_add_f32 v{S2}, v{G+1}, v{G+3}")
            for pat in ("quad_perm:[1,0,3,2]", "quad_perm:[2,3,0,1]"):
                a("s_nop 1")
                for r in (S1, S2): a(f"v_add_f32_dpp v{r}, v{r}, v{r} {pat} row_mask:0xf bank_mask:0xf")
            a(f"v_mul_f32 v{S1}, {f2u(1/512)}, v{S1}\nv_mul_f32 v{S2}, {f2u(1/512)}, v{S2}")
            a(f"v_fma_f32 v{S2}, -v{S1}, v{S1}, v{S2}\nv_max_f32 v{S2}, 0, v{S2}\nv_add_f32 v{S2}, {f2u(1e-5)}, v{S2}\nv_rsq_f32 v{S2}, v{S2}")
            a(f"v_lshlrev_b32 v{ROW}, 2, v{ROW}\nv_add_u32 v{ROW}, {TAB}, v{ROW}")
        if s == 8 and layer == 0:
            a(f"v_lshlrev_b32 v46, 2, v{vL}\nbuffer_load_dword v{TV+2}, v46, s[{S_DBG}:{S_DBG+3}], 0 offen sc1"); vm.add("dbg")
        if s == C.w1t and layer == 0:
            a(f"s_lshl_b32 s{T}, s2, 2\ns_add_u32 s{T}, s{T}, s{sW}\ns_sub_u32 s{T}, s{T}, 4\ns_mul_i32 s{T+1}, s{T}, {56*128}\nv_min_u32 v47, 55, v{vL}\nv_lshlrev_b32 v47, 7, v47")
            a(f"buffer_load_dword v142, v47, s[{S_W1}:{S_W1+3}], s{T+1} offen")
            a(f"s_lshl_b32 s{T+1}, s{T}, 9\nv_and_b32 v47, 0x180, v47\nbuffer_load_dword v143, v47, s[{S_WO}:{S_WO+3}], s{T+1} offen")
            vm.add("t", 2)
    assert issued == 24
    if layer == 0: a(f"s_waitcnt vmcnt({vm.need('dbg')})")
    def w4():
        if layer == 0: wait_init(a, 46)
        if C.lf: kl_publish(a)
        publish(a, "KV", sJ)
    if C.pub12:
        if layer == 0: if_wave_eq(a, 4, lambda: wait_init(a, 46))
        a("s_barrier")
        def w4b():
            if C.lf: kl_publish(a)
            publish(a, "KV", sJ)
        if_wave_eq(a, 4, w4b)
    else:
        if_wave_eq(a, 4, w4)
        a("s_barrier")
    a(f"s_branch {LJ}")

def x_start(a):
    a(f"s_mov_b32 s{sFL}, {WS_FLAG + 512*128}\ns_barrier")
    stamp(a, "p1.polled")
    if C.xp < 8:
        x_dma(a, range(C.xp)); a("s_barrier"); x_dma(a, range(C.xp, 8))
    else: x_dma(a)

def phase1(a):
    LC = "L_p1_cons"; LJ = "L_p1_join"
    a(f"s_cmp_lt_u32 s{sW}, 4\ns_cbranch_scc1 {LC}")
    helper_setup(a)
    a(f"v_and_b32 v41, 3, v{vL}\nv_lshlrev_b32 v41, 9, v41\nv_lshl_add_u32 v41, v40, 3, v41")
    if_wave_eq(a, 4, lambda: poll(a, "X", sI, 8))
    keep = C.stamp; C.stamp = False; x_start(a); C.stamp = keep
    a(f"s_lshl_b32 s{T}, s{sI}, 12\ns_add_u32 s{T}, s{T}, {WS_ST2}")
    a(f"buffer_load_dwordx2 v[48:49], v41, s[{S_WS}:{S_WS+3}], s{T} offen sc1\nbuffer_load_dwordx2 v[50:51], v41, s[{S_WS}:{S_WS+3}], s{T} offen offset:2048 sc1")
    vm = VM()
    for q in range(8): vm.add(("x", q))
    vm.add("g", 2)
    helper_loop(a, 1, vm, sum(int(c) for c in C.sch2), [int(c) for c in C.hs1], LJ)
    a(f"{LC}:")
    tt, ch = T+2, T+3
    a(f"s_and_b32 s{tt}, s{sW}, 1\ns_lshr_b32 s{ch}, s{sW}, 1")
    XA = 40
    a(f"v_and_b32 v44, 31, v{vL}\ns_lshl_b32 s{T}, s{tt}, 5\nv_add_u32 v44, s{T}, v44\nv_lshlrev_b32 v38, 2, v44\nv_add_u32 v38, {TAB}, v38")
    a(f"v_bfe_u32 v45, v{vL}, 1, 3\nv_lshrrev_b32 v46, 5, v{vL}\nv_xor_b32 v45, v45, v46\nv_lshlrev_b32 v45, 4, v45\nv_lshl_add_u32 v{XA}, v44, 7, v45")
    for m in range(1, 4): a(f"v_xor_b32 v{XA+m}, {32*m}, v{XA}")
    a(f"s_lshl_b32 s{T}, s{tt}, 7\ns_add_u32 s{T}, s{T}, {TAB+256}\nv_lshlrev_b32 v37, 4, v46\nv_add_u32 v37, s{T}, v37")
    WL, WH = 44, 45
    tr_addr(a, WL, f"s{ch}", False, 46, 47)
    a(f"v_add_u32 v{WL}, {V}, v{WL}\nv_add_u32 v{WH}, {6*8192}, v{WL}")
    AK, AV, AQ = 48, 64, 80
    CS, SEL = 24, 32
    SIX = 21
    a(f"v_lshrrev_b32 v46, 4, v{vL}\nv_xor_b32 v46, v46, v{vL}\nv_and_b32 v46, 2, v46\nv_and_b32 v47, 12, v{vL}\nv_or_b32 v46, v46, v47\nv_mov_b32 v47, 0x3f803f80")
    a(f"v_cmp_eq_u32 vcc, 0, v46\ns_nop 1\nv_cndmask_b32 v{SEL}, 0, v47, vcc\nv_cmp_eq_u32 vcc, 4, v46\nv_mov_b32 v{SEL+1}, v{SEL}\ns_nop 0\nv_cndmask_b32 v{SEL+2}, 0, v47, vcc\nv_mov_b32 v{SEL+3}, v{SEL+2}")
    a(f"v_and_b32 v46, 1, v{vL}\nv_mul_u32_u24 v46, 0xaaaa, v46\nv_or_b32 v{SIX}, 0x4444, v46\nv_lshl_add_u32 v{SIX}, v{SIX}, 16, v{SIX}")
    csoff = T+8
    a(f"s_lshl_b32 s{csoff}, s2, 2\ns_add_u32 s{csoff}, s{csoff}, s{sW}\ns_lshl_b32 s{csoff}, s{csoff}, 10\ns_add_u32 s{csoff}, s{csoff}, {WS_CS}")
    for r in range(8): a(f"v_mov_b32 v{CS+r}, 0")
    def fr(buf, n):
        if buf == 0: return ("a", n)
        return ("a", 64+n) if n < 48 else ("v", 96 + n - 48)
    def R(buf, n, w):
        p, b = fr(buf, n); return f"{p}[{b}:{b+w-1}]"
    def wslot(u):
        s = qslot(u)
        return (WL, s*8192) if s < 6 else (WH, (s-6)*8192)
    def rd(s):
        buf = s & 1; out = []
        if s < 8:
            for t in range(4):
                out.append(f"ds_read_b128 {R(buf, 12*t, 4)}, v{XA+t} offset:{8192*s}")
                for seg in range(2):
                    va, off = wslot(2*s+seg)
                    for e in range(2):
                        out.append(f"ds_read_b64_tr_b16 {R(buf, 12*t+4+4*seg+2*e, 2)}, v{va} offset:{off + t*2048 + e*512}")
        else:
            for t in range(8):
                out.append(f"ds_read_b128 {R(buf, 16*(t>>1)+4*(t&1), 4)}, v{XA+(t&3)} offset:{16384*(s-8) + (t>>2)*8192}")
                va, off = wslot(2*s + (t >> 2))
                for e in range(2):
                    out.append(f"ds_read_b64_tr_b16 {R(buf, 16*(t>>1)+8+4*(t&1)+2*e, 2)}, v{va} offset:{off + (t&3)*2048 + e*512}")
        return out
    def mf(s):
        buf = s & 1; out = []
        if s < 8:
            for t in range(4):
                z = s == 0 and t == 0
                out.append(f"v_mfma_f32_32x32x16_bf16 v[{AK}:{AK+15}], {R(buf, 12*t+4, 4)}, {R(buf, 12*t, 4)}, " + ("0" if z else f"v[{AK}:{AK+15}]"))
                out.append(f"v_mfma_f32_32x32x16_bf16 v[{AV}:{AV+15}], {R(buf, 12*t, 4)}, {R(buf, 12*t+8, 4)}, " + ("0" if z else f"v[{AV}:{AV+15}]"))
        else:
            for t in range(8):
                out.append(f"v_mfma_f32_32x32x16_bf16 v[{AQ}:{AQ+15}], {R(buf, 16*(t>>1)+8+4*(t&1), 4)}, {R(buf, 16*(t>>1)+4*(t&1), 4)}, " + ("0" if s == 8 and t == 0 else f"v[{AQ}:{AQ+15}]"))
        return out
    OOL = []
    def csum(s):
        buf = s & 1
        L = a.label("Lcs"); LR = a.label("Lcr")
        a(f"s_cbranch_vccnz {L}\n{LR}:")
        o = [f"{L}:"]
        if s < 8:
            for t in range(4): o.append(f"v_smfmac_f32_16x16x64_bf16 v[{CS}:{CS+3}], v[{SEL}:{SEL+3}], {R(buf, 12*t+4, 8)}, v{SIX}")
            if s == 6: o += ["ds_write_b32 v126, v124", "ds_write_b32 v126, v125 offset:256"]
            if s == 7: o += ["s_nop 7", f"v_add_f32 v{ST4}, v{CS}, v{CS+1}", f"v_add_f32 v{ST4+1}, v{CS+2}, v{CS+3}"]
        else:
            for p in range(4): o.append(f"v_smfmac_f32_16x16x64_bf16 v[{CS+4}:{CS+7}], v[{SEL}:{SEL+3}], {R(buf, 16*p+8, 8)}, v{SIX}")
            if s == 11: o += ["s_nop 7", f"v_add_f32 v{CS+4}, v{CS+4}, v{CS+5}", f"v_add_f32 v{CS+6}, v{CS+6}, v{CS+7}", f"v_add_f32 v{ST4+2}, v{CS+4}, v{CS+6}"]
        o.append(f"s_branch {LR}")
        OOL.append("\n".join(o))
    ST4 = 16
    def inter(m, r, per):
        per = max(per, -(-len(r)//len(m)))
        for x in range(len(m)):
            a(m[x])
            for y in r[x*per:(x+1)*per]: a(y)
    a(f"s_lshl_b32 s{T+4}, s{sI}, 1\ns_add_u32 s{T+4}, s{T+4}, s{tt}")
    a(f"s_lshl_b32 s{T+5}, s{sJ}, 2\ns_lshl_b32 s{T+6}, s{ch}, 1\ns_add_u32 s{T+5}, s{T+5}, s{T+6}")
    a(f"s_lshl_b32 s{T+5}, s{T+5}, 6\ns_add_u32 s{T+5}, s{T+5}, s{T+4}")
    a(f"s_lshl_b32 s{T+4}, s{T+5}, 11\ns_add_u32 s{T+4}, s{T+4}, s{sLB}\ns_add_u32 s{T+5}, s{T+4}, 131072")
    assert WS_KV == 0
    a(f"v_and_b32 v46, 0x33, v{vL}\nv_bfe_u32 v47, v{vL}, 2, 1\nv_lshl_add_u32 v46, v47, 3, v46\nv_bfe_u32 v47, v{vL}, 3, 1\nv_lshl_add_u32 v46, v47, 2, v46\nv_lshlrev_b32 v46, 4, v46")
    a(f"v_bfe_u32 v39, v{vL}, 4, 1\nv_lshlrev_b32 v47, 17, v39\nv_lshrrev_b32 v39, 5, v{vL}\nv_lshl_add_u32 v47, v39, 8, v47\nv_and_b32 v39, 15, v{vL}\nv_lshl_add_u32 v47, v39, 4, v47")
    Lx = a.label()
    a(f"s_cmp_eq_u32 s{sL}, 0\ns_cbranch_scc1 L_p1_stats0")
    x_start(a)
    a(f"{Lx}:")
    b = Asm(); b.n = 91000
    b("L_p1_stats0:\ns_waitcnt vmcnt(0)")
    stamp(b, "p1.xarr")
    own_stats(b, 48, 116, 124, 125, 126)
    b(f"s_branch {Lx}")
    OOL.append("\n".join(b.L))
    a(f"buffer_load_dwordx4 v[{ST4}:{ST4+3}], v{vL16}, s[{S_WS}:{S_WS+3}], s{csoff} offen sc1")
    a("s_waitcnt vmcnt(8)\ns_barrier")
    stamp(a, "p1.b0")
    for x in rd(0): a(x)
    P, RB, MU, RR = 112, 128, 36, 39
    def aug_w(seg, d):
        return [f"v_cvt_pk_bf16_f32 v{d}, v{ST4+seg}, v{ST4+seg}", f"v_and_b32 v{d+1}, 0xffff0000, v{d}", f"v_sub_f32 v{d+1}, v{ST4+seg}, v{d+1}", f"v_cvt_pk_bf16_f32 v{d+1}, v{d+1}, v{d+1}"]
    XM = 22
    a(f"s_cmp_eq_u32 s{sL}, 0\ns_cselect_b64 vcc, -1, 0")
    def waitbar(s):
        vmw = f"vmcnt({7-s}) " if s < 7 else ("vmcnt(0) " if s == 7 or (s == 10 and not C.pub12) else "")
        a(f"s_waitcnt {vmw}lgkmcnt(0)\ns_barrier")
        stamp(a, f"zq.{s+1:02d}")
    waitbar(0)
    for s in range(12):
        m = mf(s)
        r = rd(s+1) if s < 11 else []
        csum(s)
        if s == 7:
            tab = [f"ds_read_b32 v{MU}, v38", f"ds_read_b32 v{RR}, v38 offset:256"] + [f"ds_read_b128 v[{RB+4*k}:{RB+4*k+3}], v37 offset:{32*k}" for k in range(4)]
            mk = m[0::2]; mv = m[1::2]
            aw = aug_w(0, 24) + aug_w(1, 26)
            xm = [f"v_sub_f32 v{MU}, 0, v{MU}", f"v_cvt_pk_bf16_f32 v{XM}, v{MU}, v{MU}", f"v_and_b32 v{XM+1}, 0xffff0000, v{XM}", f"v_sub_f32 v{XM+1}, v{MU}, v{XM+1}", f"v_cvt_pk_bf16_f32 v{XM}, v{MU}, v{XM+1}", f"v_mov_b32 v{XM+1}, v{XM}"]
            a(mk[0]); [a(x) for x in tab]
            a(mk[1]); [a(x) for x in aw[:4] + r[:3]]
            a(mk[2]); [a(x) for x in aw[4:] + r[3:6]]
            a(mk[3]); a("s_waitcnt lgkmcnt(10)"); [a(x) for x in xm]
            a(mv[0]); [a(x) for x in r[6:9]]
            a(f"v_mfma_f32_32x32x8_bf16 v[{AK}:{AK+15}], v[24:25], v[{XM}:{XM+1}], v[{AK}:{AK+15}]"); [a(x) for x in r[9:14]]
            a(mv[1]); [a(x) for x in r[14:19]]
            a(mv[2]); [a(x) for x in r[19:24]]
            a(mv[3])
            for k in range(10): a(f"v_mul_f32 v{AK+k}, v{AK+k}, v{RR}")
            a(f"v_mfma_f32_32x32x8_bf16 v[{AV}:{AV+15}], v[{XM}:{XM+1}], v[26:27], v[{AV}:{AV+15}]")
            for k in range(10, 16): a(f"v_mul_f32 v{AK+k}, v{AK+k}, v{RR}")
            for k in range(8): a(f"v_cvt_pk_bf16_f32 v{P+k}, v{AK+2*k}, v{AK+2*k+1}")
            a(f"buffer_store_dwordx4 v[{P}:{P+3}], v46, s[{S_WS}:{S_WS+3}], s{T+4} offen sc1")
            a(f"buffer_store_dwordx4 v[{P+4}:{P+7}], v46, s[{S_WS}:{S_WS+3}], s{T+5} offen sc1")
            a("s_waitcnt lgkmcnt(15)")
            for k in range(16): a(f"v_mul_f32 v{AV+k}, v{AV+k}, v{RB+k}")
            for k in range(8): a(f"v_cvt_pk_bf16_f32 v{P+8+k}, v{AV+2*k}, v{AV+2*k+1}")
            a(f"buffer_store_dwordx4 v[{P+8}:{P+11}], v47, s[{S_WS}:{S_WS+3}], s{T+4} offen offset:1024 sc1")
            a(f"buffer_store_dwordx4 v[{P+12}:{P+15}], v47, s[{S_WS}:{S_WS+3}], s{T+4} offen offset:1536 sc1")
            stamp(a, "p1.kvst")
            waitbar(8)
        elif s < 11:
            e = C.early
            per = -(-len(r)//min(e, 5))
            for x in range(8):
                a(m[x])
                for y in r[x*per:(x+1)*per]: a(y)
                if x == e: waitbar(s+1) if s < 10 else a("s_waitcnt vmcnt(0) lgkmcnt(0)\ns_barrier")
        else:
            aw = aug_w(2, 24)
            a(m[0])
            a(f"s_lshl_b32 s{T+6}, s{ch}, 12\ns_lshl_b32 s{T+7}, s{tt}, 10\ns_add_u32 s{T+6}, s{T+6}, s{T+7}\ns_add_u32 s{T+6}, s{T+6}, {QX}\nv_add_u32 v46, s{T+6}, v{vL16}")
            a(m[1]); [a(x) for x in aw]
            a(f"v_mul_f32 v{RR}, {f2u(0.25*1.4426950408889634)}, v{RR}")
            for x in m[2:]: a(x)
    stamp(a, "p1.mfma")
    a("s_nop 9")
    a(f"v_mfma_f32_32x32x8_bf16 v[{AQ}:{AQ+15}], v[24:25], v[{XM}:{XM+1}], v[{AQ}:{AQ+15}]")
    a(f"buffer_store_dwordx4 v[{ST4}:{ST4+3}], v{vL16}, s[{S_WS}:{S_WS+3}], s{csoff} offen sc1")
    a("s_nop 10")
    for r in range(16): a(f"v_mul_f32 v{AQ+r}, v{AQ+r}, v{RR}")
    for r in range(8): a(f"v_cvt_pk_bf16_f32 v{P+r}, v{AQ+2*r}, v{AQ+2*r+1}")
    a(f"ds_write_b128 v46, v[{P}:{P+3}]\nds_write_b128 v46, v[{P+4}:{P+7}] offset:2048")
    a(f"{LJ}:")
    return OOL

hh, kh, head, kvs, w1s, w1c, wos, tch, ring, kro, kfa = T+2, T+3, T+4, T+5, T+6, T+7, T+8, T+9, T+10, T+11, T+12
TD, VA_, IDX, TA, vF1, vWO, SGA, Q, S, O, KR, VR = 16, 18, 19, 20, 21, 22, 23, 24, [32, 48], [80, 64], 96, 112
ost, osrc, cgive, ctake = 88, 90, 92, 93
CST = E + 33792
CMB = E + 37888

def wo_reads():
    o = []
    for t in range(8):
        for y in range(2):
            b = 80 + 8*t + 4*y
            o += [f"ds_read_b64_tr_b16 v[{b}:{b+1}], v{20+2*y} offset:{t*2048}", f"ds_read_b64_tr_b16 v[{b+2}:{b+3}], v{20+2*y} offset:{t*2048+1024}"]
    return o

def phase2(a):
    t0, t1 = S[0], S[0]+1
    a(f"s_and_b32 s{hh}, s{sW}, 3\ns_lshr_b32 s{kh}, s{sW}, 2\ns_lshl_b32 s{head}, s{sJ}, 2\ns_add_u32 s{head}, s{head}, s{hh}")
    a(f"s_lshl_b32 s{kvs}, s{head}, 17\ns_lshl_b32 s{T}, s{kh}, 11\ns_add_u32 s{kvs}, s{kvs}, s{T}\ns_add_u32 s{kvs}, s{kvs}, s{sLB}")
    a(f"s_lshr_b32 s{kro}, s{sI}, 2\ns_lshl_b32 s{kro}, s{kro}, 14")
    a(f"s_lshl_b32 s{ring}, s{sW}, 12")
    Lk = a.label()
    a(f"s_cmp_lt_u32 s{sW}, 4\ns_cbranch_scc1 {Lk}")
    a(f"v_and_b32 v{t0}, 3, v{vL}\nv_cmp_eq_u32 vcc, 1, v{t0}\nv_mov_b32 v{t1}, 0x3f803f80\ns_nop 0\nv_cndmask_b32 v{t0+4}, 0, v{t1}, vcc")
    a(f"v_mov_b32 v{t0+5}, v{t0+4}\nv_mov_b32 v{t0+6}, v{t0+4}\nv_mov_b32 v{t0+7}, v{t0+4}")
    a(f"s_lshl_b32 s{T}, s{sW}, 10\ns_add_u32 s{T}, s{T}, {CST - 4096}\nv_add_u32 v{t0}, s{T}, v{vL16}\nds_write_b128 v{t0}, v[{t0+4}:{t0+7}]")
    if C.lf: if_wave_eq(a, 5, lambda: kl_poll(a))
    else: if_wave_eq(a, 5, lambda: poll(a, "KV", sJ, 32))
    a(f"{Lk}:")
    def post_setup():
        a(f"v_lshrrev_b32 v{t0}, 5, v{vL}\nv_lshlrev_b32 v{VA_}, 8, v{t0}\nv_and_b32 v{t0}, 15, v{vL}\nv_lshl_add_u32 v{VA_}, v{t0}, 4, v{VA_}\nv_add_u32 v{VA_}, s{ring}, v{VA_}\nv_add_u32 v{VA_}, 1024, v{VA_}")
        a(f"v_add_u32 v{t1}, 4, v{t0}\nv_and_b32 v{t1}, 8, v{t1}\nv_lshlrev_b32 v{t1}, 3, v{t1}\nv_add_u32 v{t1}, {CST}, v{t1}")
        a(f"v_and_b32 v{t0}, 11, v{vL}\nv_cmp_eq_u32 vcc, 0, v{t0}\nv_add_u32 v{t0}, 16, v{t1}\ns_nop 0\nv_cndmask_b32 v{t1}, v{t1}, v{t0}, vcc")
        a(f"v_and_b32 v{t0}, 16, v{vL}\nv_cmp_eq_u32 vcc, 0, v{t0}\ns_nop 1\nv_cndmask_b32 v{VA_}, v{t1}, v{VA_}, vcc")
        a(f"v_mov_b32 v{IDX}, 0xdddddddd\ns_mov_b32 s94, 0xffff\ns_mov_b32 s95, 0xffff")
        for r in range(32): a(f"v_mov_b32 v{64+r}, 0")
        if C.skip7: a(f"s_cmp_ge_u32 s{sI}, 28\ns_cselect_b32 s{S_W1+2}, 0, s{S_W1+2}")
        a(f"s_cmp_lg_u32 s{sL}, 0\ns_cselect_b32 s{S_QKV+2}, 0, s{S_QKV+2}")
        a(f"s_lshr_b32 s{w1s}, s{sW}, 1\ns_mul_i32 s{w1s}, s{w1s}, {512*3584}\ns_lshl_b32 s{T}, s{sI}, 7\ns_add_u32 s{w1s}, s{w1s}, s{T}")
        a(f"s_and_b32 s{T+1}, s{sW}, 1\ns_lshl_b32 s{T+1}, s{T+1}, 6\ns_add_u32 s{w1s}, s{w1s}, s{T+1}\ns_sub_u32 s{w1s}, s{w1s}, {16*3584}")
        if C.tmix:
            a(f"s_lshl_b32 s{tch}, s{sJ}, 2\ns_and_b32 s{T+1}, s{sI}, 3\ns_add_u32 s{tch}, s{tch}, s{T+1}\ns_lshl_b32 s{tch}, s{tch}, 3\ns_add_u32 s{tch}, s{tch}, s{sW}\ns_mul_i32 s{tch}, s{tch}, {7*4096}")
            a(f"s_lshr_b32 s{T+1}, s{sI}, 2\ns_lshl_b32 s{T+1}, s{T+1}, 9\ns_add_u32 s{tch}, s{tch}, s{T+1}")
            a(f"v_lshrrev_b32 v{TA}, 2, v{vL}\nv_lshlrev_b32 v{TA}, 12, v{TA}\nv_and_b32 v{t1}, 3, v{vL}\nv_lshl_add_u32 v{TA}, v{t1}, 7, v{TA}")
        else:
            a(f"s_lshl_b32 s{tch}, s{sJ}, 3\ns_add_u32 s{tch}, s{tch}, s{sW}\ns_mul_i32 s{tch}, s{tch}, {28*4096}\ns_add_u32 s{tch}, s{tch}, s{T}")
            a(f"v_lshlrev_b32 v{TA}, 12, v{vL}")
        a(f"v_cmp_gt_u32 vcc, 28, v{vL}\nv_mov_b32 v{t1}, 0x40000000\ns_nop 0\nv_cndmask_b32 v{TA}, v{t1}, v{TA}, vcc")
        a(f"s_lshl_b32 s{wos}, s{sW}, 13\ns_lshl_b32 s{T}, s{sJ}, 7\ns_add_u32 s{wos}, s{wos}, s{T}")
        a(f"s_lshl_b32 s{T}, s{hh}, 11\ns_add_u32 s{T}, s{T}, {QX}\nv_add_u32 v{t1}, s{T}, v{vL16}\nv_subrev_u32 v{SGA}, {SVO}, v{vTRF}")
        a(f"v_lshrrev_b32 v{t0+2}, 2, v{vL}\nv_and_b32 v{t0+3}, 3, v{vL}\nv_lshlrev_b32 v{t0+3}, 4, v{t0+3}\nv_mul_u32_u24 v{vF1}, 3584, v{t0+2}\nv_add_u32 v{vF1}, v{vF1}, v{t0+3}")
        a(f"v_lshrrev_b32 v{t0+2}, 3, v{vL}\nv_lshlrev_b32 v{t0+2}, 11, v{t0+2}\nv_sub_u32 v{vWO}, v{vWQ}, v{t0+2}")
        if C.lf: flag_addr(a, "KV", kfa)
    a("s_waitcnt lgkmcnt(0)\ns_barrier")
    stamp(a, "p2.start")
    vm = VM()
    kcur = T+13
    assert C.lfi < C.lfc
    GP = 128
    def kv_issue(t):
        k = KR + 4*(t & 3)
        if t % 4 == 0: a(f"s_add_u32 s{kcur}, s{kvs}, s{kro}\ns_add_u32 s{kro}, s{kro}, 16384\ns_and_b32 s{kro}, s{kro}, {'0x3fff' if C.kvsame else '0x1ffff'}")
        else: a(f"s_addk_i32 s{kcur}, 4096")
        a(f"s_add_u32 m0, s{ring}, {(t & 3)*1024}")
        a(f"buffer_load_dwordx4 v[{k}:{k+3}], v{vL16}, s[{S_WS}:{S_WS+3}], s{kcur} offen sc1{' nt' if C.ntkv else ''}")
        a(f"buffer_load_dwordx4 v{vL16}, s[{S_WS}:{S_WS+3}], s{kcur} offen offset:1024 sc1{' nt' if C.ntkv else ''} lds")
        vm.add(("kv", t), 2)
    def v_read(t):
        v = VR + 8*(t & 1)
        msk = C.vmask and t >= 2
        if msk: a(f"s_mov_b64 exec, s[94:95]")
        a(f"ds_read_b128 v[{v}:{v+3}], v{VA_} offset:{(t & 3)*1024}\nds_read_b128 v[{v+4}:{v+7}], v{VA_} offset:{(t & 3)*1024 + 512}")
        if msk: a("s_mov_b64 exec, -1")
    def w1_issue(f):
        if f % 4 == 0:
            a(f"s_add_u32 s{w1c}, s{sJR}, {f//4}\ns_and_b32 s{w1c}, s{w1c}, 7\ns_mul_i32 s{w1c}, s{w1c}, {64*3584}\ns_add_u32 s{w1c}, s{w1c}, s{w1s}")
        a(f"s_add_u32 m0, s{sVW}, {STG - V + (f & 3)*8192}\ns_add_u32 s{w1c}, s{w1c}, {16*3584}")
        a(f"buffer_load_dwordx4 v{vF1}, s[{S_W1}:{S_W1+3}], s{w1c} offen{' nt' if C.w1nt else ''} lds")
        vm.add(("w1", f))
    def wo_issue(u):
        a(f"s_add_u32 m0, s{sVW}, {SVO + u*8192}\ns_add_u32 s{T}, s{wos}, {u*65536}")
        a(f"buffer_load_dwordx4 v{vWO}, s[{S_WO}:{S_WO+3}], s{T} offen lds")
        vm.add(("wo", u))
    def touch(n):
        a(f"s_cmp_eq_u32 s{sJ}, {n}\ns_cselect_b32 s{T}, s{tch}, 0x40000000")
        a(f"buffer_load_dword v{TD}, v{TA}, s[{S_W2}:{S_W2+3}], s{T} offen")
        vm.add(("t", n))
    def ex(s, r0, r1):
        for r in range(r0, r1): a(f"v_exp_f32 v{s+r}, v{s+r}")
    def setprio(p):
        L = a.label()
        a(f"s_cmp_lg_u32 s{kh}, 0\ns_cbranch_scc1 {L}\ns_setprio {p}\n{L}:")
    def qk(q, t): a(f"v_mfma_f32_32x32x16_bf16 v[{S[q]}:{S[q]+15}], v[{KR+4*(t&3)}:{KR+4*(t&3)+3}], v[{Q+4*q}:{Q+4*q+3}], 0")
    def pv(q, t, h): a(f"v_smfmac_f32_32x32x32_bf16 v[{O[q]}:{O[q]+15}], v[{VR+8*(t&1)+4*h}:{VR+8*(t&1)+4*h+3}], v[{S[q]+8*h}:{S[q]+8*h+7}], v{IDX}")
    kv_issue(0); kv_issue(1)
    post_setup()
    a(f"s_lshl_b32 s{T}, s{kh}, 10\nv_add_u32 v{t1}, s{T}, v{t1}\nv_xor_b32 v{t0}, 1024, v{t1}")
    a(f"ds_read_b128 v[{Q}:{Q+3}], v{t0}\nds_read_b128 v[{Q+4}:{Q+7}], v{t1}")
    a(f"s_lshl_b32 s{ost}, s{sI}, 1\ns_add_u32 s{ost}, s{ost}, s{kh}\ns_lshl_b32 s{ost}, s{ost}, 5\ns_add_u32 s{ost}, s{ost}, s{head}\ns_lshl_b32 s{ost}, s{ost}, 10")
    a(f"s_add_u32 s{ost}, s{ost}, {WS_O}\ns_add_u32 s{ost}, s{ost}, s{sLB}")
    a(f"s_and_b32 s{osrc}, s{sW}, 1\ns_lshl_b32 s{osrc}, s{osrc}, 15\ns_lshr_b32 s{T}, s{sW}, 1\ns_lshl_b32 s{T}, s{T}, 13\ns_add_u32 s{osrc}, s{osrc}, s{T}")
    a(f"s_lshl_b32 s{T}, s{sI}, 16\ns_add_u32 s{osrc}, s{osrc}, s{T}\ns_add_u32 s{osrc}, s{osrc}, {WS_O}\ns_add_u32 s{osrc}, s{osrc}, s{sLB}\ns_add_u32 s{osrc+1}, s{osrc}, 4096")
    a(f"s_mul_i32 s{cgive}, s{sW}, 3072\ns_add_u32 s{cgive}, s{cgive}, {CMB}\ns_xor_b32 s{ctake}, s{sW}, 4\ns_mul_i32 s{ctake}, s{ctake}, 3072\ns_add_u32 s{ctake}, s{ctake}, {CMB}")
    tr_addr(a, 131, "0", True, 132, 133)
    a(f"s_lshr_b32 s{T}, s{sW}, 1\ns_lshl_b32 s{T}, s{T}, 14\ns_add_u32 s{T}, s{T}, {V+SVO}\nv_add_u32 v131, s{T}, v131")
    if C.prio: a("s_setprio 1")
    a(f"s_waitcnt vmcnt(2) lgkmcnt(0)")
    qk(0, 0)
    v_read(0)
    kv_issue(2); kv_issue(3)
    a(f"s_lshr_b32 s{T}, s{sI}, 2\ns_lshl_b32 s{T}, s{T}, 9\ns_add_u32 s{T}, s{T}, {WS_XT}\nv_and_b32 v17, 0x1f0, v{vL16}")
    a(f"buffer_load_dword v17, v17, s[{S_WS}:{S_WS+3}], s{T} offen sc1"); vm.add("xt")
    if C.c3:
        a(f"s_lshr_b32 s{T}, s2, 3\ns_lshl_b32 s{T}, s{T}, 3\ns_add_u32 s{T}, s{T}, s{sW}\ns_lshl_b32 s{T+1}, s{T}, 11\ns_add_u32 s{T+1}, s{T+1}, 384")
        a(f"v_min_u32 v{GP+1}, 1, v{vL}\nv_lshlrev_b32 v{GP+1}, 10, v{GP+1}\nbuffer_load_dword v{GP+1}, v{GP+1}, s[{S_WO}:{S_WO+3}], s{T+1} offen")
        a(f"s_mul_i32 s{T}, s{T}, {8*3584}\ns_or_b32 s{T+1}, s{sI}, 3\ns_lshl_b32 s{T+1}, s{T+1}, 7\ns_add_u32 s{T}, s{T}, s{T+1}")
        a(f"v_min_u32 v{GP+2}, 7, v{vL}\nv_mul_u32_u24 v{GP+2}, 3584, v{GP+2}\nbuffer_load_dword v{GP+2}, v{GP+2}, s[{S_W1}:{S_W1+3}], s{T} offen")
        vm.add("c3", 2)
    stamp(a, "p2.kv0")
    a("s_nop 1")
    per = C.pper; low = C.plow
    m1, m2, m3 = [int(c, 16) for c in C.mp]; cp = min(max(C.cpos, m2), m3); assert m1 >= 2 and m3 >= 10
    for t in range(32):
        for q in range(2):
            hidx = 2*t + q
            if C.prio and hidx % per == 0: setprio(2)
            if C.prio and hidx % per == per - low: setprio(0)
            ex(S[q], 0, m1)
            if q == 0:
                if t > 0: pv(1, t-1, 1)
            else: pv(0, t, 1)
            ex(S[q], m1, m2)
            nq = len(a.L)
            if q == 0:
                qk(1, t)
                ex(S[q], m2, cp)
                need = [("kv", t+1)] if t < 31 else []
                if not C.nox and 3 <= t < 31: need.append(("w1", t-3))
                if C.lf and t == C.lfc: need.append("gp")
                a(f"s_waitcnt vmcnt({vm.need(*need) if need else 63}) lgkmcnt(0)")
                if C.lf and t == C.lfi: apoll_issue(a, kfa, GP); vm.add("gp")
                if C.lf and t == C.lfc:
                    apoll_check(a, kfa, GP, 32)
                    for k in range(4, t+4): kv_issue(k)
                if t+4 < 32 and not (C.lf and t < C.lfc): kv_issue(t+4)
                if t+1 < 32: v_read(t+1)
                if not C.nox and not C.split:
                    w1_issue(t)
                    if 3 <= t < 31:
                        for x in frag_reads(f"a{4*(t-3)}", SGA, ((t-3) & 3)*8192): a(x)
            else:
                if t < 31: qk(0, t+1)
                ex(S[q], m2, cp)
                if not C.nox:
                    if C.split:
                        w1_issue(t)
                        if 3 <= t < 31:
                            for x in frag_reads(f"a{4*(t-3)}", SGA, ((t-3) & 3)*8192): a(x)
                    if t == C.prett and C.preto:
                        a(f"buffer_load_dword v{TD}, v{vL16}, s[{S_WS}:{S_WS+3}], s{ost} offen sc1")
                        vm.add("pre")
                        if C.prets:
                            a(f"s_lshl_b32 s{T}, s{sI}, 3\ns_add_u32 s{T}, s{T}, s{sJ}\ns_lshl_b32 s{T}, s{T}, 10\ns_add_u32 s{T}, s{T}, {WS_ST}\ns_add_u32 s{T}, s{T}, s{sLB}")
                            a(f"buffer_load_dword v{TD}, v{vL16}, s[{S_WS}:{S_WS+3}], s{T} offen sc1")
                            vm.add("pre2")
                    if t == C.cpf2 and C.cpf2:
                        a(f"s_getpc_b64 s[{T}:{T+1}]\nL_pc1:\ns_lshr_b32 s94, s2, 3\ns_lshl_b32 s94, s94, 3\ns_add_u32 s94, s94, s{sW}\ns_lshl_b32 s94, s94, 6\ns_min_u32 s94, s94, SPAN2\nv_mov_b32 v{TD}, s94")
                        a(f"global_load_dword v{TD}, v{TD}, s[{T}:{T+1}]"); vm.add("cp")
                    if t % 3 == 1 and t < 24: wo_issue(t//3)
                    if t == 8: a(f"v_readfirstlane_b32 s{T}, v17\ns_nop 1\nv_cmp_ne_u32 vcc, s{T}, v17\ns_nop 1\ns_cmp_eq_u64 vcc, 0\ns_cselect_b32 s{sLOC}, 1, 0")
                    if t % 4 == 3 and C.stouch == 1: touch(t//4)
                    if t % 3 == 2 and t < 24 and C.stouch == 2: touch(t//3)
                    if t == C.t2:
                        a(f"buffer_load_dword v{TD}, v{TA}, s[{S_W2}:{S_W2+3}], s{tch} offen{' nt' if C.w2nt else ''}"); vm.add("t2")
            ex(S[q], cp, m3)
            pv(q, t, 0)
            if t == 31 and q == 1:
                a(f"s_mov_b32 m0, s{cgive}\nv_mov_b32 v20, v131\nv_xor_b32 v22, 64, v131")
                for r in range(9): a(f"ds_write_addtid_b32 v{O[0]+r} offset:{256*r}")
            ex(S[q], m3, 16)
            gap = sum(1 for x in a.L[nq+1:] if not x.endswith(':'))
            if gap < 12: a(f's_nop {11 - gap}')
    a("s_nop 1")
    pv(1, 31, 1)
    if C.prio: a("s_setprio 0")
    stamp(a, "p2.loop")
    M, N = O[1], 36
    assert C.nox or vm.need(("wo", 7)) >= vm.need(("kv", 31))
    a(f"s_mov_b32 m0, s{ctake}\ns_waitcnt lgkmcnt(0)\ns_barrier")
    stamp(a, "zc.cmb")
    for r in range(9): a(f"ds_read_addtid_b32 v{N+r} offset:{256*r}")
    wr_ = wo_reads()
    for x in wr_[:6]: a(x)
    a("s_waitcnt lgkmcnt(6)")
    for r in range(9): a(f"v_add_f32 v{M+r}, v{M+r}, v{N+r}")
    for x in wr_[6:C.wo1]: a(x)
    a(f"v_add_f32 v{N}, abs(v{M}), abs(v{M+1})\nv_add_f32 v{N+1}, abs(v{M+2}), abs(v{M+3})\nv_add_f32 v{N+2}, abs(v{M+4}), abs(v{M+5})\nv_add_f32 v{N+3}, abs(v{M+6}), abs(v{M+7})")
    a(f"v_add_f32 v{N}, v{N}, v{N+1}\nv_add_f32 v{N+2}, v{N+2}, v{N+3}\nv_cmp_nge_f32 vcc, {f2u(2.0**60)}, v{M+8}\nv_add_f32 v{N}, v{N}, v{N+2}")
    a(f"s_mov_b64 s[{T+12}:{T+13}], vcc\nv_cmp_nle_f32 vcc, {f2u(2.0**-60)}, v{M+8}\ns_nop 0\ns_or_b64 s[{T+12}:{T+13}], s[{T+12}:{T+13}], vcc")
    a(f"v_cmp_ngt_f32 vcc, 0x7f800000, v{N}\ns_nop 0\ns_or_b64 s[{T+12}:{T+13}], s[{T+12}:{T+13}], vcc\ns_cbranch_scc1 L_softmax_safe\nL_softmax_done:")
    a(f"v_rcp_f32 v{M+8}, v{M+8}\ns_nop 0")
    for r in range(8): a(f"v_mul_f32 v{M+r}, v{M+r}, v{M+8}")
    for r in range(4): a(f"v_cvt_pk_bf16_f32 v{N+r}, v{M+2*r}, v{M+1+2*r}")
    if C.sent:
        for r in range(4): a(f"v_min_u32 v{N+r}, -2, v{N+r}")
    rstore(a, f"buffer_store_dwordx4 v[{N}:{N+3}], v{vL16}, s[{S_WS}:{S_WS+3}], s{ost} offen", bulk=not C.ldo)
    for x in wr_[C.wo1:]: a(x)

def softmax_safe(a):
    M = O[1]
    QF, KF, VF, SS, CC, OO, MX, VO = Q+4, 104, 108, 48, 80, 120, 116, 117
    base, cur, n = T+12, T+13, T+14
    a("L_softmax_safe:")
    a("s_waitcnt lgkmcnt(0)")
    a(f"s_lshl_b32 s{base}, s{head}, 17\ns_add_u32 s{base}, s{base}, s{sLB}")
    a(f"v_mov_b32 v{MX}, 0xff800000\ns_mov_b32 s{cur}, s{base}\ns_mov_b32 s{n}, 64")
    L1 = a.label()
    a(f"{L1}:")
    a(f"buffer_load_dwordx4 v[{KF}:{KF+3}], v{vL16}, s[{S_WS}:{S_WS+3}], s{cur} offen sc1\ns_waitcnt vmcnt(0)")
    a(f"v_mfma_f32_32x32x16_bf16 v[{SS}:{SS+15}], v[{KF}:{KF+3}], v[{QF}:{QF+3}], 0\ns_nop 15")
    for r in range(0, 16, 2): a(f"v_max3_f32 v{MX}, v{MX}, v{SS+r}, v{SS+r+1}")
    a(f"s_add_u32 s{cur}, s{cur}, 2048\ns_sub_u32 s{n}, s{n}, 1\ns_cmp_lg_u32 s{n}, 0\ns_cbranch_scc1 {L1}")
    a(f"v_mov_b32 v{VO}, v{MX}\ns_nop 1\nv_permlane32_swap_b32 v{MX}, v{VO}\ns_nop 1\nv_max_f32 v{MX}, v{MX}, v{VO}")
    for r in range(16): a(f"v_sub_f32 v{CC+r}, 0, v{MX}\nv_mov_b32 v{OO+r}, 0")
    for r in range(8): a(f"v_mov_b32 v{VF+r}, 0x3f803f80")
    a(f"v_lshrrev_b32 v{MX}, 5, v{vL}\nv_lshlrev_b32 v{VO}, 8, v{MX}\nv_and_b32 v{MX}, 15, v{vL}\nv_lshl_add_u32 v{VO}, v{MX}, 4, v{VO}")
    a(f"s_mov_b32 s{cur}, s{base}\ns_mov_b32 s{n}, 64")
    L2 = a.label()
    a(f"{L2}:")
    a(f"buffer_load_dwordx4 v[{KF}:{KF+3}], v{vL16}, s[{S_WS}:{S_WS+3}], s{cur} offen sc1")
    a("s_mov_b32 exec_lo, 0xffff\ns_mov_b32 exec_hi, 0xffff")
    a(f"buffer_load_dwordx4 v[{VF}:{VF+3}], v{VO}, s[{S_WS}:{S_WS+3}], s{cur} offen offset:1024 sc1")
    a(f"buffer_load_dwordx4 v[{VF+4}:{VF+7}], v{VO}, s[{S_WS}:{S_WS+3}], s{cur} offen offset:1536 sc1")
    a("s_mov_b64 exec, -1\ns_waitcnt vmcnt(0)")
    a(f"v_mfma_f32_32x32x16_bf16 v[{SS}:{SS+15}], v[{KF}:{KF+3}], v[{QF}:{QF+3}], v[{CC}:{CC+15}]\ns_nop 15")
    for r in range(16): a(f"v_exp_f32 v{SS+r}, v{SS+r}")
    a("s_nop 1")
    a(f"v_smfmac_f32_32x32x32_bf16 v[{OO}:{OO+15}], v[{VF}:{VF+3}], v[{SS}:{SS+7}], v{IDX}")
    a(f"v_smfmac_f32_32x32x32_bf16 v[{OO}:{OO+15}], v[{VF+4}:{VF+7}], v[{SS+8}:{SS+15}], v{IDX}\ns_nop 15")
    a(f"s_add_u32 s{cur}, s{cur}, 2048\ns_sub_u32 s{n}, s{n}, 1\ns_cmp_lg_u32 s{n}, 0\ns_cbranch_scc1 {L2}")
    for r in range(9): a(f"v_mov_b32 v{M+r}, v{OO+r}")
    for x in wo_reads()[:C.wo1]: a(x)
    a("s_branch L_softmax_done")

EOFF = 61692
def ep2_writes(acc, base, sw4k):
    off = EOFF if base >= EOFF else 0
    o = [f"ds_write_addtid_b32 v{acc+r} offset:{off + r*256}" for r in range(16)]
    o[0] = f"s_add_u32 m0, s{sw4k}, {base - off}\ns_nop 0\n" + o[0]
    return o

def ep2_read_addr(a, ra, base0, base1, sw4k, tv):
    a(f"s_and_b32 s{T}, s{sW}, 1\ns_lshl_b32 s{T}, s{T}, 2\ns_lshr_b32 s{T+1}, s{sW}, 1\ns_add_u32 s{T}, s{T}, s{T+1}\ns_lshl_b32 s{sw4k}, s{T}, 12")
    a(f"s_lshr_b32 s{T}, s{sW}, 2\ns_lshl_b32 s{T}, s{T}, 14\ns_and_b32 s{T+1}, s{sW}, 3\ns_lshl_b32 s{T+1}, s{T+1}, 10\ns_add_u32 s{T}, s{T}, s{T+1}\ns_add_u32 s{T}, s{T}, {base0}")
    a(f"v_and_b32 v{tv}, 3, v{vN}\nv_lshlrev_b32 v{ra}, 8, v{tv}\nv_bfe_u32 v{tv}, v{vN}, 2, 1\nv_lshl_add_u32 v{ra}, v{tv}, 7, v{ra}\nv_and_b32 v{tv}, 3, v{vC}\nv_lshl_add_u32 v{ra}, v{tv}, 5, v{ra}")
    a(f"v_add_u32 v{ra}, s{T}, v{ra}\nv_lshrrev_b32 v{tv}, 2, v{vC}\nv_mul_i32_i24 v{tv}, {base1 - base0}, v{tv}\nv_add_u32 v{ra}, v{ra}, v{tv}")

def ep2_sum(a, ra, add0, out):
    for k in range(4):
        a(f"ds_read_b128 v[{out+8*k}:{out+8*k+3}], v{ra} offset:{4096*k}\nds_read_b128 v[{out+8*k+4}:{out+8*k+7}], v{ra} offset:{4096*k+16}")
    a("s_waitcnt lgkmcnt(6)")
    for e in range(8): a(f"v_add_f32 v{out+e}, v{out+e}, v{add0+e}")
    a("s_waitcnt lgkmcnt(2)")
    for e in range(8): a(f"v_add_f32 v{out+8+e}, v{out+8+e}, v{out+16+e}")
    for e in range(8): a(f"v_add_f32 v{out+e}, v{out+e}, v{out+8+e}")
    a("s_waitcnt lgkmcnt(0)")
    for e in range(8): a(f"v_add_f32 v{out+e}, v{out+e}, v{out+24+e}")

def unpack8(a, dst, src):
    for e in range(4): a(f"v_lshlrev_b32 v{dst+2*e}, 16, v{src+e}\nv_and_b32 v{dst+1+2*e}, 0xffff0000, v{src+e}")

def phase3(a):
    stamp(a, "zc.ost")
    OF, ACC, WF = 16, 48, 80
    src = osrc
    n3 = [int(c) for c in C.sch3]; assert n3[0] == 4 and sum(n3) == 12
    spin = T+6
    if not C.sent:
        a("s_waitcnt vmcnt(0) lgkmcnt(0)\ns_barrier")
        stamp(a, "p2.end")
        if_wave_eq(a, 0, lambda: publish(a, "O", sI))
        for f in range(n3[0]): w2_dma(a, f)
        if_wave_eq(a, 0, lambda: poll(a, "O", sI, 8))
        a("s_barrier")
        stamp(a, "proj.polled")
    else:
        a(f"s_mov_b32 s{spin}, {SPIN}\ns_waitcnt {'vmcnt(0) ' if C.sentwait == 1 else ''}lgkmcnt(0)\ns_barrier")
        stamp(a, "p2.end")
    LT = a.label()
    a(f"{LT}:")
    for t in range(8):
        if C.lprio and t % 2 == 0: a(f"s_setprio {3 - t//2}")
        a(f"buffer_load_dwordx4 v[{OF+4*t}:{OF+4*t+3}], v{vL16}, s[{S_WS}:{S_WS+3}], s{src + (t >> 2)} offen offset:{(t & 3)*1024} sc1")
    for t in range(8):
        a(f"s_waitcnt vmcnt({7-t})")
        for y in range(2):
            c = "0" if t == 0 else f"v[{ACC+16*y}:{ACC+16*y+15}]"
            a(f"v_mfma_f32_32x32x16_bf16 v[{ACC+16*y}:{ACC+16*y+15}], v[{OF+4*t}:{OF+4*t+3}], v[{WF+8*t+4*y}:{WF+8*t+4*y+3}], {c}")
            if C.sent:
                o = OF + 4*t + 2*y
                a(f"v_max_u32 v0, v{o}, v{o+1}" if t == 0 and y == 0 else f"v_max3_u32 v0, v0, v{o}, v{o+1}")
    if C.sent:
        a(f"v_cmp_eq_u32 vcc, -1, v0\ns_sub_u32 s{spin}, s{spin}, 1\ns_cselect_b64 vcc, 0, vcc\ns_cbranch_vccnz {LT}")
    if C.sent and C.w2pos == 1:
        for f in range(n3[0]): w2_dma(a, f)
    ep2_read_addr(a, 88, V+SVO, E+16, T+4, 80)
    stamp(a, "proj.loop")
    OUT = 104
    for x in ep2_writes(ACC, V+SVO, T+4) + ep2_writes(ACC+16, E+16, T+4): a(x)
    unpack8(a, 96, vRES)
    if C.sent and C.w2pos == 0:
        for f in range(n3[0]): w2_dma(a, f)
    a("s_waitcnt lgkmcnt(0)\ns_barrier")
    stamp(a, "zc.epb")
    ep2_sum(a, 88, 96, OUT)
    for e in range(4): a(f"v_cvt_pk_bf16_f32 v{vRES+e}, v{OUT+2*e}, v{OUT+1+2*e}")
    a("v_mov_b32 v64, 0\nv_mov_b32 v65, 0\nv_mov_b32 v66, 1\nv_mov_b32 v67, 1\nv_mov_b32 v68, 0x3f803f80")
    for e in range(4): a(f"v_dot2c_f32_bf16 v64, v{vRES+e}, v68\nv_dot2c_f32_bf16 v65, v{vRES+e}, v{vRES+e}")
    a(f"s_lshl_b32 s{T}, s{sI}, 13\ns_add_u32 s{T}, s{T}, {WS_ST}\ns_add_u32 s{T}, s{T}, s{sLB}\ns_lshl_b32 s{T+1}, s{sJ}, 10\ns_add_u32 s{T+1}, s{T+1}, s{T}")
    a(f"v_lshlrev_b32 v56, 4, v{vN}\nv_lshl_add_u32 v57, v{vC}, 10, v56")
    dpp_red8(a, [64, 65])
    a(f"v_cmp_eq_u32 vcc, 0, v{vC}\ns_and_saveexec_b64 s[{T+2}:{T+3}], vcc")
    rstore(a, f"buffer_store_dwordx4 v[64:67], v56, s[{S_WS}:{S_WS+3}], s{T+1} offen")
    a(f"s_mov_b64 exec, s[{T+2}:{T+3}]")
    stamp(a, "proj.st")
    a(f"v_subrev_u32 v59, {SVO}, v{vTRF}")
    for c in range(4):
        for x in frag_reads(f"v{W1T+4*c}", 59, c*8192): a(x)
    if not C.sent:
        for f in range(4):
            for x in w2_reads(f): a(x)
    unpack8(a, 80, vRES)
    a(f"v_lshrrev_b32 v58, 2, v{vC}\nv_lshlrev_b32 v58, 17, v58\nv_lshl_add_u32 v58, v{vN}, 6, v58\nv_and_b32 v60, 3, v{vC}\nv_lshl_add_u32 v58, v60, 4, v58")
    LP = a.label(); LD = a.label()
    a(f"s_mov_b32 s{T+2}, {SPIN}")
    a(f"{LP}:")
    a(f"buffer_load_dwordx4 v[68:71], v57, s[{S_WS}:{S_WS+3}], s{T} offen sc1")
    a("s_waitcnt vmcnt(0)\nv_and_b32 v72, v70, v71\nv_cmp_ne_u32 vcc, 1, v72")
    a(f"s_cbranch_vccz {LD}")
    a(f"s_sub_u32 s{T+2}, s{T+2}, 1\ns_cmp_lg_u32 s{T+2}, 0\ns_cbranch_scc1 {LP}")
    a(f"{LD}:")
    stamp(a, "proj.stat")
    if C.sent:
        for f in range(4):
            for x in w2_reads(f): a(x)
    if C.x4 == 1:
        a("s_waitcnt lgkmcnt(8)"); w2x_dma(a)
    dpp_red8(a, [68, 69])
    a(f"v_mul_f32 v68, {f2u(1/512)}, v68\nv_mul_f32 v69, {f2u(1/512)}, v69")
    a("v_fma_f32 v69, -v68, v68, v69\nv_max_f32 v69, 0, v69")
    a(f"v_add_f32 v70, {f2u(1e-5)}, v69\nv_rsq_f32 v70, v70\ns_nop 0")
    a(f"v_mul_f32 v71, v70, v70\nv_mul_f32 v71, v71, v69\nv_add_f32 v71, {f2u(1e-5)}, v71\nv_rsq_f32 v71, v71\ns_nop 0")
    a("v_mul_f32 v70, v70, v71\nv_mul_f32 v71, v68, v70\nv_sub_f32 v71, 0, v71")
    for e in range(8): a(f"v_fma_f32 v{80+e}, v{80+e}, v70, v71")
    for e in range(4): a(f"v_cvt_pk_bf16_f32 v{72+e}, v{80+2*e}, v{81+2*e}")
    a(f"s_lshl_b32 s{T}, s{sJ}, 18\ns_lshl_b32 s{T+1}, s{sI}, 12\ns_add_u32 s{T}, s{T}, s{T+1}\ns_add_u32 s{T}, s{T}, {WS_H}\ns_add_u32 s{T}, s{T}, s{sLB}")
    a(f"buffer_store_dwordx4 v[72:75], v58, s[{S_WS}:{S_WS+3}], s{T} offen sc1")
    stamp(a, "zc.hst")
    a("s_waitcnt lgkmcnt(0)")
    rest3 = [8, 9, 10, 11, 4, 5, 6, 7]
    assert n3[1] <= 4
    for f in rest3[:n3[1]]: w2_dma(a, f)
    a(f"s_waitcnt vmcnt({n3[1]})\ns_barrier")
    stamp(a, "proj.end")
    if_wave_eq(a, 0, lambda: publish(a, "H", sJ))
    if C.sent:
        L = a.label()
        a(f"s_cmp_lg_u32 s{sL}, 0\ns_cbranch_scc1 {L}\nv_mov_b32 v76, -1\nv_mov_b32 v77, -1\nv_mov_b32 v78, -1\nv_mov_b32 v79, -1")
        a(f"s_add_u32 s{T}, s{ost}, {LSTRIDE}\nbuffer_store_dwordx4 v[76:79], v{vL16}, s[{S_WS}:{S_WS+3}], s{T} offen sc1\n{L}:")
    for f in rest3[n3[1]:]: w2_dma(a, f)
    if C.x4 == 2: w2x_dma(a)

EPO = 61440
W1T = 128

def flag_addr(a, kind, sd):
    a(f"s_lshl_b32 s{sd}, s{sJ}, 10\ns_add_u32 s{sd}, s{sd}, {FL[kind]*128}\ns_add_u32 s{sd}, s{sd}, s{sFL}")
    a(f"s_lshr_b32 s{T+1}, s{sI}, 2\ns_lshl_b32 s{T+1}, s{T+1}, 7\ns_add_u32 s{sd}, s{sd}, s{T+1}")

def apoll_issue(a, sd, v):
    a(f"s_mov_b64 exec, 1\nbuffer_load_dword v{v}, v{vL16}, s[{S_WS}:{S_WS+3}], s{sd} offen sc1\ns_mov_b64 exec, -1")

def apoll_check(a, sd, v, n):
    LP = a.label(); LD = a.label()
    a(f"s_mov_b64 exec, 1\ns_mov_b32 s{T+1}, {SPIN}\n{LP}:\nv_cmp_ne_u32 vcc, {n}, v{v}\ns_cbranch_vccz {LD}")
    a(f"buffer_load_dword v{v}, v{vL16}, s[{S_WS}:{S_WS+3}], s{sd} offen sc1\ns_waitcnt vmcnt(0)")
    a(f"s_sub_u32 s{T+1}, s{T+1}, 1\ns_cmp_lg_u32 s{T+1}, 0\ns_cbranch_scc1 {LP}\n{LD}:\ns_mov_b64 exec, -1")

def mlp(a):
    R = 4
    EP = STG
    ERA, UA, YA5, B1, YA4, C1, RA_, WA_, ADD = 21, 20, 22, 24, 28, 29, 30, 128, 136
    ACC, F, ET, PV_, B2 = 48, [80, 96], (48 if C.x4 else 112), 19, 18
    TT = 128
    NW2 = 24 if C.x4 else 28
    xr = [x for c in range(4) for x in frag_reads(w2_reg(24+c), 17, c*8192)] if C.x4 else []
    src4, dst, qb, src5, rot, ust, fa, fb, gc2, ewb = T+2, T+3, T+4, T+5, T+6, T+7, T+8, T+9, T+11, T+12
    a(f"v_lshlrev_b32 v{ERA}, 1, v{vN}\ns_lshl_b32 s{T}, s{sI}, 7")
    a(f"buffer_load_ushort v{B2}, v{ERA}, s[{S_B2}:{S_B2+3}], s{T} offen")
    a(f"s_lshr_b32 s{T}, s{sW}, 1\ns_and_b32 s{T+1}, s{sW}, 1\ns_lshl_b32 s{T+1}, s{T+1}, 11\ns_add_u32 s{T+1}, s{T+1}, s{sLB}")
    a(f"s_mul_i32 s{src5}, s{sJ}, {2*114688}\ns_mul_i32 s{dst}, s{T}, {28*1024}\ns_add_u32 s{src5}, s{src5}, s{dst}\ns_add_u32 s{src5}, s{src5}, s{T+1}\ns_add_u32 s{src5}, s{src5}, {WS_U}")
    a(f"s_lshl_b32 s{src4}, s{sJ}, 18\ns_lshl_b32 s{dst}, s{T}, 15\ns_add_u32 s{src4}, s{src4}, s{dst}\ns_add_u32 s{src4}, s{src4}, s{T+1}\ns_add_u32 s{src4}, s{src4}, {WS_H}")
    a(f"s_mul_i32 s{ust}, s{sJ}, {2*114688}\ns_lshl_b32 s{dst}, s{sI}, 12\ns_add_u32 s{ust}, s{ust}, s{dst}\ns_lshl_b32 s{dst}, s{T}, 9\ns_add_u32 s{ust}, s{ust}, s{dst}\ns_add_u32 s{ust}, s{ust}, s{T+1}\ns_add_u32 s{ust}, s{ust}, {WS_U}")
    a(f"s_lshl_b32 s{dst}, s{sW}, 11\ns_lshl_b32 s{T}, s{T}, 12")
    a(f"v_bfe_u32 v16, v{vL}, 3, 2\nv_lshlrev_b32 v{YA5}, 9, v16\nv_and_b32 v16, 3, v{vL}\nv_lshl_add_u32 v{YA5}, v16, 7, v{YA5}\nv_bfe_u32 v16, v{vL}, 2, 1\nv_lshl_add_u32 v{YA5}, v16, 6, v{YA5}")
    a(f"v_bfe_u32 v16, v{vL}, 1, 1\nv_bfe_u32 v17, v{vL}, 4, 1\nv_lshl_add_u32 v16, v17, 1, v16\nv_lshrrev_b32 v17, 5, v{vL}\nv_xor_b32 v16, v16, v17\nv_lshl_add_u32 v{YA5}, v16, 4, v{YA5}")
    a(f"v_add_u32 v{YA5}, s{T}, v{YA5}\nv_xor_b32 v{YA5+1}, 32, v{YA5}")
    a(f"s_sub_u32 s{T}, s{T}, s{sVW}\ns_sub_u32 s{T}, s{T}, {SVO}\nv_add_u32 v{YA4}, s{T}, v{vTRF}")
    a(f"s_and_b32 s{T}, s{sW}, 1\ns_lshl_b32 s{T}, s{T}, 11\nv_add_u32 v31, s{T}, v{YA4}")
    a(f"s_lshl_b32 s{rot}, s{sJR}, 12")
    qkv_base8(a, qb)
    flag_addr(a, "U", fa); flag_addr(a, "UB", fb)
    LS = a.label(); LM = a.label()
    a(f"s_cmp_ge_u32 s{sI}, 28\ns_cbranch_scc1 {LS}")
    vm = VM()
    a(f"s_and_b32 s{T}, s{sW}, 1\ns_lshr_b32 s{T+1}, s{sW}, 1")
    a(f"s_lshl_b32 s{ewb}, s{T}, 14\ns_add_u32 s{ewb}, s{ewb}, {EP}\ns_lshl_b32 s{T+10}, s{T+1}, 10\ns_add_u32 s{T+10}, s{T+10}, s{ewb}\nv_add_u32 v{ERA}, s{T+10}, v{vL16}")
    a(f"s_lshl_b32 s{T+10}, s{T+1}, 12\ns_add_u32 s{ewb}, s{ewb}, s{T+10}")
    a(f"s_lshl_b32 s{T}, s{T}, 6\ns_lshl_b32 s{T+10}, s{sI}, 7\ns_add_u32 s{T}, s{T}, s{T+10}\nv_lshlrev_b32 v16, 3, v{vC}")
    a(f"buffer_load_dwordx2 v[{B1+2}:{B1+3}], v16, s[{S_B1}:{S_B1+3}], s{T} offen")
    a(f"v_lshrrev_b32 v17, 5, v{vL}\ns_lshr_b32 s{T+1}, s{T+1}, 1\ns_lshl_b32 s{T+1}, s{T+1}, 1\nv_or_b32 v17, s{T+1}, v17\nv_lshlrev_b32 v17, 4, v17\nv_lshlrev_b32 v{UA}, 3, v{vL}\nv_xor_b32 v{UA}, v{UA}, v17")
    c1 = -2*0.7978845608028654*1.4426950408889634
    a(f"s_mov_b32 s{gc2}, {f2u(c1*0.044715)}\nv_mov_b32 v{C1}, {f2u(c1)}")
    if_wave_eq(a, 0, lambda: poll(a, "H", sJ, 32))
    a("s_barrier")
    stamp(a, "mlp1.polled"); stamp(a, "z3.poll")
    def act(p, s):
        if p == 4: a(f"s_add_u32 s{T}, s{rot}, {(s & 7)*4096}\ns_and_b32 s{T}, s{T}, 0x7fff\ns_add_u32 s{T}, s{T}, s{src4}\ns_add_u32 m0, s{dst}, {(s % R)*16384}" + (f"\ns_add_u32 s{T}, s{T}, 131072" if s >= 8 else "\ns_nop 0"))
        else: a(f"s_add_u32 m0, s{dst}, {(s % R)*16384}\ns_add_u32 s{T}, s{src5}, {(s//7)*114688 + (s % 7)*4096}")
        nt = " nt" if C.ntact else ""
        a(f"buffer_load_dwordx4 v{vL16}, s[{S_WS}:{S_WS+3}], s{T} offen sc1{nt} lds\nbuffer_load_dwordx4 v{vL16}, s[{S_WS}:{S_WS+3}], s{T} offen offset:1024 sc1{nt} lds")
        vm.add(("act", p, s), 2)
    def reads(p, s):
        out = []; o = (s % R)*16384
        for t in range(4):
            b = F[s & 1] + 4*t
            if p == 4: out += [f"ds_read_b64_tr_b16 v[{b}:{b+1}], v{YA4} offset:{o + t*1024}", f"ds_read_b64_tr_b16 v[{b+2}:{b+3}], v{YA4} offset:{o + t*1024 + 256}"]
            else: out.append(f"ds_read_b128 v[{b}:{b+3}], v{YA5 + (t & 1)} offset:{o + (t >> 1)*2048}")
        return out
    def mfmas(p, s):
        out = []
        n = 8 if p == 4 else 7
        y = s // n
        for t in range(4):
            f = 4*(s % n) + t
            if p == 4: X = f"a[{4*f}:{4*f+3}]" if f < 28 else f"v[{W1T+4*(f-28)}:{W1T+4*(f-28)+3}]"
            else: r = w2_reg(f); X = f"{r[0]}[{int(r[1:])}:{int(r[1:])+3}]"
            Y = f"v[{F[s & 1]+4*t}:{F[s & 1]+4*t+3}]"
            c = "0" if f == 0 else f"v[{ACC+16*y}:{ACC+16*y+15}]"
            A_, B_ = (Y, X) if p == 4 else (X, Y)
            out.append(f"v_mfma_f32_32x32x16_bf16 v[{ACC+16*y}:{ACC+16*y+15}], {A_}, {B_}, {c}")
        return out
    RW = 31
    def inring(f): return C.optx and 20 <= f < 24
    def wdma(fs):
        for f in fs:
            if inring(f):
                a(f"s_add_u32 m0, s{dst}, {((f-20) >> 1)*16384 + (f & 1)*1024}\ns_add_u32 s{T}, s{sW2S}, {f*16*4096}")
                a(f"buffer_load_dwordx4 v{vF2}, s[{S_W2}:{S_W2+3}], s{T} offen lds")
            else: w2_dma(a, f)
            vm.add(("w", f))
    def wr(fs): return [x for f in fs for x in (frag_reads(w2_reg(f), RW, ((f-20) >> 1)*16384 + (f & 1)*1024) if inring(f) else w2_reads(f))]
    def wread(fs):
        for x in wr(fs): a(x)
    def ep_w(y, rs=range(16)):
        o = [f"ds_write_addtid_b32 v{ACC+16*y+r} offset:{EPO + r*256}" for r in rs]
        o[0] = f"s_sub_u32 m0, s{ewb}, {EPO}\ns_nop 0\n" + o[0]
        return o
    def ep_r(): return [f"ds_read_b128 v[{ET+4*p}:{ET+4*p+3}], v{ERA} offset:{p*4096}" for p in range(4)]
    def ep_math():
        o = []
        for e in range(4): o += [f"v_add_f32 v{ET+e}, v{ET+e}, v{ET+4+e}", f"v_add_f32 v{ET+8+e}, v{ET+8+e}, v{ET+12+e}"]
        for e in range(4): o.append(f"v_add_f32 v{ET+e}, v{ET+e}, v{B1+e}")
        for e in range(4): o.append(f"v_add_f32 v{ET+e}, v{ET+e}, v{ET+8+e}")
        G = ET+4
        for e in range(4): o.append(f"v_mul_f32 v{G+e}, v{ET+e}, v{ET+e}")
        for e in range(4): o.append(f"v_fma_f32 v{G+e}, v{G+e}, s{gc2}, v{C1}")
        for e in range(4): o.append(f"v_mul_f32 v{G+e}, v{G+e}, v{ET+e}")
        for e in range(4): o.append(f"v_exp_f32 v{G+e}, v{G+e}")
        for e in range(4): o.append(f"v_add_f32 v{G+e}, 1.0, v{G+e}")
        for e in range(4): o.append(f"v_rcp_f32 v{G+e}, v{G+e}")
        for e in range(4): o.append(f"v_mul_f32 v{ET+e}, v{ET+e}, v{G+e}")
        o += [f"v_cvt_pk_bf16_f32 v{ET+8}, v{ET}, v{ET+1}", f"v_cvt_pk_bf16_f32 v{ET+9}, v{ET+2}, v{ET+3}"]
        return o
    def ep_store(y):
        if y: a(f"s_add_u32 s{ust}, s{ust}, 114688")
        a(f"buffer_store_dwordx2 v[{ET+8}:{ET+9}], v{UA}, s[{S_WS}:{S_WS+3}], s{ust} offen sc1")
        vm.add(("st", y))
    def body(m, lds, valu=()):
        lds = list(lds); valu = list(valu)
        nl = max(C.ldsper, -(-len(lds)//4)); nv = -(-len(valu)//4)
        for k in range(4):
            if k < len(m): a(m[k])
            for x in lds[k*nl:(k+1)*nl]: a(x)
            for x in valu[k*nv:(k+1)*nv]: a(x)
    for s in range(C.init): act(4, s)
    late = [int(c) for c in (C.schx if C.optx else C.schw)]
    assert sum(late) == 8 and len(late) == 6
    nxt = 12
    em = ep_math()
    deferred = []
    E_ = [int(c, 16) for c in C.eps]
    for s in range(16):
        tags = [("act", 4, s)] + ([("st", 0)] if s == C.pubs else [])
        a(f"s_waitcnt vmcnt({vm.need(*tags)}) lgkmcnt(0)\ns_barrier")
        if s not in (2, 3, 5, 6, 7): stamp(a, f"z4.{s:02d}")
        if s == 0: stamp(a, "mlp1.b0")
        if C.defer == 2 and s not in (E_[0], E_[1]):
            for k in deferred: act(4, k)
            deferred = []
        lds = reads(4, s); valu = []
        if s == 0: valu = [f"v_lshlrev_b32 v{B1}, 16, v{B1+2}", f"v_and_b32 v{B1+1}, 0xffff0000, v{B1+2}", f"v_lshlrev_b32 v{B1+2}, 16, v{B1+3}", f"v_and_b32 v{B1+3}, 0xffff0000, v{B1+3}"]
        if C.wfirst and s == E_[0] == E_[1]: lds = ep_w(0) + lds
        else:
            if s == E_[0]: lds += ep_w(0, range(8))
            if s == E_[1]: lds += ep_w(0, range(8, 16))
        if s == 0 and C.x4:
            a(f"v_subrev_u32 v17, {SVO}, v{vTRF}"); lds += xr
        if s == E_[2]: lds += ep_r()
        if s == E_[3]: valu += em[:24]
        if s == E_[4]: valu += em[24:]
        if s == E_[5]: lds += wr(range(4, 8))
        if s == E_[6]: lds += wr(range(8, 12))
        body(mfmas(4, s-1) if s else [], lds, valu)
        if s == C.pubs:
            stamp(a, "mlp1.pubA")
            if_wave_eq(a, 0, lambda: publish(a, "U", sJ))
        if s == E_[4]: ep_store(0)
        if s == 0:
            for k in range(C.init, R): act(4, k)
        if s >= 1 and s - 1 + R < 16:
            deferred.append(s - 1 + R)
            if not (C.defer and s in (E_[0], E_[1])):
                for k in deferred: act(4, k)
                deferred = []
        if s >= 11:
            n = late[s-11]
            assert nxt + n <= 12 + 4*(s > E_[5]) + 4*(s > E_[6]) + 2*(s >= 13) + 2*(s >= 14)
            wdma(range(nxt, nxt + n)); nxt += n
    assert E_[0] >= 9 and E_[2] > E_[1] and E_[3] > E_[2] and E_[5] >= 10 and E_[6] >= 11
    a("s_waitcnt lgkmcnt(0)")
    for x in mfmas(4, 15): a(x)
    stamp(a, "mlp1.loop"); stamp(a, "z4.loop")
    a("s_nop 9")
    for x in ep_w(1): a(x)
    if C.pubs >= 16: a(f"s_waitcnt vmcnt({vm.need(('st', 0))})")
    a("s_waitcnt lgkmcnt(0)\ns_barrier")
    stamp(a, "z4.ep")
    for x in ep_r(): a(x)
    if C.pubs >= 16: if_wave_eq(a, 0, lambda: publish(a, "U", sJ))
    wdma(range(nxt, 20))
    if C.n1 == 0: apoll_issue(a, fa, PV_); vm.add("pa")
    a("s_waitcnt lgkmcnt(0)")
    for x in em: a(x)
    ep_store(1)
    stamp(a, "mlp1.st"); stamp(a, "z4.st")
    npre = 20 + C.n1 + C.n2
    if C.n1:
        a(f"s_waitcnt vmcnt({vm.need(('w', 15))})")
        wread(range(12, 16))
        a("s_waitcnt lgkmcnt(0)")
        apoll_issue(a, fa, PV_); vm.add("pa")
        wdma(range(20, 20 + C.n1))
        a(f"s_waitcnt vmcnt({vm.need('pa')})")
        wread(range(16, 20))
        a("s_barrier")
        stamp(a, "z4.xdrain")
        if_wave_eq(a, 0, lambda: publish(a, "UB", sJ))
        a("s_waitcnt lgkmcnt(0)")
        wdma(range(20 + C.n1, npre))
        first = 0
    else:
        a(f"s_waitcnt vmcnt({vm.need('pa')})")
        wread(range(12, 20))
        apoll_check(a, fa, PV_, 28)
        act(5, 0); act(5, 1)
        a(f"s_waitcnt vmcnt({vm.need(('st', 1))})\ns_barrier")
        stamp(a, "z4.xdrain")
        if_wave_eq(a, 0, lambda: publish(a, "UB", sJ))
        first = 2
    a(f"s_branch {LM}")
    a(f"{LS}:")
    a("s_waitcnt vmcnt(0)")
    if C.x4:
        a(f"v_subrev_u32 v17, {SVO}, v{vTRF}")
        for x in xr: a(x)
    wread(range(4, 12)); a("s_waitcnt lgkmcnt(0)")
    keep = vm.ops[:]
    wdma(range(12, 20))
    a("s_waitcnt vmcnt(0)")
    wread(range(12, 20)); a("s_waitcnt lgkmcnt(0)")
    wdma(range(20, npre))
    a(f"v_mov_b32 v{PV_}, 28\ns_waitcnt vmcnt(0)")
    if_wave_eq(a, 0, lambda: poll(a, "U", sJ, 28))
    a("s_barrier")
    for k in range(first): act(5, k)
    vm.ops = keep
    a(f"{LM}:")
    if first == 0: apoll_check(a, fa, PV_, 28)
    stamp(a, "mlp2.polled"); stamp(a, "z4.zpolled")
    for k in range(first, C.init5): act(5, k)
    ep2_read_addr(a, RA_, EP+16, E+32768, ewb, TT)
    sch = [int(c) for c in C.sch2]
    extra = list(range(12))
    assert sum(sch[:5]) <= 7
    def point(p):
        for _ in range(sch[p]):
            k = extra.pop(0); qkv_piece8(a, qb, k); vm.add(("x", k))
    sb = C.sb
    na = max(first, C.init5); nw = npre
    for s in range(14):
        tags = [("act", 5, s)]
        if s == sb: tags.append("pb")
        if s == 5: tags.append(("w", 23))
        if s == 6 and not C.x4: tags.append(("w", 27))
        a(f"s_waitcnt vmcnt({vm.need(*tags)}) lgkmcnt(0)\ns_barrier")
        if s not in (8, 9, 10): stamp(a, f"z5.{s:02d}")
        if s == 0: stamp(a, "mlp2.b0")
        lds = reads(5, s); valu = []
        if s == 0:
            for e in range(4): valu += [f"v_lshlrev_b32 v{ADD+2*e}, 16, v{vRES+e}", f"v_and_b32 v{ADD+1+2*e}, 0xffff0000, v{vRES+e}"]
            valu.append(f"v_lshlrev_b32 v{B2}, 16, v{B2}")
            for e in range(8): valu.append(f"v_add_f32 v{ADD+e}, v{ADD+e}, v{B2}")
        if s == 5: lds += wr(range(20, 24))
        if s == 6 and not C.x4: lds += wr(range(24, 28))
        if s == C.wa5: lds += ep2_writes(ACC, EP+16, ewb)
        body(mfmas(5, s-1) if s else [], lds, valu)
        if s == sb:
            apoll_check(a, fb, PV_, 28)
            stamp(a, "mlp2.pollB")
        if s == C.pbi: apoll_issue(a, fb, PV_); vm.add("pb")
        lim = min(14, s + 4, 7 if s < sb else 14)
        want = min(lim, na + 1) if nw < NW2 and not C.deep else lim
        want = max(want, min(lim, s + 3))
        while na < want: act(5, na); na += 1
        if nw < NW2: wdma((nw, nw+1)); nw += 2
        if s == C.q5s and C.pret:
            a(f"buffer_load_dword v{TT+1}, v{vXO}, s[{S_XD}:{S_XD+3}], s{sXO} offen sc1")
            a(f"s_lshl_b32 s{T}, s{sI}, 3\ns_add_u32 s{T}, s{T}, s{sJ}\ns_lshl_b32 s{T}, s{T}, 9\ns_add_u32 s{T}, s{T}, {WS_ST2}\nv_lshlrev_b32 v{TT+2}, 3, v{vL}")
            a(f"buffer_load_dword v{TT+2}, v{TT+2}, s[{S_WS}:{S_WS+3}], s{T} offen sc1")
            vm.add("pre", 2)
        if s == C.q5s and C.q5:
            a(f"s_lshr_b32 s{T}, s2, 3\ns_lshl_b32 s{T}, s{T}, 3\ns_add_u32 s{T}, s{T}, s{sW}\ns_mul_i32 s{T}, s{T}, {6*1024}")
            if C.q5 == 1: a(f"s_add_u32 s{T}, s{T}, 384\nv_min_u32 v{TT}, 5, v{vL}\nv_lshlrev_b32 v{TT}, 10, v{TT}")
            else: a(f"v_min_u32 v{TT}, 47, v{vL}\nv_lshlrev_b32 v{TT}, 7, v{TT}")
            a(f"buffer_load_dword v{TT}, v{TT}, s[{S_QKV}:{S_QKV+3}], s{T} offen"); vm.add("q5")
    assert na == 14 and nw == NW2
    a(f"s_waitcnt lgkmcnt({15 if C.wa5 == 13 else 0})")
    for x in mfmas(5, 13): a(x)
    stamp(a, "mlp2.loop")
    a("s_nop 9")
    OUT = 80
    for x in ep2_writes(ACC+16, E+32768, ewb): a(x)
    point(0); point(1); point(2)
    a("s_waitcnt lgkmcnt(0)\ns_barrier")
    ep2_sum(a, RA_, ADD, OUT)
    point(3)
    for e in range(4): a(f"v_cvt_pk_bf16_f32 v{vRES+e}, v{OUT+2*e}, v{OUT+1+2*e}")
    if C.finplain:
        Lf = a.label()
        a(f"s_cmp_eq_u32 s{sL}, 0\ns_cbranch_scc1 {Lf}\nbuffer_store_dwordx4 v[{vRES}:{vRES+3}], v{vXO}, s[{S_XD}:{S_XD+3}], s{sXO} offen{' nt' if C.finplain == 2 else ''}\ns_branch L_fin\n{Lf}:")
    rstore(a, f"buffer_store_dwordx4 v[{vRES}:{vRES+3}], v{vXO}, s[{S_XD}:{S_XD+3}], s{sXO} offen", bulk=True)
    stamp(a, "mlp2.st")
    a(f"s_cmp_lg_u32 s{sL}, 0\ns_cbranch_scc1 L_fin")
    a("v_mov_b32 v64, 0\nv_mov_b32 v65, 0\nv_mov_b32 v68, 0x3f803f80")
    for e in range(4): a(f"v_dot2c_f32_bf16 v64, v{vRES+e}, v68\nv_dot2c_f32_bf16 v65, v{vRES+e}, v{vRES+e}")
    a(f"s_lshl_b32 s{T}, s{sI}, 3\ns_add_u32 s{T}, s{T}, s{sJ}\ns_lshl_b32 s{T}, s{T}, 9\ns_add_u32 s{T}, s{T}, {WS_ST2}\nv_lshlrev_b32 v66, 3, v{vN}")
    dpp_red8(a, [64, 65])
    a(f"v_cmp_eq_u32 vcc, 0, v{vC}\ns_and_saveexec_b64 s[{T+10}:{T+11}], vcc")
    rstore(a, f"buffer_store_dwordx2 v[64:65], v66, s[{S_WS}:{S_WS+3}], s{T} offen", bulk=True)
    a(f"s_mov_b64 exec, s[{T+10}:{T+11}]")
    point(4)
    a(f"s_waitcnt vmcnt({sch[4]})\ns_barrier")
    stamp(a, "mlp2.end")
    if_wave_eq(a, 4, lambda: publish(a, "X", sI))
    point(5)

def main(out):
    a = Asm()
    K = NAME + "_kernel"
    a.L.append(f".globl {K}\n.p2align 8\n.type {K},@function\n{K}:")
    prologue(a)
    a(f"buffer_load_dwordx4 v[{vRES}:{vRES+3}], v{vXO}, s[{S_XS}:{S_XS+3}], s{sXO} offen")
    stamp(a, "entry2")
    a(f"s_cmp_lt_u32 s{sW}, 4\ns_cbranch_scc1 L_p1_cons")
    layer0_helpers(a)
    ool_at = len(a.L)
    a("L_layer:")
    ool = phase1(a)
    phase2(a)
    phase3(a)
    mlp(a)
    a(f"s_mov_b32 s{S_XS}, s{S_XD}\ns_mov_b32 s{S_XS+1}, s{S_XD+1}\ns_mov_b32 s{S_XD}, s{sOUT}\ns_mov_b32 s{S_XD+1}, s{sOUT+1}")
    a(f"s_mov_b32 s{sL}, 1\ns_mov_b32 s{sLB}, {LSTRIDE}")
    if C.stamp: a("v_mov_b32 v7, v6")
    a("s_branch L_layer")
    a("L_fin:")
    if C.stamp:
        a("s_waitcnt vmcnt(0)")
        stamp(a, "fin")
        a(f"s_lshl_b32 s{T}, s2, 3\ns_add_u32 s{T}, s{T}, s{sW}\ns_lshl_b32 s{T}, s{T}, 9\ns_add_u32 s{T}, s{T}, {WS_STAMP}\nv_lshlrev_b32 v16, 2, v{vL}")
        a(f"buffer_store_dword v7, v16, s[{S_WS}:{S_WS+3}], s{T} offen\nbuffer_store_dword v6, v16, s[{S_WS}:{S_WS+3}], s{T} offen offset:256")
    a("L_end:\ns_endpgm")
    softmax_safe(a)
    b = Asm()
    for x in ool[-13:-12] + [o for o in ool if o is not ool[-13]] if False else ool: b(x)
    a.L[ool_at:ool_at] = b.L
    s = HDR + "; @launch grid=(256,1,1) block=(512,1,1) lds=163840\n"
    s += '.amdgcn_target "amdgcn-amd-amdhsa--gfx950"\n.text\n' + a.text().replace("CODE_SPAN", "L_end-L_pc0").replace("SPAN2", "L_end-L_pc1")
    s += f""".section .rodata,"a"
.p2align 6
.amdhsa_kernel {K}
  .amdhsa_next_free_vgpr 256
  .amdhsa_next_free_sgpr 102
  .amdhsa_accum_offset {NARCH}
  .amdhsa_group_segment_fixed_size 0
  .amdhsa_kernarg_size 88
  .amdhsa_user_sgpr_count 2
  .amdhsa_user_sgpr_kernarg_segment_ptr 1
  .amdhsa_system_sgpr_workgroup_id_x 1
.end_amdhsa_kernel
"""
    open(out, "w").write(s)
    if C.stamp: open(out + ".stamps", "w").write("\n".join(STAMPS))

if __name__ == "__main__":
    for arg in sys.argv[2:]:
        k, v = arg.split("="); setattr(C, k, v if isinstance(getattr(C, k), str) else type(getattr(C, k))(int(v)))
    main(sys.argv[1])
```

```python
import sys, struct
NAME = "interleave_layers__softmax_full_mha__mixer_token_mlp__prompt"
HDR = open("cdna_kernels/%s.s.ref" % NAME).read().split("; Override launch")[0]
MB = 1 << 20
WS_KV, WS_O, WS_H, WS_U, WS_X2, WS_ST = 0*MB, 4*MB, 6*MB, 8*MB, 4*MB, 12*MB
LSTRIDE = 16*MB
WS_FLAG = 32*MB
WS_XT = WS_FLAG + 131072
WS_STAMP = 40*MB
KA = dict(x=0, wqkv=8, wo=16, w1=32, b1=40, w2=48, b2=56, out=64, dbg=72, ws=80)
SZ = dict(x=2048*512*2, wqkv=512*1536*2, wo=512*512*2, w1=2048*1792*2, b1=1792*2, w2=1792*2048*2, b2=2048*2,
          out=2048*512*2, dbg=256, ws=1 << 28)
FL = dict(KV=0, H=64, U=128, O=192, X=224, UB=256, KL=320)
COLK = ('KV', 'H', 'U', 'UB')
SPIN = 200000
NARCH = 144

class Cfg:
    stamp = False
    prio = True
    lowtiles = 1
    D = 3
    nB = 12
    sch1 = '033343'
    sch2 = '003040'
    sch3 = '426'
    stouch = 0
    p1touch = 0
    now1 = 0
    local = 1
    schw = '001124'
    eps = '99abbbc'
    wlast = 1
    defer = 0
    optx = 0
    n1 = 0
    n2 = 0
    deep = 1
    wa5 = 13
    xp = 2
    early = 6
    q5 = 1
    q5s = 10
    lf = 1
    lfi = 1
    lfc = 2
    c3 = 1
    pub12 = 1
    w1nt = 0
    w2nt = 0
    xrot = 1
    xnt = 0
    lateinit = 1
    arrs = 4
    dbgs = 9
    sent = 1
    ldo = 1
    preto = 1
    sentwait = 1
    fixed = 1
    lprio = 0
    wo1 = 8
    x4 = 2
    qe = '000'
    w1a = 0
    xr8 = 1
    cpos = 11
    mp = '25b'
    vmask = 0
    kvsame = 0
    prets = 1
    w2pos = 0
    skip7 = 1
    wfirst = 0
    finplain = 3
    vtlb = 0
    vsh = 21
    ntkv = 0
    ntact = 0
    qrot = 0
    w1mask = 7
    w1e = -2
    schx = '01434'
    pbi = 2
    sb = 4
    init5 = 4
    schv = '22220'
    pubs = 14
    pbs = 3
    init = 4
    pae = 1
    order = 1
    ldsper = 3
    epa = 0
    t2 = 28
    sonly = ''
    tmix = 1
    cpf = 0
    cpf2 = 0
    span2 = 12288
    span = 32640
    early2 = 0
    ldata = 1
    pret = 1
    prett = 24
    hs1 = '322211222000'
    hs0 = '222222220000'
    h0first = 4
    h0second = 4
    w1t = 9
    p1per = 4
    qtouch = 2
    pper = 16
    plow = 4
    split = 1
    kvfix = 0
    xsel = 'wot'
    nofirst = 0
    tlb = 0
    lowhalf = 3
    jrot = 6
    nox = 0
    notr = 0
    loop = 0
    pad = 0
    align = 3
    nQ = 12
C = Cfg()

class Asm:
    def __init__(self): self.L = []; self.n = 0
    def __call__(self, s):
        for line in s.split("\n"):
            line = line.strip()
            if line: self.L.append(("" if line.endswith(":") else "    ") + line)
    def label(self, p="L"):
        self.n += 1; return f"{p}{self.n}"
    def text(self): return "\n".join(self.L) + "\n"

def f2u(x): return hex(struct.unpack("<I", struct.pack("<f", x))[0])

S_XS, S_QKV, S_WS, S_WO, S_W1, S_W2, S_B1, S_B2, S_XD, S_DBG, S_KV = 8, 12, 16, 20, 24, 28, 32, 36, 40, 44, 80
sI, sJ, sW, sL, sLB, sFL = 48, 49, 50, 51, 52, 53
sW2S = 54
sVW = 55
sLOC = 56
sXO = 57
sOUT = 58
sJR = 83
sR2 = 80
T = 60
sST = 76
sRET = 84
vL, vN, vC, vL16, vXO = 1, 2, 3, 4, 5
vRES = 8
vF2, vTRF, vWQ = 12, 13, 14
TV = 16
E, V = 0, 65536
QX = V + 11*8192
SVO = 32768
STG = V

STAMPS = []
def stamp(a, name):
    if not C.stamp: return
    if C.sonly:
        if not (name == "start" or any(name.startswith(p) for p in C.sonly.split(","))): return
    elif name.startswith("z") or name.startswith("entry"): return
    k = len(STAMPS); assert k < 32
    a(f"s_memtime s[{sST}:{sST+1}]\ns_memrealtime s[{sST+2}:{sST+3}]\ns_waitcnt lgkmcnt(0)")
    a(f"v_writelane_b32 v6, s{sST}, {k}\nv_writelane_b32 v6, s{sST+2}, {k+32}")
    STAMPS.append(name)

def dpp_red8(a, regs):
    for pat in ("quad_perm:[1,0,3,2]", "quad_perm:[2,3,0,1]", "row_half_mirror"):
        a("s_nop 1")
        for r in regs: a(f"v_add_f32_dpp v{r}, v{r}, v{r} {pat} row_mask:0xf bank_mask:0xf")

def tr_addr(a, vd, xh, perm, t0, t1):
    a(f"v_lshrrev_b32 v{t0}, 5, v{vL}\nv_lshlrev_b32 v{t0}, {2 if perm else 3}, v{t0}")
    a(f"v_bfe_u32 v{t1}, v{vL}, 2, 2\nv_add_u32 v{t0}, v{t0}, v{t1}\nv_lshlrev_b32 v{vd}, 7, v{t0}")
    a(f"v_lshrrev_b32 v{t1}, 1, v{t1}\nv_xor_b32 v{t1}, {xh}, v{t1}\nv_lshl_add_u32 v{vd}, v{t1}, 6, v{vd}")
    a(f"v_bfe_u32 v{t1}, v{vL}, 4, 1\nv_lshl_add_u32 v{vd}, v{t1}, 5, v{vd}")
    a(f"v_and_b32 v{t1}, 3, v{vL}\nv_lshl_add_u32 v{vd}, v{t1}, 3, v{vd}")

def interleave(a, m, r):
    per = -(-len(r)//len(m))
    for x in range(len(m)):
        a(m[x])
        for y in r[x*per:(x+1)*per]: a(y)

def rstore(a, instr, bulk=False):
    if not C.local or (bulk and not C.ldata):
        a(instr + " sc1"); return
    L = a.label(); L2 = a.label()
    a(f"s_cmp_eq_u32 s{sLOC}, 1\ns_cbranch_scc1 {L}\n{instr} sc1\ns_branch {L2}\n{L}:\n{instr}\n{L2}:")

def publish(a, kind, group_s, tv=None):
    if kind not in COLK:
        a(f"s_lshl_b32 s{T}, s{group_s}, 7\ns_add_u32 s{T}, s{T}, {FL[kind]*128}\ns_add_u32 s{T}, s{T}, s{sFL}\ns_lshl_b32 s{T+1}, s{sJ}, 4\ns_add_u32 s{T}, s{T}, s{T+1}")
        a(f"v_mov_b32 v{TV}, 1\ns_mov_b64 exec, 1")
        rstore(a, f"buffer_store_dword v{TV}, v{vL16}, s[{S_WS}:{S_WS+3}], s{T} offen")
        a("s_mov_b64 exec, -1")
        return
    col = kind in COLK
    a(f"s_lshl_b32 s{T}, s{group_s}, {10 if col else 7}\ns_add_u32 s{T}, s{T}, {FL[kind]*128}\ns_add_u32 s{T}, s{T}, s{sFL}")
    a(f"v_mov_b32 v{TV}, 1\nv_lshlrev_b32 v{TV+1}, 7, v{vL}\ns_mov_b64 exec, {0xff if col else 1}")
    a(f"buffer_atomic_add v{TV}, v{TV+1}, s[{S_WS}:{S_WS+3}], s{T} offen sc1")
    a("s_mov_b64 exec, -1")

def poll(a, kind, group_s, n):
    col = kind in COLK
    a(f"s_lshl_b32 s{T}, s{group_s}, {10 if col else 7}\ns_add_u32 s{T}, s{T}, {FL[kind]*128}\ns_add_u32 s{T}, s{T}, s{sFL}")
    if col: a(f"s_lshr_b32 s{T+1}, s{sI}, 2\ns_lshl_b32 s{T+1}, s{T+1}, 7\ns_add_u32 s{T}, s{T}, s{T+1}")
    a(f"s_mov_b64 exec, {1 if col else 0xff}\ns_mov_b32 s{T+1}, {SPIN}")
    LP = a.label(); LD = a.label()
    a(f"{LP}:")
    a(f"buffer_load_dword v{TV}, v{vL16}, s[{S_WS}:{S_WS+3}], s{T} offen sc1")
    a(f"s_waitcnt vmcnt(0)\nv_cmp_ne_u32 vcc, {n if col else 1}, v{TV}")
    a(f"s_cbranch_vccz {LD}")
    a(f"s_sub_u32 s{T+1}, s{T+1}, 1\ns_cmp_lg_u32 s{T+1}, 0\ns_cbranch_scc1 {LP}")
    a(f"{LD}:\ns_mov_b64 exec, -1")

def kl_addr(a):
    a(f"s_lshr_b32 s{T}, s{sI}, 2\ns_lshl_b32 s{T}, s{T}, 3\ns_add_u32 s{T}, s{T}, s{sJ}\ns_lshl_b32 s{T}, s{T}, 7\ns_add_u32 s{T}, s{T}, {FL['KL']*128}\ns_add_u32 s{T}, s{T}, s{sFL}")

def kl_publish(a):
    kl_addr(a)
    a(f"s_and_b32 s{T+1}, s{sI}, 3\ns_lshl_b32 s{T+1}, s{T+1}, 4\ns_add_u32 s{T}, s{T}, s{T+1}\nv_mov_b32 v{TV+3}, 1\ns_mov_b64 exec, 1")
    rstore(a, f"buffer_store_dword v{TV+3}, v{vL16}, s[{S_WS}:{S_WS+3}], s{T} offen")
    a("s_mov_b64 exec, -1")

def kl_poll(a):
    kl_addr(a)
    a(f"s_mov_b64 exec, 15\ns_mov_b32 s{T+1}, {SPIN}")
    LP = a.label(); LD = a.label()
    a(f"{LP}:\nbuffer_load_dword v{TV}, v{vL16}, s[{S_WS}:{S_WS+3}], s{T} offen sc1\ns_waitcnt vmcnt(0)\nv_cmp_ne_u32 vcc, 1, v{TV}\ns_cbranch_vccz {LD}")
    a(f"s_sub_u32 s{T+1}, s{T+1}, 1\ns_cmp_lg_u32 s{T+1}, 0\ns_cbranch_scc1 {LP}\n{LD}:\ns_mov_b64 exec, -1")

def if_wave_eq(a, w, body):
    L = a.label()
    a(f"s_cmp_lg_u32 s{sW}, {w}\ns_cbranch_scc1 {L}")
    body()
    a(f"{L}:")

def qslot(u): return (u + 5) % 12
def qkv_src(u): return (u >> 1)*64*3072 + (1 + (u & 1))*1024 if u < 16 else (u-16)*64*3072

def qkv_row(a, d, base, u):
    if not C.qrot:
        a(f"s_mov_b32 s{d}, s{base}"); return qkv_src(u)
    a(f"s_add_u32 s{d}, s{sR2}, {u >> 1 if u < 16 else u - 16}\ns_and_b32 s{d}, s{d}, 7\ns_mul_i32 s{d}, s{d}, {64*3072}\ns_add_u32 s{d}, s{d}, s{base}")
    return (1 + (u & 1))*1024 if u < 16 else 0

def qkv_base8(a, s):
    a(f"s_mul_i32 s{s}, s{sW}, {8*3072}\ns_lshl_b32 s{T}, s{sJ}, 7\ns_add_u32 s{s}, s{s}, s{T}")

def qkv_piece8(a, s, u):
    seg = qkv_row(a, T, s, u)
    a(f"s_add_u32 m0, s{sVW}, {qslot(u)*8192}\ns_add_u32 s{T}, s{T}, {seg}")
    a(f"buffer_load_dwordx4 v{vWQ}, s[{S_QKV}:{S_QKV+3}], s{T} offen lds")

def w2_dma(a, f):
    a(f"s_add_u32 m0, s{sVW}, {SVO + ((f+4) % 8)*8192}\ns_add_u32 s{T}, s{sW2S}, {f*16*4096}")
    a(f"buffer_load_dwordx4 v{vF2}, s[{S_W2}:{S_W2+3}], s{T} offen lds")

def frag_reads(dst, vaddr, off):
    p, n = dst[0], int(dst[1:])
    return [f"ds_read_b64_tr_b16 {p}[{n}:{n+1}], v{vaddr} offset:{off}", f"ds_read_b64_tr_b16 {p}[{n+2}:{n+3}], v{vaddr} offset:{off+256}"]

W2V = 32
def w2_reg(f):
    if C.x4 and f >= 24: return f"v{112+4*(f-24)}"
    return f"v{W2V+4*f}" if f < 4 else f"a{4*(f-4)}"
def w2x_dma(a):
    for c in range(4):
        a(f"s_add_u32 m0, s{sVW}, {c*8192}\ns_add_u32 s{T}, s{sW2S}, {(24+c)*16*4096}\nbuffer_load_dwordx4 v{vF2}, s[{S_W2}:{S_W2+3}], s{T} offen lds")
def w2_reads(f): return frag_reads(w2_reg(f), vTRF, ((f+4) % 8)*8192)

def prologue(a):
    if C.stamp: a("s_memtime s[96:97]\ns_memrealtime s[98:99]")
    a("s_load_dwordx16 s[64:79], s[0:1], 0\ns_load_dwordx4 s[84:87], s[0:1], 64\ns_load_dwordx2 s[88:89], s[0:1], 80")
    a(f"s_cmp_ge_u32 s2, 256\ns_cbranch_scc1 L_end")
    if C.cpf:
        if C.cpf == 1: a(f"s_getpc_b64 s[{T+2}:{T+3}]\nL_pc0:\ns_lshr_b32 s{T}, s2, 3\ns_lshl_b32 s{T}, s{T}, 10\nv_lshrrev_b32 v41, 6, v0\nv_lshlrev_b32 v41, 7, v41\nv_add_u32 v41, s{T}, v41")
        else: a(f"s_getpc_b64 s[{T+2}:{T+3}]\nL_pc0:\nv_lshlrev_b32 v41, 6, v0")
        a(f"v_min_u32 v41, CODE_SPAN, v41\nglobal_load_dword v142, v41, s[{T+2}:{T+3}]")
    a(f"v_lshrrev_b32 v{vL}, 6, v0\ns_lshr_b32 s{sJ}, s2, 5\nv_readfirstlane_b32 s{sW}, v{vL}\nv_and_b32 v{vL}, 63, v0")
    a(f"s_and_b32 s{sI}, s2, 7\ns_lshl_b32 s{sI}, s{sI}, 2\ns_bfe_u32 s{T}, s2, 0x20003\ns_or_b32 s{sI}, s{sI}, s{T}")
    a(f"v_lshrrev_b32 v{vN}, 3, v0\nv_and_b32 v{vC}, 7, v0")
    a(f"s_lshl_b32 s{T}, s{sJ}, {3 if C.xrot else 6}\nv_add_u32 v42, s{T}, v{vN}\nv_and_b32 v42, 63, v42")
    a(f"v_bfe_u32 v41, v42, 1, 3\nv_xor_b32 v41, v41, v{vC}\nv_lshlrev_b32 v41, 4, v41\nv_lshl_add_u32 v{vXD}, v42, 10, v41")
    a(f"s_mov_b32 s{S_XS+2}, {hex(SZ['x'])}\ns_mov_b32 s{S_XS+3}, 0x00020000\ns_mov_b32 s{S_QKV+2}, {hex(SZ['wqkv'])}\ns_mov_b32 s{S_QKV+3}, s{S_XS+3}")
    a(f"s_and_b32 s{sR2}, s{sI}, {3 if C.qrot else 0}\ns_lshl_b32 s{sR2}, s{sR2}, 1")
    if C.qtouch:
        a(f"s_mul_i32 s{T+2}, s2, {48*128}\ns_lshr_b32 s{T+3}, s2, 3\ns_mul_i32 s{T+3}, s{T+3}, {48*1024}\ns_addk_i32 s{T+3}, 384")
        a(f"s_cmp_eq_u32 s{sW}, 0\ns_cselect_b32 s{T+2}, s{T+2}, s{T+3}\ns_cselect_b32 s{T+3}, 7, 10\nv_min_u32 v41, 47, v{vL}\nv_lshlrev_b32 v41, s{T+3}, v41")
    if C.stamp: a("v_mov_b32 v6, 0\nv_mov_b32 v7, 0")
    def rest():
        for s, n in ((S_WS, "ws"), (S_WO, "wo"), (S_W1, "w1"), (S_W2, "w2"), (S_B1, "b1"), (S_B2, "b2"), (S_DBG, "dbg"), (S_XD, "x")):
            a(f"s_mov_b32 s{s+2}, {hex(SZ[n])}\ns_mov_b32 s{s+3}, 0x00020000")
        a(f"v_lshlrev_b32 v{vL16}, 4, v{vL}")
        a(f"s_lshl_b32 s{sXO}, s{sI}, 16\ns_lshl_b32 s{T}, s{sJ}, 7\ns_add_u32 s{sXO}, s{sXO}, s{T}")
        a(f"s_mov_b32 s{sLOC}, 0\ns_mov_b32 s{sL}, 0\ns_mov_b32 s{sLB}, 0\ns_mov_b32 s{sFL}, {WS_FLAG}")
        a(f"v_lshrrev_b32 v40, 3, v{vL}\nv_bfe_u32 v43, v{vL}, 4, 1\nv_lshlrev_b32 v43, 2, v43\nv_and_b32 v42, 7, v{vL}\nv_xor_b32 v43, v43, v42\nv_lshlrev_b32 v43, 4, v43")
        a(f"v_mul_u32_u24 v{vWQ}, 3072, v40\nv_add_u32 v{vWQ}, v{vWQ}, v43")
        a(f"s_lshl_b32 s{sVW}, s{sW}, 10\ns_add_u32 s{sVW}, s{sVW}, {V}")
        a(f"v_bfe_u32 v43, v{vN}, 1, 1\nv_bfe_u32 v42, v{vN}, 2, 1\nv_and_b32 v{vN}, 0x39, v{vN}\nv_lshl_add_u32 v{vN}, v43, 2, v{vN}\nv_lshl_add_u32 v{vN}, v42, 1, v{vN}")
        a(f"v_lshlrev_b32 v{vXO}, 10, v{vN}\nv_lshl_add_u32 v{vXO}, v{vC}, 4, v{vXO}")
        a(f"s_and_b32 s{sJR}, s{sJ}, {C.jrot}" + (f"\ns_lshr_b32 s{T}, s{sI}, 2\ns_add_u32 s{sJR}, s{sJR}, s{T}\ns_and_b32 s{sJR}, s{sJR}, 7" if C.xr8 else ""))
        prologue2(a)
    if C.early2: rest()
    L = a.label()
    a(f"s_cmp_gt_u32 s{sW}, 1\ns_waitcnt lgkmcnt(0)\ns_mov_b64 s[{S_XS}:{S_XS+1}], s[64:65]\ns_mov_b64 s[{S_QKV}:{S_QKV+1}], s[66:67]")
    if C.qtouch: a(f"s_cbranch_scc1 {L}\nbuffer_load_dword v143, v41, s[{S_QKV}:{S_QKV+3}], s{T+2} offen\n{L}:")
    x_dma(a, fl="")
    for s, n in ((S_WO, "wo"), (S_W1, "w1"), (S_W2, "w2"), (S_B1, "b1"), (S_B2, "b2")):
        a(f"s_mov_b64 s[{s}:{s+1}], s[{64 + KA[n]//4}:{65 + KA[n]//4}]")
    a(f"s_mov_b64 s[{sOUT}:{sOUT+1}], s[84:85]\ns_mov_b64 s[{S_DBG}:{S_DBG+1}], s[86:87]\ns_mov_b64 s[{S_WS}:{S_WS+1}], s[88:89]")
    if C.stamp:
        a(f"v_writelane_b32 v6, s96, 0\nv_writelane_b32 v6, s98, 32"); STAMPS.append("start")
    a(f"s_add_u32 s{S_XD}, s{S_WS}, {WS_X2}\ns_addc_u32 s{S_XD+1}, s{S_WS+1}, 0")
    if not C.early2: rest()

def prologue2(a):
    a(f"v_lshrrev_b32 v42, 2, v{vL}\nv_and_b32 v43, 3, v{vL}\nv_lshlrev_b32 v43, 4, v43")
    a(f"v_lshl_add_u32 v{vF2}, v42, 12, v43")
    a(f"v_lshrrev_b32 v42, 5, v{vL}\nv_lshlrev_b32 v42, 3, v42\nv_bfe_u32 v43, v{vL}, 2, 2\nv_add_u32 v42, v42, v43\nv_lshlrev_b32 v{vTRF}, 6, v42")
    a(f"v_bfe_u32 v43, v{vL}, 4, 1\nv_lshl_add_u32 v{vTRF}, v43, 5, v{vTRF}\nv_and_b32 v43, 3, v{vL}\nv_lshl_add_u32 v{vTRF}, v43, 3, v{vTRF}")
    a(f"v_add_u32 v{vTRF}, s{sVW}, v{vTRF}\nv_add_u32 v{vTRF}, {SVO}, v{vTRF}")
    a(f"s_lshr_b32 s{sW2S}, s{sW}, 1\ns_mul_i32 s{sW2S}, s{sW2S}, {448*4096}\ns_lshl_b32 s{T}, s{sI}, 7\ns_add_u32 s{sW2S}, s{sW2S}, s{T}")
    a(f"s_and_b32 s{T}, s{sW}, 1\ns_lshl_b32 s{T}, s{T}, 6\ns_add_u32 s{sW2S}, s{sW2S}, s{T}")

def tlb_touch(a):
    if not C.tlb: return
    a(f"s_sub_u32 s{T+4}, s{sW}, 4\ns_lshl_b32 s{T}, s{T+4}, 21")
    for k in range(4): a(f"s_add_u32 s{T+1}, s{T}, {(k & 1)*8*MB + (k >> 1)*LSTRIDE}\ns_buffer_load_dword s86, s[{S_WS}:{S_WS+3}], s{T+1}")
    for srd in (S_W1, S_W2): a(f"s_buffer_load_dword s86, s[{srd}:{srd+3}], s{T}")
    a(f"s_lshl_b32 s{T}, s{T+4}, 19\ns_load_dword s86, s[{sOUT}:{sOUT+1}], s{T}")
    a(f"s_buffer_load_dword s86, s[{S_WO}:{S_WO+3}], 0\ns_buffer_load_dword s86, s[{S_B1}:{S_B1+3}], 0\ns_buffer_load_dword s86, s[{S_B2}:{S_B2+3}], 0")

def init_sync(a, w=3):
    def body():
        a("v_mov_b32 v44, 0\nv_mov_b32 v45, 0\nv_mov_b32 v46, 0\nv_mov_b32 v47, 0")
        a(f"s_lshl_b32 s{T}, s2, 10\ns_add_u32 s{T}, s{T}, {WS_ST}\ns_add_u32 s{T+1}, s{T}, {LSTRIDE}")
        a(f"buffer_store_dwordx4 v[44:47], v{vL16}, s[{S_WS}:{S_WS+3}], s{T} offen sc1")
        a(f"buffer_store_dwordx4 v[44:47], v{vL16}, s[{S_WS}:{S_WS+3}], s{T+1} offen sc1")
        a(f"s_add_u32 s{T+1}, s{T}, {256*1024}\nbuffer_store_dwordx4 v[44:47], v{vL16}, s[{S_WS}:{S_WS+3}], s{T+1} offen sc1")
        a(f"s_lshl_b32 s{T}, s2, 9\ns_add_u32 s{T}, s{T}, {WS_FLAG}\ns_mov_b32 exec_hi, 0")
        a(f"buffer_store_dwordx4 v[44:47], v{vL16}, s[{S_WS}:{S_WS+3}], s{T} offen sc1")
        if C.sent:
            a(f"s_mov_b64 exec, -1\nv_mov_b32 v100, -1\nv_mov_b32 v101, -1\nv_mov_b32 v102, -1\nv_mov_b32 v103, -1\ns_lshl_b32 s{T}, s2, 13\ns_add_u32 s{T}, s{T}, {WS_O}\ns_add_u32 s{T+1}, s{T}, 4096")
            for k in range(8): a(f"buffer_store_dwordx4 v[100:103], v{vL16}, s[{S_WS}:{S_WS+3}], s{T + (k >> 2)} offen offset:{(k & 3)*1024} sc1")
        a(f"s_getreg_b32 s{T+1}, hwreg(HW_REG_XCC_ID, 0, 4)\ns_mov_b64 exec, 1\nv_mov_b32 v48, s{T+1}")
        a(f"s_lshl_b32 s{T}, s{sI}, 3\ns_add_u32 s{T}, s{T}, s{sJ}\ns_lshl_b32 s{T}, s{T}, 4\ns_add_u32 s{T}, s{T}, {WS_XT}")
        a(f"buffer_store_dword v48, v{vL16}, s[{S_WS}:{S_WS+3}], s{T} offen sc1")
        a("s_mov_b64 exec, -1")
    if_wave_eq(a, w, body)

def init_arrive(a, w=3, pre="s_nop 0", tv=TV):
    L = a.label()
    a(f"s_cmp_lg_u32 s{sW}, {w}\ns_cbranch_scc1 {L}\n{pre}")
    a(f"v_mov_b32 v{tv}, 1\nv_mov_b32 v{tv+1}, 0\ns_and_b32 s{T}, s2, 63\ns_lshl_b32 s{T}, s{T}, 2\ns_mov_b64 exec, 1")
    a(f"buffer_atomic_add v{tv}, v{tv+1}, s[{S_DBG}:{S_DBG+3}], s{T} offen sc1")
    a(f"s_mov_b64 exec, -1\n{L}:")

def wait_init(a, vaddr):
    a(f"s_mov_b32 s{T+1}, {SPIN}")
    LP = a.label(); LD = a.label()
    a(f"{LP}:\nv_cmp_gt_u32 vcc, 4, v{TV+2}\ns_cbranch_vccz {LD}")
    a(f"buffer_load_dword v{TV+2}, v{vaddr}, s[{S_DBG}:{S_DBG+3}], 0 offen sc1\ns_waitcnt vmcnt(0)")
    a(f"s_sub_u32 s{T+1}, s{T+1}, 1\ns_cmp_lg_u32 s{T+1}, 0\ns_cbranch_scc1 {LP}")
    a(f"{LD}:\ns_mov_b64 exec, -1")

class VM:
    def __init__(self): self.ops = []
    def add(self, tag, n=1): self.ops += [tag]*n
    def need(self, *tags):
        last = max(k for k, t in enumerate(self.ops) if t in tags)
        return min(63, len(self.ops) - 1 - last)

vXD = 15
TAB = V + 5*8192
WS_ST2 = 12*MB + 256*1024
WS_CS = 13*MB

def x_dma(a, qs=range(8), fl="sc1"):
    X1 = 81
    a(f"s_lshl_b32 s{T}, s{sI}, 16\n" + (f"s_add_u32 s{T+1}, s{sW}, s{sJ}\ns_and_b32 s{T+1}, s{T+1}, 7\ns_lshl_b32 s{T+1}, s{T+1}, 10" if C.xrot else f"s_lshl_b32 s{T+1}, s{sW}, 10"))
    for q in qs:
        if not C.qrot:
            a(f"s_add_u32 m0, s{T+1}, {E + q*8192 - q*128}\ns_nop 0\nbuffer_load_dwordx4 v{vXD}, s[{S_XS}:{S_XS+3}], s{T} offen offset:{128*q} {fl} lds")
            continue
        if q % 2 == 0 or q == qs[0]: a(f"s_add_u32 s{X1}, s{sR2}, {q & 6}\ns_and_b32 s{X1}, s{X1}, 7\ns_lshl_b32 s{X1}, s{X1}, 7\ns_add_u32 s{X1}, s{X1}, s{T}")
        a(f"s_add_u32 m0, s{T+1}, {E + q*8192 - (q & 1)*128}\ns_nop 0")
        a(f"buffer_load_dwordx4 v{vXD}, s[{S_XS}:{S_XS+3}], s{X1} offen offset:{128*(q & 1)} {fl} lds")

def split_hi_lo(a, src, hi2, lo2, t, neg=False):
    if neg: a(f"v_sub_f32 v{src}, 0, v{src}")
    a(f"v_cvt_pk_bf16_f32 v{t}, v{src}, v{src}\nv_and_b32 v{t}, 0xffff0000, v{t}\nv_sub_f32 v{t+1}, v{src}, v{t}")

def own_stats(a, D, A, MUo, Ro, ADo):
    a(f"s_add_u32 s{T}, s{sW}, s{sJ}\ns_and_b32 s{T}, s{T}, 7" if C.xrot else f"s_mov_b32 s{T}, s{sW}")
    a(f"s_lshl_b32 s{T+1}, s{T}, 10\nv_add_u32 v{ADo}, s{T+1}, v{vL16}")
    for q in range(8): a(f"ds_read_b128 v[{D+4*q}:{D+4*q+3}], v{ADo} offset:{q*8192}")
    for r in range(4): a(f"v_mov_b32 v{A+r}, 0")
    a(f"v_mov_b32 v{A+4}, 0x3f803f80\ns_lshl_b32 s{T}, s{T}, 5\ns_add_u32 s{T}, s{T}, {TAB}\nv_lshrrev_b32 v{ADo}, 3, v{vL}\nv_lshlrev_b32 v{ADo}, 2, v{ADo}\nv_add_u32 v{ADo}, s{T}, v{ADo}")
    for q in range(8):
        a(f"s_waitcnt lgkmcnt({7-q})")
        for e in (0, 2):
            r = D+4*q+e
            a(f"v_dot2c_f32_bf16 v{A}, v{r}, v{A+4}\nv_dot2c_f32_bf16 v{A+2}, v{r}, v{r}\nv_dot2c_f32_bf16 v{A+1}, v{r+1}, v{A+4}\nv_dot2c_f32_bf16 v{A+3}, v{r+1}, v{r+1}")
    a(f"s_nop 2\nv_add_f32 v{MUo}, v{A}, v{A+1}\nv_add_f32 v{Ro}, v{A+2}, v{A+3}")
    dpp_red8(a, [MUo, Ro])
    a(f"v_mul_f32 v{MUo}, {f2u(1/512)}, v{MUo}\nv_mul_f32 v{Ro}, {f2u(1/512)}, v{Ro}")
    a(f"v_fma_f32 v{Ro}, -v{MUo}, v{MUo}, v{Ro}\nv_max_f32 v{Ro}, 0, v{Ro}\nv_add_f32 v{Ro}, {f2u(1e-5)}, v{Ro}\nv_rsq_f32 v{Ro}, v{Ro}")

def layer0_helpers(a):
    LJ = "L_p1_join"; LB = a.label()
    a(f"s_cmp_ge_u32 s{sW}, 6\ns_cbranch_scc1 {LB}")
    src, dst = T+2, T+3
    a(f"s_sub_u32 s{dst}, s{sW}, 4\ns_mul_i32 s{src}, s{dst}, {32*3072}\ns_lshl_b32 s{T}, s{sJ}, 7\ns_add_u32 s{src}, s{src}, s{T}")
    a(f"s_lshl_b32 s{dst}, s{dst}, 12\ns_add_u32 s{dst}, s{dst}, {V}")
    vm = VM()
    def unit(u):
        seg = qkv_row(a, T+1, src, u)
        for p in range(4):
            a(f"s_add_u32 m0, s{dst}, {qslot(u)*8192 + p*1024}\ns_add_u32 s{T}, s{T+1}, {seg + p*8*3072}")
            a(f"buffer_load_dwordx4 v{vWQ}, s[{S_QKV}:{S_QKV+3}], s{T} offen lds")
        vm.add(("w", u), 4)
    for u in range(C.h0first): unit(u)
    a(f"s_waitcnt vmcnt({4*C.h0first})")
    own_stats(a, 48, 80, 42, 44, 40)
    issued = C.h0first
    for u in range(C.h0second): unit(issued); issued += 1
    sched = [int(c) for c in C.hs0]
    for s in range(12):
        a(f"s_waitcnt vmcnt({vm.need(('w', 2*s+1))})" + (" lgkmcnt(0)" if s == 8 else "") + "\ns_barrier")
        if s == 7: a("ds_write_b32 v40, v42\nds_write_b32 v40, v44 offset:256")
        for _ in range(sched[s]):
            assert issued < 2*s + 12 and issued < 24
            unit(issued); issued += 1
        assert s == 11 or issued >= 2*s + 4
    assert issued == 24
    a(f"s_barrier\ns_branch {LJ}")
    a(f"{LB}:")
    init_sync(a, 7)
    if C.vtlb:
        def body():
            sh = C.vsh
            a(f"v_lshlrev_b32 v49, {sh}, v{vL}\ns_lshl_b32 s{T}, s2, 7")
            a(f"s_mov_b32 s{S_WS+2}, {hex(34*MB)}\nbuffer_load_dword v136, v49, s[{S_WS}:{S_WS+3}], s{T} offen\ns_mov_b32 s{S_WS+2}, {hex(SZ['ws'])}")
            for k, srd in enumerate((S_W1, S_W2, S_WO)): a(f"buffer_load_dword v{137+k}, v49, s[{srd}:{srd+3}], s{T} offen")
            a(f"buffer_load_dword v140, v49, s[{S_B1}:{S_B1+3}], 0 offen\nbuffer_load_dword v140, v49, s[{S_B2}:{S_B2+3}], 0 offen")
            a(f"v_and_b32 v50, 0x1fffff, v49\nglobal_load_dword v140, v50, s[{sOUT}:{sOUT+1}]")
        if_wave_eq(a, 6, body)
    L4 = a.label()
    a(f"s_waitcnt vmcnt({13 if C.sent else 5})\ns_cmp_eq_u32 s{sW}, 7\ns_cbranch_scc1 {L4}\ns_waitcnt vmcnt({7 if C.vtlb else 0})\n{L4}:")
    def w1touch(mask):
        a(f"s_lshl_b32 s{T}, s2, 1\ns_add_u32 s{T}, s{T}, s{sW}\ns_sub_u32 s{T}, s{T}, 6\ns_mul_i32 s{T+1}, s{T}, {112*128}\nv_min_u32 v49, 55, v{vL}\nv_lshlrev_b32 v49, 7, v49")
        if mask & 1: a(f"buffer_load_dword v141, v49, s[{S_W1}:{S_W1+3}], s{T+1} offen")
        if mask & 2: a(f"s_add_u32 s{T+1}, s{T+1}, {56*128}\nbuffer_load_dword v142, v49, s[{S_W1}:{S_W1+3}], s{T+1} offen")
        if mask & 4: a(f"s_lshl_b32 s{T+1}, s{T}, 10\nv_and_b32 v49, 0x380, v49\nbuffer_load_dword v143, v49, s[{S_WO}:{S_WO+3}], s{T+1} offen")
    if C.w1e == -1: w1touch(7 & ~C.w1mask)
    own_stats(a, 52, 84, 42, 43, 40)
    for s in range(12):
        if s == 8: a("s_waitcnt lgkmcnt(0)")
        a("s_barrier")
        if s == 7: a("ds_write_b32 v40, v42\nds_write_b32 v40, v43 offset:256")
        if s == C.arrs: init_arrive(a, 7, pre="s_waitcnt vmcnt(0)")
        if s == C.dbgs: a(f"v_lshlrev_b32 v41, 2, v{vL}\nbuffer_load_dword v{TV+2}, v41, s[{S_DBG}:{S_DBG+3}], 0 offen sc1")
        if s == C.w1t: w1touch(C.w1mask)
        if s == C.w1e: w1touch(7 & ~C.w1mask)
    assert C.w1t >= C.dbgs and C.w1e < C.dbgs
    a(f"s_waitcnt vmcnt({bin(C.w1mask).count('1') if C.w1t < 12 else 0})")
    if_wave_eq(a, 6, lambda: wait_init(a, 41))
    a("s_barrier")
    def pub():
        if C.lf: kl_publish(a)
        publish(a, "KV", sJ)
    if_wave_eq(a, 6, pub)
    a(f"s_branch {LJ}")

def helper_setup(a):
    src, dst = T+2, T+3
    a(f"s_sub_u32 s{dst}, s{sW}, 4\ns_mul_i32 s{src}, s{dst}, {16*3072}\ns_lshl_b32 s{T}, s{sJ}, 7\ns_add_u32 s{src}, s{src}, s{T}")
    a(f"s_lshl_b32 s{T}, s{dst}, 4\nv_lshrrev_b32 v40, 2, v{vL}\nv_add_u32 v40, s{T}, v40")
    a(f"s_lshl_b32 s{dst}, s{dst}, 11\ns_add_u32 s{dst}, s{dst}, {V}")

def helper_unit(a, u, vm):
    seg = qkv_row(a, T+1, T+2, u)
    for p in range(2):
        a(f"s_add_u32 m0, s{T+3}, {qslot(u)*8192 + p*1024}\ns_add_u32 s{T}, s{T+1}, {seg + p*8*3072}")
        a(f"buffer_load_dwordx4 v{vWQ}, s[{S_QKV}:{S_QKV+3}], s{T} offen lds")
    vm.add(("w", u), 2)

def helper_loop(a, layer, vm, issued, sched, LJ):
    ROW, S1, S2, G = 40, 42, 44, 48
    first = issued
    for s in range(12):
        tags = [t for t in [("x", s), ("w", 2*s+1)] if t in vm.ops]
        if s == 6 and layer == 1: tags.append("g")
        if tags: a(f"s_waitcnt vmcnt({vm.need(*tags)})")
        if s == 8: a("s_waitcnt lgkmcnt(0)")
        a("s_barrier")
        if s == 7: a(f"ds_write_b32 v{ROW}, v{S1}\nds_write_b32 v{ROW}, v{S2} offset:256")
        for _ in range(sched[s]):
            assert issued < 2*s + 12 and issued < 24
            helper_unit(a, issued, vm); issued += 1
        assert s == 11 or issued >= 2*s + 4
        if s == 6:
            if layer == 1: a(f"v_add_f32 v{S1}, v{G}, v{G+2}\nv_add_f32 v{S2}, v{G+1}, v{G+3}")
            for pat in ("quad_perm:[1,0,3,2]", "quad_perm:[2,3,0,1]"):
                a("s_nop 1")
                for r in (S1, S2): a(f"v_add_f32_dpp v{r}, v{r}, v{r} {pat} row_mask:0xf bank_mask:0xf")
            a(f"v_mul_f32 v{S1}, {f2u(1/512)}, v{S1}\nv_mul_f32 v{S2}, {f2u(1/512)}, v{S2}")
            a(f"v_fma_f32 v{S2}, -v{S1}, v{S1}, v{S2}\nv_max_f32 v{S2}, 0, v{S2}\nv_add_f32 v{S2}, {f2u(1e-5)}, v{S2}\nv_rsq_f32 v{S2}, v{S2}")
            a(f"v_lshlrev_b32 v{ROW}, 2, v{ROW}\nv_add_u32 v{ROW}, {TAB}, v{ROW}")
        if s == 8 and layer == 0:
            a(f"v_lshlrev_b32 v46, 2, v{vL}\nbuffer_load_dword v{TV+2}, v46, s[{S_DBG}:{S_DBG+3}], 0 offen sc1"); vm.add("dbg")
        if s == C.w1t and layer == 0:
            a(f"s_lshl_b32 s{T}, s2, 2\ns_add_u32 s{T}, s{T}, s{sW}\ns_sub_u32 s{T}, s{T}, 4\ns_mul_i32 s{T+1}, s{T}, {56*128}\nv_min_u32 v47, 55, v{vL}\nv_lshlrev_b32 v47, 7, v47")
            a(f"buffer_load_dword v142, v47, s[{S_W1}:{S_W1+3}], s{T+1} offen")
            a(f"s_lshl_b32 s{T+1}, s{T}, 9\nv_and_b32 v47, 0x180, v47\nbuffer_load_dword v143, v47, s[{S_WO}:{S_WO+3}], s{T+1} offen")
            vm.add("t", 2)
    assert issued == 24
    if layer == 0: a(f"s_waitcnt vmcnt({vm.need('dbg')})")
    def w4():
        if layer == 0: wait_init(a, 46)
        if C.lf: kl_publish(a)
        publish(a, "KV", sJ)
    if C.pub12:
        if layer == 0: if_wave_eq(a, 4, lambda: wait_init(a, 46))
        a("s_barrier")
        def w4b():
            if C.lf: kl_publish(a)
            publish(a, "KV", sJ)
        if_wave_eq(a, 4, w4b)
    else:
        if_wave_eq(a, 4, w4)
        a("s_barrier")
    a(f"s_branch {LJ}")

def x_start(a):
    a(f"s_mov_b32 s{sFL}, {WS_FLAG + 512*128}\ns_barrier")
    stamp(a, "p1.polled")
    if C.xp < 8:
        x_dma(a, range(C.xp)); a("s_barrier"); x_dma(a, range(C.xp, 8))
    else: x_dma(a)

def phase1(a):
    LC = "L_p1_cons"; LJ = "L_p1_join"
    a(f"s_cmp_lt_u32 s{sW}, 4\ns_cbranch_scc1 {LC}")
    helper_setup(a)
    a(f"v_and_b32 v41, 3, v{vL}\nv_lshlrev_b32 v41, 11, v41\nv_lshl_add_u32 v41, v40, 3, v41")
    if_wave_eq(a, 4, lambda: poll(a, "X", sI, 8))
    keep = C.stamp; C.stamp = False; x_start(a); C.stamp = keep
    a(f"s_lshl_b32 s{T}, s{sI}, 13\ns_add_u32 s{T}, s{T}, {WS_ST2}")
    a(f"buffer_load_dwordx2 v[48:49], v41, s[{S_WS}:{S_WS+3}], s{T} offen sc1\nbuffer_load_dwordx2 v[50:51], v41, s[{S_WS}:{S_WS+3}], s{T} offen offset:1024 sc1")
    vm = VM()
    for q in range(8): vm.add(("x", q))
    vm.add("g", 2)
    helper_loop(a, 1, vm, sum(int(c) for c in C.sch2 + C.qe), [int(c) for c in C.hs1], LJ)
    a(f"{LC}:")
    tt, ch = T+2, T+3
    a(f"s_and_b32 s{tt}, s{sW}, 1\ns_lshr_b32 s{ch}, s{sW}, 1")
    XA = 40
    a(f"v_and_b32 v44, 31, v{vL}\ns_lshl_b32 s{T}, s{tt}, 5\nv_add_u32 v44, s{T}, v44\nv_lshlrev_b32 v38, 2, v44\nv_add_u32 v38, {TAB}, v38")
    a(f"v_bfe_u32 v45, v{vL}, 1, 3\nv_lshrrev_b32 v46, 5, v{vL}\nv_xor_b32 v45, v45, v46\nv_lshlrev_b32 v45, 4, v45\nv_lshl_add_u32 v{XA}, v44, 7, v45")
    for m in range(1, 4): a(f"v_xor_b32 v{XA+m}, {32*m}, v{XA}")
    a(f"s_lshl_b32 s{T}, s{tt}, 7\ns_add_u32 s{T}, s{T}, {TAB+256}\nv_lshlrev_b32 v37, 4, v46\nv_add_u32 v37, s{T}, v37")
    WL, WH = 44, 45
    tr_addr(a, WL, f"s{ch}", False, 46, 47)
    a(f"v_add_u32 v{WL}, {V}, v{WL}\nv_add_u32 v{WH}, {6*8192}, v{WL}")
    AK, AV, AQ = 48, 64, 80
    CS, SEL = 24, 32
    SIX = 21
    a(f"v_lshrrev_b32 v46, 4, v{vL}\nv_xor_b32 v46, v46, v{vL}\nv_and_b32 v46, 2, v46\nv_and_b32 v47, 12, v{vL}\nv_or_b32 v46, v46, v47\nv_mov_b32 v47, 0x3f803f80")
    a(f"v_cmp_eq_u32 vcc, 0, v46\ns_nop 1\nv_cndmask_b32 v{SEL}, 0, v47, vcc\nv_cmp_eq_u32 vcc, 4, v46\nv_mov_b32 v{SEL+1}, v{SEL}\ns_nop 0\nv_cndmask_b32 v{SEL+2}, 0, v47, vcc\nv_mov_b32 v{SEL+3}, v{SEL+2}")
    a(f"v_and_b32 v46, 1, v{vL}\nv_mul_u32_u24 v46, 0xaaaa, v46\nv_or_b32 v{SIX}, 0x4444, v46\nv_lshl_add_u32 v{SIX}, v{SIX}, 16, v{SIX}")
    csoff = T+8
    a(f"s_lshl_b32 s{csoff}, s2, 2\ns_add_u32 s{csoff}, s{csoff}, s{sW}\ns_lshl_b32 s{csoff}, s{csoff}, 10\ns_add_u32 s{csoff}, s{csoff}, {WS_CS}")
    for r in range(8): a(f"v_mov_b32 v{CS+r}, 0")
    def fr(buf, n):
        if buf == 0: return ("a", n)
        return ("a", 64+n) if n < 48 else ("v", 96 + n - 48)
    def R(buf, n, w):
        p, b = fr(buf, n); return f"{p}[{b}:{b+w-1}]"
    def wslot(u):
        s = qslot(u)
        return (WL, s*8192) if s < 6 else (WH, (s-6)*8192)
    def rd(s):
        buf = s & 1; out = []
        if s < 8:
            for t in range(4):
                out.append(f"ds_read_b128 {R(buf, 12*t, 4)}, v{XA+t} offset:{8192*s}")
                for seg in range(2):
                    va, off = wslot(2*s+seg)
                    for e in range(2):
                        out.append(f"ds_read_b64_tr_b16 {R(buf, 12*t+4+4*seg+2*e, 2)}, v{va} offset:{off + t*2048 + e*512}")
        else:
            for t in range(8):
                out.append(f"ds_read_b128 {R(buf, 16*(t>>1)+4*(t&1), 4)}, v{XA+(t&3)} offset:{16384*(s-8) + (t>>2)*8192}")
                va, off = wslot(2*s + (t >> 2))
                for e in range(2):
                    out.append(f"ds_read_b64_tr_b16 {R(buf, 16*(t>>1)+8+4*(t&1)+2*e, 2)}, v{va} offset:{off + (t&3)*2048 + e*512}")
        return out
    def mf(s):
        buf = s & 1; out = []
        if s < 8:
            for t in range(4):
                z = s == 0 and t == 0
                out.append(f"v_mfma_f32_32x32x16_bf16 v[{AK}:{AK+15}], {R(buf, 12*t+4, 4)}, {R(buf, 12*t, 4)}, " + ("0" if z else f"v[{AK}:{AK+15}]"))
                out.append(f"v_mfma_f32_32x32x16_bf16 v[{AV}:{AV+15}], {R(buf, 12*t, 4)}, {R(buf, 12*t+8, 4)}, " + ("0" if z else f"v[{AV}:{AV+15}]"))
        else:
            for t in range(8):
                out.append(f"v_mfma_f32_32x32x16_bf16 v[{AQ}:{AQ+15}], {R(buf, 16*(t>>1)+8+4*(t&1), 4)}, {R(buf, 16*(t>>1)+4*(t&1), 4)}, " + ("0" if s == 8 and t == 0 else f"v[{AQ}:{AQ+15}]"))
        return out
    OOL = []
    def csum(s):
        buf = s & 1
        L = a.label("Lcs"); LR = a.label("Lcr")
        a(f"s_cbranch_vccnz {L}\n{LR}:")
        o = [f"{L}:"]
        if s < 8:
            for t in range(4): o.append(f"v_smfmac_f32_16x16x64_bf16 v[{CS}:{CS+3}], v[{SEL}:{SEL+3}], {R(buf, 12*t+4, 8)}, v{SIX}")
            if s == 6: o += ["ds_write_b32 v126, v124", "ds_write_b32 v126, v125 offset:256"]
            if s == 7: o += ["s_nop 7", f"v_add_f32 v{ST4}, v{CS}, v{CS+1}", f"v_add_f32 v{ST4+1}, v{CS+2}, v{CS+3}"]
        else:
            for p in range(4): o.append(f"v_smfmac_f32_16x16x64_bf16 v[{CS+4}:{CS+7}], v[{SEL}:{SEL+3}], {R(buf, 16*p+8, 8)}, v{SIX}")
            if s == 11: o += ["s_nop 7", f"v_add_f32 v{CS+4}, v{CS+4}, v{CS+5}", f"v_add_f32 v{CS+6}, v{CS+6}, v{CS+7}", f"v_add_f32 v{ST4+2}, v{CS+4}, v{CS+6}"]
        o.append(f"s_branch {LR}")
        OOL.append("\n".join(o))
    ST4 = 16
    def inter(m, r, per):
        per = max(per, -(-len(r)//len(m)))
        for x in range(len(m)):
            a(m[x])
            for y in r[x*per:(x+1)*per]: a(y)
    a(f"s_lshl_b32 s{T+4}, s{sI}, 1\ns_add_u32 s{T+4}, s{T+4}, s{tt}")
    a(f"s_lshl_b32 s{T+5}, s{sJ}, 2\ns_lshl_b32 s{T+6}, s{ch}, 1\ns_add_u32 s{T+5}, s{T+5}, s{T+6}")
    a(f"s_lshl_b32 s{T+5}, s{T+5}, 6\ns_add_u32 s{T+5}, s{T+5}, s{T+4}")
    a(f"s_lshl_b32 s{T+4}, s{T+5}, 11\ns_add_u32 s{T+4}, s{T+4}, s{sLB}\ns_add_u32 s{T+5}, s{T+4}, 131072")
    assert WS_KV == 0
    a(f"v_and_b32 v46, 0x33, v{vL}\nv_bfe_u32 v47, v{vL}, 2, 1\nv_lshl_add_u32 v46, v47, 3, v46\nv_bfe_u32 v47, v{vL}, 3, 1\nv_lshl_add_u32 v46, v47, 2, v46\nv_lshlrev_b32 v46, 4, v46")
    a(f"v_bfe_u32 v39, v{vL}, 4, 1\nv_lshlrev_b32 v47, 17, v39\nv_lshrrev_b32 v39, 5, v{vL}\nv_lshl_add_u32 v47, v39, 8, v47\nv_and_b32 v39, 15, v{vL}\nv_lshl_add_u32 v47, v39, 4, v47")
    Lx = a.label()
    a(f"s_cmp_eq_u32 s{sL}, 0\ns_cbranch_scc1 L_p1_stats0")
    x_start(a)
    a(f"{Lx}:")
    b = Asm(); b.n = 91000
    b("L_p1_stats0:\ns_waitcnt vmcnt(0)")
    stamp(b, "p1.xarr")
    own_stats(b, 48, 116, 124, 125, 126)
    b(f"s_branch {Lx}")
    OOL.append("\n".join(b.L))
    a(f"buffer_load_dwordx4 v[{ST4}:{ST4+3}], v{vL16}, s[{S_WS}:{S_WS+3}], s{csoff} offen sc1")
    a("s_waitcnt vmcnt(8)\ns_barrier")
    stamp(a, "p1.b0")
    for x in rd(0): a(x)
    P, RB, MU, RR = 112, 128, 36, 39
    def aug_w(seg, d):
        return [f"v_cvt_pk_bf16_f32 v{d}, v{ST4+seg}, v{ST4+seg}", f"v_and_b32 v{d+1}, 0xffff0000, v{d}", f"v_sub_f32 v{d+1}, v{ST4+seg}, v{d+1}", f"v_cvt_pk_bf16_f32 v{d+1}, v{d+1}, v{d+1}"]
    XM = 22
    a(f"s_cmp_eq_u32 s{sL}, 0\ns_cselect_b64 vcc, -1, 0")
    def waitbar(s):
        vmw = f"vmcnt({7-s}) " if s < 7 else ("vmcnt(0) " if s == 7 or (s == 10 and not C.pub12) else "")
        a(f"s_waitcnt {vmw}lgkmcnt(0)\ns_barrier")
        stamp(a, f"zq.{s+1:02d}")
    waitbar(0)
    for s in range(12):
        m = mf(s)
        r = rd(s+1) if s < 11 else []
        csum(s)
        if s == 7:
            tab = [f"ds_read_b32 v{MU}, v38", f"ds_read_b32 v{RR}, v38 offset:256"] + [f"ds_read_b128 v[{RB+4*k}:{RB+4*k+3}], v37 offset:{32*k}" for k in range(4)]
            mk = m[0::2]; mv = m[1::2]
            aw = aug_w(0, 24) + aug_w(1, 26)
            xm = [f"v_sub_f32 v{MU}, 0, v{MU}", f"v_cvt_pk_bf16_f32 v{XM}, v{MU}, v{MU}", f"v_and_b32 v{XM+1}, 0xffff0000, v{XM}", f"v_sub_f32 v{XM+1}, v{MU}, v{XM+1}", f"v_cvt_pk_bf16_f32 v{XM}, v{MU}, v{XM+1}", f"v_mov_b32 v{XM+1}, v{XM}"]
            a(mk[0]); [a(x) for x in tab]
            a(mk[1]); [a(x) for x in aw[:4] + r[:3]]
            a(mk[2]); [a(x) for x in aw[4:] + r[3:6]]
            a(mk[3]); a("s_waitcnt lgkmcnt(10)"); [a(x) for x in xm]
            a(mv[0]); [a(x) for x in r[6:9]]
            a(f"v_mfma_f32_32x32x8_bf16 v[{AK}:{AK+15}], v[24:25], v[{XM}:{XM+1}], v[{AK}:{AK+15}]"); [a(x) for x in r[9:14]]
            a(mv[1]); [a(x) for x in r[14:19]]
            a(mv[2]); [a(x) for x in r[19:24]]
            a(mv[3])
            for k in range(10): a(f"v_mul_f32 v{AK+k}, v{AK+k}, v{RR}")
            a(f"v_mfma_f32_32x32x8_bf16 v[{AV}:{AV+15}], v[{XM}:{XM+1}], v[26:27], v[{AV}:{AV+15}]")
            for k in range(10, 16): a(f"v_mul_f32 v{AK+k}, v{AK+k}, v{RR}")
            for k in range(8): a(f"v_cvt_pk_bf16_f32 v{P+k}, v{AK+2*k}, v{AK+2*k+1}")
            a(f"buffer_store_dwordx4 v[{P}:{P+3}], v46, s[{S_WS}:{S_WS+3}], s{T+4} offen sc1")
            a(f"buffer_store_dwordx4 v[{P+4}:{P+7}], v46, s[{S_WS}:{S_WS+3}], s{T+5} offen sc1")
            a("s_waitcnt lgkmcnt(15)")
            for k in range(16): a(f"v_mul_f32 v{AV+k}, v{AV+k}, v{RB+k}")
            for k in range(8): a(f"v_cvt_pk_bf16_f32 v{P+8+k}, v{AV+2*k}, v{AV+2*k+1}")
            a(f"buffer_store_dwordx4 v[{P+8}:{P+11}], v47, s[{S_WS}:{S_WS+3}], s{T+4} offen offset:1024 sc1")
            a(f"buffer_store_dwordx4 v[{P+12}:{P+15}], v47, s[{S_WS}:{S_WS+3}], s{T+4} offen offset:1536 sc1")
            stamp(a, "p1.kvst")
            waitbar(8)
        elif s < 11:
            e = C.early
            per = -(-len(r)//min(e, 5))
            for x in range(8):
                a(m[x])
                for y in r[x*per:(x+1)*per]: a(y)
                if x == e: waitbar(s+1) if s < 10 else a("s_waitcnt vmcnt(0) lgkmcnt(0)\ns_barrier")
        else:
            aw = aug_w(2, 24)
            a(m[0])
            a(f"s_lshl_b32 s{T+6}, s{ch}, 12\ns_lshl_b32 s{T+7}, s{tt}, 10\ns_add_u32 s{T+6}, s{T+6}, s{T+7}\ns_add_u32 s{T+6}, s{T+6}, {QX}\nv_add_u32 v46, s{T+6}, v{vL16}")
            a(m[1]); [a(x) for x in aw]
            a(f"v_mul_f32 v{RR}, {f2u(0.25*1.4426950408889634)}, v{RR}")
            for x in m[2:]: a(x)
    stamp(a, "p1.mfma")
    a("s_nop 9")
    a(f"v_mfma_f32_32x32x8_bf16 v[{AQ}:{AQ+15}], v[24:25], v[{XM}:{XM+1}], v[{AQ}:{AQ+15}]")
    a(f"buffer_store_dwordx4 v[{ST4}:{ST4+3}], v{vL16}, s[{S_WS}:{S_WS+3}], s{csoff} offen sc1")
    a("s_nop 10")
    for r in range(16): a(f"v_mul_f32 v{AQ+r}, v{AQ+r}, v{RR}")
    for r in range(8): a(f"v_cvt_pk_bf16_f32 v{P+r}, v{AQ+2*r}, v{AQ+2*r+1}")
    a(f"ds_write_b128 v46, v[{P}:{P+3}]\nds_write_b128 v46, v[{P+4}:{P+7}] offset:2048")
    a(f"{LJ}:")
    return OOL

hh, kh, head, kvs, w1s, w1c, wos, tch, ring, kro, kfa = T+2, T+3, T+4, T+5, T+6, T+7, T+8, T+9, T+10, T+11, T+12
TD, VA_, IDX, TA, vF1, vWO, SGA, Q, S, O, KR, VR = 16, 18, 19, 20, 21, 22, 23, 24, [32, 48], [80, 64], 96, 112
ost, osrc, cgive, ctake = 88, 90, 92, 93
CST = E + 33792
CMB = E + 37888

def wo_reads():
    o = []
    for t in range(8):
        for y in range(2):
            b = 80 + 8*t + 4*y
            o += [f"ds_read_b64_tr_b16 v[{b}:{b+1}], v{20+2*y} offset:{t*2048}", f"ds_read_b64_tr_b16 v[{b+2}:{b+3}], v{20+2*y} offset:{t*2048+1024}"]
    return o

def phase2(a):
    t0, t1 = S[0], S[0]+1
    a(f"s_and_b32 s{hh}, s{sW}, 3\ns_lshr_b32 s{kh}, s{sW}, 2\ns_lshl_b32 s{head}, s{sJ}, 2\ns_add_u32 s{head}, s{head}, s{hh}")
    a(f"s_lshl_b32 s{kvs}, s{head}, 17\ns_lshl_b32 s{T}, s{kh}, 11\ns_add_u32 s{kvs}, s{kvs}, s{T}\ns_add_u32 s{kvs}, s{kvs}, s{sLB}")
    a(f"s_lshr_b32 s{kro}, s{sI}, 2\ns_lshl_b32 s{kro}, s{kro}, 14")
    a(f"s_lshl_b32 s{ring}, s{sW}, 12")
    Lk = a.label()
    a(f"s_cmp_lt_u32 s{sW}, 4\ns_cbranch_scc1 {Lk}")
    a(f"v_and_b32 v{t0}, 3, v{vL}\nv_cmp_eq_u32 vcc, 1, v{t0}\nv_mov_b32 v{t1}, 0x3f803f80\ns_nop 0\nv_cndmask_b32 v{t0+4}, 0, v{t1}, vcc")
    a(f"v_mov_b32 v{t0+5}, v{t0+4}\nv_mov_b32 v{t0+6}, v{t0+4}\nv_mov_b32 v{t0+7}, v{t0+4}")
    a(f"s_lshl_b32 s{T}, s{sW}, 10\ns_add_u32 s{T}, s{T}, {CST - 4096}\nv_add_u32 v{t0}, s{T}, v{vL16}\nds_write_b128 v{t0}, v[{t0+4}:{t0+7}]")
    if C.lf: if_wave_eq(a, 5, lambda: kl_poll(a))
    else: if_wave_eq(a, 5, lambda: poll(a, "KV", sJ, 32))
    a(f"{Lk}:")
    def post_setup():
        a(f"v_lshrrev_b32 v{t0}, 5, v{vL}\nv_lshlrev_b32 v{VA_}, 8, v{t0}\nv_and_b32 v{t0}, 15, v{vL}\nv_lshl_add_u32 v{VA_}, v{t0}, 4, v{VA_}\nv_add_u32 v{VA_}, s{ring}, v{VA_}\nv_add_u32 v{VA_}, 1024, v{VA_}")
        a(f"v_add_u32 v{t1}, 4, v{t0}\nv_and_b32 v{t1}, 8, v{t1}\nv_lshlrev_b32 v{t1}, 3, v{t1}\nv_add_u32 v{t1}, {CST}, v{t1}")
        a(f"v_and_b32 v{t0}, 11, v{vL}\nv_cmp_eq_u32 vcc, 0, v{t0}\nv_add_u32 v{t0}, 16, v{t1}\ns_nop 0\nv_cndmask_b32 v{t1}, v{t1}, v{t0}, vcc")
        a(f"v_and_b32 v{t0}, 16, v{vL}\nv_cmp_eq_u32 vcc, 0, v{t0}\ns_nop 1\nv_cndmask_b32 v{VA_}, v{t1}, v{VA_}, vcc")
        a(f"v_mov_b32 v{IDX}, 0xdddddddd\ns_mov_b32 s94, 0xffff\ns_mov_b32 s95, 0xffff")
        for r in range(32): a(f"v_mov_b32 v{64+r}, 0")
        if C.skip7: a(f"s_cmp_ge_u32 s{sI}, 28\ns_cselect_b32 s{S_W1+2}, 0, s{S_W1+2}")
        a(f"s_cmp_lg_u32 s{sL}, 0\ns_cselect_b32 s{S_QKV+2}, 0, s{S_QKV+2}")
        a(f"s_lshr_b32 s{w1s}, s{sW}, 1\ns_mul_i32 s{w1s}, s{w1s}, {512*3584}\ns_lshl_b32 s{T}, s{sI}, 7\ns_add_u32 s{w1s}, s{w1s}, s{T}")
        a(f"s_and_b32 s{T+1}, s{sW}, 1\ns_lshl_b32 s{T+1}, s{T+1}, 6\ns_add_u32 s{w1s}, s{w1s}, s{T+1}\ns_sub_u32 s{w1s}, s{w1s}, {16*3584}")
        if C.tmix:
            a(f"s_lshl_b32 s{tch}, s{sJ}, 2\ns_and_b32 s{T+1}, s{sI}, 3\ns_add_u32 s{tch}, s{tch}, s{T+1}\ns_lshl_b32 s{tch}, s{tch}, 3\ns_add_u32 s{tch}, s{tch}, s{sW}\ns_mul_i32 s{tch}, s{tch}, {7*4096}")
            a(f"s_lshr_b32 s{T+1}, s{sI}, 2\ns_lshl_b32 s{T+1}, s{T+1}, 9\ns_add_u32 s{tch}, s{tch}, s{T+1}")
            a(f"v_lshrrev_b32 v{TA}, 2, v{vL}\nv_lshlrev_b32 v{TA}, 12, v{TA}\nv_and_b32 v{t1}, 3, v{vL}\nv_lshl_add_u32 v{TA}, v{t1}, 7, v{TA}")
        else:
            a(f"s_lshl_b32 s{tch}, s{sJ}, 3\ns_add_u32 s{tch}, s{tch}, s{sW}\ns_mul_i32 s{tch}, s{tch}, {28*4096}\ns_add_u32 s{tch}, s{tch}, s{T}")
            a(f"v_lshlrev_b32 v{TA}, 12, v{vL}")
        a(f"v_cmp_gt_u32 vcc, 28, v{vL}\nv_mov_b32 v{t1}, 0x40000000\ns_nop 0\nv_cndmask_b32 v{TA}, v{t1}, v{TA}, vcc")
        a(f"s_lshl_b32 s{wos}, s{sW}, 13\ns_lshl_b32 s{T}, s{sJ}, 7\ns_add_u32 s{wos}, s{wos}, s{T}")
        a(f"s_lshl_b32 s{T}, s{hh}, 11\ns_add_u32 s{T}, s{T}, {QX}\nv_add_u32 v{t1}, s{T}, v{vL16}\nv_subrev_u32 v{SGA}, {SVO}, v{vTRF}")
        a(f"v_lshrrev_b32 v{t0+2}, 2, v{vL}\nv_and_b32 v{t0+3}, 3, v{vL}\nv_lshlrev_b32 v{t0+3}, 4, v{t0+3}\nv_mul_u32_u24 v{vF1}, 3584, v{t0+2}\nv_add_u32 v{vF1}, v{vF1}, v{t0+3}")
        a(f"v_lshrrev_b32 v{t0+2}, 3, v{vL}\nv_lshlrev_b32 v{t0+2}, 11, v{t0+2}\nv_sub_u32 v{vWO}, v{vWQ}, v{t0+2}")
        if C.lf: flag_addr(a, "KV", kfa)
    a("s_waitcnt lgkmcnt(0)\ns_barrier")
    stamp(a, "p2.start")
    vm = VM()
    kcur = T+13
    assert C.lfi < C.lfc
    GP = 128
    def kv_issue(t):
        k = KR + 4*(t & 3)
        if t % 4 == 0: a(f"s_add_u32 s{kcur}, s{kvs}, s{kro}\ns_add_u32 s{kro}, s{kro}, 16384\ns_and_b32 s{kro}, s{kro}, {'0x3fff' if C.kvsame else '0x1ffff'}")
        else: a(f"s_addk_i32 s{kcur}, 4096")
        a(f"s_add_u32 m0, s{ring}, {(t & 3)*1024}")
        a(f"buffer_load_dwordx4 v[{k}:{k+3}], v{vL16}, s[{S_WS}:{S_WS+3}], s{kcur} offen sc1{' nt' if C.ntkv else ''}")
        a(f"buffer_load_dwordx4 v{vL16}, s[{S_WS}:{S_WS+3}], s{kcur} offen offset:1024 sc1{' nt' if C.ntkv else ''} lds")
        vm.add(("kv", t), 2)
    def v_read(t):
        v = VR + 8*(t & 1)
        msk = C.vmask and t >= 2
        if msk: a(f"s_mov_b64 exec, s[94:95]")
        a(f"ds_read_b128 v[{v}:{v+3}], v{VA_} offset:{(t & 3)*1024}\nds_read_b128 v[{v+4}:{v+7}], v{VA_} offset:{(t & 3)*1024 + 512}")
        if msk: a("s_mov_b64 exec, -1")
    def w1_issue(f):
        if f % 4 == 0:
            a(f"s_add_u32 s{w1c}, s{sJR}, {f//4}\ns_and_b32 s{w1c}, s{w1c}, 7\ns_mul_i32 s{w1c}, s{w1c}, {64*3584}\ns_add_u32 s{w1c}, s{w1c}, s{w1s}")
        a(f"s_add_u32 m0, s{sVW}, {STG - V + (f & 3)*8192}\ns_add_u32 s{w1c}, s{w1c}, {16*3584}")
        a(f"buffer_load_dwordx4 v{vF1}, s[{S_W1}:{S_W1+3}], s{w1c} offen{' nt' if C.w1nt else ''} lds")
        vm.add(("w1", f))
    def wo_issue(u):
        a(f"s_add_u32 m0, s{sVW}, {SVO + u*8192}\ns_add_u32 s{T}, s{wos}, {u*65536}")
        a(f"buffer_load_dwordx4 v{vWO}, s[{S_WO}:{S_WO+3}], s{T} offen lds")
        vm.add(("wo", u))
    def touch(n):
        a(f"s_cmp_eq_u32 s{sJ}, {n}\ns_cselect_b32 s{T}, s{tch}, 0x40000000")
        a(f"buffer_load_dword v{TD}, v{TA}, s[{S_W2}:{S_W2+3}], s{T} offen")
        vm.add(("t", n))
    def ex(s, r0, r1):
        for r in range(r0, r1): a(f"v_exp_f32 v{s+r}, v{s+r}")
    def setprio(p):
        L = a.label()
        a(f"s_cmp_lg_u32 s{kh}, 0\ns_cbranch_scc1 {L}\ns_setprio {p}\n{L}:")
    def qk(q, t): a(f"v_mfma_f32_32x32x16_bf16 v[{S[q]}:{S[q]+15}], v[{KR+4*(t&3)}:{KR+4*(t&3)+3}], v[{Q+4*q}:{Q+4*q+3}], 0")
    def pv(q, t, h): a(f"v_smfmac_f32_32x32x32_bf16 v[{O[q]}:{O[q]+15}], v[{VR+8*(t&1)+4*h}:{VR+8*(t&1)+4*h+3}], v[{S[q]+8*h}:{S[q]+8*h+7}], v{IDX}")
    kv_issue(0); kv_issue(1)
    post_setup()
    a(f"s_lshl_b32 s{T}, s{kh}, 10\nv_add_u32 v{t1}, s{T}, v{t1}\nv_xor_b32 v{t0}, 1024, v{t1}")
    a(f"ds_read_b128 v[{Q}:{Q+3}], v{t0}\nds_read_b128 v[{Q+4}:{Q+7}], v{t1}")
    a(f"s_lshl_b32 s{ost}, s{sI}, 1\ns_add_u32 s{ost}, s{ost}, s{kh}\ns_lshl_b32 s{ost}, s{ost}, 5\ns_add_u32 s{ost}, s{ost}, s{head}\ns_lshl_b32 s{ost}, s{ost}, 10")
    a(f"s_add_u32 s{ost}, s{ost}, {WS_O}\ns_add_u32 s{ost}, s{ost}, s{sLB}")
    a(f"s_and_b32 s{osrc}, s{sW}, 1\ns_lshl_b32 s{osrc}, s{osrc}, 15\ns_lshr_b32 s{T}, s{sW}, 1\ns_lshl_b32 s{T}, s{T}, 13\ns_add_u32 s{osrc}, s{osrc}, s{T}")
    a(f"s_lshl_b32 s{T}, s{sI}, 16\ns_add_u32 s{osrc}, s{osrc}, s{T}\ns_add_u32 s{osrc}, s{osrc}, {WS_O}\ns_add_u32 s{osrc}, s{osrc}, s{sLB}\ns_add_u32 s{osrc+1}, s{osrc}, 4096")
    a(f"s_mul_i32 s{cgive}, s{sW}, 3072\ns_add_u32 s{cgive}, s{cgive}, {CMB}\ns_xor_b32 s{ctake}, s{sW}, 4\ns_mul_i32 s{ctake}, s{ctake}, 3072\ns_add_u32 s{ctake}, s{ctake}, {CMB}")
    tr_addr(a, 131, "0", True, 132, 133)
    a(f"s_lshr_b32 s{T}, s{sW}, 1\ns_lshl_b32 s{T}, s{T}, 14\ns_add_u32 s{T}, s{T}, {V+SVO}\nv_add_u32 v131, s{T}, v131")
    if C.prio: a("s_setprio 1")
    a(f"s_waitcnt vmcnt(2) lgkmcnt(0)")
    qk(0, 0)
    v_read(0)
    kv_issue(2); kv_issue(3)
    a(f"s_lshr_b32 s{T}, s{sI}, 2\ns_lshl_b32 s{T}, s{T}, 9\ns_add_u32 s{T}, s{T}, {WS_XT}\nv_and_b32 v17, 0x1f0, v{vL16}")
    a(f"buffer_load_dword v17, v17, s[{S_WS}:{S_WS+3}], s{T} offen sc1"); vm.add("xt")
    if C.w1a:
        n = 28 if C.w1a == 1 else 14
        a(f"s_lshl_b32 s{T}, s2, 3\ns_add_u32 s{T}, s{T}, s{sW}" + (f"\ns_mul_i32 s{T}, s{T}, {28*128}" if C.w1a == 1 else f"\ns_lshr_b32 s{T+1}, s{T}, 2\ns_mul_i32 s{T+1}, s{T+1}, {112*128}\ns_and_b32 s{T}, s{T}, 3\ns_mul_i32 s{T}, s{T}, {14*128}\ns_add_u32 s{T}, s{T}, s{T+1}"))
        a(f"s_lshl_b32 s{T+1}, s{sL}, 30\ns_add_u32 s{T}, s{T}, s{T+1}\nv_min_u32 v134, {n-1}, v{vL}\nv_lshlrev_b32 v134, 7, v134\nbuffer_load_dword v134, v134, s[{S_W1}:{S_W1+3}], s{T} offen")
        vm.add("w1a")
    if C.c3:
        a(f"s_lshr_b32 s{T}, s2, 3\ns_lshl_b32 s{T}, s{T}, 3\ns_add_u32 s{T}, s{T}, s{sW}\ns_lshl_b32 s{T+1}, s{T}, 11\ns_add_u32 s{T+1}, s{T+1}, 384")
        a(f"v_min_u32 v{GP+1}, 1, v{vL}\nv_lshlrev_b32 v{GP+1}, 10, v{GP+1}\nbuffer_load_dword v{GP+1}, v{GP+1}, s[{S_WO}:{S_WO+3}], s{T+1} offen")
        a(f"s_mul_i32 s{T}, s{T}, {8*3584}\ns_or_b32 s{T+1}, s{sI}, 3\ns_lshl_b32 s{T+1}, s{T+1}, 7\ns_add_u32 s{T}, s{T}, s{T+1}")
        a(f"v_min_u32 v{GP+2}, 7, v{vL}\nv_mul_u32_u24 v{GP+2}, 3584, v{GP+2}\nbuffer_load_dword v{GP+2}, v{GP+2}, s[{S_W1}:{S_W1+3}], s{T} offen")
        vm.add("c3", 2)
    stamp(a, "p2.kv0")
    a("s_nop 1")
    per = C.pper; low = C.plow
    m1, m2, m3 = [int(c, 16) for c in C.mp]; cp = min(max(C.cpos, m2), m3); assert m1 >= 2 and m3 >= 10
    for t in range(32):
        for q in range(2):
            hidx = 2*t + q
            if C.prio and hidx % per == 0: setprio(2)
            if C.prio and hidx % per == per - low: setprio(0)
            ex(S[q], 0, m1)
            if q == 0:
                if t > 0: pv(1, t-1, 1)
            else: pv(0, t, 1)
            ex(S[q], m1, m2)
            nq = len(a.L)
            if q == 0:
                qk(1, t)
                ex(S[q], m2, cp)
                need = [("kv", t+1)] if t < 31 else []
                if not C.nox and 3 <= t < 31: need.append(("w1", t-3))
                if C.lf and t == C.lfc: need.append("gp")
                a(f"s_waitcnt vmcnt({vm.need(*need) if need else 63}) lgkmcnt(0)")
                if C.lf and t == C.lfi: apoll_issue(a, kfa, GP); vm.add("gp")
                if C.lf and t == C.lfc:
                    apoll_check(a, kfa, GP, 32)
                    for k in range(4, t+4): kv_issue(k)
                if t+4 < 32 and not (C.lf and t < C.lfc): kv_issue(t+4)
                if t+1 < 32: v_read(t+1)
                if not C.nox and not C.split:
                    w1_issue(t)
                    if 3 <= t < 31:
                        for x in frag_reads(f"a{4*(t-3)}", SGA, ((t-3) & 3)*8192): a(x)
            else:
                if t < 31: qk(0, t+1)
                ex(S[q], m2, cp)
                if not C.nox:
                    if C.split:
                        w1_issue(t)
                        if 3 <= t < 31:
                            for x in frag_reads(f"a{4*(t-3)}", SGA, ((t-3) & 3)*8192): a(x)
                    if t == C.prett and C.preto:
                        a(f"buffer_load_dword v{TD}, v{vL16}, s[{S_WS}:{S_WS+3}], s{ost} offen sc1")
                        vm.add("pre")
                        if C.prets:
                            a(f"s_lshl_b32 s{T}, s{sI}, 3\ns_add_u32 s{T}, s{T}, s{sJ}\ns_lshl_b32 s{T}, s{T}, 10\ns_add_u32 s{T}, s{T}, {WS_ST}\ns_add_u32 s{T}, s{T}, s{sLB}")
                            a(f"buffer_load_dword v{TD}, v{vL16}, s[{S_WS}:{S_WS+3}], s{T} offen sc1")
                            vm.add("pre2")
                    if t == C.cpf2 and C.cpf2 and not C.vmask:
                        a(f"s_getpc_b64 s[{T}:{T+1}]\nL_pc1:\ns_lshr_b32 s94, s2, 3\ns_lshl_b32 s94, s94, 3\ns_add_u32 s94, s94, s{sW}\ns_lshl_b32 s94, s94, 6\ns_min_u32 s94, s94, SPAN2\nv_mov_b32 v134, s94")
                        a(f"global_load_dword v135, v134, s[{T}:{T+1}]"); vm.add("cp")
                    if t % 3 == 1 and t < 24: wo_issue(t//3)
                    if t == 8: a(f"v_readfirstlane_b32 s{T}, v17\ns_nop 1\nv_cmp_ne_u32 vcc, s{T}, v17\ns_nop 1\ns_cmp_eq_u64 vcc, 0\ns_cselect_b32 s{sLOC}, 1, 0")
                    if t % 4 == 3 and C.stouch == 1: touch(t//4)
                    if t % 3 == 2 and t < 24 and C.stouch == 2: touch(t//3)
                    if t == C.t2:
                        a(f"buffer_load_dword v{TD}, v{TA}, s[{S_W2}:{S_W2+3}], s{tch} offen{' nt' if C.w2nt else ''}"); vm.add("t2")
            ex(S[q], cp, m3)
            pv(q, t, 0)
            if t == 31 and q == 1:
                a(f"s_mov_b32 m0, s{cgive}\nv_mov_b32 v20, v131\nv_xor_b32 v22, 64, v131")
                for r in range(9): a(f"ds_write_addtid_b32 v{O[0]+r} offset:{256*r}")
            ex(S[q], m3, 16)
            gap = sum(1 for x in a.L[nq+1:] if not x.endswith(':'))
            if gap < 12: a(f's_nop {11 - gap}')
    a("s_nop 1")
    pv(1, 31, 1)
    if C.prio: a("s_setprio 0")
    stamp(a, "p2.loop")
    M, N = O[1], 36
    assert C.nox or vm.need(("wo", 7)) >= vm.need(("kv", 31))
    a(f"s_mov_b32 m0, s{ctake}\ns_waitcnt lgkmcnt(0)\ns_barrier")
    stamp(a, "zc.cmb")
    for r in range(9): a(f"ds_read_addtid_b32 v{N+r} offset:{256*r}")
    wr_ = wo_reads()
    for x in wr_[:6]: a(x)
    a("s_waitcnt lgkmcnt(6)")
    for r in range(9): a(f"v_add_f32 v{M+r}, v{M+r}, v{N+r}")
    for x in wr_[6:C.wo1]: a(x)
    a(f"v_add_f32 v{N}, abs(v{M}), abs(v{M+1})\nv_add_f32 v{N+1}, abs(v{M+2}), abs(v{M+3})\nv_add_f32 v{N+2}, abs(v{M+4}), abs(v{M+5})\nv_add_f32 v{N+3}, abs(v{M+6}), abs(v{M+7})")
    a(f"v_add_f32 v{N}, v{N}, v{N+1}\nv_add_f32 v{N+2}, v{N+2}, v{N+3}\nv_cmp_nge_f32 vcc, {f2u(2.0**60)}, v{M+8}\nv_add_f32 v{N}, v{N}, v{N+2}")
    a(f"s_mov_b64 s[{T+12}:{T+13}], vcc\nv_cmp_nle_f32 vcc, {f2u(2.0**-60)}, v{M+8}\ns_nop 0\ns_or_b64 s[{T+12}:{T+13}], s[{T+12}:{T+13}], vcc")
    a(f"v_cmp_ngt_f32 vcc, 0x7f800000, v{N}\ns_nop 0\ns_or_b64 s[{T+12}:{T+13}], s[{T+12}:{T+13}], vcc\ns_cbranch_scc1 L_softmax_safe\nL_softmax_done:")
    a(f"v_rcp_f32 v{M+8}, v{M+8}\ns_nop 0")
    for r in range(8): a(f"v_mul_f32 v{M+r}, v{M+r}, v{M+8}")
    for r in range(4): a(f"v_cvt_pk_bf16_f32 v{N+r}, v{M+2*r}, v{M+1+2*r}")
    if C.sent:
        for r in range(4): a(f"v_min_u32 v{N+r}, -2, v{N+r}")
    rstore(a, f"buffer_store_dwordx4 v[{N}:{N+3}], v{vL16}, s[{S_WS}:{S_WS+3}], s{ost} offen", bulk=not C.ldo)
    for x in wr_[C.wo1:]: a(x)

def softmax_safe(a):
    M = O[1]
    QF, KF, VF, SS, CC, OO, MX, VO = Q+4, 104, 108, 48, 80, 120, 116, 117
    base, cur, n = T+12, T+13, T+14
    a("L_softmax_safe:")
    a("s_waitcnt lgkmcnt(0)")
    a(f"s_lshl_b32 s{base}, s{head}, 17\ns_add_u32 s{base}, s{base}, s{sLB}")
    a(f"v_mov_b32 v{MX}, 0xff800000\ns_mov_b32 s{cur}, s{base}\ns_mov_b32 s{n}, 64")
    L1 = a.label()
    a(f"{L1}:")
    a(f"buffer_load_dwordx4 v[{KF}:{KF+3}], v{vL16}, s[{S_WS}:{S_WS+3}], s{cur} offen sc1\ns_waitcnt vmcnt(0)")
    a(f"v_mfma_f32_32x32x16_bf16 v[{SS}:{SS+15}], v[{KF}:{KF+3}], v[{QF}:{QF+3}], 0\ns_nop 15")
    for r in range(0, 16, 2): a(f"v_max3_f32 v{MX}, v{MX}, v{SS+r}, v{SS+r+1}")
    a(f"s_add_u32 s{cur}, s{cur}, 2048\ns_sub_u32 s{n}, s{n}, 1\ns_cmp_lg_u32 s{n}, 0\ns_cbranch_scc1 {L1}")
    a(f"v_mov_b32 v{VO}, v{MX}\ns_nop 1\nv_permlane32_swap_b32 v{MX}, v{VO}\ns_nop 1\nv_max_f32 v{MX}, v{MX}, v{VO}")
    for r in range(16): a(f"v_sub_f32 v{CC+r}, 0, v{MX}\nv_mov_b32 v{OO+r}, 0")
    for r in range(8): a(f"v_mov_b32 v{VF+r}, 0x3f803f80")
    a(f"v_lshrrev_b32 v{MX}, 5, v{vL}\nv_lshlrev_b32 v{VO}, 8, v{MX}\nv_and_b32 v{MX}, 15, v{vL}\nv_lshl_add_u32 v{VO}, v{MX}, 4, v{VO}")
    a(f"s_mov_b32 s{cur}, s{base}\ns_mov_b32 s{n}, 64")
    L2 = a.label()
    a(f"{L2}:")
    a(f"buffer_load_dwordx4 v[{KF}:{KF+3}], v{vL16}, s[{S_WS}:{S_WS+3}], s{cur} offen sc1")
    a("s_mov_b32 exec_lo, 0xffff\ns_mov_b32 exec_hi, 0xffff")
    a(f"buffer_load_dwordx4 v[{VF}:{VF+3}], v{VO}, s[{S_WS}:{S_WS+3}], s{cur} offen offset:1024 sc1")
    a(f"buffer_load_dwordx4 v[{VF+4}:{VF+7}], v{VO}, s[{S_WS}:{S_WS+3}], s{cur} offen offset:1536 sc1")
    a("s_mov_b64 exec, -1\ns_waitcnt vmcnt(0)")
    a(f"v_mfma_f32_32x32x16_bf16 v[{SS}:{SS+15}], v[{KF}:{KF+3}], v[{QF}:{QF+3}], v[{CC}:{CC+15}]\ns_nop 15")
    for r in range(16): a(f"v_exp_f32 v{SS+r}, v{SS+r}")
    a("s_nop 1")
    a(f"v_smfmac_f32_32x32x32_bf16 v[{OO}:{OO+15}], v[{VF}:{VF+3}], v[{SS}:{SS+7}], v{IDX}")
    a(f"v_smfmac_f32_32x32x32_bf16 v[{OO}:{OO+15}], v[{VF+4}:{VF+7}], v[{SS+8}:{SS+15}], v{IDX}\ns_nop 15")
    a(f"s_add_u32 s{cur}, s{cur}, 2048\ns_sub_u32 s{n}, s{n}, 1\ns_cmp_lg_u32 s{n}, 0\ns_cbranch_scc1 {L2}")
    for r in range(9): a(f"v_mov_b32 v{M+r}, v{OO+r}")
    for x in wo_reads()[:C.wo1]: a(x)
    a("s_branch L_softmax_done")

EOFF = 61692
def ep2_writes(acc, base, sw4k):
    off = EOFF if base >= EOFF else 0
    o = [f"ds_write_addtid_b32 v{acc+r} offset:{off + r*256}" for r in range(16)]
    o[0] = f"s_add_u32 m0, s{sw4k}, {base - off}\ns_nop 0\n" + o[0]
    return o

def ep2_read_addr(a, ra, base0, base1, sw4k, tv):
    a(f"s_and_b32 s{T}, s{sW}, 1\ns_lshl_b32 s{T}, s{T}, 2\ns_lshr_b32 s{T+1}, s{sW}, 1\ns_add_u32 s{T}, s{T}, s{T+1}\ns_lshl_b32 s{sw4k}, s{T}, 12")
    a(f"s_lshr_b32 s{T}, s{sW}, 2\ns_lshl_b32 s{T}, s{T}, 14\ns_and_b32 s{T+1}, s{sW}, 3\ns_lshl_b32 s{T+1}, s{T+1}, 10\ns_add_u32 s{T}, s{T}, s{T+1}\ns_add_u32 s{T}, s{T}, {base0}")
    a(f"v_and_b32 v{tv}, 3, v{vN}\nv_lshlrev_b32 v{ra}, 8, v{tv}\nv_bfe_u32 v{tv}, v{vN}, 2, 1\nv_lshl_add_u32 v{ra}, v{tv}, 7, v{ra}\nv_and_b32 v{tv}, 3, v{vC}\nv_lshl_add_u32 v{ra}, v{tv}, 5, v{ra}")
    a(f"v_add_u32 v{ra}, s{T}, v{ra}\nv_lshrrev_b32 v{tv}, 2, v{vC}\nv_mul_i32_i24 v{tv}, {base1 - base0}, v{tv}\nv_add_u32 v{ra}, v{ra}, v{tv}")

def ep2_sum(a, ra, add0, out):
    for k in range(4):
        a(f"ds_read_b128 v[{out+8*k}:{out+8*k+3}], v{ra} offset:{4096*k}\nds_read_b128 v[{out+8*k+4}:{out+8*k+7}], v{ra} offset:{4096*k+16}")
    def pk(d, x, y):
        for e in range(0, 8, 2): a(f"v_pk_add_f32 v[{d+e}:{d+e+1}], v[{x+e}:{x+e+1}], v[{y+e}:{y+e+1}]")
    a("s_waitcnt lgkmcnt(6)")
    pk(out, out, add0)
    a("s_waitcnt lgkmcnt(4)")
    pk(out, out, out+8)
    a("s_waitcnt lgkmcnt(2)")
    pk(out, out, out+16)
    a("s_waitcnt lgkmcnt(0)")
    pk(out, out, out+24)

def unpack8(a, dst, src):
    for e in range(4): a(f"v_lshlrev_b32 v{dst+2*e}, 16, v{src+e}\nv_and_b32 v{dst+1+2*e}, 0xffff0000, v{src+e}")

def phase3(a):
    stamp(a, "zc.ost")
    OF, ACC, WF = 16, 48, 80
    src = osrc
    n3 = [int(c) for c in C.sch3]; assert n3[0] == 4 and sum(n3) == 12
    spin = T+6
    if not C.sent:
        a("s_waitcnt vmcnt(0) lgkmcnt(0)\ns_barrier")
        stamp(a, "p2.end")
        if_wave_eq(a, 0, lambda: publish(a, "O", sI))
        for f in range(n3[0]): w2_dma(a, f)
        if_wave_eq(a, 0, lambda: poll(a, "O", sI, 8))
        a("s_barrier")
        stamp(a, "proj.polled")
    else:
        a(f"s_mov_b32 s{spin}, {SPIN}\ns_waitcnt {'vmcnt(0) ' if C.sentwait == 1 else ''}lgkmcnt(0)\ns_barrier")
        stamp(a, "p2.end")
    LT = a.label()
    a(f"{LT}:")
    for t in range(8):
        if C.lprio and t % 2 == 0: a(f"s_setprio {3 - t//2}")
        a(f"buffer_load_dwordx4 v[{OF+4*t}:{OF+4*t+3}], v{vL16}, s[{S_WS}:{S_WS+3}], s{src + (t >> 2)} offen offset:{(t & 3)*1024} sc1")
    for t in range(8):
        a(f"s_waitcnt vmcnt({7-t})")
        for y in range(2):
            c = "0" if t == 0 else f"v[{ACC+16*y}:{ACC+16*y+15}]"
            a(f"v_mfma_f32_32x32x16_bf16 v[{ACC+16*y}:{ACC+16*y+15}], v[{OF+4*t}:{OF+4*t+3}], v[{WF+8*t+4*y}:{WF+8*t+4*y+3}], {c}")
            if C.sent:
                o = OF + 4*t + 2*y
                a(f"v_max_u32 v0, v{o}, v{o+1}" if t == 0 and y == 0 else f"v_max3_u32 v0, v0, v{o}, v{o+1}")
    if C.sent:
        a(f"v_cmp_eq_u32 vcc, -1, v0\ns_sub_u32 s{spin}, s{spin}, 1\ns_cselect_b64 vcc, 0, vcc\ns_cbranch_vccnz {LT}")
    if C.sent and C.w2pos == 1:
        for f in range(n3[0]): w2_dma(a, f)
    ep2_read_addr(a, 88, V+SVO, E+16, T+4, 80)
    stamp(a, "proj.loop")
    OUT = 104
    for x in ep2_writes(ACC, V+SVO, T+4) + ep2_writes(ACC+16, E+16, T+4): a(x)
    unpack8(a, 96, vRES)
    if C.sent and C.w2pos == 0:
        for f in range(n3[0]): w2_dma(a, f)
    GA, GB, HA, SG_, G4, ONE = 16, 17, 18, 19, 20, 24
    sga, sgb, sh = T+7, T+8, T+9
    a(f"s_lshl_b32 s{sgb}, s{sI}, 13\ns_add_u32 s{sgb}, s{sgb}, {WS_ST}\ns_add_u32 s{sgb}, s{sgb}, s{sLB}\ns_lshl_b32 s{sga}, s{sJ}, 10\ns_add_u32 s{sga}, s{sga}, s{sgb}")
    a(f"s_lshl_b32 s{sh}, s{sJ}, 18\ns_lshl_b32 s{T}, s{sI}, 12\ns_add_u32 s{sh}, s{sh}, s{T}\ns_add_u32 s{sh}, s{sh}, {WS_H}\ns_add_u32 s{sh}, s{sh}, s{sLB}")
    a(f"v_lshlrev_b32 v{GA}, 4, v{vN}\nv_lshl_add_u32 v{GB}, v{vC}, 10, v{GA}")
    a(f"v_lshrrev_b32 v{HA}, 2, v{vC}\nv_lshlrev_b32 v{HA}, 17, v{HA}\nv_lshl_add_u32 v{HA}, v{vN}, 6, v{HA}\nv_and_b32 v{SG_}, 3, v{vC}\nv_lshl_add_u32 v{HA}, v{SG_}, 4, v{HA}")
    a(f"v_subrev_u32 v{SG_}, {SVO}, v{vTRF}\nv_mov_b32 v{G4}, 0\nv_mov_b32 v{G4+1}, 1\nv_mov_b32 v{G4+2}, 0\nv_mov_b32 v{G4+3}, 1\nv_mov_b32 v{ONE}, 0x3f803f80")
    a(f"s_mov_b32 s{T+2}, 0x01010101\ns_mov_b32 s{T+3}, 0x01010101\ns_mov_b32 s{spin}, {SPIN}")
    a("s_waitcnt lgkmcnt(0)\ns_barrier")
    stamp(a, "zc.epb")
    ep2_sum(a, 88, 96, OUT)
    for e in range(4): a(f"v_cvt_pk_bf16_f32 v{vRES+e}, v{OUT+2*e}, v{OUT+1+2*e}")
    for e in range(4): a(f"v_dot2c_f32_bf16 v{G4}, v{vRES+e}, v{ONE}\nv_dot2c_f32_bf16 v{G4+2}, v{vRES+e}, v{vRES+e}")
    a("s_nop 0")
    dpp_red8(a, [G4, G4+2])
    a(f"s_mov_b64 exec, s[{T+2}:{T+3}]")
    rstore(a, f"buffer_store_dwordx4 v[{G4}:{G4+3}], v{GA}, s[{S_WS}:{S_WS+3}], s{sga} offen")
    a("s_mov_b64 exec, -1")
    stamp(a, "proj.st")
    for c in range(4):
        for x in frag_reads(f"v{W1T+4*c}", SG_, c*8192): a(x)
    if not C.sent:
        for f in range(4):
            for x in w2_reads(f): a(x)
    unpack8(a, 80, vRES)
    LP = a.label(); LD = a.label()
    a(f"{LP}:")
    a(f"buffer_load_dwordx4 v[68:71], v{GB}, s[{S_WS}:{S_WS+3}], s{sgb} offen sc1")
    a("s_waitcnt vmcnt(0)\nv_and_b32 v72, v69, v71\nv_cmp_ne_u32 vcc, 1, v72")
    a(f"s_cbranch_vccz {LD}")
    a(f"s_sub_u32 s{spin}, s{spin}, 1\ns_cmp_lg_u32 s{spin}, 0\ns_cbranch_scc1 {LP}")
    a(f"{LD}:")
    stamp(a, "proj.stat")
    dpp_red8(a, [68, 70])
    a(f"v_mul_f32 v68, {f2u(1/512)}, v68\nv_mul_f32 v70, {f2u(1/512)}, v70")
    a("v_fma_f32 v70, -v68, v68, v70\nv_max_f32 v70, 0, v70")
    a(f"v_mov_b32 v71, {f2u(1e-10)}\nv_fmac_f32 v71, {f2u(1.0 + 1e-5)}, v70\nv_rsq_f32 v70, v71\ns_nop 0")
    a("v_mul_f32 v72, v68, v70\nv_sub_f32 v72, 0, v72\nv_mov_b32 v71, v70\nv_mov_b32 v73, v72")
    for e in range(0, 8, 2): a(f"v_pk_fma_f32 v[{80+e}:{81+e}], v[{80+e}:{81+e}], v[70:71], v[72:73]")
    for e in range(4): a(f"v_cvt_pk_bf16_f32 v{76+e}, v{80+2*e}, v{81+2*e}")
    a(f"buffer_store_dwordx4 v[76:79], v{HA}, s[{S_WS}:{S_WS+3}], s{sh} offen sc1")
    stamp(a, "zc.hst")
    if C.sent:
        for f in range(4):
            for x in w2_reads(f): a(x)
    assert C.x4 != 1
    a("s_waitcnt lgkmcnt(0)")
    rest3 = [8, 9, 10, 11, 4, 5, 6, 7]
    assert n3[1] <= 4
    for f in rest3[:n3[1]]: w2_dma(a, f)
    a(f"s_waitcnt vmcnt({n3[1]})\ns_barrier")
    stamp(a, "proj.end")
    if_wave_eq(a, 0, lambda: publish(a, "H", sJ))
    if C.sent:
        L = a.label()
        a(f"s_cmp_lg_u32 s{sL}, 0\ns_cbranch_scc1 {L}\nv_mov_b32 v72, -1\nv_mov_b32 v73, -1\nv_mov_b32 v74, -1\nv_mov_b32 v75, -1")
        a(f"s_add_u32 s{T}, s{ost}, {LSTRIDE}\nbuffer_store_dwordx4 v[72:75], v{vL16}, s[{S_WS}:{S_WS+3}], s{T} offen sc1\n{L}:")
    for f in rest3[n3[1]:]: w2_dma(a, f)
    if C.x4 == 2: w2x_dma(a)

EPO = 61440
W1T = 128

def flag_addr(a, kind, sd):
    a(f"s_lshl_b32 s{sd}, s{sJ}, 10\ns_add_u32 s{sd}, s{sd}, {FL[kind]*128}\ns_add_u32 s{sd}, s{sd}, s{sFL}")
    a(f"s_lshr_b32 s{T+1}, s{sI}, 2\ns_lshl_b32 s{T+1}, s{T+1}, 7\ns_add_u32 s{sd}, s{sd}, s{T+1}")

def apoll_issue(a, sd, v):
    a(f"s_mov_b64 exec, 1\nbuffer_load_dword v{v}, v{vL16}, s[{S_WS}:{S_WS+3}], s{sd} offen sc1\ns_mov_b64 exec, -1")

def apoll_check(a, sd, v, n):
    LP = a.label(); LD = a.label()
    a(f"s_mov_b64 exec, 1\ns_mov_b32 s{T+1}, {SPIN}\n{LP}:\nv_cmp_ne_u32 vcc, {n}, v{v}\ns_cbranch_vccz {LD}")
    a(f"buffer_load_dword v{v}, v{vL16}, s[{S_WS}:{S_WS+3}], s{sd} offen sc1\ns_waitcnt vmcnt(0)")
    a(f"s_sub_u32 s{T+1}, s{T+1}, 1\ns_cmp_lg_u32 s{T+1}, 0\ns_cbranch_scc1 {LP}\n{LD}:\ns_mov_b64 exec, -1")

def mlp(a):
    R = 4
    EP = STG
    ERA, UA, YA5, B1, YA4, C1, RA_, WA_, ADD = 21, 20, 22, 24, 28, 29, 30, 128, 136
    ACC, F, ET, PV_, B2 = 48, [80, 96], (48 if C.x4 else 112), 19, 18
    TT = 128
    NW2 = 24 if C.x4 else 28
    xr = [x for c in range(4) for x in frag_reads(w2_reg(24+c), 17, c*8192)] if C.x4 else []
    src4, dst, qb, src5, rot, ust, fa, fb, gc2, ewb = T+2, T+3, T+4, T+5, T+6, T+7, T+8, T+9, T+11, T+12
    a(f"v_lshlrev_b32 v{ERA}, 1, v{vN}\ns_lshl_b32 s{T}, s{sI}, 7")
    a(f"buffer_load_ushort v{B2}, v{ERA}, s[{S_B2}:{S_B2+3}], s{T} offen")
    a(f"s_lshr_b32 s{T}, s{sW}, 1\ns_and_b32 s{T+1}, s{sW}, 1\ns_lshl_b32 s{T+1}, s{T+1}, 11\ns_add_u32 s{T+1}, s{T+1}, s{sLB}")
    a(f"s_mul_i32 s{src5}, s{sJ}, {2*114688}\ns_mul_i32 s{dst}, s{T}, {28*1024}\ns_add_u32 s{src5}, s{src5}, s{dst}\ns_add_u32 s{src5}, s{src5}, s{T+1}\ns_add_u32 s{src5}, s{src5}, {WS_U}")
    a(f"s_lshl_b32 s{src4}, s{sJ}, 18\ns_lshl_b32 s{dst}, s{T}, 15\ns_add_u32 s{src4}, s{src4}, s{dst}\ns_add_u32 s{src4}, s{src4}, s{T+1}\ns_add_u32 s{src4}, s{src4}, {WS_H}")
    a(f"s_mul_i32 s{ust}, s{sJ}, {2*114688}\ns_lshl_b32 s{dst}, s{sI}, 12\ns_add_u32 s{ust}, s{ust}, s{dst}\ns_lshl_b32 s{dst}, s{T}, 9\ns_add_u32 s{ust}, s{ust}, s{dst}\ns_add_u32 s{ust}, s{ust}, s{T+1}\ns_add_u32 s{ust}, s{ust}, {WS_U}")
    a(f"s_lshl_b32 s{dst}, s{sW}, 11\ns_lshl_b32 s{T}, s{T}, 12")
    a(f"v_bfe_u32 v16, v{vL}, 3, 2\nv_lshlrev_b32 v{YA5}, 9, v16\nv_and_b32 v16, 3, v{vL}\nv_lshl_add_u32 v{YA5}, v16, 7, v{YA5}\nv_bfe_u32 v16, v{vL}, 2, 1\nv_lshl_add_u32 v{YA5}, v16, 6, v{YA5}")
    a(f"v_bfe_u32 v16, v{vL}, 1, 1\nv_bfe_u32 v17, v{vL}, 4, 1\nv_lshl_add_u32 v16, v17, 1, v16\nv_lshrrev_b32 v17, 5, v{vL}\nv_xor_b32 v16, v16, v17\nv_lshl_add_u32 v{YA5}, v16, 4, v{YA5}")
    a(f"v_add_u32 v{YA5}, s{T}, v{YA5}\nv_xor_b32 v{YA5+1}, 32, v{YA5}")
    a(f"s_sub_u32 s{T}, s{T}, s{sVW}\ns_sub_u32 s{T}, s{T}, {SVO}\nv_add_u32 v{YA4}, s{T}, v{vTRF}")
    a(f"s_and_b32 s{T}, s{sW}, 1\ns_lshl_b32 s{T}, s{T}, 11\nv_add_u32 v31, s{T}, v{YA4}")
    a(f"s_lshl_b32 s{rot}, s{sJR}, 12")
    qkv_base8(a, qb)
    flag_addr(a, "U", fa); flag_addr(a, "UB", fb)
    LS = a.label(); LM = a.label()
    a(f"s_cmp_ge_u32 s{sI}, 28\ns_cbranch_scc1 {LS}")
    vm = VM()
    a(f"s_and_b32 s{T}, s{sW}, 1\ns_lshr_b32 s{T+1}, s{sW}, 1")
    a(f"s_lshl_b32 s{ewb}, s{T}, 14\ns_add_u32 s{ewb}, s{ewb}, {EP}\ns_lshl_b32 s{T+10}, s{T+1}, 10\ns_add_u32 s{T+10}, s{T+10}, s{ewb}\nv_add_u32 v{ERA}, s{T+10}, v{vL16}")
    a(f"s_lshl_b32 s{T+10}, s{T+1}, 12\ns_add_u32 s{ewb}, s{ewb}, s{T+10}")
    a(f"s_lshl_b32 s{T}, s{T}, 6\ns_lshl_b32 s{T+10}, s{sI}, 7\ns_add_u32 s{T}, s{T}, s{T+10}\nv_lshlrev_b32 v16, 3, v{vC}")
    a(f"buffer_load_dwordx2 v[{B1+2}:{B1+3}], v16, s[{S_B1}:{S_B1+3}], s{T} offen")
    a(f"v_lshrrev_b32 v17, 5, v{vL}\ns_lshr_b32 s{T+1}, s{T+1}, 1\ns_lshl_b32 s{T+1}, s{T+1}, 1\nv_or_b32 v17, s{T+1}, v17\nv_lshlrev_b32 v17, 4, v17\nv_lshlrev_b32 v{UA}, 3, v{vL}\nv_xor_b32 v{UA}, v{UA}, v17")
    c1 = -2*0.7978845608028654*1.4426950408889634
    a(f"s_mov_b32 s{gc2}, {f2u(c1*0.044715)}\nv_mov_b32 v{C1}, {f2u(c1)}")
    if_wave_eq(a, 0, lambda: poll(a, "H", sJ, 32))
    a("s_barrier")
    stamp(a, "mlp1.polled"); stamp(a, "z3.poll")
    def act(p, s):
        if p == 4: a(f"s_add_u32 s{T}, s{rot}, {(s & 7)*4096}\ns_and_b32 s{T}, s{T}, 0x7fff\ns_add_u32 s{T}, s{T}, s{src4}\ns_add_u32 m0, s{dst}, {(s % R)*16384}" + (f"\ns_add_u32 s{T}, s{T}, 131072" if s >= 8 else "\ns_nop 0"))
        else: a(f"s_add_u32 m0, s{dst}, {(s % R)*16384}\ns_add_u32 s{T}, s{src5}, {(s//7)*114688 + (s % 7)*4096}")
        nt = " nt" if C.ntact else ""
        a(f"buffer_load_dwordx4 v{vL16}, s[{S_WS}:{S_WS+3}], s{T} offen sc1{nt} lds\nbuffer_load_dwordx4 v{vL16}, s[{S_WS}:{S_WS+3}], s{T} offen offset:1024 sc1{nt} lds")
        vm.add(("act", p, s), 2)
    def reads(p, s):
        out = []; o = (s % R)*16384
        for t in range(4):
            b = F[s & 1] + 4*t
            if p == 4: out += [f"ds_read_b64_tr_b16 v[{b}:{b+1}], v{YA4} offset:{o + t*1024}", f"ds_read_b64_tr_b16 v[{b+2}:{b+3}], v{YA4} offset:{o + t*1024 + 256}"]
            else: out.append(f"ds_read_b128 v[{b}:{b+3}], v{YA5 + (t & 1)} offset:{o + (t >> 1)*2048}")
        return out
    def mfmas(p, s):
        out = []
        n = 8 if p == 4 else 7
        y = s // n
        for t in range(4):
            f = 4*(s % n) + t
            if p == 4: X = f"a[{4*f}:{4*f+3}]" if f < 28 else f"v[{W1T+4*(f-28)}:{W1T+4*(f-28)+3}]"
            else: r = w2_reg(f); X = f"{r[0]}[{int(r[1:])}:{int(r[1:])+3}]"
            Y = f"v[{F[s & 1]+4*t}:{F[s & 1]+4*t+3}]"
            c = "0" if f == 0 else f"v[{ACC+16*y}:{ACC+16*y+15}]"
            A_, B_ = (Y, X) if p == 4 else (X, Y)
            out.append(f"v_mfma_f32_32x32x16_bf16 v[{ACC+16*y}:{ACC+16*y+15}], {A_}, {B_}, {c}")
        return out
    RW = 31
    def inring(f): return C.optx and 20 <= f < 24
    def wdma(fs):
        for f in fs:
            if inring(f):
                a(f"s_add_u32 m0, s{dst}, {((f-20) >> 1)*16384 + (f & 1)*1024}\ns_add_u32 s{T}, s{sW2S}, {f*16*4096}")
                a(f"buffer_load_dwordx4 v{vF2}, s[{S_W2}:{S_W2+3}], s{T} offen lds")
            else: w2_dma(a, f)
            vm.add(("w", f))
    def wr(fs): return [x for f in fs for x in (frag_reads(w2_reg(f), RW, ((f-20) >> 1)*16384 + (f & 1)*1024) if inring(f) else w2_reads(f))]
    def wread(fs):
        for x in wr(fs): a(x)
    def ep_w(y, rs=range(16)):
        o = [f"ds_write_addtid_b32 v{ACC+16*y+r} offset:{EPO + r*256}" for r in rs]
        o[0] = f"s_sub_u32 m0, s{ewb}, {EPO}\ns_nop 0\n" + o[0]
        return o
    def ep_r(): return [f"ds_read_b128 v[{ET+4*p}:{ET+4*p+3}], v{ERA} offset:{p*4096}" for p in range(4)]
    def ep_math():
        o = []
        for e in range(4): o += [f"v_add_f32 v{ET+e}, v{ET+e}, v{ET+4+e}", f"v_add_f32 v{ET+8+e}, v{ET+8+e}, v{ET+12+e}"]
        for e in range(4): o.append(f"v_add_f32 v{ET+e}, v{ET+e}, v{B1+e}")
        for e in range(4): o.append(f"v_add_f32 v{ET+e}, v{ET+e}, v{ET+8+e}")
        G = ET+4
        for e in range(4): o.append(f"v_mul_f32 v{G+e}, v{ET+e}, v{ET+e}")
        for e in range(4): o.append(f"v_fma_f32 v{G+e}, v{G+e}, s{gc2}, v{C1}")
        for e in range(4): o.append(f"v_mul_f32 v{G+e}, v{G+e}, v{ET+e}")
        for e in range(4): o.append(f"v_exp_f32 v{G+e}, v{G+e}")
        for e in range(4): o.append(f"v_add_f32 v{G+e}, 1.0, v{G+e}")
        for e in range(4): o.append(f"v_rcp_f32 v{G+e}, v{G+e}")
        for e in range(4): o.append(f"v_mul_f32 v{ET+e}, v{ET+e}, v{G+e}")
        o += [f"v_cvt_pk_bf16_f32 v{ET+8}, v{ET}, v{ET+1}", f"v_cvt_pk_bf16_f32 v{ET+9}, v{ET+2}, v{ET+3}"]
        return o
    def ep_store(y):
        if y: a(f"s_add_u32 s{ust}, s{ust}, 114688")
        a(f"buffer_store_dwordx2 v[{ET+8}:{ET+9}], v{UA}, s[{S_WS}:{S_WS+3}], s{ust} offen sc1")
        vm.add(("st", y))
    def body(m, lds, valu=()):
        lds = list(lds); valu = list(valu)
        nl = max(C.ldsper, -(-len(lds)//4)); nv = -(-len(valu)//4)
        for k in range(4):
            if k < len(m): a(m[k])
            for x in lds[k*nl:(k+1)*nl]: a(x)
            for x in valu[k*nv:(k+1)*nv]: a(x)
    for s in range(C.init): act(4, s)
    late = [int(c) for c in (C.schx if C.optx else C.schw)]
    assert sum(late) == 8 and len(late) == 6
    nxt = 12
    em = ep_math()
    deferred = []
    E_ = [int(c, 16) for c in C.eps]
    for s in range(16):
        tags = [("act", 4, s)] + ([("st", 0)] if s == C.pubs else [])
        a(f"s_waitcnt vmcnt({vm.need(*tags)}) lgkmcnt(0)\ns_barrier")
        if s not in (2, 3, 5, 6, 7): stamp(a, f"z4.{s:02d}")
        if s == 0: stamp(a, "mlp1.b0")
        if C.defer == 2 and s not in (E_[0], E_[1]):
            for k in deferred: act(4, k)
            deferred = []
        lds = reads(4, s); valu = []
        if s == 0: valu = [f"v_lshlrev_b32 v{B1}, 16, v{B1+2}", f"v_and_b32 v{B1+1}, 0xffff0000, v{B1+2}", f"v_lshlrev_b32 v{B1+2}, 16, v{B1+3}", f"v_and_b32 v{B1+3}, 0xffff0000, v{B1+3}"]
        if C.wfirst and s == E_[0] == E_[1]: lds = ep_w(0) + lds
        else:
            if s == E_[0]: lds += ep_w(0, range(8))
            if s == E_[1]: lds += ep_w(0, range(8, 16))
        if s == 0 and C.x4:
            a(f"v_subrev_u32 v17, {SVO}, v{vTRF}"); lds += xr
        if s == E_[2]: lds += ep_r()
        if s == E_[3]: valu += em[:24]
        if s == E_[4]: valu += em[24:]
        if s == E_[5]: lds += wr(range(4, 8))
        if s == E_[6]: lds += wr(range(8, 12))
        body(mfmas(4, s-1) if s else [], lds, valu)
        if s == C.pubs:
            stamp(a, "mlp1.pubA")
            if_wave_eq(a, 0, lambda: publish(a, "U", sJ))
        if s == E_[4]: ep_store(0)
        if s == 0:
            for k in range(C.init, R): act(4, k)
        if s >= 1 and s - 1 + R < 16:
            deferred.append(s - 1 + R)
            if not (C.defer and s in (E_[0], E_[1])):
                for k in deferred: act(4, k)
                deferred = []
        if s >= 11:
            n = late[s-11]
            assert nxt + n <= 12 + 4*(s > E_[5]) + 4*(s > E_[6]) + 2*(s >= 13) + 2*(s >= 14)
            wdma(range(nxt, nxt + n)); nxt += n
    assert E_[0] >= 9 and E_[2] > E_[1] and E_[3] > E_[2] and E_[5] >= 10 and E_[6] >= 11
    a("s_waitcnt lgkmcnt(0)")
    for x in mfmas(4, 15): a(x)
    stamp(a, "mlp1.loop"); stamp(a, "z4.loop")
    a("s_nop 9")
    for x in ep_w(1): a(x)
    if C.pubs >= 16: a(f"s_waitcnt vmcnt({vm.need(('st', 0))})")
    a("s_waitcnt lgkmcnt(0)\ns_barrier")
    stamp(a, "z4.ep")
    for x in ep_r(): a(x)
    if C.pubs >= 16: if_wave_eq(a, 0, lambda: publish(a, "U", sJ))
    wdma(range(nxt, 20))
    if C.n1 == 0: apoll_issue(a, fa, PV_); vm.add("pa")
    a("s_waitcnt lgkmcnt(0)")
    for x in em: a(x)
    ep_store(1)
    stamp(a, "mlp1.st"); stamp(a, "z4.st")
    npre = 20 + C.n1 + C.n2
    if C.n1:
        a(f"s_waitcnt vmcnt({vm.need(('w', 15))})")
        wread(range(12, 16))
        a("s_waitcnt lgkmcnt(0)")
        apoll_issue(a, fa, PV_); vm.add("pa")
        wdma(range(20, 20 + C.n1))
        a(f"s_waitcnt vmcnt({vm.need('pa')})")
        wread(range(16, 20))
        a("s_barrier")
        stamp(a, "z4.xdrain")
        if_wave_eq(a, 0, lambda: publish(a, "UB", sJ))
        a("s_waitcnt lgkmcnt(0)")
        wdma(range(20 + C.n1, npre))
        first = 0
    else:
        a(f"s_waitcnt vmcnt({vm.need('pa')})")
        wread(range(12, 20))
        apoll_check(a, fa, PV_, 28)
        act(5, 0); act(5, 1)
        a(f"s_waitcnt vmcnt({vm.need(('st', 1))})\ns_barrier")
        stamp(a, "z4.xdrain")
        if_wave_eq(a, 0, lambda: publish(a, "UB", sJ))
        first = 2
    a(f"s_branch {LM}")
    a(f"{LS}:")
    a("s_waitcnt vmcnt(0)")
    if C.x4:
        a(f"v_subrev_u32 v17, {SVO}, v{vTRF}")
        for x in xr: a(x)
    wread(range(4, 12)); a("s_waitcnt lgkmcnt(0)")
    keep = vm.ops[:]
    wdma(range(12, 20))
    a("s_waitcnt vmcnt(0)")
    wread(range(12, 20)); a("s_waitcnt lgkmcnt(0)")
    wdma(range(20, npre))
    a(f"v_mov_b32 v{PV_}, 28\ns_waitcnt vmcnt(0)")
    if_wave_eq(a, 0, lambda: poll(a, "U", sJ, 28))
    a("s_barrier")
    for k in range(first): act(5, k)
    vm.ops = keep
    a(f"{LM}:")
    if first == 0: apoll_check(a, fa, PV_, 28)
    stamp(a, "mlp2.polled"); stamp(a, "z4.zpolled")
    for k in range(first, C.init5): act(5, k)
    ep2_read_addr(a, RA_, EP+16, E+32768, ewb, TT)
    sch = [int(c) for c in C.sch2]
    extra = list(range(12))
    qe = [int(c) for c in C.qe]
    assert sum(sch[:5]) + sum(qe) <= 7
    def point(p):
        for _ in range(sch[p]):
            k = extra.pop(0); qkv_piece8(a, qb, k); vm.add(("x", k))
    sb = C.sb
    na = max(first, C.init5); nw = npre
    for s in range(14):
        tags = [("act", 5, s)]
        if s == sb: tags.append("pb")
        if s == 5: tags.append(("w", 23))
        if s == 6 and not C.x4: tags.append(("w", 27))
        a(f"s_waitcnt vmcnt({vm.need(*tags)}) lgkmcnt(0)\ns_barrier")
        if s not in (8, 9, 10): stamp(a, f"z5.{s:02d}")
        if s == 0: stamp(a, "mlp2.b0")
        lds = reads(5, s); valu = []
        if s == 0:
            for e in range(4): valu += [f"v_lshlrev_b32 v{ADD+2*e}, 16, v{vRES+e}", f"v_and_b32 v{ADD+1+2*e}, 0xffff0000, v{vRES+e}"]
            valu.append(f"v_lshlrev_b32 v{B2}, 16, v{B2}")
            for e in range(8): valu.append(f"v_add_f32 v{ADD+e}, v{ADD+e}, v{B2}")
        if s == 5: lds += wr(range(20, 24))
        if s == 6 and not C.x4: lds += wr(range(24, 28))
        if s == C.wa5: lds += ep2_writes(ACC, EP+16, ewb)
        body(mfmas(5, s-1) if s else [], lds, valu)
        if s == sb:
            apoll_check(a, fb, PV_, 28)
            stamp(a, "mlp2.pollB")
        if s == C.pbi: apoll_issue(a, fb, PV_); vm.add("pb")
        lim = min(14, s + 4, 7 if s < sb else 14)
        want = min(lim, na + 1) if nw < NW2 and not C.deep else lim
        want = max(want, min(lim, s + 3))
        while na < want: act(5, na); na += 1
        if nw < NW2: wdma((nw, nw+1)); nw += 2
        if s == C.q5s and C.pret:
            a(f"s_lshl_b32 s{T}, s{sL}, 30\ns_add_u32 s{T}, s{T}, s{sXO}\nbuffer_load_dword v{TT+1}, v{vXO}, s[{S_XD}:{S_XD+3}], s{T} offen sc1")
            a(f"s_lshl_b32 s{T}, s{sI}, 3\ns_add_u32 s{T}, s{T}, s{sJ}\ns_lshl_b32 s{T}, s{T}, 10\ns_add_u32 s{T}, s{T}, {WS_ST2}\nv_lshlrev_b32 v{TT+2}, 3, v{vL}")
            a(f"buffer_load_dword v{TT+2}, v{TT+2}, s[{S_WS}:{S_WS+3}], s{T} offen sc1")
            vm.add("pre", 2)
        if s == C.q5s and C.q5:
            a(f"s_lshr_b32 s{T}, s2, 3\ns_lshl_b32 s{T}, s{T}, 3\ns_add_u32 s{T}, s{T}, s{sW}\ns_mul_i32 s{T}, s{T}, {6*1024}")
            if C.q5 == 1: a(f"s_add_u32 s{T}, s{T}, 384\nv_min_u32 v{TT}, 5, v{vL}\nv_lshlrev_b32 v{TT}, 10, v{TT}")
            else: a(f"v_min_u32 v{TT}, 47, v{vL}\nv_lshlrev_b32 v{TT}, 7, v{TT}")
            a(f"buffer_load_dword v{TT}, v{TT}, s[{S_QKV}:{S_QKV+3}], s{T} offen"); vm.add("q5")
        if s >= 11:
            for _ in range(qe[s-11]):
                k = extra.pop(0); qkv_piece8(a, qb, k); vm.add(("x", k))
    assert na == 14 and nw == NW2
    a(f"s_waitcnt lgkmcnt({15 if C.wa5 == 13 else 0})")
    for x in mfmas(5, 13): a(x)
    stamp(a, "mlp2.loop")
    a("s_nop 9")
    OUT = 80
    for x in ep2_writes(ACC+16, E+32768, ewb): a(x)
    Lq = a.label()
    a(f"s_cmp_lg_u32 s{sL}, 0\ns_cbranch_scc1 {Lq}")
    point(0); point(1); point(2)
    a(f"v_mov_b32 v20, 0\nv_mov_b32 v21, 0\nv_mov_b32 v22, 0x3f803f80\nv_lshlrev_b32 v23, 3, v{vN}\ns_mov_b32 s{T+10}, 0x01010101\ns_mov_b32 s{T+11}, 0x01010101")
    a(f"s_lshl_b32 s{T+9}, s{sI}, 3\ns_add_u32 s{T+9}, s{T+9}, s{sJ}\ns_lshl_b32 s{T+9}, s{T+9}, 10\ns_add_u32 s{T+9}, s{T+9}, {WS_ST2}")
    a(f"{Lq}:\ns_waitcnt lgkmcnt(0)\ns_barrier")
    ep2_sum(a, RA_, ADD, OUT)
    point(3)
    for e in range(4): a(f"v_cvt_pk_bf16_f32 v{vRES+e}, v{OUT+2*e}, v{OUT+1+2*e}")
    if C.finplain:
        Lf = a.label()
        a(f"s_cmp_eq_u32 s{sL}, 0\ns_cbranch_scc1 {Lf}\nbuffer_store_dwordx4 v[{vRES}:{vRES+3}], v{vXO}, s[{S_XD}:{S_XD+3}], s{sXO} offen{' nt' if C.finplain == 2 else ' sc1' if C.finplain == 3 else ''}\ns_branch L_fin\n{Lf}:")
    rstore(a, f"buffer_store_dwordx4 v[{vRES}:{vRES+3}], v{vXO}, s[{S_XD}:{S_XD+3}], s{sXO} offen", bulk=True)
    stamp(a, "mlp2.st")
    a(f"s_cmp_lg_u32 s{sL}, 0\ns_cbranch_scc1 L_fin")
    for e in range(4): a(f"v_dot2c_f32_bf16 v20, v{vRES+e}, v22\nv_dot2c_f32_bf16 v21, v{vRES+e}, v{vRES+e}")
    a("s_nop 0")
    dpp_red8(a, [20, 21])
    a(f"s_mov_b64 exec, s[{T+10}:{T+11}]")
    rstore(a, f"buffer_store_dwordx2 v[20:21], v23, s[{S_WS}:{S_WS+3}], s{T+9} offen", bulk=True)
    a("s_mov_b64 exec, -1")
    point(4)
    a(f"s_waitcnt vmcnt({sch[4]})\ns_barrier")
    stamp(a, "mlp2.end")
    if_wave_eq(a, 4, lambda: publish(a, "X", sI))
    point(5)

def main(out):
    a = Asm()
    K = NAME + "_kernel"
    a.L.append(f".globl {K}\n.p2align 8\n.type {K},@function\n{K}:")
    prologue(a)
    a(f"buffer_load_dwordx4 v[{vRES}:{vRES+3}], v{vXO}, s[{S_XS}:{S_XS+3}], s{sXO} offen")
    stamp(a, "entry2")
    a(f"s_cmp_lt_u32 s{sW}, 4\ns_cbranch_scc1 L_p1_cons")
    layer0_helpers(a)
    ool_at = len(a.L)
    a("L_layer:")
    ool = phase1(a)
    a.L.append("; ======== P2: attention")
    phase2(a)
    phase3(a)
    mlp(a)
    a(f"s_mov_b32 s{S_XS}, s{S_XD}\ns_mov_b32 s{S_XS+1}, s{S_XD+1}\ns_mov_b32 s{S_XD}, s{sOUT}\ns_mov_b32 s{S_XD+1}, s{sOUT+1}")
    a(f"s_mov_b32 s{sL}, 1\ns_mov_b32 s{sLB}, {LSTRIDE}")
    if C.stamp: a("v_mov_b32 v7, v6")
    a("s_branch L_layer")
    a("L_fin:")
    if C.stamp:
        a("s_waitcnt vmcnt(0)")
        stamp(a, "fin")
        a(f"s_lshl_b32 s{T}, s2, 3\ns_add_u32 s{T}, s{T}, s{sW}\ns_lshl_b32 s{T}, s{T}, 9\ns_add_u32 s{T}, s{T}, {WS_STAMP}\nv_lshlrev_b32 v16, 2, v{vL}")
        a(f"buffer_store_dword v7, v16, s[{S_WS}:{S_WS+3}], s{T} offen\nbuffer_store_dword v6, v16, s[{S_WS}:{S_WS+3}], s{T} offen offset:256")
    a("L_end:\ns_endpgm")
    softmax_safe(a)
    b = Asm()
    for x in ool[-13:-12] + [o for o in ool if o is not ool[-13]] if False else ool: b(x)
    a.L[ool_at:ool_at] = b.L
    DOC = """;
; One persistent launch, 256 workgroups (one per CU) x 8 waves.  Workgroup (i, j): i = 64-token block, j = 4-head group / 64-channel block.
; directly; row sums from a ones row; checked, with a true-max two-pass fallback)  ->  P3 output projection + residual + LayerNorm
; statistics exchange  ->  P4/P5 token-mixing MLP as one pipeline over two channel halves, weights resident in registers.
; Hand-offs go through d_ws: write-through stores + counters/flags that are cleared at start (arrival counted in d_debug);
"""
    s = HDR + "; @launch grid=(256,1,1) block=(512,1,1) lds=163840\n" + DOC
    s += '.amdgcn_target "amdgcn-amd-amdhsa--gfx950"\n.text\n' + a.text().replace("CODE_SPAN", "L_end-L_pc0").replace("SPAN2", "L_end-L_pc1")
    s += f""".section .rodata,"a"
.p2align 6
.amdhsa_kernel {K}
  .amdhsa_next_free_vgpr 256
  .amdhsa_next_free_sgpr 102
  .amdhsa_accum_offset {NARCH}
  .amdhsa_group_segment_fixed_size 0
  .amdhsa_kernarg_size 88
  .amdhsa_user_sgpr_count 2
  .amdhsa_user_sgpr_kernarg_segment_ptr 1
  .amdhsa_system_sgpr_workgroup_id_x 1
.end_amdhsa_kernel
"""
    open(out, "w").write(s)
    if C.stamp: open(out + ".stamps", "w").write("\n".join(STAMPS))

if __name__ == "__main__":
    for arg in sys.argv[2:]:
        k, v = arg.split("="); setattr(C, k, v if isinstance(getattr(C, k), str) else type(getattr(C, k))(int(v)))
    main(sys.argv[1])
```

```python
import sys, struct
NAME = "interleave_layers__softmax_full_mha__mixer_token_mlp__prompt"
HDR = open("cdna_kernels/%s.s.ref" % NAME).read().split("; Override launch")[0]
MB = 1 << 20
WS_KV, WS_O, WS_H, WS_U, WS_X2, WS_ST = 0*MB, 4*MB, 6*MB, 8*MB, 4*MB, 12*MB
LSTRIDE = 16*MB
WS_FLAG = 32*MB
WS_XT = WS_FLAG + 131072
WS_STAMP = 40*MB
KA = dict(x=0, wqkv=8, wo=16, w1=32, b1=40, w2=48, b2=56, out=64, dbg=72, ws=80)
SZ = dict(x=2048*512*2, wqkv=512*1536*2, wo=512*512*2, w1=2048*1792*2, b1=1792*2, w2=1792*2048*2, b2=2048*2,
          out=2048*512*2, dbg=256, ws=1 << 28)
FL = dict(KV=0, H=64, U=128, O=192, X=224, UB=256, KL=320)
COLK = ('KV', 'H', 'U', 'UB')
SPIN = 200000
NARCH = 144

class Cfg:
    stamp = False
    prio = True
    lowtiles = 1
    D = 3
    nB = 12
    sch1 = '033343'
    sch2 = '003040'
    sch3 = '426'
    stouch = 0
    p1touch = 0
    now1 = 0
    local = 1
    schw = '001124'
    eps = '99abbbc'
    wlast = 1
    defer = 0
    optx = 0
    n1 = 0
    n2 = 0
    deep = 1
    wa5 = 13
    xp = 2
    early = 6
    q5 = 1
    q5s = 10
    lf = 1
    lfi = 1
    lfc = 2
    c3 = 1
    pub12 = 1
    w1nt = 0
    w2nt = 0
    xrot = 1
    xnt = 0
    lateinit = 1
    arrs = 4
    dbgs = 9
    sent = 1
    ldo = 1
    preto = 1
    sentwait = 1
    fixed = 1
    lprio = 0
    wo1 = 8
    x4 = 2
    padat = ''
    padus = 0
    padl = 0
    qe = '000'
    w1a = 0
    xr8 = 1
    cpos = 11
    mp = '25b'
    vmask = 0
    kvsame = 0
    prets = 1
    w2pos = 0
    skip7 = 1
    wfirst = 0
    finplain = 3
    vtlb = 0
    vsh = 21
    ntkv = 0
    ntact = 0
    qrot = 0
    w1mask = 7
    w1e = -2
    schx = '01434'
    pbi = 2
    sb = 4
    init5 = 4
    schv = '22220'
    pubs = 14
    pbs = 3
    init = 4
    pae = 1
    order = 1
    ldsper = 3
    epa = 0
    t2 = 28
    sonly = ''
    tmix = 1
    cpf = 0
    cpf2 = 0
    span2 = 12288
    span = 32640
    early2 = 0
    ldata = 1
    pret = 1
    prett = 24
    hs1 = '322211222000'
    hs0 = '222222220000'
    h0first = 4
    h0second = 4
    w1t = 9
    p1per = 4
    qtouch = 2
    pper = 16
    plow = 4
    split = 1
    kvfix = 0
    xsel = 'wot'
    nofirst = 0
    tlb = 0
    lowhalf = 3
    jrot = 6
    nox = 0
    notr = 0
    loop = 0
    pad = 0
    align = 3
    nQ = 12
C = Cfg()

class Asm:
    def __init__(self): self.L = []; self.n = 0
    def __call__(self, s):
        for line in s.split("\n"):
            line = line.strip()
            if line: self.L.append(("" if line.endswith(":") else "    ") + line)
    def label(self, p="L"):
        self.n += 1; return f"{p}{self.n}"
    def text(self): return "\n".join(self.L) + "\n"

def f2u(x): return hex(struct.unpack("<I", struct.pack("<f", x))[0])

S_XS, S_QKV, S_WS, S_WO, S_W1, S_W2, S_B1, S_B2, S_XD, S_DBG, S_KV = 8, 12, 16, 20, 24, 28, 32, 36, 40, 44, 80
sI, sJ, sW, sL, sLB, sFL = 48, 49, 50, 51, 52, 53
sW2S = 54
sVW = 55
sLOC = 56
sXO = 57
sOUT = 58
sJR = 83
sR2 = 80
T = 60
sST = 76
sRET = 84
vL, vN, vC, vL16, vXO = 1, 2, 3, 4, 5
vRES = 8
vF2, vTRF, vWQ = 12, 13, 14
TV = 16
E, V = 0, 65536
QX = V + 11*8192
SVO = 32768
STG = V

STAMPS = []
def stamp(a, name):
    if C.padat and name == C.padat:
        L = a.label(); L2 = a.label()
        a(f"s_cmp_lg_u32 s{sL}, {C.padl}\ns_cbranch_scc1 {L2}\n{L}:\ns_memrealtime s[{sST}:{sST+1}]\ns_waitcnt lgkmcnt(0)\ns_sub_u32 s{sST}, s{sST}, s98\ns_cmp_lt_u32 s{sST}, {C.padus*100}\ns_cbranch_scc1 {L}\n{L2}:")
    if not C.stamp: return
    if C.sonly:
        if not (name == "start" or any(name.startswith(p) for p in C.sonly.split(","))): return
    elif name.startswith("z") or name.startswith("entry"): return
    k = len(STAMPS); assert k < 32
    a(f"s_memtime s[{sST}:{sST+1}]\ns_memrealtime s[{sST+2}:{sST+3}]\ns_waitcnt lgkmcnt(0)")
    a(f"v_writelane_b32 v6, s{sST}, {k}\nv_writelane_b32 v6, s{sST+2}, {k+32}")
    STAMPS.append(name)

def dpp_red8(a, regs):
    for pat in ("quad_perm:[1,0,3,2]", "quad_perm:[2,3,0,1]", "row_half_mirror"):
        a("s_nop 1")
        for r in regs: a(f"v_add_f32_dpp v{r}, v{r}, v{r} {pat} row_mask:0xf bank_mask:0xf")

def tr_addr(a, vd, xh, perm, t0, t1):
    a(f"v_lshrrev_b32 v{t0}, 5, v{vL}\nv_lshlrev_b32 v{t0}, {2 if perm else 3}, v{t0}")
    a(f"v_bfe_u32 v{t1}, v{vL}, 2, 2\nv_add_u32 v{t0}, v{t0}, v{t1}\nv_lshlrev_b32 v{vd}, 7, v{t0}")
    a(f"v_lshrrev_b32 v{t1}, 1, v{t1}\nv_xor_b32 v{t1}, {xh}, v{t1}\nv_lshl_add_u32 v{vd}, v{t1}, 6, v{vd}")
    a(f"v_bfe_u32 v{t1}, v{vL}, 4, 1\nv_lshl_add_u32 v{vd}, v{t1}, 5, v{vd}")
    a(f"v_and_b32 v{t1}, 3, v{vL}\nv_lshl_add_u32 v{vd}, v{t1}, 3, v{vd}")

def interleave(a, m, r):
    per = -(-len(r)//len(m))
    for x in range(len(m)):
        a(m[x])
        for y in r[x*per:(x+1)*per]: a(y)

def rstore(a, instr, bulk=False):
    if not C.local or (bulk and not C.ldata):
        a(instr + " sc1"); return
    L = a.label(); L2 = a.label()
    a(f"s_cmp_eq_u32 s{sLOC}, 1\ns_cbranch_scc1 {L}\n{instr} sc1\ns_branch {L2}\n{L}:\n{instr}\n{L2}:")

def publish(a, kind, group_s, tv=None):
    if kind not in COLK:
        a(f"s_lshl_b32 s{T}, s{group_s}, 7\ns_add_u32 s{T}, s{T}, {FL[kind]*128}\ns_add_u32 s{T}, s{T}, s{sFL}\ns_lshl_b32 s{T+1}, s{sJ}, 4\ns_add_u32 s{T}, s{T}, s{T+1}")
        a(f"v_mov_b32 v{TV}, 1\ns_mov_b64 exec, 1")
        rstore(a, f"buffer_store_dword v{TV}, v{vL16}, s[{S_WS}:{S_WS+3}], s{T} offen")
        a("s_mov_b64 exec, -1")
        return
    col = kind in COLK
    a(f"s_lshl_b32 s{T}, s{group_s}, {10 if col else 7}\ns_add_u32 s{T}, s{T}, {FL[kind]*128}\ns_add_u32 s{T}, s{T}, s{sFL}")
    a(f"v_mov_b32 v{TV}, 1\nv_lshlrev_b32 v{TV+1}, 7, v{vL}\ns_mov_b64 exec, {0xff if col else 1}")
    a(f"buffer_atomic_add v{TV}, v{TV+1}, s[{S_WS}:{S_WS+3}], s{T} offen sc1")
    a("s_mov_b64 exec, -1")

def poll(a, kind, group_s, n):
    col = kind in COLK
    a(f"s_lshl_b32 s{T}, s{group_s}, {10 if col else 7}\ns_add_u32 s{T}, s{T}, {FL[kind]*128}\ns_add_u32 s{T}, s{T}, s{sFL}")
    if col: a(f"s_lshr_b32 s{T+1}, s{sI}, 2\ns_lshl_b32 s{T+1}, s{T+1}, 7\ns_add_u32 s{T}, s{T}, s{T+1}")
    a(f"s_mov_b64 exec, {1 if col else 0xff}\ns_mov_b32 s{T+1}, {SPIN}")
    LP = a.label(); LD = a.label()
    a(f"{LP}:")
    a(f"buffer_load_dword v{TV}, v{vL16}, s[{S_WS}:{S_WS+3}], s{T} offen sc1")
    a(f"s_waitcnt vmcnt(0)\nv_cmp_ne_u32 vcc, {n if col else 1}, v{TV}")
    a(f"s_cbranch_vccz {LD}")
    a(f"s_sub_u32 s{T+1}, s{T+1}, 1\ns_cmp_lg_u32 s{T+1}, 0\ns_cbranch_scc1 {LP}")
    a(f"{LD}:\ns_mov_b64 exec, -1")

def kl_addr(a):
    a(f"s_lshr_b32 s{T}, s{sI}, 2\ns_lshl_b32 s{T}, s{T}, 3\ns_add_u32 s{T}, s{T}, s{sJ}\ns_lshl_b32 s{T}, s{T}, 7\ns_add_u32 s{T}, s{T}, {FL['KL']*128}\ns_add_u32 s{T}, s{T}, s{sFL}")

def kl_publish(a):
    kl_addr(a)
    a(f"s_and_b32 s{T+1}, s{sI}, 3\ns_lshl_b32 s{T+1}, s{T+1}, 4\ns_add_u32 s{T}, s{T}, s{T+1}\nv_mov_b32 v{TV+3}, 1\ns_mov_b64 exec, 1")
    rstore(a, f"buffer_store_dword v{TV+3}, v{vL16}, s[{S_WS}:{S_WS+3}], s{T} offen")
    a("s_mov_b64 exec, -1")

def kl_poll(a):
    kl_addr(a)
    a(f"s_mov_b64 exec, 15\ns_mov_b32 s{T+1}, {SPIN}")
    LP = a.label(); LD = a.label()
    a(f"{LP}:\nbuffer_load_dword v{TV}, v{vL16}, s[{S_WS}:{S_WS+3}], s{T} offen sc1\ns_waitcnt vmcnt(0)\nv_cmp_ne_u32 vcc, 1, v{TV}\ns_cbranch_vccz {LD}")
    a(f"s_sub_u32 s{T+1}, s{T+1}, 1\ns_cmp_lg_u32 s{T+1}, 0\ns_cbranch_scc1 {LP}\n{LD}:\ns_mov_b64 exec, -1")

def if_wave_eq(a, w, body):
    L = a.label()
    a(f"s_cmp_lg_u32 s{sW}, {w}\ns_cbranch_scc1 {L}")
    body()
    a(f"{L}:")

def qslot(u): return (u + 5) % 12
def qkv_src(u): return (u >> 1)*64*3072 + (1 + (u & 1))*1024 if u < 16 else (u-16)*64*3072

def qkv_row(a, d, base, u):
    if not C.qrot:
        a(f"s_mov_b32 s{d}, s{base}"); return qkv_src(u)
    a(f"s_add_u32 s{d}, s{sR2}, {u >> 1 if u < 16 else u - 16}\ns_and_b32 s{d}, s{d}, 7\ns_mul_i32 s{d}, s{d}, {64*3072}\ns_add_u32 s{d}, s{d}, s{base}")
    return (1 + (u & 1))*1024 if u < 16 else 0

def qkv_base8(a, s):
    a(f"s_mul_i32 s{s}, s{sW}, {8*3072}\ns_lshl_b32 s{T}, s{sJ}, 7\ns_add_u32 s{s}, s{s}, s{T}")

def qkv_piece8(a, s, u):
    seg = qkv_row(a, T, s, u)
    a(f"s_add_u32 m0, s{sVW}, {qslot(u)*8192}\ns_add_u32 s{T}, s{T}, {seg}")
    a(f"buffer_load_dwordx4 v{vWQ}, s[{S_QKV}:{S_QKV+3}], s{T} offen lds")

def w2_dma(a, f):
    a(f"s_add_u32 m0, s{sVW}, {SVO + ((f+4) % 8)*8192}\ns_add_u32 s{T}, s{sW2S}, {f*16*4096}")
    a(f"buffer_load_dwordx4 v{vF2}, s[{S_W2}:{S_W2+3}], s{T} offen lds")

def frag_reads(dst, vaddr, off):
    p, n = dst[0], int(dst[1:])
    return [f"ds_read_b64_tr_b16 {p}[{n}:{n+1}], v{vaddr} offset:{off}", f"ds_read_b64_tr_b16 {p}[{n+2}:{n+3}], v{vaddr} offset:{off+256}"]

W2V = 32
def w2_reg(f):
    if C.x4 and f >= 24: return f"v{112+4*(f-24)}"
    return f"v{W2V+4*f}" if f < 4 else f"a{4*(f-4)}"
def w2x_dma(a):
    for c in range(4):
        a(f"s_add_u32 m0, s{sVW}, {c*8192}\ns_add_u32 s{T}, s{sW2S}, {(24+c)*16*4096}\nbuffer_load_dwordx4 v{vF2}, s[{S_W2}:{S_W2+3}], s{T} offen lds")
def w2_reads(f): return frag_reads(w2_reg(f), vTRF, ((f+4) % 8)*8192)

def prologue(a):
    if C.stamp or C.padat: a("s_memtime s[96:97]\ns_memrealtime s[98:99]")
    a("s_load_dwordx16 s[64:79], s[0:1], 0\ns_load_dwordx4 s[84:87], s[0:1], 64\ns_load_dwordx2 s[88:89], s[0:1], 80")
    a(f"s_cmp_ge_u32 s2, 256\ns_cbranch_scc1 L_end")
    if C.cpf:
        if C.cpf == 1: a(f"s_getpc_b64 s[{T+2}:{T+3}]\nL_pc0:\ns_lshr_b32 s{T}, s2, 3\ns_lshl_b32 s{T}, s{T}, 10\nv_lshrrev_b32 v41, 6, v0\nv_lshlrev_b32 v41, 7, v41\nv_add_u32 v41, s{T}, v41")
        else: a(f"s_getpc_b64 s[{T+2}:{T+3}]\nL_pc0:\nv_lshlrev_b32 v41, 6, v0")
        a(f"v_min_u32 v41, CODE_SPAN, v41\nglobal_load_dword v142, v41, s[{T+2}:{T+3}]")
    a(f"v_lshrrev_b32 v{vL}, 6, v0\ns_lshr_b32 s{sJ}, s2, 5\nv_readfirstlane_b32 s{sW}, v{vL}\nv_and_b32 v{vL}, 63, v0")
    a(f"s_and_b32 s{sI}, s2, 7\ns_lshl_b32 s{sI}, s{sI}, 2\ns_bfe_u32 s{T}, s2, 0x20003\ns_or_b32 s{sI}, s{sI}, s{T}")
    a(f"v_lshrrev_b32 v{vN}, 3, v0\nv_and_b32 v{vC}, 7, v0")
    a(f"s_lshl_b32 s{T}, s{sJ}, {3 if C.xrot else 6}\nv_add_u32 v42, s{T}, v{vN}\nv_and_b32 v42, 63, v42")
    a(f"v_bfe_u32 v41, v42, 1, 3\nv_xor_b32 v41, v41, v{vC}\nv_lshlrev_b32 v41, 4, v41\nv_lshl_add_u32 v{vXD}, v42, 10, v41")
    a(f"s_mov_b32 s{S_XS+2}, {hex(SZ['x'])}\ns_mov_b32 s{S_XS+3}, 0x00020000\ns_mov_b32 s{S_QKV+2}, {hex(SZ['wqkv'])}\ns_mov_b32 s{S_QKV+3}, s{S_XS+3}")
    a(f"s_and_b32 s{sR2}, s{sI}, {3 if C.qrot else 0}\ns_lshl_b32 s{sR2}, s{sR2}, 1")
    if C.qtouch:
        a(f"s_mul_i32 s{T+2}, s2, {48*128}\ns_lshr_b32 s{T+3}, s2, 3\ns_mul_i32 s{T+3}, s{T+3}, {48*1024}\ns_addk_i32 s{T+3}, 384")
        a(f"s_cmp_eq_u32 s{sW}, 0\ns_cselect_b32 s{T+2}, s{T+2}, s{T+3}\ns_cselect_b32 s{T+3}, 7, 10\nv_min_u32 v41, 47, v{vL}\nv_lshlrev_b32 v41, s{T+3}, v41")
    if C.stamp: a("v_mov_b32 v6, 0\nv_mov_b32 v7, 0")
    def rest():
        for s, n in ((S_WS, "ws"), (S_WO, "wo"), (S_W1, "w1"), (S_W2, "w2"), (S_B1, "b1"), (S_B2, "b2"), (S_DBG, "dbg"), (S_XD, "x")):
            a(f"s_mov_b32 s{s+2}, {hex(SZ[n])}\ns_mov_b32 s{s+3}, 0x00020000")
        a(f"v_lshlrev_b32 v{vL16}, 4, v{vL}")
        a(f"s_lshl_b32 s{sXO}, s{sI}, 16\ns_lshl_b32 s{T}, s{sJ}, 7\ns_add_u32 s{sXO}, s{sXO}, s{T}")
        a(f"s_mov_b32 s{sLOC}, 0\ns_mov_b32 s{sL}, 0\ns_mov_b32 s{sLB}, 0\ns_mov_b32 s{sFL}, {WS_FLAG}")
        a(f"v_lshrrev_b32 v40, 3, v{vL}\nv_bfe_u32 v43, v{vL}, 4, 1\nv_lshlrev_b32 v43, 2, v43\nv_and_b32 v42, 7, v{vL}\nv_xor_b32 v43, v43, v42\nv_lshlrev_b32 v43, 4, v43")
        a(f"v_mul_u32_u24 v{vWQ}, 3072, v40\nv_add_u32 v{vWQ}, v{vWQ}, v43")
        a(f"s_lshl_b32 s{sVW}, s{sW}, 10\ns_add_u32 s{sVW}, s{sVW}, {V}")
        a(f"v_bfe_u32 v43, v{vN}, 1, 1\nv_bfe_u32 v42, v{vN}, 2, 1\nv_and_b32 v{vN}, 0x39, v{vN}\nv_lshl_add_u32 v{vN}, v43, 2, v{vN}\nv_lshl_add_u32 v{vN}, v42, 1, v{vN}")
        a(f"v_lshlrev_b32 v{vXO}, 10, v{vN}\nv_lshl_add_u32 v{vXO}, v{vC}, 4, v{vXO}")
        a(f"s_and_b32 s{sJR}, s{sJ}, {C.jrot}" + (f"\ns_lshr_b32 s{T}, s{sI}, 2\ns_add_u32 s{sJR}, s{sJR}, s{T}\ns_and_b32 s{sJR}, s{sJR}, 7" if C.xr8 else ""))
        prologue2(a)
    if C.early2: rest()
    L = a.label()
    a(f"s_cmp_gt_u32 s{sW}, 1\ns_waitcnt lgkmcnt(0)\ns_mov_b64 s[{S_XS}:{S_XS+1}], s[64:65]\ns_mov_b64 s[{S_QKV}:{S_QKV+1}], s[66:67]")
    if C.qtouch: a(f"s_cbranch_scc1 {L}\nbuffer_load_dword v143, v41, s[{S_QKV}:{S_QKV+3}], s{T+2} offen\n{L}:")
    x_dma(a, fl="")
    for s, n in ((S_WO, "wo"), (S_W1, "w1"), (S_W2, "w2"), (S_B1, "b1"), (S_B2, "b2")):
        a(f"s_mov_b64 s[{s}:{s+1}], s[{64 + KA[n]//4}:{65 + KA[n]//4}]")
    a(f"s_mov_b64 s[{sOUT}:{sOUT+1}], s[84:85]\ns_mov_b64 s[{S_DBG}:{S_DBG+1}], s[86:87]\ns_mov_b64 s[{S_WS}:{S_WS+1}], s[88:89]")
    if C.stamp:
        a(f"v_writelane_b32 v6, s96, 0\nv_writelane_b32 v6, s98, 32"); STAMPS.append("start")
    a(f"s_add_u32 s{S_XD}, s{S_WS}, {WS_X2}\ns_addc_u32 s{S_XD+1}, s{S_WS+1}, 0")
    if not C.early2: rest()

def prologue2(a):
    a(f"v_lshrrev_b32 v42, 2, v{vL}\nv_and_b32 v43, 3, v{vL}\nv_lshlrev_b32 v43, 4, v43")
    a(f"v_lshl_add_u32 v{vF2}, v42, 12, v43")
    a(f"v_lshrrev_b32 v42, 5, v{vL}\nv_lshlrev_b32 v42, 3, v42\nv_bfe_u32 v43, v{vL}, 2, 2\nv_add_u32 v42, v42, v43\nv_lshlrev_b32 v{vTRF}, 6, v42")
    a(f"v_bfe_u32 v43, v{vL}, 4, 1\nv_lshl_add_u32 v{vTRF}, v43, 5, v{vTRF}\nv_and_b32 v43, 3, v{vL}\nv_lshl_add_u32 v{vTRF}, v43, 3, v{vTRF}")
    a(f"v_add_u32 v{vTRF}, s{sVW}, v{vTRF}\nv_add_u32 v{vTRF}, {SVO}, v{vTRF}")
    a(f"s_lshr_b32 s{sW2S}, s{sW}, 1\ns_mul_i32 s{sW2S}, s{sW2S}, {448*4096}\ns_lshl_b32 s{T}, s{sI}, 7\ns_add_u32 s{sW2S}, s{sW2S}, s{T}")
    a(f"s_and_b32 s{T}, s{sW}, 1\ns_lshl_b32 s{T}, s{T}, 6\ns_add_u32 s{sW2S}, s{sW2S}, s{T}")

def tlb_touch(a):
    if not C.tlb: return
    a(f"s_sub_u32 s{T+4}, s{sW}, 4\ns_lshl_b32 s{T}, s{T+4}, 21")
    for k in range(4): a(f"s_add_u32 s{T+1}, s{T}, {(k & 1)*8*MB + (k >> 1)*LSTRIDE}\ns_buffer_load_dword s86, s[{S_WS}:{S_WS+3}], s{T+1}")
    for srd in (S_W1, S_W2): a(f"s_buffer_load_dword s86, s[{srd}:{srd+3}], s{T}")
    a(f"s_lshl_b32 s{T}, s{T+4}, 19\ns_load_dword s86, s[{sOUT}:{sOUT+1}], s{T}")
    a(f"s_buffer_load_dword s86, s[{S_WO}:{S_WO+3}], 0\ns_buffer_load_dword s86, s[{S_B1}:{S_B1+3}], 0\ns_buffer_load_dword s86, s[{S_B2}:{S_B2+3}], 0")

def init_sync(a, w=3):
    def body():
        a("v_mov_b32 v44, 0\nv_mov_b32 v45, 0\nv_mov_b32 v46, 0\nv_mov_b32 v47, 0")
        a(f"s_lshl_b32 s{T}, s2, 10\ns_add_u32 s{T}, s{T}, {WS_ST}\ns_add_u32 s{T+1}, s{T}, {LSTRIDE}")
        a(f"buffer_store_dwordx4 v[44:47], v{vL16}, s[{S_WS}:{S_WS+3}], s{T} offen sc1")
        a(f"buffer_store_dwordx4 v[44:47], v{vL16}, s[{S_WS}:{S_WS+3}], s{T+1} offen sc1")
        a(f"s_add_u32 s{T+1}, s{T}, {256*1024}\nbuffer_store_dwordx4 v[44:47], v{vL16}, s[{S_WS}:{S_WS+3}], s{T+1} offen sc1")
        a(f"s_lshl_b32 s{T}, s2, 9\ns_add_u32 s{T}, s{T}, {WS_FLAG}\ns_mov_b32 exec_hi, 0")
        a(f"buffer_store_dwordx4 v[44:47], v{vL16}, s[{S_WS}:{S_WS+3}], s{T} offen sc1")
        if C.sent:
            a(f"s_mov_b64 exec, -1\nv_mov_b32 v100, -1\nv_mov_b32 v101, -1\nv_mov_b32 v102, -1\nv_mov_b32 v103, -1\ns_lshl_b32 s{T}, s2, 13\ns_add_u32 s{T}, s{T}, {WS_O}\ns_add_u32 s{T+1}, s{T}, 4096")
            for k in range(8): a(f"buffer_store_dwordx4 v[100:103], v{vL16}, s[{S_WS}:{S_WS+3}], s{T + (k >> 2)} offen offset:{(k & 3)*1024} sc1")
        a(f"s_getreg_b32 s{T+1}, hwreg(HW_REG_XCC_ID, 0, 4)\ns_mov_b64 exec, 1\nv_mov_b32 v48, s{T+1}")
        a(f"s_lshl_b32 s{T}, s{sI}, 3\ns_add_u32 s{T}, s{T}, s{sJ}\ns_lshl_b32 s{T}, s{T}, 4\ns_add_u32 s{T}, s{T}, {WS_XT}")
        a(f"buffer_store_dword v48, v{vL16}, s[{S_WS}:{S_WS+3}], s{T} offen sc1")
        a("s_mov_b64 exec, -1")
    if_wave_eq(a, w, body)

def init_arrive(a, w=3, pre="s_nop 0", tv=TV):
    L = a.label()
    a(f"s_cmp_lg_u32 s{sW}, {w}\ns_cbranch_scc1 {L}\n{pre}")
    a(f"v_mov_b32 v{tv}, 1\nv_mov_b32 v{tv+1}, 0\ns_and_b32 s{T}, s2, 63\ns_lshl_b32 s{T}, s{T}, 2\ns_mov_b64 exec, 1")
    a(f"buffer_atomic_add v{tv}, v{tv+1}, s[{S_DBG}:{S_DBG+3}], s{T} offen sc1")
    a(f"s_mov_b64 exec, -1\n{L}:")

def wait_init(a, vaddr):
    a(f"s_mov_b32 s{T+1}, {SPIN}")
    LP = a.label(); LD = a.label()
    a(f"{LP}:\nv_cmp_gt_u32 vcc, 4, v{TV+2}\ns_cbranch_vccz {LD}")
    a(f"buffer_load_dword v{TV+2}, v{vaddr}, s[{S_DBG}:{S_DBG+3}], 0 offen sc1\ns_waitcnt vmcnt(0)")
    a(f"s_sub_u32 s{T+1}, s{T+1}, 1\ns_cmp_lg_u32 s{T+1}, 0\ns_cbranch_scc1 {LP}")
    a(f"{LD}:\ns_mov_b64 exec, -1")

class VM:
    def __init__(self): self.ops = []
    def add(self, tag, n=1): self.ops += [tag]*n
    def need(self, *tags):
        last = max(k for k, t in enumerate(self.ops) if t in tags)
        return min(63, len(self.ops) - 1 - last)

vXD = 15
TAB = V + 5*8192
WS_ST2 = 12*MB + 256*1024
WS_CS = 13*MB

def x_dma(a, qs=range(8), fl="sc1"):
    X1 = 81
    a(f"s_lshl_b32 s{T}, s{sI}, 16\n" + (f"s_add_u32 s{T+1}, s{sW}, s{sJ}\ns_and_b32 s{T+1}, s{T+1}, 7\ns_lshl_b32 s{T+1}, s{T+1}, 10" if C.xrot else f"s_lshl_b32 s{T+1}, s{sW}, 10"))
    for q in qs:
        if not C.qrot:
            a(f"s_add_u32 m0, s{T+1}, {E + q*8192 - q*128}\ns_nop 0\nbuffer_load_dwordx4 v{vXD}, s[{S_XS}:{S_XS+3}], s{T} offen offset:{128*q} {fl} lds")
            continue
        if q % 2 == 0 or q == qs[0]: a(f"s_add_u32 s{X1}, s{sR2}, {q & 6}\ns_and_b32 s{X1}, s{X1}, 7\ns_lshl_b32 s{X1}, s{X1}, 7\ns_add_u32 s{X1}, s{X1}, s{T}")
        a(f"s_add_u32 m0, s{T+1}, {E + q*8192 - (q & 1)*128}\ns_nop 0")
        a(f"buffer_load_dwordx4 v{vXD}, s[{S_XS}:{S_XS+3}], s{X1} offen offset:{128*(q & 1)} {fl} lds")

def split_hi_lo(a, src, hi2, lo2, t, neg=False):
    if neg: a(f"v_sub_f32 v{src}, 0, v{src}")
    a(f"v_cvt_pk_bf16_f32 v{t}, v{src}, v{src}\nv_and_b32 v{t}, 0xffff0000, v{t}\nv_sub_f32 v{t+1}, v{src}, v{t}")

def own_stats(a, D, A, MUo, Ro, ADo):
    a(f"s_add_u32 s{T}, s{sW}, s{sJ}\ns_and_b32 s{T}, s{T}, 7" if C.xrot else f"s_mov_b32 s{T}, s{sW}")
    a(f"s_lshl_b32 s{T+1}, s{T}, 10\nv_add_u32 v{ADo}, s{T+1}, v{vL16}")
    for q in range(8): a(f"ds_read_b128 v[{D+4*q}:{D+4*q+3}], v{ADo} offset:{q*8192}")
    for r in range(4): a(f"v_mov_b32 v{A+r}, 0")
    a(f"v_mov_b32 v{A+4}, 0x3f803f80\ns_lshl_b32 s{T}, s{T}, 5\ns_add_u32 s{T}, s{T}, {TAB}\nv_lshrrev_b32 v{ADo}, 3, v{vL}\nv_lshlrev_b32 v{ADo}, 2, v{ADo}\nv_add_u32 v{ADo}, s{T}, v{ADo}")
    for q in range(8):
        a(f"s_waitcnt lgkmcnt({7-q})")
        for e in (0, 2):
            r = D+4*q+e
            a(f"v_dot2c_f32_bf16 v{A}, v{r}, v{A+4}\nv_dot2c_f32_bf16 v{A+2}, v{r}, v{r}\nv_dot2c_f32_bf16 v{A+1}, v{r+1}, v{A+4}\nv_dot2c_f32_bf16 v{A+3}, v{r+1}, v{r+1}")
    a(f"s_nop 2\nv_add_f32 v{MUo}, v{A}, v{A+1}\nv_add_f32 v{Ro}, v{A+2}, v{A+3}")
    dpp_red8(a, [MUo, Ro])
    a(f"v_mul_f32 v{MUo}, {f2u(1/512)}, v{MUo}\nv_mul_f32 v{Ro}, {f2u(1/512)}, v{Ro}")
    a(f"v_fma_f32 v{Ro}, -v{MUo}, v{MUo}, v{Ro}\nv_max_f32 v{Ro}, 0, v{Ro}\nv_add_f32 v{Ro}, {f2u(1e-5)}, v{Ro}\nv_rsq_f32 v{Ro}, v{Ro}")

def layer0_helpers(a):
    LJ = "L_p1_join"; LB = a.label()
    a(f"s_cmp_ge_u32 s{sW}, 6\ns_cbranch_scc1 {LB}")
    src, dst = T+2, T+3
    a(f"s_sub_u32 s{dst}, s{sW}, 4\ns_mul_i32 s{src}, s{dst}, {32*3072}\ns_lshl_b32 s{T}, s{sJ}, 7\ns_add_u32 s{src}, s{src}, s{T}")
    a(f"s_lshl_b32 s{dst}, s{dst}, 12\ns_add_u32 s{dst}, s{dst}, {V}")
    vm = VM()
    def unit(u):
        seg = qkv_row(a, T+1, src, u)
        for p in range(4):
            a(f"s_add_u32 m0, s{dst}, {qslot(u)*8192 + p*1024}\ns_add_u32 s{T}, s{T+1}, {seg + p*8*3072}")
            a(f"buffer_load_dwordx4 v{vWQ}, s[{S_QKV}:{S_QKV+3}], s{T} offen lds")
        vm.add(("w", u), 4)
    for u in range(C.h0first): unit(u)
    a(f"s_waitcnt vmcnt({4*C.h0first})")
    own_stats(a, 48, 80, 42, 44, 40)
    issued = C.h0first
    for u in range(C.h0second): unit(issued); issued += 1
    sched = [int(c) for c in C.hs0]
    for s in range(12):
        a(f"s_waitcnt vmcnt({vm.need(('w', 2*s+1))})" + (" lgkmcnt(0)" if s == 8 else "") + "\ns_barrier")
        if s == 7: a("ds_write_b32 v40, v42\nds_write_b32 v40, v44 offset:256")
        for _ in range(sched[s]):
            assert issued < 2*s + 12 and issued < 24
            unit(issued); issued += 1
        assert s == 11 or issued >= 2*s + 4
    assert issued == 24
    a(f"s_barrier\ns_branch {LJ}")
    a(f"{LB}:")
    init_sync(a, 7)
    if C.vtlb:
        def body():
            sh = C.vsh
            a(f"v_lshlrev_b32 v49, {sh}, v{vL}\ns_lshl_b32 s{T}, s2, 7")
            a(f"s_mov_b32 s{S_WS+2}, {hex(34*MB)}\nbuffer_load_dword v136, v49, s[{S_WS}:{S_WS+3}], s{T} offen\ns_mov_b32 s{S_WS+2}, {hex(SZ['ws'])}")
            for k, srd in enumerate((S_W1, S_W2, S_WO)): a(f"buffer_load_dword v{137+k}, v49, s[{srd}:{srd+3}], s{T} offen")
            a(f"buffer_load_dword v140, v49, s[{S_B1}:{S_B1+3}], 0 offen\nbuffer_load_dword v140, v49, s[{S_B2}:{S_B2+3}], 0 offen")
            a(f"v_and_b32 v50, 0x1fffff, v49\nglobal_load_dword v140, v50, s[{sOUT}:{sOUT+1}]")
        if_wave_eq(a, 6, body)
    L4 = a.label()
    a(f"s_waitcnt vmcnt({13 if C.sent else 5})\ns_cmp_eq_u32 s{sW}, 7\ns_cbranch_scc1 {L4}\ns_waitcnt vmcnt({7 if C.vtlb else 0})\n{L4}:")
    def w1touch(mask):
        a(f"s_lshl_b32 s{T}, s2, 1\ns_add_u32 s{T}, s{T}, s{sW}\ns_sub_u32 s{T}, s{T}, 6\ns_mul_i32 s{T+1}, s{T}, {112*128}\nv_min_u32 v49, 55, v{vL}\nv_lshlrev_b32 v49, 7, v49")
        if mask & 1: a(f"buffer_load_dword v141, v49, s[{S_W1}:{S_W1+3}], s{T+1} offen")
        if mask & 2: a(f"s_add_u32 s{T+1}, s{T+1}, {56*128}\nbuffer_load_dword v142, v49, s[{S_W1}:{S_W1+3}], s{T+1} offen")
        if mask & 4: a(f"s_lshl_b32 s{T+1}, s{T}, 10\nv_and_b32 v49, 0x380, v49\nbuffer_load_dword v143, v49, s[{S_WO}:{S_WO+3}], s{T+1} offen")
    if C.w1e == -1: w1touch(7 & ~C.w1mask)
    own_stats(a, 52, 84, 42, 43, 40)
    for s in range(12):
        if s == 8: a("s_waitcnt lgkmcnt(0)")
        a("s_barrier")
        if s == 7: a("ds_write_b32 v40, v42\nds_write_b32 v40, v43 offset:256")
        if s == C.arrs: init_arrive(a, 7, pre="s_waitcnt vmcnt(0)")
        if s == C.dbgs: a(f"v_lshlrev_b32 v41, 2, v{vL}\nbuffer_load_dword v{TV+2}, v41, s[{S_DBG}:{S_DBG+3}], 0 offen sc1")
        if s == C.w1t: w1touch(C.w1mask)
        if s == C.w1e: w1touch(7 & ~C.w1mask)
    assert C.w1t >= C.dbgs and C.w1e < C.dbgs
    a(f"s_waitcnt vmcnt({bin(C.w1mask).count('1') if C.w1t < 12 else 0})")
    if_wave_eq(a, 6, lambda: wait_init(a, 41))
    a("s_barrier")
    def pub():
        if C.lf: kl_publish(a)
        publish(a, "KV", sJ)
    if_wave_eq(a, 6, pub)
    a(f"s_branch {LJ}")

def helper_setup(a):
    src, dst = T+2, T+3
    a(f"s_sub_u32 s{dst}, s{sW}, 4\ns_mul_i32 s{src}, s{dst}, {16*3072}\ns_lshl_b32 s{T}, s{sJ}, 7\ns_add_u32 s{src}, s{src}, s{T}")
    a(f"s_lshl_b32 s{T}, s{dst}, 4\nv_lshrrev_b32 v40, 2, v{vL}\nv_add_u32 v40, s{T}, v40")
    a(f"s_lshl_b32 s{dst}, s{dst}, 11\ns_add_u32 s{dst}, s{dst}, {V}")

def helper_unit(a, u, vm):
    seg = qkv_row(a, T+1, T+2, u)
    for p in range(2):
        a(f"s_add_u32 m0, s{T+3}, {qslot(u)*8192 + p*1024}\ns_add_u32 s{T}, s{T+1}, {seg + p*8*3072}")
        a(f"buffer_load_dwordx4 v{vWQ}, s[{S_QKV}:{S_QKV+3}], s{T} offen lds")
    vm.add(("w", u), 2)

def helper_loop(a, layer, vm, issued, sched, LJ):
    ROW, S1, S2, G = 40, 42, 44, 48
    first = issued
    for s in range(12):
        tags = [t for t in [("x", s), ("w", 2*s+1)] if t in vm.ops]
        if s == 6 and layer == 1: tags.append("g")
        if tags: a(f"s_waitcnt vmcnt({vm.need(*tags)})")
        if s == 8: a("s_waitcnt lgkmcnt(0)")
        a("s_barrier")
        if s == 7: a(f"ds_write_b32 v{ROW}, v{S1}\nds_write_b32 v{ROW}, v{S2} offset:256")
        for _ in range(sched[s]):
            assert issued < 2*s + 12 and issued < 24
            helper_unit(a, issued, vm); issued += 1
        assert s == 11 or issued >= 2*s + 4
        if s == 6:
            if layer == 1: a(f"v_add_f32 v{S1}, v{G}, v{G+2}\nv_add_f32 v{S2}, v{G+1}, v{G+3}")
            for pat in ("quad_perm:[1,0,3,2]", "quad_perm:[2,3,0,1]"):
                a("s_nop 1")
                for r in (S1, S2): a(f"v_add_f32_dpp v{r}, v{r}, v{r} {pat} row_mask:0xf bank_mask:0xf")
            a(f"v_mul_f32 v{S1}, {f2u(1/512)}, v{S1}\nv_mul_f32 v{S2}, {f2u(1/512)}, v{S2}")
            a(f"v_fma_f32 v{S2}, -v{S1}, v{S1}, v{S2}\nv_max_f32 v{S2}, 0, v{S2}\nv_add_f32 v{S2}, {f2u(1e-5)}, v{S2}\nv_rsq_f32 v{S2}, v{S2}")
            a(f"v_lshlrev_b32 v{ROW}, 2, v{ROW}\nv_add_u32 v{ROW}, {TAB}, v{ROW}")
        if s == 8 and layer == 0:
            a(f"v_lshlrev_b32 v46, 2, v{vL}\nbuffer_load_dword v{TV+2}, v46, s[{S_DBG}:{S_DBG+3}], 0 offen sc1"); vm.add("dbg")
        if s == C.w1t and layer == 0:
            a(f"s_lshl_b32 s{T}, s2, 2\ns_add_u32 s{T}, s{T}, s{sW}\ns_sub_u32 s{T}, s{T}, 4\ns_mul_i32 s{T+1}, s{T}, {56*128}\nv_min_u32 v47, 55, v{vL}\nv_lshlrev_b32 v47, 7, v47")
            a(f"buffer_load_dword v142, v47, s[{S_W1}:{S_W1+3}], s{T+1} offen")
            a(f"s_lshl_b32 s{T+1}, s{T}, 9\nv_and_b32 v47, 0x180, v47\nbuffer_load_dword v143, v47, s[{S_WO}:{S_WO+3}], s{T+1} offen")
            vm.add("t", 2)
    assert issued == 24
    if layer == 0: a(f"s_waitcnt vmcnt({vm.need('dbg')})")
    def w4():
        if layer == 0: wait_init(a, 46)
        if C.lf: kl_publish(a)
        publish(a, "KV", sJ)
    if C.pub12:
        if layer == 0: if_wave_eq(a, 4, lambda: wait_init(a, 46))
        a("s_barrier")
        def w4b():
            if C.lf: kl_publish(a)
            publish(a, "KV", sJ)
        if_wave_eq(a, 4, w4b)
    else:
        if_wave_eq(a, 4, w4)
        a("s_barrier")
    a(f"s_branch {LJ}")

def x_start(a):
    a(f"s_mov_b32 s{sFL}, {WS_FLAG + 512*128}\ns_barrier")
    stamp(a, "p1.polled")
    if C.xp < 8:
        x_dma(a, range(C.xp)); a("s_barrier"); x_dma(a, range(C.xp, 8))
    else: x_dma(a)

def phase1(a):
    LC = "L_p1_cons"; LJ = "L_p1_join"
    a(f"s_cmp_lt_u32 s{sW}, 4\ns_cbranch_scc1 {LC}")
    helper_setup(a)
    a(f"v_and_b32 v41, 3, v{vL}\nv_lshlrev_b32 v41, 11, v41\nv_lshl_add_u32 v41, v40, 3, v41")
    if_wave_eq(a, 4, lambda: poll(a, "X", sI, 8))
    keep = C.stamp; C.stamp = False; x_start(a); C.stamp = keep
    a(f"s_lshl_b32 s{T}, s{sI}, 13\ns_add_u32 s{T}, s{T}, {WS_ST2}")
    a(f"buffer_load_dwordx2 v[48:49], v41, s[{S_WS}:{S_WS+3}], s{T} offen sc1\nbuffer_load_dwordx2 v[50:51], v41, s[{S_WS}:{S_WS+3}], s{T} offen offset:1024 sc1")
    vm = VM()
    for q in range(8): vm.add(("x", q))
    vm.add("g", 2)
    helper_loop(a, 1, vm, sum(int(c) for c in C.sch2 + C.qe), [int(c) for c in C.hs1], LJ)
    a(f"{LC}:")
    tt, ch = T+2, T+3
    a(f"s_and_b32 s{tt}, s{sW}, 1\ns_lshr_b32 s{ch}, s{sW}, 1")
    XA = 40
    a(f"v_and_b32 v44, 31, v{vL}\ns_lshl_b32 s{T}, s{tt}, 5\nv_add_u32 v44, s{T}, v44\nv_lshlrev_b32 v38, 2, v44\nv_add_u32 v38, {TAB}, v38")
    a(f"v_bfe_u32 v45, v{vL}, 1, 3\nv_lshrrev_b32 v46, 5, v{vL}\nv_xor_b32 v45, v45, v46\nv_lshlrev_b32 v45, 4, v45\nv_lshl_add_u32 v{XA}, v44, 7, v45")
    for m in range(1, 4): a(f"v_xor_b32 v{XA+m}, {32*m}, v{XA}")
    a(f"s_lshl_b32 s{T}, s{tt}, 7\ns_add_u32 s{T}, s{T}, {TAB+256}\nv_lshlrev_b32 v37, 4, v46\nv_add_u32 v37, s{T}, v37")
    WL, WH = 44, 45
    tr_addr(a, WL, f"s{ch}", False, 46, 47)
    a(f"v_add_u32 v{WL}, {V}, v{WL}\nv_add_u32 v{WH}, {6*8192}, v{WL}")
    AK, AV, AQ = 48, 64, 80
    CS, SEL = 24, 32
    SIX = 21
    a(f"v_lshrrev_b32 v46, 4, v{vL}\nv_xor_b32 v46, v46, v{vL}\nv_and_b32 v46, 2, v46\nv_and_b32 v47, 12, v{vL}\nv_or_b32 v46, v46, v47\nv_mov_b32 v47, 0x3f803f80")
    a(f"v_cmp_eq_u32 vcc, 0, v46\ns_nop 1\nv_cndmask_b32 v{SEL}, 0, v47, vcc\nv_cmp_eq_u32 vcc, 4, v46\nv_mov_b32 v{SEL+1}, v{SEL}\ns_nop 0\nv_cndmask_b32 v{SEL+2}, 0, v47, vcc\nv_mov_b32 v{SEL+3}, v{SEL+2}")
    a(f"v_and_b32 v46, 1, v{vL}\nv_mul_u32_u24 v46, 0xaaaa, v46\nv_or_b32 v{SIX}, 0x4444, v46\nv_lshl_add_u32 v{SIX}, v{SIX}, 16, v{SIX}")
    csoff = T+8
    a(f"s_lshl_b32 s{csoff}, s2, 2\ns_add_u32 s{csoff}, s{csoff}, s{sW}\ns_lshl_b32 s{csoff}, s{csoff}, 10\ns_add_u32 s{csoff}, s{csoff}, {WS_CS}")
    for r in range(8): a(f"v_mov_b32 v{CS+r}, 0")
    def fr(buf, n):
        if buf == 0: return ("a", n)
        return ("a", 64+n) if n < 48 else ("v", 96 + n - 48)
    def R(buf, n, w):
        p, b = fr(buf, n); return f"{p}[{b}:{b+w-1}]"
    def wslot(u):
        s = qslot(u)
        return (WL, s*8192) if s < 6 else (WH, (s-6)*8192)
    def rd(s):
        buf = s & 1; out = []
        if s < 8:
            for t in range(4):
                out.append(f"ds_read_b128 {R(buf, 12*t, 4)}, v{XA+t} offset:{8192*s}")
                for seg in range(2):
                    va, off = wslot(2*s+seg)
                    for e in range(2):
                        out.append(f"ds_read_b64_tr_b16 {R(buf, 12*t+4+4*seg+2*e, 2)}, v{va} offset:{off + t*2048 + e*512}")
        else:
            for t in range(8):
                out.append(f"ds_read_b128 {R(buf, 16*(t>>1)+4*(t&1), 4)}, v{XA+(t&3)} offset:{16384*(s-8) + (t>>2)*8192}")
                va, off = wslot(2*s + (t >> 2))
                for e in range(2):
                    out.append(f"ds_read_b64_tr_b16 {R(buf, 16*(t>>1)+8+4*(t&1)+2*e, 2)}, v{va} offset:{off + (t&3)*2048 + e*512}")
        return out
    def mf(s):
        buf = s & 1; out = []
        if s < 8:
            for t in range(4):
                z = s == 0 and t == 0
                out.append(f"v_mfma_f32_32x32x16_bf16 v[{AK}:{AK+15}], {R(buf, 12*t+4, 4)}, {R(buf, 12*t, 4)}, " + ("0" if z else f"v[{AK}:{AK+15}]"))
                out.append(f"v_mfma_f32_32x32x16_bf16 v[{AV}:{AV+15}], {R(buf, 12*t, 4)}, {R(buf, 12*t+8, 4)}, " + ("0" if z else f"v[{AV}:{AV+15}]"))
        else:
            for t in range(8):
                out.append(f"v_mfma_f32_32x32x16_bf16 v[{AQ}:{AQ+15}], {R(buf, 16*(t>>1)+8+4*(t&1), 4)}, {R(buf, 16*(t>>1)+4*(t&1), 4)}, " + ("0" if s == 8 and t == 0 else f"v[{AQ}:{AQ+15}]"))
        return out
    OOL = []
    def csum(s):
        buf = s & 1
        L = a.label("Lcs"); LR = a.label("Lcr")
        a(f"s_cbranch_vccnz {L}\n{LR}:")
        o = [f"{L}:"]
        if s < 8:
            for t in range(4): o.append(f"v_smfmac_f32_16x16x64_bf16 v[{CS}:{CS+3}], v[{SEL}:{SEL+3}], {R(buf, 12*t+4, 8)}, v{SIX}")
            if s == 6: o += ["ds_write_b32 v126, v124", "ds_write_b32 v126, v125 offset:256"]
            if s == 7: o += ["s_nop 7", f"v_add_f32 v{ST4}, v{CS}, v{CS+1}", f"v_add_f32 v{ST4+1}, v{CS+2}, v{CS+3}"]
        else:
            for p in range(4): o.append(f"v_smfmac_f32_16x16x64_bf16 v[{CS+4}:{CS+7}], v[{SEL}:{SEL+3}], {R(buf, 16*p+8, 8)}, v{SIX}")
            if s == 11: o += ["s_nop 7", f"v_add_f32 v{CS+4}, v{CS+4}, v{CS+5}", f"v_add_f32 v{CS+6}, v{CS+6}, v{CS+7}", f"v_add_f32 v{ST4+2}, v{CS+4}, v{CS+6}"]
        o.append(f"s_branch {LR}")
        OOL.append("\n".join(o))
    ST4 = 16
    def inter(m, r, per):
        per = max(per, -(-len(r)//len(m)))
        for x in range(len(m)):
            a(m[x])
            for y in r[x*per:(x+1)*per]: a(y)
    a(f"s_lshl_b32 s{T+4}, s{sI}, 1\ns_add_u32 s{T+4}, s{T+4}, s{tt}")
    a(f"s_lshl_b32 s{T+5}, s{sJ}, 2\ns_lshl_b32 s{T+6}, s{ch}, 1\ns_add_u32 s{T+5}, s{T+5}, s{T+6}")
    a(f"s_lshl_b32 s{T+5}, s{T+5}, 6\ns_add_u32 s{T+5}, s{T+5}, s{T+4}")
    a(f"s_lshl_b32 s{T+4}, s{T+5}, 11\ns_add_u32 s{T+4}, s{T+4}, s{sLB}\ns_add_u32 s{T+5}, s{T+4}, 131072")
    assert WS_KV == 0
    a(f"v_and_b32 v46, 0x33, v{vL}\nv_bfe_u32 v47, v{vL}, 2, 1\nv_lshl_add_u32 v46, v47, 3, v46\nv_bfe_u32 v47, v{vL}, 3, 1\nv_lshl_add_u32 v46, v47, 2, v46\nv_lshlrev_b32 v46, 4, v46")
    a(f"v_bfe_u32 v39, v{vL}, 4, 1\nv_lshlrev_b32 v47, 17, v39\nv_lshrrev_b32 v39, 5, v{vL}\nv_lshl_add_u32 v47, v39, 8, v47\nv_and_b32 v39, 15, v{vL}\nv_lshl_add_u32 v47, v39, 4, v47")
    Lx = a.label()
    a(f"s_cmp_eq_u32 s{sL}, 0\ns_cbranch_scc1 L_p1_stats0")
    x_start(a)
    a(f"{Lx}:")
    b = Asm(); b.n = 91000
    b("L_p1_stats0:\ns_waitcnt vmcnt(0)")
    stamp(b, "p1.xarr")
    own_stats(b, 48, 116, 124, 125, 126)
    b(f"s_branch {Lx}")
    OOL.append("\n".join(b.L))
    a(f"buffer_load_dwordx4 v[{ST4}:{ST4+3}], v{vL16}, s[{S_WS}:{S_WS+3}], s{csoff} offen sc1")
    a("s_waitcnt vmcnt(8)\ns_barrier")
    stamp(a, "p1.b0")
    for x in rd(0): a(x)
    P, RB, MU, RR = 112, 128, 36, 39
    def aug_w(seg, d):
        return [f"v_cvt_pk_bf16_f32 v{d}, v{ST4+seg}, v{ST4+seg}", f"v_and_b32 v{d+1}, 0xffff0000, v{d}", f"v_sub_f32 v{d+1}, v{ST4+seg}, v{d+1}", f"v_cvt_pk_bf16_f32 v{d+1}, v{d+1}, v{d+1}"]
    XM = 22
    a(f"s_cmp_eq_u32 s{sL}, 0\ns_cselect_b64 vcc, -1, 0")
    def waitbar(s):
        vmw = f"vmcnt({7-s}) " if s < 7 else ("vmcnt(0) " if s == 7 or (s == 10 and not C.pub12) else "")
        a(f"s_waitcnt {vmw}lgkmcnt(0)\ns_barrier")
        stamp(a, f"zq.{s+1:02d}")
    waitbar(0)
    for s in range(12):
        m = mf(s)
        r = rd(s+1) if s < 11 else []
        csum(s)
        if s == 7:
            tab = [f"ds_read_b32 v{MU}, v38", f"ds_read_b32 v{RR}, v38 offset:256"] + [f"ds_read_b128 v[{RB+4*k}:{RB+4*k+3}], v37 offset:{32*k}" for k in range(4)]
            mk = m[0::2]; mv = m[1::2]
            aw = aug_w(0, 24) + aug_w(1, 26)
            xm = [f"v_sub_f32 v{MU}, 0, v{MU}", f"v_cvt_pk_bf16_f32 v{XM}, v{MU}, v{MU}", f"v_and_b32 v{XM+1}, 0xffff0000, v{XM}", f"v_sub_f32 v{XM+1}, v{MU}, v{XM+1}", f"v_cvt_pk_bf16_f32 v{XM}, v{MU}, v{XM+1}", f"v_mov_b32 v{XM+1}, v{XM}"]
            a(mk[0]); [a(x) for x in tab]
            a(mk[1]); [a(x) for x in aw[:4] + r[:3]]
            a(mk[2]); [a(x) for x in aw[4:] + r[3:6]]
            a(mk[3]); a("s_waitcnt lgkmcnt(10)"); [a(x) for x in xm]
            a(mv[0]); [a(x) for x in r[6:9]]
            a(f"v_mfma_f32_32x32x8_bf16 v[{AK}:{AK+15}], v[24:25], v[{XM}:{XM+1}], v[{AK}:{AK+15}]"); [a(x) for x in r[9:14]]
            a(mv[1]); [a(x) for x in r[14:19]]
            a(mv[2]); [a(x) for x in r[19:24]]
            a(mv[3])
            for k in range(10): a(f"v_mul_f32 v{AK+k}, v{AK+k}, v{RR}")
            a(f"v_mfma_f32_32x32x8_bf16 v[{AV}:{AV+15}], v[{XM}:{XM+1}], v[26:27], v[{AV}:{AV+15}]")
            for k in range(10, 16): a(f"v_mul_f32 v{AK+k}, v{AK+k}, v{RR}")
            for k in range(8): a(f"v_cvt_pk_bf16_f32 v{P+k}, v{AK+2*k}, v{AK+2*k+1}")
            a(f"buffer_store_dwordx4 v[{P}:{P+3}], v46, s[{S_WS}:{S_WS+3}], s{T+4} offen sc1")
            a(f"buffer_store_dwordx4 v[{P+4}:{P+7}], v46, s[{S_WS}:{S_WS+3}], s{T+5} offen sc1")
            a("s_waitcnt lgkmcnt(15)")
            for k in range(16): a(f"v_mul_f32 v{AV+k}, v{AV+k}, v{RB+k}")
            for k in range(8): a(f"v_cvt_pk_bf16_f32 v{P+8+k}, v{AV+2*k}, v{AV+2*k+1}")
            a(f"buffer_store_dwordx4 v[{P+8}:{P+11}], v47, s[{S_WS}:{S_WS+3}], s{T+4} offen offset:1024 sc1")
            a(f"buffer_store_dwordx4 v[{P+12}:{P+15}], v47, s[{S_WS}:{S_WS+3}], s{T+4} offen offset:1536 sc1")
            stamp(a, "p1.kvst")
            waitbar(8)
        elif s < 11:
            e = C.early
            per = -(-len(r)//min(e, 5))
            for x in range(8):
                a(m[x])
                for y in r[x*per:(x+1)*per]: a(y)
                if x == e: waitbar(s+1) if s < 10 else a("s_waitcnt vmcnt(0) lgkmcnt(0)\ns_barrier")
        else:
            aw = aug_w(2, 24)
            a(m[0])
            a(f"s_lshl_b32 s{T+6}, s{ch}, 12\ns_lshl_b32 s{T+7}, s{tt}, 10\ns_add_u32 s{T+6}, s{T+6}, s{T+7}\ns_add_u32 s{T+6}, s{T+6}, {QX}\nv_add_u32 v46, s{T+6}, v{vL16}")
            a(m[1]); [a(x) for x in aw]
            a(f"v_mul_f32 v{RR}, {f2u(0.25*1.4426950408889634)}, v{RR}")
            for x in m[2:]: a(x)
    stamp(a, "p1.mfma")
    a("s_nop 9")
    a(f"v_mfma_f32_32x32x8_bf16 v[{AQ}:{AQ+15}], v[24:25], v[{XM}:{XM+1}], v[{AQ}:{AQ+15}]")
    a(f"buffer_store_dwordx4 v[{ST4}:{ST4+3}], v{vL16}, s[{S_WS}:{S_WS+3}], s{csoff} offen sc1")
    a("s_nop 10")
    for r in range(16): a(f"v_mul_f32 v{AQ+r}, v{AQ+r}, v{RR}")
    for r in range(8): a(f"v_cvt_pk_bf16_f32 v{P+r}, v{AQ+2*r}, v{AQ+2*r+1}")
    a(f"ds_write_b128 v46, v[{P}:{P+3}]\nds_write_b128 v46, v[{P+4}:{P+7}] offset:2048")
    a(f"{LJ}:")
    return OOL

hh, kh, head, kvs, w1s, w1c, wos, tch, ring, kro, kfa = T+2, T+3, T+4, T+5, T+6, T+7, T+8, T+9, T+10, T+11, T+12
TD, VA_, IDX, TA, vF1, vWO, SGA, Q, S, O, KR, VR = 16, 18, 19, 20, 21, 22, 23, 24, [32, 48], [80, 64], 96, 112
ost, osrc, cgive, ctake = 88, 90, 92, 93
CST = E + 33792
CMB = E + 37888

def wo_reads():
    o = []
    for t in range(8):
        for y in range(2):
            b = 80 + 8*t + 4*y
            o += [f"ds_read_b64_tr_b16 v[{b}:{b+1}], v{20+2*y} offset:{t*2048}", f"ds_read_b64_tr_b16 v[{b+2}:{b+3}], v{20+2*y} offset:{t*2048+1024}"]
    return o

def phase2(a):
    t0, t1 = S[0], S[0]+1
    a(f"s_and_b32 s{hh}, s{sW}, 3\ns_lshr_b32 s{kh}, s{sW}, 2\ns_lshl_b32 s{head}, s{sJ}, 2\ns_add_u32 s{head}, s{head}, s{hh}")
    a(f"s_lshl_b32 s{kvs}, s{head}, 17\ns_lshl_b32 s{T}, s{kh}, 11\ns_add_u32 s{kvs}, s{kvs}, s{T}\ns_add_u32 s{kvs}, s{kvs}, s{sLB}")
    a(f"s_lshr_b32 s{kro}, s{sI}, 2\ns_lshl_b32 s{kro}, s{kro}, 14")
    a(f"s_lshl_b32 s{ring}, s{sW}, 12")
    Lk = a.label()
    a(f"s_cmp_lt_u32 s{sW}, 4\ns_cbranch_scc1 {Lk}")
    a(f"v_and_b32 v{t0}, 3, v{vL}\nv_cmp_eq_u32 vcc, 1, v{t0}\nv_mov_b32 v{t1}, 0x3f803f80\ns_nop 0\nv_cndmask_b32 v{t0+4}, 0, v{t1}, vcc")
    a(f"v_mov_b32 v{t0+5}, v{t0+4}\nv_mov_b32 v{t0+6}, v{t0+4}\nv_mov_b32 v{t0+7}, v{t0+4}")
    a(f"s_lshl_b32 s{T}, s{sW}, 10\ns_add_u32 s{T}, s{T}, {CST - 4096}\nv_add_u32 v{t0}, s{T}, v{vL16}\nds_write_b128 v{t0}, v[{t0+4}:{t0+7}]")
    if C.lf: if_wave_eq(a, 5, lambda: kl_poll(a))
    else: if_wave_eq(a, 5, lambda: poll(a, "KV", sJ, 32))
    a(f"{Lk}:")
    def post_setup():
        a(f"v_lshrrev_b32 v{t0}, 5, v{vL}\nv_lshlrev_b32 v{VA_}, 8, v{t0}\nv_and_b32 v{t0}, 15, v{vL}\nv_lshl_add_u32 v{VA_}, v{t0}, 4, v{VA_}\nv_add_u32 v{VA_}, s{ring}, v{VA_}\nv_add_u32 v{VA_}, 1024, v{VA_}")
        a(f"v_add_u32 v{t1}, 4, v{t0}\nv_and_b32 v{t1}, 8, v{t1}\nv_lshlrev_b32 v{t1}, 3, v{t1}\nv_add_u32 v{t1}, {CST}, v{t1}")
        a(f"v_and_b32 v{t0}, 11, v{vL}\nv_cmp_eq_u32 vcc, 0, v{t0}\nv_add_u32 v{t0}, 16, v{t1}\ns_nop 0\nv_cndmask_b32 v{t1}, v{t1}, v{t0}, vcc")
        a(f"v_and_b32 v{t0}, 16, v{vL}\nv_cmp_eq_u32 vcc, 0, v{t0}\ns_nop 1\nv_cndmask_b32 v{VA_}, v{t1}, v{VA_}, vcc")
        a(f"v_mov_b32 v{IDX}, 0xdddddddd\ns_mov_b32 s94, 0xffff\ns_mov_b32 s95, 0xffff")
        for r in range(32): a(f"v_mov_b32 v{64+r}, 0")
        if C.skip7: a(f"s_cmp_ge_u32 s{sI}, 28\ns_cselect_b32 s{S_W1+2}, 0, s{S_W1+2}")
        a(f"s_cmp_lg_u32 s{sL}, 0\ns_cselect_b32 s{S_QKV+2}, 0, s{S_QKV+2}")
        a(f"s_lshr_b32 s{w1s}, s{sW}, 1\ns_mul_i32 s{w1s}, s{w1s}, {512*3584}\ns_lshl_b32 s{T}, s{sI}, 7\ns_add_u32 s{w1s}, s{w1s}, s{T}")
        a(f"s_and_b32 s{T+1}, s{sW}, 1\ns_lshl_b32 s{T+1}, s{T+1}, 6\ns_add_u32 s{w1s}, s{w1s}, s{T+1}\ns_sub_u32 s{w1s}, s{w1s}, {16*3584}")
        if C.tmix:
            a(f"s_lshl_b32 s{tch}, s{sJ}, 2\ns_and_b32 s{T+1}, s{sI}, 3\ns_add_u32 s{tch}, s{tch}, s{T+1}\ns_lshl_b32 s{tch}, s{tch}, 3\ns_add_u32 s{tch}, s{tch}, s{sW}\ns_mul_i32 s{tch}, s{tch}, {7*4096}")
            a(f"s_lshr_b32 s{T+1}, s{sI}, 2\ns_lshl_b32 s{T+1}, s{T+1}, 9\ns_add_u32 s{tch}, s{tch}, s{T+1}")
            a(f"v_lshrrev_b32 v{TA}, 2, v{vL}\nv_lshlrev_b32 v{TA}, 12, v{TA}\nv_and_b32 v{t1}, 3, v{vL}\nv_lshl_add_u32 v{TA}, v{t1}, 7, v{TA}")
        else:
            a(f"s_lshl_b32 s{tch}, s{sJ}, 3\ns_add_u32 s{tch}, s{tch}, s{sW}\ns_mul_i32 s{tch}, s{tch}, {28*4096}\ns_add_u32 s{tch}, s{tch}, s{T}")
            a(f"v_lshlrev_b32 v{TA}, 12, v{vL}")
        a(f"v_cmp_gt_u32 vcc, 28, v{vL}\nv_mov_b32 v{t1}, 0x40000000\ns_nop 0\nv_cndmask_b32 v{TA}, v{t1}, v{TA}, vcc")
        a(f"s_lshl_b32 s{wos}, s{sW}, 13\ns_lshl_b32 s{T}, s{sJ}, 7\ns_add_u32 s{wos}, s{wos}, s{T}")
        a(f"s_lshl_b32 s{T}, s{hh}, 11\ns_add_u32 s{T}, s{T}, {QX}\nv_add_u32 v{t1}, s{T}, v{vL16}\nv_subrev_u32 v{SGA}, {SVO}, v{vTRF}")
        a(f"v_lshrrev_b32 v{t0+2}, 2, v{vL}\nv_and_b32 v{t0+3}, 3, v{vL}\nv_lshlrev_b32 v{t0+3}, 4, v{t0+3}\nv_mul_u32_u24 v{vF1}, 3584, v{t0+2}\nv_add_u32 v{vF1}, v{vF1}, v{t0+3}")
        a(f"v_lshrrev_b32 v{t0+2}, 3, v{vL}\nv_lshlrev_b32 v{t0+2}, 11, v{t0+2}\nv_sub_u32 v{vWO}, v{vWQ}, v{t0+2}")
        if C.lf: flag_addr(a, "KV", kfa)
    a("s_waitcnt lgkmcnt(0)\ns_barrier")
    stamp(a, "p2.start")
    vm = VM()
    kcur = T+13
    assert C.lfi < C.lfc
    GP = 128
    def kv_issue(t):
        k = KR + 4*(t & 3)
        if t % 4 == 0: a(f"s_add_u32 s{kcur}, s{kvs}, s{kro}\ns_add_u32 s{kro}, s{kro}, 16384\ns_and_b32 s{kro}, s{kro}, {'0x3fff' if C.kvsame else '0x1ffff'}")
        else: a(f"s_addk_i32 s{kcur}, 4096")
        a(f"s_add_u32 m0, s{ring}, {(t & 3)*1024}")
        a(f"buffer_load_dwordx4 v[{k}:{k+3}], v{vL16}, s[{S_WS}:{S_WS+3}], s{kcur} offen sc1{' nt' if C.ntkv else ''}")
        a(f"buffer_load_dwordx4 v{vL16}, s[{S_WS}:{S_WS+3}], s{kcur} offen offset:1024 sc1{' nt' if C.ntkv else ''} lds")
        vm.add(("kv", t), 2)
    def v_read(t):
        v = VR + 8*(t & 1)
        msk = C.vmask and t >= 2
        if msk: a(f"s_mov_b64 exec, s[94:95]")
        a(f"ds_read_b128 v[{v}:{v+3}], v{VA_} offset:{(t & 3)*1024}\nds_read_b128 v[{v+4}:{v+7}], v{VA_} offset:{(t & 3)*1024 + 512}")
        if msk: a("s_mov_b64 exec, -1")
    def w1_issue(f):
        if f % 4 == 0:
            a(f"s_add_u32 s{w1c}, s{sJR}, {f//4}\ns_and_b32 s{w1c}, s{w1c}, 7\ns_mul_i32 s{w1c}, s{w1c}, {64*3584}\ns_add_u32 s{w1c}, s{w1c}, s{w1s}")
        a(f"s_add_u32 m0, s{sVW}, {STG - V + (f & 3)*8192}\ns_add_u32 s{w1c}, s{w1c}, {16*3584}")
        a(f"buffer_load_dwordx4 v{vF1}, s[{S_W1}:{S_W1+3}], s{w1c} offen{' nt' if C.w1nt else ''} lds")
        vm.add(("w1", f))
    def wo_issue(u):
        a(f"s_add_u32 m0, s{sVW}, {SVO + u*8192}\ns_add_u32 s{T}, s{wos}, {u*65536}")
        a(f"buffer_load_dwordx4 v{vWO}, s[{S_WO}:{S_WO+3}], s{T} offen lds")
        vm.add(("wo", u))
    def touch(n):
        a(f"s_cmp_eq_u32 s{sJ}, {n}\ns_cselect_b32 s{T}, s{tch}, 0x40000000")
        a(f"buffer_load_dword v{TD}, v{TA}, s[{S_W2}:{S_W2+3}], s{T} offen")
        vm.add(("t", n))
    def ex(s, r0, r1):
        for r in range(r0, r1): a(f"v_exp_f32 v{s+r}, v{s+r}")
    def setprio(p):
        L = a.label()
        a(f"s_cmp_lg_u32 s{kh}, 0\ns_cbranch_scc1 {L}\ns_setprio {p}\n{L}:")
    def qk(q, t): a(f"v_mfma_f32_32x32x16_bf16 v[{S[q]}:{S[q]+15}], v[{KR+4*(t&3)}:{KR+4*(t&3)+3}], v[{Q+4*q}:{Q+4*q+3}], 0")
    def pv(q, t, h): a(f"v_smfmac_f32_32x32x32_bf16 v[{O[q]}:{O[q]+15}], v[{VR+8*(t&1)+4*h}:{VR+8*(t&1)+4*h+3}], v[{S[q]+8*h}:{S[q]+8*h+7}], v{IDX}")
    kv_issue(0); kv_issue(1)
    post_setup()
    a(f"s_lshl_b32 s{T}, s{kh}, 10\nv_add_u32 v{t1}, s{T}, v{t1}\nv_xor_b32 v{t0}, 1024, v{t1}")
    a(f"ds_read_b128 v[{Q}:{Q+3}], v{t0}\nds_read_b128 v[{Q+4}:{Q+7}], v{t1}")
    a(f"s_lshl_b32 s{ost}, s{sI}, 1\ns_add_u32 s{ost}, s{ost}, s{kh}\ns_lshl_b32 s{ost}, s{ost}, 5\ns_add_u32 s{ost}, s{ost}, s{head}\ns_lshl_b32 s{ost}, s{ost}, 10")
    a(f"s_add_u32 s{ost}, s{ost}, {WS_O}\ns_add_u32 s{ost}, s{ost}, s{sLB}")
    a(f"s_and_b32 s{osrc}, s{sW}, 1\ns_lshl_b32 s{osrc}, s{osrc}, 15\ns_lshr_b32 s{T}, s{sW}, 1\ns_lshl_b32 s{T}, s{T}, 13\ns_add_u32 s{osrc}, s{osrc}, s{T}")
    a(f"s_lshl_b32 s{T}, s{sI}, 16\ns_add_u32 s{osrc}, s{osrc}, s{T}\ns_add_u32 s{osrc}, s{osrc}, {WS_O}\ns_add_u32 s{osrc}, s{osrc}, s{sLB}\ns_add_u32 s{osrc+1}, s{osrc}, 4096")
    a(f"s_mul_i32 s{cgive}, s{sW}, 3072\ns_add_u32 s{cgive}, s{cgive}, {CMB}\ns_xor_b32 s{ctake}, s{sW}, 4\ns_mul_i32 s{ctake}, s{ctake}, 3072\ns_add_u32 s{ctake}, s{ctake}, {CMB}")
    tr_addr(a, 131, "0", True, 132, 133)
    a(f"s_lshr_b32 s{T}, s{sW}, 1\ns_lshl_b32 s{T}, s{T}, 14\ns_add_u32 s{T}, s{T}, {V+SVO}\nv_add_u32 v131, s{T}, v131")
    if C.prio: a("s_setprio 1")
    a(f"s_waitcnt vmcnt(2) lgkmcnt(0)")
    qk(0, 0)
    v_read(0)
    kv_issue(2); kv_issue(3)
    a(f"s_lshr_b32 s{T}, s{sI}, 2\ns_lshl_b32 s{T}, s{T}, 9\ns_add_u32 s{T}, s{T}, {WS_XT}\nv_and_b32 v17, 0x1f0, v{vL16}")
    a(f"buffer_load_dword v17, v17, s[{S_WS}:{S_WS+3}], s{T} offen sc1"); vm.add("xt")
    if C.w1a:
        n = 28 if C.w1a == 1 else 14
        a(f"s_lshl_b32 s{T}, s2, 3\ns_add_u32 s{T}, s{T}, s{sW}" + (f"\ns_mul_i32 s{T}, s{T}, {28*128}" if C.w1a == 1 else f"\ns_lshr_b32 s{T+1}, s{T}, 2\ns_mul_i32 s{T+1}, s{T+1}, {112*128}\ns_and_b32 s{T}, s{T}, 3\ns_mul_i32 s{T}, s{T}, {14*128}\ns_add_u32 s{T}, s{T}, s{T+1}"))
        a(f"s_lshl_b32 s{T+1}, s{sL}, 30\ns_add_u32 s{T}, s{T}, s{T+1}\nv_min_u32 v134, {n-1}, v{vL}\nv_lshlrev_b32 v134, 7, v134\nbuffer_load_dword v134, v134, s[{S_W1}:{S_W1+3}], s{T} offen")
        vm.add("w1a")
    if C.c3:
        a(f"s_lshr_b32 s{T}, s2, 3\ns_lshl_b32 s{T}, s{T}, 3\ns_add_u32 s{T}, s{T}, s{sW}\ns_lshl_b32 s{T+1}, s{T}, 11\ns_add_u32 s{T+1}, s{T+1}, 384")
        a(f"v_min_u32 v{GP+1}, 1, v{vL}\nv_lshlrev_b32 v{GP+1}, 10, v{GP+1}\nbuffer_load_dword v{GP+1}, v{GP+1}, s[{S_WO}:{S_WO+3}], s{T+1} offen")
        a(f"s_mul_i32 s{T}, s{T}, {8*3584}\ns_or_b32 s{T+1}, s{sI}, 3\ns_lshl_b32 s{T+1}, s{T+1}, 7\ns_add_u32 s{T}, s{T}, s{T+1}")
        a(f"v_min_u32 v{GP+2}, 7, v{vL}\nv_mul_u32_u24 v{GP+2}, 3584, v{GP+2}\nbuffer_load_dword v{GP+2}, v{GP+2}, s[{S_W1}:{S_W1+3}], s{T} offen")
        vm.add("c3", 2)
    stamp(a, "p2.kv0")
    a("s_nop 1")
    per = C.pper; low = C.plow
    m1, m2, m3 = [int(c, 16) for c in C.mp]; cp = min(max(C.cpos, m2), m3); assert m1 >= 2 and m3 >= 10
    for t in range(32):
        for q in range(2):
            hidx = 2*t + q
            if C.prio and hidx % per == 0: setprio(2)
            if C.prio and hidx % per == per - low: setprio(0)
            ex(S[q], 0, m1)
            if q == 0:
                if t > 0: pv(1, t-1, 1)
            else: pv(0, t, 1)
            ex(S[q], m1, m2)
            nq = len(a.L)
            if q == 0:
                qk(1, t)
                ex(S[q], m2, cp)
                need = [("kv", t+1)] if t < 31 else []
                if not C.nox and 3 <= t < 31: need.append(("w1", t-3))
                if C.lf and t == C.lfc: need.append("gp")
                a(f"s_waitcnt vmcnt({vm.need(*need) if need else 63}) lgkmcnt(0)")
                if C.lf and t == C.lfi: apoll_issue(a, kfa, GP); vm.add("gp")
                if C.lf and t == C.lfc:
                    apoll_check(a, kfa, GP, 32)
                    for k in range(4, t+4): kv_issue(k)
                if t+4 < 32 and not (C.lf and t < C.lfc): kv_issue(t+4)
                if t+1 < 32: v_read(t+1)
                if not C.nox and not C.split:
                    w1_issue(t)
                    if 3 <= t < 31:
                        for x in frag_reads(f"a{4*(t-3)}", SGA, ((t-3) & 3)*8192): a(x)
            else:
                if t < 31: qk(0, t+1)
                ex(S[q], m2, cp)
                if not C.nox:
                    if C.split:
                        w1_issue(t)
                        if 3 <= t < 31:
                            for x in frag_reads(f"a{4*(t-3)}", SGA, ((t-3) & 3)*8192): a(x)
                    if t == C.prett and C.preto:
                        a(f"buffer_load_dword v{TD}, v{vL16}, s[{S_WS}:{S_WS+3}], s{ost} offen sc1")
                        vm.add("pre")
                        if C.prets:
                            a(f"s_lshl_b32 s{T}, s{sI}, 3\ns_add_u32 s{T}, s{T}, s{sJ}\ns_lshl_b32 s{T}, s{T}, 10\ns_add_u32 s{T}, s{T}, {WS_ST}\ns_add_u32 s{T}, s{T}, s{sLB}")
                            a(f"buffer_load_dword v{TD}, v{vL16}, s[{S_WS}:{S_WS+3}], s{T} offen sc1")
                            vm.add("pre2")
                    if t == C.cpf2 and C.cpf2 and not C.vmask:
                        a(f"s_getpc_b64 s[{T}:{T+1}]\nL_pc1:\ns_lshr_b32 s94, s2, 3\ns_lshl_b32 s94, s94, 3\ns_add_u32 s94, s94, s{sW}\ns_lshl_b32 s94, s94, 6\ns_min_u32 s94, s94, SPAN2\nv_mov_b32 v134, s94")
                        a(f"global_load_dword v135, v134, s[{T}:{T+1}]"); vm.add("cp")
                    if t % 3 == 1 and t < 24: wo_issue(t//3)
                    if t == 8: a(f"v_readfirstlane_b32 s{T}, v17\ns_nop 1\nv_cmp_ne_u32 vcc, s{T}, v17\ns_nop 1\ns_cmp_eq_u64 vcc, 0\ns_cselect_b32 s{sLOC}, 1, 0")
                    if t % 4 == 3 and C.stouch == 1: touch(t//4)
                    if t % 3 == 2 and t < 24 and C.stouch == 2: touch(t//3)
                    if t == C.t2:
                        a(f"buffer_load_dword v{TD}, v{TA}, s[{S_W2}:{S_W2+3}], s{tch} offen{' nt' if C.w2nt else ''}"); vm.add("t2")
            ex(S[q], cp, m3)
            pv(q, t, 0)
            if t == 31 and q == 1:
                a(f"s_mov_b32 m0, s{cgive}\nv_mov_b32 v20, v131\nv_xor_b32 v22, 64, v131")
                for r in range(9): a(f"ds_write_addtid_b32 v{O[0]+r} offset:{256*r}")
            ex(S[q], m3, 16)
            gap = sum(1 for x in a.L[nq+1:] if not x.endswith(':'))
            if gap < 12: a(f's_nop {11 - gap}')
    a("s_nop 1")
    pv(1, 31, 1)
    if C.prio: a("s_setprio 0")
    stamp(a, "p2.loop")
    M, N = O[1], 36
    assert C.nox or vm.need(("wo", 7)) >= vm.need(("kv", 31))
    a(f"s_mov_b32 m0, s{ctake}\ns_waitcnt lgkmcnt(0)\ns_barrier")
    stamp(a, "zc.cmb")
    for r in range(9): a(f"ds_read_addtid_b32 v{N+r} offset:{256*r}")
    wr_ = wo_reads()
    for x in wr_[:6]: a(x)
    a("s_waitcnt lgkmcnt(6)")
    for r in range(9): a(f"v_add_f32 v{M+r}, v{M+r}, v{N+r}")
    for x in wr_[6:C.wo1]: a(x)
    a(f"v_add_f32 v{N}, abs(v{M}), abs(v{M+1})\nv_add_f32 v{N+1}, abs(v{M+2}), abs(v{M+3})\nv_add_f32 v{N+2}, abs(v{M+4}), abs(v{M+5})\nv_add_f32 v{N+3}, abs(v{M+6}), abs(v{M+7})")
    a(f"v_add_f32 v{N}, v{N}, v{N+1}\nv_add_f32 v{N+2}, v{N+2}, v{N+3}\nv_cmp_nge_f32 vcc, {f2u(2.0**60)}, v{M+8}\nv_add_f32 v{N}, v{N}, v{N+2}")
    a(f"s_mov_b64 s[{T+12}:{T+13}], vcc\nv_cmp_nle_f32 vcc, {f2u(2.0**-60)}, v{M+8}\ns_nop 0\ns_or_b64 s[{T+12}:{T+13}], s[{T+12}:{T+13}], vcc")
    a(f"v_cmp_ngt_f32 vcc, 0x7f800000, v{N}\ns_nop 0\ns_or_b64 s[{T+12}:{T+13}], s[{T+12}:{T+13}], vcc\ns_cbranch_scc1 L_softmax_safe\nL_softmax_done:")
    a(f"v_rcp_f32 v{M+8}, v{M+8}\ns_nop 0")
    for r in range(8): a(f"v_mul_f32 v{M+r}, v{M+r}, v{M+8}")
    for r in range(4): a(f"v_cvt_pk_bf16_f32 v{N+r}, v{M+2*r}, v{M+1+2*r}")
    if C.sent:
        for r in range(4): a(f"v_min_u32 v{N+r}, -2, v{N+r}")
    rstore(a, f"buffer_store_dwordx4 v[{N}:{N+3}], v{vL16}, s[{S_WS}:{S_WS+3}], s{ost} offen", bulk=not C.ldo)
    for x in wr_[C.wo1:]: a(x)

def softmax_safe(a):
    M = O[1]
    QF, KF, VF, SS, CC, OO, MX, VO = Q+4, 104, 108, 48, 80, 120, 116, 117
    base, cur, n = T+12, T+13, T+14
    a("L_softmax_safe:")
    a("s_waitcnt lgkmcnt(0)")
    a(f"s_lshl_b32 s{base}, s{head}, 17\ns_add_u32 s{base}, s{base}, s{sLB}")
    a(f"v_mov_b32 v{MX}, 0xff800000\ns_mov_b32 s{cur}, s{base}\ns_mov_b32 s{n}, 64")
    L1 = a.label()
    a(f"{L1}:")
    a(f"buffer_load_dwordx4 v[{KF}:{KF+3}], v{vL16}, s[{S_WS}:{S_WS+3}], s{cur} offen sc1\ns_waitcnt vmcnt(0)")
    a(f"v_mfma_f32_32x32x16_bf16 v[{SS}:{SS+15}], v[{KF}:{KF+3}], v[{QF}:{QF+3}], 0\ns_nop 15")
    for r in range(0, 16, 2): a(f"v_max3_f32 v{MX}, v{MX}, v{SS+r}, v{SS+r+1}")
    a(f"s_add_u32 s{cur}, s{cur}, 2048\ns_sub_u32 s{n}, s{n}, 1\ns_cmp_lg_u32 s{n}, 0\ns_cbranch_scc1 {L1}")
    a(f"v_mov_b32 v{VO}, v{MX}\ns_nop 1\nv_permlane32_swap_b32 v{MX}, v{VO}\ns_nop 1\nv_max_f32 v{MX}, v{MX}, v{VO}")
    for r in range(16): a(f"v_sub_f32 v{CC+r}, 0, v{MX}\nv_mov_b32 v{OO+r}, 0")
    for r in range(8): a(f"v_mov_b32 v{VF+r}, 0x3f803f80")
    a(f"v_lshrrev_b32 v{MX}, 5, v{vL}\nv_lshlrev_b32 v{VO}, 8, v{MX}\nv_and_b32 v{MX}, 15, v{vL}\nv_lshl_add_u32 v{VO}, v{MX}, 4, v{VO}")
    a(f"s_mov_b32 s{cur}, s{base}\ns_mov_b32 s{n}, 64")
    L2 = a.label()
    a(f"{L2}:")
    a(f"buffer_load_dwordx4 v[{KF}:{KF+3}], v{vL16}, s[{S_WS}:{S_WS+3}], s{cur} offen sc1")
    a("s_mov_b32 exec_lo, 0xffff\ns_mov_b32 exec_hi, 0xffff")
    a(f"buffer_load_dwordx4 v[{VF}:{VF+3}], v{VO}, s[{S_WS}:{S_WS+3}], s{cur} offen offset:1024 sc1")
    a(f"buffer_load_dwordx4 v[{VF+4}:{VF+7}], v{VO}, s[{S_WS}:{S_WS+3}], s{cur} offen offset:1536 sc1")
    a("s_mov_b64 exec, -1\ns_waitcnt vmcnt(0)")
    a(f"v_mfma_f32_32x32x16_bf16 v[{SS}:{SS+15}], v[{KF}:{KF+3}], v[{QF}:{QF+3}], v[{CC}:{CC+15}]\ns_nop 15")
    for r in range(16): a(f"v_exp_f32 v{SS+r}, v{SS+r}")
    a("s_nop 1")
    a(f"v_smfmac_f32_32x32x32_bf16 v[{OO}:{OO+15}], v[{VF}:{VF+3}], v[{SS}:{SS+7}], v{IDX}")
    a(f"v_smfmac_f32_32x32x32_bf16 v[{OO}:{OO+15}], v[{VF+4}:{VF+7}], v[{SS+8}:{SS+15}], v{IDX}\ns_nop 15")
    a(f"s_add_u32 s{cur}, s{cur}, 2048\ns_sub_u32 s{n}, s{n}, 1\ns_cmp_lg_u32 s{n}, 0\ns_cbranch_scc1 {L2}")
    for r in range(9): a(f"v_mov_b32 v{M+r}, v{OO+r}")
    for x in wo_reads()[:C.wo1]: a(x)
    a("s_branch L_softmax_done")

EOFF = 61692
def ep2_writes(acc, base, sw4k):
    off = EOFF if base >= EOFF else 0
    o = [f"ds_write_addtid_b32 v{acc+r} offset:{off + r*256}" for r in range(16)]
    o[0] = f"s_add_u32 m0, s{sw4k}, {base - off}\ns_nop 0\n" + o[0]
    return o

def ep2_read_addr(a, ra, base0, base1, sw4k, tv):
    a(f"s_and_b32 s{T}, s{sW}, 1\ns_lshl_b32 s{T}, s{T}, 2\ns_lshr_b32 s{T+1}, s{sW}, 1\ns_add_u32 s{T}, s{T}, s{T+1}\ns_lshl_b32 s{sw4k}, s{T}, 12")
    a(f"s_lshr_b32 s{T}, s{sW}, 2\ns_lshl_b32 s{T}, s{T}, 14\ns_and_b32 s{T+1}, s{sW}, 3\ns_lshl_b32 s{T+1}, s{T+1}, 10\ns_add_u32 s{T}, s{T}, s{T+1}\ns_add_u32 s{T}, s{T}, {base0}")
    a(f"v_and_b32 v{tv}, 3, v{vN}\nv_lshlrev_b32 v{ra}, 8, v{tv}\nv_bfe_u32 v{tv}, v{vN}, 2, 1\nv_lshl_add_u32 v{ra}, v{tv}, 7, v{ra}\nv_and_b32 v{tv}, 3, v{vC}\nv_lshl_add_u32 v{ra}, v{tv}, 5, v{ra}")
    a(f"v_add_u32 v{ra}, s{T}, v{ra}\nv_lshrrev_b32 v{tv}, 2, v{vC}\nv_mul_i32_i24 v{tv}, {base1 - base0}, v{tv}\nv_add_u32 v{ra}, v{ra}, v{tv}")

def ep2_sum(a, ra, add0, out):
    for k in range(4):
        a(f"ds_read_b128 v[{out+8*k}:{out+8*k+3}], v{ra} offset:{4096*k}\nds_read_b128 v[{out+8*k+4}:{out+8*k+7}], v{ra} offset:{4096*k+16}")
    def pk(d, x, y):
        for e in range(0, 8, 2): a(f"v_pk_add_f32 v[{d+e}:{d+e+1}], v[{x+e}:{x+e+1}], v[{y+e}:{y+e+1}]")
    a("s_waitcnt lgkmcnt(6)")
    pk(out, out, add0)
    a("s_waitcnt lgkmcnt(4)")
    pk(out, out, out+8)
    a("s_waitcnt lgkmcnt(2)")
    pk(out, out, out+16)
    a("s_waitcnt lgkmcnt(0)")
    pk(out, out, out+24)

def unpack8(a, dst, src):
    for e in range(4): a(f"v_lshlrev_b32 v{dst+2*e}, 16, v{src+e}\nv_and_b32 v{dst+1+2*e}, 0xffff0000, v{src+e}")

def phase3(a):
    stamp(a, "zc.ost")
    OF, ACC, WF = 16, 48, 80
    src = osrc
    n3 = [int(c) for c in C.sch3]; assert n3[0] == 4 and sum(n3) == 12
    spin = T+6
    if not C.sent:
        a("s_waitcnt vmcnt(0) lgkmcnt(0)\ns_barrier")
        stamp(a, "p2.end")
        if_wave_eq(a, 0, lambda: publish(a, "O", sI))
        for f in range(n3[0]): w2_dma(a, f)
        if_wave_eq(a, 0, lambda: poll(a, "O", sI, 8))
        a("s_barrier")
        stamp(a, "proj.polled")
    else:
        a(f"s_mov_b32 s{spin}, {SPIN}\ns_waitcnt {'vmcnt(0) ' if C.sentwait == 1 else ''}lgkmcnt(0)\ns_barrier")
        stamp(a, "p2.end")
    LT = a.label()
    a(f"{LT}:")
    for t in range(8):
        if C.lprio and t % 2 == 0: a(f"s_setprio {3 - t//2}")
        a(f"buffer_load_dwordx4 v[{OF+4*t}:{OF+4*t+3}], v{vL16}, s[{S_WS}:{S_WS+3}], s{src + (t >> 2)} offen offset:{(t & 3)*1024} sc1")
    for t in range(8):
        a(f"s_waitcnt vmcnt({7-t})")
        for y in range(2):
            c = "0" if t == 0 else f"v[{ACC+16*y}:{ACC+16*y+15}]"
            a(f"v_mfma_f32_32x32x16_bf16 v[{ACC+16*y}:{ACC+16*y+15}], v[{OF+4*t}:{OF+4*t+3}], v[{WF+8*t+4*y}:{WF+8*t+4*y+3}], {c}")
            if C.sent:
                o = OF + 4*t + 2*y
                a(f"v_max_u32 v0, v{o}, v{o+1}" if t == 0 and y == 0 else f"v_max3_u32 v0, v0, v{o}, v{o+1}")
    if C.sent:
        a(f"v_cmp_eq_u32 vcc, -1, v0\ns_sub_u32 s{spin}, s{spin}, 1\ns_cselect_b64 vcc, 0, vcc\ns_cbranch_vccnz {LT}")
    if C.sent and C.w2pos == 1:
        for f in range(n3[0]): w2_dma(a, f)
    ep2_read_addr(a, 88, V+SVO, E+16, T+4, 80)
    stamp(a, "proj.loop")
    OUT = 104
    for x in ep2_writes(ACC, V+SVO, T+4) + ep2_writes(ACC+16, E+16, T+4): a(x)
    unpack8(a, 96, vRES)
    if C.sent and C.w2pos == 0:
        for f in range(n3[0]): w2_dma(a, f)
    GA, GB, HA, SG_, G4, ONE = 16, 17, 18, 19, 20, 24
    sga, sgb, sh = T+7, T+8, T+9
    a(f"s_lshl_b32 s{sgb}, s{sI}, 13\ns_add_u32 s{sgb}, s{sgb}, {WS_ST}\ns_add_u32 s{sgb}, s{sgb}, s{sLB}\ns_lshl_b32 s{sga}, s{sJ}, 10\ns_add_u32 s{sga}, s{sga}, s{sgb}")
    a(f"s_lshl_b32 s{sh}, s{sJ}, 18\ns_lshl_b32 s{T}, s{sI}, 12\ns_add_u32 s{sh}, s{sh}, s{T}\ns_add_u32 s{sh}, s{sh}, {WS_H}\ns_add_u32 s{sh}, s{sh}, s{sLB}")
    a(f"v_lshlrev_b32 v{GA}, 4, v{vN}\nv_lshl_add_u32 v{GB}, v{vC}, 10, v{GA}")
    a(f"v_lshrrev_b32 v{HA}, 2, v{vC}\nv_lshlrev_b32 v{HA}, 17, v{HA}\nv_lshl_add_u32 v{HA}, v{vN}, 6, v{HA}\nv_and_b32 v{SG_}, 3, v{vC}\nv_lshl_add_u32 v{HA}, v{SG_}, 4, v{HA}")
    a(f"v_subrev_u32 v{SG_}, {SVO}, v{vTRF}\nv_mov_b32 v{G4}, 0\nv_mov_b32 v{G4+1}, 1\nv_mov_b32 v{G4+2}, 0\nv_mov_b32 v{G4+3}, 1\nv_mov_b32 v{ONE}, 0x3f803f80")
    a(f"s_mov_b32 s{T+2}, 0x01010101\ns_mov_b32 s{T+3}, 0x01010101\ns_mov_b32 s{spin}, {SPIN}")
    a("s_waitcnt lgkmcnt(0)\ns_barrier")
    stamp(a, "zc.epb")
    ep2_sum(a, 88, 96, OUT)
    for e in range(4): a(f"v_cvt_pk_bf16_f32 v{vRES+e}, v{OUT+2*e}, v{OUT+1+2*e}")
    for e in range(4): a(f"v_dot2c_f32_bf16 v{G4}, v{vRES+e}, v{ONE}\nv_dot2c_f32_bf16 v{G4+2}, v{vRES+e}, v{vRES+e}")
    a("s_nop 0")
    dpp_red8(a, [G4, G4+2])
    a(f"s_mov_b64 exec, s[{T+2}:{T+3}]")
    rstore(a, f"buffer_store_dwordx4 v[{G4}:{G4+3}], v{GA}, s[{S_WS}:{S_WS+3}], s{sga} offen")
    a("s_mov_b64 exec, -1")
    stamp(a, "proj.st")
    for c in range(4):
        for x in frag_reads(f"v{W1T+4*c}", SG_, c*8192): a(x)
    if not C.sent:
        for f in range(4):
            for x in w2_reads(f): a(x)
    unpack8(a, 80, vRES)
    LP = a.label(); LD = a.label()
    a(f"{LP}:")
    a(f"buffer_load_dwordx4 v[68:71], v{GB}, s[{S_WS}:{S_WS+3}], s{sgb} offen sc1")
    a("s_waitcnt vmcnt(0)\nv_and_b32 v72, v69, v71\nv_cmp_ne_u32 vcc, 1, v72")
    a(f"s_cbranch_vccz {LD}")
    a(f"s_sub_u32 s{spin}, s{spin}, 1\ns_cmp_lg_u32 s{spin}, 0\ns_cbranch_scc1 {LP}")
    a(f"{LD}:")
    stamp(a, "proj.stat")
    dpp_red8(a, [68, 70])
    a(f"v_mul_f32 v68, {f2u(1/512)}, v68\nv_mul_f32 v70, {f2u(1/512)}, v70")
    a("v_fma_f32 v70, -v68, v68, v70\nv_max_f32 v70, 0, v70")
    a(f"v_mov_b32 v71, {f2u(1e-10)}\nv_fmac_f32 v71, {f2u(1.0 + 1e-5)}, v70\nv_rsq_f32 v70, v71\ns_nop 0")
    a("v_mul_f32 v72, v68, v70\nv_sub_f32 v72, 0, v72\nv_mov_b32 v71, v70\nv_mov_b32 v73, v72")
    for e in range(0, 8, 2): a(f"v_pk_fma_f32 v[{80+e}:{81+e}], v[{80+e}:{81+e}], v[70:71], v[72:73]")
    for e in range(4): a(f"v_cvt_pk_bf16_f32 v{76+e}, v{80+2*e}, v{81+2*e}")
    a(f"buffer_store_dwordx4 v[76:79], v{HA}, s[{S_WS}:{S_WS+3}], s{sh} offen sc1")
    stamp(a, "zc.hst")
    if C.sent:
        for f in range(4):
            for x in w2_reads(f): a(x)
    assert C.x4 != 1
    a("s_waitcnt lgkmcnt(0)")
    rest3 = [8, 9, 10, 11, 4, 5, 6, 7]
    assert n3[1] <= 4
    for f in rest3[:n3[1]]: w2_dma(a, f)
    a(f"s_waitcnt vmcnt({n3[1]})\ns_barrier")
    stamp(a, "proj.end")
    if_wave_eq(a, 0, lambda: publish(a, "H", sJ))
    if C.sent:
        L = a.label()
        a(f"s_cmp_lg_u32 s{sL}, 0\ns_cbranch_scc1 {L}\nv_mov_b32 v72, -1\nv_mov_b32 v73, -1\nv_mov_b32 v74, -1\nv_mov_b32 v75, -1")
        a(f"s_add_u32 s{T}, s{ost}, {LSTRIDE}\nbuffer_store_dwordx4 v[72:75], v{vL16}, s[{S_WS}:{S_WS+3}], s{T} offen sc1\n{L}:")
    for f in rest3[n3[1]:]: w2_dma(a, f)
    if C.x4 == 2: w2x_dma(a)

EPO = 61440
W1T = 128

def flag_addr(a, kind, sd):
    a(f"s_lshl_b32 s{sd}, s{sJ}, 10\ns_add_u32 s{sd}, s{sd}, {FL[kind]*128}\ns_add_u32 s{sd}, s{sd}, s{sFL}")
    a(f"s_lshr_b32 s{T+1}, s{sI}, 2\ns_lshl_b32 s{T+1}, s{T+1}, 7\ns_add_u32 s{sd}, s{sd}, s{T+1}")

def apoll_issue(a, sd, v):
    a(f"s_mov_b64 exec, 1\nbuffer_load_dword v{v}, v{vL16}, s[{S_WS}:{S_WS+3}], s{sd} offen sc1\ns_mov_b64 exec, -1")

def apoll_check(a, sd, v, n):
    LP = a.label(); LD = a.label()
    a(f"s_mov_b64 exec, 1\ns_mov_b32 s{T+1}, {SPIN}\n{LP}:\nv_cmp_ne_u32 vcc, {n}, v{v}\ns_cbranch_vccz {LD}")
    a(f"buffer_load_dword v{v}, v{vL16}, s[{S_WS}:{S_WS+3}], s{sd} offen sc1\ns_waitcnt vmcnt(0)")
    a(f"s_sub_u32 s{T+1}, s{T+1}, 1\ns_cmp_lg_u32 s{T+1}, 0\ns_cbranch_scc1 {LP}\n{LD}:\ns_mov_b64 exec, -1")

def mlp(a):
    R = 4
    EP = STG
    ERA, UA, YA5, B1, YA4, C1, RA_, WA_, ADD = 21, 20, 22, 24, 28, 29, 30, 128, 136
    ACC, F, ET, PV_, B2 = 48, [80, 96], (48 if C.x4 else 112), 19, 18
    TT = 128
    NW2 = 24 if C.x4 else 28
    xr = [x for c in range(4) for x in frag_reads(w2_reg(24+c), 17, c*8192)] if C.x4 else []
    src4, dst, qb, src5, rot, ust, fa, fb, gc2, ewb = T+2, T+3, T+4, T+5, T+6, T+7, T+8, T+9, T+11, T+12
    a(f"v_lshlrev_b32 v{ERA}, 1, v{vN}\ns_lshl_b32 s{T}, s{sI}, 7")
    a(f"buffer_load_ushort v{B2}, v{ERA}, s[{S_B2}:{S_B2+3}], s{T} offen")
    a(f"s_lshr_b32 s{T}, s{sW}, 1\ns_and_b32 s{T+1}, s{sW}, 1\ns_lshl_b32 s{T+1}, s{T+1}, 11\ns_add_u32 s{T+1}, s{T+1}, s{sLB}")
    a(f"s_mul_i32 s{src5}, s{sJ}, {2*114688}\ns_mul_i32 s{dst}, s{T}, {28*1024}\ns_add_u32 s{src5}, s{src5}, s{dst}\ns_add_u32 s{src5}, s{src5}, s{T+1}\ns_add_u32 s{src5}, s{src5}, {WS_U}")
    a(f"s_lshl_b32 s{src4}, s{sJ}, 18\ns_lshl_b32 s{dst}, s{T}, 15\ns_add_u32 s{src4}, s{src4}, s{dst}\ns_add_u32 s{src4}, s{src4}, s{T+1}\ns_add_u32 s{src4}, s{src4}, {WS_H}")
    a(f"s_mul_i32 s{ust}, s{sJ}, {2*114688}\ns_lshl_b32 s{dst}, s{sI}, 12\ns_add_u32 s{ust}, s{ust}, s{dst}\ns_lshl_b32 s{dst}, s{T}, 9\ns_add_u32 s{ust}, s{ust}, s{dst}\ns_add_u32 s{ust}, s{ust}, s{T+1}\ns_add_u32 s{ust}, s{ust}, {WS_U}")
    a(f"s_lshl_b32 s{dst}, s{sW}, 11\ns_lshl_b32 s{T}, s{T}, 12")
    a(f"v_bfe_u32 v16, v{vL}, 3, 2\nv_lshlrev_b32 v{YA5}, 9, v16\nv_and_b32 v16, 3, v{vL}\nv_lshl_add_u32 v{YA5}, v16, 7, v{YA5}\nv_bfe_u32 v16, v{vL}, 2, 1\nv_lshl_add_u32 v{YA5}, v16, 6, v{YA5}")
    a(f"v_bfe_u32 v16, v{vL}, 1, 1\nv_bfe_u32 v17, v{vL}, 4, 1\nv_lshl_add_u32 v16, v17, 1, v16\nv_lshrrev_b32 v17, 5, v{vL}\nv_xor_b32 v16, v16, v17\nv_lshl_add_u32 v{YA5}, v16, 4, v{YA5}")
    a(f"v_add_u32 v{YA5}, s{T}, v{YA5}\nv_xor_b32 v{YA5+1}, 32, v{YA5}")
    a(f"s_sub_u32 s{T}, s{T}, s{sVW}\ns_sub_u32 s{T}, s{T}, {SVO}\nv_add_u32 v{YA4}, s{T}, v{vTRF}")
    a(f"s_and_b32 s{T}, s{sW}, 1\ns_lshl_b32 s{T}, s{T}, 11\nv_add_u32 v31, s{T}, v{YA4}")
    a(f"s_lshl_b32 s{rot}, s{sJR}, 12")
    qkv_base8(a, qb)
    flag_addr(a, "U", fa); flag_addr(a, "UB", fb)
    LS = a.label(); LM = a.label()
    a(f"s_cmp_ge_u32 s{sI}, 28\ns_cbranch_scc1 {LS}")
    vm = VM()
    a(f"s_and_b32 s{T}, s{sW}, 1\ns_lshr_b32 s{T+1}, s{sW}, 1")
    a(f"s_lshl_b32 s{ewb}, s{T}, 14\ns_add_u32 s{ewb}, s{ewb}, {EP}\ns_lshl_b32 s{T+10}, s{T+1}, 10\ns_add_u32 s{T+10}, s{T+10}, s{ewb}\nv_add_u32 v{ERA}, s{T+10}, v{vL16}")
    a(f"s_lshl_b32 s{T+10}, s{T+1}, 12\ns_add_u32 s{ewb}, s{ewb}, s{T+10}")
    a(f"s_lshl_b32 s{T}, s{T}, 6\ns_lshl_b32 s{T+10}, s{sI}, 7\ns_add_u32 s{T}, s{T}, s{T+10}\nv_lshlrev_b32 v16, 3, v{vC}")
    a(f"buffer_load_dwordx2 v[{B1+2}:{B1+3}], v16, s[{S_B1}:{S_B1+3}], s{T} offen")
    a(f"v_lshrrev_b32 v17, 5, v{vL}\ns_lshr_b32 s{T+1}, s{T+1}, 1\ns_lshl_b32 s{T+1}, s{T+1}, 1\nv_or_b32 v17, s{T+1}, v17\nv_lshlrev_b32 v17, 4, v17\nv_lshlrev_b32 v{UA}, 3, v{vL}\nv_xor_b32 v{UA}, v{UA}, v17")
    c1 = -2*0.7978845608028654*1.4426950408889634
    a(f"s_mov_b32 s{gc2}, {f2u(c1*0.044715)}\nv_mov_b32 v{C1}, {f2u(c1)}")
    if_wave_eq(a, 0, lambda: poll(a, "H", sJ, 32))
    a("s_barrier")
    stamp(a, "mlp1.polled"); stamp(a, "z3.poll")
    def act(p, s):
        if p == 4: a(f"s_add_u32 s{T}, s{rot}, {(s & 7)*4096}\ns_and_b32 s{T}, s{T}, 0x7fff\ns_add_u32 s{T}, s{T}, s{src4}\ns_add_u32 m0, s{dst}, {(s % R)*16384}" + (f"\ns_add_u32 s{T}, s{T}, 131072" if s >= 8 else "\ns_nop 0"))
        else: a(f"s_add_u32 m0, s{dst}, {(s % R)*16384}\ns_add_u32 s{T}, s{src5}, {(s//7)*114688 + (s % 7)*4096}")
        nt = " nt" if C.ntact else ""
        a(f"buffer_load_dwordx4 v{vL16}, s[{S_WS}:{S_WS+3}], s{T} offen sc1{nt} lds\nbuffer_load_dwordx4 v{vL16}, s[{S_WS}:{S_WS+3}], s{T} offen offset:1024 sc1{nt} lds")
        vm.add(("act", p, s), 2)
    def reads(p, s):
        out = []; o = (s % R)*16384
        for t in range(4):
            b = F[s & 1] + 4*t
            if p == 4: out += [f"ds_read_b64_tr_b16 v[{b}:{b+1}], v{YA4} offset:{o + t*1024}", f"ds_read_b64_tr_b16 v[{b+2}:{b+3}], v{YA4} offset:{o + t*1024 + 256}"]
            else: out.append(f"ds_read_b128 v[{b}:{b+3}], v{YA5 + (t & 1)} offset:{o + (t >> 1)*2048}")
        return out
    def mfmas(p, s):
        out = []
        n = 8 if p == 4 else 7
        y = s // n
        for t in range(4):
            f = 4*(s % n) + t
            if p == 4: X = f"a[{4*f}:{4*f+3}]" if f < 28 else f"v[{W1T+4*(f-28)}:{W1T+4*(f-28)+3}]"
            else: r = w2_reg(f); X = f"{r[0]}[{int(r[1:])}:{int(r[1:])+3}]"
            Y = f"v[{F[s & 1]+4*t}:{F[s & 1]+4*t+3}]"
            c = "0" if f == 0 else f"v[{ACC+16*y}:{ACC+16*y+15}]"
            A_, B_ = (Y, X) if p == 4 else (X, Y)
            out.append(f"v_mfma_f32_32x32x16_bf16 v[{ACC+16*y}:{ACC+16*y+15}], {A_}, {B_}, {c}")
        return out
    RW = 31
    def inring(f): return C.optx and 20 <= f < 24
    def wdma(fs):
        for f in fs:
            if inring(f):
                a(f"s_add_u32 m0, s{dst}, {((f-20) >> 1)*16384 + (f & 1)*1024}\ns_add_u32 s{T}, s{sW2S}, {f*16*4096}")
                a(f"buffer_load_dwordx4 v{vF2}, s[{S_W2}:{S_W2+3}], s{T} offen lds")
            else: w2_dma(a, f)
            vm.add(("w", f))
    def wr(fs): return [x for f in fs for x in (frag_reads(w2_reg(f), RW, ((f-20) >> 1)*16384 + (f & 1)*1024) if inring(f) else w2_reads(f))]
    def wread(fs):
        for x in wr(fs): a(x)
    def ep_w(y, rs=range(16)):
        o = [f"ds_write_addtid_b32 v{ACC+16*y+r} offset:{EPO + r*256}" for r in rs]
        o[0] = f"s_sub_u32 m0, s{ewb}, {EPO}\ns_nop 0\n" + o[0]
        return o
    def ep_r(): return [f"ds_read_b128 v[{ET+4*p}:{ET+4*p+3}], v{ERA} offset:{p*4096}" for p in range(4)]
    def ep_math():
        o = []
        for e in range(4): o += [f"v_add_f32 v{ET+e}, v{ET+e}, v{ET+4+e}", f"v_add_f32 v{ET+8+e}, v{ET+8+e}, v{ET+12+e}"]
        for e in range(4): o.append(f"v_add_f32 v{ET+e}, v{ET+e}, v{B1+e}")
        for e in range(4): o.append(f"v_add_f32 v{ET+e}, v{ET+e}, v{ET+8+e}")
        G = ET+4
        for e in range(4): o.append(f"v_mul_f32 v{G+e}, v{ET+e}, v{ET+e}")
        for e in range(4): o.append(f"v_fma_f32 v{G+e}, v{G+e}, s{gc2}, v{C1}")
        for e in range(4): o.append(f"v_mul_f32 v{G+e}, v{G+e}, v{ET+e}")
        for e in range(4): o.append(f"v_exp_f32 v{G+e}, v{G+e}")
        for e in range(4): o.append(f"v_add_f32 v{G+e}, 1.0, v{G+e}")
        for e in range(4): o.append(f"v_rcp_f32 v{G+e}, v{G+e}")
        for e in range(4): o.append(f"v_mul_f32 v{ET+e}, v{ET+e}, v{G+e}")
        o += [f"v_cvt_pk_bf16_f32 v{ET+8}, v{ET}, v{ET+1}", f"v_cvt_pk_bf16_f32 v{ET+9}, v{ET+2}, v{ET+3}"]
        return o
    def ep_store(y):
        if y: a(f"s_add_u32 s{ust}, s{ust}, 114688")
        a(f"buffer_store_dwordx2 v[{ET+8}:{ET+9}], v{UA}, s[{S_WS}:{S_WS+3}], s{ust} offen sc1")
        vm.add(("st", y))
    def body(m, lds, valu=()):
        lds = list(lds); valu = list(valu)
        nl = max(C.ldsper, -(-len(lds)//4)); nv = -(-len(valu)//4)
        for k in range(4):
            if k < len(m): a(m[k])
            for x in lds[k*nl:(k+1)*nl]: a(x)
            for x in valu[k*nv:(k+1)*nv]: a(x)
    for s in range(C.init): act(4, s)
    late = [int(c) for c in (C.schx if C.optx else C.schw)]
    assert sum(late) == 8 and len(late) == 6
    nxt = 12
    em = ep_math()
    deferred = []
    E_ = [int(c, 16) for c in C.eps]
    for s in range(16):
        tags = [("act", 4, s)] + ([("st", 0)] if s == C.pubs else [])
        a(f"s_waitcnt vmcnt({vm.need(*tags)}) lgkmcnt(0)\ns_barrier")
        if s not in (2, 3, 5, 6, 7): stamp(a, f"z4.{s:02d}")
        if s == 0: stamp(a, "mlp1.b0")
        if C.defer == 2 and s not in (E_[0], E_[1]):
            for k in deferred: act(4, k)
            deferred = []
        lds = reads(4, s); valu = []
        if s == 0: valu = [f"v_lshlrev_b32 v{B1}, 16, v{B1+2}", f"v_and_b32 v{B1+1}, 0xffff0000, v{B1+2}", f"v_lshlrev_b32 v{B1+2}, 16, v{B1+3}", f"v_and_b32 v{B1+3}, 0xffff0000, v{B1+3}"]
        if C.wfirst and s == E_[0] == E_[1]: lds = ep_w(0) + lds
        else:
            if s == E_[0]: lds += ep_w(0, range(8))
            if s == E_[1]: lds += ep_w(0, range(8, 16))
        if s == 0 and C.x4:
            a(f"v_subrev_u32 v17, {SVO}, v{vTRF}"); lds += xr
        if s == E_[2]: lds += ep_r()
        if s == E_[3]: valu += em[:24]
        if s == E_[4]: valu += em[24:]
        if s == E_[5]: lds += wr(range(4, 8))
        if s == E_[6]: lds += wr(range(8, 12))
        body(mfmas(4, s-1) if s else [], lds, valu)
        if s == C.pubs:
            stamp(a, "mlp1.pubA")
            if_wave_eq(a, 0, lambda: publish(a, "U", sJ))
        if s == E_[4]: ep_store(0)
        if s == 0:
            for k in range(C.init, R): act(4, k)
        if s >= 1 and s - 1 + R < 16:
            deferred.append(s - 1 + R)
            if not (C.defer and s in (E_[0], E_[1])):
                for k in deferred: act(4, k)
                deferred = []
        if s >= 11:
            n = late[s-11]
            assert nxt + n <= 12 + 4*(s > E_[5]) + 4*(s > E_[6]) + 2*(s >= 13) + 2*(s >= 14)
            wdma(range(nxt, nxt + n)); nxt += n
    assert E_[0] >= 9 and E_[2] > E_[1] and E_[3] > E_[2] and E_[5] >= 10 and E_[6] >= 11
    a("s_waitcnt lgkmcnt(0)")
    for x in mfmas(4, 15): a(x)
    stamp(a, "mlp1.loop"); stamp(a, "z4.loop")
    a("s_nop 9")
    for x in ep_w(1): a(x)
    if C.pubs >= 16: a(f"s_waitcnt vmcnt({vm.need(('st', 0))})")
    a("s_waitcnt lgkmcnt(0)\ns_barrier")
    stamp(a, "z4.ep")
    for x in ep_r(): a(x)
    if C.pubs >= 16: if_wave_eq(a, 0, lambda: publish(a, "U", sJ))
    wdma(range(nxt, 20))
    if C.n1 == 0: apoll_issue(a, fa, PV_); vm.add("pa")
    a("s_waitcnt lgkmcnt(0)")
    for x in em: a(x)
    ep_store(1)
    stamp(a, "mlp1.st"); stamp(a, "z4.st")
    npre = 20 + C.n1 + C.n2
    if C.n1:
        a(f"s_waitcnt vmcnt({vm.need(('w', 15))})")
        wread(range(12, 16))
        a("s_waitcnt lgkmcnt(0)")
        apoll_issue(a, fa, PV_); vm.add("pa")
        wdma(range(20, 20 + C.n1))
        a(f"s_waitcnt vmcnt({vm.need('pa')})")
        wread(range(16, 20))
        a("s_barrier")
        stamp(a, "z4.xdrain")
        if_wave_eq(a, 0, lambda: publish(a, "UB", sJ))
        a("s_waitcnt lgkmcnt(0)")
        wdma(range(20 + C.n1, npre))
        first = 0
    else:
        a(f"s_waitcnt vmcnt({vm.need('pa')})")
        wread(range(12, 20))
        apoll_check(a, fa, PV_, 28)
        act(5, 0); act(5, 1)
        a(f"s_waitcnt vmcnt({vm.need(('st', 1))})\ns_barrier")
        stamp(a, "z4.xdrain")
        if_wave_eq(a, 0, lambda: publish(a, "UB", sJ))
        first = 2
    a(f"s_branch {LM}")
    a(f"{LS}:")
    a("s_waitcnt vmcnt(0)")
    if C.x4:
        a(f"v_subrev_u32 v17, {SVO}, v{vTRF}")
        for x in xr: a(x)
    wread(range(4, 12)); a("s_waitcnt lgkmcnt(0)")
    keep = vm.ops[:]
    wdma(range(12, 20))
    a("s_waitcnt vmcnt(0)")
    wread(range(12, 20)); a("s_waitcnt lgkmcnt(0)")
    wdma(range(20, npre))
    a(f"v_mov_b32 v{PV_}, 28\ns_waitcnt vmcnt(0)")
    if_wave_eq(a, 0, lambda: poll(a, "U", sJ, 28))
    a("s_barrier")
    for k in range(first): act(5, k)
    vm.ops = keep
    a(f"{LM}:")
    if first == 0: apoll_check(a, fa, PV_, 28)
    stamp(a, "mlp2.polled"); stamp(a, "z4.zpolled")
    for k in range(first, C.init5): act(5, k)
    ep2_read_addr(a, RA_, EP+16, E+32768, ewb, TT)
    sch = [int(c) for c in C.sch2]
    extra = list(range(12))
    qe = [int(c) for c in C.qe]
    assert sum(sch[:5]) + sum(qe) <= 7
    def point(p):
        for _ in range(sch[p]):
            k = extra.pop(0); qkv_piece8(a, qb, k); vm.add(("x", k))
    sb = C.sb
    na = max(first, C.init5); nw = npre
    for s in range(14):
        tags = [("act", 5, s)]
        if s == sb: tags.append("pb")
        if s == 5: tags.append(("w", 23))
        if s == 6 and not C.x4: tags.append(("w", 27))
        a(f"s_waitcnt vmcnt({vm.need(*tags)}) lgkmcnt(0)\ns_barrier")
        if s not in (8, 9, 10): stamp(a, f"z5.{s:02d}")
        if s == 0: stamp(a, "mlp2.b0")
        lds = reads(5, s); valu = []
        if s == 0:
            for e in range(4): valu += [f"v_lshlrev_b32 v{ADD+2*e}, 16, v{vRES+e}", f"v_and_b32 v{ADD+1+2*e}, 0xffff0000, v{vRES+e}"]
            valu.append(f"v_lshlrev_b32 v{B2}, 16, v{B2}")
            for e in range(8): valu.append(f"v_add_f32 v{ADD+e}, v{ADD+e}, v{B2}")
        if s == 5: lds += wr(range(20, 24))
        if s == 6 and not C.x4: lds += wr(range(24, 28))
        if s == C.wa5: lds += ep2_writes(ACC, EP+16, ewb)
        body(mfmas(5, s-1) if s else [], lds, valu)
        if s == sb:
            apoll_check(a, fb, PV_, 28)
            stamp(a, "mlp2.pollB")
        if s == C.pbi: apoll_issue(a, fb, PV_); vm.add("pb")
        lim = min(14, s + 4, 7 if s < sb else 14)
        want = min(lim, na + 1) if nw < NW2 and not C.deep else lim
        want = max(want, min(lim, s + 3))
        while na < want: act(5, na); na += 1
        if nw < NW2: wdma((nw, nw+1)); nw += 2
        if s == C.q5s and C.pret:
            a(f"s_lshl_b32 s{T}, s{sL}, 30\ns_add_u32 s{T}, s{T}, s{sXO}\nbuffer_load_dword v{TT+1}, v{vXO}, s[{S_XD}:{S_XD+3}], s{T} offen sc1")
            a(f"s_lshl_b32 s{T}, s{sI}, 3\ns_add_u32 s{T}, s{T}, s{sJ}\ns_lshl_b32 s{T}, s{T}, 10\ns_add_u32 s{T}, s{T}, {WS_ST2}\nv_lshlrev_b32 v{TT+2}, 3, v{vL}")
            a(f"buffer_load_dword v{TT+2}, v{TT+2}, s[{S_WS}:{S_WS+3}], s{T} offen sc1")
            vm.add("pre", 2)
        if s == C.q5s and C.q5:
            a(f"s_lshr_b32 s{T}, s2, 3\ns_lshl_b32 s{T}, s{T}, 3\ns_add_u32 s{T}, s{T}, s{sW}\ns_mul_i32 s{T}, s{T}, {6*1024}")
            if C.q5 == 1: a(f"s_add_u32 s{T}, s{T}, 384\nv_min_u32 v{TT}, 5, v{vL}\nv_lshlrev_b32 v{TT}, 10, v{TT}")
            else: a(f"v_min_u32 v{TT}, 47, v{vL}\nv_lshlrev_b32 v{TT}, 7, v{TT}")
            a(f"buffer_load_dword v{TT}, v{TT}, s[{S_QKV}:{S_QKV+3}], s{T} offen"); vm.add("q5")
        if s >= 11:
            for _ in range(qe[s-11]):
                k = extra.pop(0); qkv_piece8(a, qb, k); vm.add(("x", k))
    assert na == 14 and nw == NW2
    a(f"s_waitcnt lgkmcnt({15 if C.wa5 == 13 else 0})")
    for x in mfmas(5, 13): a(x)
    stamp(a, "mlp2.loop")
    a("s_nop 9")
    OUT = 80
    for x in ep2_writes(ACC+16, E+32768, ewb): a(x)
    Lq = a.label()
    a(f"s_cmp_lg_u32 s{sL}, 0\ns_cbranch_scc1 {Lq}")
    point(0); point(1); point(2)
    a(f"v_mov_b32 v20, 0\nv_mov_b32 v21, 0\nv_mov_b32 v22, 0x3f803f80\nv_lshlrev_b32 v23, 3, v{vN}\ns_mov_b32 s{T+10}, 0x01010101\ns_mov_b32 s{T+11}, 0x01010101")
    a(f"s_lshl_b32 s{T+9}, s{sI}, 3\ns_add_u32 s{T+9}, s{T+9}, s{sJ}\ns_lshl_b32 s{T+9}, s{T+9}, 10\ns_add_u32 s{T+9}, s{T+9}, {WS_ST2}")
    a(f"{Lq}:\ns_waitcnt lgkmcnt(0)\ns_barrier")
    ep2_sum(a, RA_, ADD, OUT)
    point(3)
    for e in range(4): a(f"v_cvt_pk_bf16_f32 v{vRES+e}, v{OUT+2*e}, v{OUT+1+2*e}")
    if C.finplain:
        Lf = a.label()
        a(f"s_cmp_eq_u32 s{sL}, 0\ns_cbranch_scc1 {Lf}\nbuffer_store_dwordx4 v[{vRES}:{vRES+3}], v{vXO}, s[{S_XD}:{S_XD+3}], s{sXO} offen{' nt' if C.finplain == 2 else ' sc1' if C.finplain == 3 else ''}\ns_branch L_fin\n{Lf}:")
    rstore(a, f"buffer_store_dwordx4 v[{vRES}:{vRES+3}], v{vXO}, s[{S_XD}:{S_XD+3}], s{sXO} offen", bulk=True)
    stamp(a, "mlp2.st")
    a(f"s_cmp_lg_u32 s{sL}, 0\ns_cbranch_scc1 L_fin")
    for e in range(4): a(f"v_dot2c_f32_bf16 v20, v{vRES+e}, v22\nv_dot2c_f32_bf16 v21, v{vRES+e}, v{vRES+e}")
    a("s_nop 0")
    dpp_red8(a, [20, 21])
    a(f"s_mov_b64 exec, s[{T+10}:{T+11}]")
    rstore(a, f"buffer_store_dwordx2 v[20:21], v23, s[{S_WS}:{S_WS+3}], s{T+9} offen", bulk=True)
    a("s_mov_b64 exec, -1")
    point(4)
    a(f"s_waitcnt vmcnt({sch[4]})\ns_barrier")
    stamp(a, "mlp2.end")
    if_wave_eq(a, 4, lambda: publish(a, "X", sI))
    point(5)

def main(out):
    a = Asm()
    K = NAME + "_kernel"
    a.L.append(f".globl {K}\n.p2align 8\n.type {K},@function\n{K}:")
    prologue(a)
    a(f"buffer_load_dwordx4 v[{vRES}:{vRES+3}], v{vXO}, s[{S_XS}:{S_XS+3}], s{sXO} offen")
    stamp(a, "entry2")
    a(f"s_cmp_lt_u32 s{sW}, 4\ns_cbranch_scc1 L_p1_cons")
    layer0_helpers(a)
    ool_at = len(a.L)
    a("L_layer:")
    ool = phase1(a)
    a.L.append("; ======== P2: attention")
    phase2(a)
    phase3(a)
    mlp(a)
    a(f"s_mov_b32 s{S_XS}, s{S_XD}\ns_mov_b32 s{S_XS+1}, s{S_XD+1}\ns_mov_b32 s{S_XD}, s{sOUT}\ns_mov_b32 s{S_XD+1}, s{sOUT+1}")
    a(f"s_mov_b32 s{sL}, 1\ns_mov_b32 s{sLB}, {LSTRIDE}")
    if C.stamp: a("v_mov_b32 v7, v6")
    a("s_branch L_layer")
    a("L_fin:")
    if C.padat == "end": stamp(a, "end")
    if C.stamp:
        a("s_waitcnt vmcnt(0)")
        stamp(a, "fin")
        a(f"s_lshl_b32 s{T}, s2, 3\ns_add_u32 s{T}, s{T}, s{sW}\ns_lshl_b32 s{T}, s{T}, 9\ns_add_u32 s{T}, s{T}, {WS_STAMP}\nv_lshlrev_b32 v16, 2, v{vL}")
        a(f"buffer_store_dword v7, v16, s[{S_WS}:{S_WS+3}], s{T} offen\nbuffer_store_dword v6, v16, s[{S_WS}:{S_WS+3}], s{T} offen offset:256")
    a("L_end:\ns_endpgm")
    softmax_safe(a)
    b = Asm()
    for x in ool[-13:-12] + [o for o in ool if o is not ool[-13]] if False else ool: b(x)
    a.L[ool_at:ool_at] = b.L
    DOC = """;
; One persistent launch, 256 workgroups (one per CU) x 8 waves.  Workgroup (i, j): i = 64-token block, j = 4-head group / 64-channel block.
; directly; row sums from a ones row; checked, with a true-max two-pass fallback)  ->  P3 output projection + residual + LayerNorm
; statistics exchange  ->  P4/P5 token-mixing MLP as one pipeline over two channel halves, weights resident in registers.
; Hand-offs go through d_ws: write-through stores + counters/flags that are cleared at start (arrival counted in d_debug);
"""
    s = HDR + "; @launch grid=(256,1,1) block=(512,1,1) lds=163840\n" + DOC
    s += '.amdgcn_target "amdgcn-amd-amdhsa--gfx950"\n.text\n' + a.text().replace("CODE_SPAN", "L_end-L_pc0").replace("SPAN2", "L_end-L_pc1")
    s += f""".section .rodata,"a"
.p2align 6
.amdhsa_kernel {K}
  .amdhsa_next_free_vgpr 256
  .amdhsa_next_free_sgpr 102
  .amdhsa_accum_offset {NARCH}
  .amdhsa_group_segment_fixed_size 0
  .amdhsa_kernarg_size 88
  .amdhsa_user_sgpr_count 2
  .amdhsa_user_sgpr_kernarg_segment_ptr 1
  .amdhsa_system_sgpr_workgroup_id_x 1
.end_amdhsa_kernel
"""
    open(out, "w").write(s)
    if C.stamp: open(out + ".stamps", "w").write("\n".join(STAMPS))

if __name__ == "__main__":
    for arg in sys.argv[2:]:
        k, v = arg.split("="); setattr(C, k, v if isinstance(getattr(C, k), str) else type(getattr(C, k))(int(v)))
    main(sys.argv[1])
```

```python
import sys, struct
NAME = "interleave_layers__softmax_full_mha__mixer_token_mlp__prompt"
HDR = open("cdna_kernels/%s.s.ref" % NAME).read().split("; Override launch")[0]
MB = 1 << 20
WS_KV, WS_O, WS_H, WS_U, WS_X2, WS_ST = 0*MB, 4*MB, 6*MB, 8*MB, 4*MB, 12*MB
LSTRIDE = 16*MB
WS_FLAG = 32*MB
WS_XT = WS_FLAG + 131072
WS_STAMP = 40*MB
KA = dict(x=0, wqkv=8, wo=16, w1=32, b1=40, w2=48, b2=56, out=64, dbg=72, ws=80)
SZ = dict(x=2048*512*2, wqkv=512*1536*2, wo=512*512*2, w1=2048*1792*2, b1=1792*2, w2=1792*2048*2, b2=2048*2,
          out=2048*512*2, dbg=256, ws=1 << 28)
FL = dict(KV=0, H=64, U=128, O=192, X=224, UB=256, KL=320)
COLK = ('KV', 'H', 'U', 'UB')
SPIN = 200000
NARCH = 144

class Cfg:
    stamp = False
    prio = True
    lowtiles = 1
    D = 3
    nB = 12
    sch1 = '033343'
    sch2 = '003040'
    sch3 = '426'
    stouch = 0
    p1touch = 0
    now1 = 0
    local = 1
    schw = '001124'
    eps = '99abbbc'
    wlast = 1
    defer = 0
    optx = 0
    n1 = 0
    n2 = 0
    deep = 1
    wa5 = 13
    xp = 2
    early = 6
    q5 = 1
    q5s = 10
    lf = 1
    lfi = 1
    lfc = 2
    c3 = 1
    pub12 = 1
    w1nt = 0
    w2nt = 0
    xrot = 1
    xnt = 0
    lateinit = 1
    arrs = 4
    dbgs = 9
    sent = 1
    ldo = 1
    preto = 1
    sentwait = 1
    fixed = 1
    lprio = 0
    wo1 = 8
    x4 = 2
    xm = 0
    padat = ''
    padus = 0
    padl = 0
    qe = '000'
    w1a = 0
    xr8 = 1
    cpos = 11
    mp = '25b'
    vmask = 0
    kvsame = 0
    prets = 1
    w2pos = 0
    skip7 = 1
    wfirst = 0
    finplain = 3
    vtlb = 0
    vsh = 21
    ntkv = 0
    ntact = 0
    qrot = 0
    w1mask = 7
    w1e = -2
    schx = '01434'
    pbi = 2
    sb = 4
    init5 = 4
    schv = '22220'
    pubs = 14
    pbs = 3
    init = 4
    pae = 1
    order = 1
    ldsper = 3
    epa = 0
    t2 = 28
    sonly = ''
    tmix = 1
    cpf = 0
    cpf2 = 0
    span2 = 12288
    span = 32640
    early2 = 0
    ldata = 1
    pret = 1
    prett = 24
    hs1 = '322211222000'
    hs0 = '222222220000'
    h0first = 4
    h0second = 4
    w1t = 9
    p1per = 4
    qtouch = 2
    pper = 16
    plow = 4
    split = 1
    kvfix = 0
    xsel = 'wot'
    nofirst = 0
    tlb = 0
    lowhalf = 3
    jrot = 6
    nox = 0
    notr = 0
    loop = 0
    pad = 0
    align = 3
    nQ = 12
C = Cfg()

class Asm:
    def __init__(self): self.L = []; self.n = 0
    def __call__(self, s):
        for line in s.split("\n"):
            line = line.strip()
            if line: self.L.append(("" if line.endswith(":") else "    ") + line)
    def label(self, p="L"):
        self.n += 1; return f"{p}{self.n}"
    def text(self): return "\n".join(self.L) + "\n"

def f2u(x): return hex(struct.unpack("<I", struct.pack("<f", x))[0])

S_XS, S_QKV, S_WS, S_WO, S_W1, S_W2, S_B1, S_B2, S_XD, S_DBG, S_KV = 8, 12, 16, 20, 24, 28, 32, 36, 40, 44, 80
sI, sJ, sW, sL, sLB, sFL = 48, 49, 50, 51, 52, 53
sW2S = 54
sVW = 55
sLOC = 56
sXO = 57
sOUT = 58
sJR = 83
sR2 = 80
T = 60
sST = 76
sRET = 84
vL, vN, vC, vL16, vXO = 1, 2, 3, 4, 5
vRES = 8
vF2, vTRF, vWQ = 12, 13, 14
TV = 16
E, V = 0, 65536
QX = V + 11*8192
SVO = 32768
STG = V

STAMPS = []
def stamp(a, name):
    if C.padat and name == C.padat:
        L = a.label(); L2 = a.label()
        a(f"s_cmp_lg_u32 s{sL}, {C.padl}\ns_cbranch_scc1 {L2}\n{L}:\ns_memrealtime s[{sST}:{sST+1}]\ns_waitcnt lgkmcnt(0)\ns_sub_u32 s{sST}, s{sST}, s98\ns_cmp_lt_u32 s{sST}, {C.padus*100}\ns_cbranch_scc1 {L}\n{L2}:")
    if not C.stamp: return
    if C.sonly:
        if not (name == "start" or any(name.startswith(p) for p in C.sonly.split(","))): return
    elif name.startswith("z") or name.startswith("entry"): return
    k = len(STAMPS); assert k < 32
    a(f"s_memtime s[{sST}:{sST+1}]\ns_memrealtime s[{sST+2}:{sST+3}]\ns_waitcnt lgkmcnt(0)")
    a(f"v_writelane_b32 v6, s{sST}, {k}\nv_writelane_b32 v6, s{sST+2}, {k+32}")
    STAMPS.append(name)

def dpp_red8(a, regs):
    for pat in ("quad_perm:[1,0,3,2]", "quad_perm:[2,3,0,1]", "row_half_mirror"):
        a("s_nop 1")
        for r in regs: a(f"v_add_f32_dpp v{r}, v{r}, v{r} {pat} row_mask:0xf bank_mask:0xf")

def tr_addr(a, vd, xh, perm, t0, t1):
    a(f"v_lshrrev_b32 v{t0}, 5, v{vL}\nv_lshlrev_b32 v{t0}, {2 if perm else 3}, v{t0}")
    a(f"v_bfe_u32 v{t1}, v{vL}, 2, 2\nv_add_u32 v{t0}, v{t0}, v{t1}\nv_lshlrev_b32 v{vd}, 7, v{t0}")
    a(f"v_lshrrev_b32 v{t1}, 1, v{t1}\nv_xor_b32 v{t1}, {xh}, v{t1}\nv_lshl_add_u32 v{vd}, v{t1}, 6, v{vd}")
    a(f"v_bfe_u32 v{t1}, v{vL}, 4, 1\nv_lshl_add_u32 v{vd}, v{t1}, 5, v{vd}")
    a(f"v_and_b32 v{t1}, 3, v{vL}\nv_lshl_add_u32 v{vd}, v{t1}, 3, v{vd}")

def interleave(a, m, r):
    per = -(-len(r)//len(m))
    for x in range(len(m)):
        a(m[x])
        for y in r[x*per:(x+1)*per]: a(y)

def rstore(a, instr, bulk=False):
    if not C.local or (bulk and not C.ldata):
        a(instr + " sc1"); return
    L = a.label(); L2 = a.label()
    a(f"s_cmp_eq_u32 s{sLOC}, 1\ns_cbranch_scc1 {L}\n{instr} sc1\ns_branch {L2}\n{L}:\n{instr}\n{L2}:")

def publish(a, kind, group_s, tv=None):
    if kind not in COLK:
        a(f"s_lshl_b32 s{T}, s{group_s}, 7\ns_add_u32 s{T}, s{T}, {FL[kind]*128}\ns_add_u32 s{T}, s{T}, s{sFL}\ns_lshl_b32 s{T+1}, s{sJ}, 4\ns_add_u32 s{T}, s{T}, s{T+1}")
        a(f"v_mov_b32 v{TV}, 1\ns_mov_b64 exec, 1")
        rstore(a, f"buffer_store_dword v{TV}, v{vL16}, s[{S_WS}:{S_WS+3}], s{T} offen")
        a("s_mov_b64 exec, -1")
        return
    col = kind in COLK
    a(f"s_lshl_b32 s{T}, s{group_s}, {10 if col else 7}\ns_add_u32 s{T}, s{T}, {FL[kind]*128}\ns_add_u32 s{T}, s{T}, s{sFL}")
    a(f"v_mov_b32 v{TV}, 1\nv_lshlrev_b32 v{TV+1}, 7, v{vL}\ns_mov_b64 exec, {0xff if col else 1}")
    a(f"buffer_atomic_add v{TV}, v{TV+1}, s[{S_WS}:{S_WS+3}], s{T} offen sc1")
    a("s_mov_b64 exec, -1")

def poll(a, kind, group_s, n):
    col = kind in COLK
    a(f"s_lshl_b32 s{T}, s{group_s}, {10 if col else 7}\ns_add_u32 s{T}, s{T}, {FL[kind]*128}\ns_add_u32 s{T}, s{T}, s{sFL}")
    if col: a(f"s_lshr_b32 s{T+1}, s{sI}, 2\ns_lshl_b32 s{T+1}, s{T+1}, 7\ns_add_u32 s{T}, s{T}, s{T+1}")
    a(f"s_mov_b64 exec, {1 if col else 0xff}\ns_mov_b32 s{T+1}, {SPIN}")
    LP = a.label(); LD = a.label()
    a(f"{LP}:")
    a(f"buffer_load_dword v{TV}, v{vL16}, s[{S_WS}:{S_WS+3}], s{T} offen sc1")
    a(f"s_waitcnt vmcnt(0)\nv_cmp_ne_u32 vcc, {n if col else 1}, v{TV}")
    a(f"s_cbranch_vccz {LD}")
    a(f"s_sub_u32 s{T+1}, s{T+1}, 1\ns_cmp_lg_u32 s{T+1}, 0\ns_cbranch_scc1 {LP}")
    a(f"{LD}:\ns_mov_b64 exec, -1")

def kl_addr(a):
    a(f"s_lshr_b32 s{T}, s{sI}, 2\ns_lshl_b32 s{T}, s{T}, 3\ns_add_u32 s{T}, s{T}, s{sJ}\ns_lshl_b32 s{T}, s{T}, 7\ns_add_u32 s{T}, s{T}, {FL['KL']*128}\ns_add_u32 s{T}, s{T}, s{sFL}")

def kl_publish(a):
    kl_addr(a)
    a(f"s_and_b32 s{T+1}, s{sI}, 3\ns_lshl_b32 s{T+1}, s{T+1}, 4\ns_add_u32 s{T}, s{T}, s{T+1}\nv_mov_b32 v{TV+3}, 1\ns_mov_b64 exec, 1")
    rstore(a, f"buffer_store_dword v{TV+3}, v{vL16}, s[{S_WS}:{S_WS+3}], s{T} offen")
    a("s_mov_b64 exec, -1")

def kl_poll(a):
    kl_addr(a)
    a(f"s_mov_b64 exec, 15\ns_mov_b32 s{T+1}, {SPIN}")
    LP = a.label(); LD = a.label()
    a(f"{LP}:\nbuffer_load_dword v{TV}, v{vL16}, s[{S_WS}:{S_WS+3}], s{T} offen sc1\ns_waitcnt vmcnt(0)\nv_cmp_ne_u32 vcc, 1, v{TV}\ns_cbranch_vccz {LD}")
    a(f"s_sub_u32 s{T+1}, s{T+1}, 1\ns_cmp_lg_u32 s{T+1}, 0\ns_cbranch_scc1 {LP}\n{LD}:\ns_mov_b64 exec, -1")

def if_wave_eq(a, w, body):
    L = a.label()
    a(f"s_cmp_lg_u32 s{sW}, {w}\ns_cbranch_scc1 {L}")
    body()
    a(f"{L}:")

def qslot(u): return (u + 5) % 12
def qkv_src(u): return (u >> 1)*64*3072 + (1 + (u & 1))*1024 if u < 16 else (u-16)*64*3072

def qkv_row(a, d, base, u):
    if not C.qrot:
        a(f"s_mov_b32 s{d}, s{base}"); return qkv_src(u)
    a(f"s_add_u32 s{d}, s{sR2}, {u >> 1 if u < 16 else u - 16}\ns_and_b32 s{d}, s{d}, 7\ns_mul_i32 s{d}, s{d}, {64*3072}\ns_add_u32 s{d}, s{d}, s{base}")
    return (1 + (u & 1))*1024 if u < 16 else 0

def qkv_base8(a, s):
    a(f"s_mul_i32 s{s}, s{sW}, {8*3072}\ns_lshl_b32 s{T}, s{sJ}, 7\ns_add_u32 s{s}, s{s}, s{T}")

def qkv_piece8(a, s, u):
    seg = qkv_row(a, T, s, u)
    a(f"s_add_u32 m0, s{sVW}, {qslot(u)*8192}\ns_add_u32 s{T}, s{T}, {seg}")
    a(f"buffer_load_dwordx4 v{vWQ}, s[{S_QKV}:{S_QKV+3}], s{T} offen lds")

def w2_dma(a, f):
    a(f"s_add_u32 m0, s{sVW}, {SVO + ((f+4) % 8)*8192}\ns_add_u32 s{T}, s{sW2S}, {f*16*4096}")
    a(f"buffer_load_dwordx4 v{vF2}, s[{S_W2}:{S_W2+3}], s{T} offen lds")

def frag_reads(dst, vaddr, off):
    p, n = dst[0], int(dst[1:])
    return [f"ds_read_b64_tr_b16 {p}[{n}:{n+1}], v{vaddr} offset:{off}", f"ds_read_b64_tr_b16 {p}[{n+2}:{n+3}], v{vaddr} offset:{off+256}"]

W2V = 32
def w2_reg(f):
    if C.x4 and f >= 24: return f"v{112+4*(f-24)}"
    return f"v{W2V+4*f}" if f < 4 else f"a{4*(f-4)}"
def w2x_dma(a):
    for c in range(4):
        a(f"s_add_u32 m0, s{sVW}, {c*8192}\ns_add_u32 s{T}, s{sW2S}, {(24+c)*16*4096}\nbuffer_load_dwordx4 v{vF2}, s[{S_W2}:{S_W2+3}], s{T} offen lds")
def w2_reads(f): return frag_reads(w2_reg(f), vTRF, ((f+4) % 8)*8192)

def prologue(a):
    if C.stamp or C.padat: a("s_memtime s[96:97]\ns_memrealtime s[98:99]")
    a("s_load_dwordx16 s[64:79], s[0:1], 0\ns_load_dwordx4 s[84:87], s[0:1], 64\ns_load_dwordx2 s[88:89], s[0:1], 80")
    a(f"s_cmp_ge_u32 s2, 256\ns_cbranch_scc1 L_end")
    if C.cpf:
        if C.cpf == 1: a(f"s_getpc_b64 s[{T+2}:{T+3}]\nL_pc0:\ns_lshr_b32 s{T}, s2, 3\ns_lshl_b32 s{T}, s{T}, 10\nv_lshrrev_b32 v41, 6, v0\nv_lshlrev_b32 v41, 7, v41\nv_add_u32 v41, s{T}, v41")
        else: a(f"s_getpc_b64 s[{T+2}:{T+3}]\nL_pc0:\nv_lshlrev_b32 v41, 6, v0")
        a(f"v_min_u32 v41, CODE_SPAN, v41\nglobal_load_dword v142, v41, s[{T+2}:{T+3}]")
    a(f"v_lshrrev_b32 v{vL}, 6, v0\ns_lshr_b32 s{sJ}, s2, 5\nv_readfirstlane_b32 s{sW}, v{vL}\nv_and_b32 v{vL}, 63, v0")
    a(f"s_and_b32 s{sI}, s2, 7\ns_lshl_b32 s{sI}, s{sI}, 2\ns_bfe_u32 s{T}, s2, 0x20003\ns_or_b32 s{sI}, s{sI}, s{T}")
    a(f"v_lshrrev_b32 v{vN}, 3, v0\nv_and_b32 v{vC}, 7, v0")
    a(f"s_lshl_b32 s{T}, s{sJ}, {3 if C.xrot else 6}\nv_add_u32 v42, s{T}, v{vN}\nv_and_b32 v42, 63, v42")
    a(f"v_bfe_u32 v41, v42, 1, 3\nv_xor_b32 v41, v41, v{vC}\nv_lshlrev_b32 v41, 4, v41\nv_lshl_add_u32 v{vXD}, v42, 10, v41")
    a(f"s_mov_b32 s{S_XS+2}, {hex(SZ['x'])}\ns_mov_b32 s{S_XS+3}, 0x00020000\ns_mov_b32 s{S_QKV+2}, {hex(SZ['wqkv'])}\ns_mov_b32 s{S_QKV+3}, s{S_XS+3}")
    a(f"s_and_b32 s{sR2}, s{sI}, {3 if C.qrot else 0}\ns_lshl_b32 s{sR2}, s{sR2}, 1")
    if C.qtouch:
        a(f"s_mul_i32 s{T+2}, s2, {48*128}\ns_lshr_b32 s{T+3}, s2, 3\ns_mul_i32 s{T+3}, s{T+3}, {48*1024}\ns_addk_i32 s{T+3}, 384")
        a(f"s_cmp_eq_u32 s{sW}, 0\ns_cselect_b32 s{T+2}, s{T+2}, s{T+3}\ns_cselect_b32 s{T+3}, 7, 10\nv_min_u32 v41, 47, v{vL}\nv_lshlrev_b32 v41, s{T+3}, v41")
    if C.stamp: a("v_mov_b32 v6, 0\nv_mov_b32 v7, 0")
    def rest():
        for s, n in ((S_WS, "ws"), (S_WO, "wo"), (S_W1, "w1"), (S_W2, "w2"), (S_B1, "b1"), (S_B2, "b2"), (S_DBG, "dbg"), (S_XD, "x")):
            a(f"s_mov_b32 s{s+2}, {hex(SZ[n])}\ns_mov_b32 s{s+3}, 0x00020000")
        a(f"v_lshlrev_b32 v{vL16}, 4, v{vL}")
        a(f"s_lshl_b32 s{sXO}, s{sI}, 16\ns_lshl_b32 s{T}, s{sJ}, 7\ns_add_u32 s{sXO}, s{sXO}, s{T}")
        a(f"s_mov_b32 s{sLOC}, 0\ns_mov_b32 s{sL}, 0\ns_mov_b32 s{sLB}, 0\ns_mov_b32 s{sFL}, {WS_FLAG}")
        a(f"v_lshrrev_b32 v40, 3, v{vL}\nv_bfe_u32 v43, v{vL}, 4, 1\nv_lshlrev_b32 v43, 2, v43\nv_and_b32 v42, 7, v{vL}\nv_xor_b32 v43, v43, v42\nv_lshlrev_b32 v43, 4, v43")
        a(f"v_mul_u32_u24 v{vWQ}, 3072, v40\nv_add_u32 v{vWQ}, v{vWQ}, v43")
        a(f"s_lshl_b32 s{sVW}, s{sW}, 10\ns_add_u32 s{sVW}, s{sVW}, {V}")
        a(f"v_bfe_u32 v43, v{vN}, 1, 1\nv_bfe_u32 v42, v{vN}, 2, 1\nv_and_b32 v{vN}, 0x39, v{vN}\nv_lshl_add_u32 v{vN}, v43, 2, v{vN}\nv_lshl_add_u32 v{vN}, v42, 1, v{vN}")
        a(f"v_lshlrev_b32 v{vXO}, 10, v{vN}\nv_lshl_add_u32 v{vXO}, v{vC}, 4, v{vXO}")
        a(f"s_and_b32 s{sJR}, s{sJ}, {C.jrot}" + (f"\ns_lshr_b32 s{T}, s{sI}, 2\ns_add_u32 s{sJR}, s{sJR}, s{T}\ns_and_b32 s{sJR}, s{sJR}, 7" if C.xr8 else ""))
        prologue2(a)
    if C.early2: rest()
    L = a.label()
    a(f"s_cmp_gt_u32 s{sW}, 1\ns_waitcnt lgkmcnt(0)\ns_mov_b64 s[{S_XS}:{S_XS+1}], s[64:65]\ns_mov_b64 s[{S_QKV}:{S_QKV+1}], s[66:67]")
    if C.qtouch: a(f"s_cbranch_scc1 {L}\nbuffer_load_dword v143, v41, s[{S_QKV}:{S_QKV+3}], s{T+2} offen\n{L}:")
    x_dma(a, fl="")
    for s, n in ((S_WO, "wo"), (S_W1, "w1"), (S_W2, "w2"), (S_B1, "b1"), (S_B2, "b2")):
        a(f"s_mov_b64 s[{s}:{s+1}], s[{64 + KA[n]//4}:{65 + KA[n]//4}]")
    a(f"s_mov_b64 s[{sOUT}:{sOUT+1}], s[84:85]\ns_mov_b64 s[{S_DBG}:{S_DBG+1}], s[86:87]\ns_mov_b64 s[{S_WS}:{S_WS+1}], s[88:89]")
    if C.stamp:
        a(f"v_writelane_b32 v6, s96, 0\nv_writelane_b32 v6, s98, 32"); STAMPS.append("start")
    a(f"s_add_u32 s{S_XD}, s{S_WS}, {WS_X2}\ns_addc_u32 s{S_XD+1}, s{S_WS+1}, 0")
    if not C.early2: rest()

def prologue2(a):
    a(f"v_lshrrev_b32 v42, 2, v{vL}\nv_and_b32 v43, 3, v{vL}\nv_lshlrev_b32 v43, 4, v43")
    a(f"v_lshl_add_u32 v{vF2}, v42, 12, v43")
    a(f"v_lshrrev_b32 v42, 5, v{vL}\nv_lshlrev_b32 v42, 3, v42\nv_bfe_u32 v43, v{vL}, 2, 2\nv_add_u32 v42, v42, v43\nv_lshlrev_b32 v{vTRF}, 6, v42")
    a(f"v_bfe_u32 v43, v{vL}, 4, 1\nv_lshl_add_u32 v{vTRF}, v43, 5, v{vTRF}\nv_and_b32 v43, 3, v{vL}\nv_lshl_add_u32 v{vTRF}, v43, 3, v{vTRF}")
    a(f"v_add_u32 v{vTRF}, s{sVW}, v{vTRF}\nv_add_u32 v{vTRF}, {SVO}, v{vTRF}")
    a(f"s_lshr_b32 s{sW2S}, s{sW}, 1\ns_mul_i32 s{sW2S}, s{sW2S}, {448*4096}\ns_lshl_b32 s{T}, s{sI}, 7\ns_add_u32 s{sW2S}, s{sW2S}, s{T}")
    a(f"s_and_b32 s{T}, s{sW}, 1\ns_lshl_b32 s{T}, s{T}, 6\ns_add_u32 s{sW2S}, s{sW2S}, s{T}")

def tlb_touch(a):
    if not C.tlb: return
    a(f"s_sub_u32 s{T+4}, s{sW}, 4\ns_lshl_b32 s{T}, s{T+4}, 21")
    for k in range(4): a(f"s_add_u32 s{T+1}, s{T}, {(k & 1)*8*MB + (k >> 1)*LSTRIDE}\ns_buffer_load_dword s86, s[{S_WS}:{S_WS+3}], s{T+1}")
    for srd in (S_W1, S_W2): a(f"s_buffer_load_dword s86, s[{srd}:{srd+3}], s{T}")
    a(f"s_lshl_b32 s{T}, s{T+4}, 19\ns_load_dword s86, s[{sOUT}:{sOUT+1}], s{T}")
    a(f"s_buffer_load_dword s86, s[{S_WO}:{S_WO+3}], 0\ns_buffer_load_dword s86, s[{S_B1}:{S_B1+3}], 0\ns_buffer_load_dword s86, s[{S_B2}:{S_B2+3}], 0")

def init_sync(a, w=3):
    def body():
        a("v_mov_b32 v44, 0\nv_mov_b32 v45, 0\nv_mov_b32 v46, 0\nv_mov_b32 v47, 0")
        a(f"s_lshl_b32 s{T}, s2, 10\ns_add_u32 s{T}, s{T}, {WS_ST}\ns_add_u32 s{T+1}, s{T}, {LSTRIDE}")
        a(f"buffer_store_dwordx4 v[44:47], v{vL16}, s[{S_WS}:{S_WS+3}], s{T} offen sc1")
        a(f"buffer_store_dwordx4 v[44:47], v{vL16}, s[{S_WS}:{S_WS+3}], s{T+1} offen sc1")
        a(f"s_add_u32 s{T+1}, s{T}, {256*1024}\nbuffer_store_dwordx4 v[44:47], v{vL16}, s[{S_WS}:{S_WS+3}], s{T+1} offen sc1")
        a(f"s_lshl_b32 s{T}, s2, 9\ns_add_u32 s{T}, s{T}, {WS_FLAG}\ns_mov_b32 exec_hi, 0")
        a(f"buffer_store_dwordx4 v[44:47], v{vL16}, s[{S_WS}:{S_WS+3}], s{T} offen sc1")
        if C.sent:
            a(f"s_mov_b64 exec, -1\nv_mov_b32 v100, -1\nv_mov_b32 v101, -1\nv_mov_b32 v102, -1\nv_mov_b32 v103, -1\ns_lshl_b32 s{T}, s2, 13\ns_add_u32 s{T}, s{T}, {WS_O}\ns_add_u32 s{T+1}, s{T}, 4096")
            for k in range(8): a(f"buffer_store_dwordx4 v[100:103], v{vL16}, s[{S_WS}:{S_WS+3}], s{T + (k >> 2)} offen offset:{(k & 3)*1024} sc1")
        a(f"s_getreg_b32 s{T+1}, hwreg(HW_REG_XCC_ID, 0, 4)\ns_mov_b64 exec, 1\nv_mov_b32 v48, s{T+1}")
        a(f"s_lshl_b32 s{T}, s{sI}, 3\ns_add_u32 s{T}, s{T}, s{sJ}\ns_lshl_b32 s{T}, s{T}, 4\ns_add_u32 s{T}, s{T}, {WS_XT}")
        a(f"buffer_store_dword v48, v{vL16}, s[{S_WS}:{S_WS+3}], s{T} offen sc1")
        a("s_mov_b64 exec, -1")
    if_wave_eq(a, w, body)

def init_arrive(a, w=3, pre="s_nop 0", tv=TV):
    L = a.label()
    a(f"s_cmp_lg_u32 s{sW}, {w}\ns_cbranch_scc1 {L}\n{pre}")
    a(f"v_mov_b32 v{tv}, 1\nv_mov_b32 v{tv+1}, 0\ns_and_b32 s{T}, s2, 63\ns_lshl_b32 s{T}, s{T}, 2\ns_mov_b64 exec, 1")
    a(f"buffer_atomic_add v{tv}, v{tv+1}, s[{S_DBG}:{S_DBG+3}], s{T} offen sc1")
    a(f"s_mov_b64 exec, -1\n{L}:")

def wait_init(a, vaddr):
    a(f"s_mov_b32 s{T+1}, {SPIN}")
    LP = a.label(); LD = a.label()
    a(f"{LP}:\nv_cmp_gt_u32 vcc, 4, v{TV+2}\ns_cbranch_vccz {LD}")
    a(f"buffer_load_dword v{TV+2}, v{vaddr}, s[{S_DBG}:{S_DBG+3}], 0 offen sc1\ns_waitcnt vmcnt(0)")
    a(f"s_sub_u32 s{T+1}, s{T+1}, 1\ns_cmp_lg_u32 s{T+1}, 0\ns_cbranch_scc1 {LP}")
    a(f"{LD}:\ns_mov_b64 exec, -1")

class VM:
    def __init__(self): self.ops = []
    def add(self, tag, n=1): self.ops += [tag]*n
    def need(self, *tags):
        last = max(k for k, t in enumerate(self.ops) if t in tags)
        return min(63, len(self.ops) - 1 - last)

vXD = 15
TAB = V + 5*8192
WS_ST2 = 12*MB + 256*1024
WS_CS = 13*MB

def x_dma(a, qs=range(8), fl="sc1"):
    X1 = 81
    a(f"s_lshl_b32 s{T}, s{sI}, 16\n" + (f"s_add_u32 s{T+1}, s{sW}, s{sJ}\ns_and_b32 s{T+1}, s{T+1}, 7\ns_lshl_b32 s{T+1}, s{T+1}, 10" if C.xrot else f"s_lshl_b32 s{T+1}, s{sW}, 10"))
    for q in qs:
        if not C.qrot:
            a(f"s_add_u32 m0, s{T+1}, {E + q*8192 - q*128}\ns_nop 0\nbuffer_load_dwordx4 v{vXD}, s[{S_XS}:{S_XS+3}], s{T} offen offset:{128*q} {fl} lds")
            continue
        if q % 2 == 0 or q == qs[0]: a(f"s_add_u32 s{X1}, s{sR2}, {q & 6}\ns_and_b32 s{X1}, s{X1}, 7\ns_lshl_b32 s{X1}, s{X1}, 7\ns_add_u32 s{X1}, s{X1}, s{T}")
        a(f"s_add_u32 m0, s{T+1}, {E + q*8192 - (q & 1)*128}\ns_nop 0")
        a(f"buffer_load_dwordx4 v{vXD}, s[{S_XS}:{S_XS+3}], s{X1} offen offset:{128*(q & 1)} {fl} lds")

def split_hi_lo(a, src, hi2, lo2, t, neg=False):
    if neg: a(f"v_sub_f32 v{src}, 0, v{src}")
    a(f"v_cvt_pk_bf16_f32 v{t}, v{src}, v{src}\nv_and_b32 v{t}, 0xffff0000, v{t}\nv_sub_f32 v{t+1}, v{src}, v{t}")

def own_stats(a, D, A, MUo, Ro, ADo):
    a(f"s_add_u32 s{T}, s{sW}, s{sJ}\ns_and_b32 s{T}, s{T}, 7" if C.xrot else f"s_mov_b32 s{T}, s{sW}")
    a(f"s_lshl_b32 s{T+1}, s{T}, 10\nv_add_u32 v{ADo}, s{T+1}, v{vL16}")
    for q in range(8): a(f"ds_read_b128 v[{D+4*q}:{D+4*q+3}], v{ADo} offset:{q*8192}")
    for r in range(4): a(f"v_mov_b32 v{A+r}, 0")
    a(f"v_mov_b32 v{A+4}, 0x3f803f80\ns_lshl_b32 s{T}, s{T}, 5\ns_add_u32 s{T}, s{T}, {TAB}\nv_lshrrev_b32 v{ADo}, 3, v{vL}\nv_lshlrev_b32 v{ADo}, 2, v{ADo}\nv_add_u32 v{ADo}, s{T}, v{ADo}")
    for q in range(8):
        a(f"s_waitcnt lgkmcnt({7-q})")
        for e in (0, 2):
            r = D+4*q+e
            a(f"v_dot2c_f32_bf16 v{A}, v{r}, v{A+4}\nv_dot2c_f32_bf16 v{A+2}, v{r}, v{r}\nv_dot2c_f32_bf16 v{A+1}, v{r+1}, v{A+4}\nv_dot2c_f32_bf16 v{A+3}, v{r+1}, v{r+1}")
    a(f"s_nop 2\nv_add_f32 v{MUo}, v{A}, v{A+1}\nv_add_f32 v{Ro}, v{A+2}, v{A+3}")
    dpp_red8(a, [MUo, Ro])
    a(f"v_mul_f32 v{MUo}, {f2u(1/512)}, v{MUo}\nv_mul_f32 v{Ro}, {f2u(1/512)}, v{Ro}")
    a(f"v_fma_f32 v{Ro}, -v{MUo}, v{MUo}, v{Ro}\nv_max_f32 v{Ro}, 0, v{Ro}\nv_add_f32 v{Ro}, {f2u(1e-5)}, v{Ro}\nv_rsq_f32 v{Ro}, v{Ro}")

def layer0_helpers(a):
    LJ = "L_p1_join"; LB = a.label()
    a(f"s_cmp_ge_u32 s{sW}, 6\ns_cbranch_scc1 {LB}")
    src, dst = T+2, T+3
    a(f"s_sub_u32 s{dst}, s{sW}, 4\ns_mul_i32 s{src}, s{dst}, {32*3072}\ns_lshl_b32 s{T}, s{sJ}, 7\ns_add_u32 s{src}, s{src}, s{T}")
    a(f"s_lshl_b32 s{dst}, s{dst}, 12\ns_add_u32 s{dst}, s{dst}, {V}")
    vm = VM()
    def unit(u):
        seg = qkv_row(a, T+1, src, u)
        for p in range(4):
            a(f"s_add_u32 m0, s{dst}, {qslot(u)*8192 + p*1024}\ns_add_u32 s{T}, s{T+1}, {seg + p*8*3072}")
            a(f"buffer_load_dwordx4 v{vWQ}, s[{S_QKV}:{S_QKV+3}], s{T} offen lds")
        vm.add(("w", u), 4)
    for u in range(C.h0first): unit(u)
    a(f"s_waitcnt vmcnt({4*C.h0first})")
    own_stats(a, 48, 80, 42, 44, 40)
    issued = C.h0first
    for u in range(C.h0second): unit(issued); issued += 1
    sched = [int(c) for c in C.hs0]
    for s in range(12):
        a(f"s_waitcnt vmcnt({vm.need(('w', 2*s+1))})" + (" lgkmcnt(0)" if s == 8 else "") + "\ns_barrier")
        if s == 7: a("ds_write_b32 v40, v42\nds_write_b32 v40, v44 offset:256")
        for _ in range(sched[s]):
            assert issued < 2*s + 12 and issued < 24
            unit(issued); issued += 1
        assert s == 11 or issued >= 2*s + 4
    assert issued == 24
    a(f"s_barrier\ns_branch {LJ}")
    a(f"{LB}:")
    init_sync(a, 7)
    if C.vtlb:
        def body():
            sh = C.vsh
            a(f"v_lshlrev_b32 v49, {sh}, v{vL}\ns_lshl_b32 s{T}, s2, 7")
            a(f"s_mov_b32 s{S_WS+2}, {hex(34*MB)}\nbuffer_load_dword v136, v49, s[{S_WS}:{S_WS+3}], s{T} offen\ns_mov_b32 s{S_WS+2}, {hex(SZ['ws'])}")
            for k, srd in enumerate((S_W1, S_W2, S_WO)): a(f"buffer_load_dword v{137+k}, v49, s[{srd}:{srd+3}], s{T} offen")
            a(f"buffer_load_dword v140, v49, s[{S_B1}:{S_B1+3}], 0 offen\nbuffer_load_dword v140, v49, s[{S_B2}:{S_B2+3}], 0 offen")
            a(f"v_and_b32 v50, 0x1fffff, v49\nglobal_load_dword v140, v50, s[{sOUT}:{sOUT+1}]")
        if_wave_eq(a, 6, body)
    L4 = a.label()
    a(f"s_waitcnt vmcnt({13 if C.sent else 5})\ns_cmp_eq_u32 s{sW}, 7\ns_cbranch_scc1 {L4}\ns_waitcnt vmcnt({7 if C.vtlb else 0})\n{L4}:")
    def w1touch(mask):
        a(f"s_lshl_b32 s{T}, s2, 1\ns_add_u32 s{T}, s{T}, s{sW}\ns_sub_u32 s{T}, s{T}, 6\ns_mul_i32 s{T+1}, s{T}, {112*128}\nv_min_u32 v49, 55, v{vL}\nv_lshlrev_b32 v49, 7, v49")
        if mask & 1: a(f"buffer_load_dword v141, v49, s[{S_W1}:{S_W1+3}], s{T+1} offen")
        if mask & 2: a(f"s_add_u32 s{T+1}, s{T+1}, {56*128}\nbuffer_load_dword v142, v49, s[{S_W1}:{S_W1+3}], s{T+1} offen")
        if mask & 4: a(f"s_lshl_b32 s{T+1}, s{T}, 10\nv_and_b32 v49, 0x380, v49\nbuffer_load_dword v143, v49, s[{S_WO}:{S_WO+3}], s{T+1} offen")
    if C.w1e == -1: w1touch(7 & ~C.w1mask)
    own_stats(a, 52, 84, 42, 43, 40)
    for s in range(12):
        if s == 8: a("s_waitcnt lgkmcnt(0)")
        a("s_barrier")
        if s == 7: a("ds_write_b32 v40, v42\nds_write_b32 v40, v43 offset:256")
        if s == C.arrs: init_arrive(a, 7, pre="s_waitcnt vmcnt(0)")
        if s == C.dbgs: a(f"v_lshlrev_b32 v41, 2, v{vL}\nbuffer_load_dword v{TV+2}, v41, s[{S_DBG}:{S_DBG+3}], 0 offen sc1")
        if s == C.w1t: w1touch(C.w1mask)
        if s == C.w1e: w1touch(7 & ~C.w1mask)
    assert C.w1t >= C.dbgs and C.w1e < C.dbgs
    a(f"s_waitcnt vmcnt({bin(C.w1mask).count('1') if C.w1t < 12 else 0})")
    if_wave_eq(a, 6, lambda: wait_init(a, 41))
    a("s_barrier")
    def pub():
        if C.lf: kl_publish(a)
        publish(a, "KV", sJ)
    if_wave_eq(a, 6, pub)
    a(f"s_branch {LJ}")

def helper_setup(a):
    src, dst = T+2, T+3
    a(f"s_sub_u32 s{dst}, s{sW}, 4\ns_mul_i32 s{src}, s{dst}, {16*3072}\ns_lshl_b32 s{T}, s{sJ}, 7\ns_add_u32 s{src}, s{src}, s{T}")
    a(f"s_lshl_b32 s{T}, s{dst}, 4\nv_lshrrev_b32 v40, 2, v{vL}\nv_add_u32 v40, s{T}, v40")
    a(f"s_lshl_b32 s{dst}, s{dst}, 11\ns_add_u32 s{dst}, s{dst}, {V}")

def helper_unit(a, u, vm):
    seg = qkv_row(a, T+1, T+2, u)
    for p in range(2):
        a(f"s_add_u32 m0, s{T+3}, {qslot(u)*8192 + p*1024}\ns_add_u32 s{T}, s{T+1}, {seg + p*8*3072}")
        a(f"buffer_load_dwordx4 v{vWQ}, s[{S_QKV}:{S_QKV+3}], s{T} offen lds")
    vm.add(("w", u), 2)

def helper_loop(a, layer, vm, issued, sched, LJ):
    ROW, S1, S2, G = 40, 42, 44, 48
    first = issued
    for s in range(12):
        tags = [t for t in [("x", s), ("w", 2*s+1)] if t in vm.ops]
        if s == 6 and layer == 1: tags.append("g")
        if tags: a(f"s_waitcnt vmcnt({vm.need(*tags)})")
        if s == 8: a("s_waitcnt lgkmcnt(0)")
        a("s_barrier")
        if s == 7: a(f"ds_write_b32 v{ROW}, v{S1}\nds_write_b32 v{ROW}, v{S2} offset:256")
        for _ in range(sched[s]):
            assert issued < 2*s + 12 and issued < 24
            helper_unit(a, issued, vm); issued += 1
        assert s == 11 or issued >= 2*s + 4
        if s == 6:
            if layer == 1: a(f"v_add_f32 v{S1}, v{G}, v{G+2}\nv_add_f32 v{S2}, v{G+1}, v{G+3}")
            for pat in ("quad_perm:[1,0,3,2]", "quad_perm:[2,3,0,1]"):
                a("s_nop 1")
                for r in (S1, S2): a(f"v_add_f32_dpp v{r}, v{r}, v{r} {pat} row_mask:0xf bank_mask:0xf")
            a(f"v_mul_f32 v{S1}, {f2u(1/512)}, v{S1}\nv_mul_f32 v{S2}, {f2u(1/512)}, v{S2}")
            a(f"v_fma_f32 v{S2}, -v{S1}, v{S1}, v{S2}\nv_max_f32 v{S2}, 0, v{S2}\nv_add_f32 v{S2}, {f2u(1e-5)}, v{S2}\nv_rsq_f32 v{S2}, v{S2}")
            a(f"v_lshlrev_b32 v{ROW}, 2, v{ROW}\nv_add_u32 v{ROW}, {TAB}, v{ROW}")
        if s == 8 and layer == 0:
            a(f"v_lshlrev_b32 v46, 2, v{vL}\nbuffer_load_dword v{TV+2}, v46, s[{S_DBG}:{S_DBG+3}], 0 offen sc1"); vm.add("dbg")
        if s == C.w1t and layer == 0:
            a(f"s_lshl_b32 s{T}, s2, 2\ns_add_u32 s{T}, s{T}, s{sW}\ns_sub_u32 s{T}, s{T}, 4\ns_mul_i32 s{T+1}, s{T}, {56*128}\nv_min_u32 v47, 55, v{vL}\nv_lshlrev_b32 v47, 7, v47")
            a(f"buffer_load_dword v142, v47, s[{S_W1}:{S_W1+3}], s{T+1} offen")
            a(f"s_lshl_b32 s{T+1}, s{T}, 9\nv_and_b32 v47, 0x180, v47\nbuffer_load_dword v143, v47, s[{S_WO}:{S_WO+3}], s{T+1} offen")
            vm.add("t", 2)
    assert issued == 24
    if layer == 0: a(f"s_waitcnt vmcnt({vm.need('dbg')})")
    def w4():
        if layer == 0: wait_init(a, 46)
        if C.lf: kl_publish(a)
        publish(a, "KV", sJ)
    if C.pub12:
        if layer == 0: if_wave_eq(a, 4, lambda: wait_init(a, 46))
        a("s_barrier")
        def w4b():
            if C.lf: kl_publish(a)
            publish(a, "KV", sJ)
        if_wave_eq(a, 4, w4b)
    else:
        if_wave_eq(a, 4, w4)
        a("s_barrier")
    a(f"s_branch {LJ}")

def x_start(a):
    a(f"s_mov_b32 s{sFL}, {WS_FLAG + 512*128}\ns_barrier")
    stamp(a, "p1.polled")
    if C.xp < 8:
        x_dma(a, range(C.xp)); a("s_barrier"); x_dma(a, range(C.xp, 8))
    else: x_dma(a)

def phase1(a):
    LC = "L_p1_cons"; LJ = "L_p1_join"
    a(f"s_cmp_lt_u32 s{sW}, 4\ns_cbranch_scc1 {LC}")
    helper_setup(a)
    a(f"v_and_b32 v41, 3, v{vL}\nv_lshlrev_b32 v41, 11, v41\nv_lshl_add_u32 v41, v40, 3, v41")
    if_wave_eq(a, 4, lambda: poll(a, "X", sI, 8))
    keep = C.stamp; C.stamp = False; x_start(a); C.stamp = keep
    a(f"s_lshl_b32 s{T}, s{sI}, 13\ns_add_u32 s{T}, s{T}, {WS_ST2}")
    a(f"buffer_load_dwordx2 v[48:49], v41, s[{S_WS}:{S_WS+3}], s{T} offen sc1\nbuffer_load_dwordx2 v[50:51], v41, s[{S_WS}:{S_WS+3}], s{T} offen offset:1024 sc1")
    vm = VM()
    for q in range(8): vm.add(("x", q))
    vm.add("g", 2)
    helper_loop(a, 1, vm, sum(int(c) for c in C.sch2 + C.qe), [int(c) for c in C.hs1], LJ)
    a(f"{LC}:")
    tt, ch = T+2, T+3
    a(f"s_and_b32 s{tt}, s{sW}, 1\ns_lshr_b32 s{ch}, s{sW}, 1")
    XA = 40
    a(f"v_and_b32 v44, 31, v{vL}\ns_lshl_b32 s{T}, s{tt}, 5\nv_add_u32 v44, s{T}, v44\nv_lshlrev_b32 v38, 2, v44\nv_add_u32 v38, {TAB}, v38")
    a(f"v_bfe_u32 v45, v{vL}, 1, 3\nv_lshrrev_b32 v46, 5, v{vL}\nv_xor_b32 v45, v45, v46\nv_lshlrev_b32 v45, 4, v45\nv_lshl_add_u32 v{XA}, v44, 7, v45")
    for m in range(1, 4): a(f"v_xor_b32 v{XA+m}, {32*m}, v{XA}")
    a(f"s_lshl_b32 s{T}, s{tt}, 7\ns_add_u32 s{T}, s{T}, {TAB+256}\nv_lshlrev_b32 v37, 4, v46\nv_add_u32 v37, s{T}, v37")
    WL, WH = 44, 45
    tr_addr(a, WL, f"s{ch}", False, 46, 47)
    a(f"v_add_u32 v{WL}, {V}, v{WL}\nv_add_u32 v{WH}, {6*8192}, v{WL}")
    AK, AV, AQ = 48, 64, 80
    CS, SEL = 24, 32
    SIX = 21
    a(f"v_lshrrev_b32 v46, 4, v{vL}\nv_xor_b32 v46, v46, v{vL}\nv_and_b32 v46, 2, v46\nv_and_b32 v47, 12, v{vL}\nv_or_b32 v46, v46, v47\nv_mov_b32 v47, 0x3f803f80")
    a(f"v_cmp_eq_u32 vcc, 0, v46\ns_nop 1\nv_cndmask_b32 v{SEL}, 0, v47, vcc\nv_cmp_eq_u32 vcc, 4, v46\nv_mov_b32 v{SEL+1}, v{SEL}\ns_nop 0\nv_cndmask_b32 v{SEL+2}, 0, v47, vcc\nv_mov_b32 v{SEL+3}, v{SEL+2}")
    a(f"v_and_b32 v46, 1, v{vL}\nv_mul_u32_u24 v46, 0xaaaa, v46\nv_or_b32 v{SIX}, 0x4444, v46\nv_lshl_add_u32 v{SIX}, v{SIX}, 16, v{SIX}")
    csoff = T+8
    a(f"s_lshl_b32 s{csoff}, s2, 2\ns_add_u32 s{csoff}, s{csoff}, s{sW}\ns_lshl_b32 s{csoff}, s{csoff}, 10\ns_add_u32 s{csoff}, s{csoff}, {WS_CS}")
    for r in range(8): a(f"v_mov_b32 v{CS+r}, 0")
    def fr(buf, n):
        if buf == 0: return ("a", n)
        return ("a", 64+n) if n < 48 else ("v", 96 + n - 48)
    def R(buf, n, w):
        p, b = fr(buf, n); return f"{p}[{b}:{b+w-1}]"
    def wslot(u):
        s = qslot(u)
        return (WL, s*8192) if s < 6 else (WH, (s-6)*8192)
    def rd(s):
        buf = s & 1; out = []
        if s < 8:
            for t in range(4):
                out.append(f"ds_read_b128 {R(buf, 12*t, 4)}, v{XA+t} offset:{8192*s}")
                for seg in range(2):
                    va, off = wslot(2*s+seg)
                    for e in range(2):
                        out.append(f"ds_read_b64_tr_b16 {R(buf, 12*t+4+4*seg+2*e, 2)}, v{va} offset:{off + t*2048 + e*512}")
        else:
            for t in range(8):
                out.append(f"ds_read_b128 {R(buf, 16*(t>>1)+4*(t&1), 4)}, v{XA+(t&3)} offset:{16384*(s-8) + (t>>2)*8192}")
                va, off = wslot(2*s + (t >> 2))
                for e in range(2):
                    out.append(f"ds_read_b64_tr_b16 {R(buf, 16*(t>>1)+8+4*(t&1)+2*e, 2)}, v{va} offset:{off + (t&3)*2048 + e*512}")
        return out
    def mf(s):
        buf = s & 1; out = []
        if s < 8:
            for t in range(4):
                z = s == 0 and t == 0
                out.append(f"v_mfma_f32_32x32x16_bf16 v[{AK}:{AK+15}], {R(buf, 12*t+4, 4)}, {R(buf, 12*t, 4)}, " + ("0" if z else f"v[{AK}:{AK+15}]"))
                out.append(f"v_mfma_f32_32x32x16_bf16 v[{AV}:{AV+15}], {R(buf, 12*t, 4)}, {R(buf, 12*t+8, 4)}, " + ("0" if z else f"v[{AV}:{AV+15}]"))
        else:
            for t in range(8):
                out.append(f"v_mfma_f32_32x32x16_bf16 v[{AQ}:{AQ+15}], {R(buf, 16*(t>>1)+8+4*(t&1), 4)}, {R(buf, 16*(t>>1)+4*(t&1), 4)}, " + ("0" if s == 8 and t == 0 else f"v[{AQ}:{AQ+15}]"))
        return out
    OOL = []
    def csum(s):
        buf = s & 1
        L = a.label("Lcs"); LR = a.label("Lcr")
        a(f"s_cbranch_vccnz {L}\n{LR}:")
        o = [f"{L}:"]
        if s < 8:
            for t in range(4): o.append(f"v_smfmac_f32_16x16x64_bf16 v[{CS}:{CS+3}], v[{SEL}:{SEL+3}], {R(buf, 12*t+4, 8)}, v{SIX}")
            if s == 6: o += ["ds_write_b32 v126, v124", "ds_write_b32 v126, v125 offset:256"]
            if s == 7: o += ["s_nop 7", f"v_add_f32 v{ST4}, v{CS}, v{CS+1}", f"v_add_f32 v{ST4+1}, v{CS+2}, v{CS+3}"]
        else:
            for p in range(4): o.append(f"v_smfmac_f32_16x16x64_bf16 v[{CS+4}:{CS+7}], v[{SEL}:{SEL+3}], {R(buf, 16*p+8, 8)}, v{SIX}")
            if s == 11: o += ["s_nop 7", f"v_add_f32 v{CS+4}, v{CS+4}, v{CS+5}", f"v_add_f32 v{CS+6}, v{CS+6}, v{CS+7}", f"v_add_f32 v{ST4+2}, v{CS+4}, v{CS+6}"]
        o.append(f"s_branch {LR}")
        OOL.append("\n".join(o))
    ST4 = 16
    def inter(m, r, per):
        per = max(per, -(-len(r)//len(m)))
        for x in range(len(m)):
            a(m[x])
            for y in r[x*per:(x+1)*per]: a(y)
    a(f"s_lshl_b32 s{T+4}, s{sI}, 1\ns_add_u32 s{T+4}, s{T+4}, s{tt}")
    a(f"s_lshl_b32 s{T+5}, s{sJ}, 2\ns_lshl_b32 s{T+6}, s{ch}, 1\ns_add_u32 s{T+5}, s{T+5}, s{T+6}")
    a(f"s_lshl_b32 s{T+5}, s{T+5}, 6\ns_add_u32 s{T+5}, s{T+5}, s{T+4}")
    a(f"s_lshl_b32 s{T+4}, s{T+5}, 11\ns_add_u32 s{T+4}, s{T+4}, s{sLB}\ns_add_u32 s{T+5}, s{T+4}, 131072")
    assert WS_KV == 0
    a(f"v_and_b32 v46, 0x33, v{vL}\nv_bfe_u32 v47, v{vL}, 2, 1\nv_lshl_add_u32 v46, v47, 3, v46\nv_bfe_u32 v47, v{vL}, 3, 1\nv_lshl_add_u32 v46, v47, 2, v46\nv_lshlrev_b32 v46, 4, v46")
    a(f"v_bfe_u32 v39, v{vL}, 4, 1\nv_lshlrev_b32 v47, 17, v39\nv_lshrrev_b32 v39, 5, v{vL}\nv_lshl_add_u32 v47, v39, 8, v47\nv_and_b32 v39, 15, v{vL}\nv_lshl_add_u32 v47, v39, 4, v47")
    Lx = a.label()
    a(f"s_cmp_eq_u32 s{sL}, 0\ns_cbranch_scc1 L_p1_stats0")
    x_start(a)
    a(f"{Lx}:")
    b = Asm(); b.n = 91000
    b("L_p1_stats0:\ns_waitcnt vmcnt(0)")
    stamp(b, "p1.xarr")
    own_stats(b, 48, 116, 124, 125, 126)
    b(f"s_branch {Lx}")
    OOL.append("\n".join(b.L))
    a(f"buffer_load_dwordx4 v[{ST4}:{ST4+3}], v{vL16}, s[{S_WS}:{S_WS+3}], s{csoff} offen sc1")
    a("s_waitcnt vmcnt(8)\ns_barrier")
    stamp(a, "p1.b0")
    for x in rd(0): a(x)
    P, RB, MU, RR = 112, 128, 36, 39
    def aug_w(seg, d):
        return [f"v_cvt_pk_bf16_f32 v{d}, v{ST4+seg}, v{ST4+seg}", f"v_and_b32 v{d+1}, 0xffff0000, v{d}", f"v_sub_f32 v{d+1}, v{ST4+seg}, v{d+1}", f"v_cvt_pk_bf16_f32 v{d+1}, v{d+1}, v{d+1}"]
    XM = 22
    a(f"s_cmp_eq_u32 s{sL}, 0\ns_cselect_b64 vcc, -1, 0")
    def waitbar(s):
        vmw = f"vmcnt({7-s}) " if s < 7 else ("vmcnt(0) " if s == 7 or (s == 10 and not C.pub12) else "")
        a(f"s_waitcnt {vmw}lgkmcnt(0)\ns_barrier")
        stamp(a, f"zq.{s+1:02d}")
    waitbar(0)
    for s in range(12):
        m = mf(s)
        r = rd(s+1) if s < 11 else []
        csum(s)
        if s == 7:
            tab = [f"ds_read_b32 v{MU}, v38", f"ds_read_b32 v{RR}, v38 offset:256"] + [f"ds_read_b128 v[{RB+4*k}:{RB+4*k+3}], v37 offset:{32*k}" for k in range(4)]
            mk = m[0::2]; mv = m[1::2]
            aw = aug_w(0, 24) + aug_w(1, 26)
            xm = [f"v_sub_f32 v{MU}, 0, v{MU}", f"v_cvt_pk_bf16_f32 v{XM}, v{MU}, v{MU}", f"v_and_b32 v{XM+1}, 0xffff0000, v{XM}", f"v_sub_f32 v{XM+1}, v{MU}, v{XM+1}", f"v_cvt_pk_bf16_f32 v{XM}, v{MU}, v{XM+1}", f"v_mov_b32 v{XM+1}, v{XM}"]
            a(mk[0]); [a(x) for x in tab]
            a(mk[1]); [a(x) for x in aw[:4] + r[:3]]
            a(mk[2]); [a(x) for x in aw[4:] + r[3:6]]
            a(mk[3]); a("s_waitcnt lgkmcnt(10)"); [a(x) for x in xm]
            a(mv[0]); [a(x) for x in r[6:9]]
            a(f"v_mfma_f32_32x32x8_bf16 v[{AK}:{AK+15}], v[24:25], v[{XM}:{XM+1}], v[{AK}:{AK+15}]"); [a(x) for x in r[9:14]]
            a(mv[1]); [a(x) for x in r[14:19]]
            a(mv[2]); [a(x) for x in r[19:24]]
            a(mv[3])
            for k in range(10): a(f"v_mul_f32 v{AK+k}, v{AK+k}, v{RR}")
            a(f"v_mfma_f32_32x32x8_bf16 v[{AV}:{AV+15}], v[{XM}:{XM+1}], v[26:27], v[{AV}:{AV+15}]")
            for k in range(10, 16): a(f"v_mul_f32 v{AK+k}, v{AK+k}, v{RR}")
            for k in range(8): a(f"v_cvt_pk_bf16_f32 v{P+k}, v{AK+2*k}, v{AK+2*k+1}")
            a(f"buffer_store_dwordx4 v[{P}:{P+3}], v46, s[{S_WS}:{S_WS+3}], s{T+4} offen sc1")
            a(f"buffer_store_dwordx4 v[{P+4}:{P+7}], v46, s[{S_WS}:{S_WS+3}], s{T+5} offen sc1")
            a("s_waitcnt lgkmcnt(15)")
            for k in range(16): a(f"v_mul_f32 v{AV+k}, v{AV+k}, v{RB+k}")
            for k in range(8): a(f"v_cvt_pk_bf16_f32 v{P+8+k}, v{AV+2*k}, v{AV+2*k+1}")
            a(f"buffer_store_dwordx4 v[{P+8}:{P+11}], v47, s[{S_WS}:{S_WS+3}], s{T+4} offen offset:1024 sc1")
            a(f"buffer_store_dwordx4 v[{P+12}:{P+15}], v47, s[{S_WS}:{S_WS+3}], s{T+4} offen offset:1536 sc1")
            stamp(a, "p1.kvst")
            waitbar(8)
        elif s < 11:
            e = C.early
            per = -(-len(r)//min(e, 5))
            for x in range(8):
                a(m[x])
                for y in r[x*per:(x+1)*per]: a(y)
                if x == e: waitbar(s+1) if s < 10 else a("s_waitcnt vmcnt(0) lgkmcnt(0)\ns_barrier")
        else:
            aw = aug_w(2, 24)
            a(m[0])
            a(f"s_lshl_b32 s{T+6}, s{ch}, 12\ns_lshl_b32 s{T+7}, s{tt}, 10\ns_add_u32 s{T+6}, s{T+6}, s{T+7}\ns_add_u32 s{T+6}, s{T+6}, {QX}\nv_add_u32 v46, s{T+6}, v{vL16}")
            a(m[1]); [a(x) for x in aw]
            a(f"v_mul_f32 v{RR}, {f2u(0.25*1.4426950408889634)}, v{RR}")
            for x in m[2:]: a(x)
    stamp(a, "p1.mfma")
    a("s_nop 9")
    a(f"v_mfma_f32_32x32x8_bf16 v[{AQ}:{AQ+15}], v[24:25], v[{XM}:{XM+1}], v[{AQ}:{AQ+15}]")
    a(f"buffer_store_dwordx4 v[{ST4}:{ST4+3}], v{vL16}, s[{S_WS}:{S_WS+3}], s{csoff} offen sc1")
    a("s_nop 10")
    for r in range(16): a(f"v_mul_f32 v{AQ+r}, v{AQ+r}, v{RR}")
    for r in range(8): a(f"v_cvt_pk_bf16_f32 v{P+r}, v{AQ+2*r}, v{AQ+2*r+1}")
    a(f"ds_write_b128 v46, v[{P}:{P+3}]\nds_write_b128 v46, v[{P+4}:{P+7}] offset:2048")
    a(f"{LJ}:")
    return OOL

hh, kh, head, kvs, w1s, w1c, wos, tch, ring, kro, kfa = T+2, T+3, T+4, T+5, T+6, T+7, T+8, T+9, T+10, T+11, T+12
TD, VA_, IDX, TA, vF1, vWO, SGA, Q, S, O, KR, VR = 16, 18, 19, 20, 21, 22, 23, 24, [32, 48], [80, 64], 96, 112
ost, osrc, cgive, ctake = 88, 90, 92, 93
CST = E + 33792
CMB = E + 37888

def wo_reads():
    o = []
    for t in range(8):
        for y in range(2):
            b = 80 + 8*t + 4*y
            o += [f"ds_read_b64_tr_b16 v[{b}:{b+1}], v{20+2*y} offset:{t*2048}", f"ds_read_b64_tr_b16 v[{b+2}:{b+3}], v{20+2*y} offset:{t*2048+1024}"]
    return o

def phase2(a):
    t0, t1 = S[0], S[0]+1
    a(f"s_and_b32 s{hh}, s{sW}, 3\ns_lshr_b32 s{kh}, s{sW}, 2\ns_lshl_b32 s{head}, s{sJ}, 2\ns_add_u32 s{head}, s{head}, s{hh}")
    a(f"s_lshl_b32 s{kvs}, s{head}, 17\ns_lshl_b32 s{T}, s{kh}, 11\ns_add_u32 s{kvs}, s{kvs}, s{T}\ns_add_u32 s{kvs}, s{kvs}, s{sLB}")
    a(f"s_lshr_b32 s{kro}, s{sI}, 2\ns_lshl_b32 s{kro}, s{kro}, 14")
    a(f"s_lshl_b32 s{ring}, s{sW}, 12")
    Lk = a.label()
    a(f"s_cmp_lt_u32 s{sW}, 4\ns_cbranch_scc1 {Lk}")
    a(f"v_and_b32 v{t0}, 3, v{vL}\nv_cmp_eq_u32 vcc, 1, v{t0}\nv_mov_b32 v{t1}, 0x3f803f80\ns_nop 0\nv_cndmask_b32 v{t0+4}, 0, v{t1}, vcc")
    a(f"v_mov_b32 v{t0+5}, v{t0+4}\nv_mov_b32 v{t0+6}, v{t0+4}\nv_mov_b32 v{t0+7}, v{t0+4}")
    a(f"s_lshl_b32 s{T}, s{sW}, 10\ns_add_u32 s{T}, s{T}, {CST - 4096}\nv_add_u32 v{t0}, s{T}, v{vL16}\nds_write_b128 v{t0}, v[{t0+4}:{t0+7}]")
    if C.lf: if_wave_eq(a, 5, lambda: kl_poll(a))
    else: if_wave_eq(a, 5, lambda: poll(a, "KV", sJ, 32))
    a(f"{Lk}:")
    def post_setup():
        a(f"v_lshrrev_b32 v{t0}, 5, v{vL}\nv_lshlrev_b32 v{VA_}, 8, v{t0}\nv_and_b32 v{t0}, 15, v{vL}\nv_lshl_add_u32 v{VA_}, v{t0}, 4, v{VA_}\nv_add_u32 v{VA_}, s{ring}, v{VA_}\nv_add_u32 v{VA_}, 1024, v{VA_}")
        a(f"v_add_u32 v{t1}, 4, v{t0}\nv_and_b32 v{t1}, 8, v{t1}\nv_lshlrev_b32 v{t1}, 3, v{t1}\nv_add_u32 v{t1}, {CST}, v{t1}")
        a(f"v_and_b32 v{t0}, 11, v{vL}\nv_cmp_eq_u32 vcc, 0, v{t0}\nv_add_u32 v{t0}, 16, v{t1}\ns_nop 0\nv_cndmask_b32 v{t1}, v{t1}, v{t0}, vcc")
        a(f"v_and_b32 v{t0}, 16, v{vL}\nv_cmp_eq_u32 vcc, 0, v{t0}\ns_nop 1\nv_cndmask_b32 v{VA_}, v{t1}, v{VA_}, vcc")
        a(f"v_mov_b32 v{IDX}, 0xdddddddd\ns_mov_b32 s94, 0xffff\ns_mov_b32 s95, 0xffff")
        for r in range(32): a(f"v_mov_b32 v{64+r}, 0")
        if C.skip7: a(f"s_cmp_ge_u32 s{sI}, 28\ns_cselect_b32 s{S_W1+2}, 0, s{S_W1+2}")
        a(f"s_cmp_lg_u32 s{sL}, 0\ns_cselect_b32 s{S_QKV+2}, 0, s{S_QKV+2}")
        a(f"s_lshr_b32 s{w1s}, s{sW}, 1\ns_mul_i32 s{w1s}, s{w1s}, {512*3584}\ns_lshl_b32 s{T}, s{sI}, 7\ns_add_u32 s{w1s}, s{w1s}, s{T}")
        a(f"s_and_b32 s{T+1}, s{sW}, 1\ns_lshl_b32 s{T+1}, s{T+1}, 6\ns_add_u32 s{w1s}, s{w1s}, s{T+1}\ns_sub_u32 s{w1s}, s{w1s}, {16*3584}")
        if C.tmix:
            a(f"s_lshl_b32 s{tch}, s{sJ}, 2\ns_and_b32 s{T+1}, s{sI}, 3\ns_add_u32 s{tch}, s{tch}, s{T+1}\ns_lshl_b32 s{tch}, s{tch}, 3\ns_add_u32 s{tch}, s{tch}, s{sW}\ns_mul_i32 s{tch}, s{tch}, {7*4096}")
            a(f"s_lshr_b32 s{T+1}, s{sI}, 2\ns_lshl_b32 s{T+1}, s{T+1}, 9\ns_add_u32 s{tch}, s{tch}, s{T+1}")
            a(f"v_lshrrev_b32 v{TA}, 2, v{vL}\nv_lshlrev_b32 v{TA}, 12, v{TA}\nv_and_b32 v{t1}, 3, v{vL}\nv_lshl_add_u32 v{TA}, v{t1}, 7, v{TA}")
        else:
            a(f"s_lshl_b32 s{tch}, s{sJ}, 3\ns_add_u32 s{tch}, s{tch}, s{sW}\ns_mul_i32 s{tch}, s{tch}, {28*4096}\ns_add_u32 s{tch}, s{tch}, s{T}")
            a(f"v_lshlrev_b32 v{TA}, 12, v{vL}")
        a(f"v_cmp_gt_u32 vcc, 28, v{vL}\nv_mov_b32 v{t1}, 0x40000000\ns_nop 0\nv_cndmask_b32 v{TA}, v{t1}, v{TA}, vcc")
        a(f"s_lshl_b32 s{wos}, s{sW}, 13\ns_lshl_b32 s{T}, s{sJ}, 7\ns_add_u32 s{wos}, s{wos}, s{T}")
        a(f"s_lshl_b32 s{T}, s{hh}, 11\ns_add_u32 s{T}, s{T}, {QX}\nv_add_u32 v{t1}, s{T}, v{vL16}\nv_subrev_u32 v{SGA}, {SVO}, v{vTRF}")
        a(f"v_lshrrev_b32 v{t0+2}, 2, v{vL}\nv_and_b32 v{t0+3}, 3, v{vL}\nv_lshlrev_b32 v{t0+3}, 4, v{t0+3}\nv_mul_u32_u24 v{vF1}, 3584, v{t0+2}\nv_add_u32 v{vF1}, v{vF1}, v{t0+3}")
        a(f"v_lshrrev_b32 v{t0+2}, 3, v{vL}\nv_lshlrev_b32 v{t0+2}, 11, v{t0+2}\nv_sub_u32 v{vWO}, v{vWQ}, v{t0+2}")
        if C.lf: flag_addr(a, "KV", kfa)
    a("s_waitcnt lgkmcnt(0)\ns_barrier")
    stamp(a, "p2.start")
    vm = VM()
    kcur = T+13
    assert C.lfi < C.lfc
    GP = 128
    def kv_issue(t):
        k = KR + 4*(t & 3)
        if t % 4 == 0: a(f"s_add_u32 s{kcur}, s{kvs}, s{kro}\ns_add_u32 s{kro}, s{kro}, 16384\ns_and_b32 s{kro}, s{kro}, {'0x3fff' if C.kvsame else '0x1ffff'}")
        else: a(f"s_addk_i32 s{kcur}, 4096")
        a(f"s_add_u32 m0, s{ring}, {(t & 3)*1024}")
        a(f"buffer_load_dwordx4 v[{k}:{k+3}], v{vL16}, s[{S_WS}:{S_WS+3}], s{kcur} offen sc1{' nt' if C.ntkv else ''}")
        a(f"buffer_load_dwordx4 v{vL16}, s[{S_WS}:{S_WS+3}], s{kcur} offen offset:1024 sc1{' nt' if C.ntkv else ''} lds")
        vm.add(("kv", t), 2)
    def v_read(t):
        v = VR + 8*(t & 1)
        msk = C.vmask and t >= 2
        if msk: a(f"s_mov_b64 exec, s[94:95]")
        a(f"ds_read_b128 v[{v}:{v+3}], v{VA_} offset:{(t & 3)*1024}\nds_read_b128 v[{v+4}:{v+7}], v{VA_} offset:{(t & 3)*1024 + 512}")
        if msk: a("s_mov_b64 exec, -1")
    def w1_issue(f):
        if f % 4 == 0:
            a(f"s_add_u32 s{w1c}, s{sJR}, {f//4}\ns_and_b32 s{w1c}, s{w1c}, 7\ns_mul_i32 s{w1c}, s{w1c}, {64*3584}\ns_add_u32 s{w1c}, s{w1c}, s{w1s}")
        a(f"s_add_u32 m0, s{sVW}, {STG - V + (f & 3)*8192}\ns_add_u32 s{w1c}, s{w1c}, {16*3584}")
        a(f"buffer_load_dwordx4 v{vF1}, s[{S_W1}:{S_W1+3}], s{w1c} offen{' nt' if C.w1nt else ''} lds")
        vm.add(("w1", f))
    def wo_issue(u):
        a(f"s_add_u32 m0, s{sVW}, {SVO + u*8192}\ns_add_u32 s{T}, s{wos}, {u*65536}")
        a(f"buffer_load_dwordx4 v{vWO}, s[{S_WO}:{S_WO+3}], s{T} offen lds")
        vm.add(("wo", u))
    def touch(n):
        a(f"s_cmp_eq_u32 s{sJ}, {n}\ns_cselect_b32 s{T}, s{tch}, 0x40000000")
        a(f"buffer_load_dword v{TD}, v{TA}, s[{S_W2}:{S_W2+3}], s{T} offen")
        vm.add(("t", n))
    def ex(s, r0, r1):
        for r in range(r0, r1): a(f"v_exp_f32 v{s+r}, v{s+r}")
    def setprio(p):
        L = a.label()
        a(f"s_cmp_lg_u32 s{kh}, 0\ns_cbranch_scc1 {L}\ns_setprio {p}\n{L}:")
    def qk(q, t): a(f"v_mfma_f32_32x32x16_bf16 v[{S[q]}:{S[q]+15}], v[{KR+4*(t&3)}:{KR+4*(t&3)+3}], v[{Q+4*q}:{Q+4*q+3}], 0")
    def pv(q, t, h): a(f"v_smfmac_f32_32x32x32_bf16 v[{O[q]}:{O[q]+15}], v[{VR+8*(t&1)+4*h}:{VR+8*(t&1)+4*h+3}], v[{S[q]+8*h}:{S[q]+8*h+7}], v{IDX}")
    kv_issue(0); kv_issue(1)
    post_setup()
    a(f"s_lshl_b32 s{T}, s{kh}, 10\nv_add_u32 v{t1}, s{T}, v{t1}\nv_xor_b32 v{t0}, 1024, v{t1}")
    a(f"ds_read_b128 v[{Q}:{Q+3}], v{t0}\nds_read_b128 v[{Q+4}:{Q+7}], v{t1}")
    a(f"s_lshl_b32 s{ost}, s{sI}, 1\ns_add_u32 s{ost}, s{ost}, s{kh}\ns_lshl_b32 s{ost}, s{ost}, 5\ns_add_u32 s{ost}, s{ost}, s{head}\ns_lshl_b32 s{ost}, s{ost}, 10")
    a(f"s_add_u32 s{ost}, s{ost}, {WS_O}\ns_add_u32 s{ost}, s{ost}, s{sLB}")
    a(f"s_and_b32 s{osrc}, s{sW}, 1\ns_lshl_b32 s{osrc}, s{osrc}, 15\ns_lshr_b32 s{T}, s{sW}, 1\ns_lshl_b32 s{T}, s{T}, 13\ns_add_u32 s{osrc}, s{osrc}, s{T}")
    a(f"s_lshl_b32 s{T}, s{sI}, 16\ns_add_u32 s{osrc}, s{osrc}, s{T}\ns_add_u32 s{osrc}, s{osrc}, {WS_O}\ns_add_u32 s{osrc}, s{osrc}, s{sLB}\ns_add_u32 s{osrc+1}, s{osrc}, 4096")
    a(f"s_mul_i32 s{cgive}, s{sW}, 3072\ns_add_u32 s{cgive}, s{cgive}, {CMB}\ns_xor_b32 s{ctake}, s{sW}, 4\ns_mul_i32 s{ctake}, s{ctake}, 3072\ns_add_u32 s{ctake}, s{ctake}, {CMB}")
    tr_addr(a, 131, "0", True, 132, 133)
    a(f"s_lshr_b32 s{T}, s{sW}, 1\ns_lshl_b32 s{T}, s{T}, 14\ns_add_u32 s{T}, s{T}, {V+SVO}\nv_add_u32 v131, s{T}, v131")
    if C.prio: a("s_setprio 1")
    a(f"s_waitcnt vmcnt(2) lgkmcnt(0)")
    qk(0, 0)
    v_read(0)
    kv_issue(2); kv_issue(3)
    a(f"s_lshr_b32 s{T}, s{sI}, 2\ns_lshl_b32 s{T}, s{T}, 9\ns_add_u32 s{T}, s{T}, {WS_XT}\nv_and_b32 v17, 0x1f0, v{vL16}")
    a(f"buffer_load_dword v17, v17, s[{S_WS}:{S_WS+3}], s{T} offen sc1"); vm.add("xt")
    if C.w1a:
        n = 28 if C.w1a == 1 else 14
        a(f"s_lshl_b32 s{T}, s2, 3\ns_add_u32 s{T}, s{T}, s{sW}" + (f"\ns_mul_i32 s{T}, s{T}, {28*128}" if C.w1a == 1 else f"\ns_lshr_b32 s{T+1}, s{T}, 2\ns_mul_i32 s{T+1}, s{T+1}, {112*128}\ns_and_b32 s{T}, s{T}, 3\ns_mul_i32 s{T}, s{T}, {14*128}\ns_add_u32 s{T}, s{T}, s{T+1}"))
        a(f"s_lshl_b32 s{T+1}, s{sL}, 30\ns_add_u32 s{T}, s{T}, s{T+1}\nv_min_u32 v134, {n-1}, v{vL}\nv_lshlrev_b32 v134, 7, v134\nbuffer_load_dword v134, v134, s[{S_W1}:{S_W1+3}], s{T} offen")
        vm.add("w1a")
    if C.c3:
        a(f"s_lshr_b32 s{T}, s2, 3\ns_lshl_b32 s{T}, s{T}, 3\ns_add_u32 s{T}, s{T}, s{sW}\ns_lshl_b32 s{T+1}, s{T}, 11\ns_add_u32 s{T+1}, s{T+1}, 384")
        a(f"v_min_u32 v{GP+1}, 1, v{vL}\nv_lshlrev_b32 v{GP+1}, 10, v{GP+1}\nbuffer_load_dword v{GP+1}, v{GP+1}, s[{S_WO}:{S_WO+3}], s{T+1} offen")
        a(f"s_mul_i32 s{T}, s{T}, {8*3584}\ns_or_b32 s{T+1}, s{sI}, 3\ns_lshl_b32 s{T+1}, s{T+1}, 7\ns_add_u32 s{T}, s{T}, s{T+1}")
        a(f"v_min_u32 v{GP+2}, 7, v{vL}\nv_mul_u32_u24 v{GP+2}, 3584, v{GP+2}\nbuffer_load_dword v{GP+2}, v{GP+2}, s[{S_W1}:{S_W1+3}], s{T} offen")
        vm.add("c3", 2)
    stamp(a, "p2.kv0")
    a("s_nop 1")
    per = C.pper; low = C.plow
    m1, m2, m3 = [int(c, 16) for c in C.mp]; cp = min(max(C.cpos, m2), m3); assert m1 >= 2 and m3 >= 10
    for t in range(32):
        for q in range(2):
            hidx = 2*t + q
            if C.prio and hidx % per == 0: setprio(2)
            if C.prio and hidx % per == per - low: setprio(0)
            ex(S[q], 0, m1)
            if q == 0:
                if t > 0: pv(1, t-1, 1)
            else: pv(0, t, 1)
            ex(S[q], m1, m2)
            nq = len(a.L)
            if q == 0:
                qk(1, t)
                ex(S[q], m2, cp)
                need = [("kv", t+1)] if t < 31 else []
                if not C.nox and 3 <= t < 31: need.append(("w1", t-3))
                if C.lf and t == C.lfc: need.append("gp")
                a(f"s_waitcnt vmcnt({vm.need(*need) if need else 63}) lgkmcnt(0)")
                if C.lf and t == C.lfi: apoll_issue(a, kfa, GP); vm.add("gp")
                if C.lf and t == C.lfc:
                    apoll_check(a, kfa, GP, 32)
                    for k in range(4, t+4): kv_issue(k)
                if t+4 < 32 and not (C.lf and t < C.lfc): kv_issue(t+4)
                if t+1 < 32: v_read(t+1)
                if not C.nox and not C.split:
                    w1_issue(t)
                    if 3 <= t < 31:
                        for x in frag_reads(f"a{4*(t-3)}", SGA, ((t-3) & 3)*8192): a(x)
            else:
                if t < 31: qk(0, t+1)
                ex(S[q], m2, cp)
                if not C.nox:
                    if C.split:
                        w1_issue(t)
                        if 3 <= t < 31:
                            for x in frag_reads(f"a{4*(t-3)}", SGA, ((t-3) & 3)*8192): a(x)
                    if t == C.prett and C.preto:
                        a(f"buffer_load_dword v{TD}, v{vL16}, s[{S_WS}:{S_WS+3}], s{ost} offen sc1")
                        vm.add("pre")
                        if C.prets:
                            a(f"s_lshl_b32 s{T}, s{sI}, 3\ns_add_u32 s{T}, s{T}, s{sJ}\ns_lshl_b32 s{T}, s{T}, 10\ns_add_u32 s{T}, s{T}, {WS_ST}\ns_add_u32 s{T}, s{T}, s{sLB}")
                            a(f"buffer_load_dword v{TD}, v{vL16}, s[{S_WS}:{S_WS+3}], s{T} offen sc1")
                            vm.add("pre2")
                    if t == C.cpf2 and C.cpf2 and not C.vmask:
                        a(f"s_getpc_b64 s[{T}:{T+1}]\nL_pc1:\ns_lshr_b32 s94, s2, 3\ns_lshl_b32 s94, s94, 3\ns_add_u32 s94, s94, s{sW}\ns_lshl_b32 s94, s94, 6\ns_min_u32 s94, s94, SPAN2\nv_mov_b32 v134, s94")
                        a(f"global_load_dword v135, v134, s[{T}:{T+1}]"); vm.add("cp")
                    if t % 3 == 1 and t < 24: wo_issue(t//3)
                    if t == 8: a(f"v_readfirstlane_b32 s{T}, v17\ns_nop 1\nv_cmp_ne_u32 vcc, s{T}, v17\ns_nop 1\ns_cmp_eq_u64 vcc, 0\ns_cselect_b32 s{sLOC}, 1, 0")
                    if t % 4 == 3 and C.stouch == 1: touch(t//4)
                    if t % 3 == 2 and t < 24 and C.stouch == 2: touch(t//3)
                    if t == C.t2:
                        a(f"buffer_load_dword v{TD}, v{TA}, s[{S_W2}:{S_W2+3}], s{tch} offen{' nt' if C.w2nt else ''}"); vm.add("t2")
            ex(S[q], cp, m3)
            pv(q, t, 0)
            if t == 31 and q == 1:
                a(f"s_mov_b32 m0, s{cgive}\nv_mov_b32 v20, v131\nv_xor_b32 v22, 64, v131")
                for r in range(9): a(f"ds_write_addtid_b32 v{O[0]+r} offset:{256*r}")
            ex(S[q], m3, 16)
            gap = sum(1 for x in a.L[nq+1:] if not x.endswith(':'))
            if gap < 12: a(f's_nop {11 - gap}')
    a("s_nop 1")
    pv(1, 31, 1)
    if C.prio: a("s_setprio 0")
    stamp(a, "p2.loop")
    M, N = O[1], 36
    assert C.nox or vm.need(("wo", 7)) >= vm.need(("kv", 31))
    a(f"s_mov_b32 m0, s{ctake}\ns_waitcnt lgkmcnt(0)\ns_barrier")
    stamp(a, "zc.cmb")
    for r in range(9): a(f"ds_read_addtid_b32 v{N+r} offset:{256*r}")
    wr_ = wo_reads()
    for x in wr_[:6]: a(x)
    a("s_waitcnt lgkmcnt(6)")
    for r in range(9): a(f"v_add_f32 v{M+r}, v{M+r}, v{N+r}")
    for x in wr_[6:C.wo1]: a(x)
    a(f"v_add_f32 v{N}, abs(v{M}), abs(v{M+1})\nv_add_f32 v{N+1}, abs(v{M+2}), abs(v{M+3})\nv_add_f32 v{N+2}, abs(v{M+4}), abs(v{M+5})\nv_add_f32 v{N+3}, abs(v{M+6}), abs(v{M+7})")
    a(f"v_add_f32 v{N}, v{N}, v{N+1}\nv_add_f32 v{N+2}, v{N+2}, v{N+3}\nv_cmp_nge_f32 vcc, {f2u(2.0**60)}, v{M+8}\nv_add_f32 v{N}, v{N}, v{N+2}")
    a(f"s_mov_b64 s[{T+12}:{T+13}], vcc\nv_cmp_nle_f32 vcc, {f2u(2.0**-60)}, v{M+8}\ns_nop 0\ns_or_b64 s[{T+12}:{T+13}], s[{T+12}:{T+13}], vcc")
    a(f"v_cmp_ngt_f32 vcc, 0x7f800000, v{N}\ns_nop 0\ns_or_b64 s[{T+12}:{T+13}], s[{T+12}:{T+13}], vcc\ns_cbranch_scc1 L_softmax_safe\nL_softmax_done:")
    a(f"v_rcp_f32 v{M+8}, v{M+8}\ns_nop 0")
    for r in range(8): a(f"v_mul_f32 v{M+r}, v{M+r}, v{M+8}")
    for r in range(4): a(f"v_cvt_pk_bf16_f32 v{N+r}, v{M+2*r}, v{M+1+2*r}")
    if C.sent:
        for r in range(4): a(f"v_min_u32 v{N+r}, -2, v{N+r}")
    rstore(a, f"buffer_store_dwordx4 v[{N}:{N+3}], v{vL16}, s[{S_WS}:{S_WS+3}], s{ost} offen", bulk=not C.ldo)
    for x in wr_[C.wo1:]: a(x)

def softmax_safe(a):
    M = O[1]
    QF, KF, VF, SS, CC, OO, MX, VO = Q+4, 104, 108, 48, 80, 120, 116, 117
    base, cur, n = T+12, T+13, T+14
    a("L_softmax_safe:")
    a("s_waitcnt lgkmcnt(0)")
    a(f"s_lshl_b32 s{base}, s{head}, 17\ns_add_u32 s{base}, s{base}, s{sLB}")
    a(f"v_mov_b32 v{MX}, 0xff800000\ns_mov_b32 s{cur}, s{base}\ns_mov_b32 s{n}, 64")
    L1 = a.label()
    a(f"{L1}:")
    a(f"buffer_load_dwordx4 v[{KF}:{KF+3}], v{vL16}, s[{S_WS}:{S_WS+3}], s{cur} offen sc1\ns_waitcnt vmcnt(0)")
    a(f"v_mfma_f32_32x32x16_bf16 v[{SS}:{SS+15}], v[{KF}:{KF+3}], v[{QF}:{QF+3}], 0\ns_nop 15")
    for r in range(0, 16, 2): a(f"v_max3_f32 v{MX}, v{MX}, v{SS+r}, v{SS+r+1}")
    a(f"s_add_u32 s{cur}, s{cur}, 2048\ns_sub_u32 s{n}, s{n}, 1\ns_cmp_lg_u32 s{n}, 0\ns_cbranch_scc1 {L1}")
    a(f"v_mov_b32 v{VO}, v{MX}\ns_nop 1\nv_permlane32_swap_b32 v{MX}, v{VO}\ns_nop 1\nv_max_f32 v{MX}, v{MX}, v{VO}")
    for r in range(16): a(f"v_sub_f32 v{CC+r}, 0, v{MX}\nv_mov_b32 v{OO+r}, 0")
    for r in range(8): a(f"v_mov_b32 v{VF+r}, 0x3f803f80")
    a(f"v_lshrrev_b32 v{MX}, 5, v{vL}\nv_lshlrev_b32 v{VO}, 8, v{MX}\nv_and_b32 v{MX}, 15, v{vL}\nv_lshl_add_u32 v{VO}, v{MX}, 4, v{VO}")
    a(f"s_mov_b32 s{cur}, s{base}\ns_mov_b32 s{n}, 64")
    L2 = a.label()
    a(f"{L2}:")
    a(f"buffer_load_dwordx4 v[{KF}:{KF+3}], v{vL16}, s[{S_WS}:{S_WS+3}], s{cur} offen sc1")
    a("s_mov_b32 exec_lo, 0xffff\ns_mov_b32 exec_hi, 0xffff")
    a(f"buffer_load_dwordx4 v[{VF}:{VF+3}], v{VO}, s[{S_WS}:{S_WS+3}], s{cur} offen offset:1024 sc1")
    a(f"buffer_load_dwordx4 v[{VF+4}:{VF+7}], v{VO}, s[{S_WS}:{S_WS+3}], s{cur} offen offset:1536 sc1")
    a("s_mov_b64 exec, -1\ns_waitcnt vmcnt(0)")
    a(f"v_mfma_f32_32x32x16_bf16 v[{SS}:{SS+15}], v[{KF}:{KF+3}], v[{QF}:{QF+3}], v[{CC}:{CC+15}]\ns_nop 15")
    for r in range(16): a(f"v_exp_f32 v{SS+r}, v{SS+r}")
    a("s_nop 1")
    a(f"v_smfmac_f32_32x32x32_bf16 v[{OO}:{OO+15}], v[{VF}:{VF+3}], v[{SS}:{SS+7}], v{IDX}")
    a(f"v_smfmac_f32_32x32x32_bf16 v[{OO}:{OO+15}], v[{VF+4}:{VF+7}], v[{SS+8}:{SS+15}], v{IDX}\ns_nop 15")
    a(f"s_add_u32 s{cur}, s{cur}, 2048\ns_sub_u32 s{n}, s{n}, 1\ns_cmp_lg_u32 s{n}, 0\ns_cbranch_scc1 {L2}")
    for r in range(9): a(f"v_mov_b32 v{M+r}, v{OO+r}")
    for x in wo_reads()[:C.wo1]: a(x)
    a("s_branch L_softmax_done")

EOFF = 61692
def ep2_writes(acc, base, sw4k):
    off = EOFF if base >= EOFF else 0
    o = [f"ds_write_addtid_b32 v{acc+r} offset:{off + r*256}" for r in range(16)]
    o[0] = f"s_add_u32 m0, s{sw4k}, {base - off}\ns_nop 0\n" + o[0]
    return o

def ep2_read_addr(a, ra, base0, base1, sw4k, tv):
    a(f"s_and_b32 s{T}, s{sW}, 1\ns_lshl_b32 s{T}, s{T}, 2\ns_lshr_b32 s{T+1}, s{sW}, 1\ns_add_u32 s{T}, s{T}, s{T+1}\ns_lshl_b32 s{sw4k}, s{T}, 12")
    a(f"s_lshr_b32 s{T}, s{sW}, 2\ns_lshl_b32 s{T}, s{T}, 14\ns_and_b32 s{T+1}, s{sW}, 3\ns_lshl_b32 s{T+1}, s{T+1}, 10\ns_add_u32 s{T}, s{T}, s{T+1}\ns_add_u32 s{T}, s{T}, {base0}")
    a(f"v_and_b32 v{tv}, 3, v{vN}\nv_lshlrev_b32 v{ra}, 8, v{tv}\nv_bfe_u32 v{tv}, v{vN}, 2, 1\nv_lshl_add_u32 v{ra}, v{tv}, 7, v{ra}\nv_and_b32 v{tv}, 3, v{vC}\nv_lshl_add_u32 v{ra}, v{tv}, 5, v{ra}")
    a(f"v_add_u32 v{ra}, s{T}, v{ra}\nv_lshrrev_b32 v{tv}, 2, v{vC}\nv_mul_i32_i24 v{tv}, {base1 - base0}, v{tv}\nv_add_u32 v{ra}, v{ra}, v{tv}")

def ep2_sum(a, ra, add0, out):
    for k in range(4):
        a(f"ds_read_b128 v[{out+8*k}:{out+8*k+3}], v{ra} offset:{4096*k}\nds_read_b128 v[{out+8*k+4}:{out+8*k+7}], v{ra} offset:{4096*k+16}")
    def pk(d, x, y):
        for e in range(0, 8, 2): a(f"v_pk_add_f32 v[{d+e}:{d+e+1}], v[{x+e}:{x+e+1}], v[{y+e}:{y+e+1}]")
    a("s_waitcnt lgkmcnt(6)")
    pk(out, out, add0)
    a("s_waitcnt lgkmcnt(4)")
    pk(out, out, out+8)
    a("s_waitcnt lgkmcnt(2)")
    pk(out, out, out+16)
    a("s_waitcnt lgkmcnt(0)")
    pk(out, out, out+24)

def unpack8(a, dst, src):
    for e in range(4): a(f"v_lshlrev_b32 v{dst+2*e}, 16, v{src+e}\nv_and_b32 v{dst+1+2*e}, 0xffff0000, v{src+e}")

def phase3(a):
    stamp(a, "zc.ost")
    OF, ACC, WF = 16, 48, 80
    src = osrc
    n3 = [int(c) for c in C.sch3]; assert n3[0] == 4 and sum(n3) == 12
    spin = T+6
    if not C.sent:
        a("s_waitcnt vmcnt(0) lgkmcnt(0)\ns_barrier")
        stamp(a, "p2.end")
        if_wave_eq(a, 0, lambda: publish(a, "O", sI))
        for f in range(n3[0]): w2_dma(a, f)
        if_wave_eq(a, 0, lambda: poll(a, "O", sI, 8))
        a("s_barrier")
        stamp(a, "proj.polled")
    else:
        a(f"s_mov_b32 s{spin}, {SPIN}\ns_waitcnt {'vmcnt(0) ' if C.sentwait == 1 else ''}lgkmcnt(0)\ns_barrier")
        stamp(a, "p2.end")
    LT = a.label()
    a(f"{LT}:")
    for t in range(8):
        if C.lprio and t % 2 == 0: a(f"s_setprio {3 - t//2}")
        a(f"buffer_load_dwordx4 v[{OF+4*t}:{OF+4*t+3}], v{vL16}, s[{S_WS}:{S_WS+3}], s{src + (t >> 2)} offen offset:{(t & 3)*1024} sc1")
    for t in range(8):
        a(f"s_waitcnt vmcnt({7-t})")
        for y in range(2):
            c = "0" if t == 0 else f"v[{ACC+16*y}:{ACC+16*y+15}]"
            a(f"v_mfma_f32_32x32x16_bf16 v[{ACC+16*y}:{ACC+16*y+15}], v[{OF+4*t}:{OF+4*t+3}], v[{WF+8*t+4*y}:{WF+8*t+4*y+3}], {c}")
            if C.sent:
                o = OF + 4*t + 2*y
                a(f"v_max_u32 v0, v{o}, v{o+1}" if t == 0 and y == 0 else f"v_max3_u32 v0, v0, v{o}, v{o+1}")
    if C.sent:
        a(f"v_cmp_eq_u32 vcc, -1, v0\ns_sub_u32 s{spin}, s{spin}, 1\ns_cselect_b64 vcc, 0, vcc\ns_cbranch_vccnz {LT}")
    if C.sent and C.w2pos == 1:
        for f in range(n3[0]): w2_dma(a, f)
    ep2_read_addr(a, 88, V+SVO, E+16, T+4, 80)
    stamp(a, "proj.loop")
    OUT = 104
    for x in ep2_writes(ACC, V+SVO, T+4) + ep2_writes(ACC+16, E+16, T+4): a(x)
    unpack8(a, 96, vRES)
    if C.sent and C.w2pos == 0:
        for f in range(n3[0]): w2_dma(a, f)
    GA, GB, HA, SG_, G4, ONE = 16, 17, 18, 19, 20, 24
    sga, sgb, sh = T+7, T+8, T+9
    a(f"s_lshl_b32 s{sgb}, s{sI}, 13\ns_add_u32 s{sgb}, s{sgb}, {WS_ST}\ns_add_u32 s{sgb}, s{sgb}, s{sLB}\ns_lshl_b32 s{sga}, s{sJ}, 10\ns_add_u32 s{sga}, s{sga}, s{sgb}")
    a(f"s_lshl_b32 s{sh}, s{sJ}, 18\ns_lshl_b32 s{T}, s{sI}, 12\ns_add_u32 s{sh}, s{sh}, s{T}\ns_add_u32 s{sh}, s{sh}, {WS_H}\ns_add_u32 s{sh}, s{sh}, s{sLB}")
    a(f"v_lshlrev_b32 v{GA}, 4, v{vN}\nv_lshl_add_u32 v{GB}, v{vC}, 10, v{GA}")
    a(f"v_lshrrev_b32 v{HA}, 2, v{vC}\nv_lshlrev_b32 v{HA}, 17, v{HA}\nv_lshl_add_u32 v{HA}, v{vN}, 6, v{HA}\nv_and_b32 v{SG_}, 3, v{vC}\nv_lshl_add_u32 v{HA}, v{SG_}, 4, v{HA}")
    a(f"v_subrev_u32 v{SG_}, {SVO}, v{vTRF}\nv_mov_b32 v{G4}, 0\nv_mov_b32 v{G4+1}, 1\nv_mov_b32 v{G4+2}, 0\nv_mov_b32 v{G4+3}, 1\nv_mov_b32 v{ONE}, 0x3f803f80")
    a(f"s_mov_b32 s{T+2}, 0x01010101\ns_mov_b32 s{T+3}, 0x01010101\ns_mov_b32 s{spin}, {SPIN}")
    a("s_waitcnt lgkmcnt(0)\ns_barrier")
    stamp(a, "zc.epb")
    ep2_sum(a, 88, 96, OUT)
    for e in range(4): a(f"v_cvt_pk_bf16_f32 v{vRES+e}, v{OUT+2*e}, v{OUT+1+2*e}")
    for e in range(4): a(f"v_dot2c_f32_bf16 v{G4}, v{vRES+e}, v{ONE}\nv_dot2c_f32_bf16 v{G4+2}, v{vRES+e}, v{vRES+e}")
    a("s_nop 0")
    dpp_red8(a, [G4, G4+2])
    a(f"s_mov_b64 exec, s[{T+2}:{T+3}]")
    rstore(a, f"buffer_store_dwordx4 v[{G4}:{G4+3}], v{GA}, s[{S_WS}:{S_WS+3}], s{sga} offen")
    a("s_mov_b64 exec, -1")
    stamp(a, "proj.st")
    for c in range(4):
        for x in frag_reads(f"v{W1T+4*c}", SG_, c*8192): a(x)
    if not C.sent:
        for f in range(4):
            for x in w2_reads(f): a(x)
    unpack8(a, 80, vRES)
    LP = a.label(); LD = a.label()
    a(f"{LP}:")
    a(f"buffer_load_dwordx4 v[68:71], v{GB}, s[{S_WS}:{S_WS+3}], s{sgb} offen sc1")
    a("s_waitcnt vmcnt(0)\nv_and_b32 v72, v69, v71\nv_cmp_ne_u32 vcc, 1, v72")
    a(f"s_cbranch_vccz {LD}")
    a(f"s_sub_u32 s{spin}, s{spin}, 1\ns_cmp_lg_u32 s{spin}, 0\ns_cbranch_scc1 {LP}")
    a(f"{LD}:")
    stamp(a, "proj.stat")
    dpp_red8(a, [68, 70])
    a(f"v_mul_f32 v68, {f2u(1/512)}, v68\nv_mul_f32 v70, {f2u(1/512)}, v70")
    a("v_fma_f32 v70, -v68, v68, v70\nv_max_f32 v70, 0, v70")
    a(f"v_mov_b32 v71, {f2u(1e-10)}\nv_fmac_f32 v71, {f2u(1.0 + 1e-5)}, v70\nv_rsq_f32 v70, v71\ns_nop 0")
    a("v_mul_f32 v72, v68, v70\nv_sub_f32 v72, 0, v72\nv_mov_b32 v71, v70\nv_mov_b32 v73, v72")
    for e in range(0, 8, 2): a(f"v_pk_fma_f32 v[{80+e}:{81+e}], v[{80+e}:{81+e}], v[70:71], v[72:73]")
    for e in range(4): a(f"v_cvt_pk_bf16_f32 v{76+e}, v{80+2*e}, v{81+2*e}")
    a(f"buffer_store_dwordx4 v[76:79], v{HA}, s[{S_WS}:{S_WS+3}], s{sh} offen sc1")
    stamp(a, "zc.hst")
    if C.sent:
        for f in range(4):
            for x in w2_reads(f): a(x)
    assert C.x4 != 1
    a("s_waitcnt lgkmcnt(0)")
    rest3 = [8, 9, 10, 11, 4, 5, 6, 7]
    assert n3[1] <= 4
    for f in rest3[:n3[1]]: w2_dma(a, f)
    a(f"s_waitcnt vmcnt({n3[1]})\ns_barrier")
    stamp(a, "proj.end")
    if_wave_eq(a, 0, lambda: publish(a, "H", sJ))
    if C.sent:
        L = a.label()
        a(f"s_cmp_lg_u32 s{sL}, 0\ns_cbranch_scc1 {L}\nv_mov_b32 v72, -1\nv_mov_b32 v73, -1\nv_mov_b32 v74, -1\nv_mov_b32 v75, -1")
        a(f"s_add_u32 s{T}, s{ost}, {LSTRIDE}\nbuffer_store_dwordx4 v[72:75], v{vL16}, s[{S_WS}:{S_WS+3}], s{T} offen sc1\n{L}:")
    for f in rest3[n3[1]:]: w2_dma(a, f)
    if C.x4 == 2: w2x_dma(a)

EPO = 61440
W1T = 128

def flag_addr(a, kind, sd):
    a(f"s_lshl_b32 s{sd}, s{sJ}, 10\ns_add_u32 s{sd}, s{sd}, {FL[kind]*128}\ns_add_u32 s{sd}, s{sd}, s{sFL}")
    a(f"s_lshr_b32 s{T+1}, s{sI}, 2\ns_lshl_b32 s{T+1}, s{T+1}, 7\ns_add_u32 s{sd}, s{sd}, s{T+1}")

def apoll_issue(a, sd, v):
    a(f"s_mov_b64 exec, 1\nbuffer_load_dword v{v}, v{vL16}, s[{S_WS}:{S_WS+3}], s{sd} offen sc1\ns_mov_b64 exec, -1")

def apoll_check(a, sd, v, n):
    LP = a.label(); LD = a.label()
    a(f"s_mov_b64 exec, 1\ns_mov_b32 s{T+1}, {SPIN}\n{LP}:\nv_cmp_ne_u32 vcc, {n}, v{v}\ns_cbranch_vccz {LD}")
    a(f"buffer_load_dword v{v}, v{vL16}, s[{S_WS}:{S_WS+3}], s{sd} offen sc1\ns_waitcnt vmcnt(0)")
    a(f"s_sub_u32 s{T+1}, s{T+1}, 1\ns_cmp_lg_u32 s{T+1}, 0\ns_cbranch_scc1 {LP}\n{LD}:\ns_mov_b64 exec, -1")

def mlp(a):
    R = 4
    EP = STG
    ERA, UA, YA5, B1, YA4, C1, RA_, WA_, ADD = 21, 20, 22, 24, 28, 29, 30, 128, 136
    ACC, F, ET, PV_, B2 = 48, [80, 96], (48 if C.x4 else 112), 19, 18
    TT = 128
    NW2 = 24 if C.x4 else 28
    xr = [x for c in range(4) for x in frag_reads(w2_reg(24+c), 17, c*8192)] if C.x4 else []
    src4, dst, qb, src5, rot, ust, fa, fb, gc2, ewb = T+2, T+3, T+4, T+5, T+6, T+7, T+8, T+9, T+11, T+12
    a(f"v_lshlrev_b32 v{ERA}, 1, v{vN}\ns_lshl_b32 s{T}, s{sI}, 7")
    a(f"buffer_load_ushort v{B2}, v{ERA}, s[{S_B2}:{S_B2+3}], s{T} offen")
    a(f"s_lshr_b32 s{T}, s{sW}, 1\ns_and_b32 s{T+1}, s{sW}, 1\ns_lshl_b32 s{T+1}, s{T+1}, 11\ns_add_u32 s{T+1}, s{T+1}, s{sLB}")
    a(f"s_mul_i32 s{src5}, s{sJ}, {2*114688}\ns_mul_i32 s{dst}, s{T}, {28*1024}\ns_add_u32 s{src5}, s{src5}, s{dst}\ns_add_u32 s{src5}, s{src5}, s{T+1}\ns_add_u32 s{src5}, s{src5}, {WS_U}")
    a(f"s_lshl_b32 s{src4}, s{sJ}, 18\ns_lshl_b32 s{dst}, s{T}, 15\ns_add_u32 s{src4}, s{src4}, s{dst}\ns_add_u32 s{src4}, s{src4}, s{T+1}\ns_add_u32 s{src4}, s{src4}, {WS_H}")
    a(f"s_mul_i32 s{ust}, s{sJ}, {2*114688}\ns_lshl_b32 s{dst}, s{sI}, 12\ns_add_u32 s{ust}, s{ust}, s{dst}\ns_lshl_b32 s{dst}, s{T}, 9\ns_add_u32 s{ust}, s{ust}, s{dst}\ns_add_u32 s{ust}, s{ust}, s{T+1}\ns_add_u32 s{ust}, s{ust}, {WS_U}")
    a(f"s_lshl_b32 s{dst}, s{sW}, 11\ns_lshl_b32 s{T}, s{T}, 12")
    a(f"v_bfe_u32 v16, v{vL}, 3, 2\nv_lshlrev_b32 v{YA5}, 9, v16\nv_and_b32 v16, 3, v{vL}\nv_lshl_add_u32 v{YA5}, v16, 7, v{YA5}\nv_bfe_u32 v16, v{vL}, 2, 1\nv_lshl_add_u32 v{YA5}, v16, 6, v{YA5}")
    a(f"v_bfe_u32 v16, v{vL}, 1, 1\nv_bfe_u32 v17, v{vL}, 4, 1\nv_lshl_add_u32 v16, v17, 1, v16\nv_lshrrev_b32 v17, 5, v{vL}\nv_xor_b32 v16, v16, v17\nv_lshl_add_u32 v{YA5}, v16, 4, v{YA5}")
    a(f"v_add_u32 v{YA5}, s{T}, v{YA5}\nv_xor_b32 v{YA5+1}, 32, v{YA5}")
    a(f"s_sub_u32 s{T}, s{T}, s{sVW}\ns_sub_u32 s{T}, s{T}, {SVO}\nv_add_u32 v{YA4}, s{T}, v{vTRF}")
    a(f"s_and_b32 s{T}, s{sW}, 1\ns_lshl_b32 s{T}, s{T}, 11\nv_add_u32 v31, s{T}, v{YA4}")
    a(f"s_lshl_b32 s{rot}, s{sJR}, 12")
    qkv_base8(a, qb)
    flag_addr(a, "U", fa); flag_addr(a, "UB", fb)
    LS = a.label(); LM = a.label()
    a(f"s_cmp_ge_u32 s{sI}, 28\ns_cbranch_scc1 {LS}")
    vm = VM()
    a(f"s_and_b32 s{T}, s{sW}, 1\ns_lshr_b32 s{T+1}, s{sW}, 1")
    a(f"s_lshl_b32 s{ewb}, s{T}, 14\ns_add_u32 s{ewb}, s{ewb}, {EP}\ns_lshl_b32 s{T+10}, s{T+1}, 10\ns_add_u32 s{T+10}, s{T+10}, s{ewb}\nv_add_u32 v{ERA}, s{T+10}, v{vL16}")
    a(f"s_lshl_b32 s{T+10}, s{T+1}, 12\ns_add_u32 s{ewb}, s{ewb}, s{T+10}")
    a(f"s_lshl_b32 s{T}, s{T}, 6\ns_lshl_b32 s{T+10}, s{sI}, 7\ns_add_u32 s{T}, s{T}, s{T+10}\nv_lshlrev_b32 v16, 3, v{vC}")
    a(f"buffer_load_dwordx2 v[{B1+2}:{B1+3}], v16, s[{S_B1}:{S_B1+3}], s{T} offen")
    a(f"v_lshrrev_b32 v17, 5, v{vL}\ns_lshr_b32 s{T+1}, s{T+1}, 1\ns_lshl_b32 s{T+1}, s{T+1}, 1\nv_or_b32 v17, s{T+1}, v17\nv_lshlrev_b32 v17, 4, v17\nv_lshlrev_b32 v{UA}, 3, v{vL}\nv_xor_b32 v{UA}, v{UA}, v17")
    c1 = -2*0.7978845608028654*1.4426950408889634
    a(f"s_mov_b32 s{gc2}, {f2u(c1*0.044715)}\nv_mov_b32 v{C1}, {f2u(c1)}")
    if_wave_eq(a, 0, lambda: poll(a, "H", sJ, 32))
    a("s_barrier")
    stamp(a, "mlp1.polled"); stamp(a, "z3.poll")
    def act(p, s):
        if p == 4: a(f"s_add_u32 s{T}, s{rot}, {(s & 7)*4096}\ns_and_b32 s{T}, s{T}, 0x7fff\ns_add_u32 s{T}, s{T}, s{src4}\ns_add_u32 m0, s{dst}, {(s % R)*16384}" + (f"\ns_add_u32 s{T}, s{T}, 131072" if s >= 8 else "\ns_nop 0"))
        else: a(f"s_add_u32 m0, s{dst}, {(s % R)*16384}\ns_add_u32 s{T}, s{src5}, {(s//7)*114688 + (s % 7)*4096}")
        nt = " nt" if C.ntact else ""
        a(f"buffer_load_dwordx4 v{vL16}, s[{S_WS}:{S_WS+3}], s{T} offen sc1{nt} lds\nbuffer_load_dwordx4 v{vL16}, s[{S_WS}:{S_WS+3}], s{T} offen offset:1024 sc1{nt} lds")
        vm.add(("act", p, s), 2)
    def reads(p, s):
        out = []; o = (s % R)*16384
        for t in range(4):
            b = F[s & 1] + 4*t
            if p == 4: out += [f"ds_read_b64_tr_b16 v[{b}:{b+1}], v{YA4} offset:{o + t*1024}", f"ds_read_b64_tr_b16 v[{b+2}:{b+3}], v{YA4} offset:{o + t*1024 + 256}"]
            else: out.append(f"ds_read_b128 v[{b}:{b+3}], v{YA5 + (t & 1)} offset:{o + (t >> 1)*2048}")
        return out
    def mfmas(p, s):
        out = []
        n = 8 if p == 4 else 7
        y = s // n
        for t in range(4):
            f = 4*(s % n) + t
            if p == 4: X = f"a[{4*f}:{4*f+3}]" if f < 28 else f"v[{W1T+4*(f-28)}:{W1T+4*(f-28)+3}]"
            else: r = w2_reg(f); X = f"{r[0]}[{int(r[1:])}:{int(r[1:])+3}]"
            Y = f"v[{F[s & 1]+4*t}:{F[s & 1]+4*t+3}]"
            c = "0" if f == 0 else f"v[{ACC+16*y}:{ACC+16*y+15}]"
            A_, B_ = (Y, X) if p == 4 else (X, Y)
            if C.xm == 1 and f > 3: out.append("s_nop 0"); continue
            if C.xm == 2 and f > 3:
                out.append(f"v_mfma_f32_16x16x32_bf16 v[{ACC+16*y}:{ACC+16*y+3}], {A_}, {B_}, v[{ACC+16*y}:{ACC+16*y+3}]\nv_mfma_f32_16x16x32_bf16 v[{ACC+16*y+4}:{ACC+16*y+7}], {A_}, {B_}, v[{ACC+16*y+4}:{ACC+16*y+7}]"); continue
            out.append(f"v_mfma_f32_32x32x16_bf16 v[{ACC+16*y}:{ACC+16*y+15}], {A_}, {B_}, {c}")
        return out
    RW = 31
    def inring(f): return C.optx and 20 <= f < 24
    def wdma(fs):
        for f in fs:
            if inring(f):
                a(f"s_add_u32 m0, s{dst}, {((f-20) >> 1)*16384 + (f & 1)*1024}\ns_add_u32 s{T}, s{sW2S}, {f*16*4096}")
                a(f"buffer_load_dwordx4 v{vF2}, s[{S_W2}:{S_W2+3}], s{T} offen lds")
            else: w2_dma(a, f)
            vm.add(("w", f))
    def wr(fs): return [x for f in fs for x in (frag_reads(w2_reg(f), RW, ((f-20) >> 1)*16384 + (f & 1)*1024) if inring(f) else w2_reads(f))]
    def wread(fs):
        for x in wr(fs): a(x)
    def ep_w(y, rs=range(16)):
        o = [f"ds_write_addtid_b32 v{ACC+16*y+r} offset:{EPO + r*256}" for r in rs]
        o[0] = f"s_sub_u32 m0, s{ewb}, {EPO}\ns_nop 0\n" + o[0]
        return o
    def ep_r(): return [f"ds_read_b128 v[{ET+4*p}:{ET+4*p+3}], v{ERA} offset:{p*4096}" for p in range(4)]
    def ep_math():
        o = []
        for e in range(4): o += [f"v_add_f32 v{ET+e}, v{ET+e}, v{ET+4+e}", f"v_add_f32 v{ET+8+e}, v{ET+8+e}, v{ET+12+e}"]
        for e in range(4): o.append(f"v_add_f32 v{ET+e}, v{ET+e}, v{B1+e}")
        for e in range(4): o.append(f"v_add_f32 v{ET+e}, v{ET+e}, v{ET+8+e}")
        G = ET+4
        for e in range(4): o.append(f"v_mul_f32 v{G+e}, v{ET+e}, v{ET+e}")
        for e in range(4): o.append(f"v_fma_f32 v{G+e}, v{G+e}, s{gc2}, v{C1}")
        for e in range(4): o.append(f"v_mul_f32 v{G+e}, v{G+e}, v{ET+e}")
        for e in range(4): o.append(f"v_exp_f32 v{G+e}, v{G+e}")
        for e in range(4): o.append(f"v_add_f32 v{G+e}, 1.0, v{G+e}")
        for e in range(4): o.append(f"v_rcp_f32 v{G+e}, v{G+e}")
        for e in range(4): o.append(f"v_mul_f32 v{ET+e}, v{ET+e}, v{G+e}")
        o += [f"v_cvt_pk_bf16_f32 v{ET+8}, v{ET}, v{ET+1}", f"v_cvt_pk_bf16_f32 v{ET+9}, v{ET+2}, v{ET+3}"]
        return o
    def ep_store(y):
        if y: a(f"s_add_u32 s{ust}, s{ust}, 114688")
        a(f"buffer_store_dwordx2 v[{ET+8}:{ET+9}], v{UA}, s[{S_WS}:{S_WS+3}], s{ust} offen sc1")
        vm.add(("st", y))
    def body(m, lds, valu=()):
        lds = list(lds); valu = list(valu)
        nl = max(C.ldsper, -(-len(lds)//4)); nv = -(-len(valu)//4)
        for k in range(4):
            if k < len(m): a(m[k])
            for x in lds[k*nl:(k+1)*nl]: a(x)
            for x in valu[k*nv:(k+1)*nv]: a(x)
    for s in range(C.init): act(4, s)
    late = [int(c) for c in (C.schx if C.optx else C.schw)]
    assert sum(late) == 8 and len(late) == 6
    nxt = 12
    em = ep_math()
    deferred = []
    E_ = [int(c, 16) for c in C.eps]
    for s in range(16):
        tags = [("act", 4, s)] + ([("st", 0)] if s == C.pubs else [])
        a(f"s_waitcnt vmcnt({vm.need(*tags)}) lgkmcnt(0)\ns_barrier")
        if s not in (2, 3, 5, 6, 7): stamp(a, f"z4.{s:02d}")
        if s == 0: stamp(a, "mlp1.b0")
        if C.defer == 2 and s not in (E_[0], E_[1]):
            for k in deferred: act(4, k)
            deferred = []
        lds = reads(4, s); valu = []
        if s == 0: valu = [f"v_lshlrev_b32 v{B1}, 16, v{B1+2}", f"v_and_b32 v{B1+1}, 0xffff0000, v{B1+2}", f"v_lshlrev_b32 v{B1+2}, 16, v{B1+3}", f"v_and_b32 v{B1+3}, 0xffff0000, v{B1+3}"]
        if C.wfirst and s == E_[0] == E_[1]: lds = ep_w(0) + lds
        else:
            if s == E_[0]: lds += ep_w(0, range(8))
            if s == E_[1]: lds += ep_w(0, range(8, 16))
        if s == 0 and C.x4:
            a(f"v_subrev_u32 v17, {SVO}, v{vTRF}"); lds += xr
        if s == E_[2]: lds += ep_r()
        if s == E_[3]: valu += em[:24]
        if s == E_[4]: valu += em[24:]
        if s == E_[5]: lds += wr(range(4, 8))
        if s == E_[6]: lds += wr(range(8, 12))
        body(mfmas(4, s-1) if s else [], lds, valu)
        if s == C.pubs:
            stamp(a, "mlp1.pubA")
            if_wave_eq(a, 0, lambda: publish(a, "U", sJ))
        if s == E_[4]: ep_store(0)
        if s == 0:
            for k in range(C.init, R): act(4, k)
        if s >= 1 and s - 1 + R < 16:
            deferred.append(s - 1 + R)
            if not (C.defer and s in (E_[0], E_[1])):
                for k in deferred: act(4, k)
                deferred = []
        if s >= 11:
            n = late[s-11]
            assert nxt + n <= 12 + 4*(s > E_[5]) + 4*(s > E_[6]) + 2*(s >= 13) + 2*(s >= 14)
            wdma(range(nxt, nxt + n)); nxt += n
    assert E_[0] >= 9 and E_[2] > E_[1] and E_[3] > E_[2] and E_[5] >= 10 and E_[6] >= 11
    a("s_waitcnt lgkmcnt(0)")
    for x in mfmas(4, 15): a(x)
    stamp(a, "mlp1.loop"); stamp(a, "z4.loop")
    a("s_nop 9")
    for x in ep_w(1): a(x)
    if C.pubs >= 16: a(f"s_waitcnt vmcnt({vm.need(('st', 0))})")
    a("s_waitcnt lgkmcnt(0)\ns_barrier")
    stamp(a, "z4.ep")
    for x in ep_r(): a(x)
    if C.pubs >= 16: if_wave_eq(a, 0, lambda: publish(a, "U", sJ))
    wdma(range(nxt, 20))
    if C.n1 == 0: apoll_issue(a, fa, PV_); vm.add("pa")
    a("s_waitcnt lgkmcnt(0)")
    for x in em: a(x)
    ep_store(1)
    stamp(a, "mlp1.st"); stamp(a, "z4.st")
    npre = 20 + C.n1 + C.n2
    if C.n1:
        a(f"s_waitcnt vmcnt({vm.need(('w', 15))})")
        wread(range(12, 16))
        a("s_waitcnt lgkmcnt(0)")
        apoll_issue(a, fa, PV_); vm.add("pa")
        wdma(range(20, 20 + C.n1))
        a(f"s_waitcnt vmcnt({vm.need('pa')})")
        wread(range(16, 20))
        a("s_barrier")
        stamp(a, "z4.xdrain")
        if_wave_eq(a, 0, lambda: publish(a, "UB", sJ))
        a("s_waitcnt lgkmcnt(0)")
        wdma(range(20 + C.n1, npre))
        first = 0
    else:
        a(f"s_waitcnt vmcnt({vm.need('pa')})")
        wread(range(12, 20))
        apoll_check(a, fa, PV_, 28)
        act(5, 0); act(5, 1)
        a(f"s_waitcnt vmcnt({vm.need(('st', 1))})\ns_barrier")
        stamp(a, "z4.xdrain")
        if_wave_eq(a, 0, lambda: publish(a, "UB", sJ))
        first = 2
    a(f"s_branch {LM}")
    a(f"{LS}:")
    a("s_waitcnt vmcnt(0)")
    if C.x4:
        a(f"v_subrev_u32 v17, {SVO}, v{vTRF}")
        for x in xr: a(x)
    wread(range(4, 12)); a("s_waitcnt lgkmcnt(0)")
    keep = vm.ops[:]
    wdma(range(12, 20))
    a("s_waitcnt vmcnt(0)")
    wread(range(12, 20)); a("s_waitcnt lgkmcnt(0)")
    wdma(range(20, npre))
    a(f"v_mov_b32 v{PV_}, 28\ns_waitcnt vmcnt(0)")
    if_wave_eq(a, 0, lambda: poll(a, "U", sJ, 28))
    a("s_barrier")
    for k in range(first): act(5, k)
    vm.ops = keep
    a(f"{LM}:")
    if first == 0: apoll_check(a, fa, PV_, 28)
    stamp(a, "mlp2.polled"); stamp(a, "z4.zpolled")
    for k in range(first, C.init5): act(5, k)
    ep2_read_addr(a, RA_, EP+16, E+32768, ewb, TT)
    sch = [int(c) for c in C.sch2]
    extra = list(range(12))
    qe = [int(c) for c in C.qe]
    assert sum(sch[:5]) + sum(qe) <= 7
    def point(p):
        for _ in range(sch[p]):
            k = extra.pop(0); qkv_piece8(a, qb, k); vm.add(("x", k))
    sb = C.sb
    na = max(first, C.init5); nw = npre
    for s in range(14):
        tags = [("act", 5, s)]
        if s == sb: tags.append("pb")
        if s == 5: tags.append(("w", 23))
        if s == 6 and not C.x4: tags.append(("w", 27))
        a(f"s_waitcnt vmcnt({vm.need(*tags)}) lgkmcnt(0)\ns_barrier")
        if s not in (8, 9, 10): stamp(a, f"z5.{s:02d}")
        if s == 0: stamp(a, "mlp2.b0")
        lds = reads(5, s); valu = []
        if s == 0:
            for e in range(4): valu += [f"v_lshlrev_b32 v{ADD+2*e}, 16, v{vRES+e}", f"v_and_b32 v{ADD+1+2*e}, 0xffff0000, v{vRES+e}"]
            valu.append(f"v_lshlrev_b32 v{B2}, 16, v{B2}")
            for e in range(8): valu.append(f"v_add_f32 v{ADD+e}, v{ADD+e}, v{B2}")
        if s == 5: lds += wr(range(20, 24))
        if s == 6 and not C.x4: lds += wr(range(24, 28))
        if s == C.wa5: lds += ep2_writes(ACC, EP+16, ewb)
        body(mfmas(5, s-1) if s else [], lds, valu)
        if s == sb:
            apoll_check(a, fb, PV_, 28)
            stamp(a, "mlp2.pollB")
        if s == C.pbi: apoll_issue(a, fb, PV_); vm.add("pb")
        lim = min(14, s + 4, 7 if s < sb else 14)
        want = min(lim, na + 1) if nw < NW2 and not C.deep else lim
        want = max(want, min(lim, s + 3))
        while na < want: act(5, na); na += 1
        if nw < NW2: wdma((nw, nw+1)); nw += 2
        if s == C.q5s and C.pret:
            a(f"s_lshl_b32 s{T}, s{sL}, 30\ns_add_u32 s{T}, s{T}, s{sXO}\nbuffer_load_dword v{TT+1}, v{vXO}, s[{S_XD}:{S_XD+3}], s{T} offen sc1")
            a(f"s_lshl_b32 s{T}, s{sI}, 3\ns_add_u32 s{T}, s{T}, s{sJ}\ns_lshl_b32 s{T}, s{T}, 10\ns_add_u32 s{T}, s{T}, {WS_ST2}\nv_lshlrev_b32 v{TT+2}, 3, v{vL}")
            a(f"buffer_load_dword v{TT+2}, v{TT+2}, s[{S_WS}:{S_WS+3}], s{T} offen sc1")
            vm.add("pre", 2)
        if s == C.q5s and C.q5:
            a(f"s_lshr_b32 s{T}, s2, 3\ns_lshl_b32 s{T}, s{T}, 3\ns_add_u32 s{T}, s{T}, s{sW}\ns_mul_i32 s{T}, s{T}, {6*1024}")
            if C.q5 == 1: a(f"s_add_u32 s{T}, s{T}, 384\nv_min_u32 v{TT}, 5, v{vL}\nv_lshlrev_b32 v{TT}, 10, v{TT}")
            else: a(f"v_min_u32 v{TT}, 47, v{vL}\nv_lshlrev_b32 v{TT}, 7, v{TT}")
            a(f"buffer_load_dword v{TT}, v{TT}, s[{S_QKV}:{S_QKV+3}], s{T} offen"); vm.add("q5")
        if s >= 11:
            for _ in range(qe[s-11]):
                k = extra.pop(0); qkv_piece8(a, qb, k); vm.add(("x", k))
    assert na == 14 and nw == NW2
    a(f"s_waitcnt lgkmcnt({15 if C.wa5 == 13 else 0})")
    for x in mfmas(5, 13): a(x)
    stamp(a, "mlp2.loop")
    a("s_nop 9")
    OUT = 80
    for x in ep2_writes(ACC+16, E+32768, ewb): a(x)
    Lq = a.label()
    a(f"s_cmp_lg_u32 s{sL}, 0\ns_cbranch_scc1 {Lq}")
    point(0); point(1); point(2)
    a(f"v_mov_b32 v20, 0\nv_mov_b32 v21, 0\nv_mov_b32 v22, 0x3f803f80\nv_lshlrev_b32 v23, 3, v{vN}\ns_mov_b32 s{T+10}, 0x01010101\ns_mov_b32 s{T+11}, 0x01010101")
    a(f"s_lshl_b32 s{T+9}, s{sI}, 3\ns_add_u32 s{T+9}, s{T+9}, s{sJ}\ns_lshl_b32 s{T+9}, s{T+9}, 10\ns_add_u32 s{T+9}, s{T+9}, {WS_ST2}")
    a(f"{Lq}:\ns_waitcnt lgkmcnt(0)\ns_barrier")
    ep2_sum(a, RA_, ADD, OUT)
    point(3)
    for e in range(4): a(f"v_cvt_pk_bf16_f32 v{vRES+e}, v{OUT+2*e}, v{OUT+1+2*e}")
    if C.finplain:
        Lf = a.label()
        a(f"s_cmp_eq_u32 s{sL}, 0\ns_cbranch_scc1 {Lf}\nbuffer_store_dwordx4 v[{vRES}:{vRES+3}], v{vXO}, s[{S_XD}:{S_XD+3}], s{sXO} offen{' nt' if C.finplain == 2 else ' sc1' if C.finplain == 3 else ''}\ns_branch L_fin\n{Lf}:")
    rstore(a, f"buffer_store_dwordx4 v[{vRES}:{vRES+3}], v{vXO}, s[{S_XD}:{S_XD+3}], s{sXO} offen", bulk=True)
    stamp(a, "mlp2.st")
    a(f"s_cmp_lg_u32 s{sL}, 0\ns_cbranch_scc1 L_fin")
    for e in range(4): a(f"v_dot2c_f32_bf16 v20, v{vRES+e}, v22\nv_dot2c_f32_bf16 v21, v{vRES+e}, v{vRES+e}")
    a("s_nop 0")
    dpp_red8(a, [20, 21])
    a(f"s_mov_b64 exec, s[{T+10}:{T+11}]")
    rstore(a, f"buffer_store_dwordx2 v[20:21], v23, s[{S_WS}:{S_WS+3}], s{T+9} offen", bulk=True)
    a("s_mov_b64 exec, -1")
    point(4)
    a(f"s_waitcnt vmcnt({sch[4]})\ns_barrier")
    stamp(a, "mlp2.end")
    if_wave_eq(a, 4, lambda: publish(a, "X", sI))
    point(5)

def main(out):
    a = Asm()
    K = NAME + "_kernel"
    a.L.append(f".globl {K}\n.p2align 8\n.type {K},@function\n{K}:")
    prologue(a)
    a(f"buffer_load_dwordx4 v[{vRES}:{vRES+3}], v{vXO}, s[{S_XS}:{S_XS+3}], s{sXO} offen")
    stamp(a, "entry2")
    a(f"s_cmp_lt_u32 s{sW}, 4\ns_cbranch_scc1 L_p1_cons")
    layer0_helpers(a)
    ool_at = len(a.L)
    a("L_layer:")
    ool = phase1(a)
    a.L.append("; ======== P2: attention")
    phase2(a)
    phase3(a)
    mlp(a)
    a(f"s_mov_b32 s{S_XS}, s{S_XD}\ns_mov_b32 s{S_XS+1}, s{S_XD+1}\ns_mov_b32 s{S_XD}, s{sOUT}\ns_mov_b32 s{S_XD+1}, s{sOUT+1}")
    a(f"s_mov_b32 s{sL}, 1\ns_mov_b32 s{sLB}, {LSTRIDE}")
    if C.stamp: a("v_mov_b32 v7, v6")
    a("s_branch L_layer")
    a("L_fin:")
    if C.padat == "end": stamp(a, "end")
    if C.stamp:
        a("s_waitcnt vmcnt(0)")
        stamp(a, "fin")
        a(f"s_lshl_b32 s{T}, s2, 3\ns_add_u32 s{T}, s{T}, s{sW}\ns_lshl_b32 s{T}, s{T}, 9\ns_add_u32 s{T}, s{T}, {WS_STAMP}\nv_lshlrev_b32 v16, 2, v{vL}")
        a(f"buffer_store_dword v7, v16, s[{S_WS}:{S_WS+3}], s{T} offen\nbuffer_store_dword v6, v16, s[{S_WS}:{S_WS+3}], s{T} offen offset:256")
    a("L_end:\ns_endpgm")
    softmax_safe(a)
    b = Asm()
    for x in ool[-13:-12] + [o for o in ool if o is not ool[-13]] if False else ool: b(x)
    a.L[ool_at:ool_at] = b.L
    DOC = """;
; One persistent launch, 256 workgroups (one per CU) x 8 waves.  Workgroup (i, j): i = 64-token block, j = 4-head group / 64-channel block.
; directly; row sums from a ones row; checked, with a true-max two-pass fallback)  ->  P3 output projection + residual + LayerNorm
; statistics exchange  ->  P4/P5 token-mixing MLP as one pipeline over two channel halves, weights resident in registers.
; Hand-offs go through d_ws: write-through stores + counters/flags that are cleared at start (arrival counted in d_debug);
"""
    s = HDR + "; @launch grid=(256,1,1) block=(512,1,1) lds=163840\n" + DOC
    s += '.amdgcn_target "amdgcn-amd-amdhsa--gfx950"\n.text\n' + a.text().replace("CODE_SPAN", "L_end-L_pc0").replace("SPAN2", "L_end-L_pc1")
    s += f""".section .rodata,"a"
.p2align 6
.amdhsa_kernel {K}
  .amdhsa_next_free_vgpr 256
  .amdhsa_next_free_sgpr 102
  .amdhsa_accum_offset {NARCH}
  .amdhsa_group_segment_fixed_size 0
  .amdhsa_kernarg_size 88
  .amdhsa_user_sgpr_count 2
  .amdhsa_user_sgpr_kernarg_segment_ptr 1
  .amdhsa_system_sgpr_workgroup_id_x 1
.end_amdhsa_kernel
"""
    open(out, "w").write(s)
    if C.stamp: open(out + ".stamps", "w").write("\n".join(STAMPS))

if __name__ == "__main__":
    for arg in sys.argv[2:]:
        k, v = arg.split("="); setattr(C, k, v if isinstance(getattr(C, k), str) else type(getattr(C, k))(int(v)))
    main(sys.argv[1])
```
